```python
import torch

def _softmax(x, axis=-1):
    return torch.softmax(x, dim=axis)
def _gelu(x):
    return torch.nn.functional.gelu(x, approximate="tanh")
def _silu(x):
    return torch.nn.functional.silu(x)
def _sigmoid(x):
    return torch.sigmoid(x)
def _layernorm(x, axis=-1, eps=1e-5):
    m = x.mean(dim=axis, keepdim=True)
    v = x.var(dim=axis, keepdim=True, unbiased=False)
    return (x - m) / torch.sqrt(v + eps)
def _scatter_add(tgt, idx, src, axis=0):
    return tgt.clone().index_add_(axis, idx, src)
def _segment_sum(src, seg, n):
    out = torch.zeros((n,) + src.shape[1:], dtype=src.dtype)
    return out.index_add_(0, seg, src)
def _pad(x, pw):
    flat = tuple(v for pair in reversed(pw) for v in pair)
    return torch.nn.functional.pad(x, flat)

kernel_name = 'concat_heads__compressed_kv_cla__sliding_block__prompt'

def setup_inputs():

    _w = (lambda a: (lambda t: t.to(torch.bfloat16) if t.is_floating_point() else t)(torch.as_tensor(a)))
    def _A_setup():
        B, H, Sq, Sk, D, M = 1, 32, 2048, 2048, 128, 512
        Dc = 4 * D
        return {
            "x": _w((lambda *s: torch.randn(*s, dtype=torch.bfloat16) * 0.2)(B, Sq, M)),
            "c_kv": _w((lambda *s: torch.randn(*s, dtype=torch.bfloat16) * 1.6)(B, Sk, Dc)),
            "w_q": _w((lambda *s: torch.randn(*s, dtype=torch.bfloat16) * 3.2)(M, H, D) * (M ** -0.5)),
            "w_uk": _w((lambda *s: torch.randn(*s, dtype=torch.bfloat16) * 3.2)(Dc, H, D) * (Dc ** -0.5)),
            "w_uv": _w((lambda *s: torch.randn(*s, dtype=torch.bfloat16) * 1.6)(Dc, H, D) * (Dc ** -0.5)),
            "w_o": _w((lambda *s: torch.randn(*s, dtype=torch.bfloat16) * 1.6)(H, D, M) * ((H * D) ** -0.5)),
        }
    _A_in = _A_setup()

    def _B_setup():
        B, S, D = 1, 2048, 512
        return {
            "x": _w((lambda *s: torch.randn(*s, dtype=torch.bfloat16) * 0.4)(B, S, D)),
            "wqkv": _w((lambda *s: torch.randn(*s, dtype=torch.bfloat16) * 0.4)(D, 3 * D)),
            "wo": _w((lambda *s: torch.randn(*s, dtype=torch.bfloat16) * 0.05)(D, D)),
        }
    _B_in = _B_setup()

    return {
        "A_x": _A_in["x"],
        "A_c_kv": _A_in["c_kv"],
        "A_w_q": _A_in["w_q"],
        "A_w_uk": _A_in["w_uk"],
        "A_w_uv": _A_in["w_uv"],
        "A_w_o": _A_in["w_o"],
        "B_x": _B_in["x"],
        "B_wqkv": _B_in["wqkv"],
        "B_wo": _B_in["wo"],
    }

def reference(A_x, A_c_kv, A_w_q, A_w_uk, A_w_uv, A_w_o, B_x, B_wqkv, B_wo):
    def _A_ref(x, c_kv, w_q, w_uk, w_uv, w_o):
        B, Sq, M = x.shape[0], x.shape[1], x.shape[2]
        Sk = c_kv.shape[1]
        H, D = w_q.shape[1], w_q.shape[2]
        q = torch.einsum("bqm,mhd->bhqd", x, w_q)
        k = torch.einsum("bkc,chd->bhkd", c_kv, w_uk)
        v = torch.einsum("bkc,chd->bhkd", c_kv, w_uv)
        scores = torch.einsum("bhqd,bhkd->bhqk", q, k) * (D ** -0.5)
        off = Sk - Sq
        qi = torch.arange(Sq)[:, None]
        kj = torch.arange(Sk)[None, :]
        cmask = kj <= (qi + off)
        scores = torch.where(cmask[None, None], scores, -1e9)
        p = _softmax(scores, axis=-1)
        ctx = torch.einsum("bhqk,bhkd->bhqd", p, v)
        return torch.einsum("bhqd,hdm->bqm", ctx, w_o)

    def _B_ref(x, wqkv, wo):
        B, S, D = x.shape
        H = 32; Dh = D // H; W = 256
        qkv = (lambda x, *d: x.permute(*d))((x @ wqkv).reshape(B, S, 3, H, Dh), 2, 0, 3, 1, 4)
        q, k, v = qkv[0], qkv[1], qkv[2]
        scores = torch.einsum("bhqd,bhkd->bhqk", q, k) * (Dh ** -0.5)
        idx = torch.arange(S)
        mask = (idx[:, None] - idx[None, :] >= 0) & (idx[:, None] - idx[None, :] < W)
        scores = torch.where(mask[None, None], scores, -1e9)
        p = _softmax(scores, axis=-1)
        o = torch.einsum("bhqk,bhkd->bhqd", p, v)
        return (lambda x, *d: x.permute(*d))(o, 0, 2, 1, 3).reshape(B, S, D) @ wo

    a = _A_ref(A_x, A_c_kv, A_w_q, A_w_uk, A_w_uv, A_w_o)
    b = _B_ref(B_x, B_wqkv, B_wo)
    return torch.concatenate([a, b], axis=-1)
```

```python
from lib import *
import struct, math
def f32(x): return '0x%08x' % struct.unpack('<I', struct.pack('<f', x))[0]
CA = math.log2(math.e) / math.sqrt(128.0)

vWd, vXd, vWr, vXr, vSt = 2, 6, 10, 12, 16
WF, TMP, PK, ACC = 32, 64, 80, 128
sACT, sW, sWS = 28, 32, 36
sWave, sGc, sStr, sRem, sLdw, sWoff, sLdw128 = 40, 41, 42, 43, 44, 45, 46
sOut0, sOut1, sScl = 47, 48, 49
sNOut0, sNOut1, sNScl = 50, 51, 52
sType, sBlk, sXoff, sM0W, sM0X, sJob2, sT0, sT1, sT2, sGcL, sRemL, sWsz = 53, 54, 55, 56, 57, 58, 59, 60, 61, 62, 63, 64
D = 12
import os
STORE_FLAGS = os.environ.get('K1_SF', '')
NOSTORE = os.environ.get('K1_NOSTORE')
DIAG = os.environ.get('DIAG')
def stamp():
    if not DIAG: return []
    return ['s_memtime s[70:71]', 's_waitcnt lgkmcnt(0)', 'v_cmp_eq_u32 vcc, s72, v0', 'v_mov_b32 v30, s70', 's_add_u32 s72, s72, 1', 'v_cndmask_b32 v31, v31, v30, vcc']


def acc(par, fb, tb): return ACC + 64 * par + 16 * (2 * fb + tb)
def xfr(tb, s): return (tb * 32 + s) * 4
def wfr(s, fb): return WF + 4 * ((2 * s + fb) % 8)

def w_read(idx):
    idx %= 128
    s, fb, p = idx // 4, (idx >> 1) & 1, idx & 1
    u, sl = s // 8, s % 8
    r = wfr(s, fb) + 2 * p
    return f'ds_read_b64_tr_b16 {vr(r,2)}, v{vWr+fb} offset:{u*16384 + (16*sl + 4*p)*128}'

def w_dma(unit_slot, pad=False):
    L = [f's_add_u32 m0, s{sM0W}, {unit_slot*16384} ; tag=W{unit_slot}']
    if pad: L.append('s_nop 0')
    for q in range(4):
        L.append(f'buffer_load_dwordx4 v{vWd+q}, {sr(sW,4)}, s{sWoff} offen offset:{q*1024} lds ; tag=W{unit_slot}')
    L.append(f's_add_u32 s{sWoff}, s{sWoff}, s{sLdw128}')
    return L

def x_dma(c):
    slot = c % 3
    L = []
    for hh in range(2):
        L.append(f's_add_u32 m0, s{sM0X}, {slot*8192 + hh*4096} ; tag=X{c}')
        L.append(f's_add_u32 s{sT0}, s{sXoff}, {c*128 + hh*32768}')
        for q in range(4):
            L.append(f'buffer_load_dwordx4 v{vXd+q}, {sr(sACT,4)}, s{sT0} offen offset:{q*1024} lds ; tag=X{c}')
    return L

def x_read(c, sp, tb):
    return f'ds_read_b128 {ar(xfr(tb, 4*c+sp),4)}, v{vXr+sp} offset:{(c%3)*8192 + tb*4096}'

def load_params():
    return [
        f's_add_u32 s{sGcL}, s{sGcL}, s{sStr}',
        f's_sub_u32 s{sRemL}, s{sRemL}, 1',
        f's_lshr_b32 s{sT1}, s{sGcL}, 6',
        f's_cmp_eq_u32 s{sT1}, 0',
        f's_cselect_b64 {sr(sW,2)}, s[10:11], s[12:13]',
        f's_cmp_eq_u32 s{sT1}, 2',
        f's_cselect_b64 {sr(sW,2)}, s[8:9], {sr(sW,2)}',
        f's_cmp_eq_u32 s{sT1}, 3',
        f's_cselect_b64 {sr(sW,2)}, s[18:19], {sr(sW,2)}',
        f's_cmp_eq_u32 s{sRemL}, 0',
        f's_cselect_b32 s{sW+2}, 0, s{sWsz}',
        f's_and_b32 s{sT1}, s{sGcL}, 63',
        f's_lshl_b32 s{sT1}, s{sT1}, 7',
        f's_mul_i32 s{sWoff}, s{sWave}, s{sLdw}',
        f's_lshl_b32 s{sWoff}, s{sWoff}, 5',
        f's_add_u32 s{sWoff}, s{sWoff}, s{sT1}',
    ]

def comp_params():
    return [
        f's_lshr_b32 s{sT1}, s{sGc}, 1',
        f's_lshl_b32 s{sT1}, s{sT1}, 19',
        f's_and_b32 s{sT2}, s{sGc}, 1',
        f's_lshl_b32 s{sT2}, s{sT2}, 12',
        f's_add_u32 s{sT1}, s{sT1}, s{sT2}',
        f's_lshl_b32 s{sT2}, s{sBlk}, 13',
        f's_add_u32 s{sNOut0}, s{sT1}, s{sT2}',
        f's_add_u32 s{sNOut1}, s{sNOut0}, 8192',
        f's_sub_u32 s{sT1}, s{sGc}, 192',
        f's_lshl_b32 s{sT1}, s{sT1}, 18',
        f's_lshl_b32 s{sT2}, s{sBlk}, 12',
        f's_add_u32 s{sT1}, s{sT1}, s{sT2}',
        f's_add_u32 s{sT1}, s{sT1}, {48<<20}',
        f's_add_u32 s{sT2}, s{sT1}, 4096',
        f's_cmp_ge_u32 s{sGc}, 192',
        f's_cselect_b32 s{sNOut0}, s{sT1}, s{sNOut0}',
        f's_cselect_b32 s{sNOut1}, s{sT2}, s{sNOut1}',
        f's_lshr_b32 s{sT1}, s{sGc}, 6',
        f's_cmp_eq_u32 s{sT1}, 2',
        f's_cselect_b32 s{sNScl}, {f32(CA)}, 1.0',
        f's_cmp_eq_u32 s{sT1}, 1',
        f's_cselect_b32 s{sType}, 1, 0',
        f's_cmp_ge_u32 s{sGc}, 208',
        f's_cselect_b32 s{sType}, 1, s{sType}',
    ]

def groups(L):
    out = []
    for x in L:
        if x.startswith('s_cselect'): out[-1].append(x)
        else: out.append([x])
    return out

def epi_tile(par, fb, tb):
    a = acc(par, fb, tb)
    V = []
    pk = PK + 8 * ((2 * fb + tb) % 2)
    for j in range(0, 16, 2):
        V.append(f'v_mul_f32 v{TMP+j}, s{sScl}, v{a+j}')
        V.append(f'v_mul_f32 v{TMP+j+1}, s{sScl}, v{a+j+1}')
        V.append(f'v_cvt_pk_bf16_f32 v{pk+j//2}, v{TMP+j}, v{TMP+j+1}')
    so = sOut1 if tb else sOut0
    S = [f'buffer_store_dwordx4 {vr(pk+4*x,4)}, v{vSt}, {sr(sWS,4)}, s{so} offen offset:{(2*fb+x)*1024}{STORE_FLAGS}' for x in range(2)]
    if NOSTORE: S = ['s_nop 0', 's_nop 0']
    return V, S

def gen_pass(ptype, par, first):
    mf = []; pre = {}; val = {}
    def P(g, x): pre.setdefault(g, []).extend(x if isinstance(x, list) else [x])
    def V(g, x): val.setdefault(g, []).extend(x if isinstance(x, list) else [x])
    for G in range(128):
        s, fb, tb = G // 4, (G >> 1) & 1, G & 1
        a = acc(par, fb, tb)
        w, x = vr(wfr(s, fb), 4), ar(xfr(tb, s), 4)
        c = '0' if s == 0 else vr(a, 16)
        mf.append(f'v_mfma_f32_32x32x16_bf16 {vr(a,16)}, ' + (f'{w}, {x}' if ptype == 0 else f'{x}, {w}') + f', {c}')
        if G % 4 == 0:
            need = f';NEED {vr(wfr(s,0),4)} {vr(wfr(s,1),4)}'
            if first: need += f' {ar(xfr(0,s),4)} {ar(xfr(1,s),4)}'
            P((G, 'before'), need)
        if (G + D) % 32 == 0:
            nu = ((G + D) // 32) % 4
            P(G, [f';VMNEED W{nu}', 's_barrier'])
        P(G, w_read(G + D))
    for u in range(4):
        dm = w_dma((u + 2) % 4)
        g0 = 32 * u
        P(g0 + 5, dm[0]); P(g0 + 6, dm[1]); P(g0 + 8, dm[2]); P(g0 + 10, dm[3]); P(g0 + 12, [dm[4], dm[5]])
    return mf, pre, val, P, V

def build_pass(ptype, par, first):
    mf, pre, val, P, V = gen_pass(ptype, par, first)
    for k, x in enumerate(groups(load_params())): P(45 + k, x)
    if not first:
        g = 3
        for fb in range(2):
            for tb in range(2):
                Vl, Sl = epi_tile(par ^ 1, fb, tb)
                for k in range(0, 24, 3):
                    V(g, Vl[k:k+3]); g += 1
                    if k == 9: P(g + 1, Sl[0])
                P(g + 1, Sl[1])
        assert g < 40
    g = 66
    P(g, f's_mov_b32 s{sOut0}, s{sNOut0}'); P(g + 1, f's_mov_b32 s{sOut1}, s{sNOut1}'); P(g + 2, f's_mov_b32 s{sScl}, s{sNScl}')
    P(g + 3, f's_add_u32 s{sGc}, s{sGc}, s{sStr}'); P(g + 4, f's_sub_u32 s{sRem}, s{sRem}, 1')
    for k, x in enumerate(groups(comp_params())): P(g + 5 + k, x)
    if first:
        for c in range(1, 8):
            g0 = 16 * (c - 1) + 5
            P(g0, f';VMNEED X{c}')
            k = 0
            for sp in range(4):
                for tb in range(2):
                    P(g0 + k, x_read(c, sp, tb)); k += 1
        for c in range(0, 5):
            g0 = 16 * c + 13 if c > 0 else 13
            xd = x_dma(c + 3)
            P(g0, xd[0:3]); P(g0 + 1, xd[3]); P(g0 + 2, xd[4]); P(g0 + 3, xd[5])
            P(g0 + 4, xd[6:9]); P(g0 + 5, xd[9]); P(g0 + 6, xd[10]); P(g0 + 7, xd[11])
    return weave(mf, pre, val)

def final_epi(par):
    L = ['s_nop 7', 's_nop 3']
    for fb in range(2):
        for tb in range(2):
            Vl, Sl = epi_tile(par, fb, tb)
            L += Vl + Sl
    return L

def gen_k1(T=int(os.environ.get('K1_T', 4))):
    name = 'k1_kernel'
    L = []
    a = L.append
    a(f'.p2align 8\n.type {name},@function\n{name}:')
    a('s_cmp_ge_u32 s2, 256'); a('s_cbranch_scc1 K1_END')
    a('s_load_dwordx16 s[4:19], s[0:1], 0'); a('s_load_dwordx8 s[20:27], s[0:1], 64')
    a('v_lshrrev_b32 v1, 6, v0'); a('v_and_b32 v0, 63, v0')
    a(f'v_readfirstlane_b32 s{sWave}, v1')
    nj = 32 // T
    lt = T.bit_length() - 1
    a(f's_and_b32 s{sT0}, s2, 7'); a(f's_lshr_b32 s{sT1}, s2, 3')
    ng = 8 // T
    a(f's_and_b32 s{sT2}, s{sT0}, {ng-1}'); a(f's_lshl_b32 s{sT2}, s{sT2}, {lt}')
    a(f's_and_b32 s{sBlk}, s{sT1}, {T-1}'); a(f's_add_u32 s{sBlk}, s{sBlk}, s{sT2}')
    a(f's_lshr_b32 s{sT0}, s{sT0}, {ng.bit_length()-1}'); a(f's_mul_i32 s{sT0}, s{sT0}, {nj}')
    a(f's_lshr_b32 s{sT1}, s{sT1}, {lt}'); a(f's_add_u32 s{sT0}, s{sT0}, s{sT1}')
    a(f's_lshl_b32 s{sXoff}, s{sBlk}, 18'); a(f's_lshl_b32 s{sT1}, s{sWave}, 16'); a(f's_add_u32 s{sXoff}, s{sXoff}, s{sT1}')
    a(f's_lshl_b32 s{sBlk}, s{sBlk}, 3'); a(f's_lshl_b32 s{sT1}, s{sWave}, 1'); a(f's_add_u32 s{sBlk}, s{sBlk}, s{sT1}')
    a(f's_mul_i32 s{sT1}, s{sT0}, 57'); a(f's_lshr_b32 s{sT1}, s{sT1}, 9')
    a(f's_mul_i32 s{sT2}, s{sT1}, 9'); a(f's_sub_u32 s{sT2}, s{sT0}, s{sT2}'); a(f's_mul_i32 s{sT2}, s{sT2}, 7')
    a(f's_lshl_b32 s{sGc}, s{sT1}, 6'); a(f's_add_u32 s{sGc}, s{sGc}, s{sT2}')
    a(f's_mov_b32 s{sStr}, 1'); a(f's_mov_b32 s{sRem}, 7'); a(f's_mov_b32 s{sJob2}, 0')
    a(f's_cmp_eq_u32 s{sT0}, 31')
    a(f's_cselect_b32 s{sGc}, 213, s{sGc}'); a(f's_cselect_b32 s{sRem}, 3, s{sRem}')
    a(f's_cmp_eq_u32 s{sT0}, 30')
    a(f's_cselect_b32 s{sGc}, 63, s{sGc}'); a(f's_cselect_b32 s{sRem}, 2, s{sRem}'); a(f's_cselect_b32 s{sStr}, 64, s{sStr}'); a(f's_cselect_b32 s{sJob2}, 1, 0')
    a(f's_lshl_b32 s{sM0W}, s{sWave}, 12')
    a(f's_mul_i32 s{sM0X}, s{sWave}, 24576'); a(f's_add_u32 s{sM0X}, s{sM0X}, 65536')
    a(f'v_lshlrev_b32 v{vSt}, 4, v0')
    a('v_lshrrev_b32 v20, 3, v0'); a('v_lshlrev_b32 v21, 10, v20')
    a('v_lshrrev_b32 v22, 4, v0'); a('v_and_b32 v23, 7, v0'); a('v_xor_b32 v22, v22, v23')
    for q in range(4):
        a(f'v_xor_b32 v24, {4*(q&1)}, v22'); a(f'v_lshl_add_u32 v24, v24, 4, v21'); a(f'v_add_u32 v{vXd+q}, {q*7168}, v24')
    a('v_and_b32 v20, 31, v0'); a('v_lshrrev_b32 v21, 5, v0'); a('v_bfe_u32 v22, v0, 1, 3')
    a('v_lshlrev_b32 v20, 7, v20'); a(f'v_add_u32 v20, s{sM0X}, v20')
    for sp in range(4):
        a(f'v_add_u32 v24, {2*sp}, v21'); a('v_xor_b32 v24, v24, v22'); a(f'v_lshl_add_u32 v{vXr+sp}, v24, 4, v20')
    a('v_bfe_u32 v20, v0, 2, 2'); a('v_lshrrev_b32 v21, 5, v0'); a('v_lshl_add_u32 v21, v21, 3, v20'); a('v_lshlrev_b32 v21, 7, v21')
    a('v_bfe_u32 v22, v0, 4, 1'); a('v_lshl_add_u32 v21, v22, 5, v21')
    a('v_and_b32 v22, 3, v0'); a('v_lshl_add_u32 v21, v22, 3, v21')
    a('v_bfe_u32 v22, v0, 3, 1')
    a(f'v_lshl_add_u32 v{vWr}, v22, 6, v21'); a('v_xor_b32 v22, 1, v22'); a(f'v_lshl_add_u32 v{vWr+1}, v22, 6, v21')
    a('s_waitcnt lgkmcnt(0)')
    a(f's_mov_b32 s{sWS}, s26'); a(f's_mov_b32 s{sWS+1}, s27'); a(f's_mov_b32 s{sWS+2}, 0x10000000'); a(f's_mov_b32 s{sWS+3}, 0x20000')
    a(f's_mov_b32 s{sW+3}, 0x20000'); a(f's_mov_b32 s{sACT+2}, 0x200000'); a(f's_mov_b32 s{sACT+3}, 0x20000')
    if DIAG: a('s_mov_b32 s72, 0'); a('v_mov_b32 v31, 0'); L += stamp()
    a('K1_JOB:')
    a(f's_lshr_b32 s{sT1}, s{sGc}, 6')
    a(f's_cmp_eq_u32 s{sT1}, 2'); a(f's_cselect_b64 {sr(sACT,2)}, s[4:5], s[6:7]')
    a(f's_cmp_eq_u32 s{sT1}, 3'); a(f's_cselect_b64 {sr(sACT,2)}, s[16:17], {sr(sACT,2)}')
    a(f's_movk_i32 s{sLdw}, 8192'); a(f's_cselect_b32 s{sLdw}, 3072, s{sLdw}')
    a(f's_mov_b32 s{sWsz}, 0x400000'); a(f's_cselect_b32 s{sWsz}, 0x180000, s{sWsz}')
    a(f's_lshl_b32 s{sLdw128}, s{sLdw}, 7')
    a('v_lshrrev_b32 v20, 3, v0'); a(f'v_mul_lo_u32 v20, v20, s{sLdw}')
    a('v_bfe_u32 v21, v0, 4, 1'); a('v_lshlrev_b32 v21, 2, v21'); a('v_and_b32 v22, 7, v0'); a('v_xor_b32 v21, v21, v22')
    a(f'v_lshl_add_u32 v{vWd}, v21, 4, v20')
    a(f's_lshl_b32 s{sT1}, s{sLdw}, 3'); a(f's_sub_u32 s{sT1}, s{sT1}, 1024')
    for q in range(1, 4): a(f'v_add_u32 v{vWd+q}, s{sT1}, v{vWd+q-1}')
    a(f's_sub_u32 s{sGcL}, s{sGc}, s{sStr}'); a(f's_add_u32 s{sRemL}, s{sRem}, 1')
    pro = load_params() + comp_params()
    pro += w_dma(0, True) + x_dma(0) + x_dma(1) + w_dma(1, True) + x_dma(2)
    pro += [';VMNEED X0', 's_barrier']
    pro += [w_read(i) for i in range(4)] + [x_read(0, 0, 0), x_read(0, 0, 1)] + [w_read(i) for i in range(4, D)]
    pro += [x_read(0, sp, tb) for sp in range(1, 4) for tb in range(2)]
    pro = auto_waits([], pro)
    L += pro
    L += stamp()
    a(f's_cmp_eq_u32 s{sType}, 1'); a('s_cbranch_scc1 K1_F1')
    code = {}
    for t in range(2):
        code['F', t] = auto_waits(pro, build_pass(t, 0, True))
    for t in range(2):
        for par in range(2):
            c1 = auto_waits(code['F', 0], build_pass(t, par, False))
            c2 = auto_waits(c1, build_pass(t, par, False))
            c3 = auto_waits(c2, build_pass(t, par, False))
            assert c2 == c3
            if c1 != c2:
                assert len(c1) == len(c2), (len(c1), len(c2))
                mm = []
                for x, y in zip(c1, c2):
                    if x != y:
                        gx = dict(re.findall(r'(\w+cnt)\((\d+)\)', x)); gy = dict(re.findall(r'(\w+cnt)\((\d+)\)', y))
                        assert gx.keys() == gy.keys(), (x, y)
                        x = 's_waitcnt ' + ' '.join(f'{k}({min(int(gx[k]), int(gy[k]))})' for k in gx)
                    mm.append(x)
                c2 = mm
            code['P', t, par] = c2
    def tail(par):
        return stamp() + [f's_cmp_eq_u32 s{sRem}, 0', f's_cbranch_scc1 K1_FIN{par}', f's_cmp_eq_u32 s{sType}, 1', f's_cbranch_scc1 K1_P1{par^1}', f's_branch K1_P0{par^1}']
    for t in range(2):
        a(f'.p2align 6\nK1_F{t}:'); L += code['F', t] + tail(0)
    for t in range(2):
        for par in range(2):
            a(f'.p2align 6\nK1_P{t}{par}:'); L += code['P', t, par] + tail(par)
    for par in range(2):
        a(f'K1_FIN{par}:'); L += final_epi(par)
        if par == 0: a('s_branch K1_DONE')
    a('K1_DONE:')
    a(f's_cmp_eq_u32 s{sJob2}, 0'); a('s_cbranch_scc1 K1_END2')
    a(f's_mov_b32 s{sJob2}, 0'); a(f's_mov_b32 s{sGc}, 191'); a(f's_mov_b32 s{sStr}, 1'); a(f's_mov_b32 s{sRem}, 1')
    a('s_waitcnt vmcnt(0) lgkmcnt(0)'); a('s_barrier'); a('s_branch K1_JOB')
    a('K1_END2:')
    if DIAG:
        L += stamp(); a('s_waitcnt vmcnt(0)'); L += stamp()
        a('s_memrealtime s[70:71]'); a('s_waitcnt lgkmcnt(0)'); a('v_writelane_b32 v31, s70, 63')
        a(f's_lshl_b32 s70, s2, 2'); a(f's_add_u32 s70, s70, s{sWave}'); a('s_lshl_b32 s70, s70, 8'); a(f's_add_u32 s70, s70, {200<<20}')
        a('v_lshlrev_b32 v30, 2, v0'); a(f'buffer_store_dword v31, v30, {sr(sWS,4)}, s70 offen')
    a('K1_END:'); a('s_endpgm')
    check_trace(pro + code['F', 0] + tail(0) + code['P', 0, 1] + tail(1) + code['P', 1, 0] + tail(0) + final_epi(0), 'k1a')
    check_trace(pro + code['F', 1] + tail(0) + code['P', 1, 1] + tail(1) + final_epi(1), 'k1b')
    return L, kdesc(name, 512, 256), f'; @launch kernel={name} grid=(256,1,1) block=(256,1,1) lds=163840'
```

```python
from lib import *
import os, struct, math
def f32(x): return '0x%08x' % struct.unpack('<I', struct.pack('<f', x))[0]
M = 1 << 20
KWS, VWS, QWS, BWS, CTX, OB, WOA, WOB = 0, 16 * M, 32 * M, 48 * M, 56 * M, 72 * M, 76 * M, 80 * M
DIAG = os.environ.get('DIAG')
CB = math.log2(math.e) * 0.25
THR = 16.0
NEGBIG = -1.0e30
D = 12
vL16, vRd, vq, vBig, vd, vla, vlb, vmx, vfa, vfb, vT = 1, 2, 4, 6, 7, 8, 9, 10, 12, 13, 14
S0, P0, NMA, NMB = 16, 80, 112, 128
TMPV = 144
vDG = 250
OA, OBa, QA, QB, FR = 0, 64, 128, 160, 192
sWS, sWO, sWB = 8, 12, 16
sW, sH, sI, sK, sV, sSR, sSW, sCnt, sFlag, sRet, sT, sMk, sW2, sW4 = 20, 21, 22, 23, 24, 25, 26, 27, 28, 30, 32, 40, 48, 49
CJ = [(j & 3) + 8 * (j >> 2) for j in range(16)]

def stamp():
    if not DIAG: return []
    return ['s_memtime s[70:71]', 's_waitcnt lgkmcnt(0)', 'v_cmp_eq_u32 vcc, s72, v0', f'v_mov_b32 v{vDG+1}, s70', 's_add_u32 s72, s72, 1', f'v_cndmask_b32 v{vDG}, v{vDG}, v{vDG+1}, vcc']

def Sr(par, T): return S0 + 32 * par + 16 * T
def Pr(par, T): return P0 + 16 * par + 8 * T
def slot(g): return FR + 4 * (g % 16)

def pv_frags(t):
    out = []
    for ks in range(2):
        for db in range(4):
            g = 2 * (4 * ks + db)
            out.append((g, (2 * db + ks) * 1024))
            if t == 's': out.append((g + 1, 8192 + (2 * db + ks) * 1024))
    return out
def qk_frags(t):
    out = []
    for ds in range(8):
        g = 16 + 2 * ds
        out.append((g, 16384 + ds * 1024))
        if t == 's': out.append((g + 1, 16384 + 8192 + ds * 1024))
    return out
def rd(g, off, par): return f'ds_read_b128 {ar(slot(g),4)}, v{vRd+par} offset:{off}'

def pv_mfmas(t, par):
    out = []
    for ks in range(2):
        for db in range(4):
            g = 2 * (4 * ks + db)
            for T in range(2):
                o = (OA if (t == 'c' and T == 0) else OBa) + 16 * db
                f = slot(g if t == 'c' else g + T)
                out.append(f'v_mfma_f32_32x32x16_bf16 {ar(o,16)}, {ar(f,4)}, {vr(Pr(par,T)+4*ks,4)}, {ar(o,16)}')
    return out
def qk_mfmas(t, par, czero=False):
    out = []
    for ds in range(8):
        g = 16 + 2 * ds
        for T in range(2):
            isa = (t == 'c' and T == 0)
            q = (QA if isa else QB) + 4 * ds
            f = slot(g if t == 'c' else g + T)
            s = Sr(par, T)
            c = vr(s, 16) if ds else ('0' if czero else vr(NMA if isa else NMB, 16))
            out.append(f'v_mfma_f32_32x32x16_bf16 {vr(s,16)}, {ar(f,4)}, {ar(q,4)}, {c}')
    return out

def mask_ops(par, T, k, extra=None):
    L = [f'v_subrev_u32 v{vd}, {32*k}, v{vq}'] if extra is None else [f'v_add_u32 v{vd}, {extra}, v{vq}']
    s = Sr(par, T)
    for j0 in range(0, 16, 4):
        for j in range(j0, j0 + 4): L.append(f'v_cmp_gt_i32 {sr(sMk+2*(j%4),2)}, {CJ[j]}, v{vd}')
        for j in range(j0, j0 + 4): L.append(f'v_cndmask_b32 v{s+j}, v{s+j}, v{vBig}, {sr(sMk+2*(j%4),2)}')
    return L

def max_ops(par):
    L = []
    a, b = Sr(par, 0), Sr(par, 1)
    L.append(f'v_max3_f32 v{vmx}, v{a}, v{a+1}, v{a+2}');
    r = [(a + 3 + 2 * k, a + 4 + 2 * k) for k in range(6)]
    for x, y in r: L.append(f'v_max3_f32 v{vmx}, v{vmx}, v{x}, v{y}')
    L2 = [f'v_max3_f32 v{vmx+1}, v{b}, v{b+1}, v{b+2}']
    for k in range(6): L2.append(f'v_max3_f32 v{vmx+1}, v{vmx+1}, v{b+3+2*k}, v{b+4+2*k}')
    return L + L2 + [f'v_max3_f32 v{vmx}, v{vmx}, v{a+15}, v{b+15}', f'v_max_f32 v{vmx}, v{vmx}, v{vmx+1}']

def exp_ops(par, t):
    L = []
    seq = []
    for T in range(2):
        for k in range(8): seq.append((T, k))
    def tailops(T, k):
        s = Sr(par, T); l = vla if (t == 'c' and T == 0) else vlb
        return [f'v_add_f32 v{l}, v{l}, v{s+2*k}', f'v_add_f32 v{l}, v{l}, v{s+2*k+1}', f'v_cvt_pk_bf16_f32 v{Pr(par,T)+k}, v{s+2*k}, v{s+2*k+1}']
    prev = None
    for T, k in seq:
        s = Sr(par, T)
        L += [f'v_exp_f32 v{s+2*k}, v{s+2*k}', f'v_exp_f32 v{s+2*k+1}, v{s+2*k+1}']
        if prev: L += tailops(*prev)
        prev = (T, k)
    L += ['s_nop 0'] + tailops(*prev)
    return L

def dma_part(kind, t, tag):
    so, lo = (sV, 0) if kind == 'V' else (sK, 16384)
    w = sW4 if t == 's' else sW2
    n = 4 if t == 's' else 2
    tt = sT if kind == 'V' else sT + 1
    items = [[f's_add_u32 s{tt}, s{so}, s{w}', f's_add_u32 s{sT+2}, s{sSW}, s{w}', f's_add_u32 m0, s{sT+2}, {lo} ; tag={tag}', f's_add_u32 s{so}, s{so}, {n*4096}']]
    for q in range(n):
        items.append([f'buffer_load_dwordx4 v{vL16}, {sr(sWS,4)}, s{tt} offen offset:{q*1024} lds ; tag={tag}'])
    return items

STUBS = []
def body(n_par, pv, sm, qk, nxt_pv, vload, kload, masks, uid):
    par = n_par; psm = par ^ 1
    mf = []
    if pv: mf += pv_mfmas(pv, par)
    if qk: mf += qk_mfmas(qk, par)
    ng = len(mf)
    pre = {};
    def P(g, x): pre.setdefault(g, []).extend(x if isinstance(x, list) else [x])
    frs = (pv_frags(pv) if pv else []) + (qk_frags(qk) if qk else [])
    for g, off in frs:
        if g - D >= 0: P(g - D, rd(g, off, par))
    for g0 in range(0, ng, 4):
        need = [ar(slot(g), 4) for g, off in frs if g0 <= g < g0 + 4]
        P((g0, 'before'), ';NEED ' + ' '.join(need))
    if nxt_pv:
        gb = ng - D
        P(gb, [f';VMNEED U{par^1}', 's_barrier'])
        for g, off in pv_frags(nxt_pv):
            if g < D: P(ng + g - D, rd(g, off, par ^ 1))
    items = []
    if vload: items += dma_part('V', vload, f'U{par}')
    if kload: items += dma_part('K', kload, f'U{par}')
    g = 0
    for it in items:
        P(g, it); g += 1 if len(it) > 1 else 2
    if items:
        assert g - 2 < ng - D, g
        P(g, [f's_add_u32 s{sSW}, s{sSW}, 32768', f's_and_b32 s{sSW}, s{sSW}, 0x1ffff'])
    Q = []
    if nxt_pv:
        Q.append((f'v_add_u32 v{vRd+(par^1)}, s{sSR}, v{vL16}', 0))
        P(1, [f's_add_u32 s{sSR}, s{sSR}, 32768', f's_and_b32 s{sSR}, s{sSR}, 0x1ffff'])
    if sm:
        first = True
        for T, k in masks:
            for x in mask_ops(psm, T, k): Q.append((x, 2))
        for x in max_ops(psm): Q.append((x, 2))
        Q.append((f'v_cmp_lt_f32 vcc, {f32(THR)}, v{vmx}', 2))
        Q.append((f'BR1', 2))
        for x in exp_ops(psm, sm): Q.append((x, 2))
    val = {}
    cap = {}
    for g in range(ng):
        npre = [x for x in pre.get(g, []) if not x.startswith(';')]
        c = 6 - max(0, len(npre) - 1) - sum(1 for x in npre if x.startswith('buffer'))
        if (g + 1) % 4 == 0: c -= 1
        if g == 19 and pv and sm: c -= 2
        cap[g] = c
    total = sum(2 if x.startswith('v_exp') else 1 for x, _ in Q)
    avail = sum(max(cap[g], 0) for g in range(2, ng))
    over = max(0, total - avail)
    if over:
        gs = list(range(2, ng))
        for k in range(over): cap[gs[(k * 7) % len(gs)]] += 1
    g = 0; used = 0; loadinfo = {}
    for x, mg in Q:
        cost = 2 if x.startswith('v_exp') else 1
        while g < mg or (used + cost > cap[g] and g < ng - 1):
            g += 1; used = 0
        if x == 'BR1':
            g += 1; used = 0
            pre.setdefault(g, []).insert(0, f's_cbranch_vccnz K2_S1_{uid}')
            pre[g].insert(1, f'K2_R1_{uid}:')
            STUBS.extend([f'K2_S1_{uid}:', f's_call_b64 {sr(sRet,2)}, K2_RARE1_{psm}{sm}', f's_branch K2_R1_{uid}'])
            used = 1
            continue
        val.setdefault(g, []).append(x); used += cost
        loadinfo[g] = used
    if pv and sm:
        g2 = 19 if ng > 19 else None
        if g2 is not None:
            P(g2, [f's_cmp_lg_u32 s{sFlag}, 0', f's_cbranch_scc1 K2_S2_{uid}', f'K2_R2_{uid}:'])
            STUBS.extend([f'K2_S2_{uid}:', f's_call_b64 {sr(sRet,2)}, K2_RARE2', f's_branch K2_R2_{uid}'])
    out = weave(mf, pre, val)
    if pv and sm and ng <= 19:
        out += [f's_cmp_lg_u32 s{sFlag}, 0', f's_cbranch_scc1 K2_S2_{uid}', f'K2_R2_{uid}:']
        STUBS.extend([f'K2_S2_{uid}:', f's_call_b64 {sr(sRet,2)}, K2_RARE2', f's_branch K2_R2_{uid}'])
    if os.environ.get('VERB'): print(uid, 'valu total', total, 'avail', avail, 'last gap', max(val) if val else None)
    return out

def rowmax(dst, s, tmp):
    L = [f'v_max3_f32 v{dst}, v{s}, v{s+1}, v{s+2}']
    for k in range(6): L.append(f'v_max3_f32 v{dst}, v{dst}, v{s+3+2*k}, v{s+4+2*k}')
    L += [f'v_max_f32 v{dst}, v{dst}, v{s+15}', f'v_mov_b32 v{tmp}, v{dst}', 's_nop 1', f'v_permlane32_swap_b32 v{dst}, v{tmp}', f'v_max_f32 v{dst}, v{dst}, v{tmp}']
    return L

def rare1(par, t):
    L = [f'K2_RARE1_{par}{t}:']
    da, db_ = vmx, vmx + 1
    L += rowmax(da, Sr(par, 0), vT) + rowmax(db_, Sr(par, 1), vT)
    if t == 's': L += [f'v_max_f32 v{db_}, v{da}, v{db_}']
    L += [f'v_ceil_f32 v{da}, v{da}', f'v_ceil_f32 v{db_}, v{db_}', f'v_max_f32 v{da}, 0, v{da}', f'v_max_f32 v{db_}, 0, v{db_}']
    d0 = da if t == 'c' else db_
    for j in range(16): L.append(f'v_sub_f32 v{Sr(par,0)+j}, v{Sr(par,0)+j}, v{d0}')
    for j in range(16): L.append(f'v_sub_f32 v{Sr(par,1)+j}, v{Sr(par,1)+j}, v{db_}')
    if t == 'c':
        for j in range(16): L.append(f'v_sub_f32 v{NMA+j}, v{NMA+j}, v{da}')
        L += [f'v_exp_f32 v{vfa}, -v{da}']
    else:
        L += [f'v_mov_b32 v{vfa}, 1.0']
    for j in range(16): L.append(f'v_sub_f32 v{NMB+j}, v{NMB+j}, v{db_}')
    L += [f'v_exp_f32 v{vfb}, -v{db_}', 's_nop 0', f'v_mul_f32 v{vla}, v{vla}, v{vfa}', f'v_mul_f32 v{vlb}, v{vlb}, v{vfb}',
          f's_mov_b32 s{sFlag}, 1', f's_setpc_b64 {sr(sRet,2)}']
    return L
def rare2():
    L = ['K2_RARE2:', 's_nop 7', 's_nop 7']
    for base, f in ((OA, vfa), (OBa, vfb)):
        for j0 in range(0, 64, 8):
            for j in range(8): L.append(f'v_accvgpr_read_b32 v{TMPV+j}, a{base+j0+j}')
            for j in range(8): L.append(f'v_mul_f32 v{TMPV+j}, v{TMPV+j}, v{f}')
            for j in range(8): L.append(f'v_accvgpr_write_b32 a{base+j0+j}, v{TMPV+j}')
    L += [f's_mov_b32 s{sFlag}, 0', 's_nop 1', f's_setpc_b64 {sr(sRet,2)}']
    return L

def merge_min(variants):
    base = variants[0]
    for c in variants[1:]:
        if c == base: continue
        mm = []; i = j = 0
        while i < len(base) or j < len(c):
            x = base[i] if i < len(base) else None; y = c[j] if j < len(c) else None
            xw = x is not None and x.startswith('s_waitcnt'); yw = y is not None and y.startswith('s_waitcnt')
            if xw and yw:
                gx = dict(re.findall(r'(\w+cnt)\((\d+)\)', x)); gy = dict(re.findall(r'(\w+cnt)\((\d+)\)', y))
                keys = [k for k in ('vmcnt', 'lgkmcnt') if k in gx or k in gy]
                mm.append('s_waitcnt ' + ' '.join(f'{k}({min(int(gx.get(k, 99)), int(gy.get(k, 99)))})' for k in keys)); i += 1; j += 1
            elif xw: mm.append(x); i += 1
            elif yw: mm.append(y); j += 1
            else:
                assert x == y, (x, y); mm.append(x); i += 1; j += 1
        base = mm
    return base

BS, BP, CUP, CLO, CNG, BO = 16, 160, 176, 192, 208, 224
BK, BV, BQ = 0, 40, 120
def bphase_loads():
    L = []
    rb, t0, t1, t2 = sT + 3, sT + 4, sT + 5, sT + 6
    L += [f's_lshl_b32 s{rb}, s{sI}, 3', f's_lshl_b32 s{t0}, s{sW}, 1', f's_add_u32 s{rb}, s{rb}, s{t0}',
          f's_lshr_b32 s{t0}, s{sH}, 2', f's_lshl_b32 s{t0}, s{t0}, 18', f's_add_u32 s{t0}, s{t0}, {BWS}',
          f's_and_b32 s{t1}, s{sH}, 3', f's_lshl_b32 s{t1}, s{t1}, 10', f's_add_u32 s{t1}, s{t1}, s{t0}',
          f's_lshl_b32 s{t2}, s{rb}, 12', f's_add_u32 s{t2}, s{t2}, s{t1}']
    L += [f'buffer_load_dwordx4 {ar(BQ,4)}, v{vL16}, {sr(sWS,4)}, s{t2} offen', f's_add_u32 s{t2}, s{t2}, 4096',
          f'buffer_load_dwordx4 {ar(BQ+4,4)}, v{vL16}, {sr(sWS,4)}, s{t2} offen']
    L += [f's_add_u32 s{t1}, s{t1}, {8*256*1024}']
    for t in range(10):
        L += [f's_sub_i32 s{t2}, s{rb}, {8-t}' if t <= 8 else f's_add_u32 s{t2}, s{rb}, 1', f's_max_i32 s{t2}, s{t2}, 0', f's_lshl_b32 s{t2}, s{t2}, 12', f's_add_u32 s{t2}, s{t2}, s{t1}',
              f'buffer_load_dwordx4 {ar(BK+4*t,4)}, v{vL16}, {sr(sWS,4)}, s{t2} offen']
    L += [f'v_mov_b32 v{vT}, 0x3f803f80']
    for j in range(80): L.append(f'v_accvgpr_write_b32 a{BV+j}, v{vT}')
    L += [f'v_and_b32 v{vT}, 47, v0', f's_and_b32 s{t1}, s{sH}, 1', f's_lshl_b32 s{t1}, s{t1}, 4', f'v_add_u32 v{vT}, s{t1}, v{vT}', f'v_lshlrev_b32 v{vT}, 4, v{vT}',
          f's_bfe_u32 s{t1}, s{sH}, 0x10001', f's_lshl_b32 s{t1}, s{t1}, 11', f's_add_u32 s{t1}, s{t1}, s{t0}', f's_add_u32 s{t1}, s{t1}, {16*256*1024}',
          's_mov_b32 exec_lo, 0xffff', 's_mov_b32 exec_hi, 0xffff']
    for t in range(10):
        L += [f's_sub_i32 s{t2}, s{rb}, {8-t}' if t <= 8 else f's_add_u32 s{t2}, s{rb}, 1', f's_max_i32 s{t2}, s{t2}, 0', f's_lshl_b32 s{t2}, s{t2}, 12', f's_add_u32 s{t2}, s{t2}, s{t1}']
        for ks in range(2):
            L.append(f'buffer_load_dwordx4 {ar(BV+8*t+4*ks,4)}, v{vT}, {sr(sWS,4)}, s{t2} offen offset:{ks*1024}')
    L += ['s_mov_b64 exec, -1']
    return L

def bphase_compute():
    L = []
    rb, t0, t1 = sT + 3, sT + 4, sT + 5
    L += [f'v_and_b32 v{vd}, 31, v0', f'v_lshrrev_b32 v{vT}, 5, v0', f'v_lshlrev_b32 v{vT}, 2, v{vT}', f'v_sub_u32 v{vd}, v{vd}, v{vT}', f'v_mov_b32 v{vT}, 0']
    for j0 in range(0, 16, 4):
        for j in range(j0, j0 + 4): L.append(f'v_cmp_gt_i32 {sr(sMk+2*(j%4),2)}, {CJ[j]}, v{vd}')
        for j in range(j0, j0 + 4):
            L.append(f'v_cndmask_b32 v{CLO+j}, v{vT}, v{vBig}, {sr(sMk+2*(j%4),2)}')
            L.append(f'v_cndmask_b32 v{CUP+j}, v{vBig}, v{vT}, {sr(sMk+2*(j%4),2)}')
    for j in range(16): L.append(f'v_mov_b32 v{CNG+j}, v{vBig}')
    L += [f's_mov_b32 s{t1}, {f32(CB)}']
    for r in range(2):
        L.append(f';NEED {ar(BQ+4*r,4)} {ar(BK,40)}')
        for t in range(9):
            s = BS + 16 * t
            c = vr(CUP, 16) if t == 0 else (vr(CLO, 16) if t == 8 else '0')
            m = lambda cc: f'v_mfma_f32_32x32x16_bf16 {vr(s,16)}, {ar(BK+4*(t+r),4)}, {ar(BQ+4*r,4)}, {cc}'
            if t < 8:
                L += [f's_cmp_ge_u32 s{rb}, {8-t-r}' if 8 - t - r > 0 else f's_cmp_ge_u32 s{rb}, 0', f's_cbranch_scc1 K2_B{r}{t}a', m(vr(CNG, 16)), f's_branch K2_B{r}{t}b', f'K2_B{r}{t}a:', m(c), f'K2_B{r}{t}b:']
            else:
                L.append(m(c))
        L += (a_loads2() if r == 0 else []) + ['s_nop 7', 's_nop 3']
        regs = list(range(BS, BS + 144))
        L.append(f'v_max3_f32 v{vmx}, v{regs[0]}, v{regs[1]}, v{regs[2]}'); L.append(f'v_max3_f32 v{vmx+1}, v{regs[3]}, v{regs[4]}, v{regs[5]}')
        k = 6; which = 0
        while k < 144:
            L.append(f'v_max3_f32 v{vmx+which}, v{vmx+which}, v{regs[k]}, v{regs[k+1]}'); k += 2; which ^= 1
        L += [f'v_max_f32 v{vmx}, v{vmx}, v{vmx+1}', f'v_mov_b32 v{vmx+1}, v{vmx}', 's_nop 1', f'v_permlane32_swap_b32 v{vmx}, v{vmx+1}', f'v_max_f32 v{vmx}, v{vmx}, v{vmx+1}',
              f'v_mul_f32 v{vmx}, s{t1}, v{vmx}']
        for t in range(9):
            s = BS + 16 * t; p = BP + 8 * (t % 2)
            for j in range(16): L.append(f'v_fma_f32 v{s+j}, v{s+j}, s{t1}, -v{vmx}')
            for j in range(16): L.append(f'v_exp_f32 v{s+j}, v{s+j}')
            L.append('s_nop 0')
            for j in range(8): L.append(f'v_cvt_pk_bf16_f32 v{p+j}, v{s+2*j}, v{s+2*j+1}')
            L.append('s_nop 1')
            for ks in range(2):
                c = '0' if (t == 0 and ks == 0) else vr(BO, 16)
                L.append(f'v_mfma_f32_32x32x16_bf16 {vr(BO,16)}, {ar(BV+8*(t+r)+4*ks,4)}, {vr(p+4*ks,4)}, {c}')
        L += ['s_nop 7', 's_nop 3', f'v_rcp_f32 v{vmx}, v{BO+8}', 's_nop 0']
        for j in range(8): L.append(f'v_mul_f32 v{BO+j}, v{BO+j}, v{vmx}')
        for j in range(4): L.append(f'v_cvt_pk_bf16_f32 v{240+4*r+j}, v{BO+2*j}, v{BO+2*j+1}')
        L += [f's_add_u32 s{t0}, s{rb}, {r}', f's_lshl_b32 s{t0}, s{t0}, 15', f's_lshl_b32 s{sT+6}, s{sH}, 10', f's_add_u32 s{t0}, s{t0}, s{sT+6}', f's_add_u32 s{t0}, s{t0}, {OB}',
              f'buffer_store_dwordx4 {vr(240+4*r,4)}, v{vL16}, {sr(sWS,4)}, s{t0} offen']
    return L

WLDS = 131072
def wo_loads():
    t0 = sT + 4
    L = [f's_lshl_b32 s{t0}, s2, 14', f's_add_u32 s{t0}, s{t0}, s{sW4}', f's_add_u32 m0, s{sW4}, {WLDS} ; tag=WO', 's_nop 0']
    for q in range(4): L.append(f'buffer_load_dwordx4 v{vL16}, {sr(sWO,4)}, s{t0} offen offset:{q*1024} lds ; tag=WO')
    L += [f'v_lshrrev_b32 v{vT}, 3, v0', f'v_lshlrev_b32 v{vT}, 10, v{vT}', f'v_and_b32 v{vT+1}, 7, v0', f'v_lshl_add_u32 v{vT}, v{vT+1}, 4, v{vT}',
          f's_lshr_b32 s{t0}, s2, 3', f's_lshl_b32 s{t0}, s{t0}, 14', f's_and_b32 s{t0+1}, s2, 7', f's_lshl_b32 s{t0+1}, s{t0+1}, 7', f's_add_u32 s{t0}, s{t0}, s{t0+1}',
          f's_and_b32 s{t0+1}, s{sW}, 1', f's_lshl_b32 s{t0+2}, s{t0+1}, 13', f's_add_u32 s{t0}, s{t0}, s{t0+2}', f's_lshl_b32 s{t0+1}, s{t0+1}, 10',
          f's_add_u32 m0, s{t0+1}, {WLDS+16384} ; tag=WO', 's_nop 0',
          f'buffer_load_dwordx4 v{vT}, {sr(sWB,4)}, s{t0} offen lds ; tag=WO']
    return L
def wo_relayout():
    t0 = sT + 4; a, b = vT, vT + 1; R = TMPV
    L = [f'v_bfe_u32 v{a}, v0, 2, 2', f'v_lshrrev_b32 v{b}, 5, v0', f'v_lshl_add_u32 v{a}, v{b}, 2, v{a}',
         f'v_bfe_u32 v{b}, v0, 4, 1', f'v_lshlrev_b32 v{b}, 5, v{b}', f'v_and_b32 v{R}, 3, v0', f'v_lshl_add_u32 v{b}, v{R}, 3, v{b}',
         f'v_lshl_add_u32 v{R+1}, v{a}, 7, v{b}',
         f'v_lshl_add_u32 v{a}, v{a}, 10, v{b}',
         f's_lshl_b32 s{t0}, s{sW}, 8', f's_add_u32 s{t0}, s{t0}, {WLDS}', f'v_add_u32 v{a}, s{t0}, v{a}',
         f's_and_b32 s{t0}, s{sW}, 1', f's_lshl_b32 s{t0}, s{t0}, 6', f's_add_u32 s{t0}, s{t0}, {WLDS+16384}', f'v_add_u32 v{b}, s{t0}, v{R+1}']
    for x in range(4):
        for p in range(2): L.append(f'ds_read_b64_tr_b16 {vr(R+4+4*x+2*p,2)}, v{a} offset:{p*8192 + x*64}')
    for p in range(2): L.append(f'ds_read_b64_tr_b16 {vr(R+20+2*p,2)}, v{b} offset:{p*1024}')
    L += [f's_lshl_b32 s{t0}, s{sW}, 20', f's_lshl_b32 s{t0+1}, s2, 10', f's_add_u32 s{t0}, s{t0}, s{t0+1}', f's_add_u32 s{t0}, s{t0}, {WOA}']
    for x in range(4):
        L += [f'buffer_store_dwordx4 {vr(R+4+4*x,4)}, v{vL16}, {sr(sWS,4)}, s{t0} offen', f's_add_u32 s{t0}, s{t0}, {256*1024}']
    L += [f's_and_b32 s{t0}, s2, 7', f's_lshl_b32 s{t0}, s{t0}, 1', f's_and_b32 s{t0+1}, s{sW}, 1', f's_add_u32 s{t0}, s{t0}, s{t0+1}', f's_lshl_b32 s{t0}, s{t0}, 15',
          f's_lshr_b32 s{t0+1}, s2, 3', f's_lshl_b32 s{t0+1}, s{t0+1}, 10', f's_add_u32 s{t0}, s{t0}, s{t0+1}', f's_add_u32 s{t0}, s{t0}, {WOB}',
          f'buffer_store_dwordx4 {vr(R+20,4)}, v{vL16}, {sr(sWS,4)}, s{t0} offen']
    return L

def a_loads():
    t0, t1 = sT + 4, sT + 5
    L = [f's_lshl_b32 s{t0}, s{sH}, 19', f's_add_u32 s{sK}, s{t0}, {KWS}', f's_add_u32 s{sV}, s{t0}, {VWS}']
    flat = lambda items: [x for it in items for x in it]
    L += [f's_mov_b32 s{sSW}, 65536'] + flat(dma_part('K', 'c', 'K0')) + [f's_mov_b32 s{sSW}, 98304'] + flat(dma_part('K', 'c', 'K0'))
    L += [f's_add_u32 s{t0}, s{t0}, {QWS}', f's_lshl_b32 s{t1}, s{sW}, 13', f's_add_u32 s{t0}, s{t0}, s{t1}', f's_lshl_b32 s{t1}, s{sI}, 15',
          f's_add_u32 s{sT+6}, s{t0}, s{t1}', f's_sub_u32 s{t0}, s{t0}, s{t1}', f's_add_u32 s{t0}, s{t0}, {15*32768}']
    for base, s in ((QA, sT + 6), (QB, t0)):
        for ds in range(8):
            if ds == 4: L.append(f's_add_u32 s{s}, s{s}, 4096')
            L.append(f'buffer_load_dwordx4 {ar(base+4*ds,4)}, v{vL16}, {sr(sWS,4)}, s{s} offen offset:{(ds%4)*1024}')
    L += [f's_mov_b32 s{sSW}, 0'] + flat(dma_part('V', 'c', 'U0')) + flat(dma_part('K', 'c', 'U0'))
    return L
def a_loads2():
    flat = lambda items: [x for it in items for x in it]
    L = [f's_mov_b32 s{sSW}, 32768'] + flat(dma_part('V', 'c', 'U1')) + flat(dma_part('K', 'c', 'U1'))
    L += [f's_mov_b32 s{sSW}, 65536', f's_mov_b32 s{sSR}, 32768']
    return L

def a_prologue():
    L = [';VMNEED U0', f';NEED {ar(QA,64)}', 's_barrier']
    L += wo_relayout()
    L += [f'v_add_u32 v{vRd}, 65536, v{vL16}', f'v_add_u32 v{vRd+1}, 98304, v{vL16}']
    fr = qk_frags('c')
    L += [rd(g, off, 0) for g, off in fr]
    fr1 = [(g + 1, off) for g, off in fr]
    L += [rd(g, off, 1) for g, off in fr1]
    z = [f'v_accvgpr_write_b32 a{j}, 0' for j in range(128)]
    mf = qk_mfmas('c', 0, czero=True)
    for k, m in enumerate(mf):
        L.append(m); L += z[4*k:4*k+4]
    L += z[64:80]
    L += [f's_cmp_eq_u32 s{sI}, 0', f's_cselect_b32 s{sT+4}, 0, 4096']
    L += mask_ops(0, 0, 0, extra=f's{sT+4}')
    da, db_ = vmx, vmx + 1
    L += rowmax(da, Sr(0, 0), vT) + rowmax(db_, Sr(0, 1), vT) + [f'v_ceil_f32 v{da}, v{da}', f'v_ceil_f32 v{db_}, v{db_}']
    for j in range(16): L += [f'v_sub_f32 v{NMA+j}, 0, v{da}', f'v_sub_f32 v{NMB+j}, 0, v{db_}']
    V = []
    for j in range(16): V += [f'v_sub_f32 v{Sr(0,0)+j}, v{Sr(0,0)+j}, v{da}']
    for j in range(16): V += [f'v_sub_f32 v{Sr(0,1)+j}, v{Sr(0,1)+j}, v{db_}']
    V = [f'v_mov_b32 v{vla}, 0', f'v_mov_b32 v{vlb}, 0'] + z[80:] + V + exp_ops(0, 'c')
    mf = [m.replace('__', '') for m in qk_mfmas('c', 1)]
    mf2 = []
    for k, m in enumerate(mf):
        g = 16 + 2 * (k // 2)
        mf2.append(m.replace(ar(slot(g), 4), ar(slot(g + 1), 4)))
    L.append('s_nop 0')
    per = (len(V) + 15) // 16
    for k, m in enumerate(mf2):
        L.append(m); L += V[per*k:per*(k+1)]
    L += [f's_mov_b32 s{sFlag}, 0', f'v_mov_b32 v{vRd}, v{vL16}', ';LGKM0', 's_barrier']
    L += [rd(g, off, 0) for g, off in pv_frags('c') if g < D]
    return L

def a_epilogue():
    L = ['s_nop 7', 's_nop 3']
    t0, t1 = sT + 4, sT + 5
    for l in (vla, vlb):
        L += [f'v_mov_b32 v{vT}, v{l}', 's_nop 1', f'v_permlane32_swap_b32 v{l}, v{vT}', f'v_add_f32 v{l}, v{l}, v{vT}', f'v_rcp_f32 v{l}, v{l}']
    L += [f's_lshl_b32 s{t0}, s{sH}, 13', f's_add_u32 s{t0}, s{t0}, {CTX}', f's_lshl_b32 s{t1}, s{sW}, 18', f's_add_u32 s{t0}, s{t0}, s{t1}', f's_lshl_b32 s{t1}, s{sI}, 20',
          f's_add_u32 s{sT+6}, s{t0}, s{t1}', f's_sub_u32 s{t0}, s{t0}, s{t1}', f's_add_u32 s{t0}, s{t0}, {15*M}']
    for base, l, s in ((OBa, vlb, t0), (OA, vla, sT + 6)):
        for db in range(4):
            r = S0 + 16 * (db % 2); p = P0 + 8 * (db % 2)
            if db == 2: L.append(f's_add_u32 s{s}, s{s}, 4096')
            for j in range(16): L.append(f'v_accvgpr_read_b32 v{r+j}, a{base+16*db+j}')
            for j in range(16): L.append(f'v_mul_f32 v{r+j}, v{r+j}, v{l}')
            for j in range(8): L.append(f'v_cvt_pk_bf16_f32 v{p+j}, v{r+2*j}, v{r+2*j+1}')
            for x in range(2): L.append(f'buffer_store_dwordx4 {vr(p+4*x,4)}, v{vL16}, {sr(sWS,4)}, s{s} offen offset:{(2*(db%2)+x)*1024}')
    return L

def gen_k2():
    name = 'k2_kernel'
    L = []; a = L.append
    a(f'.p2align 8\n.type {name},@function\n{name}:')
    a('s_cmp_ge_u32 s2, 256'); a('s_cbranch_scc1 K2_END')
    a('s_load_dwordx2 s[4:5], s[0:1], 88'); a('s_load_dwordx2 s[6:7], s[0:1], 40'); a('s_load_dwordx2 s[50:51], s[0:1], 64')
    a('v_lshrrev_b32 v1, 6, v0'); a('v_and_b32 v0, 63, v0'); a(f'v_readfirstlane_b32 s{sW}, v1')
    a(f'v_lshlrev_b32 v{vL16}, 4, v0')
    a(f's_and_b32 s{sH}, s2, 31'); a(f's_lshr_b32 s{sI}, s2, 5')
    a(f's_lshl_b32 s{sW2}, s{sW}, 11'); a(f's_lshl_b32 s{sW4}, s{sW}, 12')
    a(f'v_mov_b32 v{vBig}, {f32(NEGBIG)}')
    a(f'v_and_b32 v{vq}, 31, v0'); a(f'v_lshrrev_b32 v{vT}, 5, v0'); a(f'v_lshlrev_b32 v{vT}, 2, v{vT}'); a(f'v_sub_u32 v{vq}, v{vq}, v{vT}')
    a(f's_lshl_b32 s{sT}, s{sW}, 5'); a(f'v_add_u32 v{vq}, s{sT}, v{vq}')
    a('s_waitcnt lgkmcnt(0)')
    for srd, p, n in ((sWS, 4, 0x10000000), (sWO, 6, 0x400000), (sWB, 50, 0x80000)):
        a(f's_mov_b32 s{srd}, s{p}'); a(f's_mov_b32 s{srd+1}, s{p+1}'); a(f's_mov_b32 s{srd+2}, {hex(n)}'); a(f's_mov_b32 s{srd+3}, 0x20000')
    if DIAG: a('s_mov_b32 s72, 0'); a(f'v_mov_b32 v{vDG}, 0'); L += stamp()
    pre0 = bphase_loads() + wo_loads() + a_loads()
    pre = auto_waits([], pre0 + bphase_compute() + stamp() + a_prologue() + stamp())
    L += pre
    blk = {}
    def two(uid, b0, b1): return body(0, *b0, uid + 'a') + body(1, *b1, uid + 'b')
    raw = {
     'CC': two('CC', ('c','c','c','c','c','c',[]), ('c','c','c','c','c','c',[])),
     'X1': two('X1', ('c','c','c','c','c','c',[]), ('c','c','c','c','c','c',[(0,0)])),
     'X2': two('X2', ('c','c','c','c','c','s',[(0,1)]), ('c','c','c','c','c','s',[(0,2)])),
     'X3': two('X3', ('c','c','s','c','s','s',[(0,3)]), ('c','s','s','s','s','s',[])),
     'X3b': two('X3b', ('c','c','s','c','s',None,[(0,3)]), ('c','s','s','s','s',None,[(0,0),(1,1)])),
     'SS': two('SS', ('s','s','s','s','s','s',[]), ('s','s','s','s','s','s',[])),
     'X4': two('X4', ('s','s','s','s','s',None,[]), ('s','s','s','s','s',None,[(0,0),(1,1)])),
     'TL': two('TL', ('s','s',None,'s',None,None,[(0,2),(1,3)]), ('s',None,None,None,None,None,[])),
    }
    preds = {'CC': ['pre', 'CC'], 'X1': ['CC'], 'X2': ['X1', 'pre'], 'X3': ['X2'], 'X3b': ['X2'], 'SS': ['X3', 'SS'], 'X4': ['SS'], 'TL': ['X4', 'X3b']}
    fin = {'pre': pre}
    for it in range(3):
        for k in raw:
            vs = [auto_waits(fin[p], raw[k]) for p in preds[k] if p in fin]
            fin[k] = merge_min(vs)
    a(f's_cmp_eq_u32 s{sI}, 0'); a('s_cbranch_scc1 K2_X2')
    a(f's_lshl_b32 s{sCnt}, s{sI}, 1'); a(f's_sub_u32 s{sCnt}, s{sCnt}, 1')
    a('.p2align 6\nK2_CC:'); L += fin['CC'] + [f's_sub_u32 s{sCnt}, s{sCnt}, 1', f's_cmp_lg_u32 s{sCnt}, 0', 's_cbranch_scc1 K2_CC']
    L += stamp()
    L += fin['X1']
    a('K2_X2:'); L += fin['X2']
    a(f's_cmp_eq_u32 s{sI}, 7'); a('s_cbranch_scc1 K2_X3b')
    L += fin['X3']
    L += stamp()
    a(f's_lshl_b32 s{sCnt}, s{sI}, 1'); a(f's_sub_u32 s{sCnt}, 13, s{sCnt}')
    a('.p2align 6\nK2_SS:'); L += fin['SS'] + [f's_sub_u32 s{sCnt}, s{sCnt}, 1', f's_cmp_lg_u32 s{sCnt}, 0', 's_cbranch_scc1 K2_SS']
    L += stamp()
    L += fin['X4']
    a('K2_TL:'); L += fin['TL']
    L += stamp()
    epi = a_epilogue()
    L += epi
    if DIAG:
        L += stamp(); a('s_waitcnt vmcnt(0)'); L += stamp()
        a('s_memrealtime s[70:71]'); a('s_waitcnt lgkmcnt(0)'); a(f'v_writelane_b32 v{vDG}, s70, 63')
        a(f's_lshl_b32 s70, s2, 2'); a(f's_add_u32 s70, s70, s{sW}'); a('s_lshl_b32 s70, s70, 8'); a(f's_add_u32 s70, s70, {201<<20}')
        a(f'v_lshlrev_b32 v{vDG+1}, 2, v0'); a(f'buffer_store_dword v{vDG}, v{vDG+1}, {sr(sWS,4)}, s70 offen')
    a('K2_END:'); a('s_endpgm')
    a('K2_X3b:'); L += fin['X3b']; a('s_branch K2_TL')
    L += STUBS
    for par in range(2):
        for t in 'cs': L += rare1(par, t)
    L += rare2()
    f = fin
    check_trace(pre + ['s_nop 0'] * 2 + f['X2'] + f['X3'] + f['SS'] + f['SS'] + f['X4'] + f['TL'] + epi, 'k2 i=0')
    check_trace(pre + ['s_nop 0'] * 4 + f['CC'] + f['CC'] + f['X1'] + f['X2'] + f['X3b'] + f['TL'] + epi, 'k2 i=7')
    for par in range(2):
        for t in 'cs': check_trace(rare1(par, t), 'rare1', False)
    return L, kdesc(name, 512, 256), f'; @launch kernel={name} grid=(256,1,1) block=(256,1,1) lds={131072+18432}'
```

```python
from lib import *
import os
M = 1 << 20
CTX, OB, WOA, WOB = 56 * M, 72 * M, 76 * M, 80 * M
DIAG = os.environ.get('DIAG')
NSL = int(os.environ.get('K3_NSL', 12))
def stamp():
    if not DIAG: return []
    return ['s_memtime s[70:71]', 's_waitcnt lgkmcnt(0)', 'v_cmp_eq_u32 vcc, s72, v0', 'v_mov_b32 v10, s70', 's_add_u32 s72, s72, 1', 'v_cndmask_b32 v11, v11, v10, vcc']

def gen_k3():
    name = 'k3_kernel'
    L = []; a = L.append
    sWS, sOUT = 8, 12
    sW = 16; sQ0, sQ1, sM0, sM1 = 20, 21, 22, 23
    vL = 2
    ACC = 128
    def acc(part, mb, qb): return ACC + 64 * part + 16 * (2 * mb + qb)
    def fr(ks, which): return 16 * (ks % NSL) + 4 * which
    a(f'.p2align 8\n.type {name},@function\n{name}:')
    a('s_cmp_ge_u32 s2, 256'); a('s_cbranch_scc1 K3_END')
    a('s_load_dwordx2 s[4:5], s[0:1], 88'); a('s_load_dwordx2 s[6:7], s[0:1], 72')
    a('v_lshrrev_b32 v1, 6, v0'); a('v_mov_b32 v3, v0'); a('v_and_b32 v0, 63, v0'); a(f'v_readfirstlane_b32 s{sW}, v1')
    a(f'v_lshlrev_b32 v{vL}, 4, v0')
    a('s_and_b32 s24, s2, 7'); a('s_lshr_b32 s25, s2, 3')
    a('s_lshr_b32 s17, s24, 1'); a('s_lshl_b32 s17, s17, 3'); a('s_and_b32 s26, s25, 7'); a('s_add_u32 s17, s17, s26')
    a('s_and_b32 s18, s24, 1'); a('s_lshl_b32 s18, s18, 2'); a('s_lshr_b32 s26, s25, 3'); a('s_add_u32 s18, s18, s26')
    a(f's_lshl_b32 s26, s{sW}, 16')
    a(f's_lshl_b32 s{sQ0}, s17, 19'); a(f's_add_u32 s{sQ0}, s{sQ0}, s26'); a(f's_add_u32 s{sQ0}, s{sQ0}, {CTX}'); a(f's_add_u32 s{sQ1}, s{sQ0}, {256*1024}')
    a(f's_lshl_b32 s{sM0}, s18, 19'); a(f's_add_u32 s{sM0}, s{sM0}, s26'); a(f's_add_u32 s{sM0}, s{sM0}, {WOA}'); a(f's_add_u32 s{sM1}, s{sM0}, {256*1024}')
    a(f's_lshl_b32 s26, s{sW}, 13')
    a(f's_lshl_b32 s28, s17, 16'); a('s_add_u32 s28, s28, s26'); a(f's_add_u32 s28, s28, {OB}'); a(f's_add_u32 s29, s28, {32*1024}')
    a(f's_lshl_b32 s30, s18, 16'); a('s_add_u32 s30, s30, s26'); a(f's_add_u32 s30, s30, {WOB}'); a(f's_add_u32 s31, s30, {32*1024}')
    a('s_waitcnt lgkmcnt(0)')
    a(f's_mov_b32 s{sWS}, s4'); a(f's_mov_b32 s{sWS+1}, s5'); a(f's_mov_b32 s{sWS+2}, 0x10000000'); a(f's_mov_b32 s{sWS+3}, 0x20000')
    a(f's_mov_b32 s{sOUT}, s6'); a(f's_mov_b32 s{sOUT+1}, s7'); a(f's_mov_b32 s{sOUT+2}, 0x400000'); a(f's_mov_b32 s{sOUT+3}, 0x20000')
    if DIAG: a('s_mov_b32 s72, 0'); a('v_mov_b32 v11, 0'); L += stamp()
    NK = 72
    def loads(ks):
        out = []
        if ks < 64: bases, kk = (sM0, sM1, sQ0, sQ1), ks
        else: bases, kk = (30, 31, 28, 29), ks - 64
        for wch in range(4):
            out.append(f'buffer_load_dwordx4 {ar(fr(ks,wch),4)}, v{vL}, {sr(sWS,4)}, s{bases[wch]} offen offset:{(kk%4)*1024}')
        if kk % 4 == 3:
            out.append([f's_add_u32 s{b}, s{b}, 4096' for b in bases])
        return out
    B = []
    for ks in range(NSL - 1):
        for x in loads(ks): B += x if isinstance(x, list) else [x]
    for ks in range(NK):
        part = 0 if ks < 64 else 1
        nl = loads(ks + NSL - 1) if ks + NSL - 1 < NK else []
        for g in range(4):
            mb, qb = g >> 1, g & 1
            d = acc(part, mb, qb)
            c = '0' if ks in (0, 64) else vr(d, 16)
            B.append(f'v_mfma_f32_32x32x16_bf16 {vr(d,16)}, {ar(fr(ks,mb),4)}, {ar(fr(ks,2+qb),4)}, {c}')
            if nl:
                B.append(nl[g])
                if g == 3 and len(nl) > 4: B += nl[4]
    B = auto_waits([], B)
    L += B
    L += stamp()
    E = ['s_nop 7', 's_nop 3']
    E += ['v_and_b32 v4, 31, v0', 'v_mul_u32_u24 v4, 272, v4', 'v_lshrrev_b32 v5, 5, v0', 'v_lshl_add_u32 v4, v5, 4, v4',
          f's_mul_i32 s26, s{sW}, 17408', 'v_add_u32 v4, s26, v4', f'v_add_u32 v5, {4*17408}, v4']
    for part in range(2):
        for mb in range(2):
            for qb in range(2):
                for g in range(4):
                    E.append(f'ds_write_b128 v{4+part}, {vr(acc(part,mb,qb)+4*g,4)} offset:{qb*32*272 + mb*128 + g*32}')
    E += ['s_waitcnt lgkmcnt(0)', 's_barrier']
    E += ['v_lshrrev_b32 v4, 2, v3', 'v_and_b32 v5, 3, v3', 'v_mul_u32_u24 v6, 272, v4', 'v_lshl_add_u32 v6, v5, 6, v6', f'v_add_u32 v7, {4*17408}, v6',
          'v_lshlrev_b32 v4, 11, v4', 'v_lshl_add_u32 v4, v5, 5, v4',
          's_lshl_b32 s26, s17, 17', 's_lshl_b32 s27, s18, 7', 's_add_u32 s26, s26, s27']
    for part in range(2):
        base = 16 + 64 * part
        for w in range(4):
            for c in range(4):
                E.append(f'ds_read_b128 {vr(base+16*w+4*c,4)}, v{6+part} offset:{w*17408 + c*16}')
    for part in range(2):
        base = 16 + 64 * part
        for j in range(16):
            E.append(f'v_add_f32 v{base+j}, v{base+j}, v{base+16+j}')
        for j in range(16):
            E.append(f'v_add_f32 v{base+32+j}, v{base+32+j}, v{base+48+j}')
        for j in range(16):
            E.append(f'v_add_f32 v{base+j}, v{base+j}, v{base+32+j}')
        for j in range(8):
            E.append(f'v_cvt_pk_bf16_f32 v{base+16+j}, v{base+2*j}, v{base+2*j+1}')
        for x in range(2):
            E.append(f'buffer_store_dwordx4 {vr(base+16+4*x,4)}, v4, {sr(sOUT,4)}, s26 offen offset:{part*1024 + x*16}')
    E = auto_waits(B, E)
    L += E
    if DIAG:
        L += stamp(); a('s_waitcnt vmcnt(0)'); L += stamp()
        a('s_memrealtime s[70:71]'); a('s_waitcnt lgkmcnt(0)'); a('v_writelane_b32 v11, s70, 63')
        a(f's_lshl_b32 s70, s2, 2'); a(f's_add_u32 s70, s70, s{sW}'); a('s_lshl_b32 s70, s70, 8'); a(f's_add_u32 s70, s70, {202<<20}')
        a('v_lshlrev_b32 v10, 2, v0'); a(f'buffer_store_dword v11, v10, {sr(sWS,4)}, s70 offen')
    a('K3_END:'); a('s_endpgm')
    check_trace(B + E, 'k3')
    return L, kdesc(name, 256 + 16 * NSL, 256), f'; @launch kernel={name} grid=(256,1,1) block=(256,1,1) lds={8*17408}'
```

```python
import re

def regs_of(tok):
    tok = tok.strip()
    neg = tok.lstrip('-')
    m = re.fullmatch(r'abs\((.*)\)', neg)
    if m: neg = m.group(1)
    m = re.fullmatch(r'\|(.*)\|', neg)
    if m: neg = m.group(1)
    m = re.fullmatch(r'([vas])(\d+)', neg)
    if m: return {(m.group(1), int(m.group(2)))}
    m = re.fullmatch(r'([vas])\[(\d+):(\d+)\]', neg)
    if m: return {(m.group(1), i) for i in range(int(m.group(2)), int(m.group(3)) + 1)}
    if neg == 'vcc': return {('s', 'vcc')}
    if neg == 'exec': return {('s', 'exec')}
    if neg == 'm0': return {('s', 'm0')}
    return set()

TRANS = ('v_exp_f32', 'v_log_f32', 'v_rcp_f32', 'v_rsq_f32', 'v_sqrt_f32', 'v_sin_f32', 'v_cos_f32')
NODST_S = ('s_cmp', 's_waitcnt', 's_barrier', 's_branch', 's_cbranch', 's_nop', 's_setprio', 's_bitcmp', 's_endpgm', 's_setpc', 's_sleep')

class Ins:
    def __init__(self, text):
        self.text = text
        t = text.split(';')[0].strip()
        parts = t.split(None, 1)
        self.op = parts[0]
        rest = parts[1] if len(parts) > 1 else ''
        ops = [o.strip() for o in re.split(r',(?![^\[]*\])', rest)] if rest else []
        mods = ''
        if ops:
            lp = ops[-1].split(None, 1)
            if len(lp) > 1 and not ops[-1].startswith('abs'):
                ops[-1] = lp[0]; mods = lp[1]
        self.ops, self.mods = ops, mods
        op = self.op
        self.kind = 'other'; self.w = set(); self.r = set()
        R = [regs_of(o) for o in ops]
        U = lambda l: set().union(*l) if l else set()
        if op.startswith('v_mfma'):
            self.kind = 'mfma'; self.w = R[0]; self.A, self.B, self.C = R[1], R[2], R[3]; self.r = R[1] | R[2] | R[3]
            self.passes = 8 if '32x32' in op else 4
        elif op.startswith('v_cmp'):
            self.kind = 'valu'; self.w = R[0]; self.r = U(R[1:])
        elif op.startswith('v_readfirstlane') or op.startswith('v_readlane'):
            self.kind = 'valu'; self.w = R[0]; self.r = U(R[1:])
        elif op.startswith('v_permlane'):
            self.kind = 'valu'; self.w = R[0] | R[1]; self.r = R[0] | R[1]
        elif op.startswith('v_add_co') or op.startswith('v_sub_co') or op.startswith('v_addc_co'):
            self.kind = 'valu'; self.w = R[0] | R[1]; self.r = U(R[2:])
        elif op.startswith('v_'):
            self.kind = 'valu'; self.w = R[0]; self.r = U(R[1:])
            if op.startswith('v_fmac') or op.startswith('v_dot2c'): self.r |= R[0]
        elif op.startswith('ds_read'):
            self.kind = 'ds'; self.w = R[0]; self.r = R[1]
        elif op.startswith('ds_write'):
            self.kind = 'ds'; self.r = U(R)
        elif op.startswith('ds_bpermute') or op.startswith('ds_swizzle'):
            self.kind = 'ds'; self.w = R[0]; self.r = U(R[1:])
        elif op.startswith('buffer_load'):
            self.kind = 'vm'
            if 'lds' in mods.split():
                self.r = U(R) | {('s', 'm0')}; self.dma = True
            else:
                self.w = R[0]; self.r = U(R[1:])
        elif op.startswith('buffer_store') or op.startswith('buffer_atomic'):
            self.kind = 'vm'; self.r = U(R); self.sdata = R[0]
        elif op.startswith('buffer_'):
            self.kind = 'vm'
        elif op.startswith('s_load') or op.startswith('s_memtime') or op.startswith('s_memrealtime'):
            self.kind = 'smem'; self.w = R[0]; self.r = U(R[1:])
        elif op.startswith('s_'):
            self.kind = 'salu'
            if op.startswith(NODST_S): self.r = U(R)
            else:
                self.w = R[0]; self.r = U(R[1:])
                if 'saveexec' in op: self.w |= {('s', 'exec')}
            if op.startswith('s_cbranch_vcc'): self.r |= {('s', 'vcc')}
        self.states = 1
        if op == 's_nop': self.states = int(ops[0], 0) + 1

def check_trace(lines, name='', verbose=True):
    ins = []
    for l in lines:
        t = l.split(';')[0].strip()
        if not t or t.endswith(':') or t.startswith('.'): continue
        ins.append(Ins(t)); mt = re.search(r'tag=(\w+)', l); ins[-1].tag = mt.group(1) if mt else None
    probs = []
    m0tag = None
    pos = []
    c = 0
    for i in ins:
        pos.append(c); c += i.states
    WIN = 40
    dsq = []; vmq = []
    for n, i in enumerate(ins):
        if ('s', 'm0') in i.w: m0tag = i.tag
        if getattr(i, 'dma', False) and i.tag != m0tag: probs.append(f'{name}: [{n}] {i.text} tag {i.tag} but m0 tag {m0tag}')
        if i.op == 's_waitcnt':
            m = re.search(r'lgkmcnt\((\d+)\)', i.text)
            if m:
                k = int(m.group(1))
                while len(dsq) > k: dsq.pop(0)
            m = re.search(r'vmcnt\((\d+)\)', i.text)
            if m:
                k = int(m.group(1))
                while len(vmq) > k: vmq.pop(0)
        if i.op.startswith('s_cselect') or i.op.startswith('s_cbranch_scc'):
            for m_ in range(n - 1, -1, -1):
                p = ins[m_]
                if p.kind == 'salu' and not p.op.startswith(('s_mov', 's_cselect', 's_waitcnt', 's_barrier', 's_nop', 's_mul_i32', 's_branch', 's_cbranch', 's_setprio', 's_getpc', 's_setpc', 's_swappc')):
                    if not p.op.startswith(('s_cmp', 's_bitcmp')): probs.append(f'{name}: [{n}] {i.text}: SCC last written by {p.text}')
                    break
        touched = i.r | i.w
        for q, nm in ((dsq, 'lgkm'), (vmq, 'vm')):
            for d, txt in q:
                if d & touched:
                    probs.append(f'{name}: [{n}] {i.text} touches pending {nm} dest of: {txt}')
        if i.kind == 'ds':
            dsq.append((set(i.w), i.text))
            if len(dsq) > 15: pass
        if i.kind == 'smem': dsq.append((set(i.w), i.text)); dsq.append((set(), i.text))
        if i.kind == 'vm':
            vmq.append((set(i.w), i.text))
            if len(vmq) > 63: probs.append(f'{name}: [{n}] more than 63 vm outstanding')
        for m_ in range(n - 1, max(-1, n - WIN), -1):
            p = ins[m_]
            dist = pos[n] - pos[m_] - p.states
            if dist >= 20: break
            need = 0; why = ''
            if p.kind == 'mfma':
                big = p.passes == 8
                if i.kind == 'mfma':
                    if (i.A | i.B) & p.w: need, why = (12 if big else 8), 'mfmaD->A/B'
                    elif i.C & p.w and not (i.C == p.w and i.passes == p.passes): need, why = (10 if big else 6), 'mfmaD->C overlap'
                    elif i.w & p.w and not (i.C == p.w) and not (i.A == p.A and i.B == p.B): need, why = (12 if big else 8), 'mfmaD WAW (conservative)'
                elif i.kind in ('valu', 'ds', 'vm'):
                    if (i.r | i.w) & p.w: need, why = (12 if big else 8), 'mfmaD->valu/mem'
                    elif i.kind == 'valu' and i.w & p.C: need, why = (7 if big else 3), 'mfmaC WAR'
            elif p.kind == 'valu':
                vw = {x for x in p.w if x[0] in 'va'}
                sw = {x for x in p.w if x[0] == 's'}
                if i.kind == 'mfma' and i.r & vw: need, why = 2, 'valu->mfma'
                if i.kind == 'mfma' and ('s', 'exec') in sw: need, why = 4, 'exec->mfma'
                if i.kind == 'valu':
                    if p.op.startswith(TRANS) and not i.op.startswith(TRANS) and i.r & vw: need, why = max(need, 1), 'trans->valu'
                    if i.op.startswith('v_permlane') and i.r & vw: need, why = 2, 'valu->permlane'
                    if ('dpp' in i.op or 'row_' in i.mods) and i.r & vw: need, why = 2, 'valu->dpp'
                    if (i.op.startswith('v_readfirstlane') or i.op.startswith('v_readlane')) and i.r & vw: need, why = max(need, 1), 'valu->readlane'
                    if i.r & sw: need, why = max(need, 2), 'valu sgpr->valu'
                if i.kind == 'vm' and i.r & sw: need, why = 5, 'valu sgpr->vmem'
                if i.kind == 'salu' and i.r & sw and not i.op.startswith('s_cbranch'): need, why = max(need, 1), 'valu sgpr->salu (pad)'
            elif p.kind == 'salu':
                if ('s', 'm0') in p.w and i.kind == 'vm' and getattr(i, 'dma', False): need, why = 1, 'm0->dma'
            elif p.kind == 'vm' and hasattr(p, 'sdata') and len(p.sdata) >= 3:
                if i.w & p.sdata: need, why = (2 if i.kind in ('valu', 'mfma') else 1), 'store data WAR'
            if dist < need:
                probs.append(f'{name}: [{n}] {i.text}  <- [{m_}] {p.text}: {why} need {need} have {dist}')
    if verbose:
        for p in probs[:40]: print('HAZARD', p)
        print(f'check {name}: {len(ins)} instrs, {len(probs)} problems')
    return probs

def vr(b, n=1, f='v'): return f'{f}{b}' if n == 1 else f'{f}[{b}:{b+n-1}]'
def ar(b, n=1): return vr(b, n, 'a')
def sr(b, n=1): return vr(b, n, 's')

def weave(mfmas, pre, valu):
    out = []
    for g, m in enumerate(mfmas):
        for x in pre.get((g, 'before'), []): out.append(x)
        out.append(m)
        out += pre.get(g, [])
        out += valu.get(g, [])
    return out

def kdesc(name, nv, accum, ns=102):
    return f""".amdhsa_kernel {name}
  .amdhsa_next_free_vgpr {nv}
  .amdhsa_next_free_sgpr {ns}
  .amdhsa_accum_offset {accum}
  .amdhsa_group_segment_fixed_size 0
  .amdhsa_kernarg_size 96
  .amdhsa_user_sgpr_count 2
  .amdhsa_user_sgpr_kernarg_segment_ptr 1
  .amdhsa_system_sgpr_workgroup_id_x 1
  .amdhsa_float_denorm_mode_32 3
.end_amdhsa_kernel
"""

def auto_waits(ctx, lines):
    dsq, vmq = [], []
    out = []
    def step(l, emit):
        t = l.strip()
        wl = wv = None
        if t.startswith(';NEED'):
            touched = set()
            for tok in t.split()[1:]: touched |= regs_of(tok)
            i = None
        elif t.startswith(';VMNEED'):
            tag = t.split()[1]
            idx = [n for n, (d, g) in enumerate(vmq) if g == tag]
            if idx: wv = len(vmq) - 1 - idx[-1]
            touched = set(); i = None
        elif t.startswith(';LGKM0'):
            if dsq: wl = 0
            touched = set(); i = None
        else:
            code = t.split(';')[0].strip()
            if not code or code.endswith(':') or code.startswith('.'):
                if emit: out.append(l)
                return
            i = Ins(code)
            touched = i.r | i.w
            if i.op == 's_waitcnt':
                m = re.search(r'lgkmcnt\((\d+)\)', code)
                if m:
                    while len(dsq) > int(m.group(1)): dsq.pop(0)
                m = re.search(r'vmcnt\((\d+)\)', code)
                if m:
                    while len(vmq) > int(m.group(1)): vmq.pop(0)
        idx = [n for n, (d, g) in enumerate(dsq) if d & touched]
        if idx: wl = len(dsq) - 1 - idx[-1]
        idx = [n for n, (d, g) in enumerate(vmq) if d & touched]
        if idx:
            k = len(vmq) - 1 - idx[-1]
            wv = k if wv is None else min(wv, k)
        if wl is not None or wv is not None:
            s = 's_waitcnt'
            if wv is not None:
                wv = min(wv, 63); s += f' vmcnt({wv})'
                while len(vmq) > wv: vmq.pop(0)
            if wl is not None:
                wl = min(wl, 15); s += f' lgkmcnt({wl})'
                while len(dsq) > wl: dsq.pop(0)
            if emit: out.append(s)
        if i is not None:
            if emit: out.append(l)
            m = re.search(r'tag=(\w+)', t)
            tag = m.group(1) if m else None
            if i.kind == 'ds': dsq.append((set(i.w), tag))
            if i.kind == 'vm': vmq.append((set(i.w), tag))
    for l in ctx: step(l, False)
    for l in lines: step(l, True)
    return out
```

```python
import sys
from lib import *
HEAD = open('concat_heads__compressed_kv_cla__sliding_block__prompt.s.ref').read().split('; Override launch')[0]
def assemble(parts, path):
    s = HEAD
    for L, d, launch in parts: s += (launch + '\n') if launch else ''
    s += '.amdgcn_target "amdgcn-amd-amdhsa--gfx950"\n.text\n'
    for L, d, launch in parts:
        s += '\n'.join(x.split(' ; ')[0] if not (x.endswith(':') or x.startswith('.')) else x for x in L) + '\n'
    s += 'CODE_END:\n.section .rodata,"a"\n'
    for L, d, launch in parts: s += ('.p2align 6\n' + d) if d else ''
    open(path, 'w').write(s)
if __name__ == '__main__':
    import k1, k2, k3
    import os
    if int(os.environ.get('K1_TP', 0)): import k1t as k1
    parts = [k1.gen_k1(), k2.gen_k2()] + ([] if int(os.environ.get('FUSE3', 0)) else [k3.gen_k3()])
    assemble(parts, sys.argv[1] if len(sys.argv) > 1 else 'out.s')
```

```python
from lib import *
from layout import *
import struct, math, os
def f32(x): return '0x%08x' % struct.unpack('<I', struct.pack('<f', x))[0]

CA = math.log2(math.e) / math.sqrt(128.0)
vWd, vXd, vWl, vXr, vSt, vWr, vXr2, vSt2 = 2, 6, 10, 14, 16, 18, 26, 17
WF, PK, ACC = 32, 64, 128
sACT, sW, sWS = 28, 32, 36
sWave, sGc, sRem, sLdw, sWoff, sLdw128 = 40, 41, 43, 44, 45, 46
sOut0, sOut1, sScl = 47, 48, 49
sNOut0, sNOut1 = 50, 51
sType, sBlk, sXoff, sM0W, sM0X, sT0, sT1, sT2, sGcL, sRemL, sWsz, sSR, sSW, sM0X2, sPf = 53, 54, 55, 56, 57, 59, 60, 61, 62, 63, 64, 65, 66, 67, 68
DK = 1
NSLOT = 6
XBASE = NSLOT * 16384
STORE_FLAGS = os.environ.get('K1_SF', ' sc1')
PF = int(os.environ.get('K1_PF', 1))
WST = int(os.environ.get('K1_WST', 6))
PFG = int(os.environ.get('K1_PFG', 0))
DIAG = os.environ.get('DIAG')
def stamp(): return dstamp(31, 30, 29) if DIAG else []
MF = 'v_mfma_f32_16x16x32_bf16'
D = 24

def acc(par, ft, tt): return ACC + 64 * par + 4 * (4 * ft + tt)
def xfr(tt, kb): return (tt * 16 + kb) * 4
def wfr(kb, ft): return WF + 4 * ((4 * kb + ft) % 8)

def w_read(idx):
    idx %= 128
    kb, ft, p = idx // 8, (idx >> 1) & 3, idx & 1
    u, kl = kb // 4, kb % 4
    r = wfr(kb, ft) + 2 * p
    return f'ds_read_b64_tr_b16 {vr(r,2)}, v{vWr+4*(u&1)+ft} offset:{(32*kl + 4*p)*128}'

def ring_adv(s): return [f's_add_u32 s{s}, s{s}, 16384', f's_cmp_eq_u32 s{s}, {XBASE}', f's_cselect_b32 s{s}, 0, s{s}']

def w_dma(u, pad=False):
    L = [f's_add_u32 m0, s{sM0W}, s{sSW} ; tag=W{u}']
    if pad: L.append('s_nop 0')
    for q in range(4):
        L.append(f'buffer_load_dwordx4 v{vWd+q}, {sr(sW,4)}, s{sWoff} offen offset:{q*1024} lds ; tag=W{u}')
    L.append(f's_add_u32 s{sWoff}, s{sWoff}, s{sLdw128}')
    return L + ring_adv(sSW)

def x_dma(c):
    slot = c % 3
    L = []
    for hh in range(2):
        L.append(f's_add_u32 m0, s{sM0X}, {slot*8192 + hh*4096} ; tag=X{c}' if slot < 2 else f's_add_u32 m0, s{sM0X2}, {hh*4096} ; tag=X{c}')
        L.append(f's_add_u32 s{sT0}, s{sXoff}, {c*128 + hh*32768}')
        for q in range(4):
            L.append(f'buffer_load_dwordx4 v{vXd+q}, {sr(sACT,4)}, s{sT0} offen offset:{q*1024} lds ; tag=X{c}')
    return L

def x_read(c, kbl, tt):
    if c % 3 == 2: return f'ds_read_b128 {ar(xfr(tt, 2*c+kbl),4)}, v{vXr2+kbl} offset:{tt*2048}'
    return f'ds_read_b128 {ar(xfr(tt, 2*c+kbl),4)}, v{vXr+kbl} offset:{(c%3)*8192 + tt*2048}'

def load_params():
    return [
        f's_add_u32 s{sGcL}, s{sGcL}, 1',
        f's_sub_u32 s{sRemL}, s{sRemL}, 1',
        f's_cmp_lt_i32 s{sRemL}, 1',
        f's_cselect_b32 s{sW+2}, 0, s{sWsz}',
        f's_and_b32 s{sT1}, s{sGcL}, 63',
        f's_lshl_b32 s{sT1}, s{sT1}, 7',
        f's_mul_i32 s{sWoff}, s{sWave}, s{sLdw}',
        f's_lshl_b32 s{sWoff}, s{sWoff}, 5',
        f's_add_u32 s{sWoff}, s{sWoff}, s{sT1}',
    ]

def comp_params():
    return [
        f's_lshr_b32 s{sT1}, s{sGc}, 1',
        f's_lshl_b32 s{sT1}, s{sT1}, 19',
        f's_and_b32 s{sT2}, s{sGc}, 1',
        f's_lshl_b32 s{sT2}, s{sT2}, 12',
        f's_add_u32 s{sT1}, s{sT1}, s{sT2}',
        f's_lshl_b32 s{sT2}, s{sBlk}, 13',
        f's_add_u32 s{sNOut0}, s{sT1}, s{sT2}',
        f's_add_u32 s{sNOut1}, s{sNOut0}, 8192',
        f's_sub_u32 s{sT1}, s{sGc}, 128',
        f's_lshl_b32 s{sT1}, s{sT1}, 18',
        f's_lshl_b32 s{sT2}, s{sBlk}, 12',
        f's_add_u32 s{sT1}, s{sT1}, s{sT2}',
        f's_add_u32 s{sT1}, s{sT1}, {BWS}',
        f's_add_u32 s{sT2}, s{sT1}, 4096',
        f's_cmp_ge_u32 s{sGc}, 128',
        f's_cselect_b32 s{sNOut0}, s{sT1}, s{sNOut0}',
        f's_cselect_b32 s{sNOut1}, s{sT2}, s{sNOut1}',
        f's_cmp_ge_u32 s{sGc}, 64',
        f's_cselect_b32 s{sType}, 1, 0',
        f's_sub_u32 s{sT1}, s{sGc}, 128',
        f's_cmp_lt_u32 s{sT1}, 16',
        f's_cselect_b32 s{sType}, 0, s{sType}',
    ]

def groups(L):
    out = []
    for x in L:
        if x.startswith('s_cselect'): out[-1].append(x)
        else: out.append([x])
    return out

def epi_part(par, ptype, n):
    V, S = [], []
    y = n >> 1
    for e in range(2):
        fi = 2 * (n & 1) + e
        pk = PK + 4 * ((2 * n + e) % 4)
        if ptype == 0: t0, t1 = acc(par, 2 * (fi >> 1), 2 * y + (fi & 1)), acc(par, 2 * (fi >> 1) + 1, 2 * y + (fi & 1))
        else: t0, t1 = acc(par, fi, 2 * y), acc(par, fi, 2 * y + 1)
        if ptype == 0:
            V += [f'v_mul_f32 v{t+j}, s{sScl}, v{t+j}' for t in (t0, t1) for j in range(4)]
        V += [f'v_cvt_pk_bf16_f32 v{pk}, v{t0}, v{t0+1}', f'v_cvt_pk_bf16_f32 v{pk+1}, v{t0+2}, v{t0+3}',
              f'v_cvt_pk_bf16_f32 v{pk+2}, v{t1}, v{t1+1}', f'v_cvt_pk_bf16_f32 v{pk+3}, v{t1+2}, v{t1+3}']
        S.append(f'buffer_store_dwordx4 {vr(pk,4)}, v{vSt}, {sr(sWS,4)}, s{sOut1 if y else sOut0} offen offset:{fi*1024}{STORE_FLAGS}')
    return V, S

def build_pass(ptype, par, first, prev_type):
    mf = []; pre = {}; val = {}
    def P(g, x): pre.setdefault(g, []).extend(x if isinstance(x, list) else [x])
    def V(g, x): val.setdefault(g, []).extend(x if isinstance(x, list) else [x])
    def putw(g, u, st=2):
        dm = w_dma(u)
        P(g, dm[0]); P(g + 2, dm[1]); P(g + 2 + st, dm[2]); P(g + 2 + 2 * st, dm[3]); P(g + 2 + 3 * st, dm[4]); P(g + 4 + 3 * st, dm[5]); P(g + 6 + 3 * st, dm[6]); P(g + 8 + 3 * st, dm[7:])
    def putx(g, c):
        xd = x_dma(c)
        P(g, xd[0:3]); P(g + 2, xd[3]); P(g + 4, xd[4]); P(g + 6, xd[5])
        P(g + 8, xd[6:9]); P(g + 10, xd[9]); P(g + 12, xd[10]); P(g + 14, xd[11])
    for G in range(256):
        kb, ft, tt = G // 16, (G >> 2) & 3, G & 3
        a = acc(par, ft, tt)
        w, x = vr(wfr(kb, ft), 4), ar(xfr(tt, kb), 4)
        c = '0' if kb == 0 else vr(a, 4)
        mf.append(f'{MF} {vr(a,4)}, ' + (f'{w}, {x}' if ptype == 0 else f'{x}, {w}') + f', {c}')
        if G % 8 == 0:
            need = f';NEED {vr(wfr(kb,ft),4)} {vr(wfr(kb,ft+1),4)}'
            if first and G % 16 == 0: need += ' ' + ' '.join(ar(xfr(t, kb), 4) for t in range(4))
            P(G - 1 if G else (0, 'before'), need)
        if (G + D) % 64 == 0:
            nu = ((G + D) // 64) % 4
            P(G, [f';VMNEED W{nu}', 's_barrier'])
        if G % 2 == 0: P(G, w_read((G + D) // 2))
    for u in range(4):
        g0 = 64 * u
        V(g0, [f'v_add_u32 v{vWr+4*((u+1)&1)+ft}, s{sSR}, v{vWl+ft}' for ft in range(2)])
        V(g0 + 1, [f'v_add_u32 v{vWr+4*((u+1)&1)+ft}, s{sSR}, v{vWl+ft}' for ft in range(2, 4)])
        ra = ring_adv(sSR); P(g0 + 3, ra[0]); P(g0 + 5, ra[1:])
        if not first:
            putw(g0 + 9, u, WST if u < 3 else min(WST, 4))
            Vl, Sl = epi_part(par ^ 1, prev_type, u)
            for k in range(len(Vl) // 2): V(g0 + 8 + (k if u == 3 else 2 * k), Vl[2*k:2*k+2])
            if u < 3: P(g0 + 45, Sl[0]); P(g0 + 57, Sl[1])
            else: P(g0 + 21, Sl[0]); P(g0 + 31, Sl[1])
    g = 229 if not first else 233
    P(g, f's_mov_b32 s{sOut0}, s{sNOut0}'); P(g + 2, f's_mov_b32 s{sOut1}, s{sNOut1}')
    pl = [[f's_add_u32 s{sGc}, s{sGc}, 1'], [f's_sub_u32 s{sRem}, s{sRem}, 1']] + groups(comp_params())
    for k, x in enumerate(pl): P(g + 3 + k * (252 - g) // len(pl), x)
    lp = groups(load_params())
    g = 222 if not first else 227
    for k, x in enumerate(lp): P(g + k * 6 // len(lp), x)
    if first:
        for c in range(1, 8):
            g0 = 32 * (c - 1) + 11
            P(g0, f';VMNEED X{c}')
            k = 0
            for kbl in range(2):
                for tt in range(4):
                    P(g0 + 2 * k, x_read(c, kbl, tt)); k += 1
        lastx = lambda c: f';NEED {ar(xfr(3,2*c+1),4)}'
        putw(1, 1); P(17, lastx(0)); putx(17, 3); putw(33, 2)
        P(49, lastx(1)); putx(49, 4)
        P(65, lastx(2)); putx(65, 5)
        putw(81, 3)
        P(97, lastx(3)); putx(97, 6)
        for k, x in enumerate(groups(load_params())): P(113 + 2 * k, x)
        P(129, lastx(4)); putx(129, 7)
        P(167, lastx(5))
        putw(169, 0); putw(185, 1); putw(199, 2); putw(213, 3)
        if PF:
            for k in range(16):
                P(PFG + 2 * k, f'buffer_load_dwordx4 {vr(112+4*(k%4),4)}, v{vSt}, {sr(sW,4)}, s{sPf} offen offset:{(k%4)*1024} ; nodep')
                if k % 4 == 3: P(PFG + 2 * k, f's_add_u32 s{sPf}, s{sPf}, 4096')
    return weave(mf, pre, val)

def final_epi(par, ptype):
    L = ['s_nop 7']
    for n in range(4):
        Vl, Sl = epi_part(par, ptype, n)
        h = len(Vl) // 2
        L += Vl[:h] + [Sl[0]] + Vl[h:] + [Sl[1]]
    return L

def gen_k1(T=int(os.environ.get('K1_T', 4))):
    name = 'k1_kernel'
    L = []
    a = L.append
    a(f'.p2align 8\n.type {name},@function\n{name}:')
    a('s_cmp_ge_u32 s2, 256'); a('s_cbranch_scc1 K1_END')
    a('s_load_dwordx16 s[4:19], s[0:1], 0'); a('s_load_dwordx8 s[20:27], s[0:1], 64')
    a('v_lshrrev_b32 v1, 6, v0'); a('v_and_b32 v0, 63, v0')
    a(f'v_readfirstlane_b32 s{sWave}, v1')
    nj = 32 // T
    lt = T.bit_length() - 1
    a(f's_and_b32 s{sT0}, s2, 7'); a(f's_lshr_b32 s{sT1}, s2, 3')
    ng = 8 // T
    a(f's_and_b32 s{sT2}, s{sT0}, {ng-1}'); a(f's_lshl_b32 s{sT2}, s{sT2}, {lt}')
    a(f's_and_b32 s{sBlk}, s{sT1}, {T-1}'); a(f's_add_u32 s{sBlk}, s{sBlk}, s{sT2}')
    a(f's_lshr_b32 s{sT0}, s{sT0}, {ng.bit_length()-1}'); a(f's_mul_i32 s{sT0}, s{sT0}, {nj}')
    a(f's_lshr_b32 s{sT1}, s{sT1}, {lt}'); a(f's_add_u32 s{sT0}, s{sT0}, s{sT1}')
    a(f's_cmp_eq_u32 s{sT0}, 31'); a('s_cbranch_scc1 K1_END')
    a(f's_lshl_b32 s{sXoff}, s{sBlk}, 18'); a(f's_lshl_b32 s{sT1}, s{sWave}, 16'); a(f's_add_u32 s{sXoff}, s{sXoff}, s{sT1}')
    a(f's_lshl_b32 s{sBlk}, s{sBlk}, 3'); a(f's_lshl_b32 s{sT1}, s{sWave}, 1'); a(f's_add_u32 s{sBlk}, s{sBlk}, s{sT1}')
    a(f's_mul_i32 s{sT1}, s{sT0}, 79'); a(f's_lshr_b32 s{sT1}, s{sT1}, 10')
    a(f's_mul_i32 s{sT2}, s{sT1}, 13'); a(f's_sub_u32 s{sT2}, s{sT0}, s{sT2}')
    a(f's_lshl_b32 s{sPf}, s{sT2}, 19'); a(f's_lshr_b32 s{sGc}, s{sXoff}, 2'); a(f's_add_u32 s{sPf}, s{sPf}, s{sGc}')
    a(f's_mov_b32 s{sRem}, 5')
    a(f's_cmp_eq_u32 s{sT2}, 12'); a(f's_cselect_b32 s{sRem}, 4, s{sRem}')
    a(f's_cmp_eq_u32 s{sT0}, 30'); a(f's_cselect_b32 s{sRem}, 4, s{sRem}')
    a(f's_mul_i32 s{sT2}, s{sT2}, 5')
    a(f's_lshl_b32 s{sGc}, s{sT1}, 6'); a(f's_add_u32 s{sGc}, s{sGc}, s{sT2}')
    a(f's_lshl_b32 s{sM0W}, s{sWave}, 12')
    a(f's_lshl_b32 s{sM0X}, s{sWave}, 14'); a(f's_add_u32 s{sM0X}, s{sM0X}, {XBASE}')
    a(f's_lshl_b32 s{sM0X2}, s{sWave}, 13'); a(f's_add_u32 s{sM0X2}, s{sM0X2}, 65536')
    a(f'v_lshlrev_b32 v{vSt}, 4, v0')
    t = [100, 101, 102, 103, 104]
    a(f'v_lshrrev_b32 v{t[0]}, 3, v0'); a(f'v_lshlrev_b32 v{t[1]}, 10, v{t[0]}')
    a(f'v_lshrrev_b32 v{t[2]}, 4, v0'); a(f'v_and_b32 v{t[3]}, 7, v0'); a(f'v_xor_b32 v{t[2]}, v{t[2]}, v{t[3]}')
    for q in range(4):
        a(f'v_xor_b32 v{t[4]}, {4*(q&1)}, v{t[2]}'); a(f'v_lshl_add_u32 v{t[4]}, v{t[4]}, 4, v{t[1]}'); a(f'v_add_u32 v{vXd+q}, {q*7168}, v{t[4]}')
    a(f'v_and_b32 v{t[0]}, 15, v0'); a(f'v_lshrrev_b32 v{t[1]}, 4, v0'); a(f'v_bfe_u32 v{t[2]}, v0, 1, 3')
    a(f'v_lshlrev_b32 v{t[0]}, 7, v{t[0]}')
    for kbl in range(2):
        a(f'v_add_u32 v{t[4]}, {4*kbl}, v{t[1]}'); a(f'v_xor_b32 v{t[4]}, v{t[4]}, v{t[2]}'); a(f'v_lshl_add_u32 v{t[4]}, v{t[4]}, 4, v{t[0]}')
        a(f'v_add_u32 v{vXr+kbl}, s{sM0X}, v{t[4]}'); a(f'v_add_u32 v{vXr2+kbl}, s{sM0X2}, v{t[4]}')
    a(f'v_bfe_u32 v{t[0]}, v0, 2, 2'); a(f'v_lshrrev_b32 v{t[1]}, 4, v0'); a(f'v_lshl_add_u32 v{t[1]}, v{t[1]}, 3, v{t[0]}'); a(f'v_lshlrev_b32 v{t[1]}, 7, v{t[1]}')
    a(f'v_and_b32 v{t[2]}, 3, v0'); a(f'v_lshl_add_u32 v{t[1]}, v{t[2]}, 3, v{t[1]}')
    a(f'v_bfe_u32 v{t[2]}, v0, 3, 2')
    for ft in range(4):
        a(f'v_xor_b32 v{t[3]}, {ft}, v{t[2]}'); a(f'v_lshl_add_u32 v{vWl+ft}, v{t[3]}, 5, v{t[1]}'); a(f'v_mov_b32 v{vWr+ft}, v{vWl+ft}')
    a('s_waitcnt lgkmcnt(0)')
    a(f's_mov_b32 s{sWS}, s26'); a(f's_mov_b32 s{sWS+1}, s27'); a(f's_mov_b32 s{sWS+2}, 0x10000000'); a(f's_mov_b32 s{sWS+3}, 0x20000')
    a(f's_mov_b32 s{sW+3}, 0x20000'); a(f's_mov_b32 s{sACT+2}, 0x200000'); a(f's_mov_b32 s{sACT+3}, 0x20000')
    if DIAG: a('s_mov_b32 s72, 0'); a('v_mov_b32 v31, 0'); a('v_mov_b32 v29, 0'); L += stamp()
    a(f's_cmp_eq_u32 s{sT1}, 0'); a(f's_cselect_b64 {sr(sW,2)}, s[10:11], s[12:13]'); a(f's_cselect_b32 s{sScl}, {f32(CA)}, 1.0')
    a(f's_cmp_eq_u32 s{sT1}, 2'); a(f's_cselect_b64 {sr(sW,2)}, s[18:19], {sr(sW,2)}'); a(f's_cselect_b64 {sr(sACT,2)}, s[16:17], s[6:7]')
    a(f's_movk_i32 s{sLdw}, 8192'); a(f's_cselect_b32 s{sLdw}, 3072, s{sLdw}')
    a(f's_mov_b32 s{sWsz}, 0x400000'); a(f's_cselect_b32 s{sWsz}, 0x180000, s{sWsz}')
    a(f's_lshl_b32 s{sLdw128}, s{sLdw}, 7')
    a(f'v_lshrrev_b32 v{t[0]}, 3, v0'); a(f'v_mul_lo_u32 v{t[0]}, v{t[0]}, s{sLdw}')
    a(f'v_bfe_u32 v{t[1]}, v0, 4, 1'); a(f'v_lshlrev_b32 v{t[1]}, 1, v{t[1]}'); a(f'v_and_b32 v{t[2]}, 7, v0'); a(f'v_xor_b32 v{t[1]}, v{t[1]}, v{t[2]}')
    a(f's_lshl_b32 s{sT1}, s{sLdw}, 3'); a(f's_sub_u32 s{sT1}, s{sT1}, 1024')
    for q in range(4):
        a(f'v_xor_b32 v{t[2]}, {4*(q&1)}, v{t[1]}'); a(f'v_lshl_add_u32 v{vWd+q}, v{t[2]}, 4, v{t[0]}')
        if q < 3: a(f'v_add_u32 v{t[0]}, s{sT1}, v{t[0]}')
    a(f's_sub_u32 s{sGcL}, s{sGc}, 1'); a(f's_add_u32 s{sRemL}, s{sRem}, 1')
    a(f's_mov_b32 s{sSW}, 0'); a(f's_mov_b32 s{sSR}, 16384')
    pro = load_params()
    pro += w_dma(0, True) + x_dma(0) + x_dma(1) + comp_params()
    pro += [';VMNEED X0', 's_barrier']
    pro += [w_read(i) for i in range(4)] + [x_read(0, 0, tt) for tt in range(4)] + [w_read(i) for i in range(4, D // 2)]
    pro += [x_read(0, 1, tt) for tt in range(4)]
    pro += x_dma(2)
    pro = auto_waits([], pro)
    L += pro
    L += stamp()
    a(f's_cmp_eq_u32 s{sType}, 1'); a('s_cbranch_scc1 K1_F1')
    code = {}
    for t_ in range(2):
        code['F', t_] = auto_waits(pro, build_pass(t_, 0, True, None))
    combos = [(0, 0), (1, 1), (1, 0)]
    for t_, pt in combos:
        for par in range(2):
            raw = build_pass(t_, par, False, pt)
            c1 = auto_waits(pro + code['F', 0], raw)
            c2 = auto_waits(code['F', 0] + c1, raw)
            c3 = auto_waits(c1 + c2, raw)
            code['P', t_, pt, par] = merge_min([c1, c2, c3])
    def tail(t_, par):
        x = stamp() + [f's_cmp_eq_u32 s{sRem}, 0', f's_cbranch_scc1 K1_FIN{t_}{par}']
        if t_ == 1: return x + [f's_branch K1_P11{par^1}']
        return x + [f's_cmp_eq_u32 s{sType}, 1', f's_cbranch_scc1 K1_P10{par^1}', f's_branch K1_P00{par^1}']
    for t_ in range(2):
        a(f'.p2align 6\nK1_F{t_}:'); L += code['F', t_] + tail(t_, 0)
    for t_, pt in combos:
        for par in range(2):
            a(f'.p2align 6\nK1_P{t_}{pt}{par}:'); L += code['P', t_, pt, par] + tail(t_, par)
    for t_ in range(2):
        for par in range(2):
            a(f'K1_FIN{t_}{par}:'); L += final_epi(par, t_); a('s_branch K1_END2')
    a('K1_END2:')
    if DIAG:
        L += stamp(); a('s_waitcnt vmcnt(0)'); L += stamp()
        L += dstore(31, 30, 29, sWave, sWS, 200)
    a('K1_END:'); a('s_endpgm')
    check_trace(pro + code['F', 0] + tail(0, 0) + code['P', 0, 0, 1] + tail(0, 1) + code['P', 1, 0, 0] + tail(1, 0) + code['P', 1, 1, 1] + tail(1, 1) + final_epi(1, 1), 'k1a')
    check_trace(pro + code['F', 1] + tail(1, 0) + code['P', 1, 1, 1] + tail(1, 1) + final_epi(1, 1), 'k1b')
    return L, kdesc(name, 512, 256), f'; @launch kernel={name} grid=(256,1,1) block=(256,1,1) lds=163840'
```

```python
from lib import *
from layout import *
import os, struct, math
def f32(x): return '0x%08x' % struct.unpack('<I', struct.pack('<f', x))[0]
DIAG = os.environ.get('DIAG')
SF = os.environ.get('K2_SF', ' sc1')
THR = 2.0 ** float(os.environ.get('THR', 40.0))
NEGBIG = -1.0e30
D = 24
MF = 'v_mfma_f32_16x16x32_bf16'
vL16, vRd, vq, vBig, vd, vl, vt, vT = 1, 2, 4, 5, 6, 8, 12, 16
NM = 20
vDl = 36
vDG = 44
S0, P0, Q0, TMPV = 48, 112, 144, 208
O0, FR = 0, 128
sWS, sX, sWQ = 8, 12, 16
sW, sH, sI, sK, sV, sSR, sSW, sCnt, sKc, sMq, sRet, sT, sMk, sW2, sW4 = 20, 21, 22, 23, 24, 25, 26, 27, 28, 29, 30, 32, 40, 48, 49
sW2K, sW4K = 58, 59
sXa, sXb, sWo, sXs = 50, 51, 52, 53

def stamp(): return dstamp(vDG, vDG + 1, vDG + 2) if DIAG else []
def Sr(par, idx): return S0 + 32 * par + 4 * idx
def Pr(par, u): return P0 + 16 * par + 4 * u
def Or(qt, dt): return O0 + 32 * qt + 4 * dt
def Qr(qt, db): return Q0 + 16 * qt + 4 * db
def slot(g): return FR + 4 * ((g // 2) % 16)
def tq(t, idx): return (idx & 3) if t == 'c' else 2 + (idx & 1)
def tkt(t, idx): return (idx >> 2) if t == 'c' else (idx >> 1)
def tP(t, idx):
    if t == 'c': return idx & 3, idx >> 2
    kt = idx >> 1
    return 2 * (kt >> 1) + (idx & 1), kt & 1

def pv_frags(t):
    if t == 'c': return [(4 * dt, dt * 1024) for dt in range(8)]
    return [(4 * dt + 2 * kb, kb * 8192 + dt * 1024) for dt in range(8) for kb in range(2)]
def koff(kt, db): return (kt >> 1) * 8192 + (2 * db + (kt & 1)) * 1024
def qk_frags(t):
    if t == 'c': return [(32 + 16 * kt + 4 * db, 16384 + koff(kt, db)) for kt in range(2) for db in range(4)]
    return [(32 + 8 * kt + 2 * db, 16384 + koff(kt, db)) for kt in range(4) for db in range(4)]
def rd(g, off, par): return f'ds_read_b128 {ar(slot(g),4)}, v{vRd+par} offset:{off}'

def pv_mfmas(t, par):
    out = []
    for dt in range(8):
        for x in range(4):
            if t == 'c': qt, u, g = x, x, 4 * dt
            else: qt, u, g = 2 + (x & 1), x, 4 * dt + 2 * (x >> 1)
            o = Or(qt, dt)
            out.append(f'{MF} {ar(o,4)}, {ar(slot(g),4)}, {vr(Pr(par,u),4)}, {ar(o,4)}')
    return out
def qk_mfmas(t, par, czero=False, fr=None):
    out = []
    nkt, nq = (2, 4) if t == 'c' else (4, 2)
    for kt in range(nkt):
        for db in range(4):
            g = 32 + (16 * kt + 4 * db if t == 'c' else 8 * kt + 2 * db)
            f = ar(slot(g), 4) if fr is None else fr(kt, db)
            for x in range(nq):
                idx = nq * kt + x; qt = tq(t, idx); s = Sr(par, idx)
                c = vr(s, 4) if db else ('0' if czero else vr(NM + 4 * qt, 4))
                out.append(f'{MF} {vr(s,4)}, {f}, {vr(Qr(qt,db),4)}, {c}')
    return out

def mask_ops(par, t, k, dyn=None):
    L = []
    src = f's{dyn}' if dyn is not None else str(32 * k)
    L += [f'v_subrev_u32 v{vd}, {src}, v{vq}', f'v_add_u32 v{vd+1}, 16, v{vd}']
    tiles = [i for i in range(8) if (t == 's' or (i & 3) < 2)]
    for idx in tiles:
        s = Sr(par, idx); kt = tkt(t, idx); qq = idx & 1
        for j in range(4): L.append(f'v_cmp_gt_i32 {sr(sMk+2*j,2)}, {16*kt+j}, v{vd+qq}')
        for j in range(4): L.append(f'v_cndmask_b32 v{s+j}, v{s+j}, v{vBig}, {sr(sMk+2*j,2)}')
    return L

def exp_ops(par, t):
    L = []; seen = set()
    def tail(idx):
        s = Sr(par, idx); qt = tq(t, idx); u, h = tP(t, idx); a = vt + qt
        if qt not in seen:
            seen.add(qt); x = [f'v_add_f32 v{a}, v{s}, v{s+1}']
        else: x = [f'v_add_f32 v{a}, v{a}, v{s}', f'v_add_f32 v{a}, v{a}, v{s+1}']
        p = Pr(par, u) + 2 * h
        return x + [f'v_cvt_pk_bf16_f32 v{p}, v{s}, v{s+1}', f'v_add_f32 v{a}, v{a}, v{s+2}', f'v_add_f32 v{a}, v{a}, v{s+3}', f'v_cvt_pk_bf16_f32 v{p+1}, v{s+2}, v{s+3}']
    prev = None
    for idx in range(8):
        s = Sr(par, idx)
        e = [f'v_exp_f32 v{s+j}, v{s+j}' for j in range(4)]
        tl = tail(prev) if prev is not None else []
        L += [e[0]] + tl[:2] + [e[1]] + tl[2:4] + [e[2]] + tl[4:] + [e[3]]
        prev = idx
    L += ['s_nop 0'] + tail(prev)
    return L
def lupd(t): return [f'v_add_f32 v{vl+q}, v{vl+q}, v{vt+q}' for q in ((0, 1, 2, 3) if t == 'c' else (2, 3))]
def chk(t):
    if t == 'c': L = [f'v_max3_f32 v{vT}, v{vt}, v{vt+1}, v{vt+2}', f'v_max_f32 v{vT}, v{vT}, v{vt+3}']
    else: L = [f'v_max_f32 v{vT}, v{vt+2}, v{vt+3}']
    return L + [f'v_cmp_nge_f32 vcc, {f32(THR)}, v{vT}']

def dma_part(kind, t, tag):
    so = sV if kind == 'V' else sK
    w = (sW4 if t == 's' else sW2) if kind == 'V' else (sW4K if t == 's' else sW2K)
    n = 4 if t == 's' else 2
    items = [[f's_add_u32 m0, s{sSW}, s{w} ; tag={tag}']]
    for q in range(n):
        items.append([f'buffer_load_dwordx4 v{vL16}, {sr(sWS,4)}, s{so} offen offset:{q*1024} lds ; tag={tag}'])
    items.append([f's_add_u32 s{so}, s{so}, {n*4096}'])
    return items
def flat(L):
    o = []
    for x in L:
        if isinstance(x, list): o += flat(x)
        else: o.append(x)
    return o

STUBS = []
def body(par, pv, sm, qk, nxt_pv, vload, kload, mask, uid):
    psm = par ^ 1
    mf = []
    if pv: mf += pv_mfmas(pv, par)
    if qk: mf += qk_mfmas(qk, par)
    ng = len(mf)
    pre = {}
    def P(g, x): pre.setdefault(g, []).extend(x if isinstance(x, list) else [x])
    frs = (pv_frags(pv) if pv else []) + (qk_frags(qk) if qk else [])
    for g, off in frs:
        if g - D >= 0: P(g - D, rd(g, off, par))
    for g0 in range(0, ng, 8):
        need = [ar(slot(g), 4) for g, off in frs if g0 <= g < g0 + 8]
        P(g0 - 1 if g0 else (0, 'before'), ';NEED ' + ' '.join(need))
    if nxt_pv:
        gb = ng - D
        P(gb - 1, [f';VMNEED U{par^1}', 's_barrier'])
        for g, off in pv_frags(nxt_pv):
            if g < D: P(ng + g - D, rd(g, off, par ^ 1))
    items = []
    if vload: items += dma_part('V', vload, f'U{par}')
    if kload: items += dma_part('K', kload, f'U{par}')
    if nxt_pv: items += [[f's_add_u32 s{sSR}, s{sSR}, 32768'], [f's_and_b32 s{sSR}, s{sSR}, 0x1ffff']]
    if vload or kload: items += [[f's_add_u32 s{sSW}, s{sSW}, 32768'], [f's_and_b32 s{sSW}, s{sSW}, 0x1ffff']]
    if sm:
        items += [[f's_add_u32 s{sKc}, s{sKc}, {8192 if pv == "c" else 16384}'], [f's_mov_b32 s{sMq}, {32*mask if mask is not None else -4096}']]
    free = [g for g in range(1, ng) if g not in pre and not (g == ng - 1)]
    lim = (ng - D - 2) if nxt_pv else ng - 2
    gi = 0; lastd = -9
    for it in items:
        isd = it[0].startswith('buffer')
        while gi < len(free) and (isd and free[gi] - lastd < DSP): gi += 1
        g = free[gi]; gi += 1
        if isd:
            lastd = g
        P(g, it)
    Pq = []; Eq = []
    if nxt_pv: Pq.append(f'v_add_u32 v{vRd+(par^1)}, s{sSR}, v{vL16}')
    if pv: Pq += lupd(pv)
    if sm:
        if mask is not None: Pq += mask_ops(psm, sm, mask)
        for x in exp_ops(psm, sm):
            if x.startswith('v_exp'): Eq.append(x)
            elif x.startswith('v_'): Pq.append(x)
        Pq += chk(sm)
    cap = {}
    for g in range(ng):
        n = sum(2 if x.startswith('buffer') else 1 for x in pre.get(g, []))
        cap[g] = max(0, 2 - max(0, n - 1))
    last = ng - 2
    total = 2 * len(Eq) + len(Pq)
    def sched(extra):
        cp = dict(cap)
        for k in range(extra): cp[(k * (last + 1) // max(extra, 1)) % (last + 1)] += 1
        val = {}; pi = ei = 0
        eiss = {}
        ereg = [Ins(x).w for x in Eq]; allE = set().union(*ereg) if ereg else set()
        pend_mask = {}
        for k, x in enumerate(Pq):
            if x.startswith('v_cndmask'):
                for r in Ins(x).w: pend_mask[r] = k
        for g in range(last + 1):
            sl = cp[g]
            while sl > 0:
                if ei < len(Eq) and sl >= 2 and all(pend_mask.get(r, -1) < pi for r in ereg[ei]):
                    val.setdefault(g, []).append(Eq[ei])
                    for r in ereg[ei]: eiss[r] = g
                    ei += 1; sl -= 2; continue
                if pi < len(Pq):
                    x = Pq[pi]; ins = Ins(x)
                    ok = x.startswith('v_cndmask') or all(eiss.get(r, 999) < g for r in ins.r & allE)
                    if ok:
                        val.setdefault(g, []).append(x); pi += 1; sl -= 1; continue
                break
        return val, (len(Eq) - ei) + (len(Pq) - pi)
    extra = 0
    while True:
        val, left = sched(extra)
        if left == 0: break
        extra += 1
    if os.environ.get('VERB'): print(uid, 'valu', total, 'avail', sum(cap[g] for g in range(last + 1)), 'extra', extra)
    if sm:
        pre.setdefault(ng - 1, []).extend([f's_cbranch_vccnz K2_S_{uid}', f'K2_R_{uid}:'])
        STUBS.extend([f'K2_S_{uid}:', f's_call_b64 {sr(sRet,2)}, K2_RARE_{psm}{sm}{qk or "n"}', f's_branch K2_R_{uid}'])
        RARES.add((psm, sm, qk or 'n'))
    return weave(mf, pre, val)
RARES = set()
DSP = int(os.environ.get('K2_DSP', 3))

def xlane(op, r, tmp):
    return [f'v_mov_b32 v{tmp}, v{r}', 's_nop 1', f'v_permlane32_swap_b32 v{r}, v{tmp}', f'{op} v{r}, v{r}, v{tmp}',
            f'v_mov_b32 v{tmp}, v{r}', 's_nop 1', f'v_permlane16_swap_b32 v{r}, v{tmp}', f'{op} v{r}, v{r}, v{tmp}']
def deltas(par, t, clamp):
    L = []
    qs = (0, 1, 2, 3) if t == 'c' else (2, 3)
    for q in qs:
        regs = [Sr(par, i) + j for i in range(8) if tq(t, i) == q for j in range(4)]
        L.append(f'v_max_f32 v{vDl+q}, v{regs[0]}, v{regs[1]}')
        for k in range(2, len(regs), 2): L.append(f'v_max3_f32 v{vDl+q}, v{vDl+q}, v{regs[k]}, v{regs[k+1]}')
        L += xlane('v_max_f32', vDl + q, vT) + [f'v_ceil_f32 v{vDl+q}, v{vDl+q}']
        if clamp: L.append(f'v_max_f32 v{vDl+q}, 0, v{vDl+q}')
    return L
def sub_tiles(par, t): return [f'v_sub_f32 v{Sr(par,i)+j}, v{Sr(par,i)+j}, v{vDl+tq(t,i)}' for i in range(8) for j in range(4)]

def rare(par, t, tn):
    L = [f'K2_RARE_{par}{t}{tn}:', 's_nop 7', 's_nop 7']
    nkt = 2 if t == 'c' else 4
    R = []
    mf = qk_mfmas(t, par, fr=lambda kt, db: vr(TMPV + 16 * (kt & 1) + 4 * db, 4))
    per = len(mf) // nkt
    for k0 in range(0, nkt, 2):
        R.append(f's_add_u32 s{sT+4}, s{sKc}, {k0*4096}'); R.append(f's_add_u32 s{sT+5}, s{sT+4}, 4096')
        for kt in range(2):
            for db in range(4):
                o = (2 * db + kt) * 1024
                R.append(f'buffer_load_dwordx4 {vr(TMPV+16*kt+4*db,4)}, v{vL16}, {sr(sWS,4)}, s{sT+4+(o>>12)} offen offset:{o&4095}')
        R.append('s_waitcnt vmcnt(0)')
        R += mf[per*k0:per*(k0+2)] + ['s_nop 7']
    R += mask_ops(par, t, None, dyn=sMq) + deltas(par, t, True)
    if t == 's': R += [f'v_mov_b32 v{vDl}, 0', f'v_mov_b32 v{vDl+1}, 0']
    R += sub_tiles(par, t)
    if tn != 'n': R += sub_tiles(par ^ 1, tn)
    for q in range(4):
        for j in range(4): R.append(f'v_sub_f32 v{NM+4*q+j}, v{NM+4*q+j}, v{vDl+q}')
        R.append(f'v_exp_f32 v{vDl+4+q}, -v{vDl+q}')
    R += exp_ops(par, t)
    for q in range(4): R.append(f'v_mul_f32 v{vl+q}, v{vl+q}, v{vDl+4+q}')
    for q in ((0, 1, 2, 3) if t == 'c' else (2, 3)):
        for j0 in range(0, 32, 8):
            for j in range(8): R.append(f'v_accvgpr_read_b32 v{TMPV+j}, a{Or(q,0)+j0+j}')
            for j in range(8): R.append(f'v_mul_f32 v{TMPV+j}, v{TMPV+j}, v{vDl+4+q}')
            for j in range(8): R.append(f'v_accvgpr_write_b32 a{Or(q,0)+j0+j}, v{TMPV+j}')
    R += ['s_nop 1', f's_setpc_b64 {sr(sRet,2)}']
    check_trace(R, f'rare{par}{t}{tn}', bool(os.environ.get('VERB')))
    return L + R

K = 1024
XS = [[32*K, 48*K, 8*K, 24*K], [40*K, 56*K, 88*K, 96*K], [0, 16*K, 80*K, 112*K]]
WSL = [64*K, 144*K, 128*K]
vXd, vWd, vXr, vWr = 208, 212, 216, 222
QACC = 48
XF, WFq = 0, 64
def qacc(ft, tt): return QACC + 4 * (4 * ft + tt)
def xf(c, kbl, tt): return XF + 32 * (c & 1) + 16 * kbl + 4 * tt
def wf(c, kbl, ft): return WFq + 64 * (c & 1) + 32 * kbl + 4 * ft
def q_dma(c):
    sl = c % 3
    it = []
    for ab, so in enumerate((sXa, sXb)):
        it.append([f's_add_u32 m0, s{sXs+sl}, {ab*4096} ; tag=C{c}', f's_add_u32 s{sT}, s{so}, {c*128}'])
        for q in range(4): it.append([f'buffer_load_dwordx4 v{vXd+q}, {sr(sX,4)}, s{sT} offen offset:{q*1024} lds ; tag=C{c}'])
    it.append([f's_add_u32 m0, s{sW4}, {WSL[sl]} ; tag=C{c}', f's_add_u32 s{sT}, s{sWo}, {c*64*8192}'])
    for q in range(4): it.append([f'buffer_load_dwordx4 v{vWd+q}, {sr(sWQ,4)}, s{sT} offen offset:{q*1024} lds ; tag=C{c}'])
    return it
def q_reads(c):
    sl = c % 3
    L = []
    for kbl in range(2):
        for tt in range(4): L.append(f'ds_read_b128 {ar(xf(c,kbl,tt),4)}, v{vXr+2*sl+kbl} offset:{tt*2048}')
        for ft in range(8):
            for p in range(2):
                off = WSL[sl] - 128*K * (sl > 0) + (32 * kbl + 4 * p) * 256
                L.append(f'ds_read_b64_tr_b16 {ar(wf(c,kbl,ft)+2*p,2)}, v{vWr+ft+8*(sl>0)} offset:{off - (64*K if sl == 0 else 0)}')
    return L
def q_setup():
    t = [240, 241, 242, 243, 244]
    L = []
    a = L.append
    a(f's_lshl_b32 s{sXa}, s{sI}, 17'); a(f's_lshl_b32 s{sT}, s{sW}, 15'); a(f's_sub_u32 s{sXb}, {15*128*1024}, s{sXa}')
    a(f's_add_u32 s{sXa}, s{sXa}, s{sT}'); a(f's_add_u32 s{sXb}, s{sXb}, s{sT}')
    a(f's_lshl_b32 s{sWo}, s{sH}, 8'); a(f's_lshl_b32 s{sT}, s{sW}, 17'); a(f's_add_u32 s{sWo}, s{sWo}, s{sT}')
    for sl in range(3):
        a(f's_mov_b32 s{sXs+sl}, {XS[sl][0]}')
        for w in range(1, 4):
            a(f's_cmp_eq_u32 s{sW}, {w}'); a(f's_cselect_b32 s{sXs+sl}, {XS[sl][w]}, s{sXs+sl}')
    a(f'v_lshrrev_b32 v{t[0]}, 3, v0'); a(f'v_lshlrev_b32 v{t[1]}, 10, v{t[0]}')
    a(f'v_lshrrev_b32 v{t[2]}, 4, v0'); a(f'v_and_b32 v{t[3]}, 7, v0'); a(f'v_xor_b32 v{t[2]}, v{t[2]}, v{t[3]}')
    for q in range(4):
        a(f'v_xor_b32 v{t[4]}, {4*(q&1)}, v{t[2]}'); a(f'v_lshl_add_u32 v{t[4]}, v{t[4]}, 4, v{t[1]}'); a(f'v_add_u32 v{vXd+q}, {q*7168}, v{t[4]}')
    a(f'v_lshrrev_b32 v{t[0]}, 4, v0'); a(f'v_lshlrev_b32 v{t[1]}, 13, v{t[0]}'); a(f'v_lshlrev_b32 v{t[0]}, 1, v{t[0]}')
    a(f'v_and_b32 v{t[2]}, 15, v0'); a(f'v_xor_b32 v{t[2]}, v{t[2]}, v{t[0]}')
    for q in range(4):
        a(f'v_xor_b32 v{t[4]}, {8*(q>>1)}, v{t[2]}'); a(f'v_lshl_add_u32 v{t[4]}, v{t[4]}, 4, v{t[1]}'); a(f'v_add_u32 v{vWd+q}, {q*(4*8192-1024)}, v{t[4]}')
    return L
def q_setup2():
    t = [240, 241, 242, 243, 244]
    L = []; a = L.append
    a(f'v_and_b32 v{t[0]}, 15, v0'); a(f'v_lshrrev_b32 v{t[1]}, 4, v0'); a(f'v_bfe_u32 v{t[2]}, v0, 1, 3'); a(f'v_lshlrev_b32 v{t[0]}, 7, v{t[0]}')
    for kbl in range(2):
        a(f'v_add_u32 v{t[4]}, {4*kbl}, v{t[1]}'); a(f'v_xor_b32 v{t[4]}, v{t[4]}, v{t[2]}'); a(f'v_lshl_add_u32 v{t[4]}, v{t[4]}, 4, v{t[0]}')
        for sl in range(3): a(f'v_add_u32 v{vXr+2*sl+kbl}, s{sXs+sl}, v{t[4]}')
    a(f'v_bfe_u32 v{t[0]}, v0, 2, 2'); a(f'v_lshl_add_u32 v{t[1]}, v{t[1]}, 3, v{t[0]}'); a(f'v_lshlrev_b32 v{t[1]}, 8, v{t[1]}')
    a(f'v_and_b32 v{t[2]}, 3, v0'); a(f'v_lshl_add_u32 v{t[1]}, v{t[2]}, 3, v{t[1]}'); a(f'v_bfe_u32 v{t[2]}, v0, 2, 3')
    for ft in range(8):
        a(f'v_xor_b32 v{t[3]}, {ft}, v{t[2]}'); a(f'v_lshl_add_u32 v{t[3]}, v{t[3]}, 5, v{t[1]}')
        a(f'v_add_u32 v{vWr+ft}, {64*K}, v{t[3]}'); a(f'v_add_u32 v{vWr+8+ft}, {128*K}, v{t[3]}')
    return L

def a_loads(which):
    if which == 0:
        return [[f's_mov_b32 s{sSW}, 65536']] + dma_part('K', 'c', 'K0') + [[f's_mov_b32 s{sSW}, 98304']] + dma_part('K', 'c', 'K0') + \
               [[f's_mov_b32 s{sSW}, 0']] + dma_part('V', 'c', 'U0') + dma_part('K', 'c', 'U0')
    return [[f's_mov_b32 s{sSW}, 32768']] + dma_part('V', 'c', 'U1') + dma_part('K', 'c', 'U1') + [[f's_mov_b32 s{sSW}, 65536'], [f's_mov_b32 s{sSR}, 32768']]

def qproj():
    L = q_setup() + flat(q_dma(0)) + flat(q_dma(1)) + q_setup2()
    L += [f's_lshl_b32 s{sT+4}, s{sH}, 19', f's_add_u32 s{sK}, s{sT+4}, {KWS}', f's_add_u32 s{sV}, s{sT+4}, {VWS}', f's_mov_b32 s{sKc}, s{sK}', f's_add_u32 s{sK}, s{sK}, s{sW2}', f's_add_u32 s{sV}, s{sV}, s{sW2}']
    L += [';VMNEED C0', 's_barrier'] + q_reads(0)
    L += stamp()
    for c in range(8):
        mf = []; pre = {}
        def P(g, x): pre.setdefault(g, []).extend(x if isinstance(x, list) else [x])
        for kbl in range(2):
            for ft in range(8):
                for tt in range(4):
                    a = qacc(ft, tt)
                    cc = '0' if (c == 0 and kbl == 0) else vr(a, 4)
                    mf.append(f'{MF} {vr(a,4)}, {ar(wf(c,kbl,ft),4)}, {ar(xf(c,kbl,tt),4)}, {cc}')
        if c == 0:
            for g0 in range(0, 64, 8):
                kbl = g0 // 32
                P(g0 - 1 if g0 else (0, 'before'), f';NEED {ar(wf(0,kbl,(g0%32)//4),8)} {ar(xf(0,kbl,0),16)}')
            g = 0
            for it in q_dma(2): P(g, it); g += 2
            gb = 27
        else:
            P((0, 'before'), ';LGKM0')
            gb = 1
        if c < 7:
            P(gb, [f';VMNEED C{c+1}', 's_barrier'])
            rds = q_reads(c + 1)
            n = len(rds); g0 = gb + 1
            for k, x in enumerate(rds): P(g0 + k * (58 - g0) // n, x)
        else:
            P(60, [';VMNEED U0', 's_barrier', f'v_add_u32 v{vRd}, 65536, v{vL16}', f'v_add_u32 v{vRd+1}, 98304, v{vL16}'])
        if 1 <= c <= 5: ex = q_dma(c + 2)
        elif c == 6: ex = a_loads(0)
        elif c == 7: ex = a_loads(1)
        else: ex = []
        for k, it in enumerate(ex): P(3 + k * 56 // len(ex), it)
        L += weave(mf, pre, {})
    return L

def a_prologue():
    L = []
    fr = qk_frags('c')
    L += [rd(g, off, 0) for g, off in fr] + [rd(g + 2, off, 1) for g, off in fr]
    order = [3, 2, 1, 0]
    cv = []
    for db in order:
        for tt in range(4):
            t0, t1 = qacc(2 * db, tt), qacc(2 * db + 1, tt)
            dst = TMPV + 16 + 4 * tt if db == 3 else Qr(tt, db)
            cv += [f'v_cvt_pk_bf16_f32 v{dst}, v{t0}, v{t0+1}', f'v_cvt_pk_bf16_f32 v{dst+1}, v{t0+2}, v{t0+3}', f'v_cvt_pk_bf16_f32 v{dst+2}, v{t1}, v{t1+1}', f'v_cvt_pk_bf16_f32 v{dst+3}, v{t1+2}, v{t1+3}']
    for tt in range(4):
        for j in range(4): cv.append(f'v_mov_b32 v{Qr(tt,3)+j}, v{TMPV+16+4*tt+j}')
    z = [f'v_mov_b32 v{TMPV+j}, 0' for j in range(4)]
    L += z + ['s_nop 3'] + cv
    zm = [f'v_mfma_f32_32x32x16_bf16 {ar(16*k,16)}, {vr(TMPV,4)}, {vr(TMPV,4)}, 0' for k in range(8)]
    L += ['s_nop 0'] + qk_mfmas('c', 0, czero=True) + zm
    L += [f's_cmp_eq_u32 s{sI}, 0', f's_cselect_b32 s{sMq}, 0, -4096']
    L += mask_ops(0, 'c', None, dyn=sMq) + deltas(0, 'c', False)
    for q in range(4):
        for j in range(4): L.append(f'v_sub_f32 v{NM+4*q+j}, 0, v{vDl+q}')
    V = [f'v_mov_b32 v{vl+q}, 0' for q in range(4)] + sub_tiles(0, 'c') + exp_ops(0, 'c')
    mf2 = qk_mfmas('c', 1, fr=lambda kt, db: ar(slot(32 + 16 * kt + 4 * db + 2), 4))
    L += [f'v_mov_b32 v{vRd}, v{vL16}', ';LGKM0', 's_barrier']
    rds = [rd(g, off, 0) for g, off in pv_frags('c') if g < D]
    n = len(mf2)
    for k, m in enumerate(mf2):
        L.append(m)
        if k >= n - 2 * len(rds) and (n - k) % 2 == 0: L.append(rds[len(rds) - (n - k) // 2])
        L += V[len(V)*k//n:len(V)*(k+1)//n]
    return L

def fin_rows(which):
    t0, t1 = sT + 4, sT + 5
    q0 = 0 if which == 'a' else 2
    L = [f's_lshl_b32 s{t0}, s{sH}, 12', f's_add_u32 s{t0}, s{t0}, {CTX}', f's_mul_i32 s{t1}, s{sW}, {2*CTX_S}', f's_add_u32 s{t0}, s{t0}, s{t1}', f's_mul_i32 s{t1}, s{sI}, {8*CTX_S}']
    L += [f's_add_u32 s{t0}, s{t0}, s{t1}'] if which == 'a' else [f's_sub_u32 s{t0}, s{t0}, s{t1}', f's_add_u32 s{t0}, s{t0}, {120*CTX_S}']
    for q in (q0, q0 + 1):
        L += xlane('v_add_f32', vl + q, vT) + [f'v_rcp_f32 v{vl+q}, v{vl+q}']
    for q in (q0, q0 + 1):
        if q & 1: L.append(f's_add_u32 s{t0}, s{t0}, {CTX_S}')
        for h in range(2):
            r = TMPV + 16 * h; p = TMPV + 32 + 8 * h
            for j in range(16): L.append(f'v_accvgpr_read_b32 v{r+j}, a{Or(q,4*h)+j}')
            for j in range(16): L.append(f'v_mul_f32 v{r+j}, v{r+j}, v{vl+q}')
            for j in range(8): L.append(f'v_cvt_pk_bf16_f32 v{p+j}, v{r+2*j}, v{r+2*j+1}')
            for x in range(2): L.append(f'buffer_store_dwordx4 {vr(p+4*x,4)}, v{vL16}, {sr(sWS,4)}, s{t0} offen offset:{(2*h+x)*1024}{SF}')
    return L

def gen_k2():
    name = 'k2_kernel'
    L = []; a = L.append
    a(f'.p2align 8\n.type {name},@function\n{name}:')
    a('s_cmp_ge_u32 s2, 256'); a('s_cbranch_scc1 K2_END')
    a('s_load_dwordx2 s[4:5], s[0:1], 88'); a('s_load_dwordx2 s[6:7], s[0:1], 0'); a('s_load_dwordx2 s[56:57], s[0:1], 16')
    a('v_lshrrev_b32 v1, 6, v0'); a('v_and_b32 v0, 63, v0'); a(f'v_readfirstlane_b32 s{sW}, v1')
    a(f'v_lshlrev_b32 v{vL16}, 4, v0')
    a(f's_and_b32 s{sH}, s2, 31'); a(f's_lshr_b32 s{sI}, s2, 5')
    a(f's_lshl_b32 s{sW2}, s{sW}, 11'); a(f's_lshl_b32 s{sW4}, s{sW}, 12'); a(f's_add_u32 s{sW2K}, s{sW2}, 16384'); a(f's_add_u32 s{sW4K}, s{sW4}, 16384')
    a(f'v_mov_b32 v{vBig}, {f32(NEGBIG)}')
    a(f'v_and_b32 v{vq}, 15, v0'); a(f'v_lshrrev_b32 v{vT}, 4, v0'); a(f'v_lshlrev_b32 v{vT}, 2, v{vT}'); a(f'v_sub_u32 v{vq}, v{vq}, v{vT}')
    a(f's_lshl_b32 s{sT}, s{sW}, 5'); a(f'v_add_u32 v{vq}, s{sT}, v{vq}')
    a('s_waitcnt lgkmcnt(0)')
    for srd, p, n in ((sWS, 4, 0x10000000), (sX, 6, 0x200000), (sWQ, 56, 0x400000)):
        a(f's_mov_b32 s{srd}, s{p}'); a(f's_mov_b32 s{srd+1}, s{p+1}'); a(f's_mov_b32 s{srd+2}, {hex(n)}'); a(f's_mov_b32 s{srd+3}, 0x20000')
    if DIAG: a('s_mov_b32 s72, 0'); a(f'v_mov_b32 v{vDG}, 0'); a(f'v_mov_b32 v{vDG+2}, 0'); L += stamp()
    pre = auto_waits([], qproj() + stamp() + a_prologue() + stamp())
    L += pre
    def two(uid, b0, b1): return body(0, *b0, uid + 'a') + body(1, *b1, uid + 'b')
    raw = {
     'CC': two('CC', ('c','c','c','c','c','c',None), ('c','c','c','c','c','c',None)),
     'X1': two('X1', ('c','c','c','c','c','c',None), ('c','c','c','c','c','c',0)),
     'X2': two('X2', ('c','c','c','c','c','s',1), ('c','c','c','c','c','s',2)),
     'X3': two('X3', ('c','c','s','c','s','s',3), ('c','s','s','s','s','s',None)) + fin_rows('a'),
     'X3b': two('X3b', ('c','c','s','c','s',None,3), ('c','s','s','s','s',None,0)) + fin_rows('a'),
     'SS': two('SS', ('s','s','s','s','s','s',None), ('s','s','s','s','s','s',None)),
     'X4': two('X4', ('s','s','s','s','s',None,None), ('s','s','s','s','s',None,0)),
     'TL': two('TL', ('s','s',None,'s',None,None,2), ('s',None,None,None,None,None,None)),
    }
    preds = {'CC': ['pre', 'CC'], 'X1': ['CC'], 'X2': ['X1', 'pre'], 'X3': ['X2'], 'X3b': ['X2'], 'SS': ['X3', 'SS'], 'X4': ['SS'], 'TL': ['X4', 'X3b']}
    fin = {'pre': pre}
    for it in range(3):
        for k in raw:
            fin[k] = merge_min([auto_waits(fin[p], raw[k]) for p in preds[k] if p in fin])
    a(f's_cmp_eq_u32 s{sI}, 0'); a('s_cbranch_scc1 K2_X2')
    a(f's_lshl_b32 s{sCnt}, s{sI}, 1'); a(f's_sub_u32 s{sCnt}, s{sCnt}, 1')
    a('.p2align 6\nK2_CC:'); L += fin['CC'] + [f's_sub_u32 s{sCnt}, s{sCnt}, 1', f's_cmp_lg_u32 s{sCnt}, 0', 's_cbranch_scc1 K2_CC']
    L += stamp()
    L += fin['X1']
    a('K2_X2:'); a(f's_add_u32 s{sK}, s{sK}, s{sW2}'); L += fin['X2']
    a(f's_add_u32 s{sV}, s{sV}, s{sW2}')
    a(f's_cmp_eq_u32 s{sI}, 7'); a('s_cbranch_scc1 K2_X3b')
    L += fin['X3']
    L += stamp()
    a(f's_lshl_b32 s{sCnt}, s{sI}, 1'); a(f's_sub_u32 s{sCnt}, 13, s{sCnt}')
    a('.p2align 6\nK2_SS:'); L += fin['SS'] + [f's_sub_u32 s{sCnt}, s{sCnt}, 1', f's_cmp_lg_u32 s{sCnt}, 0', 's_cbranch_scc1 K2_SS']
    L += stamp()
    L += fin['X4']
    a('K2_TL:'); L += fin['TL']
    L += stamp()
    epi = ['s_nop 7'] + fin_rows('b')
    L += epi
    if DIAG:
        L += stamp(); a('s_waitcnt vmcnt(0)'); L += stamp()
        L += dstore(vDG, vDG + 1, vDG + 2, sW, sWS, 201)
    a('K2_END:'); a('s_endpgm')
    a('K2_X3b:'); L += fin['X3b']; a('s_branch K2_TL')
    L += STUBS
    for r in sorted(RARES): L += rare(*r)
    f = fin
    check_trace(pre + ['s_nop 0'] * 2 + f['X2'] + f['X3'] + f['SS'] + f['SS'] + f['X4'] + f['TL'] + epi, 'k2 i=0')
    check_trace(pre + ['s_nop 0'] * 4 + f['CC'] + f['CC'] + f['X1'] + f['X2'] + f['X3b'] + f['TL'] + epi, 'k2 i=7')
    return L, kdesc(name, 512, 256), f'; @launch kernel={name} grid=(256,1,1) block=(256,1,1) lds=163840'
```

```python
from lib import *
import os
M = 1 << 20
from layout import *
IL = int(os.environ.get('K3_IL', 0))
DIAG = os.environ.get('DIAG')
NSL = int(os.environ.get('K3_NSL', 12))
def stamp():
    if not DIAG: return []
    return dstamp(11, 10, 9)

def gen_k3(name='k3_kernel'):
    L = []; a = L.append
    sWS, sOUT = 8, 12
    sW = 16; sQ0, sQ1, sM0, sM1 = 20, 21, 22, 23
    vL = 2
    ACC = 128
    def acc(part, mb, qb): return ACC + 64 * part + 16 * (2 * mb + qb)
    def fr(ks, which): return 16 * (ks % NSL) + 4 * which
    a(f'.p2align 8\n.type {name},@function\n{name}:')
    a('s_cmp_ge_u32 s2, 256'); a(f's_cbranch_scc1 {name}_END')
    a('s_load_dwordx2 s[4:5], s[0:1], 88'); a('s_load_dwordx2 s[6:7], s[0:1], 72')
    a('v_lshrrev_b32 v1, 6, v0'); a('v_mov_b32 v3, v0'); a('v_and_b32 v0, 63, v0'); a(f'v_readfirstlane_b32 s{sW}, v1')
    a(f'v_lshlrev_b32 v{vL}, 4, v0')
    a('s_and_b32 s24, s2, 7'); a('s_lshr_b32 s25, s2, 3')
    LM = int(os.environ.get('K3_LM', 2))
    LQ = 5 - LM
    a(f's_lshr_b32 s17, s24, {3-LM}'); a(f's_lshl_b32 s17, s17, {LQ}'); a(f's_and_b32 s26, s25, {(1<<LQ)-1}'); a('s_add_u32 s17, s17, s26')
    a(f's_and_b32 s18, s24, {(1<<(3-LM))-1}'); a(f's_lshl_b32 s18, s18, {LM}'); a(f's_lshr_b32 s26, s25, {LQ}'); a('s_add_u32 s18, s18, s26')
    a(f's_lshl_b32 s26, s{sW}, {12 if IL else 16}')
    a(f's_mul_i32 s{sQ0}, s17, {2*CTX_S}'); a(f's_add_u32 s{sQ0}, s{sQ0}, s26'); a(f's_add_u32 s{sQ0}, s{sQ0}, {CTX}'); a(f's_add_u32 s{sQ1}, s{sQ0}, {CTX_S}')
    a(f's_mul_i32 s{sM0}, s18, {2*WOA_S}'); a(f's_add_u32 s{sM0}, s{sM0}, s26'); a(f's_add_u32 s{sM0}, s{sM0}, {WOA}'); a(f's_add_u32 s{sM1}, s{sM0}, {WOA_S}')
    a(f's_lshl_b32 s26, s{sW}, {12 if IL else 13}')
    a(f's_mul_i32 s28, s17, {2*OB_S}'); a('s_add_u32 s28, s28, s26'); a(f's_add_u32 s28, s28, {OB}'); a(f's_add_u32 s29, s28, {OB_S}')
    a(f's_mul_i32 s30, s18, {2*WOB_S}'); a('s_add_u32 s30, s30, s26'); a(f's_add_u32 s30, s30, {WOB}'); a(f's_add_u32 s31, s30, {WOB_S}')
    a('s_waitcnt lgkmcnt(0)')
    a(f's_mov_b32 s{sWS}, s4'); a(f's_mov_b32 s{sWS+1}, s5'); a(f's_mov_b32 s{sWS+2}, 0x10000000'); a(f's_mov_b32 s{sWS+3}, 0x20000')
    a(f's_mov_b32 s{sOUT}, s6'); a(f's_mov_b32 s{sOUT+1}, s7'); a(f's_mov_b32 s{sOUT+2}, 0x400000'); a(f's_mov_b32 s{sOUT+3}, 0x20000')
    if DIAG: a('s_mov_b32 s72, 0'); a('v_mov_b32 v11, 0'); a('v_mov_b32 v9, 0'); L += stamp()
    NK = 72
    def loads(ks):
        out = []
        if ks < 64: bases, kk = (sM0, sM1, sQ0, sQ1), ks
        else: bases, kk = (30, 31, 28, 29), ks - 64
        for wch in range(4):
            out.append(f'buffer_load_dwordx4 {ar(fr(ks,wch),4)}, v{vL}, {sr(sWS,4)}, s{bases[wch]} offen offset:{(kk%4)*1024}')
        if kk % 4 == 3:
            out.append([f's_add_u32 s{b}, s{b}, {16384 if IL else 4096}' for b in bases])
        return out
    B = []
    for ks in range(NSL - 1):
        for x in loads(ks): B += x if isinstance(x, list) else [x]
    for ks in range(NK):
        part = 0 if ks < 64 else 1
        nl = loads(ks + NSL - 1) if ks + NSL - 1 < NK else []
        for g in range(4):
            mb, qb = g >> 1, g & 1
            d = acc(part, mb, qb)
            c = '0' if ks in (0, 64) else vr(d, 16)
            B.append(f'v_mfma_f32_32x32x16_bf16 {vr(d,16)}, {ar(fr(ks,mb),4)}, {ar(fr(ks,2+qb),4)}, {c}')
            if nl:
                B.append(nl[g])
                if g == 3 and len(nl) > 4: B += nl[4]
    if os.environ.get('K3_SWAP'):
        import re as _re
        def sw(x):
            x = _re.sub(r'a\[(\d+):(\d+)\]', lambda m: f'X[{int(m.group(1))+16}:{int(m.group(2))+16}]', x)
            x = _re.sub(r'v\[(\d+):(\d+)\]', lambda m: f'a[{int(m.group(1))-128}:{int(m.group(2))-128}]', x)
            return x.replace('X[', 'v[')
        B = [sw(x) for x in B]
        B += ['s_nop 7', 's_nop 7'] + [f'v_accvgpr_read_b32 v{128+j}, a{j}' for j in range(128)]
    if os.environ.get('K3_NOMFMA'): B = [x for x in B if 'mfma' not in x]
    B = auto_waits([], B)
    L += B
    L += stamp()
    E = ['s_nop 7', 's_nop 3']
    E += ['v_and_b32 v4, 31, v0', 'v_mul_u32_u24 v4, 272, v4', 'v_lshrrev_b32 v5, 5, v0', 'v_lshl_add_u32 v4, v5, 4, v4',
          f's_mul_i32 s26, s{sW}, 17408', 'v_add_u32 v4, s26, v4', f'v_add_u32 v5, {4*17408}, v4']
    for part in range(2):
        for mb in range(2):
            for qb in range(2):
                for g in range(4):
                    E.append(f'ds_write_b128 v{4+part}, {vr(acc(part,mb,qb)+4*g,4)} offset:{qb*32*272 + mb*128 + g*32}')
    E += ['s_waitcnt lgkmcnt(0)', 's_barrier']
    E += ['v_lshrrev_b32 v4, 2, v3', 'v_and_b32 v5, 3, v3', 'v_mul_u32_u24 v6, 272, v4', 'v_lshl_add_u32 v6, v5, 6, v6', f'v_add_u32 v7, {4*17408}, v6',
          'v_lshlrev_b32 v4, 11, v4', 'v_lshl_add_u32 v4, v5, 5, v4',
          's_lshl_b32 s26, s17, 17', 's_lshl_b32 s27, s18, 7', 's_add_u32 s26, s26, s27']
    for part in range(2):
        base = 16 + 64 * part
        for w in range(4):
            for c in range(4):
                E.append(f'ds_read_b128 {vr(base+16*w+4*c,4)}, v{6+part} offset:{w*17408 + c*16}')
    for part in range(2):
        base = 16 + 64 * part
        for j in range(16):
            E.append(f'v_add_f32 v{base+j}, v{base+j}, v{base+16+j}')
        for j in range(16):
            E.append(f'v_add_f32 v{base+32+j}, v{base+32+j}, v{base+48+j}')
        for j in range(16):
            E.append(f'v_add_f32 v{base+j}, v{base+j}, v{base+32+j}')
        for j in range(8):
            E.append(f'v_cvt_pk_bf16_f32 v{base+16+j}, v{base+2*j}, v{base+2*j+1}')
        for x in range(2):
            E.append(f'buffer_store_dwordx4 {vr(base+16+4*x,4)}, v4, {sr(sOUT,4)}, s26 offen offset:{part*1024 + x*16}{os.environ.get("K3_SF", "")}')
    E = auto_waits(B, E)
    L += E
    if DIAG:
        L += stamp(); a('s_waitcnt vmcnt(0)'); L += stamp()
        L += dstore(11, 10, 9, sW, sWS, 202)
    a(f'{name}_END:'); a('s_endpgm')
    check_trace(B + E, 'k3')
    return L, kdesc(name, 256 + 16 * NSL, 256), f'; @launch kernel={name} grid=(256,1,1) block=(256,1,1) lds={8*17408}'
```

```python
import os
M = 1 << 20
KWS, VWS, BWS, CTX, OB, WOA, WOB, PART, FLG = 0, 16 * M, 48 * M, 56 * M, 76 * M, 80 * M, 86 * M, 88 * M, 110 * M
CTX_S = 128 * 1024
WOA_S = 128 * 1024
OB_S = 16 * 1024
WOB_S = 16 * 1024
```

```python
import re

def regs_of(tok):
    tok = tok.strip()
    neg = tok.lstrip('-')
    m = re.fullmatch(r'abs\((.*)\)', neg)
    if m: neg = m.group(1)
    m = re.fullmatch(r'\|(.*)\|', neg)
    if m: neg = m.group(1)
    m = re.fullmatch(r'([vas])(\d+)', neg)
    if m: return {(m.group(1), int(m.group(2)))}
    m = re.fullmatch(r'([vas])\[(\d+):(\d+)\]', neg)
    if m: return {(m.group(1), i) for i in range(int(m.group(2)), int(m.group(3)) + 1)}
    if neg == 'vcc': return {('s', 'vcc')}
    if neg == 'exec': return {('s', 'exec')}
    if neg == 'm0': return {('s', 'm0')}
    return set()

TRANS = ('v_exp_f32', 'v_log_f32', 'v_rcp_f32', 'v_rsq_f32', 'v_sqrt_f32', 'v_sin_f32', 'v_cos_f32')
NODST_S = ('s_cmp', 's_waitcnt', 's_barrier', 's_branch', 's_cbranch', 's_nop', 's_setprio', 's_bitcmp', 's_endpgm', 's_setpc', 's_sleep')

class Ins:
    def __init__(self, text):
        self.text = text
        t = text.split(';')[0].strip()
        parts = t.split(None, 1)
        self.op = parts[0]
        rest = parts[1] if len(parts) > 1 else ''
        ops = [o.strip() for o in re.split(r',(?![^\[]*\])', rest)] if rest else []
        mods = ''
        if ops:
            lp = ops[-1].split(None, 1)
            if len(lp) > 1 and not ops[-1].startswith('abs'):
                ops[-1] = lp[0]; mods = lp[1]
        self.ops, self.mods = ops, mods
        op = self.op
        self.kind = 'other'; self.w = set(); self.r = set()
        R = [regs_of(o) for o in ops]
        U = lambda l: set().union(*l) if l else set()
        if op.startswith('v_mfma'):
            self.kind = 'mfma'; self.w = R[0]; self.A, self.B, self.C = R[1], R[2], R[3]; self.r = R[1] | R[2] | R[3]
            self.passes = 8 if '32x32' in op else 4
        elif op.startswith('v_cmp'):
            self.kind = 'valu'; self.w = R[0]; self.r = U(R[1:])
        elif op.startswith('v_readfirstlane') or op.startswith('v_readlane'):
            self.kind = 'valu'; self.w = R[0]; self.r = U(R[1:])
        elif op.startswith('v_permlane'):
            self.kind = 'valu'; self.w = R[0] | R[1]; self.r = R[0] | R[1]
        elif op.startswith('v_add_co') or op.startswith('v_sub_co') or op.startswith('v_addc_co'):
            self.kind = 'valu'; self.w = R[0] | R[1]; self.r = U(R[2:])
        elif op.startswith('v_'):
            self.kind = 'valu'; self.w = R[0]; self.r = U(R[1:])
            if op.startswith('v_fmac') or op.startswith('v_dot2c'): self.r |= R[0]
        elif op.startswith('ds_read'):
            self.kind = 'ds'; self.w = R[0]; self.r = R[1]
        elif op.startswith('ds_write'):
            self.kind = 'ds'; self.r = U(R)
        elif op.startswith('ds_bpermute') or op.startswith('ds_swizzle'):
            self.kind = 'ds'; self.w = R[0]; self.r = U(R[1:])
        elif op.startswith('buffer_load'):
            self.kind = 'vm'
            if 'lds' in mods.split():
                self.r = U(R) | {('s', 'm0')}; self.dma = True
            else:
                self.w = R[0]; self.r = U(R[1:])
        elif op.startswith('buffer_store') or op.startswith('buffer_atomic'):
            self.kind = 'vm'; self.r = U(R); self.sdata = R[0]
        elif op.startswith('buffer_'):
            self.kind = 'vm'
        elif op.startswith('s_load') or op.startswith('s_memtime') or op.startswith('s_memrealtime'):
            self.kind = 'smem'; self.w = R[0]; self.r = U(R[1:])
        elif op.startswith('s_'):
            self.kind = 'salu'
            if op.startswith(NODST_S): self.r = U(R)
            else:
                self.w = R[0]; self.r = U(R[1:])
                if 'saveexec' in op: self.w |= {('s', 'exec')}
            if op.startswith('s_cbranch_vcc'): self.r |= {('s', 'vcc')}
        self.states = 1
        if op == 's_nop': self.states = int(ops[0], 0) + 1

def check_trace(lines, name='', verbose=True):
    ins = []
    for l in lines:
        t = l.split(';')[0].strip()
        if not t or t.endswith(':') or t.startswith('.'): continue
        ins.append(Ins(t)); mt = re.search(r'tag=(\w+)', l); ins[-1].tag = mt.group(1) if mt else None
        if 'nodep' in l: ins[-1].w = set()
    probs = []
    m0tag = None
    pos = []
    c = 0
    for i in ins:
        pos.append(c); c += i.states
    WIN = 40
    dsq = []; vmq = []
    for n, i in enumerate(ins):
        if ('s', 'm0') in i.w: m0tag = i.tag
        if getattr(i, 'dma', False) and i.tag != m0tag: probs.append(f'{name}: [{n}] {i.text} tag {i.tag} but m0 tag {m0tag}')
        if i.op == 's_waitcnt':
            m = re.search(r'lgkmcnt\((\d+)\)', i.text)
            if m:
                k = int(m.group(1))
                while len(dsq) > k: dsq.pop(0)
            m = re.search(r'vmcnt\((\d+)\)', i.text)
            if m:
                k = int(m.group(1))
                while len(vmq) > k: vmq.pop(0)
        if i.op.startswith('s_cselect') or i.op.startswith('s_cbranch_scc'):
            for m_ in range(n - 1, -1, -1):
                p = ins[m_]
                if p.kind == 'salu' and not p.op.startswith(('s_mov', 's_cselect', 's_waitcnt', 's_barrier', 's_nop', 's_mul_i32', 's_branch', 's_cbranch', 's_setprio', 's_getpc', 's_setpc', 's_swappc')):
                    if not p.op.startswith(('s_cmp', 's_bitcmp')): probs.append(f'{name}: [{n}] {i.text}: SCC last written by {p.text}')
                    break
        touched = i.r | i.w
        for q, nm in ((dsq, 'lgkm'), (vmq, 'vm')):
            for d, txt in q:
                if d & touched:
                    probs.append(f'{name}: [{n}] {i.text} touches pending {nm} dest of: {txt}')
        if i.kind == 'ds':
            dsq.append((set(i.w), i.text))
            if len(dsq) > 15: pass
        if i.kind == 'smem': dsq.append((set(i.w), i.text)); dsq.append((set(), i.text))
        if i.kind == 'vm':
            vmq.append((set(i.w), i.text))
            if len(vmq) > 63: probs.append(f'{name}: [{n}] more than 63 vm outstanding')
        for m_ in range(n - 1, max(-1, n - WIN), -1):
            p = ins[m_]
            dist = pos[n] - pos[m_] - p.states
            if dist >= 20: break
            need = 0; why = ''
            if p.kind == 'mfma':
                big = p.passes == 8
                if i.kind == 'mfma':
                    if (i.A | i.B) & p.w: need, why = (12 if big else 8), 'mfmaD->A/B'
                    elif i.C & p.w and not (i.C == p.w and i.passes == p.passes): need, why = (10 if big else 6), 'mfmaD->C overlap'
                    elif i.w & p.w and not (i.C == p.w) and not (i.A == p.A and i.B == p.B): need, why = (12 if big else 8), 'mfmaD WAW (conservative)'
                elif i.kind in ('valu', 'ds', 'vm'):
                    if (i.r | i.w) & p.w: need, why = (12 if big else 8), 'mfmaD->valu/mem'
                    elif i.kind == 'valu' and i.w & p.C: need, why = (7 if big else 3), 'mfmaC WAR'
            elif p.kind == 'valu':
                vw = {x for x in p.w if x[0] in 'va'}
                sw = {x for x in p.w if x[0] == 's'}
                if i.kind == 'mfma' and i.r & vw: need, why = 2, 'valu->mfma'
                if i.kind == 'mfma' and ('s', 'exec') in sw: need, why = 4, 'exec->mfma'
                if i.kind == 'valu':
                    if p.op.startswith(TRANS) and not i.op.startswith(TRANS) and i.r & vw: need, why = max(need, 1), 'trans->valu'
                    if i.op.startswith('v_permlane') and i.r & vw: need, why = 2, 'valu->permlane'
                    if ('dpp' in i.op or 'row_' in i.mods) and i.r & vw: need, why = 2, 'valu->dpp'
                    if (i.op.startswith('v_readfirstlane') or i.op.startswith('v_readlane')) and i.r & vw: need, why = max(need, 1), 'valu->readlane'
                    if i.r & sw: need, why = max(need, 2), 'valu sgpr->valu'
                if i.kind == 'vm' and i.r & sw: need, why = 5, 'valu sgpr->vmem'
                if i.kind == 'salu' and i.r & sw and not i.op.startswith('s_cbranch'): need, why = max(need, 1), 'valu sgpr->salu (pad)'
            elif p.kind == 'salu':
                if ('s', 'm0') in p.w and i.kind == 'vm' and getattr(i, 'dma', False): need, why = 1, 'm0->dma'
            elif p.kind == 'vm' and hasattr(p, 'sdata') and len(p.sdata) >= 3:
                if i.w & p.sdata: need, why = (2 if i.kind in ('valu', 'mfma') else 1), 'store data WAR'
            if dist < need:
                probs.append(f'{name}: [{n}] {i.text}  <- [{m_}] {p.text}: {why} need {need} have {dist}')
    if verbose:
        for p in probs[:40]: print('HAZARD', p)
        print(f'check {name}: {len(ins)} instrs, {len(probs)} problems')
    return probs

def vr(b, n=1, f='v'): return f'{f}{b}' if n == 1 else f'{f}[{b}:{b+n-1}]'
def ar(b, n=1): return vr(b, n, 'a')
def sr(b, n=1): return vr(b, n, 's')

def weave(mfmas, pre, valu):
    out = []
    for g, m in enumerate(mfmas):
        for x in pre.get((g, 'before'), []): out.append(x)
        out.append(m)
        out += pre.get(g, [])
        out += valu.get(g, [])
    return out

def kdesc(name, nv, accum, ns=102):
    return f""".amdhsa_kernel {name}
  .amdhsa_next_free_vgpr {nv}
  .amdhsa_next_free_sgpr {ns}
  .amdhsa_accum_offset {accum}
  .amdhsa_group_segment_fixed_size 0
  .amdhsa_kernarg_size 96
  .amdhsa_user_sgpr_count 2
  .amdhsa_user_sgpr_kernarg_segment_ptr 1
  .amdhsa_system_sgpr_workgroup_id_x 1
  .amdhsa_float_denorm_mode_32 3
.end_amdhsa_kernel
"""

def auto_waits(ctx, lines):
    dsq, vmq = [], []
    out = []
    def step(l, emit):
        t = l.strip()
        wl = wv = None
        if t.startswith(';NEED'):
            touched = set()
            for tok in t.split()[1:]: touched |= regs_of(tok)
            i = None
        elif t.startswith(';VMNEED'):
            tag = t.split()[1]
            idx = [n for n, (d, g) in enumerate(vmq) if g == tag]
            if idx: wv = len(vmq) - 1 - idx[-1]
            touched = set(); i = None
        elif t.startswith(';LGKM0'):
            if dsq: wl = 0
            touched = set(); i = None
        else:
            code = t.split(';')[0].strip()
            if not code or code.endswith(':') or code.startswith('.'):
                if emit: out.append(l)
                return
            i = Ins(code)
            if 'nodep' in t: i.w = set()
            touched = i.r | i.w
            if i.op == 's_waitcnt':
                m = re.search(r'lgkmcnt\((\d+)\)', code)
                if m:
                    while len(dsq) > int(m.group(1)): dsq.pop(0)
                m = re.search(r'vmcnt\((\d+)\)', code)
                if m:
                    while len(vmq) > int(m.group(1)): vmq.pop(0)
        idx = [n for n, (d, g) in enumerate(dsq) if d & touched]
        if idx: wl = len(dsq) - 1 - idx[-1]
        idx = [n for n, (d, g) in enumerate(vmq) if d & touched]
        if idx:
            k = len(vmq) - 1 - idx[-1]
            wv = k if wv is None else min(wv, k)
        if wl is not None or wv is not None:
            s = 's_waitcnt'
            if wv is not None:
                wv = min(wv, 63); s += f' vmcnt({wv})'
                while len(vmq) > wv: vmq.pop(0)
            if wl is not None:
                wl = min(wl, 15); s += f' lgkmcnt({wl})'
                while len(dsq) > wl: dsq.pop(0)
            if emit: out.append(s)
        if i is not None:
            if emit: out.append(l)
            m = re.search(r'tag=(\w+)', t)
            tag = m.group(1) if m else None
            if i.kind == 'ds': dsq.append((set(i.w), tag))
            if i.kind == 'vm': vmq.append((set(i.w), tag))
    for l in ctx: step(l, False)
    for l in lines: step(l, True)
    return out

def dstamp(va, vt, vb):
    return ['s_memtime s[70:71]', 's_memrealtime s[74:75]', 's_waitcnt lgkmcnt(0)', 'v_cmp_eq_u32 vcc, s72, v0', f'v_mov_b32 v{vt}, s70', 's_add_u32 s72, s72, 1',
            f'v_cndmask_b32 v{va}, v{va}, v{vt}, vcc', f'v_mov_b32 v{vt}, s74', f'v_cndmask_b32 v{vb}, v{vb}, v{vt}, vcc']
def dstore(va, vt, vb, sw, sws, mb):
    return ['s_lshl_b32 s70, s2, 2', f's_add_u32 s70, s70, s{sw}', 's_lshl_b32 s70, s70, 9', f's_add_u32 s70, s70, {mb<<20}', f'v_lshlrev_b32 v{vt}, 2, v0',
            f'buffer_store_dword v{va}, v{vt}, s[{sws}:{sws+3}], s70 offen', f'buffer_store_dword v{vb}, v{vt}, s[{sws}:{sws+3}], s70 offen offset:256']

def merge_min(variants):
    base = variants[0]
    for c in variants[1:]:
        if c == base: continue
        mm = []; i = j = 0
        while i < len(base) or j < len(c):
            x = base[i] if i < len(base) else None; y = c[j] if j < len(c) else None
            xw = x is not None and x.startswith('s_waitcnt'); yw = y is not None and y.startswith('s_waitcnt')
            if xw and yw:
                gx = dict(re.findall(r'(\w+cnt)\((\d+)\)', x)); gy = dict(re.findall(r'(\w+cnt)\((\d+)\)', y))
                keys = [k for k in ('vmcnt', 'lgkmcnt') if k in gx or k in gy]
                mm.append('s_waitcnt ' + ' '.join(f'{k}({min(int(gx.get(k, 99)), int(gy.get(k, 99)))})' for k in keys)); i += 1; j += 1
            elif xw: mm.append(x); i += 1
            elif yw: mm.append(y); j += 1
            else:
                assert x == y, (x, y); mm.append(x); i += 1; j += 1
        base = mm
    return base
```

```python
from lib import *
from layout import *
import struct, math, os
def f32(x): return '0x%08x' % struct.unpack('<I', struct.pack('<f', x))[0]

CA = math.log2(math.e) / math.sqrt(128.0)
vWd, vXd, vWl, vXr, vSt, vWr, vXr2, vSt2 = 2, 6, 10, 14, 16, 18, 26, 17
WF, PK, ACC = 32, 64, 128
sACT, sW, sWS = 28, 32, 36
sWave, sGc, sRem, sLdw, sWoff, sLdw128 = 40, 41, 43, 44, 45, 46
sOut0, sOut1, sScl = 47, 48, 49
sNOut0, sNOut1 = 50, 51
sType, sBlk, sXoff, sM0W, sM0X, sT0, sT1, sT2, sGcL, sRemL, sWsz, sSR, sSW, sM0X2, sPf = 53, 54, 55, 56, 57, 59, 60, 61, 62, 63, 64, 65, 66, 67, 68
sPX, sPQ, sPo = 76, 80, 84
DK = 1
NSLOT = 6
XBASE = NSLOT * 16384
STORE_FLAGS = os.environ.get('K1_SF', ' sc1')
PF = int(os.environ.get('K1_PF', 1))
WST = int(os.environ.get('K1_WST', 6))
PFR = int(os.environ.get('K1_PFR', 2))
PFM = int(os.environ.get('K1_PFM', 1))
PFG = int(os.environ.get('K1_PFG', 0))
DIAG = os.environ.get('DIAG')
def stamp(): return dstamp(31, 30, 29) if DIAG else []
MF = 'v_mfma_f32_16x16x32_bf16'
D = 24

def acc(par, ft, tt): return ACC + 64 * par + 4 * (4 * ft + tt)
def xfr(tt, kb): return (tt * 16 + kb) * 4
def wfr(kb, ft): return WF + 4 * ((4 * kb + ft) % 8)

def w_read(idx):
    idx %= 128
    kb, ft, p = idx // 8, (idx >> 1) & 3, idx & 1
    u, kl = kb // 4, kb % 4
    r = wfr(kb, ft) + 2 * p
    return f'ds_read_b64_tr_b16 {vr(r,2)}, v{vWr+4*(u&1)+ft} offset:{(32*kl + 4*p)*128}'

def ring_adv(s): return [f's_add_u32 s{s}, s{s}, 16384', f's_cmp_eq_u32 s{s}, {XBASE}', f's_cselect_b32 s{s}, 0, s{s}']

def w_dma(u, pad=False):
    L = [f's_add_u32 m0, s{sM0W}, s{sSW} ; tag=W{u}']
    if pad: L.append('s_nop 0')
    for q in range(4):
        L.append(f'buffer_load_dwordx4 v{vWd+q}, {sr(sW,4)}, s{sWoff} offen offset:{q*1024} lds ; tag=W{u}')
    L.append(f's_add_u32 s{sWoff}, s{sWoff}, s{sLdw128}')
    return L + ring_adv(sSW)

def x_dma(c):
    slot = c % 3
    L = []
    for hh in range(2):
        L.append(f's_add_u32 m0, s{sM0X}, {slot*8192 + hh*4096} ; tag=X{c}' if slot < 2 else f's_add_u32 m0, s{sM0X2}, {hh*4096} ; tag=X{c}')
        L.append(f's_add_u32 s{sT0}, s{sXoff}, {c*128 + hh*32768}')
        for q in range(4):
            L.append(f'buffer_load_dwordx4 v{vXd+q}, {sr(sACT,4)}, s{sT0} offen offset:{q*1024} lds ; tag=X{c}')
    return L

def x_read(c, kbl, tt):
    if c % 3 == 2: return f'ds_read_b128 {ar(xfr(tt, 2*c+kbl),4)}, v{vXr2+kbl} offset:{tt*2048}'
    return f'ds_read_b128 {ar(xfr(tt, 2*c+kbl),4)}, v{vXr+kbl} offset:{(c%3)*8192 + tt*2048}'

def load_params():
    return [
        f's_add_u32 s{sGcL}, s{sGcL}, 1',
        f's_sub_u32 s{sRemL}, s{sRemL}, 1',
        f's_cmp_lt_i32 s{sRemL}, 1',
        f's_cselect_b32 s{sW+2}, 0, s{sWsz}',
        f's_and_b32 s{sT1}, s{sGcL}, 63',
        f's_lshl_b32 s{sT1}, s{sT1}, 7',
        f's_mul_i32 s{sWoff}, s{sWave}, s{sLdw}',
        f's_lshl_b32 s{sWoff}, s{sWoff}, 5',
        f's_add_u32 s{sWoff}, s{sWoff}, s{sT1}',
    ]

def comp_params():
    return [
        f's_lshr_b32 s{sT1}, s{sGc}, 1',
        f's_lshl_b32 s{sT1}, s{sT1}, 19',
        f's_and_b32 s{sT2}, s{sGc}, 1',
        f's_lshl_b32 s{sT2}, s{sT2}, 12',
        f's_add_u32 s{sT1}, s{sT1}, s{sT2}',
        f's_lshl_b32 s{sT2}, s{sBlk}, 13',
        f's_add_u32 s{sNOut0}, s{sT1}, s{sT2}',
        f's_add_u32 s{sNOut1}, s{sNOut0}, 8192',
        f's_sub_u32 s{sT1}, s{sGc}, 128',
        f's_lshl_b32 s{sT1}, s{sT1}, 18',
        f's_lshl_b32 s{sT2}, s{sBlk}, 12',
        f's_add_u32 s{sT1}, s{sT1}, s{sT2}',
        f's_add_u32 s{sT1}, s{sT1}, {BWS}',
        f's_add_u32 s{sT2}, s{sT1}, 4096',
        f's_cmp_ge_u32 s{sGc}, 128',
        f's_cselect_b32 s{sNOut0}, s{sT1}, s{sNOut0}',
        f's_cselect_b32 s{sNOut1}, s{sT2}, s{sNOut1}',
        f's_cmp_ge_u32 s{sGc}, 64',
        f's_cselect_b32 s{sType}, 1, 0',
        f's_sub_u32 s{sT1}, s{sGc}, 128',
        f's_cmp_lt_u32 s{sT1}, 16',
        f's_cselect_b32 s{sType}, 0, s{sType}',
    ]

def groups(L):
    out = []
    for x in L:
        if x.startswith('s_cselect'): out[-1].append(x)
        else: out.append([x])
    return out

def epi_part(par, ptype, n):
    V, S = [], []
    y = n >> 1
    for e in range(2):
        fi = 2 * (n & 1) + e
        pk = PK + 4 * ((2 * n + e) % 4)
        if ptype == 0: t0, t1 = acc(par, 2 * (fi >> 1), 2 * y + (fi & 1)), acc(par, 2 * (fi >> 1) + 1, 2 * y + (fi & 1))
        else: t0, t1 = acc(par, fi, 2 * y), acc(par, fi, 2 * y + 1)
        if ptype == 0:
            V += [f'v_mul_f32 v{t+j}, s{sScl}, v{t+j}' for t in (t0, t1) for j in range(4)]
        V += [f'v_cvt_pk_bf16_f32 v{pk}, v{t0}, v{t0+1}', f'v_cvt_pk_bf16_f32 v{pk+1}, v{t0+2}, v{t0+3}',
              f'v_cvt_pk_bf16_f32 v{pk+2}, v{t1}, v{t1+1}', f'v_cvt_pk_bf16_f32 v{pk+3}, v{t1+2}, v{t1+3}']
        S.append(f'buffer_store_dwordx4 {vr(pk,4)}, v{vSt}, {sr(sWS,4)}, s{sOut1 if y else sOut0} offen offset:{fi*1024}{STORE_FLAGS}')
    return V, S

def build_pass(ptype, par, first, prev_type):
    mf = []; pre = {}; val = {}
    def P(g, x): pre.setdefault(g, []).extend(x if isinstance(x, list) else [x])
    def V(g, x): val.setdefault(g, []).extend(x if isinstance(x, list) else [x])
    def putw(g, u, st=2):
        dm = w_dma(u)
        P(g, dm[0]); P(g + 2, dm[1]); P(g + 2 + st, dm[2]); P(g + 2 + 2 * st, dm[3]); P(g + 2 + 3 * st, dm[4]); P(g + 4 + 3 * st, dm[5]); P(g + 6 + 3 * st, dm[6]); P(g + 8 + 3 * st, dm[7:])
    def putx(g, c):
        xd = x_dma(c)
        P(g, xd[0:3]); P(g + 2, xd[3]); P(g + 4, xd[4]); P(g + 6, xd[5])
        P(g + 8, xd[6:9]); P(g + 10, xd[9]); P(g + 12, xd[10]); P(g + 14, xd[11])
    for G in range(256):
        kb, ft, tt = G // 16, (G >> 2) & 3, G & 3
        a = acc(par, ft, tt)
        w, x = vr(wfr(kb, ft), 4), ar(xfr(tt, kb), 4)
        c = '0' if kb == 0 else vr(a, 4)
        mf.append(f'{MF} {vr(a,4)}, ' + (f'{w}, {x}' if ptype == 0 else f'{x}, {w}') + f', {c}')
        if G % 8 == 0:
            need = f';NEED {vr(wfr(kb,ft),4)} {vr(wfr(kb,ft+1),4)}'
            if first and G % 16 == 0: need += ' ' + ' '.join(ar(xfr(t, kb), 4) for t in range(4))
            P(G - 1 if G else (0, 'before'), need)
        if (G + D) % 64 == 0:
            nu = ((G + D) // 64) % 4
            P(G, [f';VMNEED W{nu}', 's_barrier'])
        if G % 2 == 0: P(G, w_read((G + D) // 2))
    for u in range(4):
        g0 = 64 * u
        V(g0, [f'v_add_u32 v{vWr+4*((u+1)&1)+ft}, s{sSR}, v{vWl+ft}' for ft in range(2)])
        V(g0 + 1, [f'v_add_u32 v{vWr+4*((u+1)&1)+ft}, s{sSR}, v{vWl+ft}' for ft in range(2, 4)])
        ra = ring_adv(sSR); P(g0 + 3, ra[0]); P(g0 + 5, ra[1:])
        if not first:
            putw(g0 + 9, u, WST if u < 3 else min(WST, 4))
            Vl, Sl = epi_part(par ^ 1, prev_type, u)
            for k in range(len(Vl) // 2): V(g0 + 8 + (k if u == 3 else 2 * k), Vl[2*k:2*k+2])
            if u < 3: P(g0 + 45, Sl[0]); P(g0 + 57, Sl[1])
            else: P(g0 + 21, Sl[0]); P(g0 + 31, Sl[1])
    if not first and PFM == 1:
        P(70, [f's_cmp_eq_u32 s{sRem}, {PFR}', f's_cselect_b32 s{sPX+2}, 0x200000, 0']); P(72, [f's_cmp_eq_u32 s{sRem}, {PFR}', f's_cselect_b32 s{sPQ+2}, 0x400000, 0'])
        for k, x in enumerate(pf_loads()): P(75 + 4 * k, x)
    g = 229 if not first else 233
    P(g, f's_mov_b32 s{sOut0}, s{sNOut0}'); P(g + 2, f's_mov_b32 s{sOut1}, s{sNOut1}')
    pl = [[f's_add_u32 s{sGc}, s{sGc}, 1'], [f's_sub_u32 s{sRem}, s{sRem}, 1']] + groups(comp_params())
    for k, x in enumerate(pl): P(g + 3 + k * (252 - g) // len(pl), x)
    lp = groups(load_params())
    g = 222 if not first else 227
    for k, x in enumerate(lp): P(g + k * 6 // len(lp), x)
    if first:
        for c in range(1, 8):
            g0 = 32 * (c - 1) + 11
            P(g0, f';VMNEED X{c}')
            k = 0
            for kbl in range(2):
                for tt in range(4):
                    P(g0 + 2 * k, x_read(c, kbl, tt)); k += 1
        lastx = lambda c: f';NEED {ar(xfr(3,2*c+1),4)}'
        putw(1, 1); P(17, lastx(0)); putx(17, 3); putw(33, 2)
        P(49, lastx(1)); putx(49, 4)
        P(65, lastx(2)); putx(65, 5)
        putw(81, 3)
        P(97, lastx(3)); putx(97, 6)
        for k, x in enumerate(groups(load_params())): P(113 + 2 * k, x)
        P(129, lastx(4)); putx(129, 7)
        P(167, lastx(5))
        putw(169, 0); putw(185, 1); putw(199, 2); putw(213, 3)
        if PF:
            for k in range(16):
                P(PFG + 2 * k, f'buffer_load_dwordx4 {vr(112+4*(k%4),4)}, v{vSt}, {sr(sW,4)}, s{sPf} offen offset:{(k%4)*1024} ; nodep')
                if k % 4 == 3: P(PFG + 2 * k, f's_add_u32 s{sPf}, s{sPf}, 4096')
    return weave(mf, pre, val)

def pf_loads():
    L = [f'buffer_load_dwordx4 {vr(112+4*q,4)}, v{vSt}, {sr(sPX,4)}, s{sPo} offen offset:{q*1024} ; nodep' for q in range(2)]
    L += [f'buffer_load_dwordx4 {vr(112+4*q,4)}, v{vSt}, {sr(sPQ,4)}, s{sPo+1} offen offset:{q*1024} ; nodep' for q in range(4)]
    return L

def relayout_job():
    L = []; a = L.append
    vD, vR, vF = 32, 40, 56
    sU, sSrc, sDst, sA, sB, sS = 45, 46, 47, 48, 49, 88
    a('s_waitcnt lgkmcnt(0)')
    a(f's_mov_b32 s{sWS}, s26'); a(f's_mov_b32 s{sWS+1}, s27'); a(f's_mov_b32 s{sWS+2}, 0x10000000'); a(f's_mov_b32 s{sWS+3}, 0x20000')
    L += pf_setup() + [f's_mov_b32 s{sPX+2}, 0x200000', f's_mov_b32 s{sPQ+2}, 0x400000']
    a(f'v_lshlrev_b32 v{vSt}, 4, v0')
    for j in range(4): a(f'v_mov_b32 v{vF+j}, 0')
    a(f's_lshl_b32 s{sA}, s{sBlk}, 2'); a(f's_add_u32 s{sA}, s{sA}, s{sWave}'); a(f's_lshl_b32 s{sA}, s{sA}, 10'); a(f's_add_u32 s{sA}, s{sA}, {FLG}')
    a(f'buffer_store_dwordx4 {vr(vF,4)}, v{vSt}, {sr(sWS,4)}, s{sA} offen{STORE_FLAGS}')
    L += pf_loads()
    a('s_branch K1_END')
    return L
def pf_setup():
    return [f's_mov_b64 {sr(sPX,2)}, s[4:5]', f's_mov_b32 s{sPX+3}, 0x20000', f's_mov_b64 {sr(sPQ,2)}, s[8:9]', f's_mov_b32 s{sPQ+3}, 0x20000',
            f's_mov_b32 s{sPX+2}, 0', f's_mov_b32 s{sPQ+2}, 0',
            f's_lshl_b32 s{sPo}, s2, 2', f's_add_u32 s{sPo}, s{sPo}, s{sWave}', f's_lshl_b32 s{sPo+1}, s{sPo}, 12', f's_lshl_b32 s{sPo}, s{sPo}, 11']

def final_epi(par, ptype):
    L = ['s_nop 7']
    if PFM == 2: L = [f's_mov_b32 s{sPX+2}, 0x200000', f's_mov_b32 s{sPQ+2}, 0x400000'] + pf_loads() + ['s_nop 1']
    for n in range(4):
        Vl, Sl = epi_part(par, ptype, n)
        h = len(Vl) // 2
        L += Vl[:h] + [Sl[0]] + Vl[h:] + [Sl[1]]
    return L

def gen_k1(T=int(os.environ.get('K1_T', 4))):
    name = 'k1_kernel'
    L = []
    a = L.append
    a(f'.p2align 8\n.type {name},@function\n{name}:')
    a('s_cmp_ge_u32 s2, 256'); a('s_cbranch_scc1 K1_END')
    if os.environ.get('CPF', '1') == '1': L += code_prefetch('k1_kernel', 'CODE_END', 'K1', 98, 99, 90, 16)
    a('s_load_dwordx16 s[4:19], s[0:1], 0'); a('s_load_dwordx8 s[20:27], s[0:1], 64')
    a('v_lshrrev_b32 v1, 6, v0'); a('v_and_b32 v0, 63, v0')
    a(f'v_readfirstlane_b32 s{sWave}, v1')
    nj = 32 // T
    lt = T.bit_length() - 1
    a(f's_and_b32 s{sT0}, s2, 7'); a(f's_lshr_b32 s{sT1}, s2, 3')
    ng = 8 // T
    a(f's_and_b32 s{sT2}, s{sT0}, {ng-1}'); a(f's_lshl_b32 s{sT2}, s{sT2}, {lt}')
    a(f's_and_b32 s{sBlk}, s{sT1}, {T-1}'); a(f's_add_u32 s{sBlk}, s{sBlk}, s{sT2}')
    a(f's_lshr_b32 s{sT0}, s{sT0}, {ng.bit_length()-1}'); a(f's_mul_i32 s{sT0}, s{sT0}, {nj}')
    a(f's_lshr_b32 s{sT1}, s{sT1}, {lt}'); a(f's_add_u32 s{sT0}, s{sT0}, s{sT1}')
    a(f's_cmp_eq_u32 s{sT0}, 31'); a('s_cbranch_scc1 K1_RELAY')
    a(f's_lshl_b32 s{sXoff}, s{sBlk}, 18'); a(f's_lshl_b32 s{sT1}, s{sWave}, 16'); a(f's_add_u32 s{sXoff}, s{sXoff}, s{sT1}')
    a(f's_lshl_b32 s{sBlk}, s{sBlk}, 3'); a(f's_lshl_b32 s{sT1}, s{sWave}, 1'); a(f's_add_u32 s{sBlk}, s{sBlk}, s{sT1}')
    a(f's_mul_i32 s{sT1}, s{sT0}, 79'); a(f's_lshr_b32 s{sT1}, s{sT1}, 10')
    a(f's_mul_i32 s{sT2}, s{sT1}, 13'); a(f's_sub_u32 s{sT2}, s{sT0}, s{sT2}')
    a(f's_lshl_b32 s{sPf}, s{sT2}, 19'); a(f's_lshr_b32 s{sGc}, s{sXoff}, 2'); a(f's_add_u32 s{sPf}, s{sPf}, s{sGc}')
    a(f's_mov_b32 s{sRem}, 5')
    a(f's_cmp_eq_u32 s{sT2}, 12'); a(f's_cselect_b32 s{sRem}, 4, s{sRem}')
    a(f's_cmp_eq_u32 s{sT0}, 30'); a(f's_cselect_b32 s{sRem}, 4, s{sRem}')
    a(f's_mul_i32 s{sT2}, s{sT2}, 5')
    a(f's_lshl_b32 s{sGc}, s{sT1}, 6'); a(f's_add_u32 s{sGc}, s{sGc}, s{sT2}')
    a(f's_lshl_b32 s{sM0W}, s{sWave}, 12')
    a(f's_lshl_b32 s{sM0X}, s{sWave}, 14'); a(f's_add_u32 s{sM0X}, s{sM0X}, {XBASE}')
    a(f's_lshl_b32 s{sM0X2}, s{sWave}, 13'); a(f's_add_u32 s{sM0X2}, s{sM0X2}, 65536')
    a(f'v_lshlrev_b32 v{vSt}, 4, v0')
    t = [100, 101, 102, 103, 104]
    a(f'v_lshrrev_b32 v{t[0]}, 3, v0'); a(f'v_lshlrev_b32 v{t[1]}, 10, v{t[0]}')
    a(f'v_lshrrev_b32 v{t[2]}, 4, v0'); a(f'v_and_b32 v{t[3]}, 7, v0'); a(f'v_xor_b32 v{t[2]}, v{t[2]}, v{t[3]}')
    for q in range(4):
        a(f'v_xor_b32 v{t[4]}, {4*(q&1)}, v{t[2]}'); a(f'v_lshl_add_u32 v{t[4]}, v{t[4]}, 4, v{t[1]}'); a(f'v_add_u32 v{vXd+q}, {q*7168}, v{t[4]}')
    a(f'v_and_b32 v{t[0]}, 15, v0'); a(f'v_lshrrev_b32 v{t[1]}, 4, v0'); a(f'v_bfe_u32 v{t[2]}, v0, 1, 3')
    a(f'v_lshlrev_b32 v{t[0]}, 7, v{t[0]}')
    for kbl in range(2):
        a(f'v_add_u32 v{t[4]}, {4*kbl}, v{t[1]}'); a(f'v_xor_b32 v{t[4]}, v{t[4]}, v{t[2]}'); a(f'v_lshl_add_u32 v{t[4]}, v{t[4]}, 4, v{t[0]}')
        a(f'v_add_u32 v{vXr+kbl}, s{sM0X}, v{t[4]}'); a(f'v_add_u32 v{vXr2+kbl}, s{sM0X2}, v{t[4]}')
    a(f'v_bfe_u32 v{t[0]}, v0, 2, 2'); a(f'v_lshrrev_b32 v{t[1]}, 4, v0'); a(f'v_lshl_add_u32 v{t[1]}, v{t[1]}, 3, v{t[0]}'); a(f'v_lshlrev_b32 v{t[1]}, 7, v{t[1]}')
    a(f'v_and_b32 v{t[2]}, 3, v0'); a(f'v_lshl_add_u32 v{t[1]}, v{t[2]}, 3, v{t[1]}')
    a(f'v_bfe_u32 v{t[2]}, v0, 3, 2')
    for ft in range(4):
        a(f'v_xor_b32 v{t[3]}, {ft}, v{t[2]}'); a(f'v_lshl_add_u32 v{vWl+ft}, v{t[3]}, 5, v{t[1]}'); a(f'v_mov_b32 v{vWr+ft}, v{vWl+ft}')
    a('s_waitcnt lgkmcnt(0)')
    a(f's_mov_b32 s{sWS}, s26'); a(f's_mov_b32 s{sWS+1}, s27'); a(f's_mov_b32 s{sWS+2}, 0x10000000'); a(f's_mov_b32 s{sWS+3}, 0x20000')
    a(f's_mov_b32 s{sW+3}, 0x20000'); a(f's_mov_b32 s{sACT+2}, 0x200000'); a(f's_mov_b32 s{sACT+3}, 0x20000')
    L += pf_setup()
    if DIAG: a('s_mov_b32 s72, 0'); a('v_mov_b32 v31, 0'); a('v_mov_b32 v29, 0'); L += stamp()
    a(f's_cmp_eq_u32 s{sT1}, 0'); a(f's_cselect_b64 {sr(sW,2)}, s[10:11], s[12:13]'); a(f's_cselect_b32 s{sScl}, {f32(CA)}, 1.0')
    a(f's_cmp_eq_u32 s{sT1}, 2'); a(f's_cselect_b64 {sr(sW,2)}, s[18:19], {sr(sW,2)}'); a(f's_cselect_b64 {sr(sACT,2)}, s[16:17], s[6:7]')
    a(f's_movk_i32 s{sLdw}, 8192'); a(f's_cselect_b32 s{sLdw}, 3072, s{sLdw}')
    a(f's_mov_b32 s{sWsz}, 0x400000'); a(f's_cselect_b32 s{sWsz}, 0x180000, s{sWsz}')
    a(f's_lshl_b32 s{sLdw128}, s{sLdw}, 7')
    a(f'v_lshrrev_b32 v{t[0]}, 3, v0'); a(f'v_mul_lo_u32 v{t[0]}, v{t[0]}, s{sLdw}')
    a(f'v_bfe_u32 v{t[1]}, v0, 4, 1'); a(f'v_lshlrev_b32 v{t[1]}, 1, v{t[1]}'); a(f'v_and_b32 v{t[2]}, 7, v0'); a(f'v_xor_b32 v{t[1]}, v{t[1]}, v{t[2]}')
    a(f's_lshl_b32 s{sT1}, s{sLdw}, 3'); a(f's_sub_u32 s{sT1}, s{sT1}, 1024')
    for q in range(4):
        a(f'v_xor_b32 v{t[2]}, {4*(q&1)}, v{t[1]}'); a(f'v_lshl_add_u32 v{vWd+q}, v{t[2]}, 4, v{t[0]}')
        if q < 3: a(f'v_add_u32 v{t[0]}, s{sT1}, v{t[0]}')
    a(f's_sub_u32 s{sGcL}, s{sGc}, 1'); a(f's_add_u32 s{sRemL}, s{sRem}, 1')
    a(f's_mov_b32 s{sSW}, 0'); a(f's_mov_b32 s{sSR}, 16384')
    pro = load_params()
    pro += w_dma(0, True) + x_dma(0) + x_dma(1) + comp_params()
    if os.environ.get('K1_TOUCH'):
        pro += [f'v_add_u32 v100, s{sGc}, v0',
                'v_lshrrev_b32 v101, 1, v100', 'v_lshlrev_b32 v101, 19, v101', 'v_and_b32 v102, 1, v100', 'v_lshl_add_u32 v101, v102, 12, v101',
                f's_lshl_b32 s{sT1}, s{sBlk}, 13', f'v_add_u32 v101, s{sT1}, v101',
                'v_subrev_u32 v102, 128, v100', 'v_lshlrev_b32 v102, 18, v102', f's_lshl_b32 s{sT1}, s{sBlk}, 12', f's_add_u32 s{sT1}, s{sT1}, {BWS}', f'v_add_u32 v102, s{sT1}, v102',
                'v_cmp_lt_u32 vcc, 127, v100', 's_nop 1', 'v_cndmask_b32 v101, v101, v102, vcc',
                f'v_cmp_gt_u32 vcc, s{sRem}, v0', 's_nop 1', 's_mov_b64 exec, vcc',
                f'buffer_store_dword v100, v101, {sr(sWS,4)}, 0 offen{STORE_FLAGS}', 's_mov_b64 exec, -1']
    pro += [';VMNEED X0', 's_barrier']
    pro += [w_read(i) for i in range(4)] + [x_read(0, 0, tt) for tt in range(4)] + [w_read(i) for i in range(4, D // 2)]
    pro += [x_read(0, 1, tt) for tt in range(4)]
    pro += x_dma(2)
    pro = auto_waits([], pro)
    L += pro
    L += stamp()
    a(f's_cmp_eq_u32 s{sType}, 1'); a('s_cbranch_scc1 K1_F1')
    code = {}
    for t_ in range(2):
        code['F', t_] = auto_waits(pro, build_pass(t_, 0, True, None))
    combos = [(0, 0), (1, 1), (1, 0)]
    for t_, pt in combos:
        for par in range(2):
            raw = build_pass(t_, par, False, pt)
            c1 = auto_waits(pro + code['F', 0], raw)
            c2 = auto_waits(code['F', 0] + c1, raw)
            c3 = auto_waits(c1 + c2, raw)
            code['P', t_, pt, par] = merge_min([c1, c2, c3])
    def tail(t_, par):
        x = stamp() + [f's_cmp_eq_u32 s{sRem}, 0', f's_cbranch_scc1 K1_FIN{t_}{par}']
        if t_ == 1: return x + [f's_branch K1_P11{par^1}']
        return x + [f's_cmp_eq_u32 s{sType}, 1', f's_cbranch_scc1 K1_P10{par^1}', f's_branch K1_P00{par^1}']
    for t_ in range(2):
        a(f'.p2align 6\nK1_F{t_}:'); L += code['F', t_] + tail(t_, 0)
    for t_, pt in combos:
        for par in range(2):
            a(f'.p2align 6\nK1_P{t_}{pt}{par}:'); L += code['P', t_, pt, par] + tail(t_, par)
    for t_ in range(2):
        for par in range(2):
            a(f'K1_FIN{t_}{par}:'); L += final_epi(par, t_); a('s_branch K1_END2')
    a('K1_END2:')
    if DIAG:
        L += stamp(); a('s_waitcnt vmcnt(0)'); L += stamp()
        L += dstore(31, 30, 29, sWave, sWS, 200)
    a('K1_END:'); a('s_endpgm')
    a('K1_RELAY:'); L += relayout_job()
    check_trace(pro + code['F', 0] + tail(0, 0) + code['P', 0, 0, 1] + tail(0, 1) + code['P', 1, 0, 0] + tail(1, 0) + code['P', 1, 1, 1] + tail(1, 1) + final_epi(1, 1), 'k1a')
    check_trace(pro + code['F', 1] + tail(1, 0) + code['P', 1, 1, 1] + tail(1, 1) + final_epi(1, 1), 'k1b')
    return L, kdesc(name, 512, 256), f'; @launch kernel={name} grid=(256,1,1) block=(256,1,1) lds=163840'
```

```python
from lib import *
from layout import *
import os, struct, math
def f32(x): return '0x%08x' % struct.unpack('<I', struct.pack('<f', x))[0]
DIAG = os.environ.get('DIAG')
SF = os.environ.get('K2_SF', ' sc1')
THR = 2.0 ** float(os.environ.get('THR', 40.0))
NEGBIG = -1.0e30
D = 24
MF = 'v_mfma_f32_16x16x32_bf16'
vL16, vRd, vq, vBig, vd, vl, vt, vT = 1, 2, 4, 5, 6, 8, 12, 16
NM = 20
vDl = 36
vDG = 44
S0, P0, Q0, TMPV = 48, 112, 144, 208
O0, FR = 0, 128
sWS, sX, sWQ, sWO, sWB = 8, 12, 16, 60, 64
sW, sH, sI, sK, sV, sSR, sSW, sCnt, sKc, sMq, sRet, sT, sMk, sW2, sW4 = 20, 21, 22, 23, 24, 25, 26, 27, 28, 29, 30, 32, 40, 48, 49
sW2K, sW4K = 58, 59
sXa, sXb, sWo, sXs = 50, 51, 52, 53

def stamp(): return dstamp(vDG, vDG + 1, vDG + 2) if DIAG else []
def Sr(par, idx): return S0 + 32 * par + 4 * idx
def Pr(par, u): return P0 + 16 * par + 4 * u
def Or(qt, dt): return O0 + 32 * qt + 4 * dt
def Qr(qt, db): return Q0 + 16 * qt + 4 * db
def slot(g): return FR + 4 * ((g // 2) % 16)
def tq(t, idx): return (idx & 3) if t == 'c' else 2 + (idx & 1)
def tkt(t, idx): return (idx >> 2) if t == 'c' else (idx >> 1)
def tP(t, idx):
    if t == 'c': return idx & 3, idx >> 2
    kt = idx >> 1
    return 2 * (kt >> 1) + (idx & 1), kt & 1

def pv_frags(t):
    if t == 'c': return [(4 * dt, dt * 1024) for dt in range(8)]
    return [(4 * dt + 2 * kb, kb * 8192 + dt * 1024) for dt in range(8) for kb in range(2)]
def koff(kt, db): return (kt >> 1) * 8192 + (2 * db + (kt & 1)) * 1024
def qk_frags(t):
    if t == 'c': return [(32 + 16 * kt + 4 * db, 16384 + koff(kt, db)) for kt in range(2) for db in range(4)]
    return [(32 + 8 * kt + 2 * db, 16384 + koff(kt, db)) for kt in range(4) for db in range(4)]
def rd(g, off, par): return f'ds_read_b128 {ar(slot(g),4)}, v{vRd+par} offset:{off}'

def pv_mfmas(t, par):
    out = []
    for dt in range(8):
        for x in range(4):
            if t == 'c': qt, u, g = x, x, 4 * dt
            else: qt, u, g = 2 + (x & 1), x, 4 * dt + 2 * (x >> 1)
            o = Or(qt, dt)
            out.append(f'{MF} {ar(o,4)}, {ar(slot(g),4)}, {vr(Pr(par,u),4)}, {ar(o,4)}')
    return out
def qk_mfmas(t, par, czero=False, fr=None):
    out = []
    nkt, nq = (2, 4) if t == 'c' else (4, 2)
    for kt in range(nkt):
        for db in range(4):
            g = 32 + (16 * kt + 4 * db if t == 'c' else 8 * kt + 2 * db)
            f = ar(slot(g), 4) if fr is None else fr(kt, db)
            for x in range(nq):
                idx = nq * kt + x; qt = tq(t, idx); s = Sr(par, idx)
                c = vr(s, 4) if db else ('0' if czero else vr(NM + 4 * qt, 4))
                out.append(f'{MF} {vr(s,4)}, {f}, {vr(Qr(qt,db),4)}, {c}')
    return out

def mask_ops(par, t, k, dyn=None):
    L = []
    src = f's{dyn}' if dyn is not None else str(32 * k)
    L += [f'v_subrev_u32 v{vd}, {src}, v{vq}', f'v_add_u32 v{vd+1}, 16, v{vd}']
    tiles = [i for i in range(8) if (t == 's' or (i & 3) < 2)]
    for idx in tiles:
        s = Sr(par, idx); kt = tkt(t, idx); qq = idx & 1
        for j in range(4): L.append(f'v_cmp_gt_i32 {sr(sMk+2*j,2)}, {16*kt+j}, v{vd+qq}')
        for j in range(4): L.append(f'v_cndmask_b32 v{s+j}, v{s+j}, v{vBig}, {sr(sMk+2*j,2)}')
    return L

def exp_ops(par, t):
    L = []; seen = set()
    def tail(idx):
        s = Sr(par, idx); qt = tq(t, idx); u, h = tP(t, idx); a = vt + qt
        if qt not in seen:
            seen.add(qt); x = [f'v_add_f32 v{a}, v{s}, v{s+1}']
        else: x = [f'v_add_f32 v{a}, v{a}, v{s}', f'v_add_f32 v{a}, v{a}, v{s+1}']
        p = Pr(par, u) + 2 * h
        return x + [f'v_cvt_pk_bf16_f32 v{p}, v{s}, v{s+1}', f'v_add_f32 v{a}, v{a}, v{s+2}', f'v_add_f32 v{a}, v{a}, v{s+3}', f'v_cvt_pk_bf16_f32 v{p+1}, v{s+2}, v{s+3}']
    prev = None
    for idx in range(8):
        s = Sr(par, idx)
        e = [f'v_exp_f32 v{s+j}, v{s+j}' for j in range(4)]
        tl = tail(prev) if prev is not None else []
        L += [e[0]] + tl[:2] + [e[1]] + tl[2:4] + [e[2]] + tl[4:] + [e[3]]
        prev = idx
    L += ['s_nop 0'] + tail(prev)
    return L
def lupd(t): return [f'v_add_f32 v{vl+q}, v{vl+q}, v{vt+q}' for q in ((0, 1, 2, 3) if t == 'c' else (2, 3))]
def chk(t):
    if t == 'c': L = [f'v_max3_f32 v{vT}, v{vt}, v{vt+1}, v{vt+2}', f'v_max_f32 v{vT}, v{vT}, v{vt+3}']
    else: L = [f'v_max_f32 v{vT}, v{vt+2}, v{vt+3}']
    return L + [f'v_cmp_nge_f32 vcc, {f32(THR)}, v{vT}']

def dma_part(kind, t, tag):
    so = sV if kind == 'V' else sK
    w = (sW4 if t == 's' else sW2) if kind == 'V' else (sW4K if t == 's' else sW2K)
    n = 4 if t == 's' else 2
    items = [[f's_add_u32 m0, s{sSW}, s{w} ; tag={tag}']]
    for q in range(n):
        items.append([f'buffer_load_dwordx4 v{vL16}, {sr(sWS,4)}, s{so} offen offset:{q*1024} lds ; tag={tag}'])
    items.append([f's_add_u32 s{so}, s{so}, {n*4096}'])
    return items
def flat(L):
    o = []
    for x in L:
        if isinstance(x, list): o += flat(x)
        else: o.append(x)
    return o

STUBS = []
def body(par, pv, sm, qk, nxt_pv, vload, kload, mask, uid):
    psm = par ^ 1
    mf = []
    if pv: mf += pv_mfmas(pv, par)
    if qk: mf += qk_mfmas(qk, par)
    ng = len(mf)
    pre = {}
    def P(g, x): pre.setdefault(g, []).extend(x if isinstance(x, list) else [x])
    frs = (pv_frags(pv) if pv else []) + (qk_frags(qk) if qk else [])
    for g, off in frs:
        if g - D >= 0: P(g - D, rd(g, off, par))
    for g0 in range(0, ng, 8):
        need = [ar(slot(g), 4) for g, off in frs if g0 <= g < g0 + 8]
        P(g0 - 1 if g0 else (0, 'before'), ';NEED ' + ' '.join(need))
    if nxt_pv:
        gb = ng - D
        P(gb - 1, [f';VMNEED U{par^1}', 's_barrier'])
        for g, off in pv_frags(nxt_pv):
            if g < D: P(ng + g - D, rd(g, off, par ^ 1))
    items = []
    if vload: items += dma_part('V', vload, f'U{par}')
    if kload: items += dma_part('K', kload, f'U{par}')
    if nxt_pv: items += [[f's_add_u32 s{sSR}, s{sSR}, 32768'], [f's_and_b32 s{sSR}, s{sSR}, 0x1ffff']]
    if vload or kload: items += [[f's_add_u32 s{sSW}, s{sSW}, 32768'], [f's_and_b32 s{sSW}, s{sSW}, 0x1ffff']]
    if sm:
        items += [[f's_add_u32 s{sKc}, s{sKc}, {8192 if pv == "c" else 16384}'], [f's_mov_b32 s{sMq}, {32*mask if mask is not None else -4096}']]
    free = [g for g in range(1, ng) if g not in pre and not (g == ng - 1)]
    lim = (ng - D - 2) if nxt_pv else ng - 2
    gi = 0; lastd = -9
    for it in items:
        isd = it[0].startswith('buffer')
        while gi < len(free) and (isd and free[gi] - lastd < DSP): gi += 1
        g = free[gi]; gi += 1
        if isd:
            lastd = g
        P(g, it)
    Pq = []; Eq = []
    if nxt_pv: Pq.append(f'v_add_u32 v{vRd+(par^1)}, s{sSR}, v{vL16}')
    if pv: Pq += lupd(pv)
    if sm:
        if mask is not None: Pq += mask_ops(psm, sm, mask)
        for x in exp_ops(psm, sm):
            if x.startswith('v_exp'): Eq.append(x)
            elif x.startswith('v_'): Pq.append(x)
        Pq += chk(sm)
    cap = {}
    for g in range(ng):
        n = sum(2 if x.startswith(('buffer', 'ds_')) else 1 for x in pre.get(g, []))
        cap[g] = max(0, 2 - max(0, n - 1))
    last = ng - 2
    total = 2 * len(Eq) + len(Pq)
    def sched(extra):
        cp = dict(cap)
        for k in range(extra): cp[(k * (last + 1) // max(extra, 1)) % (last + 1)] += 1
        val = {}; pi = ei = 0
        eiss = {}
        ereg = [Ins(x).w for x in Eq]; allE = set().union(*ereg) if ereg else set()
        pend_mask = {}
        for k, x in enumerate(Pq):
            if x.startswith('v_cndmask'):
                for r in Ins(x).w: pend_mask[r] = k
        for g in range(last + 1):
            sl = cp[g]
            while sl > 0:
                if ei < len(Eq) and sl >= 2 and all(pend_mask.get(r, -1) < pi for r in ereg[ei]):
                    val.setdefault(g, []).append(Eq[ei])
                    for r in ereg[ei]: eiss[r] = g
                    ei += 1; sl -= 2; continue
                if pi < len(Pq):
                    x = Pq[pi]; ins = Ins(x)
                    ok = x.startswith('v_cndmask') or all(eiss.get(r, 999) < g for r in ins.r & allE)
                    if ok:
                        val.setdefault(g, []).append(x); pi += 1; sl -= 1; continue
                break
        return val, (len(Eq) - ei) + (len(Pq) - pi)
    extra = 0
    while True:
        val, left = sched(extra)
        if left == 0: break
        extra += 1
    if os.environ.get('VERB'): print(uid, 'valu', total, 'avail', sum(cap[g] for g in range(last + 1)), 'extra', extra)
    if sm:
        pre.setdefault(ng - 1, []).extend([f's_cbranch_vccnz K2_S_{uid}', f'K2_R_{uid}:'])
        STUBS.extend([f'K2_S_{uid}:', f's_call_b64 {sr(sRet,2)}, K2_RARE_{psm}{sm}{qk or "n"}', f's_branch K2_R_{uid}'])
        RARES.add((psm, sm, qk or 'n'))
    return weave(mf, pre, val)
RARES = set()
DSP = int(os.environ.get('K2_DSP', 3))

def xlane(op, r, tmp):
    return [f'v_mov_b32 v{tmp}, v{r}', 's_nop 1', f'v_permlane32_swap_b32 v{r}, v{tmp}', f'{op} v{r}, v{r}, v{tmp}',
            f'v_mov_b32 v{tmp}, v{r}', 's_nop 1', f'v_permlane16_swap_b32 v{r}, v{tmp}', f'{op} v{r}, v{r}, v{tmp}']
def deltas(par, t, clamp):
    L = []
    qs = (0, 1, 2, 3) if t == 'c' else (2, 3)
    for q in qs:
        regs = [Sr(par, i) + j for i in range(8) if tq(t, i) == q for j in range(4)]
        L.append(f'v_max_f32 v{vDl+q}, v{regs[0]}, v{regs[1]}')
        for k in range(2, len(regs), 2): L.append(f'v_max3_f32 v{vDl+q}, v{vDl+q}, v{regs[k]}, v{regs[k+1]}')
        L += xlane('v_max_f32', vDl + q, vT) + [f'v_ceil_f32 v{vDl+q}, v{vDl+q}']
        if clamp: L.append(f'v_max_f32 v{vDl+q}, 0, v{vDl+q}')
    return L
def sub_tiles(par, t): return [f'v_sub_f32 v{Sr(par,i)+j}, v{Sr(par,i)+j}, v{vDl+tq(t,i)}' for i in range(8) for j in range(4)]

def rare(par, t, tn):
    L = [f'K2_RARE_{par}{t}{tn}:', 's_nop 7', 's_nop 7']
    nkt = 2 if t == 'c' else 4
    R = []
    mf = qk_mfmas(t, par, fr=lambda kt, db: vr(TMPV + 16 * (kt & 1) + 4 * db, 4))
    per = len(mf) // nkt
    for k0 in range(0, nkt, 2):
        R.append(f's_add_u32 s{sT+4}, s{sKc}, {k0*4096}'); R.append(f's_add_u32 s{sT+5}, s{sT+4}, 4096')
        for kt in range(2):
            for db in range(4):
                o = (2 * db + kt) * 1024
                R.append(f'buffer_load_dwordx4 {vr(TMPV+16*kt+4*db,4)}, v{vL16}, {sr(sWS,4)}, s{sT+4+(o>>12)} offen offset:{o&4095}')
        R.append('s_waitcnt vmcnt(0)')
        R += mf[per*k0:per*(k0+2)] + ['s_nop 7']
    R += mask_ops(par, t, None, dyn=sMq) + deltas(par, t, True)
    if t == 's': R += [f'v_mov_b32 v{vDl}, 0', f'v_mov_b32 v{vDl+1}, 0']
    R += sub_tiles(par, t)
    if tn != 'n': R += sub_tiles(par ^ 1, tn)
    for q in range(4):
        for j in range(4): R.append(f'v_sub_f32 v{NM+4*q+j}, v{NM+4*q+j}, v{vDl+q}')
        R.append(f'v_exp_f32 v{vDl+4+q}, -v{vDl+q}')
    R += exp_ops(par, t)
    for q in range(4): R.append(f'v_mul_f32 v{vl+q}, v{vl+q}, v{vDl+4+q}')
    for q in ((0, 1, 2, 3) if t == 'c' else (2, 3)):
        for j0 in range(0, 32, 8):
            for j in range(8): R.append(f'v_accvgpr_read_b32 v{TMPV+j}, a{Or(q,0)+j0+j}')
            for j in range(8): R.append(f'v_mul_f32 v{TMPV+j}, v{TMPV+j}, v{vDl+4+q}')
            for j in range(8): R.append(f'v_accvgpr_write_b32 a{Or(q,0)+j0+j}, v{TMPV+j}')
    R += ['s_nop 1', f's_setpc_b64 {sr(sRet,2)}']
    check_trace(R, f'rare{par}{t}{tn}', bool(os.environ.get('VERB')))
    return L + R

K = 1024
XS = [[32*K, 48*K, 8*K, 24*K], [40*K, 56*K, 88*K, 96*K], [0, 16*K, 80*K, 112*K]]
WSL = [64*K, 144*K, 128*K]
vXd, vWd, vXr, vWr = 208, 212, 216, 222
QACC = 48
XF, WFq = 0, 64
def qacc(ft, tt): return QACC + 4 * (4 * ft + tt)
def xf(c, kbl, tt): return XF + 32 * (c & 1) + 16 * kbl + 4 * tt
def wf(c, kbl, ft): return WFq + 64 * (c & 1) + 32 * kbl + 4 * ft
def q_dma(c):
    sl = c % 3
    it = []
    for ab, so in enumerate((sXa, sXb)):
        it.append([f's_add_u32 m0, s{sXs+sl}, {ab*4096} ; tag=C{c}', f's_add_u32 s{sT}, s{so}, {c*128}'])
        for q in range(4): it.append([f'buffer_load_dwordx4 v{vXd+q}, {sr(sX,4)}, s{sT} offen offset:{q*1024} lds ; tag=C{c}'])
    it.append([f's_add_u32 m0, s{sW4}, {WSL[sl]} ; tag=C{c}', f's_add_u32 s{sT}, s{sWo}, {c*64*8192}'])
    for q in range(4): it.append([f'buffer_load_dwordx4 v{vWd+q}, {sr(sWQ,4)}, s{sT} offen offset:{q*1024} lds ; tag=C{c}'])
    return it
def q_reads(c):
    sl = c % 3
    L = []
    for kbl in range(2):
        for tt in range(4): L.append(f'ds_read_b128 {ar(xf(c,kbl,tt),4)}, v{vXr+2*sl+kbl} offset:{tt*2048}')
        for ft in range(8):
            for p in range(2):
                off = WSL[sl] - 128*K * (sl > 0) + (32 * kbl + 4 * p) * 256
                L.append(f'ds_read_b64_tr_b16 {ar(wf(c,kbl,ft)+2*p,2)}, v{vWr+ft+8*(sl>0)} offset:{off - (64*K if sl == 0 else 0)}')
    return L
def q_setup():
    t = [240, 241, 242, 243, 244]
    L = []
    a = L.append
    a(f's_lshl_b32 s{sXa}, s{sI}, 17'); a(f's_lshl_b32 s{sT}, s{sW}, 15'); a(f's_sub_u32 s{sXb}, {15*128*1024}, s{sXa}')
    a(f's_add_u32 s{sXa}, s{sXa}, s{sT}'); a(f's_add_u32 s{sXb}, s{sXb}, s{sT}')
    a(f's_lshl_b32 s{sWo}, s{sH}, 8'); a(f's_lshl_b32 s{sT}, s{sW}, 17'); a(f's_add_u32 s{sWo}, s{sWo}, s{sT}')
    for sl in range(3):
        a(f's_mov_b32 s{sXs+sl}, {XS[sl][0]}')
        for w in range(1, 4):
            a(f's_cmp_eq_u32 s{sW}, {w}'); a(f's_cselect_b32 s{sXs+sl}, {XS[sl][w]}, s{sXs+sl}')
    a(f'v_lshrrev_b32 v{t[0]}, 3, v0'); a(f'v_lshlrev_b32 v{t[1]}, 10, v{t[0]}')
    a(f'v_lshrrev_b32 v{t[2]}, 4, v0'); a(f'v_and_b32 v{t[3]}, 7, v0'); a(f'v_xor_b32 v{t[2]}, v{t[2]}, v{t[3]}')
    for q in range(4):
        a(f'v_xor_b32 v{t[4]}, {4*(q&1)}, v{t[2]}'); a(f'v_lshl_add_u32 v{t[4]}, v{t[4]}, 4, v{t[1]}'); a(f'v_add_u32 v{vXd+q}, {q*7168}, v{t[4]}')
    a(f'v_lshrrev_b32 v{t[0]}, 4, v0'); a(f'v_lshlrev_b32 v{t[1]}, 13, v{t[0]}'); a(f'v_lshlrev_b32 v{t[0]}, 1, v{t[0]}')
    a(f'v_and_b32 v{t[2]}, 15, v0'); a(f'v_xor_b32 v{t[2]}, v{t[2]}, v{t[0]}')
    for q in range(4):
        a(f'v_xor_b32 v{t[4]}, {8*(q>>1)}, v{t[2]}'); a(f'v_lshl_add_u32 v{t[4]}, v{t[4]}, 4, v{t[1]}'); a(f'v_add_u32 v{vWd+q}, {q*(4*8192-1024)}, v{t[4]}')
    return L
def q_setup2():
    t = [240, 241, 242, 243, 244]
    L = []; a = L.append
    a(f'v_and_b32 v{t[0]}, 15, v0'); a(f'v_lshrrev_b32 v{t[1]}, 4, v0'); a(f'v_bfe_u32 v{t[2]}, v0, 1, 3'); a(f'v_lshlrev_b32 v{t[0]}, 7, v{t[0]}')
    for kbl in range(2):
        a(f'v_add_u32 v{t[4]}, {4*kbl}, v{t[1]}'); a(f'v_xor_b32 v{t[4]}, v{t[4]}, v{t[2]}'); a(f'v_lshl_add_u32 v{t[4]}, v{t[4]}, 4, v{t[0]}')
        for sl in range(3): a(f'v_add_u32 v{vXr+2*sl+kbl}, s{sXs+sl}, v{t[4]}')
    a(f'v_bfe_u32 v{t[0]}, v0, 2, 2'); a(f'v_lshl_add_u32 v{t[1]}, v{t[1]}, 3, v{t[0]}'); a(f'v_lshlrev_b32 v{t[1]}, 8, v{t[1]}')
    a(f'v_and_b32 v{t[2]}, 3, v0'); a(f'v_lshl_add_u32 v{t[1]}, v{t[2]}, 3, v{t[1]}'); a(f'v_bfe_u32 v{t[2]}, v0, 2, 3')
    for ft in range(8):
        a(f'v_xor_b32 v{t[3]}, {ft}, v{t[2]}'); a(f'v_lshl_add_u32 v{t[3]}, v{t[3]}, 5, v{t[1]}')
        a(f'v_add_u32 v{vWr+ft}, {64*K}, v{t[3]}'); a(f'v_add_u32 v{vWr+8+ft}, {128*K}, v{t[3]}')
    return L

def a_loads(which):
    if which == 0:
        return [[f's_mov_b32 s{sSW}, 65536']] + dma_part('K', 'c', 'K0') + [[f's_mov_b32 s{sSW}, 98304']] + dma_part('K', 'c', 'K0') + \
               [[f's_mov_b32 s{sSW}, 0']] + dma_part('V', 'c', 'U0') + dma_part('K', 'c', 'U0')
    return [[f's_mov_b32 s{sSW}, 32768']] + dma_part('V', 'c', 'U1') + dma_part('K', 'c', 'U1') + [[f's_mov_b32 s{sSW}, 65536'], [f's_mov_b32 s{sSR}, 32768']]

def wo_dma_a():
    t = [240, 241, 242, 243]
    it = [[f'v_lshrrev_b32 v{t[0]}, 5, v0', f'v_bfe_u32 v{t[1]}, v0, 1, 4', f'v_xor_b32 v{t[1]}, v{t[1]}, v{t[0]}', f'v_and_b32 v{t[2]}, 1, v0', f'v_lshlrev_b32 v{t[2]}, 4, v{t[2]}',
           f'v_lshl_add_u32 v{t[2]}, v{t[0]}, 10, v{t[2]}'],
          [f's_lshr_b32 s{sT+4}, s2, 1', f's_lshl_b32 s{sT+4}, s{sT+4}, 15', f's_and_b32 s{sT+5}, s2, 1', f's_lshl_b32 s{sT+5}, s{sT+5}, 9'],
          [f's_add_u32 s{sT+4}, s{sT+4}, s{sT+5}', f's_lshl_b32 s{sT+5}, s{sW}, 13', f's_add_u32 s{sT+4}, s{sT+4}, s{sT+5}']]
    for q in range(4):
        it.append([f'v_xor_b32 v{t[3]}, {2*q}, v{t[1]}', f'v_lshl_add_u32 v{t[3]}, v{t[3]}, 5, v{t[2]}', f's_add_u32 m0, s{sW4}, {128*K} ; tag=WO', f's_add_u32 s{sT+5}, s{sT+4}, {q*1024}',
                   f'buffer_load_dwordx4 v{t[3]}, {sr(sWO,4)}, s{sT+5} offen offset:{q*1024} lds ; tag=WO'])
    return it
def wo_dma_b():
    t = [240, 241]
    return [f'v_lshrrev_b32 v{t[0]}, 2, v0', f'v_lshlrev_b32 v{t[0]}, 10, v{t[0]}', f'v_and_b32 v{t[1]}, 3, v0', f'v_lshl_add_u32 v{t[0]}, v{t[1]}, 4, v{t[0]}',
            f's_lshr_b32 s{sT+4}, s2, 4', f's_lshl_b32 s{sT+4}, s{sT+4}, 15', f's_and_b32 s{sT+5}, s2, 15', f's_lshl_b32 s{sT+5}, s{sT+5}, 6', f's_add_u32 s{sT+4}, s{sT+4}, s{sT+5}',
            f's_and_b32 s{sT+5}, s{sW}, 1', f's_lshl_b32 s{sT+6}, s{sT+5}, 14', f's_add_u32 s{sT+4}, s{sT+4}, s{sT+6}', f's_lshl_b32 s{sT+5}, s{sT+5}, 10',
            f's_add_u32 m0, s{sT+5}, {144*K} ; tag=WO', 's_nop 0', f'buffer_load_dwordx4 v{t[0]}, {sr(sWB,4)}, s{sT+4} offen lds ; tag=WO']
def wo_fin():
    R = TMPV; a0, a1, a2 = TMPV + 20, TMPV + 21, TMPV + 22; t0, t1 = sT + 4, sT + 5
    L = [f'v_lshrrev_b32 v{a0}, 2, v0', f'v_and_b32 v{a1}, 3, v0', f'v_lshlrev_b32 v{a1}, 3, v{a1}', f'v_lshl_add_u32 v{a2}, v{a0}, 6, v{a1}', f'v_lshl_add_u32 v{a1}, v{a0}, 9, v{a1}',
         f'v_add_u32 v{a1}, {128*K}, v{a1}', f'v_and_b32 v{a0}, 7, v{a0}', f's_lshl_b32 s{t0}, s{sW}, 2', f'v_xor_b32 v{a0}, s{t0}, v{a0}',
         f's_and_b32 s{t0}, s{sW}, 1', f's_lshl_b32 s{t0}, s{t0}, 5', f's_add_u32 s{t0}, s{t0}, {144*K}', f'v_add_u32 v{a2}, s{t0}, v{a2}']
    for x in range(4):
        L += [f'v_xor_b32 v{a0+4+x}, {x}, v{a0}', f'v_lshl_add_u32 v{a0+4+x}, v{a0+4+x}, 5, v{a1}']
        for p in range(2): L.append(f'ds_read_b64_tr_b16 {vr(R+4*x+2*p,2)}, v{a0+4+x} offset:{p*8192}')
    for p in range(2): L.append(f'ds_read_b64_tr_b16 {vr(R+16+2*p,2)}, v{a2} offset:{p*1024}')
    L += [f's_and_b32 s{t0}, s2, 1', f's_lshl_b32 s{t0}, s{t0}, 2', f's_add_u32 s{t0}, s{t0}, s{sW}', f's_mul_i32 s{t0}, s{t0}, {4*WOA_S}', f's_lshr_b32 s{t1}, s2, 1', f's_lshl_b32 s{t1}, s{t1}, 10',
          f's_add_u32 s{t0}, s{t0}, s{t1}', f's_add_u32 s{t0}, s{t0}, {WOA}']
    for x in range(4): L += [f'buffer_store_dwordx4 {vr(R+4*x,4)}, v{vL16}, {sr(sWS,4)}, s{t0} offen{SF}', f's_add_u32 s{t0}, s{t0}, {WOA_S}']
    L += [f's_and_b32 s{t0}, s2, 15', f's_lshl_b32 s{t0}, s{t0}, 1', f's_and_b32 s{t1}, s{sW}, 1', f's_add_u32 s{t0}, s{t0}, s{t1}', f's_mul_i32 s{t0}, s{t0}, {WOB_S}',
          f's_lshr_b32 s{t1}, s2, 4', f's_lshl_b32 s{t1}, s{t1}, 10', f's_add_u32 s{t0}, s{t0}, s{t1}', f's_add_u32 s{t0}, s{t0}, {WOB}',
          f'buffer_store_dwordx4 {vr(R+16,4)}, v{vL16}, {sr(sWS,4)}, s{t0} offen{SF}', 's_nop 0']
    return L

def qproj():
    L = q_setup() + flat(q_dma(0)) + flat(q_dma(1)) + q_setup2()
    L += [f's_lshl_b32 s{sT+4}, s{sH}, 19', f's_add_u32 s{sK}, s{sT+4}, {KWS}', f's_add_u32 s{sV}, s{sT+4}, {VWS}', f's_mov_b32 s{sKc}, s{sK}', f's_add_u32 s{sK}, s{sK}, s{sW2}', f's_add_u32 s{sV}, s{sV}, s{sW2}']
    L += [';VMNEED C0', 's_barrier'] + q_reads(0)
    L += stamp()
    for c in range(8):
        mf = []; pre = {}
        def P(g, x): pre.setdefault(g, []).extend(x if isinstance(x, list) else [x])
        for kbl in range(2):
            for ft in range(8):
                for tt in range(4):
                    a = qacc(ft, tt)
                    cc = '0' if (c == 0 and kbl == 0) else vr(a, 4)
                    mf.append(f'{MF} {vr(a,4)}, {ar(wf(c,kbl,ft),4)}, {ar(xf(c,kbl,tt),4)}, {cc}')
        if c == 0:
            for g0 in range(0, 64, 8):
                kbl = g0 // 32
                P(g0 - 1 if g0 else (0, 'before'), f';NEED {ar(wf(0,kbl,(g0%32)//4),8)} {ar(xf(0,kbl,0),16)}')
            g = 0
            for it in q_dma(2): P(g, it); g += 2
            gb = 27
        else:
            P((0, 'before'), ';LGKM0')
            gb = 1
        if c < 7:
            P(gb, [f';VMNEED C{c+1}', 's_barrier'])
            rds = q_reads(c + 1)
            n = len(rds); g0 = gb + 1
            for k, x in enumerate(rds): P(g0 + k * (58 - g0) // n, x)
        else:
            P(60, [';VMNEED U0', 's_barrier', f'v_add_u32 v{vRd}, 65536, v{vL16}', f'v_add_u32 v{vRd+1}, 98304, v{vL16}'])
        if 1 <= c <= 5: ex = q_dma(c + 2)
        elif c == 6: ex = a_loads(0)
        elif c == 7: ex = a_loads(1) + wo_dma_a()
        else: ex = []
        for k, it in enumerate(ex): P(3 + k * 56 // len(ex), it)
        L += weave(mf, pre, {})
    return L

def a_prologue():
    L = []
    fr = qk_frags('c')
    L += [rd(g, off, 0) for g, off in fr] + [rd(g + 2, off, 1) for g, off in fr] + wo_dma_b()
    order = [3, 2, 1, 0]
    cv = []
    for db in order:
        for tt in range(4):
            t0, t1 = qacc(2 * db, tt), qacc(2 * db + 1, tt)
            dst = TMPV + 16 + 4 * tt if db == 3 else Qr(tt, db)
            cv += [f'v_cvt_pk_bf16_f32 v{dst}, v{t0}, v{t0+1}', f'v_cvt_pk_bf16_f32 v{dst+1}, v{t0+2}, v{t0+3}', f'v_cvt_pk_bf16_f32 v{dst+2}, v{t1}, v{t1+1}', f'v_cvt_pk_bf16_f32 v{dst+3}, v{t1+2}, v{t1+3}']
    for tt in range(4):
        for j in range(4): cv.append(f'v_mov_b32 v{Qr(tt,3)+j}, v{TMPV+16+4*tt+j}')
    z = [f'v_mov_b32 v{TMPV+j}, 0' for j in range(4)]
    L += z + ['s_nop 3'] + cv
    zm = [f'v_mfma_f32_32x32x16_bf16 {ar(16*k,16)}, {vr(TMPV,4)}, {vr(TMPV,4)}, 0' for k in range(8)]
    L += ['s_nop 0'] + qk_mfmas('c', 0, czero=True) + zm
    L += [f's_cmp_eq_u32 s{sI}, 0', f's_cselect_b32 s{sMq}, 0, -4096']
    L += mask_ops(0, 'c', None, dyn=sMq) + deltas(0, 'c', False)
    for q in range(4):
        for j in range(4): L.append(f'v_sub_f32 v{NM+4*q+j}, 0, v{vDl+q}')
    V = [f'v_mov_b32 v{vl+q}, 0' for q in range(4)] + sub_tiles(0, 'c') + exp_ops(0, 'c')
    mf2 = qk_mfmas('c', 1, fr=lambda kt, db: ar(slot(32 + 16 * kt + 4 * db + 2), 4))
    L += [f'v_mov_b32 v{vRd}, v{vL16}', ';LGKM0', 's_barrier']
    rds = [rd(g, off, 0) for g, off in pv_frags('c') if g < D]
    n = len(mf2)
    for k, m in enumerate(mf2):
        L.append(m)
        if k >= n - 2 * len(rds) and (n - k) % 2 == 0: L.append(rds[len(rds) - (n - k) // 2])
        L += V[len(V)*k//n:len(V)*(k+1)//n]
    return L

def fin_rows(which):
    t0, t1 = sT + 4, sT + 5
    q0 = 0 if which == 'a' else 2
    L = [f's_lshl_b32 s{t0}, s{sH}, 12', f's_add_u32 s{t0}, s{t0}, {CTX}', f's_mul_i32 s{t1}, s{sW}, {2*CTX_S}', f's_add_u32 s{t0}, s{t0}, s{t1}', f's_mul_i32 s{t1}, s{sI}, {8*CTX_S}']
    L += [f's_add_u32 s{t0}, s{t0}, s{t1}'] if which == 'a' else [f's_sub_u32 s{t0}, s{t0}, s{t1}', f's_add_u32 s{t0}, s{t0}, {120*CTX_S}']
    for q in (q0, q0 + 1):
        L += xlane('v_add_f32', vl + q, vT) + [f'v_rcp_f32 v{vl+q}, v{vl+q}']
    for q in (q0, q0 + 1):
        if q & 1: L.append(f's_add_u32 s{t0}, s{t0}, {CTX_S}')
        for h in range(2):
            r = TMPV + 16 * h; p = TMPV + 32 + 8 * h
            for j in range(16): L.append(f'v_accvgpr_read_b32 v{r+j}, a{Or(q,4*h)+j}')
            for j in range(16): L.append(f'v_mul_f32 v{r+j}, v{r+j}, v{vl+q}')
            for j in range(8): L.append(f'v_cvt_pk_bf16_f32 v{p+j}, v{r+2*j}, v{r+2*j+1}')
            for x in range(2): L.append(f'buffer_store_dwordx4 {vr(p+4*x,4)}, v{vL16}, {sr(sWS,4)}, s{t0} offen offset:{(2*h+x)*1024}{SF}')
    return L

def gen_k2():
    name = 'k2_kernel'
    L = []; a = L.append
    a(f'.p2align 8\n.type {name},@function\n{name}:')
    a('s_cmp_ge_u32 s2, 256'); a('s_cbranch_scc1 K2_END')
    if os.environ.get('CPF', '1') == '1': L += code_prefetch('k2_kernel', 'k3_kernel', 'K2', 246, 247, 90, 8)
    a('s_load_dwordx2 s[4:5], s[0:1], 88'); a('s_load_dwordx2 s[6:7], s[0:1], 0'); a('s_load_dwordx2 s[56:57], s[0:1], 16'); a('s_load_dwordx2 s[68:69], s[0:1], 40'); a('s_load_dwordx2 s[76:77], s[0:1], 64')
    a('v_lshrrev_b32 v1, 6, v0'); a('v_and_b32 v0, 63, v0'); a(f'v_readfirstlane_b32 s{sW}, v1')
    a(f'v_lshlrev_b32 v{vL16}, 4, v0')
    a(f's_and_b32 s{sH}, s2, 31'); a(f's_lshr_b32 s{sI}, s2, 5')
    a(f's_lshl_b32 s{sW2}, s{sW}, 11'); a(f's_lshl_b32 s{sW4}, s{sW}, 12'); a(f's_add_u32 s{sW2K}, s{sW2}, 16384'); a(f's_add_u32 s{sW4K}, s{sW4}, 16384')
    a(f'v_mov_b32 v{vBig}, {f32(NEGBIG)}')
    a(f'v_and_b32 v{vq}, 15, v0'); a(f'v_lshrrev_b32 v{vT}, 4, v0'); a(f'v_lshlrev_b32 v{vT}, 2, v{vT}'); a(f'v_sub_u32 v{vq}, v{vq}, v{vT}')
    a(f's_lshl_b32 s{sT}, s{sW}, 5'); a(f'v_add_u32 v{vq}, s{sT}, v{vq}')
    a('s_waitcnt lgkmcnt(0)')
    for srd, p, n in ((sWS, 4, 0x10000000), (sX, 6, 0x200000), (sWQ, 56, 0x400000), (sWO, 68, 0x400000), (sWB, 76, 0x80000)):
        a(f's_mov_b32 s{srd}, s{p}'); a(f's_mov_b32 s{srd+1}, s{p+1}'); a(f's_mov_b32 s{srd+2}, {hex(n)}'); a(f's_mov_b32 s{srd+3}, 0x20000')
    if DIAG: a('s_mov_b32 s72, 0'); a(f'v_mov_b32 v{vDG}, 0'); a(f'v_mov_b32 v{vDG+2}, 0'); L += stamp()
    pre = auto_waits([], qproj() + stamp() + a_prologue() + stamp())
    L += pre
    def two(uid, b0, b1): return body(0, *b0, uid + 'a') + body(1, *b1, uid + 'b')
    raw = {
     'CC': two('CC', ('c','c','c','c','c','c',None), ('c','c','c','c','c','c',None)),
     'X1': two('X1', ('c','c','c','c','c','c',None), ('c','c','c','c','c','c',0)),
     'X2': two('X2', ('c','c','c','c','c','s',1), ('c','c','c','c','c','s',2)),
     'X3': two('X3', ('c','c','s','c','s','s',3), ('c','s','s','s','s','s',None)) + wo_fin() + fin_rows('a'),
     'X3b': two('X3b', ('c','c','s','c','s',None,3), ('c','s','s','s','s',None,0)) + wo_fin() + fin_rows('a'),
     'SS': two('SS', ('s','s','s','s','s','s',None), ('s','s','s','s','s','s',None)),
     'X4': two('X4', ('s','s','s','s','s',None,None), ('s','s','s','s','s',None,0)),
     'TL': two('TL', ('s','s',None,'s',None,None,2), ('s',None,None,None,None,None,None)),
    }
    preds = {'CC': ['pre', 'CC'], 'X1': ['CC'], 'X2': ['X1', 'pre'], 'X3': ['X2'], 'X3b': ['X2'], 'SS': ['X3', 'SS'], 'X4': ['SS'], 'TL': ['X4', 'X3b']}
    fin = {'pre': pre}
    for it in range(3):
        for k in raw:
            fin[k] = merge_min([auto_waits(fin[p], raw[k]) for p in preds[k] if p in fin])
    a(f's_cmp_eq_u32 s{sI}, 0'); a('s_cbranch_scc1 K2_X2')
    a(f's_lshl_b32 s{sCnt}, s{sI}, 1'); a(f's_sub_u32 s{sCnt}, s{sCnt}, 1')
    a('.p2align 6\nK2_CC:'); L += fin['CC'] + [f's_sub_u32 s{sCnt}, s{sCnt}, 1', f's_cmp_lg_u32 s{sCnt}, 0', 's_cbranch_scc1 K2_CC']
    L += stamp()
    L += fin['X1']
    a('K2_X2:'); a(f's_add_u32 s{sK}, s{sK}, s{sW2}'); L += fin['X2']
    a(f's_add_u32 s{sV}, s{sV}, s{sW2}')
    a(f's_cmp_eq_u32 s{sI}, 7'); a('s_cbranch_scc1 K2_X3b')
    L += fin['X3']
    L += stamp()
    a(f's_lshl_b32 s{sCnt}, s{sI}, 1'); a(f's_sub_u32 s{sCnt}, 13, s{sCnt}')
    a('.p2align 6\nK2_SS:'); L += fin['SS'] + [f's_sub_u32 s{sCnt}, s{sCnt}, 1', f's_cmp_lg_u32 s{sCnt}, 0', 's_cbranch_scc1 K2_SS']
    L += stamp()
    L += fin['X4']
    a('K2_TL:'); L += fin['TL']
    L += stamp()
    epi = ['s_nop 7'] + fin_rows('b')
    L += epi
    if DIAG:
        L += stamp(); a('s_waitcnt vmcnt(0)'); L += stamp()
        L += dstore(vDG, vDG + 1, vDG + 2, sW, sWS, 201)
    a('K2_END:'); a('s_endpgm')
    a('K2_X3b:'); L += fin['X3b']; a('s_branch K2_TL')
    L += STUBS
    for r in sorted(RARES): L += rare(*r)
    f = fin
    check_trace(pre + ['s_nop 0'] * 2 + f['X2'] + f['X3'] + f['SS'] + f['SS'] + f['X4'] + f['TL'] + epi, 'k2 i=0')
    check_trace(pre + ['s_nop 0'] * 4 + f['CC'] + f['CC'] + f['X1'] + f['X2'] + f['X3b'] + f['TL'] + epi, 'k2 i=7')
    return L, kdesc(name, 512, 256), f'; @launch kernel={name} grid=(256,1,1) block=(256,1,1) lds=163840'
```

```python
from lib import *
from layout import *
import os, struct, math
def f32(x): return '0x%08x' % struct.unpack('<I', struct.pack('<f', x))[0]
DIAG = os.environ.get('DIAG')
MF = 'v_mfma_f32_16x16x32_bf16'
MF16 = 'v_mfma_f32_16x16x16_bf16'
CB = math.log2(math.e) * 0.25
NEGBIG = -1.0e30
FLGA = FLG + 4096
OSF = os.environ.get('K3_SF', '')
sWS, sOUT, sW, sT, sMk = 8, 12, 16, 20, 40
vL16 = 1
STUBS = []
def flat(L):
    o = []
    for x in L:
        if isinstance(x, list): o += flat(x)
        else: o.append(x)
    return o
uidc = [0]
def poll(voff, soff, nlanes, tmp):
    uidc[0] += 1; u = uidc[0]
    return [f's_mov_b32 s{sT+8}, 0x40000', f's_mov_b64 exec, {hex((1 << nlanes) - 1)}', f'K3_PL{u}:',
            f'buffer_load_dword v{tmp}, v{voff}, {sr(sWS,4)}, s{soff} offen sc1', 's_waitcnt vmcnt(0)',
            f'v_cmp_eq_u32 vcc, 0, v{tmp}', f's_cbranch_vccz K3_PD{u}', 's_sleep 1', f's_sub_u32 s{sT+8}, s{sT+8}, 1', f's_cmp_lg_u32 s{sT+8}, 0', f's_cbranch_scc1 K3_PL{u}',
            f'K3_PD{u}:', 's_mov_b64 exec, -1']

def role_b():
    vG = (101, 102, 103)
    stamp = lambda: dstamp(*vG) if DIAG else []
    S, CUP, CLO, ONE, BO, BL, PKD = 8, 80, 84, 88, 92, 96, 4
    vmx = [2, 100]
    vBig = 'v100' if False else None
    BK, BV, BQ = 0, 72, 144
    sP, sB0, sC, sBig = 17, 18, 19, 30
    L = []; a = L.append
    a(f's_and_b32 s{sP}, s2, 15'); a(f's_lshr_b32 s{sB0}, s2, 4'); a(f's_lshl_b32 s{sB0}, s{sB0}, 2'); a(f's_add_u32 s{sB0}, s{sB0}, s{sW}')
    t0, t1, t2 = sT, sT + 1, sT + 2
    a(f's_lshr_b32 s{t0}, s{sP}, 1'); a(f's_lshl_b32 s{t0}, s{t0}, 18'); a(f's_and_b32 s{t1}, s{sP}, 1'); a(f's_lshl_b32 s{t1}, s{t1}, 11')
    a(f's_add_u32 s{t0}, s{t0}, s{t1}'); a(f's_add_u32 s{t0}, s{t0}, {BWS}')
    a(f's_lshl_b32 s{t1}, s{sB0}, 12'); a(f's_add_u32 s{t1}, s{t1}, s{t0}')
    for u in range(2): a(f'buffer_load_dwordx4 {ar(BQ+4*u,4)}, v{vL16}, {sr(sWS,4)}, s{t1} offen offset:{u*1024}')
    blk = []
    for bb in range(9):
        r = sT + 10 + bb
        L += [f's_sub_i32 s{r}, s{sB0}, {8-bb}', f's_max_i32 s{r}, s{r}, 0', f's_lshl_b32 s{r}, s{r}, 12', f's_add_u32 s{r}, s{r}, s{t0}', f's_add_u32 s{r}, s{r}, {8*256*1024}']
        for kt in range(2): a(f'buffer_load_dwordx4 {ar(BK+8*bb+4*kt,4)}, v{vL16}, {sr(sWS,4)}, s{r} offen offset:{kt*1024}')
    for bb in range(9):
        r = sT + 10 + bb
        a(f's_add_u32 s{r}, s{r}, {8*256*1024}')
        for e in range(2): a(f'buffer_load_dwordx4 {ar(BV+8*bb+4*e,4)}, v{vL16}, {sr(sWS,4)}, s{r} offen offset:{e*1024}')
    a('v_and_b32 v2, 15, v0'); a('v_lshrrev_b32 v3, 4, v0'); a('v_lshlrev_b32 v3, 2, v3'); a('v_sub_u32 v2, v2, v3')
    a(f'v_mov_b32 v3, {f32(NEGBIG)}'); a('v_mov_b32 v4, 0'); a(f's_mov_b32 s{sBig}, {f32(NEGBIG)}'); a(f's_mov_b32 s{sC}, {f32(CB)}')
    for j in range(4): a(f'v_cmp_gt_i32 {sr(sMk+2*j,2)}, {j}, v2')
    for j in range(4):
        a(f'v_cndmask_b32 v{CLO+j}, v4, v3, {sr(sMk+2*j,2)}'); a(f'v_cndmask_b32 v{CUP+j}, v3, v4, {sr(sMk+2*j,2)}'); a(f'v_mov_b32 v{ONE+j}, 0x3f803f80')
    L += stamp()
    units = [(0, 0), (0, 1), (1, 0), (1, 1)]
    def qk(n, rel):
        u, e = units[n]
        s = S + 4 * rel
        c = vr(CUP, 4) if rel == u else (vr(CLO, 4) if rel == u + 16 else '0')
        m = f'{MF16} {vr(s,4)}, {ar(BK+4*rel+2*e,2)}, {ar(BQ+4*u+2*e,2)}, {c}'
        bb = rel // 2
        if bb < 8:
            STUBS.extend([f'K3_BI{n}_{rel}:'] + [f'v_mov_b32 v{s+j}, s{sBig}' for j in range(4)] + [f's_branch K3_BR{n}_{rel}'])
            return [f's_cmp_lt_u32 s{sB0}, {8-bb}', f's_cbranch_scc1 K3_BI{n}_{rel}', m, f'K3_BR{n}_{rel}:']
        return [m]
    def mx(n, rel, first):
        s = S + 4 * rel; m = vmx[n % 2]
        if first: return [f'v_max3_f32 v{m}, v{s}, v{s+1}, v{s+2}', f'v_max_f32 v{m}, v{m}, v{s+3}']
        return [f'v_max3_f32 v{m}, v{m}, v{s}, v{s+1}', f'v_max3_f32 v{m}, v{m}, v{s+2}, v{s+3}']
    def mxfin(n):
        m = vmx[n % 2]
        return ['v_mov_b32 v3, v%d' % m, 's_nop 1', f'v_permlane32_swap_b32 v{m}, v3', f'v_max_f32 v{m}, v{m}, v3',
                'v_mov_b32 v3, v%d' % m, 's_nop 1', f'v_permlane16_swap_b32 v{m}, v3', f'v_max_f32 v{m}, v{m}, v3', f'v_mul_f32 v{m}, s{sC}, v{m}']
    tiles = lambda n: list(range(units[n][0], units[n][0] + 17))
    T = tiles(0)
    for k, rel in enumerate(T):
        L += qk(0, rel)
        if k >= 3: L += mx(0, T[k-3], k == 3)
    L += mx(0, T[-3], False) + mx(0, T[-2], False) + ['s_nop 3'] + mx(0, T[-1], False) + mxfin(0)
    L += stamp()
    for n, (u, e) in enumerate(units):
        m = vmx[n % 2]; T = tiles(n)
        nxt = tiles(n + 1) if n < 3 else []
        F = lambda bb: [f'v_fma_f32 v{S+4*r+j}, v{S+4*r+j}, s{sC}, -v{m}' for r in (2*bb, 2*bb+1) if r in T for j in range(4)]
        E = lambda bb: [f'v_exp_f32 v{S+4*r+j}, v{S+4*r+j}' for r in (2*bb, 2*bb+1) if r in T for j in range(4)]
        def C(bb):
            b = S + 8 * bb; X = []
            for h in range(2):
                if 2 * bb + h in T: X += [f'v_cvt_pk_bf16_f32 v{b+2*h}, v{b+4*h}, v{b+4*h+1}', f'v_cvt_pk_bf16_f32 v{b+2*h+1}, v{b+4*h+2}, v{b+4*h+3}']
                else: X += [f'v_mov_b32 v{b+2*h}, 0', f'v_mov_b32 v{b+2*h+1}, 0']
            return X
        def PV(bb):
            b = S + 8 * bb
            return [f'{MF} {vr(BO,4)}, {ar(BV+8*bb+4*e,4)}, {vr(b,4)}, ' + ('0' if bb == 0 else vr(BO, 4)),
                    f'{MF} {vr(BL,4)}, {vr(ONE,4)}, {vr(b,4)}, ' + ('0' if bb == 0 else vr(BL, 4))]
        firstmx = [True]
        def nqk(bb): return flat([qk(n + 1, r) for r in (2*bb, 2*bb+1) if r in nxt])
        def nmx(bb):
            X = []
            for r in (2*bb, 2*bb+1):
                if r in nxt:
                    X += mx(n + 1, r, firstmx[0]); firstmx[0] = False
            return X
        L += F(0) + E(0)
        for bb in range(9):
            if bb < 8:
                e_ = E(bb + 1); pv = PV(bb)
                L += F(bb + 1) + C(bb) + e_[:2] + [pv[0]] + e_[2:4] + [pv[1]] + e_[4:6] + nqk(bb) + e_[6:]
                if bb >= 1: L += nmx(bb - 1)
            else:
                L += ['s_nop 0'] + C(bb) + ['s_nop 1'] + PV(bb) + nqk(bb) + nmx(7)
        if nxt: L += ['s_nop 3'] + nmx(8) + mxfin(n + 1)
        else: L += ['s_nop 7']
        L += [f'v_rcp_f32 v3, v{BL}', 's_nop 0'] + [f'v_mul_f32 v{BO+j}, v{BO+j}, v3' for j in range(4)]
        L += [f'v_cvt_pk_bf16_f32 v{PKD+2*e}, v{BO}, v{BO+1}', f'v_cvt_pk_bf16_f32 v{PKD+2*e+1}, v{BO+2}, v{BO+3}']
        if e == 1:
            L += [f's_lshl_b32 s{t0}, s{sB0}, 1', f's_add_u32 s{t0}, s{t0}, {u}', f's_mul_i32 s{t0}, s{t0}, {OB_S}', f's_lshl_b32 s{t1}, s{sP}, 10', f's_add_u32 s{t0}, s{t0}, s{t1}', f's_add_u32 s{t0}, s{t0}, {OB}',
                  f'buffer_store_dwordx4 {vr(PKD,4)}, v{vL16}, {sr(sWS,4)}, s{t0} offen sc1', 's_nop 0']
    L = auto_waits([], L)
    check_trace(L, 'k3 B')
    L += stamp()
    L += ['s_waitcnt vmcnt(0)', 's_barrier', f's_cmp_lg_u32 s{sW}, 0', 's_cbranch_scc1 K3_BEND',
          f's_lshl_b32 s{t0}, s2, 2', f's_add_u32 s{t0}, s{t0}, {FLG}', 'v_mov_b32 v2, 1', 'v_mov_b32 v3, 0', 's_mov_b64 exec, 1',
          f'buffer_store_dword v2, v3, {sr(sWS,4)}, s{t0} offen sc1', 's_mov_b64 exec, -1', 'K3_BEND:']
    if DIAG: L += stamp() + dstore(*vG, sW, sWS, 202)
    L += ['s_endpgm']
    return L

NF = 4
def role_g():
    vG = (101, 102, 103)
    stamp = lambda: dstamp(*vG) if DIAG else []
    TMP = 76
    sQ, sM = 17, 18
    sC0, sM0, sC1, sM1 = 44, 48, 52, 56
    def acc(part, mt, qt): return 64 * part + 4 * (4 * mt + qt)
    def slot_of(kb): return kb % 5 if kb < 33 else kb - 33
    def fr(kb, k):
        sl = slot_of(kb)
        if sl < 2: return vr(12 + 32 * sl + 4 * k, 4)
        if sl == 2: return ar(128 + 4 * k, 4) if k < 6 else vr(92 + 4 * (k - 6), 4)
        return ar(64 + 32 * (sl - 3) + 4 * k, 4)
    L = []; a = L.append
    t0, t1, t2 = sT, sT + 1, sT + 2
    LM = 2; LQ = 3
    a(f's_sub_u32 s{t2}, s2, 256'); a(f's_and_b32 s{t0}, s{t2}, 7'); a(f's_lshr_b32 s{t2}, s{t2}, 3')
    a(f's_lshr_b32 s{sQ}, s{t0}, 1'); a(f's_lshl_b32 s{sQ}, s{sQ}, 3'); a(f's_and_b32 s{t1}, s{t2}, 7'); a(f's_add_u32 s{sQ}, s{sQ}, s{t1}')
    a(f's_and_b32 s{sM}, s{t0}, 1'); a(f's_lshl_b32 s{sM}, s{sM}, 2'); a(f's_lshr_b32 s{t1}, s{t2}, 3'); a(f's_add_u32 s{sM}, s{sM}, s{t1}')
    for base, idx, st, org, wsh in ((sC0, sQ, CTX_S, CTX, 15), (sM0, sM, WOA_S, WOA, 15), (sC1, sQ, OB_S, OB, 12), (sM1, sM, WOB_S, WOB, 12)):
        a(f's_mul_i32 s{base}, s{idx}, {4*st}'); a(f's_lshl_b32 s{t0}, s{sW}, {wsh}'); a(f's_add_u32 s{base}, s{base}, s{t0}'); a(f's_add_u32 s{base}, s{base}, {org}')
        for j in range(1, 4): a(f's_add_u32 s{base+j}, s{base+j-1}, {st}')
    NK = 36
    def loads(kb):
        X = []
        c, m, kk, fl = (sC0, sM0, kb, '') if kb < 32 else (sC1, sM1, kb - 32, ' sc1')
        for j in range(4):
            X.append([f'buffer_load_dwordx4 {fr(kb,4+j)}, v{vL16}, {sr(sWS,4)}, s{m+j} offen offset:{(kk%4)*1024}'])
            X.append([f'buffer_load_dwordx4 {fr(kb,j)}, v{vL16}, {sr(sWS,4)}, s{c+j} offen offset:{(kk%4)*1024}{fl}'])
        if kk % 4 == 3 and kb < 31:
            X[-2] += [f's_add_u32 s{m+j}, s{m+j}, 4096' for j in range(4)]
            X[-1] += [f's_add_u32 s{c+j}, s{c+j}, 4096' for j in range(4)]
        return X
    after = {}
    for kb in range(NK):
        prev = [k for k in range(kb) if slot_of(k) == slot_of(kb)]
        after.setdefault(prev[-1] if prev else -1, []).append(kb)
    for kb in after[-1]: L += flat(loads(kb))
    L += ['v_and_b32 v2, 15, v0', 'v_lshlrev_b32 v2, 2, v2', f's_lshr_b32 s{t2}, s{sQ}, 1', f's_lshl_b32 s{t2}, s{t2}, 6', f's_add_u32 s{t2}, s{t2}, {FLG}']
    L += stamp()
    for kb in range(NK):
        part = 0 if kb < 32 else 1
        mf = []
        for mt in range(4):
            for qt in range(4):
                d = acc(part, mt, qt)
                mf.append(f'{MF} {ar(d,4)}, {fr(kb,4+mt)}, {fr(kb,qt)}, ' + ('0' if kb in (0, 32) else ar(d, 4)))
        L += mf
        if kb == 23: L.append(f'buffer_load_dword v3, v2, {sr(sWS,4)}, s{t2} offen sc1')
        for k2 in after.get(kb, []):
            if k2 == 32:
                L += ['v_cmp_eq_u32 vcc, 0, v3', 's_cbranch_vccnz K3_SLOWPOLL', 'K3_POLLED:']
                STUBS.extend(['K3_SLOWPOLL:'] + poll(2, t2, 16, 3) + ['s_branch K3_POLLED'])
            L += flat(loads(k2))
    L.append('s_nop 7')
    p1 = auto_waits([], L)
    G = [f's_lshl_b32 s{t0}, s{sW}, 14', f'v_add_u32 v{TMP}, s{t0}, v{vL16}', f's_lshl_b32 s{t0}, s{sW}, 10', f'v_add_u32 v{TMP+1}, s{t0}, v{vL16}']
    vo = 2
    G += [f'v_and_b32 v{vo}, 15, v0', f'v_lshlrev_b32 v{vo}, 11, v{vo}', f'v_bfe_u32 v3, v0, 4, 1', f'v_lshl_add_u32 v{vo}, v3, 5, v{vo}', f'v_lshrrev_b32 v3, 5, v0', f'v_lshl_add_u32 v{vo}, v3, 4, v{vo}',
          f's_lshl_b32 s{t0}, s{sQ}, 2', f's_add_u32 s{t0}, s{t0}, s{sW}', f's_lshl_b32 s{t0}, s{t0}, 15', f's_lshl_b32 s{t1}, s{sM}, 7', f's_add_u32 s{t0}, s{t0}, s{t1}']
    for part in range(2):
        G += [f'ds_write_b128 v{TMP}, {ar(64*part+4*k,4)} offset:{k*1024}' for k in range(16)]
        G += ['s_waitcnt lgkmcnt(0)', 's_barrier']
        for w in range(4):
            for mt in range(4): G.append(f'ds_read_b128 {vr(12+16*w+4*mt,4)}, v{TMP+1} offset:{w*16384+mt*4096}')
        if part == 0: G += [';LGKM0', 's_barrier']
        for j in range(16): G.append(f'v_add_f32 v{12+j}, v{12+j}, v{28+j}')
        for j in range(16): G.append(f'v_add_f32 v{44+j}, v{44+j}, v{60+j}')
        for j in range(16): G.append(f'v_add_f32 v{12+j}, v{12+j}, v{44+j}')
        P0 = TMP + 4 + 8 * part
        for mt in range(4):
            G += [f'v_cvt_pk_bf16_f32 v{P0+4*(mt>>1)+2*(mt&1)}, v{12+4*mt}, v{12+4*mt+1}', f'v_cvt_pk_bf16_f32 v{P0+4*(mt>>1)+2*(mt&1)+1}, v{12+4*mt+2}, v{12+4*mt+3}']
        G.append('s_nop 1')
        for pr in range(2):
            b = P0 + 4 * pr
            G += [f'v_permlane16_swap_b32 v{b}, v{b+2}', f'v_permlane16_swap_b32 v{b+1}, v{b+3}']
        for pr in range(2):
            G.append(f'buffer_store_dwordx4 {vr(P0+4*pr,4)}, v{vo}, {sr(sOUT,4)}, s{t0} offen offset:{part*1024+pr*64}{OSF}')
    G = auto_waits([], G)
    check_trace(p1 + G, 'k3 G')
    R = p1 + stamp() + G
    if DIAG: R += stamp() + ['s_waitcnt vmcnt(0)'] + stamp() + dstore(*vG, sW, sWS, 202)
    return R + ['s_endpgm']

def gen_k3(name='k3_kernel'):
    L = []; a = L.append
    a(f'.p2align 8\n.type {name},@function\n{name}:')
    a('s_cmp_ge_u32 s2, 512'); a('s_cbranch_scc1 K3_END')
    if os.environ.get('CPF', '1') == '1': L += code_prefetch('k3_kernel', 'CODE_END', 'K3', 10, 11, 90, 4)
    a('s_load_dwordx2 s[4:5], s[0:1], 88'); a('s_load_dwordx2 s[6:7], s[0:1], 72')
    a('v_lshrrev_b32 v1, 6, v0'); a('v_and_b32 v0, 63, v0'); a(f'v_readfirstlane_b32 s{sW}, v1')
    a(f'v_lshlrev_b32 v{vL16}, 4, v0')
    a('s_waitcnt lgkmcnt(0)')
    a(f's_mov_b32 s{sWS}, s4'); a(f's_mov_b32 s{sWS+1}, s5'); a(f's_mov_b32 s{sWS+2}, 0x10000000'); a(f's_mov_b32 s{sWS+3}, 0x20000')
    a(f's_mov_b32 s{sOUT}, s6'); a(f's_mov_b32 s{sOUT+1}, s7'); a(f's_mov_b32 s{sOUT+2}, 0x400000'); a(f's_mov_b32 s{sOUT+3}, 0x20000')
    if DIAG: a('s_mov_b32 s72, 0'); a('v_mov_b32 v101, 0'); a('v_mov_b32 v103, 0'); L += dstamp(101, 102, 103)
    a('s_cmp_ge_u32 s2, 256'); a('s_cbranch_scc1 K3_G')
    L += role_b()
    a('K3_G:'); L += role_g()
    a('K3_END:'); a('s_endpgm')
    L += STUBS
    return L, kdesc(name, 256, 104), f'; @launch kernel={name} grid=(512,1,1) block=(256,1,1) lds=65536'
```

```python
import re

def regs_of(tok):
    tok = tok.strip()
    neg = tok.lstrip('-')
    m = re.fullmatch(r'abs\((.*)\)', neg)
    if m: neg = m.group(1)
    m = re.fullmatch(r'\|(.*)\|', neg)
    if m: neg = m.group(1)
    m = re.fullmatch(r'([vas])(\d+)', neg)
    if m: return {(m.group(1), int(m.group(2)))}
    m = re.fullmatch(r'([vas])\[(\d+):(\d+)\]', neg)
    if m: return {(m.group(1), i) for i in range(int(m.group(2)), int(m.group(3)) + 1)}
    if neg == 'vcc': return {('s', 'vcc')}
    if neg == 'exec': return {('s', 'exec')}
    if neg == 'm0': return {('s', 'm0')}
    return set()

TRANS = ('v_exp_f32', 'v_log_f32', 'v_rcp_f32', 'v_rsq_f32', 'v_sqrt_f32', 'v_sin_f32', 'v_cos_f32')
NODST_S = ('s_cmp', 's_waitcnt', 's_barrier', 's_branch', 's_cbranch', 's_nop', 's_setprio', 's_bitcmp', 's_endpgm', 's_setpc', 's_sleep')

class Ins:
    def __init__(self, text):
        self.text = text
        t = text.split(';')[0].strip()
        parts = t.split(None, 1)
        self.op = parts[0]
        rest = parts[1] if len(parts) > 1 else ''
        ops = [o.strip() for o in re.split(r',(?![^\[]*\])', rest)] if rest else []
        mods = ''
        if ops:
            lp = ops[-1].split(None, 1)
            if len(lp) > 1 and not ops[-1].startswith('abs'):
                ops[-1] = lp[0]; mods = lp[1]
        self.ops, self.mods = ops, mods
        op = self.op
        self.kind = 'other'; self.w = set(); self.r = set()
        R = [regs_of(o) for o in ops]
        U = lambda l: set().union(*l) if l else set()
        if op.startswith('v_mfma'):
            self.kind = 'mfma'; self.w = R[0]; self.A, self.B, self.C = R[1], R[2], R[3]; self.r = R[1] | R[2] | R[3]
            self.passes = 8 if '32x32' in op else 4
        elif op.startswith('v_cmp'):
            self.kind = 'valu'; self.w = R[0]; self.r = U(R[1:])
        elif op.startswith('v_readfirstlane') or op.startswith('v_readlane'):
            self.kind = 'valu'; self.w = R[0]; self.r = U(R[1:])
        elif op.startswith('v_permlane'):
            self.kind = 'valu'; self.w = R[0] | R[1]; self.r = R[0] | R[1]
        elif op.startswith('v_add_co') or op.startswith('v_sub_co') or op.startswith('v_addc_co'):
            self.kind = 'valu'; self.w = R[0] | R[1]; self.r = U(R[2:])
        elif op.startswith('v_'):
            self.kind = 'valu'; self.w = R[0]; self.r = U(R[1:])
            if op.startswith('v_fmac') or op.startswith('v_dot2c'): self.r |= R[0]
        elif op.startswith('ds_read'):
            self.kind = 'ds'; self.w = R[0]; self.r = R[1]
        elif op.startswith('ds_write'):
            self.kind = 'ds'; self.r = U(R)
        elif op.startswith('ds_bpermute') or op.startswith('ds_swizzle'):
            self.kind = 'ds'; self.w = R[0]; self.r = U(R[1:])
        elif op.startswith('buffer_load'):
            self.kind = 'vm'
            if 'lds' in mods.split():
                self.r = U(R) | {('s', 'm0')}; self.dma = True
            else:
                self.w = R[0]; self.r = U(R[1:])
        elif op.startswith('buffer_store') or op.startswith('buffer_atomic'):
            self.kind = 'vm'; self.r = U(R); self.sdata = R[0]
        elif op.startswith('buffer_'):
            self.kind = 'vm'
        elif op.startswith('s_load') or op.startswith('s_memtime') or op.startswith('s_memrealtime'):
            self.kind = 'smem'; self.w = R[0]; self.r = U(R[1:])
        elif op.startswith('s_'):
            self.kind = 'salu'
            if op.startswith(NODST_S): self.r = U(R)
            else:
                self.w = R[0]; self.r = U(R[1:])
                if 'saveexec' in op: self.w |= {('s', 'exec')}
            if op.startswith('s_cbranch_vcc'): self.r |= {('s', 'vcc')}
        self.states = 1
        if op == 's_nop': self.states = int(ops[0], 0) + 1

def check_trace(lines, name='', verbose=True):
    ins = []
    for l in lines:
        t = l.split(';')[0].strip()
        if not t or t.endswith(':') or t.startswith('.'): continue
        ins.append(Ins(t)); mt = re.search(r'tag=(\w+)', l); ins[-1].tag = mt.group(1) if mt else None
        if 'nodep' in l: ins[-1].w = set()
    probs = []
    m0tag = None
    pos = []
    c = 0
    for i in ins:
        pos.append(c); c += i.states
    WIN = 40
    dsq = []; vmq = []
    for n, i in enumerate(ins):
        if ('s', 'm0') in i.w: m0tag = i.tag
        if getattr(i, 'dma', False) and i.tag != m0tag: probs.append(f'{name}: [{n}] {i.text} tag {i.tag} but m0 tag {m0tag}')
        if i.op == 's_waitcnt':
            m = re.search(r'lgkmcnt\((\d+)\)', i.text)
            if m:
                k = int(m.group(1))
                while len(dsq) > k: dsq.pop(0)
            m = re.search(r'vmcnt\((\d+)\)', i.text)
            if m:
                k = int(m.group(1))
                while len(vmq) > k: vmq.pop(0)
        if i.op.startswith('s_cselect') or i.op.startswith('s_cbranch_scc'):
            for m_ in range(n - 1, -1, -1):
                p = ins[m_]
                if p.kind == 'salu' and not p.op.startswith(('s_mov', 's_cselect', 's_waitcnt', 's_barrier', 's_nop', 's_mul_i32', 's_branch', 's_cbranch', 's_setprio', 's_getpc', 's_setpc', 's_swappc')):
                    if not p.op.startswith(('s_cmp', 's_bitcmp')): probs.append(f'{name}: [{n}] {i.text}: SCC last written by {p.text}')
                    break
        touched = i.r | i.w
        for q, nm in ((dsq, 'lgkm'), (vmq, 'vm')):
            for d, txt in q:
                if d & touched:
                    probs.append(f'{name}: [{n}] {i.text} touches pending {nm} dest of: {txt}')
        if i.kind == 'ds':
            dsq.append((set(i.w), i.text))
            if len(dsq) > 15: pass
        if i.kind == 'smem': dsq.append((set(i.w), i.text)); dsq.append((set(), i.text))
        if i.kind == 'vm':
            vmq.append((set(i.w), i.text))
            if len(vmq) > 63: probs.append(f'{name}: [{n}] more than 63 vm outstanding')
        for m_ in range(n - 1, max(-1, n - WIN), -1):
            p = ins[m_]
            dist = pos[n] - pos[m_] - p.states
            if dist >= 20: break
            need = 0; why = ''
            if p.kind == 'mfma':
                big = p.passes == 8
                if i.kind == 'mfma':
                    if (i.A | i.B) & p.w: need, why = (12 if big else 8), 'mfmaD->A/B'
                    elif i.C & p.w and not (i.C == p.w and i.passes == p.passes): need, why = (10 if big else 6), 'mfmaD->C overlap'
                    elif i.w & p.w and not (i.C == p.w) and not (i.A == p.A and i.B == p.B): need, why = (12 if big else 8), 'mfmaD WAW (conservative)'
                elif i.kind in ('valu', 'ds', 'vm'):
                    if (i.r | i.w) & p.w: need, why = (12 if big else 8), 'mfmaD->valu/mem'
                    elif i.kind == 'valu' and i.w & p.C: need, why = (7 if big else 3), 'mfmaC WAR'
            elif p.kind == 'valu':
                vw = {x for x in p.w if x[0] in 'va'}
                sw = {x for x in p.w if x[0] == 's'}
                if i.kind == 'mfma' and i.r & vw: need, why = 2, 'valu->mfma'
                if i.kind == 'mfma' and ('s', 'exec') in sw: need, why = 4, 'exec->mfma'
                if i.kind == 'valu':
                    if p.op.startswith(TRANS) and not i.op.startswith(TRANS) and i.r & vw: need, why = max(need, 1), 'trans->valu'
                    if i.op.startswith('v_permlane') and i.r & vw: need, why = 2, 'valu->permlane'
                    if ('dpp' in i.op or 'row_' in i.mods) and i.r & vw: need, why = 2, 'valu->dpp'
                    if (i.op.startswith('v_readfirstlane') or i.op.startswith('v_readlane')) and i.r & vw: need, why = max(need, 1), 'valu->readlane'
                    if i.r & sw: need, why = max(need, 2), 'valu sgpr->valu'
                if i.kind == 'vm' and i.r & sw: need, why = 5, 'valu sgpr->vmem'
                if i.kind == 'salu' and i.r & sw and not i.op.startswith('s_cbranch'): need, why = max(need, 1), 'valu sgpr->salu (pad)'
            elif p.kind == 'salu':
                if ('s', 'm0') in p.w and i.kind == 'vm' and getattr(i, 'dma', False): need, why = 1, 'm0->dma'
            elif p.kind == 'vm' and hasattr(p, 'sdata') and len(p.sdata) >= 3:
                if i.w & p.sdata: need, why = (2 if i.kind in ('valu', 'mfma') else 1), 'store data WAR'
            if dist < need:
                probs.append(f'{name}: [{n}] {i.text}  <- [{m_}] {p.text}: {why} need {need} have {dist}')
    if verbose:
        for p in probs[:40]: print('HAZARD', p)
        print(f'check {name}: {len(ins)} instrs, {len(probs)} problems')
    return probs

def vr(b, n=1, f='v'): return f'{f}{b}' if n == 1 else f'{f}[{b}:{b+n-1}]'
def ar(b, n=1): return vr(b, n, 'a')
def sr(b, n=1): return vr(b, n, 's')

def weave(mfmas, pre, valu):
    out = []
    for g, m in enumerate(mfmas):
        for x in pre.get((g, 'before'), []): out.append(x)
        out.append(m)
        out += pre.get(g, [])
        out += valu.get(g, [])
    return out

def kdesc(name, nv, accum, ns=102):
    return f""".amdhsa_kernel {name}
  .amdhsa_next_free_vgpr {nv}
  .amdhsa_next_free_sgpr {ns}
  .amdhsa_accum_offset {accum}
  .amdhsa_group_segment_fixed_size 0
  .amdhsa_kernarg_size 96
  .amdhsa_user_sgpr_count 2
  .amdhsa_user_sgpr_kernarg_segment_ptr 1
  .amdhsa_system_sgpr_workgroup_id_x 1
  .amdhsa_float_denorm_mode_32 3
.end_amdhsa_kernel
"""

def auto_waits(ctx, lines):
    dsq, vmq = [], []
    out = []
    def step(l, emit):
        t = l.strip()
        wl = wv = None
        if t.startswith(';NEED'):
            touched = set()
            for tok in t.split()[1:]: touched |= regs_of(tok)
            i = None
        elif t.startswith(';VMNEED'):
            tag = t.split()[1]
            idx = [n for n, (d, g) in enumerate(vmq) if g == tag]
            if idx: wv = len(vmq) - 1 - idx[-1]
            touched = set(); i = None
        elif t.startswith(';LGKM0'):
            if dsq: wl = 0
            touched = set(); i = None
        else:
            code = t.split(';')[0].strip()
            if not code or code.endswith(':') or code.startswith('.'):
                if emit: out.append(l)
                return
            i = Ins(code)
            if 'nodep' in t: i.w = set()
            touched = i.r | i.w
            if i.op == 's_waitcnt':
                m = re.search(r'lgkmcnt\((\d+)\)', code)
                if m:
                    while len(dsq) > int(m.group(1)): dsq.pop(0)
                m = re.search(r'vmcnt\((\d+)\)', code)
                if m:
                    while len(vmq) > int(m.group(1)): vmq.pop(0)
        idx = [n for n, (d, g) in enumerate(dsq) if d & touched]
        if idx: wl = len(dsq) - 1 - idx[-1]
        idx = [n for n, (d, g) in enumerate(vmq) if d & touched]
        if idx:
            k = len(vmq) - 1 - idx[-1]
            wv = k if wv is None else min(wv, k)
        if wl is not None or wv is not None:
            s = 's_waitcnt'
            if wv is not None:
                wv = min(wv, 63); s += f' vmcnt({wv})'
                while len(vmq) > wv: vmq.pop(0)
            if wl is not None:
                wl = min(wl, 15); s += f' lgkmcnt({wl})'
                while len(dsq) > wl: dsq.pop(0)
            if emit: out.append(s)
        if i is not None:
            if emit: out.append(l)
            m = re.search(r'tag=(\w+)', t)
            tag = m.group(1) if m else None
            if i.kind == 'ds': dsq.append((set(i.w), tag))
            if i.kind == 'vm': vmq.append((set(i.w), tag))
    for l in ctx: step(l, False)
    for l in lines: step(l, True)
    return out

def dstamp(va, vt, vb):
    return ['s_memtime s[70:71]', 's_memrealtime s[74:75]', 's_waitcnt lgkmcnt(0)', 'v_cmp_eq_u32 vcc, s72, v0', f'v_mov_b32 v{vt}, s70', 's_add_u32 s72, s72, 1',
            f'v_cndmask_b32 v{va}, v{va}, v{vt}, vcc', f'v_mov_b32 v{vt}, s74', f'v_cndmask_b32 v{vb}, v{vb}, v{vt}, vcc']
def dstore(va, vt, vb, sw, sws, mb):
    return ['s_lshl_b32 s70, s2, 2', f's_add_u32 s70, s70, s{sw}', 's_lshl_b32 s70, s70, 9', f's_add_u32 s70, s70, {mb<<20}', f'v_lshlrev_b32 v{vt}, 2, v0',
            f'buffer_store_dword v{va}, v{vt}, s[{sws}:{sws+3}], s70 offen', f'buffer_store_dword v{vb}, v{vt}, s[{sws}:{sws+3}], s70 offen offset:256']

def merge_min(variants):
    base = variants[0]
    for c in variants[1:]:
        if c == base: continue
        mm = []; i = j = 0
        while i < len(base) or j < len(c):
            x = base[i] if i < len(base) else None; y = c[j] if j < len(c) else None
            xw = x is not None and x.startswith('s_waitcnt'); yw = y is not None and y.startswith('s_waitcnt')
            if xw and yw:
                gx = dict(re.findall(r'(\w+cnt)\((\d+)\)', x)); gy = dict(re.findall(r'(\w+cnt)\((\d+)\)', y))
                keys = [k for k in ('vmcnt', 'lgkmcnt') if k in gx or k in gy]
                mm.append('s_waitcnt ' + ' '.join(f'{k}({min(int(gx.get(k, 99)), int(gy.get(k, 99)))})' for k in keys)); i += 1; j += 1
            elif xw: mm.append(x); i += 1
            elif yw: mm.append(y); j += 1
            else:
                assert x == y, (x, y); mm.append(x); i += 1; j += 1
        base = mm
    return base

def code_prefetch(start, end, uid, vtmp, vdst, stmp, nsl):
    return [f's_getpc_b64 s[{stmp}:{stmp+1}]', f'{uid}_PC:', f's_sub_u32 s{stmp}, s{stmp}, {uid}_PC-{start}', f's_subb_u32 s{stmp+1}, s{stmp+1}, 0',
            f's_lshr_b32 s{stmp+2}, s2, 3', f's_and_b32 s{stmp+2}, s{stmp+2}, {nsl-1}', f's_lshl_b32 s{stmp+2}, s{stmp+2}, 13',
            f'v_and_b32 v{vtmp}, 63, v0', f'v_lshlrev_b32 v{vtmp}, 7, v{vtmp}', f'v_add_u32 v{vtmp}, s{stmp+2}, v{vtmp}', f'v_min_u32 v{vtmp}, {end}-{start}-4, v{vtmp}',
            f'global_load_dword v{vdst}, v{vtmp}, s[{stmp}:{stmp+1}]']
```

```python
from lib import *
from layout import *
import struct, math, os
def f32(x): return '0x%08x' % struct.unpack('<I', struct.pack('<f', x))[0]

CA = math.log2(math.e) / math.sqrt(128.0)
vWd, vXd, vWl, vXr, vSt, vWr, vXr2, vSt2 = 2, 6, 10, 14, 16, 18, 26, 17
WF, PK, ACC = 32, 64, 128
sACT, sW, sWS = 28, 32, 36
sWave, sGc, sRem, sLdw, sWoff, sLdw128 = 40, 41, 43, 44, 45, 46
sOut0, sOut1, sScl = 47, 48, 49
sNOut0, sNOut1 = 50, 51
sType, sBlk, sXoff, sM0W, sM0X, sT0, sT1, sT2, sGcL, sRemL, sWsz, sSR, sSW, sM0X2, sPf = 53, 54, 55, 56, 57, 59, 60, 61, 62, 63, 64, 65, 66, 67, 68
sPX, sPQ, sPo = 76, 80, 84
DK = 1
NSLOT = 6
XBASE = NSLOT * 16384
STORE_FLAGS = os.environ.get('K1_SF', ' sc1')
PF = int(os.environ.get('K1_PF', 1))
WST = int(os.environ.get('K1_WST', 6))
PFR = int(os.environ.get('K1_PFR', 2))
PFM = int(os.environ.get('K1_PFM', 1))
XPF = int(os.environ.get('K1_XPF', 2))
sJ7 = 69
FUSE = int(os.environ.get('FUSE', 1))
PFG = int(os.environ.get('K1_PFG', 0))
DIAG = os.environ.get('DIAG')
def stamp(): return dstamp(31, 30, 29) if DIAG else []
MF = 'v_mfma_f32_16x16x32_bf16'
D = 24

def acc(par, ft, tt): return ACC + 64 * par + 4 * (4 * ft + tt)
def xfr(tt, kb): return (tt * 16 + kb) * 4
def wfr(kb, ft): return WF + 4 * ((4 * kb + ft) % 8)

def w_read(idx):
    idx %= 128
    kb, ft, p = idx // 8, (idx >> 1) & 3, idx & 1
    u, kl = kb // 4, kb % 4
    r = wfr(kb, ft) + 2 * p
    return f'ds_read_b64_tr_b16 {vr(r,2)}, v{vWr+4*(u&1)+ft} offset:{(32*kl + 4*p)*128}'

def ring_adv(s): return [f's_add_u32 s{s}, s{s}, 16384', f's_cmp_eq_u32 s{s}, {XBASE}', f's_cselect_b32 s{s}, 0, s{s}']

def w_dma(u, pad=False):
    L = [f's_add_u32 m0, s{sM0W}, s{sSW} ; tag=W{u}']
    if pad: L.append('s_nop 0')
    for q in range(4):
        L.append(f'buffer_load_dwordx4 v{vWd+q}, {sr(sW,4)}, s{sWoff} offen offset:{q*1024} lds ; tag=W{u}')
    L.append(f's_add_u32 s{sWoff}, s{sWoff}, s{sLdw128}')
    return L + ring_adv(sSW)

def x_dma(c):
    slot = c % 3
    L = []
    for hh in range(2):
        L.append(f's_add_u32 m0, s{sM0X}, {slot*8192 + hh*4096} ; tag=X{c}' if slot < 2 else f's_add_u32 m0, s{sM0X2}, {hh*4096} ; tag=X{c}')
        L.append(f's_add_u32 s{sT0}, s{sXoff}, {c*128 + hh*32768}')
        for q in range(4):
            L.append(f'buffer_load_dwordx4 v{vXd+q}, {sr(sACT,4)}, s{sT0} offen offset:{q*1024} lds ; tag=X{c}')
    return L

def x_read(c, kbl, tt):
    if c % 3 == 2: return f'ds_read_b128 {ar(xfr(tt, 2*c+kbl),4)}, v{vXr2+kbl} offset:{tt*2048}'
    return f'ds_read_b128 {ar(xfr(tt, 2*c+kbl),4)}, v{vXr+kbl} offset:{(c%3)*8192 + tt*2048}'

def load_params():
    return [
        f's_add_u32 s{sGcL}, s{sGcL}, 1',
        f's_sub_u32 s{sRemL}, s{sRemL}, 1',
        f's_cmp_lt_i32 s{sRemL}, 1',
        f's_cselect_b32 s{sW+2}, 0, s{sWsz}',
        f's_and_b32 s{sT1}, s{sGcL}, 63',
        f's_lshl_b32 s{sT1}, s{sT1}, 7',
        f's_mul_i32 s{sWoff}, s{sWave}, s{sLdw}',
        f's_lshl_b32 s{sWoff}, s{sWoff}, 5',
        f's_add_u32 s{sWoff}, s{sWoff}, s{sT1}',
    ]

def comp_params():
    return [
        f's_lshr_b32 s{sT1}, s{sGc}, 1',
        f's_lshl_b32 s{sT1}, s{sT1}, 19',
        f's_and_b32 s{sT2}, s{sGc}, 1',
        f's_lshl_b32 s{sT2}, s{sT2}, 12',
        f's_add_u32 s{sT1}, s{sT1}, s{sT2}',
        f's_lshl_b32 s{sT2}, s{sBlk}, 13',
        f's_add_u32 s{sNOut0}, s{sT1}, s{sT2}',
        f's_add_u32 s{sNOut1}, s{sNOut0}, 8192',
        f's_sub_u32 s{sT1}, s{sGc}, 128',
        f's_lshl_b32 s{sT1}, s{sT1}, 18',
        f's_lshl_b32 s{sT2}, s{sBlk}, 12',
        f's_add_u32 s{sT1}, s{sT1}, s{sT2}',
        f's_add_u32 s{sT1}, s{sT1}, {BWS}',
        f's_add_u32 s{sT2}, s{sT1}, 4096',
        f's_cmp_ge_u32 s{sGc}, 128',
        f's_cselect_b32 s{sNOut0}, s{sT1}, s{sNOut0}',
        f's_cselect_b32 s{sNOut1}, s{sT2}, s{sNOut1}',
        f's_cmp_ge_u32 s{sGc}, 64',
        f's_cselect_b32 s{sType}, 1, 0',
        f's_sub_u32 s{sT1}, s{sGc}, 128',
        f's_cmp_lt_u32 s{sT1}, 16',
        f's_cselect_b32 s{sType}, 0, s{sType}',
    ]

def groups(L):
    out = []
    for x in L:
        if x.startswith('s_cselect'): out[-1].append(x)
        else: out.append([x])
    return out

def epi_part(par, ptype, n):
    V, S = [], []
    y = n >> 1
    for e in range(2):
        fi = 2 * (n & 1) + e
        pk = PK + 4 * ((2 * n + e) % 4)
        if ptype == 0: t0, t1 = acc(par, 2 * (fi >> 1), 2 * y + (fi & 1)), acc(par, 2 * (fi >> 1) + 1, 2 * y + (fi & 1))
        else: t0, t1 = acc(par, fi, 2 * y), acc(par, fi, 2 * y + 1)
        if ptype == 0:
            V += [f'v_mul_f32 v{t+j}, s{sScl}, v{t+j}' for t in (t0, t1) for j in range(4)]
        V += [f'v_cvt_pk_bf16_f32 v{pk}, v{t0}, v{t0+1}', f'v_cvt_pk_bf16_f32 v{pk+1}, v{t0+2}, v{t0+3}',
              f'v_cvt_pk_bf16_f32 v{pk+2}, v{t1}, v{t1+1}', f'v_cvt_pk_bf16_f32 v{pk+3}, v{t1+2}, v{t1+3}']
        S.append(f'buffer_store_dwordx4 {vr(pk,4)}, v{vSt}, {sr(sWS,4)}, s{sOut1 if y else sOut0} offen offset:{fi*1024}{STORE_FLAGS}')
    return V, S

def build_pass(ptype, par, first, prev_type):
    mf = []; pre = {}; val = {}
    def P(g, x): pre.setdefault(g, []).extend(x if isinstance(x, list) else [x])
    def V(g, x): val.setdefault(g, []).extend(x if isinstance(x, list) else [x])
    def putw(g, u, st=2):
        dm = w_dma(u)
        P(g, dm[0]); P(g + 2, dm[1]); P(g + 2 + st, dm[2]); P(g + 2 + 2 * st, dm[3]); P(g + 2 + 3 * st, dm[4]); P(g + 4 + 3 * st, dm[5]); P(g + 6 + 3 * st, dm[6]); P(g + 8 + 3 * st, dm[7:])
    def putx(g, c):
        xd = x_dma(c)
        P(g, xd[0:3]); P(g + 2, xd[3]); P(g + 4, xd[4]); P(g + 6, xd[5])
        P(g + 8, xd[6:9]); P(g + 10, xd[9]); P(g + 12, xd[10]); P(g + 14, xd[11])
    for G in range(256):
        kb, ft, tt = G // 16, (G >> 2) & 3, G & 3
        a = acc(par, ft, tt)
        w, x = vr(wfr(kb, ft), 4), ar(xfr(tt, kb), 4)
        c = '0' if kb == 0 else vr(a, 4)
        mf.append(f'{MF} {vr(a,4)}, ' + (f'{w}, {x}' if ptype == 0 else f'{x}, {w}') + f', {c}')
        if G % 8 == 0:
            need = f';NEED {vr(wfr(kb,ft),4)} {vr(wfr(kb,ft+1),4)}'
            if first and G % 16 == 0: need += ' ' + ' '.join(ar(xfr(t, kb), 4) for t in range(4))
            P(G - 1 if G else (0, 'before'), need)
        if (G + D) % 64 == 0:
            nu = ((G + D) // 64) % 4
            P(G, [f';VMNEED W{nu}', 's_barrier'])
        if G % 2 == 0: P(G, w_read((G + D) // 2))
    for u in range(4):
        g0 = 64 * u
        V(g0, [f'v_add_u32 v{vWr+4*((u+1)&1)+ft}, s{sSR}, v{vWl+ft}' for ft in range(2)])
        V(g0 + 1, [f'v_add_u32 v{vWr+4*((u+1)&1)+ft}, s{sSR}, v{vWl+ft}' for ft in range(2, 4)])
        ra = ring_adv(sSR); P(g0 + 3, ra[0]); P(g0 + 5, ra[1:])
        if not first:
            putw(g0 + 9, u, WST if u < 3 else min(WST, 4))
            Vl, Sl = epi_part(par ^ 1, prev_type, u)
            for k in range(len(Vl) // 2): V(g0 + 8 + (k if u == 3 else 2 * k), Vl[2*k:2*k+2])
            if u < 3: P(g0 + 45, Sl[0]); P(g0 + 57, Sl[1])
            else: P(g0 + 21, Sl[0]); P(g0 + 31, Sl[1])
    if not first and PFM == 1:
        P(70, [f's_cmp_eq_u32 s{sRem}, {PFR}', f's_cselect_b32 s{sPX+2}, 0x200000, 0']); P(72, [f's_cmp_eq_u32 s{sRem}, {PFR}', f's_cselect_b32 s{sPQ+2}, 0x400000, 0'])
        for k, x in enumerate(pf_loads()): P(75 + 4 * k, x)
    g = 229 if not first else 233
    P(g, f's_mov_b32 s{sOut0}, s{sNOut0}'); P(g + 2, f's_mov_b32 s{sOut1}, s{sNOut1}')
    pl = [[f's_add_u32 s{sGc}, s{sGc}, 1'], [f's_sub_u32 s{sRem}, s{sRem}, 1']] + groups(comp_params())
    for k, x in enumerate(pl): P(g + 3 + k * (252 - g) // len(pl), x)
    lp = groups(load_params())
    g = 222 if not first else 227
    for k, x in enumerate(lp): P(g + k * 6 // len(lp), x)
    if first:
        for c in range(1, 8):
            g0 = 32 * (c - 1) + 11
            P(g0, f';VMNEED X{c}')
            k = 0
            for kbl in range(2):
                for tt in range(4):
                    P(g0 + 2 * k, x_read(c, kbl, tt)); k += 1
        lastx = lambda c: f';NEED {ar(xfr(3,2*c+1),4)}'
        putw(1, 1); P(17, lastx(0)); putx(17, 3); putw(33, 2)
        P(49, lastx(1)); putx(49, 4)
        P(65, lastx(2)); putx(65, 5)
        putw(81, 3)
        P(97, lastx(3)); putx(97, 6)
        for k, x in enumerate(groups(load_params())): P(113 + 2 * k, x)
        P(129, lastx(4)); putx(129, 7)
        P(167, lastx(5))
        putw(169, 0); putw(185, 1); putw(199, 2); putw(213, 3)
        if PF:
            for k in range(16):
                P(PFG + 2 * k, f'buffer_load_dwordx4 {vr(112+4*(k%4),4)}, v{vSt}, {sr(sW,4)}, s{sPf} offen offset:{(k%4)*1024} ; nodep')
                if k % 4 == 3: P(PFG + 2 * k, f's_add_u32 s{sPf}, s{sPf}, 4096')
    return weave(mf, pre, val)

def pf_loads():
    L = [f'buffer_load_dwordx4 {vr(112+4*q,4)}, v{vSt}, {sr(sPX,4)}, s{sPo} offen offset:{q*1024} ; nodep' for q in range(2)]
    L += [f'buffer_load_dwordx4 {vr(112+4*q,4)}, v{vSt}, {sr(sPQ,4)}, s{sPo+1} offen offset:{q*1024} ; nodep' for q in range(4)]
    return L

def pf_local():
    L = [f's_mov_b32 s{sPX+2}, 0x200000', f's_mov_b32 s{sPQ+2}, 0x400000',
         f's_lshr_b32 s{sPo}, s2, 3', f's_lshl_b32 s{sPo}, s{sPo}, 16', f's_lshl_b32 s{sPo+1}, s{sWave}, 14', f's_add_u32 s{sPo}, s{sPo}, s{sPo+1}',
         'v_lshrrev_b32 v100, 4, v0', 'v_lshlrev_b32 v100, 13, v100', 'v_and_b32 v101, 15, v0', 'v_lshl_add_u32 v100, v101, 4, v100',
         f's_lshr_b32 s{sPo+1}, s2, 5', f's_lshl_b32 s{sPo+1}, s{sPo+1}, 2', f's_add_u32 s{sPo+1}, s{sPo+1}, s{sWave}', f's_lshl_b32 s{sPo+1}, s{sPo+1}, 17',
         f's_and_b32 s{sPo+2}, s2, 31', f's_lshl_b32 s{sPo+2}, s{sPo+2}, 8', f's_add_u32 s{sPo+1}, s{sPo+1}, s{sPo+2}']
    for q in range(4):
        L += [f'buffer_load_dwordx4 {vr(112+4*q,4)}, v100, {sr(sPQ,4)}, s{sPo+1} offen ; nodep', f's_add_u32 s{sPo+1}, s{sPo+1}, 32768']
    for k in range(16):
        L.append(f'buffer_load_dwordx4 {vr(112+4*(k%4),4)}, v{vSt}, {sr(sPX,4)}, s{sPo} offen offset:{(k%4)*1024} ; nodep')
        if k % 4 == 3: L.append(f's_add_u32 s{sPo}, s{sPo}, 4096')
    return L

def relayout_job():
    L = []; a = L.append
    vD, vR, vF = 32, 40, 56
    sU, sSrc, sDst, sA, sB, sS = 45, 46, 47, 48, 49, 88
    a('s_waitcnt lgkmcnt(0)')
    a(f's_mov_b32 s{sWS}, s26'); a(f's_mov_b32 s{sWS+1}, s27'); a(f's_mov_b32 s{sWS+2}, 0x10000000'); a(f's_mov_b32 s{sWS+3}, 0x20000')
    L += pf_setup() + [f's_mov_b32 s{sPX+2}, 0x200000', f's_mov_b32 s{sPQ+2}, 0x400000']
    a(f'v_lshlrev_b32 v{vSt}, 4, v0')
    for j in range(4): a(f'v_mov_b32 v{vF+j}, 0')
    a(f's_lshl_b32 s{sA}, s{sBlk}, 2'); a(f's_add_u32 s{sA}, s{sA}, s{sWave}'); a(f's_lshl_b32 s{sA}, s{sA}, 10'); a(f's_add_u32 s{sA}, s{sA}, {FLG}')
    a(f'buffer_store_dwordx4 {vr(vF,4)}, v{vSt}, {sr(sWS,4)}, s{sA} offen{STORE_FLAGS}')
    L += pf_local() if PFM == 3 else pf_loads()
    a('s_branch K1_END2' if FUSE else 's_branch K1_END')
    return L
def pf_setup():
    return [f's_mov_b64 {sr(sPX,2)}, s[4:5]', f's_mov_b32 s{sPX+3}, 0x20000', f's_mov_b64 {sr(sPQ,2)}, s[8:9]', f's_mov_b32 s{sPQ+3}, 0x20000',
            f's_mov_b32 s{sPX+2}, 0', f's_mov_b32 s{sPQ+2}, 0',
            f's_lshl_b32 s{sPo}, s2, 2', f's_add_u32 s{sPo}, s{sPo}, s{sWave}', f's_lshl_b32 s{sPo+1}, s{sPo}, 12', f's_lshl_b32 s{sPo}, s{sPo}, 11']

def final_epi(par, ptype):
    L = ['s_nop 7']
    if PFM == 2: L = [f's_mov_b32 s{sPX+2}, 0x200000', f's_mov_b32 s{sPQ+2}, 0x400000'] + pf_loads() + ['s_nop 1']
    for n in range(4):
        Vl, Sl = epi_part(par, ptype, n)
        h = len(Vl) // 2
        L += Vl[:h] + [Sl[0]] + Vl[h:] + [Sl[1]]
    return L

def gen_k1(T=int(os.environ.get('K1_T', 4))):
    name = 'k1_kernel'
    L = []
    a = L.append
    a(f'.p2align 8\n.type {name},@function\n{name}:')
    a('s_cmp_ge_u32 s2, 256'); a('s_cbranch_scc1 K1_END')
    if os.environ.get('CPF', '1') == '1': L += code_prefetch('k1_kernel', 'CODE_END', 'K1', 98, 99, 90, 16)
    a('s_load_dwordx16 s[4:19], s[0:1], 0'); a('s_load_dwordx8 s[20:27], s[0:1], 64')
    a('v_lshrrev_b32 v1, 6, v0'); a('v_and_b32 v0, 63, v0')
    a(f'v_readfirstlane_b32 s{sWave}, v1')
    if DIAG: a('s_mov_b32 s72, 0'); a('v_mov_b32 v31, 0'); a('v_mov_b32 v29, 0'); L += stamp()
    nj = 32 // T
    lt = T.bit_length() - 1
    a(f's_and_b32 s{sT0}, s2, 7'); a(f's_lshr_b32 s{sT1}, s2, 3')
    ng = 8 // T
    a(f's_and_b32 s{sT2}, s{sT0}, {ng-1}'); a(f's_lshl_b32 s{sT2}, s{sT2}, {lt}')
    a(f's_and_b32 s{sBlk}, s{sT1}, {T-1}'); a(f's_add_u32 s{sBlk}, s{sBlk}, s{sT2}')
    a(f's_lshr_b32 s{sT0}, s{sT0}, {ng.bit_length()-1}'); a(f's_mul_i32 s{sT0}, s{sT0}, {nj}')
    a(f's_lshr_b32 s{sT1}, s{sT1}, {lt}'); a(f's_add_u32 s{sT0}, s{sT0}, s{sT1}')
    a(f's_lshl_b32 s94, s{sT0}, 2')
    a(f's_cmp_eq_u32 s{sT0}, 31'); a('s_cbranch_scc1 K1_RELAY')
    a(f's_and_b32 s{sJ7}, s{sT0}, 7'); a(f's_lshl_b32 s{sJ7}, s{sJ7}, 7')
    a(f's_lshl_b32 s{sXoff}, s{sBlk}, 18'); a(f's_lshl_b32 s{sT1}, s{sWave}, 16'); a(f's_add_u32 s{sXoff}, s{sXoff}, s{sT1}')
    a(f's_lshl_b32 s{sBlk}, s{sBlk}, 3'); a(f's_lshl_b32 s{sT1}, s{sWave}, 1'); a(f's_add_u32 s{sBlk}, s{sBlk}, s{sT1}')
    a(f's_mul_i32 s{sT1}, s{sT0}, 79'); a(f's_lshr_b32 s{sT1}, s{sT1}, 10')
    a(f's_mul_i32 s{sT2}, s{sT1}, 13'); a(f's_sub_u32 s{sT2}, s{sT0}, s{sT2}')
    a(f's_lshl_b32 s{sPf}, s{sT2}, 19'); a(f's_lshr_b32 s{sGc}, s{sXoff}, 2'); a(f's_add_u32 s{sPf}, s{sPf}, s{sGc}')
    a(f's_mov_b32 s{sRem}, 5')
    a(f's_cmp_eq_u32 s{sT2}, 12'); a(f's_cselect_b32 s{sRem}, 4, s{sRem}')
    a(f's_cmp_eq_u32 s{sT0}, 30'); a(f's_cselect_b32 s{sRem}, 4, s{sRem}')
    a(f's_mul_i32 s{sT2}, s{sT2}, 5')
    a(f's_lshl_b32 s{sGc}, s{sT1}, 6'); a(f's_add_u32 s{sGc}, s{sGc}, s{sT2}')
    a(f's_lshl_b32 s{sM0W}, s{sWave}, 12')
    a(f's_lshl_b32 s{sM0X}, s{sWave}, 14'); a(f's_add_u32 s{sM0X}, s{sM0X}, {XBASE}')
    a(f's_lshl_b32 s{sM0X2}, s{sWave}, 13'); a(f's_add_u32 s{sM0X2}, s{sM0X2}, 65536')
    a(f'v_lshlrev_b32 v{vSt}, 4, v0')
    t = [100, 101, 102, 103, 104]
    a(f'v_lshrrev_b32 v{t[0]}, 3, v0'); a(f'v_lshlrev_b32 v{t[1]}, 10, v{t[0]}')
    a(f'v_lshrrev_b32 v{t[2]}, 4, v0'); a(f'v_and_b32 v{t[3]}, 7, v0'); a(f'v_xor_b32 v{t[2]}, v{t[2]}, v{t[3]}')
    for q in range(4):
        a(f'v_xor_b32 v{t[4]}, {4*(q&1)}, v{t[2]}'); a(f'v_lshl_add_u32 v{t[4]}, v{t[4]}, 4, v{t[1]}'); a(f'v_add_u32 v{vXd+q}, {q*7168}, v{t[4]}')
    a(f'v_and_b32 v{t[0]}, 15, v0'); a(f'v_lshrrev_b32 v{t[1]}, 4, v0'); a(f'v_bfe_u32 v{t[2]}, v0, 1, 3')
    a(f'v_lshlrev_b32 v{t[0]}, 7, v{t[0]}')
    for kbl in range(2):
        a(f'v_add_u32 v{t[4]}, {4*kbl}, v{t[1]}'); a(f'v_xor_b32 v{t[4]}, v{t[4]}, v{t[2]}'); a(f'v_lshl_add_u32 v{t[4]}, v{t[4]}, 4, v{t[0]}')
        a(f'v_add_u32 v{vXr+kbl}, s{sM0X}, v{t[4]}'); a(f'v_add_u32 v{vXr2+kbl}, s{sM0X2}, v{t[4]}')
    a(f'v_bfe_u32 v{t[0]}, v0, 2, 2'); a(f'v_lshrrev_b32 v{t[1]}, 4, v0'); a(f'v_lshl_add_u32 v{t[1]}, v{t[1]}, 3, v{t[0]}'); a(f'v_lshlrev_b32 v{t[1]}, 7, v{t[1]}')
    a(f'v_and_b32 v{t[2]}, 3, v0'); a(f'v_lshl_add_u32 v{t[1]}, v{t[2]}, 3, v{t[1]}')
    a(f'v_bfe_u32 v{t[2]}, v0, 3, 2')
    for ft in range(4):
        a(f'v_xor_b32 v{t[3]}, {ft}, v{t[2]}'); a(f'v_lshl_add_u32 v{vWl+ft}, v{t[3]}, 5, v{t[1]}'); a(f'v_mov_b32 v{vWr+ft}, v{vWl+ft}')
    a('s_waitcnt lgkmcnt(0)')
    a(f's_mov_b32 s{sWS}, s26'); a(f's_mov_b32 s{sWS+1}, s27'); a(f's_mov_b32 s{sWS+2}, 0x10000000'); a(f's_mov_b32 s{sWS+3}, 0x20000')
    a(f's_mov_b32 s{sW+3}, 0x20000'); a(f's_mov_b32 s{sACT+2}, 0x200000'); a(f's_mov_b32 s{sACT+3}, 0x20000')
    L += pf_setup()
    a(f's_cmp_eq_u32 s{sT1}, 0'); a(f's_cselect_b64 {sr(sW,2)}, s[10:11], s[12:13]'); a(f's_cselect_b32 s{sScl}, {f32(CA)}, 1.0')
    a(f's_cmp_eq_u32 s{sT1}, 2'); a(f's_cselect_b64 {sr(sW,2)}, s[18:19], {sr(sW,2)}'); a(f's_cselect_b64 {sr(sACT,2)}, s[16:17], s[6:7]')
    a(f's_movk_i32 s{sLdw}, 8192'); a(f's_cselect_b32 s{sLdw}, 3072, s{sLdw}')
    a(f's_mov_b32 s{sWsz}, 0x400000'); a(f's_cselect_b32 s{sWsz}, 0x180000, s{sWsz}')
    a(f's_lshl_b32 s{sLdw128}, s{sLdw}, 7')
    a(f'v_lshrrev_b32 v{t[0]}, 3, v0'); a(f'v_mul_lo_u32 v{t[0]}, v{t[0]}, s{sLdw}')
    a(f'v_bfe_u32 v{t[1]}, v0, 4, 1'); a(f'v_lshlrev_b32 v{t[1]}, 1, v{t[1]}'); a(f'v_and_b32 v{t[2]}, 7, v0'); a(f'v_xor_b32 v{t[1]}, v{t[1]}, v{t[2]}')
    a(f's_lshl_b32 s{sT1}, s{sLdw}, 3'); a(f's_sub_u32 s{sT1}, s{sT1}, 1024')
    for q in range(4):
        a(f'v_xor_b32 v{t[2]}, {4*(q&1)}, v{t[1]}'); a(f'v_lshl_add_u32 v{vWd+q}, v{t[2]}, 4, v{t[0]}')
        if q < 3: a(f'v_add_u32 v{t[0]}, s{sT1}, v{t[0]}')
    a(f's_sub_u32 s{sGcL}, s{sGc}, 1'); a(f's_add_u32 s{sRemL}, s{sRem}, 1')
    a(f's_mov_b32 s{sSW}, 0'); a(f's_mov_b32 s{sSR}, 16384')
    pro = load_params()
    xpf = [f'v_lshlrev_b32 v97, 10, v0', f's_add_u32 s{sT1}, s{sXoff}, s{sJ7}', f'buffer_load_dword v96, v97, {sr(sACT,4)}, s{sT1} offen ; nodep'] if XPF else []
    if XPF == 1: pro = xpf + pro
    pro += w_dma(0, True) + x_dma(0) + (xpf if XPF == 2 else []) + x_dma(1) + comp_params()
    if os.environ.get('K1_TOUCH'):
        pro += [f'v_add_u32 v100, s{sGc}, v0',
                'v_lshrrev_b32 v101, 1, v100', 'v_lshlrev_b32 v101, 19, v101', 'v_and_b32 v102, 1, v100', 'v_lshl_add_u32 v101, v102, 12, v101',
                f's_lshl_b32 s{sT1}, s{sBlk}, 13', f'v_add_u32 v101, s{sT1}, v101',
                'v_subrev_u32 v102, 128, v100', 'v_lshlrev_b32 v102, 18, v102', f's_lshl_b32 s{sT1}, s{sBlk}, 12', f's_add_u32 s{sT1}, s{sT1}, {BWS}', f'v_add_u32 v102, s{sT1}, v102',
                'v_cmp_lt_u32 vcc, 127, v100', 's_nop 1', 'v_cndmask_b32 v101, v101, v102, vcc',
                f'v_cmp_gt_u32 vcc, s{sRem}, v0', 's_nop 1', 's_mov_b64 exec, vcc',
                f'buffer_store_dword v100, v101, {sr(sWS,4)}, 0 offen{STORE_FLAGS}', 's_mov_b64 exec, -1']
    pro += [';VMNEED X0', 's_barrier']
    pro += [w_read(i) for i in range(4)] + [x_read(0, 0, tt) for tt in range(4)] + [w_read(i) for i in range(4, D // 2)]
    pro += [x_read(0, 1, tt) for tt in range(4)]
    pro += x_dma(2)
    pro = auto_waits([], pro)
    L += pro
    L += stamp()
    a(f's_cmp_eq_u32 s{sType}, 1'); a('s_cbranch_scc1 K1_F1')
    code = {}
    for t_ in range(2):
        code['F', t_] = auto_waits(pro, build_pass(t_, 0, True, None))
    combos = [(0, 0), (1, 1), (1, 0)]
    for t_, pt in combos:
        for par in range(2):
            raw = build_pass(t_, par, False, pt)
            c1 = auto_waits(pro + code['F', 0], raw)
            c2 = auto_waits(code['F', 0] + c1, raw)
            c3 = auto_waits(c1 + c2, raw)
            code['P', t_, pt, par] = merge_min([c1, c2, c3])
    uid = [0]
    def tail(t_, par):
        x = stamp() + [f's_cmp_eq_u32 s{sRem}, 0', f's_cbranch_scc1 K1_FIN{t_}{par}']
        if PFM == 3:
            uid[0] += 1
            x += [f's_cmp_lg_u32 s{sRem}, 1', f's_cbranch_scc1 K1_NPF{uid[0]}', 's_call_b64 s[88:89], K1_PFL', f'K1_NPF{uid[0]}:']
        if t_ == 1: return x + [f's_branch K1_P11{par^1}']
        return x + [f's_cmp_eq_u32 s{sType}, 1', f's_cbranch_scc1 K1_P10{par^1}', f's_branch K1_P00{par^1}']
    for t_ in range(2):
        a(f'.p2align 6\nK1_F{t_}:'); L += code['F', t_] + tail(t_, 0)
    for t_, pt in combos:
        for par in range(2):
            a(f'.p2align 6\nK1_P{t_}{pt}{par}:'); L += code['P', t_, pt, par] + tail(t_, par)
    for t_ in range(2):
        for par in range(2):
            a(f'K1_FIN{t_}{par}:'); L += final_epi(par, t_); a('s_branch K1_END2')
    a('K1_RELAY:'); L += relayout_job()
    if PFM == 3:
        a('K1_PFL:'); L += pf_local() + ['s_setpc_b64 s[88:89]']
    a('K1_END:'); a('s_endpgm')
    a('K1_END2:')
    if DIAG:
        L += stamp()
        if not FUSE: a('s_waitcnt vmcnt(0)')
        L += stamp()
        L += dstore(31, 30, 29, sWave, sWS, 200)
    if FUSE: a('s_waitcnt vmcnt(8) lgkmcnt(0)')
    else: a('s_endpgm')
    check_trace(pro + code['F', 0] + tail(0, 0) + code['P', 0, 0, 1] + tail(0, 1) + code['P', 1, 0, 0] + tail(1, 0) + code['P', 1, 1, 1] + tail(1, 1) + final_epi(1, 1), 'k1a')
    check_trace(pro + code['F', 1] + tail(1, 0) + code['P', 1, 1, 1] + tail(1, 1) + final_epi(1, 1), 'k1b')
    return L, kdesc(name, 512, 256), f'; @launch kernel={name} grid=(256,1,1) block=(256,1,1) lds=163840'
```

```python
from lib import *
from layout import *
import os, struct, math
def f32(x): return '0x%08x' % struct.unpack('<I', struct.pack('<f', x))[0]
DIAG = os.environ.get('DIAG')
FUSE = int(os.environ.get('FUSE', 1))
sDB = 80
KVF = os.environ.get('K2_KVF', '')
SF = os.environ.get('K2_SF', ' sc1')
THR = 2.0 ** float(os.environ.get('THR', 40.0))
NEGBIG = -1.0e30
D = 24
MF = 'v_mfma_f32_16x16x32_bf16'
vL16, vRd, vq, vBig, vd, vl, vt, vT = 1, 2, 4, 5, 6, 8, 12, 16
NM = 20
vDl = 36
vDG = 44
S0, P0, Q0, TMPV = 48, 112, 144, 208
O0, FR = 0, 128
sWS, sX, sWQ, sWO, sWB = 8, 12, 16, 60, 64
sW, sH, sI, sK, sV, sSR, sSW, sCnt, sKc, sMq, sRet, sT, sMk, sW2, sW4 = 20, 21, 22, 23, 24, 25, 26, 27, 28, 29, 30, 32, 40, 48, 49
sW2K, sW4K = 58, 59
sXa, sXb, sWo, sXs = 50, 51, 52, 53

def stamp(): return dstamp(vDG, vDG + 1, vDG + 2) if DIAG else []
def Sr(par, idx): return S0 + 32 * par + 4 * idx
def Pr(par, u): return P0 + 16 * par + 4 * u
def Or(qt, dt): return O0 + 32 * qt + 4 * dt
def Qr(qt, db): return Q0 + 16 * qt + 4 * db
def slot(g): return FR + 4 * ((g // 2) % 16)
def tq(t, idx): return (idx & 3) if t == 'c' else 2 + (idx & 1)
def tkt(t, idx): return (idx >> 2) if t == 'c' else (idx >> 1)
def tP(t, idx):
    if t == 'c': return idx & 3, idx >> 2
    kt = idx >> 1
    return 2 * (kt >> 1) + (idx & 1), kt & 1

def pv_frags(t):
    if t == 'c': return [(4 * dt, dt * 1024) for dt in range(8)]
    return [(4 * dt + 2 * kb, kb * 8192 + dt * 1024) for dt in range(8) for kb in range(2)]
def koff(kt, db): return (kt >> 1) * 8192 + (2 * db + (kt & 1)) * 1024
def qk_frags(t):
    if t == 'c': return [(32 + 16 * kt + 4 * db, 16384 + koff(kt, db)) for kt in range(2) for db in range(4)]
    return [(32 + 8 * kt + 2 * db, 16384 + koff(kt, db)) for kt in range(4) for db in range(4)]
def rd(g, off, par): return f'ds_read_b128 {ar(slot(g),4)}, v{vRd+par} offset:{off}'

def pv_mfmas(t, par):
    out = []
    for dt in range(8):
        for x in range(4):
            if t == 'c': qt, u, g = x, x, 4 * dt
            else: qt, u, g = 2 + (x & 1), x, 4 * dt + 2 * (x >> 1)
            o = Or(qt, dt)
            out.append(f'{MF} {ar(o,4)}, {ar(slot(g),4)}, {vr(Pr(par,u),4)}, {ar(o,4)}')
    return out
def qk_mfmas(t, par, czero=False, fr=None):
    out = []
    nkt, nq = (2, 4) if t == 'c' else (4, 2)
    for kt in range(nkt):
        for db in range(4):
            g = 32 + (16 * kt + 4 * db if t == 'c' else 8 * kt + 2 * db)
            f = ar(slot(g), 4) if fr is None else fr(kt, db)
            for x in range(nq):
                idx = nq * kt + x; qt = tq(t, idx); s = Sr(par, idx)
                c = vr(s, 4) if db else ('0' if czero else vr(NM + 4 * qt, 4))
                out.append(f'{MF} {vr(s,4)}, {f}, {vr(Qr(qt,db),4)}, {c}')
    return out

def mask_ops(par, t, k, dyn=None):
    L = []
    src = f's{dyn}' if dyn is not None else str(32 * k)
    L += [f'v_subrev_u32 v{vd}, {src}, v{vq}', f'v_add_u32 v{vd+1}, 16, v{vd}']
    tiles = [i for i in range(8) if (t == 's' or (i & 3) < 2)]
    for idx in tiles:
        s = Sr(par, idx); kt = tkt(t, idx); qq = idx & 1
        for j in range(4): L.append(f'v_cmp_gt_i32 {sr(sMk+2*j,2)}, {16*kt+j}, v{vd+qq}')
        for j in range(4): L.append(f'v_cndmask_b32 v{s+j}, v{s+j}, v{vBig}, {sr(sMk+2*j,2)}')
    return L

def exp_ops(par, t):
    L = []; seen = set()
    def tail(idx):
        s = Sr(par, idx); qt = tq(t, idx); u, h = tP(t, idx); a = vt + qt
        if qt not in seen:
            seen.add(qt); x = [f'v_add_f32 v{a}, v{s}, v{s+1}']
        else: x = [f'v_add_f32 v{a}, v{a}, v{s}', f'v_add_f32 v{a}, v{a}, v{s+1}']
        p = Pr(par, u) + 2 * h
        return x + [f'v_cvt_pk_bf16_f32 v{p}, v{s}, v{s+1}', f'v_add_f32 v{a}, v{a}, v{s+2}', f'v_add_f32 v{a}, v{a}, v{s+3}', f'v_cvt_pk_bf16_f32 v{p+1}, v{s+2}, v{s+3}']
    prev = None
    for idx in range(8):
        s = Sr(par, idx)
        e = [f'v_exp_f32 v{s+j}, v{s+j}' for j in range(4)]
        tl = tail(prev) if prev is not None else []
        L += [e[0]] + tl[:2] + [e[1]] + tl[2:4] + [e[2]] + tl[4:] + [e[3]]
        prev = idx
    L += ['s_nop 0'] + tail(prev)
    return L
def lupd(t): return [f'v_add_f32 v{vl+q}, v{vl+q}, v{vt+q}' for q in ((0, 1, 2, 3) if t == 'c' else (2, 3))]
def chk(t):
    if t == 'c': L = [f'v_max3_f32 v{vT}, v{vt}, v{vt+1}, v{vt+2}', f'v_max_f32 v{vT}, v{vT}, v{vt+3}']
    else: L = [f'v_max_f32 v{vT}, v{vt+2}, v{vt+3}']
    return L + [f'v_cmp_nge_f32 vcc, {f32(THR)}, v{vT}']

def dma_part(kind, t, tag):
    so = sV if kind == 'V' else sK
    w = (sW4 if t == 's' else sW2) if kind == 'V' else (sW4K if t == 's' else sW2K)
    n = 4 if t == 's' else 2
    items = [[f's_add_u32 m0, s{sSW}, s{w} ; tag={tag}']]
    for q in range(n):
        items.append([f'buffer_load_dwordx4 v{vL16}, {sr(sWS,4)}, s{so} offen offset:{q*1024}{KVF} lds ; tag={tag}'])
    items.append([f's_add_u32 s{so}, s{so}, {n*4096}'])
    return items
def flat(L):
    o = []
    for x in L:
        if isinstance(x, list): o += flat(x)
        else: o.append(x)
    return o

STUBS = []
def body(par, pv, sm, qk, nxt_pv, vload, kload, mask, uid):
    psm = par ^ 1
    mf = []
    if pv: mf += pv_mfmas(pv, par)
    if qk: mf += qk_mfmas(qk, par)
    ng = len(mf)
    pre = {}
    def P(g, x): pre.setdefault(g, []).extend(x if isinstance(x, list) else [x])
    frs = (pv_frags(pv) if pv else []) + (qk_frags(qk) if qk else [])
    for g, off in frs:
        if g - D >= 0: P(g - D, rd(g, off, par))
    for g0 in range(0, ng, 8):
        need = [ar(slot(g), 4) for g, off in frs if g0 <= g < g0 + 8]
        P(g0 - 1 if g0 else (0, 'before'), ';NEED ' + ' '.join(need))
    if nxt_pv:
        gb = ng - D
        P(gb - 1, [f';VMNEED U{par^1}', 's_barrier'])
        for g, off in pv_frags(nxt_pv):
            if g < D: P(ng + g - D, rd(g, off, par ^ 1))
    items = []
    if vload: items += dma_part('V', vload, f'U{par}')
    if kload: items += dma_part('K', kload, f'U{par}')
    if nxt_pv: items += [[f's_add_u32 s{sSR}, s{sSR}, 32768'], [f's_and_b32 s{sSR}, s{sSR}, 0x1ffff']]
    if vload or kload: items += [[f's_add_u32 s{sSW}, s{sSW}, 32768'], [f's_and_b32 s{sSW}, s{sSW}, 0x1ffff']]
    if sm:
        items += [[f's_add_u32 s{sKc}, s{sKc}, {8192 if pv == "c" else 16384}'], [f's_mov_b32 s{sMq}, {32*mask if mask is not None else -4096}']]
    free = [g for g in range(1, ng) if g not in pre and not (g == ng - 1)]
    lim = (ng - D - 2) if nxt_pv else ng - 2
    gi = 0; lastd = -9
    for it in items:
        isd = it[0].startswith('buffer')
        while gi < len(free) and (isd and free[gi] - lastd < DSP): gi += 1
        g = free[gi]; gi += 1
        if isd:
            lastd = g
        P(g, it)
    Pq = []; Eq = []
    if nxt_pv: Pq.append(f'v_add_u32 v{vRd+(par^1)}, s{sSR}, v{vL16}')
    if pv: Pq += lupd(pv)
    if sm:
        if mask is not None: Pq += mask_ops(psm, sm, mask)
        for x in exp_ops(psm, sm):
            if x.startswith('v_exp'): Eq.append(x)
            elif x.startswith('v_'): Pq.append(x)
        Pq += chk(sm)
    cap = {}
    for g in range(ng):
        n = sum(2 if x.startswith(('buffer', 'ds_')) else 1 for x in pre.get(g, []))
        cap[g] = max(0, 2 - max(0, n - 1))
    last = ng - 2
    total = 2 * len(Eq) + len(Pq)
    def sched(extra):
        cp = dict(cap)
        for k in range(extra): cp[(k * (last + 1) // max(extra, 1)) % (last + 1)] += 1
        val = {}; pi = ei = 0
        eiss = {}
        ereg = [Ins(x).w for x in Eq]; allE = set().union(*ereg) if ereg else set()
        pend_mask = {}
        for k, x in enumerate(Pq):
            if x.startswith('v_cndmask'):
                for r in Ins(x).w: pend_mask[r] = k
        for g in range(last + 1):
            sl = cp[g]
            while sl > 0:
                if ei < len(Eq) and sl >= 2 and all(pend_mask.get(r, -1) < pi for r in ereg[ei]):
                    val.setdefault(g, []).append(Eq[ei])
                    for r in ereg[ei]: eiss[r] = g
                    ei += 1; sl -= 2; continue
                if pi < len(Pq):
                    x = Pq[pi]; ins = Ins(x)
                    ok = x.startswith('v_cndmask') or all(eiss.get(r, 999) < g for r in ins.r & allE)
                    if ok:
                        val.setdefault(g, []).append(x); pi += 1; sl -= 1; continue
                break
        return val, (len(Eq) - ei) + (len(Pq) - pi)
    extra = 0
    while True:
        val, left = sched(extra)
        if left == 0: break
        extra += 1
    if os.environ.get('VERB'): print(uid, 'valu', total, 'avail', sum(cap[g] for g in range(last + 1)), 'extra', extra)
    if sm:
        pre.setdefault(ng - 1, []).extend([f's_cbranch_vccnz K2_S_{uid}', f'K2_R_{uid}:'])
        STUBS.extend([f'K2_S_{uid}:', f's_call_b64 {sr(sRet,2)}, K2_RARE_{psm}{sm}{qk or "n"}', f's_branch K2_R_{uid}'])
        RARES.add((psm, sm, qk or 'n'))
    return weave(mf, pre, val)
RARES = set()
DSP = int(os.environ.get('K2_DSP', 3))

def xlane(op, r, tmp):
    return [f'v_mov_b32 v{tmp}, v{r}', 's_nop 1', f'v_permlane32_swap_b32 v{r}, v{tmp}', f'{op} v{r}, v{r}, v{tmp}',
            f'v_mov_b32 v{tmp}, v{r}', 's_nop 1', f'v_permlane16_swap_b32 v{r}, v{tmp}', f'{op} v{r}, v{r}, v{tmp}']
def deltas(par, t, clamp):
    L = []
    qs = (0, 1, 2, 3) if t == 'c' else (2, 3)
    for q in qs:
        regs = [Sr(par, i) + j for i in range(8) if tq(t, i) == q for j in range(4)]
        L.append(f'v_max_f32 v{vDl+q}, v{regs[0]}, v{regs[1]}')
        for k in range(2, len(regs), 2): L.append(f'v_max3_f32 v{vDl+q}, v{vDl+q}, v{regs[k]}, v{regs[k+1]}')
        L += xlane('v_max_f32', vDl + q, vT) + [f'v_ceil_f32 v{vDl+q}, v{vDl+q}']
        if clamp: L.append(f'v_max_f32 v{vDl+q}, 0, v{vDl+q}')
    return L
def sub_tiles(par, t): return [f'v_sub_f32 v{Sr(par,i)+j}, v{Sr(par,i)+j}, v{vDl+tq(t,i)}' for i in range(8) for j in range(4)]

def rare(par, t, tn):
    L = [f'K2_RARE_{par}{t}{tn}:', 's_nop 7', 's_nop 7']
    nkt = 2 if t == 'c' else 4
    R = []
    mf = qk_mfmas(t, par, fr=lambda kt, db: vr(TMPV + 16 * (kt & 1) + 4 * db, 4))
    per = len(mf) // nkt
    for k0 in range(0, nkt, 2):
        R.append(f's_add_u32 s{sT+4}, s{sKc}, {k0*4096}'); R.append(f's_add_u32 s{sT+5}, s{sT+4}, 4096')
        for kt in range(2):
            for db in range(4):
                o = (2 * db + kt) * 1024
                R.append(f'buffer_load_dwordx4 {vr(TMPV+16*kt+4*db,4)}, v{vL16}, {sr(sWS,4)}, s{sT+4+(o>>12)} offen offset:{o&4095}')
        R.append('s_waitcnt vmcnt(0)')
        R += mf[per*k0:per*(k0+2)] + ['s_nop 7']
    R += mask_ops(par, t, None, dyn=sMq) + deltas(par, t, True)
    if t == 's': R += [f'v_mov_b32 v{vDl}, 0', f'v_mov_b32 v{vDl+1}, 0']
    R += sub_tiles(par, t)
    if tn != 'n': R += sub_tiles(par ^ 1, tn)
    for q in range(4):
        for j in range(4): R.append(f'v_sub_f32 v{NM+4*q+j}, v{NM+4*q+j}, v{vDl+q}')
        R.append(f'v_exp_f32 v{vDl+4+q}, -v{vDl+q}')
    R += exp_ops(par, t)
    for q in range(4): R.append(f'v_mul_f32 v{vl+q}, v{vl+q}, v{vDl+4+q}')
    for q in ((0, 1, 2, 3) if t == 'c' else (2, 3)):
        for j0 in range(0, 32, 8):
            for j in range(8): R.append(f'v_accvgpr_read_b32 v{TMPV+j}, a{Or(q,0)+j0+j}')
            for j in range(8): R.append(f'v_mul_f32 v{TMPV+j}, v{TMPV+j}, v{vDl+4+q}')
            for j in range(8): R.append(f'v_accvgpr_write_b32 a{Or(q,0)+j0+j}, v{TMPV+j}')
    R += ['s_nop 1', f's_setpc_b64 {sr(sRet,2)}']
    check_trace(R, f'rare{par}{t}{tn}', bool(os.environ.get('VERB')))
    return L + R

K = 1024
XS = [[32*K, 48*K, 8*K, 24*K], [40*K, 56*K, 88*K, 96*K], [0, 16*K, 80*K, 112*K]]
WSL = [64*K, 144*K, 128*K]
vXd, vWd, vXr, vWr = 208, 212, 216, 222
QACC = 48
XF, WFq = 0, 64
def qacc(ft, tt): return QACC + 4 * (4 * ft + tt)
def xf(c, kbl, tt): return XF + 32 * (c & 1) + 16 * kbl + 4 * tt
def wf(c, kbl, ft): return WFq + 64 * (c & 1) + 32 * kbl + 4 * ft
def q_dma(c):
    sl = c % 3
    it = []
    for ab, so in enumerate((sXa, sXb)):
        it.append([f's_add_u32 m0, s{sXs+sl}, {ab*4096} ; tag=C{c}', f's_add_u32 s{sT}, s{so}, {c*128}'])
        for q in range(4): it.append([f'buffer_load_dwordx4 v{vXd+q}, {sr(sX,4)}, s{sT} offen offset:{q*1024} lds ; tag=C{c}'])
    it.append([f's_add_u32 m0, s{sW4}, {WSL[sl]} ; tag=C{c}', f's_add_u32 s{sT}, s{sWo}, {c*64*8192}'])
    for q in range(4): it.append([f'buffer_load_dwordx4 v{vWd+q}, {sr(sWQ,4)}, s{sT} offen offset:{q*1024} lds ; tag=C{c}'])
    return it
def q_reads(c):
    sl = c % 3
    L = []
    for kbl in range(2):
        for tt in range(4): L.append(f'ds_read_b128 {ar(xf(c,kbl,tt),4)}, v{vXr+2*sl+kbl} offset:{tt*2048}')
        for ft in range(8):
            for p in range(2):
                off = WSL[sl] - 128*K * (sl > 0) + (32 * kbl + 4 * p) * 256
                L.append(f'ds_read_b64_tr_b16 {ar(wf(c,kbl,ft)+2*p,2)}, v{vWr+ft+8*(sl>0)} offset:{off - (64*K if sl == 0 else 0)}')
    return L
def q_setup():
    t = [240, 241, 242, 243, 244]
    L = []
    a = L.append
    a(f's_lshl_b32 s{sXa}, s{sI}, 17'); a(f's_lshl_b32 s{sT}, s{sW}, 15'); a(f's_sub_u32 s{sXb}, {15*128*1024}, s{sXa}')
    a(f's_add_u32 s{sXa}, s{sXa}, s{sT}'); a(f's_add_u32 s{sXb}, s{sXb}, s{sT}')
    a(f's_lshl_b32 s{sWo}, s{sH}, 8'); a(f's_lshl_b32 s{sT}, s{sW}, 17'); a(f's_add_u32 s{sWo}, s{sWo}, s{sT}')
    for sl in range(3):
        a(f's_mov_b32 s{sXs+sl}, {XS[sl][0]}')
        for w in range(1, 4):
            a(f's_cmp_eq_u32 s{sW}, {w}'); a(f's_cselect_b32 s{sXs+sl}, {XS[sl][w]}, s{sXs+sl}')
    a(f'v_lshrrev_b32 v{t[0]}, 3, v0'); a(f'v_lshlrev_b32 v{t[1]}, 10, v{t[0]}')
    a(f'v_lshrrev_b32 v{t[2]}, 4, v0'); a(f'v_and_b32 v{t[3]}, 7, v0'); a(f'v_xor_b32 v{t[2]}, v{t[2]}, v{t[3]}')
    for q in range(4):
        a(f'v_xor_b32 v{t[4]}, {4*(q&1)}, v{t[2]}'); a(f'v_lshl_add_u32 v{t[4]}, v{t[4]}, 4, v{t[1]}'); a(f'v_add_u32 v{vXd+q}, {q*7168}, v{t[4]}')
    a(f'v_lshrrev_b32 v{t[0]}, 4, v0'); a(f'v_lshlrev_b32 v{t[1]}, 13, v{t[0]}'); a(f'v_lshlrev_b32 v{t[0]}, 1, v{t[0]}')
    a(f'v_and_b32 v{t[2]}, 15, v0'); a(f'v_xor_b32 v{t[2]}, v{t[2]}, v{t[0]}')
    for q in range(4):
        a(f'v_xor_b32 v{t[4]}, {8*(q>>1)}, v{t[2]}'); a(f'v_lshl_add_u32 v{t[4]}, v{t[4]}, 4, v{t[1]}'); a(f'v_add_u32 v{vWd+q}, {q*(4*8192-1024)}, v{t[4]}')
    return L
def q_setup2():
    t = [240, 241, 242, 243, 244]
    L = []; a = L.append
    a(f'v_and_b32 v{t[0]}, 15, v0'); a(f'v_lshrrev_b32 v{t[1]}, 4, v0'); a(f'v_bfe_u32 v{t[2]}, v0, 1, 3'); a(f'v_lshlrev_b32 v{t[0]}, 7, v{t[0]}')
    for kbl in range(2):
        a(f'v_add_u32 v{t[4]}, {4*kbl}, v{t[1]}'); a(f'v_xor_b32 v{t[4]}, v{t[4]}, v{t[2]}'); a(f'v_lshl_add_u32 v{t[4]}, v{t[4]}, 4, v{t[0]}')
        for sl in range(3): a(f'v_add_u32 v{vXr+2*sl+kbl}, s{sXs+sl}, v{t[4]}')
    a(f'v_bfe_u32 v{t[0]}, v0, 2, 2'); a(f'v_lshl_add_u32 v{t[1]}, v{t[1]}, 3, v{t[0]}'); a(f'v_lshlrev_b32 v{t[1]}, 8, v{t[1]}')
    a(f'v_and_b32 v{t[2]}, 3, v0'); a(f'v_lshl_add_u32 v{t[1]}, v{t[2]}, 3, v{t[1]}'); a(f'v_bfe_u32 v{t[2]}, v0, 2, 3')
    for ft in range(8):
        a(f'v_xor_b32 v{t[3]}, {ft}, v{t[2]}'); a(f'v_lshl_add_u32 v{t[3]}, v{t[3]}, 5, v{t[1]}')
        a(f'v_add_u32 v{vWr+ft}, {64*K}, v{t[3]}'); a(f'v_add_u32 v{vWr+8+ft}, {128*K}, v{t[3]}')
    return L

def a_loads(which):
    if which == 0:
        return [[f's_mov_b32 s{sSW}, 65536']] + dma_part('K', 'c', 'K0') + [[f's_mov_b32 s{sSW}, 98304']] + dma_part('K', 'c', 'K0') + \
               [[f's_mov_b32 s{sSW}, 0']] + dma_part('V', 'c', 'U0') + dma_part('K', 'c', 'U0')
    return [[f's_mov_b32 s{sSW}, 32768']] + dma_part('V', 'c', 'U1') + dma_part('K', 'c', 'U1') + [[f's_mov_b32 s{sSW}, 65536'], [f's_mov_b32 s{sSR}, 32768']]

def wo_dma_a():
    t = [240, 241, 242, 243]
    it = [[f'v_lshrrev_b32 v{t[0]}, 5, v0', f'v_bfe_u32 v{t[1]}, v0, 1, 4', f'v_xor_b32 v{t[1]}, v{t[1]}, v{t[0]}', f'v_and_b32 v{t[2]}, 1, v0', f'v_lshlrev_b32 v{t[2]}, 4, v{t[2]}',
           f'v_lshl_add_u32 v{t[2]}, v{t[0]}, 10, v{t[2]}'],
          [f's_lshr_b32 s{sT+4}, s2, 1', f's_lshl_b32 s{sT+4}, s{sT+4}, 15', f's_and_b32 s{sT+5}, s2, 1', f's_lshl_b32 s{sT+5}, s{sT+5}, 9'],
          [f's_add_u32 s{sT+4}, s{sT+4}, s{sT+5}', f's_lshl_b32 s{sT+5}, s{sW}, 13', f's_add_u32 s{sT+4}, s{sT+4}, s{sT+5}']]
    for q in range(4):
        it.append([f'v_xor_b32 v{t[3]}, {2*q}, v{t[1]}', f'v_lshl_add_u32 v{t[3]}, v{t[3]}, 5, v{t[2]}', f's_add_u32 m0, s{sW4}, {128*K} ; tag=WO', f's_add_u32 s{sT+5}, s{sT+4}, {q*1024}',
                   f'buffer_load_dwordx4 v{t[3]}, {sr(sWO,4)}, s{sT+5} offen offset:{q*1024} lds ; tag=WO'])
    return it
def wo_dma_b():
    t = [240, 241]
    return [f'v_lshrrev_b32 v{t[0]}, 2, v0', f'v_lshlrev_b32 v{t[0]}, 10, v{t[0]}', f'v_and_b32 v{t[1]}, 3, v0', f'v_lshl_add_u32 v{t[0]}, v{t[1]}, 4, v{t[0]}',
            f's_lshr_b32 s{sT+4}, s2, 4', f's_lshl_b32 s{sT+4}, s{sT+4}, 15', f's_and_b32 s{sT+5}, s2, 15', f's_lshl_b32 s{sT+5}, s{sT+5}, 6', f's_add_u32 s{sT+4}, s{sT+4}, s{sT+5}',
            f's_and_b32 s{sT+5}, s{sW}, 1', f's_lshl_b32 s{sT+6}, s{sT+5}, 14', f's_add_u32 s{sT+4}, s{sT+4}, s{sT+6}', f's_lshl_b32 s{sT+5}, s{sT+5}, 10',
            f's_add_u32 m0, s{sT+5}, {144*K} ; tag=WO', 's_nop 0', f'buffer_load_dwordx4 v{t[0]}, {sr(sWB,4)}, s{sT+4} offen lds ; tag=WO']
def wo_fin():
    R = TMPV; a0, a1, a2 = TMPV + 20, TMPV + 21, TMPV + 22; t0, t1 = sT + 4, sT + 5
    L = [f'v_lshrrev_b32 v{a0}, 2, v0', f'v_and_b32 v{a1}, 3, v0', f'v_lshlrev_b32 v{a1}, 3, v{a1}', f'v_lshl_add_u32 v{a2}, v{a0}, 6, v{a1}', f'v_lshl_add_u32 v{a1}, v{a0}, 9, v{a1}',
         f'v_add_u32 v{a1}, {128*K}, v{a1}', f'v_and_b32 v{a0}, 7, v{a0}', f's_lshl_b32 s{t0}, s{sW}, 2', f'v_xor_b32 v{a0}, s{t0}, v{a0}',
         f's_and_b32 s{t0}, s{sW}, 1', f's_lshl_b32 s{t0}, s{t0}, 5', f's_add_u32 s{t0}, s{t0}, {144*K}', f'v_add_u32 v{a2}, s{t0}, v{a2}']
    for x in range(4):
        L += [f'v_xor_b32 v{a0+4+x}, {x}, v{a0}', f'v_lshl_add_u32 v{a0+4+x}, v{a0+4+x}, 5, v{a1}']
        for p in range(2): L.append(f'ds_read_b64_tr_b16 {vr(R+4*x+2*p,2)}, v{a0+4+x} offset:{p*8192}')
    for p in range(2): L.append(f'ds_read_b64_tr_b16 {vr(R+16+2*p,2)}, v{a2} offset:{p*1024}')
    L += [f's_and_b32 s{t0}, s2, 1', f's_lshl_b32 s{t0}, s{t0}, 2', f's_add_u32 s{t0}, s{t0}, s{sW}', f's_mul_i32 s{t0}, s{t0}, {4*WOA_S}', f's_lshr_b32 s{t1}, s2, 1', f's_lshl_b32 s{t1}, s{t1}, 10',
          f's_add_u32 s{t0}, s{t0}, s{t1}', f's_add_u32 s{t0}, s{t0}, {WOA}']
    for x in range(4): L += [f'buffer_store_dwordx4 {vr(R+4*x,4)}, v{vL16}, {sr(sWS,4)}, s{t0} offen{SF}', f's_add_u32 s{t0}, s{t0}, {WOA_S}']
    L += [f's_and_b32 s{t0}, s2, 15', f's_lshl_b32 s{t0}, s{t0}, 1', f's_and_b32 s{t1}, s{sW}, 1', f's_add_u32 s{t0}, s{t0}, s{t1}', f's_mul_i32 s{t0}, s{t0}, {WOB_S}',
          f's_lshr_b32 s{t1}, s2, 4', f's_lshl_b32 s{t1}, s{t1}, 10', f's_add_u32 s{t0}, s{t0}, s{t1}', f's_add_u32 s{t0}, s{t0}, {WOB}',
          f'buffer_store_dwordx4 {vr(R+16,4)}, v{vL16}, {sr(sWS,4)}, s{t0} offen{SF}', 's_nop 0']
    return L

def qproj():
    QPF = int(os.environ.get('K2_QPF', 0))
    pf = [[f'v_lshlrev_b32 v245, 10, v0', f's_lshr_b32 s{sT+4}, s2, 3', f's_lshl_b32 s{sT+4}, s{sT+4}, 16'], [f's_lshl_b32 s{sT+5}, s{sW}, 7', f's_add_u32 s{sT+4}, s{sT+4}, s{sT+5}'],
          [f'buffer_load_dword v246, v245, {sr(sX,4)}, s{sT+4} offen offset:512 ; nodep'],
          [f'v_lshrrev_b32 v245, 1, v0', f'v_lshlrev_b32 v245, 13, v245', f'v_and_b32 v244, 1, v0', f'v_lshl_add_u32 v245, v244, 7, v245'],
          [f's_lshl_b32 s{sT+4}, s{sI}, 18', f's_lshl_b32 s{sT+5}, s{sH}, 8', f's_add_u32 s{sT+4}, s{sT+4}, s{sT+5}'], [f's_add_u32 s{sT+4}, s{sT+4}, {256*8192}'],
          [f'buffer_load_dword v246, v245, {sr(sWQ,4)}, s{sT+4} offen ; nodep']] if QPF else []
    L = q_setup() + (['s_barrier'] if FUSE else []) + flat(q_dma(0)) + flat(q_dma(1)) + q_setup2()
    L += [f's_lshl_b32 s{sT+4}, s{sH}, 19', f's_add_u32 s{sK}, s{sT+4}, {KWS}', f's_add_u32 s{sV}, s{sT+4}, {VWS}', f's_mov_b32 s{sKc}, s{sK}', f's_add_u32 s{sK}, s{sK}, s{sW2}', f's_add_u32 s{sV}, s{sV}, s{sW2}']
    L += [';VMNEED C0', 's_barrier'] + q_reads(0)
    if FUSE:
        L += [f's_cmp_lg_u32 s{sW}, 0', 's_cbranch_scc1 K2_NOSIG', 'v_mov_b32 v245, 1', 'v_mov_b32 v246, s94', 's_mov_b64 exec, 1',
              f'SKIP buffer_atomic_add v245, v246, {sr(sDB,4)}, 0 offen sc1', 's_mov_b64 exec, -1', 'K2_NOSIG:',
              f's_lshl_b32 s{sT+4}, s{sH}, 1', 'v_and_b32 v246, 1, v0', f'v_add_u32 v246, s{sT+4}, v246', 'v_mul_u32_u24 v246, 205, v246', 'v_lshrrev_b32 v246, 10, v246',
              'v_bfe_u32 v245, v0, 1, 1', 'v_mul_u32_u24 v245, 13, v245', 'v_add_lshl_u32 v246, v246, v245, 2']
    L += stamp()
    for c in range(8):
        mf = []; pre = {}
        def P(g, x): pre.setdefault(g, []).extend(x if isinstance(x, list) else [x])
        for kbl in range(2):
            for ft in range(8):
                for tt in range(4):
                    a = qacc(ft, tt)
                    cc = '0' if (c == 0 and kbl == 0) else vr(a, 4)
                    mf.append(f'{MF} {vr(a,4)}, {ar(wf(c,kbl,ft),4)}, {ar(xf(c,kbl,tt),4)}, {cc}')
        if c == 0:
            for g0 in range(0, 64, 8):
                kbl = g0 // 32
                P(g0 - 1 if g0 else (0, 'before'), f';NEED {ar(wf(0,kbl,(g0%32)//4),8)} {ar(xf(0,kbl,0),16)}')
            g = 0
            for it in q_dma(2) + (pf if QPF == 1 else []):
                if g % 8 == 7: g += 1
                P(g, it); g += 1
            gb = 26
        else:
            P((0, 'before'), f';NEED {ar(wf(c,0,0),32)} {ar(xf(c,0,0),16)}')
            P(23, ';LGKM0') if False else None
            gb = 0
        if 1 <= c <= 5: ex = ([[f'buffer_load_dword v247, v246, {sr(sDB,4)}, 0 offen sc1']] if FUSE and c == 5 else []) + q_dma(c + 2)
        elif c == 6:
            ex = a_loads(0)
            if FUSE:
                P((0, 'before'), ['v_cmp_gt_u32 vcc, 8, v247', 's_cbranch_vccnz K2_SLOWP', 'K2_POLLED:'])
                STUBS.extend(['K2_SLOWP:', f's_mov_b32 s{sT+4}, 0x80000', 'K2_SP1:', f'buffer_load_dword v247, v246, {sr(sDB,4)}, 0 offen sc1', 's_waitcnt vmcnt(0)',
                              'v_cmp_gt_u32 vcc, 8, v247', 's_cbranch_vccz K2_POLLED', 's_sleep 2', f's_sub_u32 s{sT+4}, s{sT+4}, 1', f's_cmp_lg_u32 s{sT+4}, 0', 's_cbranch_scc1 K2_SP1', 's_branch K2_POLLED'])
        elif c == 7: ex = a_loads(1) + wo_dma_a()
        else: ex = []
        if c < 7:
            P(gb, [f';VMNEED C{c+1}', 's_barrier'])
            rds = q_reads(c + 1)
            seq = []; nr, ne = len(rds), len(ex)
            ri = ei = 0
            while ri < nr or ei < ne:
                if ei < ne and (ri >= nr or ei * nr <= ri * ne): seq.append(ex[ei]); ei += 1
                else: seq.append(rds[ri]); ri += 1
            g0 = gb + 1
            for k, x in enumerate(seq): P(g0 + k * (63 - g0) // len(seq), x)
            if c >= 1: P(31, f';NEED {ar(wf(c,1,0),32)} {ar(xf(c,1,0),16)}')
        else:
            P(0, 's_barrier')
            P(31, f';NEED {ar(wf(c,1,0),32)} {ar(xf(c,1,0),16)}')
            P(60, [';VMNEED U0', 's_barrier', f'v_add_u32 v{vRd}, 65536, v{vL16}', f'v_add_u32 v{vRd+1}, 98304, v{vL16}'])
            for k, it in enumerate(ex): P(1 + k * 58 // len(ex), it)
        L += weave(mf, pre, {})
    return L

def a_prologue():
    L = []
    fr = qk_frags('c')
    L += [rd(g, off, 0) for g, off in fr] + [rd(g + 2, off, 1) for g, off in fr] + wo_dma_b()
    order = [3, 2, 1, 0]
    cv = []
    for db in order:
        for tt in range(4):
            t0, t1 = qacc(2 * db, tt), qacc(2 * db + 1, tt)
            dst = TMPV + 16 + 4 * tt if db == 3 else Qr(tt, db)
            cv += [f'v_cvt_pk_bf16_f32 v{dst}, v{t0}, v{t0+1}', f'v_cvt_pk_bf16_f32 v{dst+1}, v{t0+2}, v{t0+3}', f'v_cvt_pk_bf16_f32 v{dst+2}, v{t1}, v{t1+1}', f'v_cvt_pk_bf16_f32 v{dst+3}, v{t1+2}, v{t1+3}']
    for tt in range(4):
        for j in range(4): cv.append(f'v_mov_b32 v{Qr(tt,3)+j}, v{TMPV+16+4*tt+j}')
    z = [f'v_mov_b32 v{TMPV+j}, 0' for j in range(4)]
    L += z + ['s_nop 3'] + cv
    zm = [f'v_mfma_f32_32x32x16_bf16 {ar(16*k,16)}, {vr(TMPV,4)}, {vr(TMPV,4)}, 0' for k in range(8)]
    L += ['s_nop 0'] + qk_mfmas('c', 0, czero=True) + zm
    L += [f's_cmp_eq_u32 s{sI}, 0', f's_cselect_b32 s{sMq}, 0, -4096']
    L += mask_ops(0, 'c', None, dyn=sMq) + deltas(0, 'c', False)
    for q in range(4):
        for j in range(4): L.append(f'v_sub_f32 v{NM+4*q+j}, 0, v{vDl+q}')
    V = [f'v_mov_b32 v{vl+q}, 0' for q in range(4)] + sub_tiles(0, 'c') + exp_ops(0, 'c')
    mf2 = qk_mfmas('c', 1, fr=lambda kt, db: ar(slot(32 + 16 * kt + 4 * db + 2), 4))
    L += [f'v_mov_b32 v{vRd}, v{vL16}', ';LGKM0', 's_barrier']
    rds = [rd(g, off, 0) for g, off in pv_frags('c') if g < D]
    n = len(mf2)
    for k, m in enumerate(mf2):
        L.append(m)
        if k >= n - 2 * len(rds) and (n - k) % 2 == 0: L.append(rds[len(rds) - (n - k) // 2])
        L += V[len(V)*k//n:len(V)*(k+1)//n]
    return L

def fin_rows(which):
    t0, t1 = sT + 4, sT + 5
    q0 = 0 if which == 'a' else 2
    L = [f's_lshl_b32 s{t0}, s{sH}, 12', f's_add_u32 s{t0}, s{t0}, {CTX}', f's_mul_i32 s{t1}, s{sW}, {2*CTX_S}', f's_add_u32 s{t0}, s{t0}, s{t1}', f's_mul_i32 s{t1}, s{sI}, {8*CTX_S}']
    L += [f's_add_u32 s{t0}, s{t0}, s{t1}'] if which == 'a' else [f's_sub_u32 s{t0}, s{t0}, s{t1}', f's_add_u32 s{t0}, s{t0}, {120*CTX_S}']
    for q in (q0, q0 + 1):
        L += xlane('v_add_f32', vl + q, vT) + [f'v_rcp_f32 v{vl+q}, v{vl+q}']
    for q in (q0, q0 + 1):
        if q & 1: L.append(f's_add_u32 s{t0}, s{t0}, {CTX_S}')
        for h in range(2):
            r = TMPV + 16 * h; p = TMPV + 32 + 8 * h
            for j in range(16): L.append(f'v_accvgpr_read_b32 v{r+j}, a{Or(q,4*h)+j}')
            for j in range(16): L.append(f'v_mul_f32 v{r+j}, v{r+j}, v{vl+q}')
            for j in range(8): L.append(f'v_cvt_pk_bf16_f32 v{p+j}, v{r+2*j}, v{r+2*j+1}')
            for x in range(2): L.append(f'buffer_store_dwordx4 {vr(p+4*x,4)}, v{vL16}, {sr(sWS,4)}, s{t0} offen offset:{(2*h+x)*1024}{SF}')
    return L

def gen_k2():
    name = 'k2_kernel'
    L = []; a = L.append
    if not FUSE:
        a(f'.p2align 8\n.type {name},@function\n{name}:')
        a('s_cmp_ge_u32 s2, 256'); a('s_cbranch_scc1 K2_END')
        if os.environ.get('CPF', '1') == '1': L += code_prefetch('k2_kernel', 'k3_kernel', 'K2', 246, 247, 90, 8)
        a('s_load_dwordx2 s[4:5], s[0:1], 88'); a('s_load_dwordx2 s[6:7], s[0:1], 0'); a('s_load_dwordx2 s[56:57], s[0:1], 16'); a('s_load_dwordx2 s[68:69], s[0:1], 40'); a('s_load_dwordx2 s[76:77], s[0:1], 64')
        a('v_lshrrev_b32 v1, 6, v0'); a('v_and_b32 v0, 63, v0'); a(f'v_readfirstlane_b32 s{sW}, v1')
    else:
        for srd, p, n in ((sWO, 14, 0x400000), (sWB, 20, 0x80000), (sDB, 24, 256), (sWQ, 8, 0x400000), (sX, 4, 0x200000), (sWS, 26, 0x10000000)):
            a(f's_mov_b32 s{srd}, s{p}'); a(f's_mov_b32 s{srd+1}, s{p+1}'); a(f's_mov_b32 s{srd+2}, {hex(n)}'); a(f's_mov_b32 s{srd+3}, 0x20000')
        a(f's_mov_b32 s{sW}, s40')
    a(f'v_lshlrev_b32 v{vL16}, 4, v0')
    a(f's_and_b32 s{sH}, s2, 31'); a(f's_lshr_b32 s{sI}, s2, 5')
    a(f's_lshl_b32 s{sW2}, s{sW}, 11'); a(f's_lshl_b32 s{sW4}, s{sW}, 12'); a(f's_add_u32 s{sW2K}, s{sW2}, 16384'); a(f's_add_u32 s{sW4K}, s{sW4}, 16384')
    a(f'v_mov_b32 v{vBig}, {f32(NEGBIG)}')
    a(f'v_and_b32 v{vq}, 15, v0'); a(f'v_lshrrev_b32 v{vT}, 4, v0'); a(f'v_lshlrev_b32 v{vT}, 2, v{vT}'); a(f'v_sub_u32 v{vq}, v{vq}, v{vT}')
    a(f's_lshl_b32 s{sT}, s{sW}, 5'); a(f'v_add_u32 v{vq}, s{sT}, v{vq}')
    a('s_waitcnt lgkmcnt(0)')
    for srd, p, n in () if FUSE else ((sWS, 4, 0x10000000), (sX, 6, 0x200000), (sWQ, 56, 0x400000), (sWO, 68, 0x400000), (sWB, 76, 0x80000)):
        a(f's_mov_b32 s{srd}, s{p}'); a(f's_mov_b32 s{srd+1}, s{p+1}'); a(f's_mov_b32 s{srd+2}, {hex(n)}'); a(f's_mov_b32 s{srd+3}, 0x20000')
    if DIAG: a('s_mov_b32 s72, 0'); a(f'v_mov_b32 v{vDG}, 0'); a(f'v_mov_b32 v{vDG+2}, 0'); L += stamp()
    raw0 = qproj() + stamp() + a_prologue() + stamp()
    skip = [x for x in raw0 if x.startswith('SKIP ')]
    pre = auto_waits([], [x if not x.startswith('SKIP ') else '.L_skip0:' for x in raw0])
    L += [x if x != '.L_skip0:' else skip[0][5:] for x in pre]
    def two(uid, b0, b1): return body(0, *b0, uid + 'a') + body(1, *b1, uid + 'b')
    raw = {
     'CC': two('CC', ('c','c','c','c','c','c',None), ('c','c','c','c','c','c',None)),
     'X1': two('X1', ('c','c','c','c','c','c',None), ('c','c','c','c','c','c',0)),
     'X2': two('X2', ('c','c','c','c','c','s',1), ('c','c','c','c','c','s',2)),
     'X3': two('X3', ('c','c','s','c','s','s',3), ('c','s','s','s','s','s',None)) + wo_fin() + fin_rows('a'),
     'X3b': two('X3b', ('c','c','s','c','s',None,3), ('c','s','s','s','s',None,0)) + wo_fin() + fin_rows('a'),
     'SS': two('SS', ('s','s','s','s','s','s',None), ('s','s','s','s','s','s',None)),
     'X4': two('X4', ('s','s','s','s','s',None,None), ('s','s','s','s','s',None,0)),
     'TL': two('TL', ('s','s',None,'s',None,None,2), ('s',None,None,None,None,None,None)),
    }
    preds = {'CC': ['pre', 'CC'], 'X1': ['CC'], 'X2': ['X1', 'pre'], 'X3': ['X2'], 'X3b': ['X2'], 'SS': ['X3', 'SS'], 'X4': ['SS'], 'TL': ['X4', 'X3b']}
    fin = {'pre': pre}
    for it in range(3):
        for k in raw:
            fin[k] = merge_min([auto_waits(fin[p], raw[k]) for p in preds[k] if p in fin])
    a(f's_cmp_eq_u32 s{sI}, 0'); a('s_cbranch_scc1 K2_X2')
    a(f's_lshl_b32 s{sCnt}, s{sI}, 1'); a(f's_sub_u32 s{sCnt}, s{sCnt}, 1')
    a('.p2align 6\nK2_CC:'); L += fin['CC'] + [f's_sub_u32 s{sCnt}, s{sCnt}, 1', f's_cmp_lg_u32 s{sCnt}, 0', 's_cbranch_scc1 K2_CC']
    L += stamp()
    L += fin['X1']
    a('K2_X2:'); a(f's_add_u32 s{sK}, s{sK}, s{sW2}'); L += fin['X2']
    a(f's_add_u32 s{sV}, s{sV}, s{sW2}')
    a(f's_cmp_eq_u32 s{sI}, 7'); a('s_cbranch_scc1 K2_X3b')
    L += fin['X3']
    L += stamp()
    a(f's_lshl_b32 s{sCnt}, s{sI}, 1'); a(f's_sub_u32 s{sCnt}, 13, s{sCnt}')
    a('.p2align 6\nK2_SS:'); L += fin['SS'] + [f's_sub_u32 s{sCnt}, s{sCnt}, 1', f's_cmp_lg_u32 s{sCnt}, 0', 's_cbranch_scc1 K2_SS']
    L += stamp()
    L += fin['X4']
    a('K2_TL:'); L += fin['TL']
    L += stamp()
    epi = ['s_nop 7'] + fin_rows('b')
    L += epi
    if DIAG:
        L += stamp(); a('s_waitcnt vmcnt(0)'); L += stamp()
        L += dstore(vDG, vDG + 1, vDG + 2, sW, sWS, 201)
    a('K2_END:'); a('s_endpgm')
    a('K2_X3b:'); L += fin['X3b']; a('s_branch K2_TL')
    L += STUBS
    for r in sorted(RARES): L += rare(*r)
    f = fin
    check_trace(pre + ['s_nop 0'] * 2 + f['X2'] + f['X3'] + f['SS'] + f['SS'] + f['X4'] + f['TL'] + epi, 'k2 i=0')
    check_trace(pre + ['s_nop 0'] * 4 + f['CC'] + f['CC'] + f['X1'] + f['X2'] + f['X3b'] + f['TL'] + epi, 'k2 i=7')
    if FUSE: return L, '', None
    return L, kdesc(name, 512, 256), f'; @launch kernel={name} grid=(256,1,1) block=(256,1,1) lds=163840'
```

```python
from lib import *
from layout import *
import struct, math, os
def f32(x): return '0x%08x' % struct.unpack('<I', struct.pack('<f', x))[0]

CA = math.log2(math.e) / math.sqrt(128.0)
vWd, vXd, vWl, vXr, vSt, vWr, vXr2, vSt2 = 2, 6, 10, 14, 16, 18, 26, 17
WF, PK, ACC = 32, 96, 128
sACT, sW, sWS = 28, 32, 36
sWave, sGc, sRem, sLdw, sWoff, sLdw128, sLdw64 = 40, 41, 43, 44, 45, 46, 42
sOut0, sOut1, sScl = 47, 48, 49
sNOut0, sNOut1, sQ0, sQ1 = 50, 51, 52, 58
sType, sBlk, sXoff, sM0W, sM0X, sT0, sT1, sT2, sGcL, sRemL, sWsz, sSR, sSW, sM0X2, sPf = 53, 54, 55, 56, 57, 59, 60, 61, 62, 63, 64, 65, 66, 67, 68
sPX, sPQ, sPo = 76, 80, 84
DK = 1
NSLOT = 6
XBASE = NSLOT * 16384
STORE_FLAGS = os.environ.get('K1_SF', ' sc1')
PF = int(os.environ.get('K1_PF', 1))
WST = int(os.environ.get('K1_WST', 6))
PFR = int(os.environ.get('K1_PFR', 2))
PFM = int(os.environ.get('K1_PFM', 1))
XPF = int(os.environ.get('K1_XPF', 2))
sJ7 = 69
FUSE = int(os.environ.get('FUSE', 1))
PFG = int(os.environ.get('K1_PFG', 130))
DIAG = os.environ.get('DIAG')
def stamp(): return dstamp(31, 30, 29) if DIAG else []
MF = 'v_mfma_f32_16x16x32_bf16'
D = 28
sWoD = 70 if False else 95

def acc(par, ft, tt): return ACC + 64 * par + 4 * (4 * ft + tt)
def xfr(tt, kb): return (tt * 16 + kb) * 4
def wfr(fg, kl): return WF + 4 * (4 * (fg % 4) + kl)
def wfd(g, kbl): return WF + 4 * (2 * (g % 8) + kbl)

def w_read(r):
    r %= 128
    fg, kl, p = r // 8, (r >> 1) & 3, r & 1
    u, ft = fg // 4, fg % 4
    return f'ds_read_b64_tr_b16 {vr(wfr(fg,kl)+2*p,2)}, v{vWr+4*(u&1)+ft} offset:{(32*kl + 4*p)*128}'
def wd_read(r):
    g, kbl, p = r // 4, (r >> 1) & 1, r & 1
    c, ft = g // 8, g % 8
    return f'ds_read_b64_tr_b16 {vr(wfd(g,kbl)+2*p,2)}, v{vWl+(ft&3)} offset:{(c%4)*16384 + (ft>>2)*8192 + (32*kbl + 4*p)*128}'
def wd_dma(c, pad=False):
    L = [f's_add_u32 m0, s{sM0W}, {(c%4)*16384} ; tag=D{c}']
    if pad: L.append('s_nop 0')
    for q in range(4):
        L.append(f'buffer_load_dwordx4 v{vWd+q}, {sr(sW,4)}, s{sWoD} offen offset:{q*1024} lds ; tag=D{c}')
    L.append(f's_add_u32 s{sWoD}, s{sWoD}, s{sLdw64}')
    return L

def ring_adv(s): return [f's_add_u32 s{s}, s{s}, 16384', f's_cmp_eq_u32 s{s}, {XBASE}', f's_cselect_b32 s{s}, 0, s{s}']

def w_dma(u, pad=False):
    L = [f's_add_u32 m0, s{sM0W}, s{sSW} ; tag=W{u}']
    if pad: L.append('s_nop 0')
    for q in range(4):
        L.append(f'buffer_load_dwordx4 v{vWd+q}, {sr(sW,4)}, s{sWoff} offen offset:{q*1024} lds ; tag=W{u}')
    L.append(f's_add_u32 s{sWoff}, s{sWoff}, s{sLdw128}')
    return L + ring_adv(sSW)

def x_dma(c):
    slot = c % 3
    L = []
    for hh in range(2):
        L.append(f's_add_u32 m0, s{sM0X}, {slot*8192 + hh*4096} ; tag=X{c}' if slot < 2 else f's_add_u32 m0, s{sM0X2}, {hh*4096} ; tag=X{c}')
        L.append(f's_add_u32 s{sT0}, s{sXoff}, {c*128 + hh*32768}')
        for q in range(4):
            L.append(f'buffer_load_dwordx4 v{vXd+q}, {sr(sACT,4)}, s{sT0} offen offset:{q*1024} lds ; tag=X{c}')
    return L

def x_read(c, kbl, tt):
    if c % 3 == 2: return f'ds_read_b128 {ar(xfr(tt, 2*c+kbl),4)}, v{vXr2+kbl} offset:{tt*2048}'
    return f'ds_read_b128 {ar(xfr(tt, 2*c+kbl),4)}, v{vXr+kbl} offset:{(c%3)*8192 + tt*2048}'

def load_params():
    return [
        f's_add_u32 s{sGcL}, s{sGcL}, 1',
        f's_sub_u32 s{sRemL}, s{sRemL}, 1',
        f's_cmp_lt_i32 s{sRemL}, 1',
        f's_cselect_b32 s{sW+2}, 0, s{sWsz}',
        f's_and_b32 s{sT1}, s{sGcL}, 63',
        f's_lshl_b32 s{sT1}, s{sT1}, 7',
        f's_mul_i32 s{sWoff}, s{sWave}, s{sLdw}',
        f's_lshl_b32 s{sWoff}, s{sWoff}, 5',
        f's_add_u32 s{sWoff}, s{sWoff}, s{sT1}',
    ]

def comp_params():
    return [
        f's_lshr_b32 s{sT1}, s{sGc}, 1',
        f's_lshl_b32 s{sT1}, s{sT1}, 19',
        f's_and_b32 s{sT2}, s{sGc}, 1',
        f's_lshl_b32 s{sT2}, s{sT2}, 12',
        f's_add_u32 s{sT1}, s{sT1}, s{sT2}',
        f's_lshl_b32 s{sT2}, s{sBlk}, 13',
        f's_add_u32 s{sNOut0}, s{sT1}, s{sT2}',
        f's_add_u32 s{sNOut1}, s{sNOut0}, 8192',
        f's_sub_u32 s{sT1}, s{sGc}, 128',
        f's_lshl_b32 s{sT1}, s{sT1}, 18',
        f's_lshl_b32 s{sT2}, s{sBlk}, 12',
        f's_add_u32 s{sT1}, s{sT1}, s{sT2}',
        f's_add_u32 s{sT1}, s{sT1}, {BWS}',
        f's_add_u32 s{sT2}, s{sT1}, 4096',
        f's_cmp_ge_u32 s{sGc}, 128',
        f's_cselect_b32 s{sNOut0}, s{sT1}, s{sNOut0}',
        f's_cselect_b32 s{sNOut1}, s{sT2}, s{sNOut1}',
        f's_cmp_ge_u32 s{sGc}, 64',
        f's_cselect_b32 s{sType}, 1, 0',
        f's_sub_u32 s{sT1}, s{sGc}, 128',
        f's_cmp_lt_u32 s{sT1}, 16',
        f's_cselect_b32 s{sType}, 0, s{sType}',
    ]

def groups(L):
    out = []
    for x in L:
        if x.startswith('s_cselect'): out[-1].append(x)
        else: out.append([x])
    return out

def epi_part(par, ptype, n):
    V, S = [], []
    y = n >> 1
    for e in range(2):
        fi = 2 * (n & 1) + e
        pk = PK + 4 * ((2 * n + e) % 4)
        if ptype == 0: t0, t1 = acc(par, 2 * (fi >> 1), 2 * y + (fi & 1)), acc(par, 2 * (fi >> 1) + 1, 2 * y + (fi & 1))
        else: t0, t1 = acc(par, fi, 2 * y), acc(par, fi, 2 * y + 1)
        if ptype == 0:
            V += [f'v_mul_f32 v{t+j}, s{sScl}, v{t+j}' for t in (t0, t1) for j in range(4)]
        V += [f'v_cvt_pk_bf16_f32 v{pk}, v{t0}, v{t0+1}', f'v_cvt_pk_bf16_f32 v{pk+1}, v{t0+2}, v{t0+3}',
              f'v_cvt_pk_bf16_f32 v{pk+2}, v{t1}, v{t1+1}', f'v_cvt_pk_bf16_f32 v{pk+3}, v{t1+2}, v{t1+3}']
        S.append(f'buffer_store_dwordx4 {vr(pk,4)}, v{vSt}, {sr(sWS,4)}, s{sOut1 if y else sOut0} offen offset:{fi*1024}{STORE_FLAGS}')
    return V, S

class Blk:
    def __init__(self): self.mf = []; self.pre = {}; self.val = {}
    def P(self, g, x): self.pre.setdefault(g, []).extend(x if isinstance(x, list) else [x])
    def V(self, g, x): self.val.setdefault(g, []).extend(x if isinstance(x, list) else [x])
    def seq(self, g, items, st=2):
        for it in items:
            self.P(g, it); g += st
        return g
    def auto(self, g, items):
        for it in items:
            while g in self.pre or g % 2 == 0: g += 1
            self.P(g, it)
        return g
    def out(self): return weave(self.mf, self.pre, self.val)
def wgroups(dm): return [[dm[0]], [dm[1]], [dm[2]], [dm[3]], [dm[4]], [dm[5]]] + ([[dm[6]], dm[7:]] if len(dm) > 6 else [])
def xgroups(c):
    xd = x_dma(c)
    return [xd[0:2], [xd[2]], [xd[3]], [xd[4]], [xd[5]], xd[6:8], [xd[8]], [xd[9]], [xd[10]], [xd[11]]]
def rotate_params(): return [[f's_mov_b32 s{sOut0}, s{sNOut0}'], [f's_mov_b32 s{sOut1}, s{sNOut1}'], [f's_add_u32 s{sGc}, s{sGc}, 1'], [f's_sub_u32 s{sRem}, s{sRem}, 1']] + groups(comp_params())

def build_pass(ptype, par, prev_type):
    B = Blk()
    for G in range(256):
        u, ft, tt, kl = G // 64, (G >> 4) & 3, (G >> 2) & 3, G & 3
        fg = 4 * u + ft; kb = 4 * u + kl
        a = acc(par, ft, tt)
        w, x = vr(wfr(fg, kl), 4), ar(xfr(tt, kb), 4)
        c = '0' if kb == 0 else vr(a, 4)
        B.mf.append(f'{MF} {vr(a,4)}, ' + (f'{w}, {x}' if ptype == 0 else f'{x}, {w}') + f', {c}')
        if G % 16 == 0: B.P(G - 1 if G else (0, 'before'), f';NEED {vr(wfr(fg,0),16)}')
        if (G + D) % 64 == 0: B.P(G - 1, [f';VMNEED W{((G + D) // 64) % 4}', 's_barrier'])
        if G % 2 == 0: B.P(G, w_read((G + D) // 2))
    for u in range(4):
        g0 = 64 * u
        B.V(g0 + 1, [f'v_add_u32 v{vWr+4*((u+1)&1)+ft}, s{sSR}, v{vWl+ft}' for ft in range(2)])
        B.V(g0 + 3, [f'v_add_u32 v{vWr+4*((u+1)&1)+ft}, s{sSR}, v{vWl+ft}' for ft in range(2, 4)])
        ra = ring_adv(sSR); B.P(g0 + 5, ra[0]); B.P(g0 + 7, ra[1:])
        wg = wgroups(w_dma(u))
        B.P(g0 + 9, wg[0])
        for k in range(4): B.P(g0 + 11 + 4 * k, wg[1 + k])
        B.seq(g0 + 25, wg[5:])
        Vl, Sl = epi_part(par ^ 1, prev_type, u)
        gs = [g for g in range(g0 + 9, g0 + 64) if g % 4 == 1][:len(Vl) // 2]
        for k, g in enumerate(gs): B.V(g, Vl[2*k:2*k+2])
        if u < 3: B.P(g0 + 39, Sl[0]); B.P(g0 + 59, Sl[1])
    Vl, Sl = epi_part(par ^ 1, prev_type, 3)
    B.P(192 + 39, Sl[0]); B.P(192 + 59, Sl[1])
    if PFM == 1:
        B.P(65 + 32, [f's_cmp_eq_u32 s{sRem}, {PFR}', f's_cselect_b32 s{sPX+2}, 0x200000, 0']); B.P(65 + 36, [f's_cmp_eq_u32 s{sRem}, {PFR}', f's_cselect_b32 s{sPQ+2}, 0x400000, 0'])
        for k, x in enumerate(pf_loads()): B.P(107 + 2 * k, x)
    for k, x in enumerate(groups(load_params())): B.P(233 + 2 * (k // 2), x)
    rp = rotate_params()
    g = B.auto(125, [[f's_mov_b32 s{sQ0}, s{sNOut0}', f's_mov_b32 s{sQ1}, s{sNOut1}']] + rp[2:])
    assert g < 232, g
    B.P(253, f's_mov_b32 s{sOut0}, s{sQ0}'); B.P(255, f's_mov_b32 s{sOut1}, s{sQ1}')
    return B.out()

def build_dp(t0, t1):
    B = Blk()
    for G in range(512):
        c, ft, tt, kbl = G // 64, (G >> 3) & 7, (G >> 1) & 3, G & 1
        g = 8 * c + ft; kb = 2 * c + kbl
        a = acc(ft >> 2, ft & 3, tt)
        w, x = vr(wfd(g, kbl), 4), ar(xfr(tt, kb), 4)
        cc = '0' if kb == 0 else vr(a, 4)
        B.mf.append(f'{MF} {vr(a,4)}, ' + (f'{w}, {x}' if (t1 if ft >> 2 else t0) == 0 else f'{x}, {w}') + f', {cc}')
        if G % 16 == 0:
            need = f';NEED {vr(wfd(g,0),16)}'
            if G % 64 == 0: need += ' ' + ' '.join(ar(xfr(t, 2 * c), 8) for t in range(4))
            B.P(G - 1 if G else (0, 'before'), need)
        if (G + D) % 64 == 0:
            nc = (G + D) // 64
            B.P(G - 1, [f';VMNEED D{nc}' if nc < 8 else ';VMNEED W0', 's_barrier'])
        if G % 2 == 0:
            r = (G + D) // 2
            B.P(G, wd_read(r) if r < 256 else w_read(r - 256))
    for c in range(8):
        g0 = 64 * c
        if c + 3 < 8: B.seq(g0 + 1, xgroups(c + 3)[:7]); B.seq(g0 + 17, xgroups(c + 3)[7:])
        if c == 0: B.seq(23, wgroups(wd_dma(2))[:4]); B.seq(33, [sum(wgroups(wd_dma(2))[4:], [])])
        if c + 3 < 8: B.seq(g0 + 37, wgroups(wd_dma(c + 3))[:5]); B.P(g0 + 49, wgroups(wd_dma(c + 3))[5])
        if c < 7:
            B.P(g0 + 45 if c + 3 >= 8 else g0 + 49, f';VMNEED X{c+1}')
            rs = [x_read(c + 1, kbl, tt) for kbl in range(2) for tt in range(4)]
            gs = [49, 51, 53, 55, 57, 59, 61, 61]
            for k, x in enumerate(rs): B.P(g0 + gs[k], x)
    for k, x in enumerate(groups(load_params())): B.P(64 * 4 + 23 + 2 * (k // 2), x)
    B.seq(64 * 5 + 37, wgroups(w_dma(0))[:5]); B.P(64 * 5 + 45, sum(wgroups(w_dma(0))[5:], []))
    g = B.seq(64 * 6 + 1, wgroups(w_dma(1))[:7]); B.P(64 * 6 + 17, wgroups(w_dma(1))[7])
    B.seq(64 * 6 + 19, wgroups(w_dma(2))[:6]); B.P(64 * 6 + 33, sum(wgroups(w_dma(2))[6:], []))
    B.seq(64 * 6 + 37, wgroups(w_dma(3))[:5]); B.P(64 * 6 + 45, sum(wgroups(w_dma(3))[5:], []))
    for k, x in enumerate(groups(load_params())): B.P(64 * 7 + 1 + 2 * (k // 2), x)
    rp = rotate_params()
    g = 64 * 1 + 23
    for k, x in enumerate(rp): B.P(g + 2 * (k // 4), x)
    B.seq(64 * 7 + 11, [[f's_mov_b32 s{sQ0}, s{sNOut0}', f's_mov_b32 s{sQ1}, s{sNOut1}']])
    for k, x in enumerate(rp[2:]): B.P(64 * 7 + 17 + 2 * (k // 3), x)
    g = 64 * 7 + 37
    for n in range(4):
        Vl, Sl = epi_part(0, t0, n)
        h = len(Vl) // 2
        for e in range(2):
            B.V(g, Vl[e*h:e*h+h//2]); B.V(g + 1, Vl[e*h+h//2:(e+1)*h]); B.P(g + 2, Sl[e]); g += 3
    assert g <= 64 * 7 + 62, g
    B.P(511, [f's_mov_b32 s{sOut0}, s{sQ0}', f's_mov_b32 s{sOut1}, s{sQ1}'])
    if PF:
        for k in range(16):
            B.P(PFG + 2 * k, f'buffer_load_dwordx4 {vr(112+4*(k%4),4)}, v{vSt}, {sr(sW,4)}, s{sPf} offen offset:{(k%4)*1024} ; nodep')
            if k % 4 == 3: B.P(PFG + 2 * k, f's_add_u32 s{sPf}, s{sPf}, 4096')
    return B.out()

def pf_loads():
    L = [f'buffer_load_dwordx4 {vr(112+4*q,4)}, v{vSt}, {sr(sPX,4)}, s{sPo} offen offset:{q*1024} ; nodep' for q in range(2)]
    L += [f'buffer_load_dwordx4 {vr(112+4*q,4)}, v{vSt}, {sr(sPQ,4)}, s{sPo+1} offen offset:{q*1024} ; nodep' for q in range(4)]
    return L

def pf_local():
    L = [f's_mov_b32 s{sPX+2}, 0x200000', f's_mov_b32 s{sPQ+2}, 0x400000',
         f's_lshr_b32 s{sPo}, s2, 3', f's_lshl_b32 s{sPo}, s{sPo}, 16', f's_lshl_b32 s{sPo+1}, s{sWave}, 14', f's_add_u32 s{sPo}, s{sPo}, s{sPo+1}',
         'v_lshrrev_b32 v100, 4, v0', 'v_lshlrev_b32 v100, 13, v100', 'v_and_b32 v101, 15, v0', 'v_lshl_add_u32 v100, v101, 4, v100',
         f's_lshr_b32 s{sPo+1}, s2, 5', f's_lshl_b32 s{sPo+1}, s{sPo+1}, 2', f's_add_u32 s{sPo+1}, s{sPo+1}, s{sWave}', f's_lshl_b32 s{sPo+1}, s{sPo+1}, 17',
         f's_and_b32 s{sPo+2}, s2, 31', f's_lshl_b32 s{sPo+2}, s{sPo+2}, 8', f's_add_u32 s{sPo+1}, s{sPo+1}, s{sPo+2}']
    for q in range(4):
        L += [f'buffer_load_dwordx4 {vr(112+4*q,4)}, v100, {sr(sPQ,4)}, s{sPo+1} offen ; nodep', f's_add_u32 s{sPo+1}, s{sPo+1}, 32768']
    for k in range(16):
        L.append(f'buffer_load_dwordx4 {vr(112+4*(k%4),4)}, v{vSt}, {sr(sPX,4)}, s{sPo} offen offset:{(k%4)*1024} ; nodep')
        if k % 4 == 3: L.append(f's_add_u32 s{sPo}, s{sPo}, 4096')
    return L

def relayout_job():
    L = []; a = L.append
    vD, vR, vF = 32, 40, 56
    sU, sSrc, sDst, sA, sB, sS = 45, 46, 47, 48, 49, 88
    a('s_waitcnt lgkmcnt(0)')
    a(f's_mov_b32 s{sWS}, s26'); a(f's_mov_b32 s{sWS+1}, s27'); a(f's_mov_b32 s{sWS+2}, 0x10000000'); a(f's_mov_b32 s{sWS+3}, 0x20000')
    L += pf_setup() + [f's_mov_b32 s{sPX+2}, 0x200000', f's_mov_b32 s{sPQ+2}, 0x400000']
    a(f'v_lshlrev_b32 v{vSt}, 4, v0')
    for j in range(4): a(f'v_mov_b32 v{vF+j}, 0')
    a(f's_lshl_b32 s{sA}, s{sBlk}, 2'); a(f's_add_u32 s{sA}, s{sA}, s{sWave}'); a(f's_lshl_b32 s{sA}, s{sA}, 10'); a(f's_add_u32 s{sA}, s{sA}, {FLG}')
    a(f'buffer_store_dwordx4 {vr(vF,4)}, v{vSt}, {sr(sWS,4)}, s{sA} offen{STORE_FLAGS}')
    L += pf_local() if PFM == 3 else pf_loads()
    a('s_branch K1_END2' if FUSE else 's_branch K1_END')
    return L
def pf_setup():
    return [f's_mov_b64 {sr(sPX,2)}, s[4:5]', f's_mov_b32 s{sPX+3}, 0x20000', f's_mov_b64 {sr(sPQ,2)}, s[8:9]', f's_mov_b32 s{sPQ+3}, 0x20000',
            f's_mov_b32 s{sPX+2}, 0', f's_mov_b32 s{sPQ+2}, 0',
            f's_lshl_b32 s{sPo}, s2, 2', f's_add_u32 s{sPo}, s{sPo}, s{sWave}', f's_lshl_b32 s{sPo+1}, s{sPo}, 12', f's_lshl_b32 s{sPo}, s{sPo}, 11']

def final_epi(par, ptype):
    L = ['s_nop 7']
    if PFM == 2: L = [f's_mov_b32 s{sPX+2}, 0x200000', f's_mov_b32 s{sPQ+2}, 0x400000'] + pf_loads() + ['s_nop 1']
    for n in range(4):
        Vl, Sl = epi_part(par, ptype, n)
        h = len(Vl) // 2
        L += Vl[:h] + [Sl[0]] + Vl[h:] + [Sl[1]]
    return L

def gen_k1(T=int(os.environ.get('K1_T', 4))):
    name = 'k1_kernel'
    L = []
    a = L.append
    a(f'.p2align 8\n.type {name},@function\n{name}:')
    a('s_cmp_ge_u32 s2, 256'); a('s_cbranch_scc1 K1_END')
    if os.environ.get('CPF', '1') == '1': L += code_prefetch('k1_kernel', 'CODE_END', 'K1', 98, 99, 90, 16)
    a('s_load_dwordx16 s[4:19], s[0:1], 0'); a('s_load_dwordx8 s[20:27], s[0:1], 64')
    a('v_lshrrev_b32 v1, 6, v0'); a('v_and_b32 v0, 63, v0')
    a(f'v_readfirstlane_b32 s{sWave}, v1')
    if DIAG: a('s_mov_b32 s72, 0'); a('v_mov_b32 v31, 0'); a('v_mov_b32 v29, 0'); L += stamp()
    nj = 32 // T
    lt = T.bit_length() - 1
    a(f's_and_b32 s{sT0}, s2, 7'); a(f's_lshr_b32 s{sT1}, s2, 3')
    ng = 8 // T
    a(f's_and_b32 s{sT2}, s{sT0}, {ng-1}'); a(f's_lshl_b32 s{sT2}, s{sT2}, {lt}')
    a(f's_and_b32 s{sBlk}, s{sT1}, {T-1}'); a(f's_add_u32 s{sBlk}, s{sBlk}, s{sT2}')
    a(f's_lshr_b32 s{sT0}, s{sT0}, {ng.bit_length()-1}'); a(f's_mul_i32 s{sT0}, s{sT0}, {nj}')
    a(f's_lshr_b32 s{sT1}, s{sT1}, {lt}'); a(f's_add_u32 s{sT0}, s{sT0}, s{sT1}')
    a(f's_lshl_b32 s94, s{sT0}, 2')
    a(f's_cmp_eq_u32 s{sT0}, 31'); a('s_cbranch_scc1 K1_RELAY')
    a(f's_and_b32 s{sJ7}, s{sT0}, 7'); a(f's_lshl_b32 s{sJ7}, s{sJ7}, 7')
    a(f's_lshl_b32 s{sXoff}, s{sBlk}, 18'); a(f's_lshl_b32 s{sT1}, s{sWave}, 16'); a(f's_add_u32 s{sXoff}, s{sXoff}, s{sT1}')
    a(f's_lshl_b32 s{sBlk}, s{sBlk}, 3'); a(f's_lshl_b32 s{sT1}, s{sWave}, 1'); a(f's_add_u32 s{sBlk}, s{sBlk}, s{sT1}')
    a(f's_mul_i32 s{sT1}, s{sT0}, 79'); a(f's_lshr_b32 s{sT1}, s{sT1}, 10')
    a(f's_mul_i32 s{sT2}, s{sT1}, 13'); a(f's_sub_u32 s{sT2}, s{sT0}, s{sT2}')
    a(f's_lshl_b32 s{sPf}, s{sT2}, 19'); a(f's_lshr_b32 s{sGc}, s{sXoff}, 2'); a(f's_add_u32 s{sPf}, s{sPf}, s{sGc}')
    a(f's_mov_b32 s{sRem}, 5')
    a(f's_cmp_eq_u32 s{sT2}, 12'); a(f's_cselect_b32 s{sRem}, 4, s{sRem}')
    a(f's_cmp_eq_u32 s{sT0}, 30'); a(f's_cselect_b32 s{sRem}, 4, s{sRem}')
    a(f's_mul_i32 s{sT2}, s{sT2}, 5')
    a(f's_lshl_b32 s{sGc}, s{sT1}, 6'); a(f's_add_u32 s{sGc}, s{sGc}, s{sT2}')
    a(f's_lshl_b32 s{sM0W}, s{sWave}, 12')
    a(f's_lshl_b32 s{sM0X}, s{sWave}, 14'); a(f's_add_u32 s{sM0X}, s{sM0X}, {XBASE}')
    a(f's_lshl_b32 s{sM0X2}, s{sWave}, 13'); a(f's_add_u32 s{sM0X2}, s{sM0X2}, 65536')
    a(f'v_lshlrev_b32 v{vSt}, 4, v0')
    t = [100, 101, 102, 103, 104]
    a(f'v_lshrrev_b32 v{t[0]}, 3, v0'); a(f'v_lshlrev_b32 v{t[1]}, 10, v{t[0]}')
    a(f'v_lshrrev_b32 v{t[2]}, 4, v0'); a(f'v_and_b32 v{t[3]}, 7, v0'); a(f'v_xor_b32 v{t[2]}, v{t[2]}, v{t[3]}')
    for q in range(4):
        a(f'v_xor_b32 v{t[4]}, {4*(q&1)}, v{t[2]}'); a(f'v_lshl_add_u32 v{t[4]}, v{t[4]}, 4, v{t[1]}'); a(f'v_add_u32 v{vXd+q}, {q*7168}, v{t[4]}')
    a(f'v_and_b32 v{t[0]}, 15, v0'); a(f'v_lshrrev_b32 v{t[1]}, 4, v0'); a(f'v_bfe_u32 v{t[2]}, v0, 1, 3')
    a(f'v_lshlrev_b32 v{t[0]}, 7, v{t[0]}')
    for kbl in range(2):
        a(f'v_add_u32 v{t[4]}, {4*kbl}, v{t[1]}'); a(f'v_xor_b32 v{t[4]}, v{t[4]}, v{t[2]}'); a(f'v_lshl_add_u32 v{t[4]}, v{t[4]}, 4, v{t[0]}')
        a(f'v_add_u32 v{vXr+kbl}, s{sM0X}, v{t[4]}'); a(f'v_add_u32 v{vXr2+kbl}, s{sM0X2}, v{t[4]}')
    a(f'v_bfe_u32 v{t[0]}, v0, 2, 2'); a(f'v_lshrrev_b32 v{t[1]}, 4, v0'); a(f'v_lshl_add_u32 v{t[1]}, v{t[1]}, 3, v{t[0]}'); a(f'v_lshlrev_b32 v{t[1]}, 7, v{t[1]}')
    a(f'v_and_b32 v{t[2]}, 3, v0'); a(f'v_lshl_add_u32 v{t[1]}, v{t[2]}, 3, v{t[1]}')
    a(f'v_bfe_u32 v{t[2]}, v0, 3, 2')
    for ft in range(4):
        a(f'v_xor_b32 v{t[3]}, {ft}, v{t[2]}'); a(f'v_lshl_add_u32 v{vWl+ft}, v{t[3]}, 5, v{t[1]}'); a(f'v_add_u32 v{vWr+ft}, 65536, v{vWl+ft}')
    a('s_waitcnt lgkmcnt(0)')
    a(f's_mov_b32 s{sWS}, s26'); a(f's_mov_b32 s{sWS+1}, s27'); a(f's_mov_b32 s{sWS+2}, 0x10000000'); a(f's_mov_b32 s{sWS+3}, 0x20000')
    a(f's_mov_b32 s{sW+3}, 0x20000'); a(f's_mov_b32 s{sACT+2}, 0x200000'); a(f's_mov_b32 s{sACT+3}, 0x20000')
    L += pf_setup()
    a(f's_cmp_eq_u32 s{sT1}, 0'); a(f's_cselect_b64 {sr(sW,2)}, s[10:11], s[12:13]'); a(f's_cselect_b32 s{sScl}, {f32(CA)}, 1.0')
    a(f's_cmp_eq_u32 s{sT1}, 2'); a(f's_cselect_b64 {sr(sW,2)}, s[18:19], {sr(sW,2)}'); a(f's_cselect_b64 {sr(sACT,2)}, s[16:17], s[6:7]')
    a(f's_movk_i32 s{sLdw}, 8192'); a(f's_cselect_b32 s{sLdw}, 3072, s{sLdw}')
    a(f's_mov_b32 s{sWsz}, 0x400000'); a(f's_cselect_b32 s{sWsz}, 0x180000, s{sWsz}')
    a(f's_lshl_b32 s{sLdw128}, s{sLdw}, 7'); a(f's_lshl_b32 s{sLdw64}, s{sLdw}, 6')
    a(f'v_lshrrev_b32 v{t[0]}, 3, v0'); a(f'v_mul_lo_u32 v{t[0]}, v{t[0]}, s{sLdw}')
    a(f'v_bfe_u32 v{t[1]}, v0, 4, 1'); a(f'v_lshlrev_b32 v{t[1]}, 1, v{t[1]}'); a(f'v_and_b32 v{t[2]}, 7, v0'); a(f'v_xor_b32 v{t[1]}, v{t[1]}, v{t[2]}')
    a(f's_lshl_b32 s{sT1}, s{sLdw}, 3'); a(f's_sub_u32 s{sT1}, s{sT1}, 1024')
    for q in range(4):
        a(f'v_xor_b32 v{t[2]}, {4*(q&1)}, v{t[1]}'); a(f'v_lshl_add_u32 v{vWd+q}, v{t[2]}, 4, v{t[0]}')
        if q < 3: a(f'v_add_u32 v{t[0]}, s{sT1}, v{t[0]}')
    a(f's_add_u32 s{sGcL}, s{sGc}, 1'); a(f's_sub_u32 s{sRemL}, s{sRem}, 1'); a(f's_mov_b32 s{sW+2}, s{sWsz}')
    a(f's_mov_b32 s{sSW}, 65536'); a(f's_mov_b32 s{sSR}, 81920')
    a(f's_and_b32 s{sT1}, s{sGc}, 63'); a(f's_lshr_b32 s{sT2}, s{sWave}, 1'); a(f's_add_u32 s{sT1}, s{sT1}, s{sT2}'); a(f's_lshl_b32 s{sT1}, s{sT1}, 7')
    a(f's_and_b32 s{sT2}, s{sWave}, 1'); a(f's_mul_i32 s{sWoD}, s{sT2}, s{sLdw}'); a(f's_lshl_b32 s{sWoD}, s{sWoD}, 5'); a(f's_add_u32 s{sWoD}, s{sWoD}, s{sT1}')
    xpf = [f'v_lshlrev_b32 v97, 10, v0', f's_add_u32 s{sT1}, s{sXoff}, s{sJ7}', f'buffer_load_dword v96, v97, {sr(sACT,4)}, s{sT1} offen ; nodep'] if XPF else []
    pro = wd_dma(0, True) + x_dma(0) + xpf + wd_dma(1, True) + x_dma(1) + comp_params()
    pro += [';VMNEED X0', 's_barrier']
    pro += [wd_read(i) for i in range(4)] + [x_read(0, kbl, tt) for tt in range(4) for kbl in range(2)] + [wd_read(i) for i in range(4, D // 2)]
    pro += x_dma(2)
    pro = auto_waits([], pro)
    L += pro
    L += stamp()
    a(f's_cmp_eq_u32 s{sType}, 1'); a('s_cbranch_scc1 K1_D11'); a(f's_cmp_eq_u32 s{sGc}, 143'); a('s_cbranch_scc1 K1_D01')
    code = {}
    dps = [(0, 0), (0, 1), (1, 1)]
    for t0_, t1_ in dps:
        code['D', t0_, t1_] = auto_waits(pro, build_dp(t0_, t1_))
    combos = [(0, 0), (1, 1)]
    for t_, pt in combos:
        for par in range(2):
            raw = build_pass(t_, par, pt)
            c1 = auto_waits(pro + code['D', 0, 0], raw)
            c2 = auto_waits(code['D', 0, 0] + c1, raw)
            c3 = auto_waits(c1 + c2, raw)
            code['P', t_, pt, par] = merge_min([c1, c2, c3] if par == 0 else [c2, c3])
    uid = [0]
    def tail(t_, par):
        x = stamp() + [f's_cmp_eq_u32 s{sRem}, 0', f's_cbranch_scc1 K1_FIN{t_}{par}']
        if PFM == 3:
            uid[0] += 1
            x += [f's_cmp_lg_u32 s{sRem}, 1', f's_cbranch_scc1 K1_NPF{uid[0]}', 's_call_b64 s[88:89], K1_PFL', f'K1_NPF{uid[0]}:']
        return x + [f's_branch K1_P{t_}{t_}{par^1}']
    for t0_, t1_ in dps:
        a(f'.p2align 6\nK1_D{t0_}{t1_}:'); L += code['D', t0_, t1_] + tail(t1_, 1)
    for t_, pt in combos:
        for par in range(2):
            a(f'.p2align 6\nK1_P{t_}{pt}{par}:'); L += code['P', t_, pt, par] + tail(t_, par)
    for t_ in range(2):
        for par in range(2):
            a(f'K1_FIN{t_}{par}:'); L += final_epi(par, t_); a('s_branch K1_END2')
    a('K1_RELAY:'); L += relayout_job()
    if PFM == 3:
        a('K1_PFL:'); L += pf_local() + ['s_setpc_b64 s[88:89]']
    a('K1_END:'); a('s_endpgm')
    a('K1_END2:')
    if DIAG:
        L += stamp()
        if not FUSE: a('s_waitcnt vmcnt(0)')
        L += stamp()
        L += dstore(31, 30, 29, sWave, sWS, 200)
    if FUSE: a('s_waitcnt vmcnt(8) lgkmcnt(0)')
    else: a('s_endpgm')
    check_trace(pro + code['D', 0, 0] + tail(0, 1) + code['P', 0, 0, 0] + tail(0, 0) + code['P', 0, 0, 1] + tail(0, 1) + code['P', 0, 0, 0] + final_epi(0, 0), 'k1a')
    check_trace(pro + code['D', 0, 1] + tail(1, 1) + code['P', 1, 1, 0] + tail(1, 0) + code['P', 1, 1, 1] + tail(1, 1) + final_epi(1, 1), 'k1b')
    return L, kdesc(name, 512, 256), f'; @launch kernel={name} grid=(256,1,1) block=(256,1,1) lds=163840'
```

```python
from lib import *
from layout import *
import os, struct, math
def f32(x): return '0x%08x' % struct.unpack('<I', struct.pack('<f', x))[0]
DIAG = os.environ.get('DIAG')
FUSE = int(os.environ.get('FUSE', 1))
sDB = 80
KVF = os.environ.get('K2_KVF', ' sc1')
SF = os.environ.get('K2_SF', ' sc1')
THR = 2.0 ** float(os.environ.get('THR', 40.0))
NEGBIG = -1.0e30
D = 24
MF = 'v_mfma_f32_16x16x32_bf16'
vL16, vRd, vq, vBig, vd, vl, vt, vT = 1, 2, 4, 5, 6, 8, 12, 16
NM = 20
vDl = 36
vDG = 44
S0, P0, Q0, TMPV = 48, 112, 144, 208
O0, FR = 0, 128
sWS, sX, sWQ, sWO, sWB = 8, 12, 16, 60, 64
sW, sH, sI, sK, sV, sSR, sSW, sCnt, sKc, sMq, sRet, sT, sMk, sW2, sW4 = 20, 21, 22, 23, 24, 25, 26, 27, 28, 29, 30, 32, 40, 48, 49
sW2K, sW4K = 58, 59
sK2, sV2 = 84, 86
sXa, sXb, sWo, sXs = 50, 51, 52, 53

def stamp(): return dstamp(vDG, vDG + 1, vDG + 2) if DIAG else []
def Sr(par, idx): return S0 + 32 * par + 4 * idx
def Pr(par, u): return P0 + 16 * par + 4 * u
def Or(qt, dt): return O0 + 32 * qt + 4 * dt
def Qr(qt, db): return Q0 + 16 * qt + 4 * db
def slot(g): return FR + 4 * ((g // 2) % 16)
def tq(t, idx): return (idx & 3) if t == 'c' else 2 + (idx & 1)
def tkt(t, idx): return (idx >> 2) if t == 'c' else (idx >> 1)
def tP(t, idx):
    if t == 'c': return idx & 3, idx >> 2
    kt = idx >> 1
    return 2 * (kt >> 1) + (idx & 1), kt & 1

def pv_frags(t):
    if t == 'c': return [(4 * dt, dt * 1024) for dt in range(8)]
    return [(4 * dt + 2 * kb, kb * 8192 + dt * 1024) for dt in range(8) for kb in range(2)]
def koff(kt, db): return (kt >> 1) * 8192 + (2 * db + (kt & 1)) * 1024
def qk_frags(t):
    if t == 'c': return [(32 + 16 * kt + 4 * db, 16384 + koff(kt, db)) for kt in range(2) for db in range(4)]
    return [(32 + 8 * kt + 2 * db, 16384 + koff(kt, db)) for kt in range(4) for db in range(4)]
def rd(g, off, par): return f'ds_read_b128 {ar(slot(g),4)}, v{vRd+par} offset:{off}'

def pv_mfmas(t, par):
    out = []
    for dt in range(8):
        for x in range(4):
            if t == 'c': qt, u, g = x, x, 4 * dt
            else: qt, u, g = 2 + (x & 1), x, 4 * dt + 2 * (x >> 1)
            o = Or(qt, dt)
            out.append(f'{MF} {ar(o,4)}, {ar(slot(g),4)}, {vr(Pr(par,u),4)}, {ar(o,4)}')
    return out
def qk_mfmas(t, par, czero=False, fr=None):
    out = []
    nkt, nq = (2, 4) if t == 'c' else (4, 2)
    for kt in range(nkt):
        for db in range(4):
            g = 32 + (16 * kt + 4 * db if t == 'c' else 8 * kt + 2 * db)
            f = ar(slot(g), 4) if fr is None else fr(kt, db)
            for x in range(nq):
                idx = nq * kt + x; qt = tq(t, idx); s = Sr(par, idx)
                c = vr(s, 4) if db else ('0' if czero else vr(NM + 4 * qt, 4))
                out.append(f'{MF} {vr(s,4)}, {f}, {vr(Qr(qt,db),4)}, {c}')
    return out

def mask_ops(par, t, k, dyn=None):
    L = []
    src = f's{dyn}' if dyn is not None else str(32 * k)
    L += [f'v_subrev_u32 v{vd}, {src}, v{vq}', f'v_add_u32 v{vd+1}, 16, v{vd}']
    tiles = [i for i in range(8) if (t == 's' or (i & 3) < 2)]
    for idx in tiles:
        s = Sr(par, idx); kt = tkt(t, idx); qq = idx & 1
        for j in range(4): L.append(f'v_cmp_gt_i32 {sr(sMk+2*j,2)}, {16*kt+j}, v{vd+qq}')
        for j in range(4): L.append(f'v_cndmask_b32 v{s+j}, v{s+j}, v{vBig}, {sr(sMk+2*j,2)}')
    return L

def exp_ops(par, t):
    L = []; seen = set()
    def tail(idx):
        s = Sr(par, idx); qt = tq(t, idx); u, h = tP(t, idx); a = vt + qt
        if qt not in seen:
            seen.add(qt); x = [f'v_add_f32 v{a}, v{s}, v{s+1}']
        else: x = [f'v_add_f32 v{a}, v{a}, v{s}', f'v_add_f32 v{a}, v{a}, v{s+1}']
        p = Pr(par, u) + 2 * h
        return x + [f'v_cvt_pk_bf16_f32 v{p}, v{s}, v{s+1}', f'v_add_f32 v{a}, v{a}, v{s+2}', f'v_add_f32 v{a}, v{a}, v{s+3}', f'v_cvt_pk_bf16_f32 v{p+1}, v{s+2}, v{s+3}']
    prev = None
    for idx in range(8):
        s = Sr(par, idx)
        e = [f'v_exp_f32 v{s+j}, v{s+j}' for j in range(4)]
        tl = tail(prev) if prev is not None else []
        L += [e[0]] + tl[:2] + [e[1]] + tl[2:4] + [e[2]] + tl[4:] + [e[3]]
        prev = idx
    L += ['s_nop 0'] + tail(prev)
    return L
def lupd(t): return [f'v_add_f32 v{vl+q}, v{vl+q}, v{vt+q}' for q in ((0, 1, 2, 3) if t == 'c' else (2, 3))]
def chk(t):
    if t == 'c': L = [f'v_max3_f32 v{vT}, v{vt}, v{vt+1}, v{vt+2}', f'v_max_f32 v{vT}, v{vT}, v{vt+3}']
    else: L = [f'v_max_f32 v{vT}, v{vt+2}, v{vt+3}']
    return L + [f'v_cmp_nge_f32 vcc, {f32(THR)}, v{vT}']

def adv64(p, x): return [f's_add_u32 s{p}, s{p}, {x}', f's_addc_u32 s{p+1}, s{p+1}, 0']
def dma_part(kind, t, tag):
    so = sV2 if kind == 'V' else sK2
    w = (sW4 if t == 's' else sW2) if kind == 'V' else (sW4K if t == 's' else sW2K)
    n = 4 if t == 's' else 2
    items = [[f's_add_u32 m0, s{sSW}, s{w} ; tag={tag}']]
    for q in range(n):
        items.append([f'global_load_lds_dwordx4 v{vL16}, {sr(so,2)} offset:{q*1024}{KVF} ; tag={tag}'])
    items.append(adv64(so, n * 4096))
    return items
def flat(L):
    o = []
    for x in L:
        if isinstance(x, list): o += flat(x)
        else: o.append(x)
    return o

STUBS = []
def body(par, pv, sm, qk, nxt_pv, vload, kload, mask, uid):
    psm = par ^ 1
    mf = []
    if pv: mf += pv_mfmas(pv, par)
    if qk: mf += qk_mfmas(qk, par)
    ng = len(mf)
    pre = {}
    def P(g, x): pre.setdefault(g, []).extend(x if isinstance(x, list) else [x])
    frs = (pv_frags(pv) if pv else []) + (qk_frags(qk) if qk else [])
    for g, off in frs:
        if g - D >= 0: P(g - D, rd(g, off, par))
    for g0 in range(0, ng, 8):
        need = [ar(slot(g), 4) for g, off in frs if g0 <= g < g0 + 8]
        P(g0 - 1 if g0 else (0, 'before'), ';NEED ' + ' '.join(need))
    if nxt_pv:
        gb = ng - D
        P(gb - 3, [f';VMNEED U{par^1}', 's_barrier'])
        for g, off in pv_frags(nxt_pv):
            if g < D: P(ng + g - D, rd(g, off, par ^ 1))
    items = []
    if vload: items += dma_part('V', vload, f'U{par}')
    if kload: items += dma_part('K', kload, f'U{par}')
    if nxt_pv: items += [[f's_add_u32 s{sSR}, s{sSR}, 32768'], [f's_and_b32 s{sSR}, s{sSR}, 0x1ffff']]
    if vload or kload: items += [[f's_add_u32 s{sSW}, s{sSW}, 32768'], [f's_and_b32 s{sSW}, s{sSW}, 0x1ffff']]
    if sm:
        items += [[f's_add_u32 s{sKc}, s{sKc}, {8192 if pv == "c" else 16384}'], [f's_mov_b32 s{sMq}, {32*mask if mask is not None else -4096}']]
    free = [g for g in range(1, ng) if g not in pre and not (g == ng - 1)]
    lim = (ng - D - 2) if nxt_pv else ng - 2
    gi = 0; lastd = -9
    for it in items:
        isd = it[0].startswith(('buffer', 'global'))
        while gi < len(free) and (isd and free[gi] - lastd < DSP): gi += 1
        g = free[gi]; gi += 1
        if isd:
            lastd = g
        P(g, it)
    Pq = []; Eq = []
    if nxt_pv: Pq.append(f'v_add_u32 v{vRd+(par^1)}, s{sSR}, v{vL16}')
    if pv: Pq += lupd(pv)
    if sm:
        if mask is not None: Pq += mask_ops(psm, sm, mask)
        for x in exp_ops(psm, sm):
            if x.startswith('v_exp'): Eq.append(x)
            elif x.startswith('v_'): Pq.append(x)
        NL = int(os.environ.get('K2_NL', 6))
        cv = [k for k, x in enumerate(Pq) if x.startswith('v_cvt')][-NL:]
        late = [Pq[k] for k in cv]
        Pq = [x for k, x in enumerate(Pq) if k not in cv] + chk(sm) + late
    cap = {}
    for g in range(ng):
        n = sum(2 if x.startswith(('buffer', 'ds_', 'global')) else 1 for x in pre.get(g, []))
        cap[g] = max(0, 2 - max(0, n - 1))
    last = ng - 1 if qk else ng - 2
    total = 2 * len(Eq) + len(Pq)
    def sched(extra):
        cp = dict(cap)
        for k in range(extra): cp[(k * (last + 1) // max(extra, 1)) % (last + 1)] += 1
        val = {}; pi = ei = 0
        eiss = {}
        ereg = [Ins(x).w for x in Eq]; allE = set().union(*ereg) if ereg else set()
        pend_mask = {}
        for k, x in enumerate(Pq):
            if x.startswith('v_cndmask'):
                for r in Ins(x).w: pend_mask[r] = k
        for g in range(last + 1):
            sl = cp[g]
            while sl > 0:
                if ei < len(Eq) and sl >= 2 and all(pend_mask.get(r, -1) < pi for r in ereg[ei]):
                    val.setdefault(g, []).append(Eq[ei])
                    for r in ereg[ei]: eiss[r] = g
                    ei += 1; sl -= 2; continue
                if pi < len(Pq):
                    x = Pq[pi]; ins = Ins(x)
                    ok = x.startswith('v_cndmask') or all(eiss.get(r, 999) < g for r in ins.r & allE)
                    if ok:
                        val.setdefault(g, []).append(x); pi += 1; sl -= 1; continue
                break
        return val, (len(Eq) - ei) + (len(Pq) - pi)
    extra = 0
    while True:
        val, left = sched(extra)
        if left == 0: break
        extra += 1
    if os.environ.get('VERB'): print(uid, 'valu', total, 'avail', sum(cap[g] for g in range(last + 1)), 'extra', extra)
    if sm:
        pre.setdefault(ng - 1, []).extend([f's_cbranch_vccnz K2_S_{uid}', f'K2_R_{uid}:'])
        STUBS.extend([f'K2_S_{uid}:', f's_call_b64 {sr(sRet,2)}, K2_RARE_{psm}{sm}{qk or "n"}', f's_branch K2_R_{uid}'])
        RARES.add((psm, sm, qk or 'n'))
    return weave(mf, pre, val)
RARES = set()
DSP = int(os.environ.get('K2_DSP', 3))

def xlane(op, r, tmp):
    return [f'v_mov_b32 v{tmp}, v{r}', 's_nop 1', f'v_permlane32_swap_b32 v{r}, v{tmp}', f'{op} v{r}, v{r}, v{tmp}',
            f'v_mov_b32 v{tmp}, v{r}', 's_nop 1', f'v_permlane16_swap_b32 v{r}, v{tmp}', f'{op} v{r}, v{r}, v{tmp}']
def deltas(par, t, clamp):
    L = []
    qs = (0, 1, 2, 3) if t == 'c' else (2, 3)
    for q in qs:
        regs = [Sr(par, i) + j for i in range(8) if tq(t, i) == q for j in range(4)]
        L.append(f'v_max_f32 v{vDl+q}, v{regs[0]}, v{regs[1]}')
        for k in range(2, len(regs), 2): L.append(f'v_max3_f32 v{vDl+q}, v{vDl+q}, v{regs[k]}, v{regs[k+1]}')
        L += xlane('v_max_f32', vDl + q, vT) + [f'v_ceil_f32 v{vDl+q}, v{vDl+q}']
        if clamp: L.append(f'v_max_f32 v{vDl+q}, 0, v{vDl+q}')
    return L
def sub_tiles(par, t): return [f'v_sub_f32 v{Sr(par,i)+j}, v{Sr(par,i)+j}, v{vDl+tq(t,i)}' for i in range(8) for j in range(4)]

def rare(par, t, tn):
    L = [f'K2_RARE_{par}{t}{tn}:', 's_nop 7', 's_nop 7']
    nkt = 2 if t == 'c' else 4
    R = []
    mf = qk_mfmas(t, par, fr=lambda kt, db: vr(TMPV + 16 * (kt & 1) + 4 * db, 4))
    per = len(mf) // nkt
    for k0 in range(0, nkt, 2):
        R.append(f's_add_u32 s{sT+4}, s{sKc}, {k0*4096}'); R.append(f's_add_u32 s{sT+5}, s{sT+4}, 4096')
        for kt in range(2):
            for db in range(4):
                o = (2 * db + kt) * 1024
                R.append(f'buffer_load_dwordx4 {vr(TMPV+16*kt+4*db,4)}, v{vL16}, {sr(sWS,4)}, s{sT+4+(o>>12)} offen offset:{o&4095}')
        R.append('s_waitcnt vmcnt(0)')
        R += mf[per*k0:per*(k0+2)] + ['s_nop 7']
    R += mask_ops(par, t, None, dyn=sMq) + deltas(par, t, True)
    if t == 's': R += [f'v_mov_b32 v{vDl}, 0', f'v_mov_b32 v{vDl+1}, 0']
    R += sub_tiles(par, t)
    if tn != 'n': R += sub_tiles(par ^ 1, tn)
    for q in range(4):
        for j in range(4): R.append(f'v_sub_f32 v{NM+4*q+j}, v{NM+4*q+j}, v{vDl+q}')
        R.append(f'v_exp_f32 v{vDl+4+q}, -v{vDl+q}')
    R += exp_ops(par, t)
    for q in range(4): R.append(f'v_mul_f32 v{vl+q}, v{vl+q}, v{vDl+4+q}')
    for q in ((0, 1, 2, 3) if t == 'c' else (2, 3)):
        for j0 in range(0, 32, 8):
            for j in range(8): R.append(f'v_accvgpr_read_b32 v{TMPV+j}, a{Or(q,0)+j0+j}')
            for j in range(8): R.append(f'v_mul_f32 v{TMPV+j}, v{TMPV+j}, v{vDl+4+q}')
            for j in range(8): R.append(f'v_accvgpr_write_b32 a{Or(q,0)+j0+j}, v{TMPV+j}')
    R += ['s_nop 1', f's_setpc_b64 {sr(sRet,2)}']
    check_trace(R, f'rare{par}{t}{tn}', bool(os.environ.get('VERB')))
    return L + R

K = 1024
XS = [[32*K, 48*K, 8*K, 24*K], [40*K, 56*K, 88*K, 96*K], [0, 16*K, 80*K, 112*K]]
WSL = [64*K, 144*K, 128*K]
vXd, vWd, vXr, vWr = 208, 212, 216, 222
QACC = 48
XF, WFq = 0, 64
def qacc(ft, tt): return QACC + 4 * (4 * ft + tt)
def xf(c, kbl, tt): return XF + 32 * (c & 1) + 16 * kbl + 4 * tt
def wf(c, kbl, ft): return WFq + 64 * (c & 1) + 32 * kbl + 4 * ft
def q_dma(c):
    sl = c % 3
    it = []
    for ab, so in enumerate((sXa, sXb)):
        it.append([f's_add_u32 m0, s{sXs+sl}, {ab*4096} ; tag=C{c}', f's_add_u32 s{sT}, s{so}, {c*128}'])
        for q in range(4): it.append([f'buffer_load_dwordx4 v{vXd+q}, {sr(sX,4)}, s{sT} offen offset:{q*1024} lds ; tag=C{c}'])
    it.append([f's_add_u32 m0, s{sW4}, {WSL[sl]} ; tag=C{c}', f's_add_u32 s{sT}, s{sWo}, {c*64*8192}'])
    for q in range(4): it.append([f'buffer_load_dwordx4 v{vWd+q}, {sr(sWQ,4)}, s{sT} offen offset:{q*1024} lds ; tag=C{c}'])
    return it
def q_reads(c):
    sl = c % 3
    L = []
    for kbl in range(2):
        for tt in range(4): L.append(f'ds_read_b128 {ar(xf(c,kbl,tt),4)}, v{vXr+2*sl+kbl} offset:{tt*2048}')
        for ft in range(8):
            for p in range(2):
                off = WSL[sl] - 128*K * (sl > 0) + (32 * kbl + 4 * p) * 256
                L.append(f'ds_read_b64_tr_b16 {ar(wf(c,kbl,ft)+2*p,2)}, v{vWr+ft+8*(sl>0)} offset:{off - (64*K if sl == 0 else 0)}')
    return L
def q_setup():
    t = [240, 241, 242, 243, 244]
    L = []
    a = L.append
    a(f's_lshl_b32 s{sXa}, s{sI}, 17'); a(f's_lshl_b32 s{sT}, s{sW}, 15'); a(f's_sub_u32 s{sXb}, {15*128*1024}, s{sXa}')
    a(f's_add_u32 s{sXa}, s{sXa}, s{sT}'); a(f's_add_u32 s{sXb}, s{sXb}, s{sT}')
    a(f's_lshl_b32 s{sWo}, s{sH}, 8'); a(f's_lshl_b32 s{sT}, s{sW}, 17'); a(f's_add_u32 s{sWo}, s{sWo}, s{sT}')
    for sl in range(3):
        a(f's_mov_b32 s{sXs+sl}, {XS[sl][0]}')
        for w in range(1, 4):
            a(f's_cmp_eq_u32 s{sW}, {w}'); a(f's_cselect_b32 s{sXs+sl}, {XS[sl][w]}, s{sXs+sl}')
    a(f'v_lshrrev_b32 v{t[0]}, 3, v0'); a(f'v_lshlrev_b32 v{t[1]}, 10, v{t[0]}')
    a(f'v_lshrrev_b32 v{t[2]}, 4, v0'); a(f'v_and_b32 v{t[3]}, 7, v0'); a(f'v_xor_b32 v{t[2]}, v{t[2]}, v{t[3]}')
    for q in range(4):
        a(f'v_xor_b32 v{t[4]}, {4*(q&1)}, v{t[2]}'); a(f'v_lshl_add_u32 v{t[4]}, v{t[4]}, 4, v{t[1]}'); a(f'v_add_u32 v{vXd+q}, {q*7168}, v{t[4]}')
    a(f'v_lshrrev_b32 v{t[0]}, 4, v0'); a(f'v_lshlrev_b32 v{t[1]}, 13, v{t[0]}'); a(f'v_lshlrev_b32 v{t[0]}, 1, v{t[0]}')
    a(f'v_and_b32 v{t[2]}, 15, v0'); a(f'v_xor_b32 v{t[2]}, v{t[2]}, v{t[0]}')
    for q in range(4):
        a(f'v_xor_b32 v{t[4]}, {8*(q>>1)}, v{t[2]}'); a(f'v_lshl_add_u32 v{t[4]}, v{t[4]}, 4, v{t[1]}'); a(f'v_add_u32 v{vWd+q}, {q*(4*8192-1024)}, v{t[4]}')
    return L
def q_setup2():
    t = [240, 241, 242, 243, 244]
    L = []; a = L.append
    a(f'v_and_b32 v{t[0]}, 15, v0'); a(f'v_lshrrev_b32 v{t[1]}, 4, v0'); a(f'v_bfe_u32 v{t[2]}, v0, 1, 3'); a(f'v_lshlrev_b32 v{t[0]}, 7, v{t[0]}')
    for kbl in range(2):
        a(f'v_add_u32 v{t[4]}, {4*kbl}, v{t[1]}'); a(f'v_xor_b32 v{t[4]}, v{t[4]}, v{t[2]}'); a(f'v_lshl_add_u32 v{t[4]}, v{t[4]}, 4, v{t[0]}')
        for sl in range(3): a(f'v_add_u32 v{vXr+2*sl+kbl}, s{sXs+sl}, v{t[4]}')
    a(f'v_bfe_u32 v{t[0]}, v0, 2, 2'); a(f'v_lshl_add_u32 v{t[1]}, v{t[1]}, 3, v{t[0]}'); a(f'v_lshlrev_b32 v{t[1]}, 8, v{t[1]}')
    a(f'v_and_b32 v{t[2]}, 3, v0'); a(f'v_lshl_add_u32 v{t[1]}, v{t[2]}, 3, v{t[1]}'); a(f'v_bfe_u32 v{t[2]}, v0, 2, 3')
    for ft in range(8):
        a(f'v_xor_b32 v{t[3]}, {ft}, v{t[2]}'); a(f'v_lshl_add_u32 v{t[3]}, v{t[3]}, 5, v{t[1]}')
        a(f'v_add_u32 v{vWr+ft}, {64*K}, v{t[3]}'); a(f'v_add_u32 v{vWr+8+ft}, {128*K}, v{t[3]}')
    return L

def a_loads(which):
    if which == 0:
        return [[f's_mov_b32 s{sSW}, 65536']] + dma_part('K', 'c', 'K0') + [[f's_mov_b32 s{sSW}, 98304']] + dma_part('K', 'c', 'K0') + \
               [[f's_mov_b32 s{sSW}, 0']] + dma_part('V', 'c', 'U0') + dma_part('K', 'c', 'U0')
    return [[f's_mov_b32 s{sSW}, 32768']] + dma_part('V', 'c', 'U1') + dma_part('K', 'c', 'U1') + [[f's_mov_b32 s{sSW}, 65536'], [f's_mov_b32 s{sSR}, 32768']]

def wo_dma_a():
    t = [240, 241, 242, 243]
    it = [[f'v_lshrrev_b32 v{t[0]}, 5, v0', f'v_bfe_u32 v{t[1]}, v0, 1, 4', f'v_xor_b32 v{t[1]}, v{t[1]}, v{t[0]}', f'v_and_b32 v{t[2]}, 1, v0', f'v_lshlrev_b32 v{t[2]}, 4, v{t[2]}',
           f'v_lshl_add_u32 v{t[2]}, v{t[0]}, 10, v{t[2]}'],
          [f's_lshr_b32 s{sT+4}, s2, 1', f's_lshl_b32 s{sT+4}, s{sT+4}, 15', f's_and_b32 s{sT+5}, s2, 1', f's_lshl_b32 s{sT+5}, s{sT+5}, 9'],
          [f's_add_u32 s{sT+4}, s{sT+4}, s{sT+5}', f's_lshl_b32 s{sT+5}, s{sW}, 13', f's_add_u32 s{sT+4}, s{sT+4}, s{sT+5}']]
    for q in range(4):
        it.append([f'v_xor_b32 v{t[3]}, {2*q}, v{t[1]}', f'v_lshl_add_u32 v{t[3]}, v{t[3]}, 5, v{t[2]}', f's_add_u32 m0, s{sW4}, {128*K} ; tag=WO', f's_add_u32 s{sT+5}, s{sT+4}, {q*1024}',
                   f'buffer_load_dwordx4 v{t[3]}, {sr(sWO,4)}, s{sT+5} offen offset:{q*1024} lds ; tag=WO'])
    return it
def wo_dma_b():
    t = [240, 241]
    return [f'v_lshrrev_b32 v{t[0]}, 2, v0', f'v_lshlrev_b32 v{t[0]}, 10, v{t[0]}', f'v_and_b32 v{t[1]}, 3, v0', f'v_lshl_add_u32 v{t[0]}, v{t[1]}, 4, v{t[0]}',
            f's_lshr_b32 s{sT+4}, s2, 4', f's_lshl_b32 s{sT+4}, s{sT+4}, 15', f's_and_b32 s{sT+5}, s2, 15', f's_lshl_b32 s{sT+5}, s{sT+5}, 6', f's_add_u32 s{sT+4}, s{sT+4}, s{sT+5}',
            f's_and_b32 s{sT+5}, s{sW}, 1', f's_lshl_b32 s{sT+6}, s{sT+5}, 14', f's_add_u32 s{sT+4}, s{sT+4}, s{sT+6}', f's_lshl_b32 s{sT+5}, s{sT+5}, 10',
            f's_add_u32 m0, s{sT+5}, {144*K} ; tag=WO', 's_nop 0', f'buffer_load_dwordx4 v{t[0]}, {sr(sWB,4)}, s{sT+4} offen lds ; tag=WO']
def wo_fin():
    R = TMPV; a0, a1, a2 = TMPV + 20, TMPV + 21, TMPV + 22; t0, t1 = sT + 4, sT + 5
    L = [f'v_lshrrev_b32 v{a0}, 2, v0', f'v_and_b32 v{a1}, 3, v0', f'v_lshlrev_b32 v{a1}, 3, v{a1}', f'v_lshl_add_u32 v{a2}, v{a0}, 6, v{a1}', f'v_lshl_add_u32 v{a1}, v{a0}, 9, v{a1}',
         f'v_add_u32 v{a1}, {128*K}, v{a1}', f'v_and_b32 v{a0}, 7, v{a0}', f's_lshl_b32 s{t0}, s{sW}, 2', f'v_xor_b32 v{a0}, s{t0}, v{a0}',
         f's_and_b32 s{t0}, s{sW}, 1', f's_lshl_b32 s{t0}, s{t0}, 5', f's_add_u32 s{t0}, s{t0}, {144*K}', f'v_add_u32 v{a2}, s{t0}, v{a2}']
    for x in range(4):
        L += [f'v_xor_b32 v{a0+4+x}, {x}, v{a0}', f'v_lshl_add_u32 v{a0+4+x}, v{a0+4+x}, 5, v{a1}']
        for p in range(2): L.append(f'ds_read_b64_tr_b16 {vr(R+4*x+2*p,2)}, v{a0+4+x} offset:{p*8192}')
    for p in range(2): L.append(f'ds_read_b64_tr_b16 {vr(R+16+2*p,2)}, v{a2} offset:{p*1024}')
    L += [f's_and_b32 s{t0}, s2, 1', f's_lshl_b32 s{t0}, s{t0}, 2', f's_add_u32 s{t0}, s{t0}, s{sW}', f's_mul_i32 s{t0}, s{t0}, {4*WOA_S}', f's_lshr_b32 s{t1}, s2, 1', f's_lshl_b32 s{t1}, s{t1}, 10',
          f's_add_u32 s{t0}, s{t0}, s{t1}', f's_add_u32 s{t0}, s{t0}, {WOA}']
    for x in range(4): L += [f'buffer_store_dwordx4 {vr(R+4*x,4)}, v{vL16}, {sr(sWS,4)}, s{t0} offen{SF}', f's_add_u32 s{t0}, s{t0}, {WOA_S}']
    L += [f's_and_b32 s{t0}, s2, 15', f's_lshl_b32 s{t0}, s{t0}, 1', f's_and_b32 s{t1}, s{sW}, 1', f's_add_u32 s{t0}, s{t0}, s{t1}', f's_mul_i32 s{t0}, s{t0}, {WOB_S}',
          f's_lshr_b32 s{t1}, s2, 4', f's_lshl_b32 s{t1}, s{t1}, 10', f's_add_u32 s{t0}, s{t0}, s{t1}', f's_add_u32 s{t0}, s{t0}, {WOB}',
          f'buffer_store_dwordx4 {vr(R+16,4)}, v{vL16}, {sr(sWS,4)}, s{t0} offen{SF}', 's_nop 0']
    return L

def qproj():
    QPF = int(os.environ.get('K2_QPF', 0))
    pf = [[f'v_lshlrev_b32 v245, 10, v0', f's_lshr_b32 s{sT+4}, s2, 3', f's_lshl_b32 s{sT+4}, s{sT+4}, 16'], [f's_lshl_b32 s{sT+5}, s{sW}, 7', f's_add_u32 s{sT+4}, s{sT+4}, s{sT+5}'],
          [f'buffer_load_dword v246, v245, {sr(sX,4)}, s{sT+4} offen offset:512 ; nodep'],
          [f'v_lshrrev_b32 v245, 1, v0', f'v_lshlrev_b32 v245, 13, v245', f'v_and_b32 v244, 1, v0', f'v_lshl_add_u32 v245, v244, 7, v245'],
          [f's_lshl_b32 s{sT+4}, s{sI}, 18', f's_lshl_b32 s{sT+5}, s{sH}, 8', f's_add_u32 s{sT+4}, s{sT+4}, s{sT+5}'], [f's_add_u32 s{sT+4}, s{sT+4}, {256*8192}'],
          [f'buffer_load_dword v246, v245, {sr(sWQ,4)}, s{sT+4} offen ; nodep']] if QPF else []
    L = q_setup() + (['s_barrier'] if FUSE else []) + flat(q_dma(0)) + flat(q_dma(1)) + q_setup2()
    L += [f's_lshl_b32 s{sT+4}, s{sH}, 19', f's_add_u32 s{sK}, s{sT+4}, {KWS}', f's_add_u32 s{sV}, s{sT+4}, {VWS}', f's_mov_b32 s{sKc}, s{sK}', f's_add_u32 s{sK}, s{sK}, s{sW2}', f's_add_u32 s{sV}, s{sV}, s{sW2}',
          f's_add_u32 s{sK2}, s{sWS}, s{sK}', f's_addc_u32 s{sK2+1}, s{sWS+1}, 0', f's_add_u32 s{sV2}, s{sWS}, s{sV}', f's_addc_u32 s{sV2+1}, s{sWS+1}, 0']
    L += [';VMNEED C0', 's_barrier'] + q_reads(0)
    if FUSE:
        L += [f's_cmp_lg_u32 s{sW}, 0', 's_cbranch_scc1 K2_NOSIG', 'v_mov_b32 v245, 1', 'v_mov_b32 v246, s94', 's_mov_b64 exec, 1',
              f'SKIP buffer_atomic_add v245, v246, {sr(sDB,4)}, 0 offen sc1', 's_mov_b64 exec, -1', 'K2_NOSIG:',
              f's_lshl_b32 s{sT+4}, s{sH}, 1', 'v_and_b32 v246, 1, v0', f'v_add_u32 v246, s{sT+4}, v246', 'v_mul_u32_u24 v246, 205, v246', 'v_lshrrev_b32 v246, 10, v246',
              'v_bfe_u32 v245, v0, 1, 1', 'v_mul_u32_u24 v245, 13, v245', 'v_add_lshl_u32 v246, v246, v245, 2']
    L += stamp()
    for c in range(8):
        mf = []; pre = {}
        def P(g, x): pre.setdefault(g, []).extend(x if isinstance(x, list) else [x])
        for kbl in range(2):
            for ft in range(8):
                for tt in range(4):
                    a = qacc(ft, tt)
                    cc = '0' if (c == 0 and kbl == 0) else vr(a, 4)
                    mf.append(f'{MF} {vr(a,4)}, {ar(wf(c,kbl,ft),4)}, {ar(xf(c,kbl,tt),4)}, {cc}')
        if c == 0:
            for g0 in range(0, 64, 8):
                kbl = g0 // 32
                P(g0 - 1 if g0 else (0, 'before'), f';NEED {ar(wf(0,kbl,(g0%32)//4),8)} {ar(xf(0,kbl,0),16)}')
            g = 0
            for it in q_dma(2) + (pf if QPF == 1 else []):
                if g % 8 == 7: g += 1
                P(g, it); g += 1
            gb = 26
        else:
            P((0, 'before'), f';NEED {ar(wf(c,0,0),32)} {ar(xf(c,0,0),16)}')
            P(23, ';LGKM0') if False else None
            gb = 0
        if 1 <= c <= 5: ex = ([[f'buffer_load_dword v247, v246, {sr(sDB,4)}, 0 offen sc1']] if FUSE and c == 5 else []) + q_dma(c + 2)
        elif c == 6:
            ex = a_loads(0)
            if FUSE:
                P((0, 'before'), ['v_cmp_gt_u32 vcc, 8, v247', 's_cbranch_vccnz K2_SLOWP', 'K2_POLLED:'])
                STUBS.extend(['K2_SLOWP:', f's_mov_b32 s{sT+4}, 0x80000', 'K2_SP1:', f'buffer_load_dword v247, v246, {sr(sDB,4)}, 0 offen sc1', 's_waitcnt vmcnt(0)',
                              'v_cmp_gt_u32 vcc, 8, v247', 's_cbranch_vccz K2_POLLED', 's_sleep 2', f's_sub_u32 s{sT+4}, s{sT+4}, 1', f's_cmp_lg_u32 s{sT+4}, 0', 's_cbranch_scc1 K2_SP1', 's_branch K2_POLLED'])
        elif c == 7: ex = a_loads(1) + wo_dma_a()
        else: ex = []
        if c < 7:
            P(gb, [f';VMNEED C{c+1}', 's_barrier'])
            rds = q_reads(c + 1)
            seq = []; nr, ne = len(rds), len(ex)
            ri = ei = 0
            while ri < nr or ei < ne:
                if ei < ne and (ri >= nr or ei * nr <= ri * ne): seq.append(ex[ei]); ei += 1
                else: seq.append(rds[ri]); ri += 1
            g0 = gb + 1
            for k, x in enumerate(seq): P(g0 + k * (63 - g0) // len(seq), x)
            if c >= 1: P(31, f';NEED {ar(wf(c,1,0),32)} {ar(xf(c,1,0),16)}')
        else:
            P(0, 's_barrier')
            P(31, f';NEED {ar(wf(c,1,0),32)} {ar(xf(c,1,0),16)}')
            P(60, [';VMNEED U0', 's_barrier', f'v_add_u32 v{vRd}, 65536, v{vL16}', f'v_add_u32 v{vRd+1}, 98304, v{vL16}'])
            for k, it in enumerate(ex): P(1 + k * 58 // len(ex), it)
        L += weave(mf, pre, {})
    return L

def a_prologue():
    L = []
    fr = qk_frags('c')
    L += [rd(g, off, 0) for g, off in fr] + [rd(g + 2, off, 1) for g, off in fr] + wo_dma_b()
    order = [3, 2, 1, 0]
    cv = []
    for db in order:
        for tt in range(4):
            t0, t1 = qacc(2 * db, tt), qacc(2 * db + 1, tt)
            dst = TMPV + 16 + 4 * tt if db == 3 else Qr(tt, db)
            cv += [f'v_cvt_pk_bf16_f32 v{dst}, v{t0}, v{t0+1}', f'v_cvt_pk_bf16_f32 v{dst+1}, v{t0+2}, v{t0+3}', f'v_cvt_pk_bf16_f32 v{dst+2}, v{t1}, v{t1+1}', f'v_cvt_pk_bf16_f32 v{dst+3}, v{t1+2}, v{t1+3}']
    for tt in range(4):
        for j in range(4): cv.append(f'v_mov_b32 v{Qr(tt,3)+j}, v{TMPV+16+4*tt+j}')
    z = [f'v_mov_b32 v{TMPV+j}, 0' for j in range(4)]
    L += z + ['s_nop 3'] + cv
    zm = [f'v_mfma_f32_32x32x16_bf16 {ar(16*k,16)}, {vr(TMPV,4)}, {vr(TMPV,4)}, 0' for k in range(8)]
    L += ['s_nop 0'] + qk_mfmas('c', 0, czero=True) + zm
    L += [f's_cmp_eq_u32 s{sI}, 0', f's_cselect_b32 s{sMq}, 0, -4096']
    L += mask_ops(0, 'c', None, dyn=sMq) + deltas(0, 'c', False)
    for q in range(4):
        for j in range(4): L.append(f'v_sub_f32 v{NM+4*q+j}, 0, v{vDl+q}')
    V = [f'v_mov_b32 v{vl+q}, 0' for q in range(4)] + sub_tiles(0, 'c') + exp_ops(0, 'c')
    mf2 = qk_mfmas('c', 1, fr=lambda kt, db: ar(slot(32 + 16 * kt + 4 * db + 2), 4))
    L += [f'v_mov_b32 v{vRd}, v{vL16}', ';LGKM0', 's_barrier']
    rds = [rd(g, off, 0) for g, off in pv_frags('c') if g < D]
    n = len(mf2)
    for k, m in enumerate(mf2):
        L.append(m)
        if k >= n - 2 * len(rds) and (n - k) % 2 == 0: L.append(rds[len(rds) - (n - k) // 2])
        L += V[len(V)*k//n:len(V)*(k+1)//n]
    return L

def fin_rows(which):
    t0, t1 = sT + 4, sT + 5
    q0 = 0 if which == 'a' else 2
    L = [f's_lshl_b32 s{t0}, s{sH}, 12', f's_add_u32 s{t0}, s{t0}, {CTX}', f's_mul_i32 s{t1}, s{sW}, {2*CTX_S}', f's_add_u32 s{t0}, s{t0}, s{t1}', f's_mul_i32 s{t1}, s{sI}, {8*CTX_S}']
    L += [f's_add_u32 s{t0}, s{t0}, s{t1}'] if which == 'a' else [f's_sub_u32 s{t0}, s{t0}, s{t1}', f's_add_u32 s{t0}, s{t0}, {120*CTX_S}']
    for q in (q0, q0 + 1):
        L += xlane('v_add_f32', vl + q, vT) + [f'v_rcp_f32 v{vl+q}, v{vl+q}']
    for q in (q0, q0 + 1):
        if q & 1: L.append(f's_add_u32 s{t0}, s{t0}, {CTX_S}')
        for h in range(2):
            r = TMPV + 16 * h; p = TMPV + 32 + 8 * h
            for j in range(16): L.append(f'v_accvgpr_read_b32 v{r+j}, a{Or(q,4*h)+j}')
            for j in range(16): L.append(f'v_mul_f32 v{r+j}, v{r+j}, v{vl+q}')
            for j in range(8): L.append(f'v_cvt_pk_bf16_f32 v{p+j}, v{r+2*j}, v{r+2*j+1}')
            for x in range(2): L.append(f'buffer_store_dwordx4 {vr(p+4*x,4)}, v{vL16}, {sr(sWS,4)}, s{t0} offen offset:{(2*h+x)*1024}{SF}')
    return L

def gen_k2():
    name = 'k2_kernel'
    L = []; a = L.append
    if not FUSE:
        a(f'.p2align 8\n.type {name},@function\n{name}:')
        a('s_cmp_ge_u32 s2, 256'); a('s_cbranch_scc1 K2_END')
        if os.environ.get('CPF', '1') == '1': L += code_prefetch('k2_kernel', 'k3_kernel', 'K2', 246, 247, 90, 8)
        a('s_load_dwordx2 s[4:5], s[0:1], 88'); a('s_load_dwordx2 s[6:7], s[0:1], 0'); a('s_load_dwordx2 s[56:57], s[0:1], 16'); a('s_load_dwordx2 s[68:69], s[0:1], 40'); a('s_load_dwordx2 s[76:77], s[0:1], 64')
        a('v_lshrrev_b32 v1, 6, v0'); a('v_and_b32 v0, 63, v0'); a(f'v_readfirstlane_b32 s{sW}, v1')
    else:
        for srd, p, n in ((sWO, 14, 0x400000), (sWB, 20, 0x80000), (sDB, 24, 256), (sWQ, 8, 0x400000), (sX, 4, 0x200000), (sWS, 26, 0x10000000)):
            a(f's_mov_b32 s{srd}, s{p}'); a(f's_mov_b32 s{srd+1}, s{p+1}'); a(f's_mov_b32 s{srd+2}, {hex(n)}'); a(f's_mov_b32 s{srd+3}, 0x20000')
        a(f's_mov_b32 s{sW}, s40')
    a(f'v_lshlrev_b32 v{vL16}, 4, v0')
    a(f's_and_b32 s{sH}, s2, 31'); a(f's_lshr_b32 s{sI}, s2, 5')
    if FUSE and os.environ.get('K2_REMAP', '1') == '1':
        a(f's_bfe_u32 s{sT}, s2, 0x20001'); a(f's_mov_b32 s{sT+1}, 0x76543210')
        a(f's_cmp_eq_u32 s{sT}, 1'); a(f's_cselect_b32 s{sT+1}, 0x76503214, s{sT+1}')
        a(f's_cmp_eq_u32 s{sT}, 3'); a(f's_cselect_b32 s{sT+1}, 0x01765423, s{sT+1}')
        a(f's_lshl_b32 s{sI}, s{sI}, 2'); a(f's_lshr_b32 s{sI}, s{sT+1}, s{sI}'); a(f's_and_b32 s{sI}, s{sI}, 7')
    a(f's_lshl_b32 s{sW2}, s{sW}, 11'); a(f's_lshl_b32 s{sW4}, s{sW}, 12'); a(f's_add_u32 s{sW2K}, s{sW2}, 16384'); a(f's_add_u32 s{sW4K}, s{sW4}, 16384')
    a(f'v_mov_b32 v{vBig}, {f32(NEGBIG)}')
    a(f'v_and_b32 v{vq}, 15, v0'); a(f'v_lshrrev_b32 v{vT}, 4, v0'); a(f'v_lshlrev_b32 v{vT}, 2, v{vT}'); a(f'v_sub_u32 v{vq}, v{vq}, v{vT}')
    a(f's_lshl_b32 s{sT}, s{sW}, 5'); a(f'v_add_u32 v{vq}, s{sT}, v{vq}')
    a('s_waitcnt lgkmcnt(0)')
    for srd, p, n in () if FUSE else ((sWS, 4, 0x10000000), (sX, 6, 0x200000), (sWQ, 56, 0x400000), (sWO, 68, 0x400000), (sWB, 76, 0x80000)):
        a(f's_mov_b32 s{srd}, s{p}'); a(f's_mov_b32 s{srd+1}, s{p+1}'); a(f's_mov_b32 s{srd+2}, {hex(n)}'); a(f's_mov_b32 s{srd+3}, 0x20000')
    if DIAG: a('s_mov_b32 s72, 0'); a(f'v_mov_b32 v{vDG}, 0'); a(f'v_mov_b32 v{vDG+2}, 0'); L += stamp()
    raw0 = qproj() + stamp() + a_prologue() + stamp()
    skip = [x for x in raw0 if x.startswith('SKIP ')]
    pre = auto_waits([], [x if not x.startswith('SKIP ') else '.L_skip0:' for x in raw0])
    L += [x if x != '.L_skip0:' else skip[0][5:] for x in pre]
    def two(uid, b0, b1): return body(0, *b0, uid + 'a') + body(1, *b1, uid + 'b')
    raw = {
     'CC': two('CC', ('c','c','c','c','c','c',None), ('c','c','c','c','c','c',None)),
     'X1': two('X1', ('c','c','c','c','c','c',None), ('c','c','c','c','c','c',0)),
     'X2': two('X2', ('c','c','c','c','c','s',1), ('c','c','c','c','c','s',2)),
     'X3': two('X3', ('c','c','s','c','s','s',3), ('c','s','s','s','s','s',None)) + wo_fin() + fin_rows('a'),
     'X3b': two('X3b', ('c','c','s','c','s',None,3), ('c','s','s','s','s',None,0)) + wo_fin() + fin_rows('a'),
     'SS': two('SS', ('s','s','s','s','s','s',None), ('s','s','s','s','s','s',None)),
     'X4': two('X4', ('s','s','s','s','s',None,None), ('s','s','s','s','s',None,0)),
     'TL': two('TL', ('s','s',None,'s',None,None,2), ('s',None,None,None,None,None,None)),
    }
    preds = {'CC': ['pre', 'CC'], 'X1': ['CC'], 'X2': ['X1', 'pre'], 'X3': ['X2'], 'X3b': ['X2'], 'SS': ['X3', 'SS'], 'X4': ['SS'], 'TL': ['X4', 'X3b']}
    fin = {'pre': pre}
    for it in range(3):
        for k in raw:
            fin[k] = merge_min([auto_waits(fin[p], raw[k]) for p in preds[k] if p in fin])
    a(f's_cmp_eq_u32 s{sI}, 0'); a('s_cbranch_scc1 K2_X2')
    a(f's_lshl_b32 s{sCnt}, s{sI}, 1'); a(f's_sub_u32 s{sCnt}, s{sCnt}, 1')
    a('.p2align 6\nK2_CC:'); L += fin['CC'] + [f's_sub_u32 s{sCnt}, s{sCnt}, 1', f's_cmp_lg_u32 s{sCnt}, 0', 's_cbranch_scc1 K2_CC']
    L += stamp()
    L += fin['X1']
    a('K2_X2:'); L += adv64(sK2, f's{sW2}'); L += fin['X2']
    L += adv64(sV2, f's{sW2}')
    a(f's_cmp_eq_u32 s{sI}, 7'); a('s_cbranch_scc1 K2_X3b')
    L += fin['X3']
    L += stamp()
    a(f's_lshl_b32 s{sCnt}, s{sI}, 1'); a(f's_sub_u32 s{sCnt}, 13, s{sCnt}')
    a('.p2align 6\nK2_SS:'); L += fin['SS'] + [f's_sub_u32 s{sCnt}, s{sCnt}, 1', f's_cmp_lg_u32 s{sCnt}, 0', 's_cbranch_scc1 K2_SS']
    L += stamp()
    L += fin['X4']
    a('K2_TL:'); L += fin['TL']
    L += stamp()
    epi = ['s_nop 7'] + fin_rows('b')
    L += epi
    if DIAG:
        L += stamp(); a('s_waitcnt vmcnt(0)'); L += stamp()
        L += dstore(vDG, vDG + 1, vDG + 2, sW, sWS, 201)
    a('K2_END:'); a('s_endpgm')
    a('K2_X3b:'); L += fin['X3b']; a('s_branch K2_TL')
    L += STUBS
    for r in sorted(RARES): L += rare(*r)
    f = fin
    check_trace(pre + ['s_nop 0'] * 2 + f['X2'] + f['X3'] + f['SS'] + f['SS'] + f['X4'] + f['TL'] + epi, 'k2 i=0')
    check_trace(pre + ['s_nop 0'] * 4 + f['CC'] + f['CC'] + f['X1'] + f['X2'] + f['X3b'] + f['TL'] + epi, 'k2 i=7')
    if FUSE: return L, '', None
    return L, kdesc(name, 512, 256), f'; @launch kernel={name} grid=(256,1,1) block=(256,1,1) lds=163840'
```

```python
import re

def regs_of(tok):
    tok = tok.strip()
    neg = tok.lstrip('-')
    m = re.fullmatch(r'abs\((.*)\)', neg)
    if m: neg = m.group(1)
    m = re.fullmatch(r'\|(.*)\|', neg)
    if m: neg = m.group(1)
    m = re.fullmatch(r'([vas])(\d+)', neg)
    if m: return {(m.group(1), int(m.group(2)))}
    m = re.fullmatch(r'([vas])\[(\d+):(\d+)\]', neg)
    if m: return {(m.group(1), i) for i in range(int(m.group(2)), int(m.group(3)) + 1)}
    if neg == 'vcc': return {('s', 'vcc')}
    if neg == 'exec': return {('s', 'exec')}
    if neg == 'm0': return {('s', 'm0')}
    return set()

TRANS = ('v_exp_f32', 'v_log_f32', 'v_rcp_f32', 'v_rsq_f32', 'v_sqrt_f32', 'v_sin_f32', 'v_cos_f32')
NODST_S = ('s_cmp', 's_waitcnt', 's_barrier', 's_branch', 's_cbranch', 's_nop', 's_setprio', 's_bitcmp', 's_endpgm', 's_setpc', 's_sleep')

class Ins:
    def __init__(self, text):
        self.text = text
        t = text.split(';')[0].strip()
        parts = t.split(None, 1)
        self.op = parts[0]
        rest = parts[1] if len(parts) > 1 else ''
        ops = [o.strip() for o in re.split(r',(?![^\[]*\])', rest)] if rest else []
        mods = ''
        if ops:
            lp = ops[-1].split(None, 1)
            if len(lp) > 1 and not ops[-1].startswith('abs'):
                ops[-1] = lp[0]; mods = lp[1]
        self.ops, self.mods = ops, mods
        op = self.op
        self.kind = 'other'; self.w = set(); self.r = set()
        R = [regs_of(o) for o in ops]
        U = lambda l: set().union(*l) if l else set()
        if op.startswith('v_mfma'):
            self.kind = 'mfma'; self.w = R[0]; self.A, self.B, self.C = R[1], R[2], R[3]; self.r = R[1] | R[2] | R[3]
            self.passes = 8 if '32x32' in op else 4
        elif op.startswith('v_cmp'):
            self.kind = 'valu'; self.w = R[0]; self.r = U(R[1:])
        elif op.startswith('v_readfirstlane') or op.startswith('v_readlane'):
            self.kind = 'valu'; self.w = R[0]; self.r = U(R[1:])
        elif op.startswith('v_permlane'):
            self.kind = 'valu'; self.w = R[0] | R[1]; self.r = R[0] | R[1]
        elif op.startswith('v_add_co') or op.startswith('v_sub_co') or op.startswith('v_addc_co'):
            self.kind = 'valu'; self.w = R[0] | R[1]; self.r = U(R[2:])
        elif op.startswith('v_'):
            self.kind = 'valu'; self.w = R[0]; self.r = U(R[1:])
            if op.startswith('v_fmac') or op.startswith('v_dot2c'): self.r |= R[0]
        elif op.startswith('ds_read'):
            self.kind = 'ds'; self.w = R[0]; self.r = R[1]
        elif op.startswith('ds_write'):
            self.kind = 'ds'; self.r = U(R)
        elif op.startswith('ds_bpermute') or op.startswith('ds_swizzle'):
            self.kind = 'ds'; self.w = R[0]; self.r = U(R[1:])
        elif op.startswith('buffer_load'):
            self.kind = 'vm'
            if 'lds' in mods.split():
                self.r = U(R) | {('s', 'm0')}; self.dma = True
            else:
                self.w = R[0]; self.r = U(R[1:])
        elif op.startswith('global_load_lds'):
            self.kind = 'vm'; self.r = U(R) | {('s', 'm0')}; self.dma = True
        elif op.startswith('global_load'):
            self.kind = 'vm'; self.w = R[0]; self.r = U(R[1:])
        elif op.startswith('buffer_store') or op.startswith('buffer_atomic'):
            self.kind = 'vm'; self.r = U(R); self.sdata = R[0]
        elif op.startswith('buffer_'):
            self.kind = 'vm'
        elif op.startswith('s_load') or op.startswith('s_memtime') or op.startswith('s_memrealtime'):
            self.kind = 'smem'; self.w = R[0]; self.r = U(R[1:])
        elif op.startswith('s_'):
            self.kind = 'salu'
            if op.startswith(NODST_S): self.r = U(R)
            else:
                self.w = R[0]; self.r = U(R[1:])
                if 'saveexec' in op: self.w |= {('s', 'exec')}
            if op.startswith('s_cbranch_vcc'): self.r |= {('s', 'vcc')}
        self.states = 1
        if op == 's_nop': self.states = int(ops[0], 0) + 1

def check_trace(lines, name='', verbose=True):
    ins = []
    for l in lines:
        t = l.split(';')[0].strip()
        if not t or t.endswith(':') or t.startswith('.'): continue
        ins.append(Ins(t)); mt = re.search(r'tag=(\w+)', l); ins[-1].tag = mt.group(1) if mt else None
        if 'nodep' in l: ins[-1].w = set()
    probs = []
    m0tag = None
    pos = []
    c = 0
    for i in ins:
        pos.append(c); c += i.states
    WIN = 40
    dsq = []; vmq = []
    for n, i in enumerate(ins):
        if ('s', 'm0') in i.w: m0tag = i.tag
        if getattr(i, 'dma', False) and i.tag != m0tag: probs.append(f'{name}: [{n}] {i.text} tag {i.tag} but m0 tag {m0tag}')
        if i.op == 's_waitcnt':
            m = re.search(r'lgkmcnt\((\d+)\)', i.text)
            if m:
                k = int(m.group(1))
                while len(dsq) > k: dsq.pop(0)
            m = re.search(r'vmcnt\((\d+)\)', i.text)
            if m:
                k = int(m.group(1))
                while len(vmq) > k: vmq.pop(0)
        if i.op.startswith('s_addc'):
            assert ins[n-1].op.startswith('s_add_u32'), (name, n, i.text, ins[n-1].text)
        if i.op.startswith('s_cselect') or i.op.startswith('s_cbranch_scc'):
            for m_ in range(n - 1, -1, -1):
                p = ins[m_]
                if p.kind == 'salu' and not p.op.startswith(('s_mov', 's_cselect', 's_waitcnt', 's_barrier', 's_nop', 's_mul_i32', 's_branch', 's_cbranch', 's_setprio', 's_getpc', 's_setpc', 's_swappc')):
                    if not p.op.startswith(('s_cmp', 's_bitcmp')): probs.append(f'{name}: [{n}] {i.text}: SCC last written by {p.text}')
                    break
        touched = i.r | i.w
        for q, nm in ((dsq, 'lgkm'), (vmq, 'vm')):
            for d, txt in q:
                if d & touched:
                    probs.append(f'{name}: [{n}] {i.text} touches pending {nm} dest of: {txt}')
        if i.kind == 'ds':
            dsq.append((set(i.w), i.text))
            if len(dsq) > 15: pass
        if i.kind == 'smem': dsq.append((set(i.w), i.text)); dsq.append((set(), i.text))
        if i.kind == 'vm':
            vmq.append((set(i.w), i.text))
            if len(vmq) > 63: probs.append(f'{name}: [{n}] more than 63 vm outstanding')
        for m_ in range(n - 1, max(-1, n - WIN), -1):
            p = ins[m_]
            dist = pos[n] - pos[m_] - p.states
            if dist >= 20: break
            need = 0; why = ''
            if p.kind == 'mfma':
                big = p.passes == 8
                if i.kind == 'mfma':
                    if (i.A | i.B) & p.w: need, why = (12 if big else 8), 'mfmaD->A/B'
                    elif i.C & p.w and not (i.C == p.w and i.passes == p.passes): need, why = (10 if big else 6), 'mfmaD->C overlap'
                    elif i.w & p.w and not (i.C == p.w) and not (i.A == p.A and i.B == p.B): need, why = (12 if big else 8), 'mfmaD WAW (conservative)'
                elif i.kind in ('valu', 'ds', 'vm'):
                    if (i.r | i.w) & p.w: need, why = (12 if big else 8), 'mfmaD->valu/mem'
                    elif i.kind == 'valu' and i.w & p.C: need, why = (7 if big else 3), 'mfmaC WAR'
            elif p.kind == 'valu':
                vw = {x for x in p.w if x[0] in 'va'}
                sw = {x for x in p.w if x[0] == 's'}
                if i.kind == 'mfma' and i.r & vw: need, why = 2, 'valu->mfma'
                if i.kind == 'mfma' and ('s', 'exec') in sw: need, why = 4, 'exec->mfma'
                if i.kind == 'valu':
                    if p.op.startswith(TRANS) and not i.op.startswith(TRANS) and i.r & vw: need, why = max(need, 1), 'trans->valu'
                    if i.op.startswith('v_permlane') and i.r & vw: need, why = 2, 'valu->permlane'
                    if ('dpp' in i.op or 'row_' in i.mods) and i.r & vw: need, why = 2, 'valu->dpp'
                    if (i.op.startswith('v_readfirstlane') or i.op.startswith('v_readlane')) and i.r & vw: need, why = max(need, 1), 'valu->readlane'
                    if i.r & sw: need, why = max(need, 2), 'valu sgpr->valu'
                if i.kind == 'vm' and i.r & sw: need, why = 5, 'valu sgpr->vmem'
                if i.kind == 'salu' and i.r & sw and not i.op.startswith('s_cbranch'): need, why = max(need, 1), 'valu sgpr->salu (pad)'
            elif p.kind == 'salu':
                if ('s', 'm0') in p.w and i.kind == 'vm' and getattr(i, 'dma', False): need, why = 1, 'm0->dma'
            elif p.kind == 'vm' and hasattr(p, 'sdata') and len(p.sdata) >= 3:
                if i.w & p.sdata: need, why = (2 if i.kind in ('valu', 'mfma') else 1), 'store data WAR'
            if dist < need:
                probs.append(f'{name}: [{n}] {i.text}  <- [{m_}] {p.text}: {why} need {need} have {dist}')
    if verbose:
        for p in probs[:40]: print('HAZARD', p)
        print(f'check {name}: {len(ins)} instrs, {len(probs)} problems')
    return probs

def vr(b, n=1, f='v'): return f'{f}{b}' if n == 1 else f'{f}[{b}:{b+n-1}]'
def ar(b, n=1): return vr(b, n, 'a')
def sr(b, n=1): return vr(b, n, 's')

def weave(mfmas, pre, valu):
    out = []
    for g, m in enumerate(mfmas):
        for x in pre.get((g, 'before'), []): out.append(x)
        out.append(m)
        out += pre.get(g, [])
        out += valu.get(g, [])
    return out

def kdesc(name, nv, accum, ns=102):
    return f""".amdhsa_kernel {name}
  .amdhsa_next_free_vgpr {nv}
  .amdhsa_next_free_sgpr {ns}
  .amdhsa_accum_offset {accum}
  .amdhsa_group_segment_fixed_size 0
  .amdhsa_kernarg_size 96
  .amdhsa_user_sgpr_count 2
  .amdhsa_user_sgpr_kernarg_segment_ptr 1
  .amdhsa_system_sgpr_workgroup_id_x 1
  .amdhsa_float_denorm_mode_32 3
.end_amdhsa_kernel
"""

def auto_waits(ctx, lines):
    dsq, vmq = [], []
    out = []
    def step(l, emit):
        t = l.strip()
        wl = wv = None
        if t.startswith(';NEED'):
            touched = set()
            for tok in t.split()[1:]: touched |= regs_of(tok)
            i = None
        elif t.startswith(';VMNEED'):
            tag = t.split()[1]
            idx = [n for n, (d, g) in enumerate(vmq) if g == tag]
            if idx: wv = len(vmq) - 1 - idx[-1]
            touched = set(); i = None
        elif t.startswith(';LGKM0'):
            if dsq: wl = 0
            touched = set(); i = None
        else:
            code = t.split(';')[0].strip()
            if not code or code.endswith(':') or code.startswith('.'):
                if emit: out.append(l)
                return
            i = Ins(code)
            if 'nodep' in t: i.w = set()
            touched = i.r | i.w
            if i.op == 's_waitcnt':
                m = re.search(r'lgkmcnt\((\d+)\)', code)
                if m:
                    while len(dsq) > int(m.group(1)): dsq.pop(0)
                m = re.search(r'vmcnt\((\d+)\)', code)
                if m:
                    while len(vmq) > int(m.group(1)): vmq.pop(0)
        idx = [n for n, (d, g) in enumerate(dsq) if d & touched]
        if idx: wl = len(dsq) - 1 - idx[-1]
        idx = [n for n, (d, g) in enumerate(vmq) if d & touched]
        if idx:
            k = len(vmq) - 1 - idx[-1]
            wv = k if wv is None else min(wv, k)
        if wl is not None or wv is not None:
            s = 's_waitcnt'
            if wv is not None:
                wv = min(wv, 63); s += f' vmcnt({wv})'
                while len(vmq) > wv: vmq.pop(0)
            if wl is not None:
                wl = min(wl, 15); s += f' lgkmcnt({wl})'
                while len(dsq) > wl: dsq.pop(0)
            if emit: out.append(s)
        if i is not None:
            if emit: out.append(l)
            m = re.search(r'tag=(\w+)', t)
            tag = m.group(1) if m else None
            if i.kind == 'ds': dsq.append((set(i.w), tag))
            if i.kind == 'vm': vmq.append((set(i.w), tag))
    for l in ctx: step(l, False)
    for l in lines: step(l, True)
    return out

def dstamp(va, vt, vb):
    return ['s_memtime s[70:71]', 's_memrealtime s[74:75]', 's_waitcnt lgkmcnt(0)', 'v_cmp_eq_u32 vcc, s72, v0', f'v_mov_b32 v{vt}, s70', 's_add_u32 s72, s72, 1',
            f'v_cndmask_b32 v{va}, v{va}, v{vt}, vcc', f'v_mov_b32 v{vt}, s74', f'v_cndmask_b32 v{vb}, v{vb}, v{vt}, vcc']
def dstore(va, vt, vb, sw, sws, mb):
    return ['s_lshl_b32 s70, s2, 2', f's_add_u32 s70, s70, s{sw}', 's_lshl_b32 s70, s70, 9', f's_add_u32 s70, s70, {mb<<20}', f'v_lshlrev_b32 v{vt}, 2, v0',
            f'buffer_store_dword v{va}, v{vt}, s[{sws}:{sws+3}], s70 offen', f'buffer_store_dword v{vb}, v{vt}, s[{sws}:{sws+3}], s70 offen offset:256']

def merge_min(variants):
    base = variants[0]
    for c in variants[1:]:
        if c == base: continue
        mm = []; i = j = 0
        while i < len(base) or j < len(c):
            x = base[i] if i < len(base) else None; y = c[j] if j < len(c) else None
            xw = x is not None and x.startswith('s_waitcnt'); yw = y is not None and y.startswith('s_waitcnt')
            if xw and yw:
                gx = dict(re.findall(r'(\w+cnt)\((\d+)\)', x)); gy = dict(re.findall(r'(\w+cnt)\((\d+)\)', y))
                keys = [k for k in ('vmcnt', 'lgkmcnt') if k in gx or k in gy]
                mm.append('s_waitcnt ' + ' '.join(f'{k}({min(int(gx.get(k, 99)), int(gy.get(k, 99)))})' for k in keys)); i += 1; j += 1
            elif xw: mm.append(x); i += 1
            elif yw: mm.append(y); j += 1
            else:
                assert x == y, (x, y); mm.append(x); i += 1; j += 1
        base = mm
    return base

def code_prefetch(start, end, uid, vtmp, vdst, stmp, nsl):
    return [f's_getpc_b64 s[{stmp}:{stmp+1}]', f'{uid}_PC:', f's_sub_u32 s{stmp}, s{stmp}, {uid}_PC-{start}', f's_subb_u32 s{stmp+1}, s{stmp+1}, 0',
            f's_lshr_b32 s{stmp+2}, s2, 3', f's_and_b32 s{stmp+2}, s{stmp+2}, {nsl-1}', f's_lshl_b32 s{stmp+2}, s{stmp+2}, 13',
            f'v_and_b32 v{vtmp}, 63, v0', f'v_lshlrev_b32 v{vtmp}, 7, v{vtmp}', f'v_add_u32 v{vtmp}, s{stmp+2}, v{vtmp}', f'v_min_u32 v{vtmp}, {end}-{start}-4, v{vtmp}',
            f'global_load_dword v{vdst}, v{vtmp}, s[{stmp}:{stmp+1}]']
```

```python
from lib import *
from layout import *
import struct, math, os
def f32(x): return '0x%08x' % struct.unpack('<I', struct.pack('<f', x))[0]

CA = math.log2(math.e) / math.sqrt(128.0)
vWd, vXd, vWl, vXr, vSt, vWr, vXr2, vSt2 = 2, 6, 10, 14, 16, 18, 26, 17
WF, PK, ACC = 32, 96, 128
sACT, sW, sWS = 28, 32, 36
sWave, sGc, sRem, sLdw, sWoff, sLdw128, sLdw64 = 40, 41, 43, 44, 45, 46, 42
sOut0, sOut1, sScl = 47, 48, 49
sNOut0, sNOut1, sQ0, sQ1 = 50, 51, 52, 58
sType, sBlk, sXoff, sM0W, sM0X, sT0, sT1, sT2, sGcL, sRemL, sWsz, sSR, sSW, sM0X2, sPf = 53, 54, 55, 56, 57, 59, 60, 61, 62, 63, 64, 65, 66, 67, 68
sPX, sPQ, sPo = 76, 80, 84
DK = 1
NSLOT = 6
XBASE = NSLOT * 16384
STORE_FLAGS = os.environ.get('K1_SF', ' sc1')
PF = int(os.environ.get('K1_PF', 1))
WST = int(os.environ.get('K1_WST', 6))
PFR = int(os.environ.get('K1_PFR', 2))
PFM = int(os.environ.get('K1_PFM', 1))
XPF = int(os.environ.get('K1_XPF', 2))
sJ7 = 69
FUSE = int(os.environ.get('FUSE', 1))
PFG = int(os.environ.get('K1_PFG', 130))
DIAG = os.environ.get('DIAG')
def stamp(): return dstamp(31, 30, 29) if DIAG else []
MF = 'v_mfma_f32_16x16x32_bf16'
D = 28
sWoD = 70 if False else 95

def acc(par, ft, tt): return ACC + 64 * par + 4 * (4 * ft + tt)
def xfr(tt, kb): return (tt * 16 + kb) * 4
def wfr(fg, kl): return WF + 4 * (4 * (fg % 4) + kl)
def wfd(g, kbl): return WF + 4 * (2 * (g % 8) + kbl)

def w_read(r):
    r %= 128
    fg, kl, p = r // 8, (r >> 1) & 3, r & 1
    u, ft = fg // 4, fg % 4
    return f'ds_read_b64_tr_b16 {vr(wfr(fg,kl)+2*p,2)}, v{vWr+4*(u&1)+ft} offset:{(32*kl + 4*p)*128}'
def wd_read(r):
    g, kbl, p = r // 4, (r >> 1) & 1, r & 1
    c, ft = g // 8, g % 8
    return f'ds_read_b64_tr_b16 {vr(wfd(g,kbl)+2*p,2)}, v{vWl+(ft&3)} offset:{(c%4)*16384 + (ft>>2)*8192 + (32*kbl + 4*p)*128}'
def wd_dma(c, pad=False):
    L = [f's_add_u32 m0, s{sM0W}, {(c%4)*16384} ; tag=D{c}']
    if pad: L.append('s_nop 0')
    for q in range(4):
        L.append(f'buffer_load_dwordx4 v{vWd+q}, {sr(sW,4)}, s{sWoD} offen offset:{q*1024} lds ; tag=D{c}')
    L.append(f's_add_u32 s{sWoD}, s{sWoD}, s{sLdw64}')
    return L

def ring_adv(s): return [f's_add_u32 s{s}, s{s}, 16384', f's_cmp_eq_u32 s{s}, {XBASE}', f's_cselect_b32 s{s}, 0, s{s}']

def w_dma(u, pad=False):
    L = [f's_add_u32 m0, s{sM0W}, s{sSW} ; tag=W{u}']
    if pad: L.append('s_nop 0')
    for q in range(4):
        L.append(f'buffer_load_dwordx4 v{vWd+q}, {sr(sW,4)}, s{sWoff} offen offset:{q*1024} lds ; tag=W{u}')
    L.append(f's_add_u32 s{sWoff}, s{sWoff}, s{sLdw128}')
    return L + ring_adv(sSW)

def x_dma(c):
    slot = c % 3
    L = []
    for hh in range(2):
        L.append(f's_add_u32 m0, s{sM0X}, {slot*8192 + hh*4096} ; tag=X{c}' if slot < 2 else f's_add_u32 m0, s{sM0X2}, {hh*4096} ; tag=X{c}')
        L.append(f's_add_u32 s{sT0}, s{sXoff}, {c*128 + hh*32768}')
        for q in range(4):
            L.append(f'buffer_load_dwordx4 v{vXd+q}, {sr(sACT,4)}, s{sT0} offen offset:{q*1024} lds ; tag=X{c}')
    return L

def x_read(c, kbl, tt):
    if c % 3 == 2: return f'ds_read_b128 {ar(xfr(tt, 2*c+kbl),4)}, v{vXr2+kbl} offset:{tt*2048}'
    return f'ds_read_b128 {ar(xfr(tt, 2*c+kbl),4)}, v{vXr+kbl} offset:{(c%3)*8192 + tt*2048}'

def load_params():
    return [
        f's_add_u32 s{sGcL}, s{sGcL}, 1',
        f's_sub_u32 s{sRemL}, s{sRemL}, 1',
        f's_cmp_lt_i32 s{sRemL}, 1',
        f's_cselect_b32 s{sW+2}, 0, s{sWsz}',
        f's_and_b32 s{sT1}, s{sGcL}, 63',
        f's_lshl_b32 s{sT1}, s{sT1}, 7',
        f's_mul_i32 s{sWoff}, s{sWave}, s{sLdw}',
        f's_lshl_b32 s{sWoff}, s{sWoff}, 5',
        f's_add_u32 s{sWoff}, s{sWoff}, s{sT1}',
    ]

def comp_params():
    return [
        f's_lshr_b32 s{sT1}, s{sGc}, 1',
        f's_lshl_b32 s{sT1}, s{sT1}, 19',
        f's_and_b32 s{sT2}, s{sGc}, 1',
        f's_lshl_b32 s{sT2}, s{sT2}, 12',
        f's_add_u32 s{sT1}, s{sT1}, s{sT2}',
        f's_lshl_b32 s{sT2}, s{sBlk}, 13',
        f's_add_u32 s{sNOut0}, s{sT1}, s{sT2}',
        f's_add_u32 s{sNOut1}, s{sNOut0}, 8192',
        f's_sub_u32 s{sT1}, s{sGc}, 128',
        f's_lshl_b32 s{sT1}, s{sT1}, 18',
        f's_lshl_b32 s{sT2}, s{sBlk}, 12',
        f's_add_u32 s{sT1}, s{sT1}, s{sT2}',
        f's_add_u32 s{sT1}, s{sT1}, {BWS}',
        f's_add_u32 s{sT2}, s{sT1}, 4096',
        f's_cmp_ge_u32 s{sGc}, 128',
        f's_cselect_b32 s{sNOut0}, s{sT1}, s{sNOut0}',
        f's_cselect_b32 s{sNOut1}, s{sT2}, s{sNOut1}',
        f's_cmp_ge_u32 s{sGc}, 64',
        f's_cselect_b32 s{sType}, 1, 0',
        f's_sub_u32 s{sT1}, s{sGc}, 128',
        f's_cmp_lt_u32 s{sT1}, 16',
        f's_cselect_b32 s{sType}, 0, s{sType}',
    ]

def groups(L):
    out = []
    for x in L:
        if x.startswith('s_cselect'): out[-1].append(x)
        else: out.append([x])
    return out

def epi_part(par, ptype, n):
    V, S = [], []
    y = n >> 1
    for e in range(2):
        fi = 2 * (n & 1) + e
        pk = PK + 4 * ((2 * n + e) % 4)
        if ptype == 0: t0, t1 = acc(par, 2 * (fi >> 1), 2 * y + (fi & 1)), acc(par, 2 * (fi >> 1) + 1, 2 * y + (fi & 1))
        else: t0, t1 = acc(par, fi, 2 * y), acc(par, fi, 2 * y + 1)
        if ptype == 0:
            V += [f'v_mul_f32 v{t+j}, s{sScl}, v{t+j}' for t in (t0, t1) for j in range(4)]
        V += [f'v_cvt_pk_bf16_f32 v{pk}, v{t0}, v{t0+1}', f'v_cvt_pk_bf16_f32 v{pk+1}, v{t0+2}, v{t0+3}',
              f'v_cvt_pk_bf16_f32 v{pk+2}, v{t1}, v{t1+1}', f'v_cvt_pk_bf16_f32 v{pk+3}, v{t1+2}, v{t1+3}']
        S.append(f'buffer_store_dwordx4 {vr(pk,4)}, v{vSt}, {sr(sWS,4)}, s{sOut1 if y else sOut0} offen offset:{fi*1024}{STORE_FLAGS}')
    return V, S

class Blk:
    def __init__(self): self.mf = []; self.pre = {}; self.val = {}
    def P(self, g, x): self.pre.setdefault(g, []).extend(x if isinstance(x, list) else [x])
    def V(self, g, x): self.val.setdefault(g, []).extend(x if isinstance(x, list) else [x])
    def seq(self, g, items, st=2):
        for it in items:
            self.P(g, it); g += st
        return g
    def auto(self, g, items):
        for it in items:
            while g in self.pre or g % 2 == 0: g += 1
            self.P(g, it)
        return g
    def out(self): return weave(self.mf, self.pre, self.val)
def wgroups(dm): return [[dm[0]], [dm[1]], [dm[2]], [dm[3]], [dm[4]], [dm[5]]] + ([[dm[6]], dm[7:]] if len(dm) > 6 else [])
def xgroups(c):
    xd = x_dma(c)
    return [xd[0:2], [xd[2]], [xd[3]], [xd[4]], [xd[5]], xd[6:8], [xd[8]], [xd[9]], [xd[10]], [xd[11]]]
def rotate_params(): return [[f's_mov_b32 s{sOut0}, s{sNOut0}'], [f's_mov_b32 s{sOut1}, s{sNOut1}'], [f's_add_u32 s{sGc}, s{sGc}, 1'], [f's_sub_u32 s{sRem}, s{sRem}, 1']] + groups(comp_params())

def build_pass(ptype, par, prev_type):
    B = Blk()
    for G in range(256):
        u, ft, tt, kl = G // 64, (G >> 4) & 3, (G >> 2) & 3, G & 3
        fg = 4 * u + ft; kb = 4 * u + kl
        a = acc(par, ft, tt)
        w, x = vr(wfr(fg, kl), 4), ar(xfr(tt, kb), 4)
        c = '0' if kb == 0 else vr(a, 4)
        B.mf.append(f'{MF} {vr(a,4)}, ' + (f'{w}, {x}' if ptype == 0 else f'{x}, {w}') + f', {c}')
        if G % 16 == 0: B.P(G - 1 if G else (0, 'before'), f';NEED {vr(wfr(fg,0),16)}')
        if (G + D) % 64 == 0: B.P(G - 1, [f';VMNEED W{((G + D) // 64) % 4}', 's_barrier'])
        if G % 2 == 0: B.P(G, w_read((G + D) // 2))
    for u in range(4):
        g0 = 64 * u
        B.V(g0 + 1, [f'v_add_u32 v{vWr+4*((u+1)&1)+ft}, s{sSR}, v{vWl+ft}' for ft in range(2)])
        B.V(g0 + 3, [f'v_add_u32 v{vWr+4*((u+1)&1)+ft}, s{sSR}, v{vWl+ft}' for ft in range(2, 4)])
        ra = ring_adv(sSR); B.P(g0 + 5, ra[0]); B.P(g0 + 7, ra[1:])
        wg = wgroups(w_dma(u))
        B.P(g0 + 9, wg[0])
        for k in range(4): B.P(g0 + 11 + 4 * k, wg[1 + k])
        B.seq(g0 + 25, wg[5:])
        Vl, Sl = epi_part(par ^ 1, prev_type, u)
        gs = [g for g in range(g0 + 9, g0 + 64) if g % 4 == 1][:len(Vl) // 2]
        for k, g in enumerate(gs): B.V(g, Vl[2*k:2*k+2])
        if u < 3: B.P(g0 + 39, Sl[0]); B.P(g0 + 59, Sl[1])
    Vl, Sl = epi_part(par ^ 1, prev_type, 3)
    B.P(192 + 39, Sl[0]); B.P(192 + 59, Sl[1])
    if PFM == 1:
        B.P(65 + 32, [f's_cmp_eq_u32 s{sRem}, {PFR}', f's_cselect_b32 s{sPX+2}, 0x200000, 0']); B.P(65 + 36, [f's_cmp_eq_u32 s{sRem}, {PFR}', f's_cselect_b32 s{sPQ+2}, 0x400000, 0'])
        for k, x in enumerate(pf_loads()): B.P(107 + 2 * k, x)
    for k, x in enumerate(groups(load_params())): B.P(233 + 2 * (k // 2), x)
    rp = rotate_params()
    g = B.auto(125, [[f's_mov_b32 s{sQ0}, s{sNOut0}', f's_mov_b32 s{sQ1}, s{sNOut1}']] + rp[2:])
    assert g < 232, g
    B.P(253, f's_mov_b32 s{sOut0}, s{sQ0}'); B.P(255, f's_mov_b32 s{sOut1}, s{sQ1}')
    return B.out()

def build_dp(t0, t1):
    B = Blk()
    for G in range(512):
        c, ft, tt, kbl = G // 64, (G >> 3) & 7, (G >> 1) & 3, G & 1
        g = 8 * c + ft; kb = 2 * c + kbl
        a = acc(ft >> 2, ft & 3, tt)
        w, x = vr(wfd(g, kbl), 4), ar(xfr(tt, kb), 4)
        cc = '0' if kb == 0 else vr(a, 4)
        B.mf.append(f'{MF} {vr(a,4)}, ' + (f'{w}, {x}' if (t1 if ft >> 2 else t0) == 0 else f'{x}, {w}') + f', {cc}')
        if G % 16 == 0:
            need = f';NEED {vr(wfd(g,0),16)}'
            if G % 64 == 0: need += ' ' + ' '.join(ar(xfr(t, 2 * c), 8) for t in range(4))
            B.P(G - 1 if G else (0, 'before'), need)
        if (G + D) % 64 == 0:
            nc = (G + D) // 64
            B.P(G - 1, [f';VMNEED D{nc}' if nc < 8 else ';VMNEED W0', 's_barrier'])
        if G % 2 == 0:
            r = (G + D) // 2
            B.P(G, wd_read(r) if r < 256 else w_read(r - 256))
    for c in range(8):
        g0 = 64 * c
        if c + 3 < 8: B.seq(g0 + 1, xgroups(c + 3)[:7]); B.seq(g0 + 17, xgroups(c + 3)[7:])
        if c == 0: B.seq(23, wgroups(wd_dma(2))[:4]); B.seq(33, [sum(wgroups(wd_dma(2))[4:], [])])
        if c + 3 < 8: B.seq(g0 + 37, wgroups(wd_dma(c + 3))[:5]); B.P(g0 + 49, wgroups(wd_dma(c + 3))[5])
        if c < 7:
            B.P(g0 + 45 if c + 3 >= 8 else g0 + 49, f';VMNEED X{c+1}')
            rs = [x_read(c + 1, kbl, tt) for kbl in range(2) for tt in range(4)]
            gs = [49, 51, 53, 55, 57, 59, 61, 61]
            for k, x in enumerate(rs): B.P(g0 + gs[k], x)
    for k, x in enumerate(groups(load_params())): B.P(64 * 4 + 23 + 2 * (k // 2), x)
    B.seq(64 * 5 + 37, wgroups(w_dma(0))[:5]); B.P(64 * 5 + 45, sum(wgroups(w_dma(0))[5:], []))
    g = B.seq(64 * 6 + 1, wgroups(w_dma(1))[:7]); B.P(64 * 6 + 17, wgroups(w_dma(1))[7])
    B.seq(64 * 6 + 19, wgroups(w_dma(2))[:6]); B.P(64 * 6 + 33, sum(wgroups(w_dma(2))[6:], []))
    B.seq(64 * 6 + 37, wgroups(w_dma(3))[:5]); B.P(64 * 6 + 45, sum(wgroups(w_dma(3))[5:], []))
    for k, x in enumerate(groups(load_params())): B.P(64 * 7 + 1 + 2 * (k // 2), x)
    rp = rotate_params()
    g = 64 * 1 + 23
    for k, x in enumerate(rp): B.P(g + 2 * (k // 4), x)
    B.seq(64 * 7 + 11, [[f's_mov_b32 s{sQ0}, s{sNOut0}', f's_mov_b32 s{sQ1}, s{sNOut1}']])
    for k, x in enumerate(rp[2:]): B.P(64 * 7 + 17 + 2 * (k // 3), x)
    g = 64 * 7 + 37
    for n in range(4):
        Vl, Sl = epi_part(0, t0, n)
        h = len(Vl) // 2
        for e in range(2):
            B.V(g, Vl[e*h:e*h+h//2]); B.V(g + 1, Vl[e*h+h//2:(e+1)*h]); B.P(g + 2, Sl[e]); g += 3
    assert g <= 64 * 7 + 62, g
    B.P(511, [f's_mov_b32 s{sOut0}, s{sQ0}', f's_mov_b32 s{sOut1}, s{sQ1}'])
    if PF:
        for k in range(16):
            B.P(PFG + 2 * k, f'buffer_load_dwordx4 {vr(112+4*(k%4),4)}, v{vSt}, {sr(sW,4)}, s{sPf} offen offset:{(k%4)*1024} ; nodep')
            if k % 4 == 3: B.P(PFG + 2 * k, f's_add_u32 s{sPf}, s{sPf}, 4096')
    return B.out()

def pf_loads():
    L = [f'buffer_load_dwordx4 {vr(112+4*q,4)}, v{vSt}, {sr(sPX,4)}, s{sPo} offen offset:{q*1024} ; nodep' for q in range(2)]
    L += [f'buffer_load_dwordx4 {vr(112+4*q,4)}, v{vSt}, {sr(sPQ,4)}, s{sPo+1} offen offset:{q*1024} ; nodep' for q in range(4)]
    return L

def pf_local():
    L = [f's_mov_b32 s{sPX+2}, 0x200000', f's_mov_b32 s{sPQ+2}, 0x400000',
         f's_lshr_b32 s{sPo}, s2, 3', f's_lshl_b32 s{sPo}, s{sPo}, 16', f's_lshl_b32 s{sPo+1}, s{sWave}, 14', f's_add_u32 s{sPo}, s{sPo}, s{sPo+1}',
         'v_lshrrev_b32 v100, 4, v0', 'v_lshlrev_b32 v100, 13, v100', 'v_and_b32 v101, 15, v0', 'v_lshl_add_u32 v100, v101, 4, v100',
         f's_lshr_b32 s{sPo+1}, s2, 5', f's_lshl_b32 s{sPo+1}, s{sPo+1}, 2', f's_add_u32 s{sPo+1}, s{sPo+1}, s{sWave}', f's_lshl_b32 s{sPo+1}, s{sPo+1}, 17',
         f's_and_b32 s{sPo+2}, s2, 31', f's_lshl_b32 s{sPo+2}, s{sPo+2}, 8', f's_add_u32 s{sPo+1}, s{sPo+1}, s{sPo+2}']
    for q in range(4):
        L += [f'buffer_load_dwordx4 {vr(112+4*q,4)}, v100, {sr(sPQ,4)}, s{sPo+1} offen ; nodep', f's_add_u32 s{sPo+1}, s{sPo+1}, 32768']
    for k in range(16):
        L.append(f'buffer_load_dwordx4 {vr(112+4*(k%4),4)}, v{vSt}, {sr(sPX,4)}, s{sPo} offen offset:{(k%4)*1024} ; nodep')
        if k % 4 == 3: L.append(f's_add_u32 s{sPo}, s{sPo}, 4096')
    return L

def relayout_job():
    L = []; a = L.append
    vD, vR, vF = 32, 40, 56
    sU, sSrc, sDst, sA, sB, sS = 45, 46, 47, 48, 49, 88
    a('s_waitcnt lgkmcnt(0)')
    a(f's_mov_b32 s{sWS}, s26'); a(f's_mov_b32 s{sWS+1}, s27'); a(f's_mov_b32 s{sWS+2}, 0x10000000'); a(f's_mov_b32 s{sWS+3}, 0x20000')
    L += pf_setup() + [f's_mov_b32 s{sPX+2}, 0x200000', f's_mov_b32 s{sPQ+2}, 0x400000']
    a(f'v_lshlrev_b32 v{vSt}, 4, v0')
    for j in range(4): a(f'v_mov_b32 v{vF+j}, 0')
    a(f's_lshl_b32 s{sA}, s{sBlk}, 2'); a(f's_add_u32 s{sA}, s{sA}, s{sWave}'); a(f's_lshl_b32 s{sA}, s{sA}, 10'); a(f's_add_u32 s{sA}, s{sA}, {FLG}')
    if not int(os.environ.get('FUSE3', 0)): a(f'buffer_store_dwordx4 {vr(vF,4)}, v{vSt}, {sr(sWS,4)}, s{sA} offen{STORE_FLAGS}')
    L += pf_local() if PFM == 3 else pf_loads()
    a('s_branch K1_END2' if FUSE else 's_branch K1_END')
    return L
def pf_setup():
    return [f's_mov_b64 {sr(sPX,2)}, s[4:5]', f's_mov_b32 s{sPX+3}, 0x20000', f's_mov_b64 {sr(sPQ,2)}, s[8:9]', f's_mov_b32 s{sPQ+3}, 0x20000',
            f's_mov_b32 s{sPX+2}, 0', f's_mov_b32 s{sPQ+2}, 0',
            f's_lshl_b32 s{sPo}, s2, 2', f's_add_u32 s{sPo}, s{sPo}, s{sWave}', f's_lshl_b32 s{sPo+1}, s{sPo}, 12', f's_lshl_b32 s{sPo}, s{sPo}, 11']

def final_epi(par, ptype):
    L = ['s_nop 7']
    if PFM == 2: L = [f's_mov_b32 s{sPX+2}, 0x200000', f's_mov_b32 s{sPQ+2}, 0x400000'] + pf_loads() + ['s_nop 1']
    for n in range(4):
        Vl, Sl = epi_part(par, ptype, n)
        h = len(Vl) // 2
        L += Vl[:h] + [Sl[0]] + Vl[h:] + [Sl[1]]
    return L

def gen_k1(T=int(os.environ.get('K1_T', 4))):
    name = 'k1_kernel'
    L = []
    a = L.append
    a(f'.p2align 8\n.type {name},@function\n{name}:')
    a('s_cmp_ge_u32 s2, 256'); a('s_cbranch_scc1 K1_END')
    if os.environ.get('GDIAG'): a('s_mov_b32 s100, -1')
    if os.environ.get('CPF', '1') == '1': L += code_prefetch('k1_kernel', 'CODE_END', 'K1', 98, 99, 90, 16)
    a('s_load_dwordx16 s[4:19], s[0:1], 0'); a('s_load_dwordx8 s[20:27], s[0:1], 64')
    a('v_lshrrev_b32 v1, 6, v0'); a('v_and_b32 v0, 63, v0')
    a(f'v_readfirstlane_b32 s{sWave}, v1')
    if DIAG: a('s_mov_b32 s72, 0'); a('v_mov_b32 v31, 0'); a('v_mov_b32 v29, 0'); L += stamp()
    nj = 32 // T
    lt = T.bit_length() - 1
    a(f's_and_b32 s{sT0}, s2, 7'); a(f's_lshr_b32 s{sT1}, s2, 3')
    ng = 8 // T
    a(f's_and_b32 s{sT2}, s{sT0}, {ng-1}'); a(f's_lshl_b32 s{sT2}, s{sT2}, {lt}')
    a(f's_and_b32 s{sBlk}, s{sT1}, {T-1}'); a(f's_add_u32 s{sBlk}, s{sBlk}, s{sT2}')
    a(f's_lshr_b32 s{sT0}, s{sT0}, {ng.bit_length()-1}'); a(f's_mul_i32 s{sT0}, s{sT0}, {nj}')
    a(f's_lshr_b32 s{sT1}, s{sT1}, {lt}'); a(f's_add_u32 s{sT0}, s{sT0}, s{sT1}')
    a(f's_lshl_b32 s94, s{sT0}, 2'); a('s_add_u32 s94, s94, 128')
    a(f's_cmp_eq_u32 s{sT0}, 31'); a('s_cbranch_scc1 K1_RELAY')
    a(f's_and_b32 s{sJ7}, s{sT0}, 7'); a(f's_lshl_b32 s{sJ7}, s{sJ7}, 7')
    a(f's_lshl_b32 s{sXoff}, s{sBlk}, 18'); a(f's_lshl_b32 s{sT1}, s{sWave}, 16'); a(f's_add_u32 s{sXoff}, s{sXoff}, s{sT1}')
    a(f's_lshl_b32 s{sBlk}, s{sBlk}, 3'); a(f's_lshl_b32 s{sT1}, s{sWave}, 1'); a(f's_add_u32 s{sBlk}, s{sBlk}, s{sT1}')
    a(f's_mul_i32 s{sT1}, s{sT0}, 79'); a(f's_lshr_b32 s{sT1}, s{sT1}, 10')
    a(f's_mul_i32 s{sT2}, s{sT1}, 13'); a(f's_sub_u32 s{sT2}, s{sT0}, s{sT2}')
    a(f's_lshl_b32 s{sPf}, s{sT2}, 19'); a(f's_lshr_b32 s{sGc}, s{sXoff}, 2'); a(f's_add_u32 s{sPf}, s{sPf}, s{sGc}')
    a(f's_mov_b32 s{sRem}, 5')
    a(f's_cmp_eq_u32 s{sT2}, 12'); a(f's_cselect_b32 s{sRem}, 4, s{sRem}')
    a(f's_cmp_eq_u32 s{sT0}, 30'); a(f's_cselect_b32 s{sRem}, 4, s{sRem}')
    a(f's_mul_i32 s{sT2}, s{sT2}, 5')
    a(f's_lshl_b32 s{sGc}, s{sT1}, 6'); a(f's_add_u32 s{sGc}, s{sGc}, s{sT2}')
    a(f's_lshl_b32 s{sM0W}, s{sWave}, 12')
    a(f's_lshl_b32 s{sM0X}, s{sWave}, 14'); a(f's_add_u32 s{sM0X}, s{sM0X}, {XBASE}')
    a(f's_lshl_b32 s{sM0X2}, s{sWave}, 13'); a(f's_add_u32 s{sM0X2}, s{sM0X2}, 65536')
    a(f'v_lshlrev_b32 v{vSt}, 4, v0')
    t = [100, 101, 102, 103, 104]
    a(f'v_lshrrev_b32 v{t[0]}, 3, v0'); a(f'v_lshlrev_b32 v{t[1]}, 10, v{t[0]}')
    a(f'v_lshrrev_b32 v{t[2]}, 4, v0'); a(f'v_and_b32 v{t[3]}, 7, v0'); a(f'v_xor_b32 v{t[2]}, v{t[2]}, v{t[3]}')
    for q in range(4):
        a(f'v_xor_b32 v{t[4]}, {4*(q&1)}, v{t[2]}'); a(f'v_lshl_add_u32 v{t[4]}, v{t[4]}, 4, v{t[1]}'); a(f'v_add_u32 v{vXd+q}, {q*7168}, v{t[4]}')
    a(f'v_and_b32 v{t[0]}, 15, v0'); a(f'v_lshrrev_b32 v{t[1]}, 4, v0'); a(f'v_bfe_u32 v{t[2]}, v0, 1, 3')
    a(f'v_lshlrev_b32 v{t[0]}, 7, v{t[0]}')
    for kbl in range(2):
        a(f'v_add_u32 v{t[4]}, {4*kbl}, v{t[1]}'); a(f'v_xor_b32 v{t[4]}, v{t[4]}, v{t[2]}'); a(f'v_lshl_add_u32 v{t[4]}, v{t[4]}, 4, v{t[0]}')
        a(f'v_add_u32 v{vXr+kbl}, s{sM0X}, v{t[4]}'); a(f'v_add_u32 v{vXr2+kbl}, s{sM0X2}, v{t[4]}')
    a(f'v_bfe_u32 v{t[0]}, v0, 2, 2'); a(f'v_lshrrev_b32 v{t[1]}, 4, v0'); a(f'v_lshl_add_u32 v{t[1]}, v{t[1]}, 3, v{t[0]}'); a(f'v_lshlrev_b32 v{t[1]}, 7, v{t[1]}')
    a(f'v_and_b32 v{t[2]}, 3, v0'); a(f'v_lshl_add_u32 v{t[1]}, v{t[2]}, 3, v{t[1]}')
    a(f'v_bfe_u32 v{t[2]}, v0, 3, 2')
    for ft in range(4):
        a(f'v_xor_b32 v{t[3]}, {ft}, v{t[2]}'); a(f'v_lshl_add_u32 v{vWl+ft}, v{t[3]}, 5, v{t[1]}'); a(f'v_add_u32 v{vWr+ft}, 65536, v{vWl+ft}')
    a('s_waitcnt lgkmcnt(0)')
    a(f's_mov_b32 s{sWS}, s26'); a(f's_mov_b32 s{sWS+1}, s27'); a(f's_mov_b32 s{sWS+2}, 0x10000000'); a(f's_mov_b32 s{sWS+3}, 0x20000')
    a(f's_mov_b32 s{sW+3}, 0x20000'); a(f's_mov_b32 s{sACT+2}, 0x200000'); a(f's_mov_b32 s{sACT+3}, 0x20000')
    L += pf_setup()
    if os.environ.get('GDIAG'):
        a('s_mov_b32 s96, s24'); a('s_mov_b32 s97, s25'); a('s_mov_b32 s98, 256'); a('s_mov_b32 s99, 0x20000')
        a('s_mov_b32 s100, -1'); a(f's_cmp_eq_u32 s2, {os.environ.get("GA", 66)}'); a('s_cselect_b32 s100, 0, s100'); a(f's_cmp_eq_u32 s2, {os.environ.get("GB", 103)}'); a('s_cselect_b32 s100, 32, s100'); a(f's_cmp_lg_u32 s{sWave}, 0'); a('s_cselect_b32 s100, -1, s100')
        L += gstamp(0, 96, 96, 97, neg=True) + gstamp(1, 96, 96, 97)
    a(f's_cmp_eq_u32 s{sT1}, 0'); a(f's_cselect_b64 {sr(sW,2)}, s[10:11], s[12:13]'); a(f's_cselect_b32 s{sScl}, {f32(CA)}, 1.0')
    a(f's_cmp_eq_u32 s{sT1}, 2'); a(f's_cselect_b64 {sr(sW,2)}, s[18:19], {sr(sW,2)}'); a(f's_cselect_b64 {sr(sACT,2)}, s[16:17], s[6:7]')
    a(f's_movk_i32 s{sLdw}, 8192'); a(f's_cselect_b32 s{sLdw}, 3072, s{sLdw}')
    a(f's_mov_b32 s{sWsz}, 0x400000'); a(f's_cselect_b32 s{sWsz}, 0x180000, s{sWsz}')
    a(f's_lshl_b32 s{sLdw128}, s{sLdw}, 7'); a(f's_lshl_b32 s{sLdw64}, s{sLdw}, 6')
    a(f'v_lshrrev_b32 v{t[0]}, 3, v0'); a(f'v_mul_lo_u32 v{t[0]}, v{t[0]}, s{sLdw}')
    a(f'v_bfe_u32 v{t[1]}, v0, 4, 1'); a(f'v_lshlrev_b32 v{t[1]}, 1, v{t[1]}'); a(f'v_and_b32 v{t[2]}, 7, v0'); a(f'v_xor_b32 v{t[1]}, v{t[1]}, v{t[2]}')
    a(f's_lshl_b32 s{sT1}, s{sLdw}, 3'); a(f's_sub_u32 s{sT1}, s{sT1}, 1024')
    for q in range(4):
        a(f'v_xor_b32 v{t[2]}, {4*(q&1)}, v{t[1]}'); a(f'v_lshl_add_u32 v{vWd+q}, v{t[2]}, 4, v{t[0]}')
        if q < 3: a(f'v_add_u32 v{t[0]}, s{sT1}, v{t[0]}')
    a(f's_add_u32 s{sGcL}, s{sGc}, 1'); a(f's_sub_u32 s{sRemL}, s{sRem}, 1'); a(f's_mov_b32 s{sW+2}, s{sWsz}')
    a(f's_mov_b32 s{sSW}, 65536'); a(f's_mov_b32 s{sSR}, 81920')
    a(f's_and_b32 s{sT1}, s{sGc}, 63'); a(f's_lshr_b32 s{sT2}, s{sWave}, 1'); a(f's_add_u32 s{sT1}, s{sT1}, s{sT2}'); a(f's_lshl_b32 s{sT1}, s{sT1}, 7')
    a(f's_and_b32 s{sT2}, s{sWave}, 1'); a(f's_mul_i32 s{sWoD}, s{sT2}, s{sLdw}'); a(f's_lshl_b32 s{sWoD}, s{sWoD}, 5'); a(f's_add_u32 s{sWoD}, s{sWoD}, s{sT1}')
    xpf = [f'v_lshlrev_b32 v97, 10, v0', f's_add_u32 s{sT1}, s{sXoff}, s{sJ7}', f'buffer_load_dword v96, v97, {sr(sACT,4)}, s{sT1} offen ; nodep'] if XPF else []
    pro = wd_dma(0, True) + x_dma(0) + xpf + wd_dma(1, True) + x_dma(1) + comp_params()
    pro += [';VMNEED X0', 's_barrier']
    pro += [wd_read(i) for i in range(4)] + [x_read(0, kbl, tt) for tt in range(4) for kbl in range(2)] + [wd_read(i) for i in range(4, D // 2)]
    pro += x_dma(2)
    pro = auto_waits([], pro)
    L += pro
    L += stamp() + gstamp(2, 96, 100, 101) + gstamp(3, 96, 100, 101, neg=True)
    a(f's_cmp_eq_u32 s{sType}, 1'); a('s_cbranch_scc1 K1_D11'); a(f's_cmp_eq_u32 s{sGc}, 143'); a('s_cbranch_scc1 K1_D01')
    code = {}
    dps = [(0, 0), (0, 1), (1, 1)]
    for t0_, t1_ in dps:
        code['D', t0_, t1_] = auto_waits(pro, build_dp(t0_, t1_))
    combos = [(0, 0), (1, 1)]
    for t_, pt in combos:
        for par in range(2):
            raw = build_pass(t_, par, pt)
            c1 = auto_waits(pro + code['D', 0, 0], raw)
            c2 = auto_waits(code['D', 0, 0] + c1, raw)
            c3 = auto_waits(c1 + c2, raw)
            code['P', t_, pt, par] = merge_min([c1, c2, c3] if par == 0 else [c2, c3])
    uid = [0]
    def tail(t_, par):
        x = stamp() + [f's_cmp_eq_u32 s{sRem}, 0', f's_cbranch_scc1 K1_FIN{t_}{par}']
        if PFM == 3:
            uid[0] += 1
            x += [f's_cmp_lg_u32 s{sRem}, 1', f's_cbranch_scc1 K1_NPF{uid[0]}', 's_call_b64 s[88:89], K1_PFL', f'K1_NPF{uid[0]}:']
        return x + [f's_branch K1_P{t_}{t_}{par^1}']
    for t0_, t1_ in dps:
        a(f'.p2align 6\nK1_D{t0_}{t1_}:'); L += code['D', t0_, t1_] + gstamp(4, 96, 100, 101) + gstamp(5, 96, 100, 101, neg=True) + tail(t1_, 1)
    for t_, pt in combos:
        for par in range(2):
            a(f'.p2align 6\nK1_P{t_}{pt}{par}:'); L += code['P', t_, pt, par] + tail(t_, par)
    for t_ in range(2):
        for par in range(2):
            a(f'K1_FIN{t_}{par}:'); L += final_epi(par, t_); a('s_branch K1_END2')
    a('K1_RELAY:'); L += relayout_job()
    if PFM == 3:
        a('K1_PFL:'); L += pf_local() + ['s_setpc_b64 s[88:89]']
    a('K1_END:'); a('s_endpgm')
    a('K1_END2:')
    if DIAG:
        L += stamp()
        if not FUSE: a('s_waitcnt vmcnt(0)')
        L += stamp()
        L += dstore(31, 30, 29, sWave, sWS, 200)
    if FUSE: a('s_waitcnt vmcnt(8) lgkmcnt(0)')
    else: a('s_endpgm')
    check_trace(pro + code['D', 0, 0] + tail(0, 1) + code['P', 0, 0, 0] + tail(0, 0) + code['P', 0, 0, 1] + tail(0, 1) + code['P', 0, 0, 0] + final_epi(0, 0), 'k1a')
    check_trace(pro + code['D', 0, 1] + tail(1, 1) + code['P', 1, 1, 0] + tail(1, 0) + code['P', 1, 1, 1] + tail(1, 1) + final_epi(1, 1), 'k1b')
    return L, kdesc(name, 512, 256), f'; @launch kernel={name} grid=(256,1,1) block=(256,1,1) lds=163840'
```

```python
from lib import *
from layout import *
import os, struct, math
def f32(x): return '0x%08x' % struct.unpack('<I', struct.pack('<f', x))[0]
DIAG = os.environ.get('DIAG')
FUSE = int(os.environ.get('FUSE', 1))
FUSE3 = int(os.environ.get('FUSE3', 0))
sSig = 88
sDB = 80
KVF = os.environ.get('K2_KVF', ' sc1')
SF = os.environ.get('K2_SF', ' sc1')
THR = 2.0 ** float(os.environ.get('THR', 40.0))
NEGBIG = -1.0e30
D = 24
MF = 'v_mfma_f32_16x16x32_bf16'
vL16, vRd, vq, vBig, vd, vl, vt, vT = 1, 2, 4, 5, 6, 8, 12, 16
NM = 20
vDl = 36
vDG = 44
S0, P0, Q0, TMPV = 48, 112, 144, 208
O0, FR = 0, 128
sWS, sX, sWQ, sWO, sWB = 8, 12, 16, 60, 64
sW, sH, sI, sK, sV, sSR, sSW, sCnt, sKc, sMq, sRet, sT, sMk, sW2, sW4 = 20, 21, 22, 23, 24, 25, 26, 27, 28, 29, 30, 32, 40, 48, 49
sW2K, sW4K = 58, 59
sFa, sFw = 92, 93
sK2, sV2 = 84, 86
sXa, sXb, sWo, sXs = 50, 51, 52, 53

def stamp(): return dstamp(vDG, vDG + 1, vDG + 2) if DIAG else []
def Sr(par, idx): return S0 + 32 * par + 4 * idx
def Pr(par, u): return P0 + 16 * par + 4 * u
def Or(qt, dt): return O0 + 32 * qt + 4 * dt
def Qr(qt, db): return Q0 + 16 * qt + 4 * db
def slot(g): return FR + 4 * ((g // 2) % 16)
def tq(t, idx): return (idx & 3) if t == 'c' else 2 + (idx & 1)
def tkt(t, idx): return (idx >> 2) if t == 'c' else (idx >> 1)
def tP(t, idx):
    if t == 'c': return idx & 3, idx >> 2
    kt = idx >> 1
    return 2 * (kt >> 1) + (idx & 1), kt & 1

def pv_frags(t):
    if t == 'c': return [(4 * dt, dt * 1024) for dt in range(8)]
    return [(4 * dt + 2 * kb, kb * 8192 + dt * 1024) for dt in range(8) for kb in range(2)]
def koff(kt, db): return (kt >> 1) * 8192 + (2 * db + (kt & 1)) * 1024
def qk_frags(t):
    if t == 'c': return [(32 + 16 * kt + 4 * db, 16384 + koff(kt, db)) for kt in range(2) for db in range(4)]
    return [(32 + 8 * kt + 2 * db, 16384 + koff(kt, db)) for kt in range(4) for db in range(4)]
def rd(g, off, par): return f'ds_read_b128 {ar(slot(g),4)}, v{vRd+par} offset:{off}'

def pv_mfmas(t, par):
    out = []
    for dt in range(8):
        for x in range(4):
            if t == 'c': qt, u, g = x, x, 4 * dt
            else: qt, u, g = 2 + (x & 1), x, 4 * dt + 2 * (x >> 1)
            o = Or(qt, dt)
            out.append(f'{MF} {ar(o,4)}, {ar(slot(g),4)}, {vr(Pr(par,u),4)}, {ar(o,4)}')
    return out
def qk_mfmas(t, par, czero=False, fr=None):
    out = []
    nkt, nq = (2, 4) if t == 'c' else (4, 2)
    for kt in range(nkt):
        for db in range(4):
            g = 32 + (16 * kt + 4 * db if t == 'c' else 8 * kt + 2 * db)
            f = ar(slot(g), 4) if fr is None else fr(kt, db)
            for x in range(nq):
                idx = nq * kt + x; qt = tq(t, idx); s = Sr(par, idx)
                c = vr(s, 4) if db else ('0' if czero else vr(NM + 4 * qt, 4))
                out.append(f'{MF} {vr(s,4)}, {f}, {vr(Qr(qt,db),4)}, {c}')
    return out

def mask_ops(par, t, k, dyn=None):
    L = []
    src = f's{dyn}' if dyn is not None else str(32 * k)
    L += [f'v_subrev_u32 v{vd}, {src}, v{vq}', f'v_add_u32 v{vd+1}, 16, v{vd}']
    tiles = [i for i in range(8) if (t == 's' or (i & 3) < 2)]
    for idx in tiles:
        s = Sr(par, idx); kt = tkt(t, idx); qq = idx & 1
        for j in range(4): L.append(f'v_cmp_gt_i32 {sr(sMk+2*j,2)}, {16*kt+j}, v{vd+qq}')
        for j in range(4): L.append(f'v_cndmask_b32 v{s+j}, v{s+j}, v{vBig}, {sr(sMk+2*j,2)}')
    return L

def exp_ops(par, t):
    L = []; seen = set()
    def tail(idx):
        s = Sr(par, idx); qt = tq(t, idx); u, h = tP(t, idx); a = vt + qt
        if qt not in seen:
            seen.add(qt); x = [f'v_add_f32 v{a}, v{s}, v{s+1}']
        else: x = [f'v_add_f32 v{a}, v{a}, v{s}', f'v_add_f32 v{a}, v{a}, v{s+1}']
        p = Pr(par, u) + 2 * h
        return x + [f'v_cvt_pk_bf16_f32 v{p}, v{s}, v{s+1}', f'v_add_f32 v{a}, v{a}, v{s+2}', f'v_add_f32 v{a}, v{a}, v{s+3}', f'v_cvt_pk_bf16_f32 v{p+1}, v{s+2}, v{s+3}']
    prev = None
    for idx in range(8):
        s = Sr(par, idx)
        e = [f'v_exp_f32 v{s+j}, v{s+j}' for j in range(4)]
        tl = tail(prev) if prev is not None else []
        L += [e[0]] + tl[:2] + [e[1]] + tl[2:4] + [e[2]] + tl[4:] + [e[3]]
        prev = idx
    L += ['s_nop 0'] + tail(prev)
    return L
def lupd(t): return [f'v_add_f32 v{vl+q}, v{vl+q}, v{vt+q}' for q in ((0, 1, 2, 3) if t == 'c' else (2, 3))]
def chk(t):
    if t == 'c': L = [f'v_max3_f32 v{vT}, v{vt}, v{vt+1}, v{vt+2}', f'v_max_f32 v{vT}, v{vT}, v{vt+3}']
    else: L = [f'v_max_f32 v{vT}, v{vt+2}, v{vt+3}']
    return L + [f'v_cmp_nge_f32 vcc, {f32(THR)}, v{vT}']

def adv64(p, x): return [f's_add_u32 s{p}, s{p}, {x}', f's_addc_u32 s{p+1}, s{p+1}, 0']
def dma_part(kind, t, tag):
    so = sV2 if kind == 'V' else sK2
    w = (sW4 if t == 's' else sW2) if kind == 'V' else (sW4K if t == 's' else sW2K)
    n = 4 if t == 's' else 2
    items = [[f's_add_u32 m0, s{sSW}, s{w} ; tag={tag}']]
    for q in range(n):
        items.append([f'global_load_lds_dwordx4 v{vL16}, {sr(so,2)} offset:{q*1024}{KVF} ; tag={tag}'])
    items.append(adv64(so, n * 4096))
    return items
def flat(L):
    o = []
    for x in L:
        if isinstance(x, list): o += flat(x)
        else: o.append(x)
    return o

STUBS = []
def body(par, pv, sm, qk, nxt_pv, vload, kload, mask, uid):
    psm = par ^ 1
    mf = []
    if pv: mf += pv_mfmas(pv, par)
    if qk: mf += qk_mfmas(qk, par)
    ng = len(mf)
    pre = {}
    def P(g, x): pre.setdefault(g, []).extend(x if isinstance(x, list) else [x])
    frs = (pv_frags(pv) if pv else []) + (qk_frags(qk) if qk else [])
    for g, off in frs:
        if g - D >= 0: P(g - D, rd(g, off, par))
    for g0 in range(0, ng, 8):
        need = [ar(slot(g), 4) for g, off in frs if g0 <= g < g0 + 8]
        P(g0 - 1 if g0 else (0, 'before'), ';NEED ' + ' '.join(need))
    if nxt_pv:
        gb = ng - D
        P(gb - 3, [f';VMNEED U{par^1}', 's_barrier'])
        for g, off in pv_frags(nxt_pv):
            if g < D: P(ng + g - D, rd(g, off, par ^ 1))
    items = []
    if vload: items += dma_part('V', vload, f'U{par}')
    if kload: items += dma_part('K', kload, f'U{par}')
    if nxt_pv: items += [[f's_add_u32 s{sSR}, s{sSR}, 32768'], [f's_and_b32 s{sSR}, s{sSR}, 0x1ffff']]
    if vload or kload: items += [[f's_add_u32 s{sSW}, s{sSW}, 32768'], [f's_and_b32 s{sSW}, s{sSW}, 0x1ffff']]
    if sm:
        items += [[f's_add_u32 s{sKc}, s{sKc}, {8192 if pv == "c" else 16384}'], [f's_mov_b32 s{sMq}, {32*mask if mask is not None else -4096}']]
    free = [g for g in range(1, ng) if g not in pre and not (g == ng - 1)]
    lim = (ng - D - 2) if nxt_pv else ng - 2
    gi = 0; lastd = -9
    for it in items:
        isd = it[0].startswith(('buffer', 'global'))
        while gi < len(free) and (isd and free[gi] - lastd < DSP): gi += 1
        g = free[gi]; gi += 1
        if isd:
            lastd = g
        P(g, it)
    Pq = []; Eq = []
    if nxt_pv: Pq.append(f'v_add_u32 v{vRd+(par^1)}, s{sSR}, v{vL16}')
    if pv: Pq += lupd(pv)
    if sm:
        if mask is not None: Pq += mask_ops(psm, sm, mask)
        for x in exp_ops(psm, sm):
            if x.startswith('v_exp'): Eq.append(x)
            elif x.startswith('v_'): Pq.append(x)
        NL = int(os.environ.get('K2_NL', 6))
        cv = [k for k, x in enumerate(Pq) if x.startswith('v_cvt')][-NL:]
        late = [Pq[k] for k in cv]
        Pq = [x for k, x in enumerate(Pq) if k not in cv] + chk(sm) + late
    cap = {}
    for g in range(ng):
        n = sum(2 if x.startswith(('buffer', 'ds_', 'global')) else 1 for x in pre.get(g, []))
        cap[g] = max(0, 2 - max(0, n - 1))
    last = ng - 1 if qk else ng - 2
    total = 2 * len(Eq) + len(Pq)
    def sched(extra):
        cp = dict(cap)
        for k in range(extra): cp[(k * (last + 1) // max(extra, 1)) % (last + 1)] += 1
        val = {}; pi = ei = 0
        eiss = {}
        ereg = [Ins(x).w for x in Eq]; allE = set().union(*ereg) if ereg else set()
        pend_mask = {}
        for k, x in enumerate(Pq):
            if x.startswith('v_cndmask'):
                for r in Ins(x).w: pend_mask[r] = k
        for g in range(last + 1):
            sl = cp[g]
            while sl > 0:
                if ei < len(Eq) and sl >= 2 and all(pend_mask.get(r, -1) < pi for r in ereg[ei]):
                    val.setdefault(g, []).append(Eq[ei])
                    for r in ereg[ei]: eiss[r] = g
                    ei += 1; sl -= 2; continue
                if pi < len(Pq):
                    x = Pq[pi]; ins = Ins(x)
                    ok = x.startswith('v_cndmask') or all(eiss.get(r, 999) < g for r in ins.r & allE)
                    if ok:
                        val.setdefault(g, []).append(x); pi += 1; sl -= 1; continue
                break
        return val, (len(Eq) - ei) + (len(Pq) - pi)
    extra = 0
    while True:
        val, left = sched(extra)
        if left == 0: break
        extra += 1
    if os.environ.get('VERB'): print(uid, 'valu', total, 'avail', sum(cap[g] for g in range(last + 1)), 'extra', extra)
    if sm:
        pre.setdefault(ng - 1, []).extend([f's_cbranch_vccnz K2_S_{uid}', f'K2_R_{uid}:'])
        STUBS.extend([f'K2_S_{uid}:', f's_call_b64 {sr(sRet,2)}, K2_RARE_{psm}{sm}{qk or "n"}', f's_branch K2_R_{uid}'])
        RARES.add((psm, sm, qk or 'n'))
    return weave(mf, pre, val)
RARES = set()
DSP = int(os.environ.get('K2_DSP', 3))

def xlane(op, r, tmp):
    return [f'v_mov_b32 v{tmp}, v{r}', 's_nop 1', f'v_permlane32_swap_b32 v{r}, v{tmp}', f'{op} v{r}, v{r}, v{tmp}',
            f'v_mov_b32 v{tmp}, v{r}', 's_nop 1', f'v_permlane16_swap_b32 v{r}, v{tmp}', f'{op} v{r}, v{r}, v{tmp}']
def deltas(par, t, clamp):
    L = []
    qs = (0, 1, 2, 3) if t == 'c' else (2, 3)
    for q in qs:
        regs = [Sr(par, i) + j for i in range(8) if tq(t, i) == q for j in range(4)]
        L.append(f'v_max_f32 v{vDl+q}, v{regs[0]}, v{regs[1]}')
        for k in range(2, len(regs), 2): L.append(f'v_max3_f32 v{vDl+q}, v{vDl+q}, v{regs[k]}, v{regs[k+1]}')
        L += xlane('v_max_f32', vDl + q, vT) + [f'v_ceil_f32 v{vDl+q}, v{vDl+q}']
        if clamp: L.append(f'v_max_f32 v{vDl+q}, 0, v{vDl+q}')
    return L
def sub_tiles(par, t): return [f'v_sub_f32 v{Sr(par,i)+j}, v{Sr(par,i)+j}, v{vDl+tq(t,i)}' for i in range(8) for j in range(4)]

def rare(par, t, tn):
    L = [f'K2_RARE_{par}{t}{tn}:', 's_nop 7', 's_nop 7']
    nkt = 2 if t == 'c' else 4
    R = []
    mf = qk_mfmas(t, par, fr=lambda kt, db: vr(TMPV + 16 * (kt & 1) + 4 * db, 4))
    per = len(mf) // nkt
    for k0 in range(0, nkt, 2):
        R.append(f's_add_u32 s{sT+4}, s{sKc}, {k0*4096}'); R.append(f's_add_u32 s{sT+5}, s{sT+4}, 4096')
        for kt in range(2):
            for db in range(4):
                o = (2 * db + kt) * 1024
                R.append(f'buffer_load_dwordx4 {vr(TMPV+16*kt+4*db,4)}, v{vL16}, {sr(sWS,4)}, s{sT+4+(o>>12)} offen offset:{o&4095}{KVF}')
        R.append('s_waitcnt vmcnt(0)')
        R += mf[per*k0:per*(k0+2)] + ['s_nop 7']
    R += mask_ops(par, t, None, dyn=sMq) + deltas(par, t, True)
    if t == 's': R += [f'v_mov_b32 v{vDl}, 0', f'v_mov_b32 v{vDl+1}, 0']
    R += sub_tiles(par, t)
    if tn != 'n': R += sub_tiles(par ^ 1, tn)
    for q in range(4):
        for j in range(4): R.append(f'v_sub_f32 v{NM+4*q+j}, v{NM+4*q+j}, v{vDl+q}')
        R.append(f'v_exp_f32 v{vDl+4+q}, -v{vDl+q}')
    R += exp_ops(par, t)
    for q in range(4): R.append(f'v_mul_f32 v{vl+q}, v{vl+q}, v{vDl+4+q}')
    for q in ((0, 1, 2, 3) if t == 'c' else (2, 3)):
        for j0 in range(0, 32, 8):
            for j in range(8): R.append(f'v_accvgpr_read_b32 v{TMPV+j}, a{Or(q,0)+j0+j}')
            for j in range(8): R.append(f'v_mul_f32 v{TMPV+j}, v{TMPV+j}, v{vDl+4+q}')
            for j in range(8): R.append(f'v_accvgpr_write_b32 a{Or(q,0)+j0+j}, v{TMPV+j}')
    R += ['s_nop 1', f's_setpc_b64 {sr(sRet,2)}']
    check_trace(R, f'rare{par}{t}{tn}', bool(os.environ.get('VERB')))
    return L + R

K = 1024
XS = [[32*K, 48*K, 8*K, 24*K], [40*K, 56*K, 88*K, 96*K], [0, 16*K, 80*K, 112*K]]
WSL = [64*K, 144*K, 128*K]
vXd, vWd, vXr, vWr = 208, 212, 216, 222
QACC = 48
XF, WFq = 0, 64
def qacc(ft, tt): return QACC + 4 * (4 * ft + tt)
def xf(c, kbl, tt): return XF + 32 * (c & 1) + 16 * kbl + 4 * tt
def wf(c, kbl, ft): return WFq + 64 * (c & 1) + 32 * kbl + 4 * ft
def q_dma(c):
    sl = c % 3
    it = []
    for ab, so in enumerate((sXa, sXb)):
        it.append([f's_add_u32 m0, s{sXs+sl}, {ab*4096} ; tag=C{c}', f's_add_u32 s{sT}, s{so}, {c*128}'])
        for q in range(4): it.append([f'buffer_load_dwordx4 v{vXd+q}, {sr(sX,4)}, s{sT} offen offset:{q*1024} lds ; tag=C{c}'])
    it.append([f's_add_u32 m0, s{sW4}, {WSL[sl]} ; tag=C{c}', f's_add_u32 s{sT}, s{sWo}, {c*64*8192}'])
    for q in range(4): it.append([f'buffer_load_dwordx4 v{vWd+q}, {sr(sWQ,4)}, s{sT} offen offset:{q*1024} lds ; tag=C{c}'])
    return it
def q_reads(c):
    sl = c % 3
    L = []
    for kbl in range(2):
        for tt in range(4): L.append(f'ds_read_b128 {ar(xf(c,kbl,tt),4)}, v{vXr+2*sl+kbl} offset:{tt*2048}')
        for ft in range(8):
            for p in range(2):
                off = WSL[sl] - 128*K * (sl > 0) + (32 * kbl + 4 * p) * 256
                L.append(f'ds_read_b64_tr_b16 {ar(wf(c,kbl,ft)+2*p,2)}, v{vWr+ft+8*(sl>0)} offset:{off - (64*K if sl == 0 else 0)}')
    return L
def q_setup():
    t = [240, 241, 242, 243, 244]
    L = []
    a = L.append
    a(f's_lshl_b32 s{sXa}, s{sI}, 17'); a(f's_lshl_b32 s{sT}, s{sW}, 15'); a(f's_sub_u32 s{sXb}, {15*128*1024}, s{sXa}')
    a(f's_add_u32 s{sXa}, s{sXa}, s{sT}'); a(f's_add_u32 s{sXb}, s{sXb}, s{sT}')
    a(f's_lshl_b32 s{sWo}, s{sH}, 8'); a(f's_lshl_b32 s{sT}, s{sW}, 17'); a(f's_add_u32 s{sWo}, s{sWo}, s{sT}')
    for sl in range(3):
        a(f's_mov_b32 s{sXs+sl}, {XS[sl][0]}')
        for w in range(1, 4):
            a(f's_cmp_eq_u32 s{sW}, {w}'); a(f's_cselect_b32 s{sXs+sl}, {XS[sl][w]}, s{sXs+sl}')
    a(f'v_lshrrev_b32 v{t[0]}, 3, v0'); a(f'v_lshlrev_b32 v{t[1]}, 10, v{t[0]}')
    a(f'v_lshrrev_b32 v{t[2]}, 4, v0'); a(f'v_and_b32 v{t[3]}, 7, v0'); a(f'v_xor_b32 v{t[2]}, v{t[2]}, v{t[3]}')
    for q in range(4):
        a(f'v_xor_b32 v{t[4]}, {4*(q&1)}, v{t[2]}'); a(f'v_lshl_add_u32 v{t[4]}, v{t[4]}, 4, v{t[1]}'); a(f'v_add_u32 v{vXd+q}, {q*7168}, v{t[4]}')
    a(f'v_lshrrev_b32 v{t[0]}, 4, v0'); a(f'v_lshlrev_b32 v{t[1]}, 13, v{t[0]}'); a(f'v_lshlrev_b32 v{t[0]}, 1, v{t[0]}')
    a(f'v_and_b32 v{t[2]}, 15, v0'); a(f'v_xor_b32 v{t[2]}, v{t[2]}, v{t[0]}')
    for q in range(4):
        a(f'v_xor_b32 v{t[4]}, {8*(q>>1)}, v{t[2]}'); a(f'v_lshl_add_u32 v{t[4]}, v{t[4]}, 4, v{t[1]}'); a(f'v_add_u32 v{vWd+q}, {q*(4*8192-1024)}, v{t[4]}')
    return L
def q_setup2():
    t = [240, 241, 242, 243, 244]
    L = []; a = L.append
    a(f'v_and_b32 v{t[0]}, 15, v0'); a(f'v_lshrrev_b32 v{t[1]}, 4, v0'); a(f'v_bfe_u32 v{t[2]}, v0, 1, 3'); a(f'v_lshlrev_b32 v{t[0]}, 7, v{t[0]}')
    for kbl in range(2):
        a(f'v_add_u32 v{t[4]}, {4*kbl}, v{t[1]}'); a(f'v_xor_b32 v{t[4]}, v{t[4]}, v{t[2]}'); a(f'v_lshl_add_u32 v{t[4]}, v{t[4]}, 4, v{t[0]}')
        for sl in range(3): a(f'v_add_u32 v{vXr+2*sl+kbl}, s{sXs+sl}, v{t[4]}')
    a(f'v_bfe_u32 v{t[0]}, v0, 2, 2'); a(f'v_lshl_add_u32 v{t[1]}, v{t[1]}, 3, v{t[0]}'); a(f'v_lshlrev_b32 v{t[1]}, 8, v{t[1]}')
    a(f'v_and_b32 v{t[2]}, 3, v0'); a(f'v_lshl_add_u32 v{t[1]}, v{t[2]}, 3, v{t[1]}'); a(f'v_bfe_u32 v{t[2]}, v0, 2, 3')
    for ft in range(8):
        a(f'v_xor_b32 v{t[3]}, {ft}, v{t[2]}'); a(f'v_lshl_add_u32 v{t[3]}, v{t[3]}, 5, v{t[1]}')
        a(f'v_add_u32 v{vWr+ft}, {64*K}, v{t[3]}'); a(f'v_add_u32 v{vWr+8+ft}, {128*K}, v{t[3]}')
    return L

def a_loads(which):
    if which == 0:
        return [[f's_mov_b32 s{sSW}, 65536']] + dma_part('K', 'c', 'K0') + [[f's_mov_b32 s{sSW}, 98304']] + dma_part('K', 'c', 'K0') + \
               [[f's_mov_b32 s{sSW}, 0']] + dma_part('V', 'c', 'U0') + dma_part('K', 'c', 'U0')
    return [[f's_mov_b32 s{sSW}, 32768']] + dma_part('V', 'c', 'U1') + dma_part('K', 'c', 'U1') + [[f's_mov_b32 s{sSW}, 65536'], [f's_mov_b32 s{sSR}, 32768']]

def wo_dma_a():
    t = [240, 241, 242, 243]
    it = [[f'v_lshrrev_b32 v{t[0]}, 5, v0', f'v_bfe_u32 v{t[1]}, v0, 1, 4', f'v_xor_b32 v{t[1]}, v{t[1]}, v{t[0]}', f'v_and_b32 v{t[2]}, 1, v0', f'v_lshlrev_b32 v{t[2]}, 4, v{t[2]}',
           f'v_lshl_add_u32 v{t[2]}, v{t[0]}, 10, v{t[2]}'],
          [f's_lshr_b32 s{sT+4}, s2, 1', f's_lshl_b32 s{sT+4}, s{sT+4}, 15', f's_and_b32 s{sT+5}, s2, 1', f's_lshl_b32 s{sT+5}, s{sT+5}, 9'],
          [f's_add_u32 s{sT+4}, s{sT+4}, s{sT+5}', f's_lshl_b32 s{sT+5}, s{sW}, 13', f's_add_u32 s{sT+4}, s{sT+4}, s{sT+5}']]
    for q in range(4):
        it.append([f'v_xor_b32 v{t[3]}, {2*q}, v{t[1]}', f'v_lshl_add_u32 v{t[3]}, v{t[3]}, 5, v{t[2]}', f's_add_u32 m0, s{sW4}, {128*K} ; tag=WO', f's_add_u32 s{sT+5}, s{sT+4}, {q*1024}',
                   f'buffer_load_dwordx4 v{t[3]}, {sr(sWO,4)}, s{sT+5} offen offset:{q*1024} lds ; tag=WO'])
    return it
def wo_dma_b():
    t = [240, 241]
    return [f'v_lshrrev_b32 v{t[0]}, 2, v0', f'v_lshlrev_b32 v{t[0]}, 10, v{t[0]}', f'v_and_b32 v{t[1]}, 3, v0', f'v_lshl_add_u32 v{t[0]}, v{t[1]}, 4, v{t[0]}',
            f's_lshr_b32 s{sT+4}, s2, 4', f's_lshl_b32 s{sT+4}, s{sT+4}, 15', f's_and_b32 s{sT+5}, s2, 15', f's_lshl_b32 s{sT+5}, s{sT+5}, 6', f's_add_u32 s{sT+4}, s{sT+4}, s{sT+5}',
            f's_and_b32 s{sT+5}, s{sW}, 1', f's_lshl_b32 s{sT+6}, s{sT+5}, 14', f's_add_u32 s{sT+4}, s{sT+4}, s{sT+6}', f's_lshl_b32 s{sT+5}, s{sT+5}, 10',
            f's_add_u32 m0, s{sT+5}, {144*K} ; tag=WO', 's_nop 0', f'buffer_load_dwordx4 v{t[0]}, {sr(sWB,4)}, s{sT+4} offen lds ; tag=WO']
def wo_fin():
    R = TMPV; a0, a1, a2 = TMPV + 20, TMPV + 21, TMPV + 22; t0, t1 = sT + 4, sT + 5
    L = [f'v_lshrrev_b32 v{a0}, 2, v0', f'v_and_b32 v{a1}, 3, v0', f'v_lshlrev_b32 v{a1}, 3, v{a1}', f'v_lshl_add_u32 v{a2}, v{a0}, 6, v{a1}', f'v_lshl_add_u32 v{a1}, v{a0}, 9, v{a1}',
         f'v_add_u32 v{a1}, {128*K}, v{a1}', f'v_and_b32 v{a0}, 7, v{a0}', f's_lshl_b32 s{t0}, s{sW}, 2', f'v_xor_b32 v{a0}, s{t0}, v{a0}',
         f's_and_b32 s{t0}, s{sW}, 1', f's_lshl_b32 s{t0}, s{t0}, 5', f's_add_u32 s{t0}, s{t0}, {144*K}', f'v_add_u32 v{a2}, s{t0}, v{a2}']
    for x in range(4):
        L += [f'v_xor_b32 v{a0+4+x}, {x}, v{a0}', f'v_lshl_add_u32 v{a0+4+x}, v{a0+4+x}, 5, v{a1}']
        for p in range(2): L.append(f'ds_read_b64_tr_b16 {vr(R+4*x+2*p,2)}, v{a0+4+x} offset:{p*8192}')
    for p in range(2): L.append(f'ds_read_b64_tr_b16 {vr(R+16+2*p,2)}, v{a2} offset:{p*1024}')
    L += [f's_and_b32 s{t0}, s2, 1', f's_lshl_b32 s{t0}, s{t0}, 2', f's_add_u32 s{t0}, s{t0}, s{sW}', f's_mul_i32 s{t0}, s{t0}, {4*WOA_S}', f's_lshr_b32 s{t1}, s2, 1', f's_lshl_b32 s{t1}, s{t1}, 10',
          f's_add_u32 s{t0}, s{t0}, s{t1}', f's_add_u32 s{t0}, s{t0}, {WOA}']
    for x in range(4): L += [f'buffer_store_dwordx4 {vr(R+4*x,4)}, v{vL16}, {sr(sWS,4)}, s{t0} offen{SF}', f's_add_u32 s{t0}, s{t0}, {WOA_S}']
    L += [f's_and_b32 s{t0}, s2, 15', f's_lshl_b32 s{t0}, s{t0}, 1', f's_and_b32 s{t1}, s{sW}, 1', f's_add_u32 s{t0}, s{t0}, s{t1}', f's_mul_i32 s{t0}, s{t0}, {WOB_S}',
          f's_lshr_b32 s{t1}, s2, 4', f's_lshl_b32 s{t1}, s{t1}, 10', f's_add_u32 s{t0}, s{t0}, s{t1}', f's_add_u32 s{t0}, s{t0}, {WOB}',
          f'buffer_store_dwordx4 {vr(R+16,4)}, v{vL16}, {sr(sWS,4)}, s{t0} offen{SF}', 's_nop 0']
    return L

def qproj():
    QPF = int(os.environ.get('K2_QPF', 0))
    pf = [[f'v_lshlrev_b32 v245, 10, v0', f's_lshr_b32 s{sT+4}, s2, 3', f's_lshl_b32 s{sT+4}, s{sT+4}, 16'], [f's_lshl_b32 s{sT+5}, s{sW}, 7', f's_add_u32 s{sT+4}, s{sT+4}, s{sT+5}'],
          [f'buffer_load_dword v246, v245, {sr(sX,4)}, s{sT+4} offen offset:512 ; nodep'],
          [f'v_lshrrev_b32 v245, 1, v0', f'v_lshlrev_b32 v245, 13, v245', f'v_and_b32 v244, 1, v0', f'v_lshl_add_u32 v245, v244, 7, v245'],
          [f's_lshl_b32 s{sT+4}, s{sI}, 18', f's_lshl_b32 s{sT+5}, s{sH}, 8', f's_add_u32 s{sT+4}, s{sT+4}, s{sT+5}'], [f's_add_u32 s{sT+4}, s{sT+4}, {256*8192}'],
          [f'buffer_load_dword v246, v245, {sr(sWQ,4)}, s{sT+4} offen ; nodep']] if QPF else []
    zf = []
    if FUSE3:
        FW_, FC_, FB_ = FLG, FLG + 4096, FLG + 8192
        zf = [f's_lshl_b32 s{sT+4}, s{sI}, 7', f's_lshl_b32 s{sT+5}, s{sH}, 2', f's_add_u32 s{sT+5}, s{sT+5}, {FC_}', f's_add_u32 s{sFa}, s{sT+5}, s{sT+4}', f's_sub_u32 s{sT+5}, s{sT+5}, s{sT+4}', f's_add_u32 s{sT+5}, s{sT+5}, {15*128}',
              f's_lshl_b32 s{sT+4}, s2, 2', f's_add_u32 s{sFw}, s{sT+4}, {FW_}', f's_add_u32 s{sT+4}, s{sT+4}, {FB_}',
              f'v_mov_b32 v245, s{sFa}', f'v_writelane_b32 v245, s{sT+5}, 1', f'v_writelane_b32 v245, s{sFw}, 2', f'v_writelane_b32 v245, s{sT+4}, 3', 'v_mov_b32 v246, 0', f's_mov_b32 s{sSig}, 0',
              's_mov_b64 exec, 15', f'buffer_store_dword v246, v245, {sr(sWS,4)}, 0 offen sc1', 's_mov_b64 exec, -1']
    L = q_setup() + zf + (['s_barrier'] if FUSE else []) + flat(q_dma(0)) + flat(q_dma(1)) + q_setup2()
    L += [f's_lshl_b32 s{sT+4}, s{sH}, 19', f's_add_u32 s{sK}, s{sT+4}, {KWS}', f's_add_u32 s{sV}, s{sT+4}, {VWS}', f's_mov_b32 s{sKc}, s{sK}', f's_add_u32 s{sK}, s{sK}, s{sW2}', f's_add_u32 s{sV}, s{sV}, s{sW2}',
          f's_add_u32 s{sK2}, s{sWS}, s{sK}', f's_addc_u32 s{sK2+1}, s{sWS+1}, 0', f's_add_u32 s{sV2}, s{sWS}, s{sV}', f's_addc_u32 s{sV2+1}, s{sWS+1}, 0']
    L += [';VMNEED C0', 's_barrier'] + q_reads(0)
    if FUSE:
        L += [f's_cmp_lg_u32 s{sW}, 0', 's_cbranch_scc1 K2_NOSIG', 'v_mov_b32 v245, 1', 'v_mov_b32 v246, s94', 's_mov_b64 exec, 1',
              f'SKIP buffer_atomic_add v245, v246, {sr(sDB,4)}, 0 offen sc1', 's_mov_b64 exec, -1', 'K2_NOSIG:',
              f's_lshl_b32 s{sT+4}, s{sH}, 1', 'v_and_b32 v246, 1, v0', f'v_add_u32 v246, s{sT+4}, v246', 'v_mul_u32_u24 v246, 205, v246', 'v_lshrrev_b32 v246, 10, v246',
              'v_bfe_u32 v245, v0, 1, 1', 'v_mul_u32_u24 v245, 13, v245', 'v_add_lshl_u32 v246, v246, v245, 2', 'v_add_u32 v246, 128, v246']
    L += stamp()
    for c in range(8):
        mf = []; pre = {}
        def P(g, x): pre.setdefault(g, []).extend(x if isinstance(x, list) else [x])
        for kbl in range(2):
            for ft in range(8):
                for tt in range(4):
                    a = qacc(ft, tt)
                    cc = '0' if (c == 0 and kbl == 0) else vr(a, 4)
                    mf.append(f'{MF} {vr(a,4)}, {ar(wf(c,kbl,ft),4)}, {ar(xf(c,kbl,tt),4)}, {cc}')
        if c == 0:
            for g0 in range(0, 64, 8):
                kbl = g0 // 32
                P(g0 - 1 if g0 else (0, 'before'), f';NEED {ar(wf(0,kbl,(g0%32)//4),8)} {ar(xf(0,kbl,0),16)}')
            g = 0
            for it in q_dma(2) + (pf if QPF == 1 else []):
                if g % 8 == 7: g += 1
                P(g, it); g += 1
            gb = 26
        else:
            P((0, 'before'), f';NEED {ar(wf(c,0,0),32)} {ar(xf(c,0,0),16)}')
            P(23, ';LGKM0') if False else None
            gb = 0
        if 1 <= c <= 5: ex = ([[f'buffer_load_dword v247, v246, {sr(sDB,4)}, 0 offen sc1']] if FUSE and c == 5 else []) + q_dma(c + 2)
        elif c == 6:
            ex = a_loads(0)
            if FUSE:
                P((0, 'before'), ['v_cmp_gt_u32 vcc, 8, v247', 's_cbranch_vccnz K2_SLOWP', 'K2_POLLED:'])
                STUBS.extend(['K2_SLOWP:', f's_mov_b32 s{sT+4}, 0x80000', 'K2_SP1:', f'buffer_load_dword v247, v246, {sr(sDB,4)}, 0 offen sc1', 's_waitcnt vmcnt(0)',
                              'v_cmp_gt_u32 vcc, 8, v247', 's_cbranch_vccz K2_POLLED', 's_sleep 2', f's_sub_u32 s{sT+4}, s{sT+4}, 1', f's_cmp_lg_u32 s{sT+4}, 0', 's_cbranch_scc1 K2_SP1', 's_branch K2_POLLED'])
        elif c == 7: ex = a_loads(1) + wo_dma_a()
        else: ex = []
        if c < 7:
            P(gb, [f';VMNEED C{c+1}', 's_barrier'])
            rds = q_reads(c + 1)
            seq = []; nr, ne = len(rds), len(ex)
            ri = ei = 0
            while ri < nr or ei < ne:
                if ei < ne and (ri >= nr or ei * nr <= ri * ne): seq.append(ex[ei]); ei += 1
                else: seq.append(rds[ri]); ri += 1
            g0 = gb + 1
            for k, x in enumerate(seq): P(g0 + k * (63 - g0) // len(seq), x)
            if c >= 1: P(31, f';NEED {ar(wf(c,1,0),32)} {ar(xf(c,1,0),16)}')
        else:
            P(0, 's_barrier')
            P(31, f';NEED {ar(wf(c,1,0),32)} {ar(xf(c,1,0),16)}')
            P(60, [';VMNEED U0', 's_barrier', f'v_add_u32 v{vRd}, 65536, v{vL16}', f'v_add_u32 v{vRd+1}, 98304, v{vL16}'])
            for k, it in enumerate(ex): P(1 + k * 58 // len(ex), it)
        L += weave(mf, pre, {})
    return L

def a_prologue():
    L = []
    fr = qk_frags('c')
    L += [rd(g, off, 0) for g, off in fr] + [rd(g + 2, off, 1) for g, off in fr] + wo_dma_b()
    order = [3, 2, 1, 0]
    cv = []
    for db in order:
        for tt in range(4):
            t0, t1 = qacc(2 * db, tt), qacc(2 * db + 1, tt)
            dst = TMPV + 16 + 4 * tt if db == 3 else Qr(tt, db)
            cv += [f'v_cvt_pk_bf16_f32 v{dst}, v{t0}, v{t0+1}', f'v_cvt_pk_bf16_f32 v{dst+1}, v{t0+2}, v{t0+3}', f'v_cvt_pk_bf16_f32 v{dst+2}, v{t1}, v{t1+1}', f'v_cvt_pk_bf16_f32 v{dst+3}, v{t1+2}, v{t1+3}']
    for tt in range(4):
        for j in range(4): cv.append(f'v_mov_b32 v{Qr(tt,3)+j}, v{TMPV+16+4*tt+j}')
    z = [f'v_mov_b32 v{TMPV+j}, 0' for j in range(4)]
    L += z + ['s_nop 3'] + cv
    zm = [f'v_mfma_f32_32x32x16_bf16 {ar(16*k,16)}, {vr(TMPV,4)}, {vr(TMPV,4)}, 0' for k in range(8)]
    L += ['s_nop 0'] + qk_mfmas('c', 0, czero=True) + zm
    L += [f's_cmp_eq_u32 s{sI}, 0', f's_cselect_b32 s{sMq}, 0, -4096']
    L += mask_ops(0, 'c', None, dyn=sMq) + deltas(0, 'c', False)
    for q in range(4):
        for j in range(4): L.append(f'v_sub_f32 v{NM+4*q+j}, 0, v{vDl+q}')
    V = [f'v_mov_b32 v{vl+q}, 0' for q in range(4)] + sub_tiles(0, 'c') + exp_ops(0, 'c')
    mf2 = qk_mfmas('c', 1, fr=lambda kt, db: ar(slot(32 + 16 * kt + 4 * db + 2), 4))
    L += [f'v_mov_b32 v{vRd}, v{vL16}', ';LGKM0'] + ([';VMNEED WO'] if FUSE3 else []) + ['s_barrier'] + (wo_fin() if FUSE3 else [])
    rds = [rd(g, off, 0) for g, off in pv_frags('c') if g < D]
    n = len(mf2)
    for k, m in enumerate(mf2):
        L.append(m)
        if k >= n - 2 * len(rds) and (n - k) % 2 == 0: L.append(rds[len(rds) - (n - k) // 2])
        L += V[len(V)*k//n:len(V)*(k+1)//n]
    return L

def fin_rows(which):
    t0, t1 = sT + 4, sT + 5
    q0 = 0 if which == 'a' else 2
    L = [f's_lshl_b32 s{t0}, s{sH}, 12', f's_add_u32 s{t0}, s{t0}, {CTX}', f's_mul_i32 s{t1}, s{sW}, {2*CTX_S}', f's_add_u32 s{t0}, s{t0}, s{t1}', f's_mul_i32 s{t1}, s{sI}, {8*CTX_S}']
    L += [f's_add_u32 s{t0}, s{t0}, s{t1}'] if which == 'a' else [f's_sub_u32 s{t0}, s{t0}, s{t1}', f's_add_u32 s{t0}, s{t0}, {120*CTX_S}']
    for q in (q0, q0 + 1):
        L += xlane('v_add_f32', vl + q, vT) + [f'v_rcp_f32 v{vl+q}, v{vl+q}']
    for q in (q0, q0 + 1):
        if q & 1: L.append(f's_add_u32 s{t0}, s{t0}, {CTX_S}')
        for h in range(2):
            r = TMPV + 16 * h; p = TMPV + 32 + 8 * h
            for j in range(16): L.append(f'v_accvgpr_read_b32 v{r+j}, a{Or(q,4*h)+j}')
            for j in range(16): L.append(f'v_mul_f32 v{r+j}, v{r+j}, v{vl+q}')
            for j in range(8): L.append(f'v_cvt_pk_bf16_f32 v{p+j}, v{r+2*j}, v{r+2*j+1}')
            for x in range(2): L.append(f'buffer_store_dwordx4 {vr(p+4*x,4)}, v{vL16}, {sr(sWS,4)}, s{t0} offen offset:{(2*h+x)*1024}{SF}')
    return L

def hook(bit, saddr, uid):
    if not FUSE3: return []
    STUBS.extend([f'K2_H{uid}:', f's_bitset1_b32 s{sSig}, {bit}', f's_cmp_lg_u32 s{sW}, 0', f's_cbranch_scc1 K2_HR{uid}', f'v_mov_b32 v{vT}, 1', f'v_mov_b32 v{vT+1}, 0', 's_mov_b64 exec, 1',
                  f'buffer_store_dword v{vT}, v{vT+1}, {sr(sWS,4)}, s{saddr} offen sc1', 's_mov_b64 exec, -1', 's_nop 3', f's_branch K2_HR{uid}'])
    return [f's_bitcmp0_b32 s{sSig}, {bit}', f's_cbranch_scc1 K2_H{uid}', f'K2_HR{uid}:']

def gen_k2():
    if FUSE3: import tail as TAILM
    name = 'k2_kernel'
    L = []; a = L.append
    if not FUSE:
        a(f'.p2align 8\n.type {name},@function\n{name}:')
        a('s_cmp_ge_u32 s2, 256'); a('s_cbranch_scc1 K2_END')
        if os.environ.get('CPF', '1') == '1': L += code_prefetch('k2_kernel', 'k3_kernel', 'K2', 246, 247, 90, 8)
        a('s_load_dwordx2 s[4:5], s[0:1], 88'); a('s_load_dwordx2 s[6:7], s[0:1], 0'); a('s_load_dwordx2 s[56:57], s[0:1], 16'); a('s_load_dwordx2 s[68:69], s[0:1], 40'); a('s_load_dwordx2 s[76:77], s[0:1], 64')
        a('v_lshrrev_b32 v1, 6, v0'); a('v_and_b32 v0, 63, v0'); a(f'v_readfirstlane_b32 s{sW}, v1')
    else:
        for srd, p, n in ((sWO, 14, 0x400000), (sWB, 20, 0x80000), (sDB, 24, 256), (sWQ, 8, 0x400000), (sX, 4, 0x200000), (sWS, 26, 0x10000000)):
            a(f's_mov_b32 s{srd}, s{p}'); a(f's_mov_b32 s{srd+1}, s{p+1}'); a(f's_mov_b32 s{srd+2}, {hex(n)}'); a(f's_mov_b32 s{srd+3}, 0x20000')
        a(f's_mov_b64 s[96:97], s[22:23]')
        a(f's_mov_b32 s{sW}, s40')
        L += gstamp(6, sDB, 2, 3)
    a(f'v_lshlrev_b32 v{vL16}, 4, v0')
    a(f's_and_b32 s{sH}, s2, 31'); a(f's_lshr_b32 s{sI}, s2, 5')
    if FUSE and os.environ.get('K2_REMAP', '1') == '1':
        a(f's_bfe_u32 s{sT}, s2, 0x20001'); a(f's_mov_b32 s{sT+1}, 0x76543210')
        a(f's_cmp_eq_u32 s{sT}, 1'); a(f's_cselect_b32 s{sT+1}, 0x76503214, s{sT+1}')
        a(f's_cmp_eq_u32 s{sT}, 3'); a(f's_cselect_b32 s{sT+1}, 0x01765423, s{sT+1}')
        a(f's_lshl_b32 s{sI}, s{sI}, 2'); a(f's_lshr_b32 s{sI}, s{sT+1}, s{sI}'); a(f's_and_b32 s{sI}, s{sI}, 7')
    a(f's_lshl_b32 s{sW2}, s{sW}, 11'); a(f's_lshl_b32 s{sW4}, s{sW}, 12'); a(f's_add_u32 s{sW2K}, s{sW2}, 16384'); a(f's_add_u32 s{sW4K}, s{sW4}, 16384')
    a(f'v_mov_b32 v{vBig}, {f32(NEGBIG)}')
    a(f'v_and_b32 v{vq}, 15, v0'); a(f'v_lshrrev_b32 v{vT}, 4, v0'); a(f'v_lshlrev_b32 v{vT}, 2, v{vT}'); a(f'v_sub_u32 v{vq}, v{vq}, v{vT}')
    a(f's_lshl_b32 s{sT}, s{sW}, 5'); a(f'v_add_u32 v{vq}, s{sT}, v{vq}')
    a('s_waitcnt lgkmcnt(0)')
    for srd, p, n in () if FUSE else ((sWS, 4, 0x10000000), (sX, 6, 0x200000), (sWQ, 56, 0x400000), (sWO, 68, 0x400000), (sWB, 76, 0x80000)):
        a(f's_mov_b32 s{srd}, s{p}'); a(f's_mov_b32 s{srd+1}, s{p+1}'); a(f's_mov_b32 s{srd+2}, {hex(n)}'); a(f's_mov_b32 s{srd+3}, 0x20000')
    if DIAG: a('s_mov_b32 s72, 0'); a(f'v_mov_b32 v{vDG}, 0'); a(f'v_mov_b32 v{vDG+2}, 0'); L += stamp()
    raw0 = qproj() + stamp() + gstamp(7, sDB, 16, 17) + gstamp(8, sDB, 16, 17, neg=True) + a_prologue() + stamp()
    skip = [x for x in raw0 if x.startswith('SKIP ')]
    pre = auto_waits([], [x if not x.startswith('SKIP ') else '.L_skip0:' for x in raw0])
    L += [x if x != '.L_skip0:' else skip[0][5:] for x in pre]
    def two(uid, b0, b1): return body(0, *b0, uid + 'a') + body(1, *b1, uid + 'b')
    raw = {
     'CC': two('CC', ('c','c','c','c','c','c',None), ('c','c','c','c','c','c',None)),
     'X1': two('X1', ('c','c','c','c','c','c',None), ('c','c','c','c','c','c',0)),
     'X2': two('X2', ('c','c','c','c','c','s',1), ('c','c','c','c','c','s',2)),
     'X3': two('X3', ('c','c','s','c','s','s',3), ('c','s','s','s','s','s',None)) + ([] if FUSE3 else wo_fin()) + fin_rows('a'),
     'X3b': two('X3b', ('c','c','s','c','s',None,3), ('c','s','s','s','s',None,0)) + ([] if FUSE3 else wo_fin()) + fin_rows('a'),
     'SS': two('SS', ('s','s','s','s','s','s',None), ('s','s','s','s','s','s',None)),
     'X4': two('X4', ('s','s','s','s','s',None,None), ('s','s','s','s','s',None,0)),
     'TL': (TAILM.pre_polls() if FUSE3 else []) + two('TL', ('s','s',None,'s',None,None,2), ('s',None,None,None,None,None,None)),
    }
    preds = {'CC': ['pre', 'CC'], 'X1': ['CC'], 'X2': ['X1', 'pre'], 'X3': ['X2'], 'X3b': ['X2'], 'SS': ['X3', 'SS'], 'X4': ['SS'], 'TL': ['X4', 'X3b']}
    fin = {'pre': pre}
    for it in range(3):
        for k in raw:
            fin[k] = merge_min([auto_waits(fin[p], raw[k]) for p in preds[k] if p in fin])
    a(f's_cmp_eq_u32 s{sI}, 0'); a('s_cbranch_scc1 K2_X2')
    a(f's_lshl_b32 s{sCnt}, s{sI}, 1'); a(f's_sub_u32 s{sCnt}, s{sCnt}, 1')
    a('.p2align 6\nK2_CC:'); L += fin['CC'] + hook(0, sFw, 'a') + [f's_sub_u32 s{sCnt}, s{sCnt}, 1', f's_cmp_lg_u32 s{sCnt}, 0', 's_cbranch_scc1 K2_CC']
    L += stamp()
    L += fin['X1']
    a('K2_X2:'); L += adv64(sK2, f's{sW2}'); L += fin['X2'] + hook(0, sFw, 'b')
    L += adv64(sV2, f's{sW2}')
    a(f's_cmp_eq_u32 s{sI}, 7'); a('s_cbranch_scc1 K2_X3b')
    L += fin['X3']
    L += stamp()
    a(f's_lshl_b32 s{sCnt}, s{sI}, 1'); a(f's_sub_u32 s{sCnt}, 13, s{sCnt}')
    a('.p2align 6\nK2_SS:'); L += fin['SS'] + hook(1, sFa, 'c') + [f's_sub_u32 s{sCnt}, s{sCnt}, 1', f's_cmp_lg_u32 s{sCnt}, 0', 's_cbranch_scc1 K2_SS']
    L += stamp()
    L += fin['X4']
    a('K2_TL:'); L += fin['TL']
    L += stamp()
    epi = ['s_nop 7'] + fin_rows('b')
    L += epi
    if FUSE3:
        import tail, k3
        L += stamp() + gstamp(9, sDB, 16, 17) + gstamp(10, sDB, 16, 17, neg=True) + tail.gen_tail(fin['TL'] + epi) + k3.STUBS
    else:
        if DIAG:
            L += stamp(); a('s_waitcnt vmcnt(0)'); L += stamp()
            L += dstore(vDG, vDG + 1, vDG + 2, sW, sWS, 201)
        L += gstamp(9, sDB, 16, 17) + gstamp(10, sDB, 16, 17, neg=True)
        a('K2_END:'); a('s_endpgm')
    a('K2_X3b:'); L += fin['X3b']; a('s_branch K2_TL')
    L += STUBS
    for r in sorted(RARES): L += rare(*r)
    f = fin
    check_trace(pre + ['s_nop 0'] * 2 + f['X2'] + f['X3'] + f['SS'] + f['SS'] + f['X4'] + f['TL'] + epi, 'k2 i=0')
    check_trace(pre + ['s_nop 0'] * 4 + f['CC'] + f['CC'] + f['X1'] + f['X2'] + f['X3b'] + f['TL'] + epi, 'k2 i=7')
    if FUSE: return L, '', None
    return L, kdesc(name, 512, 256), f'; @launch kernel={name} grid=(256,1,1) block=(256,1,1) lds=163840'
```

```python
from lib import *
from layout import *
import os, struct, math
def f32(x): return '0x%08x' % struct.unpack('<I', struct.pack('<f', x))[0]
DIAG = os.environ.get('DIAG')
MF = 'v_mfma_f32_16x16x32_bf16'
MF16 = 'v_mfma_f32_16x16x16_bf16'
CB = math.log2(math.e) * 0.25
NEGBIG = -1.0e30
FLGA = FLG + 4096
OSF = os.environ.get('K3_SF', '')
sWS, sOUT, sW, sT, sMk = 8, 12, 16, 20, 40
vL16 = 1
STUBS = []
def flat(L):
    o = []
    for x in L:
        if isinstance(x, list): o += flat(x)
        else: o.append(x)
    return o
uidc = [0]
def poll(voff, soff, nlanes, tmp):
    uidc[0] += 1; u = uidc[0]
    return [f's_mov_b32 s{sT+8}, 0x40000', f's_mov_b64 exec, {hex((1 << nlanes) - 1)}', f'K3_PL{u}:',
            f'buffer_load_dword v{tmp}, v{voff}, {sr(sWS,4)}, s{soff} offen sc1', 's_waitcnt vmcnt(0)',
            f'v_cmp_eq_u32 vcc, 0, v{tmp}', f's_cbranch_vccz K3_PD{u}', 's_sleep 1', f's_sub_u32 s{sT+8}, s{sT+8}, 1', f's_cmp_lg_u32 s{sT+8}, 0', f's_cbranch_scc1 K3_PL{u}',
            f'K3_PD{u}:', 's_mov_b64 exec, -1']

def role_b(unit=2, fused=False, extra=(), raw=False):
    vG = (101, 102, 103)
    stamp = lambda: dstamp(*vG) if DIAG and not fused else []
    LF = ' sc1' if fused else ''
    S, CUP, CLO, ONE, BO, BL, PKD = 8, 80, 84, 88, 92, 96, 4
    vmx = [2, 100]
    vBig = 'v100' if False else None
    BK, BV, BQ = 0, 72, 144
    sP, sB0, sC, sBig = 17, 18, 19, 30
    L = []; a = L.append
    a(f's_and_b32 s{sP}, s{unit}, 15'); a(f's_lshr_b32 s{sB0}, s{unit}, 4'); a(f's_lshl_b32 s{sB0}, s{sB0}, 2'); a(f's_add_u32 s{sB0}, s{sB0}, s{sW}')
    t0, t1, t2 = sT, sT + 1, sT + 2
    a(f's_lshr_b32 s{t0}, s{sP}, 1'); a(f's_lshl_b32 s{t0}, s{t0}, 18'); a(f's_and_b32 s{t1}, s{sP}, 1'); a(f's_lshl_b32 s{t1}, s{t1}, 11')
    a(f's_add_u32 s{t0}, s{t0}, s{t1}'); a(f's_add_u32 s{t0}, s{t0}, {BWS}')
    a(f's_lshl_b32 s{t1}, s{sB0}, 12'); a(f's_add_u32 s{t1}, s{t1}, s{t0}')
    for u in range(2): a(f'buffer_load_dwordx4 {ar(BQ+4*u,4)}, v{vL16}, {sr(sWS,4)}, s{t1} offen offset:{u*1024}{LF}')
    blk = []
    for bb in range(9):
        r = sT + 10 + bb
        L += [f's_sub_i32 s{r}, s{sB0}, {8-bb}', f's_max_i32 s{r}, s{r}, 0', f's_lshl_b32 s{r}, s{r}, 12', f's_add_u32 s{r}, s{r}, s{t0}', f's_add_u32 s{r}, s{r}, {8*256*1024}']
        for kt in range(2): a(f'buffer_load_dwordx4 {ar(BK+8*bb+4*kt,4)}, v{vL16}, {sr(sWS,4)}, s{r} offen offset:{kt*1024}{LF}')
    for bb in range(9):
        r = sT + 10 + bb
        a(f's_add_u32 s{r}, s{r}, {8*256*1024}')
        for e in range(2): a(f'buffer_load_dwordx4 {ar(BV+8*bb+4*e,4)}, v{vL16}, {sr(sWS,4)}, s{r} offen offset:{e*1024}{LF}')
    a(';BLOADED')
    a('v_and_b32 v2, 15, v0'); a('v_lshrrev_b32 v3, 4, v0'); a('v_lshlrev_b32 v3, 2, v3'); a('v_sub_u32 v2, v2, v3')
    a(f'v_mov_b32 v3, {f32(NEGBIG)}'); a('v_mov_b32 v4, 0'); a(f's_mov_b32 s{sBig}, {f32(NEGBIG)}'); a(f's_mov_b32 s{sC}, {f32(CB)}')
    for j in range(4): a(f'v_cmp_gt_i32 {sr(sMk+2*j,2)}, {j}, v2')
    for j in range(4):
        a(f'v_cndmask_b32 v{CLO+j}, v4, v3, {sr(sMk+2*j,2)}'); a(f'v_cndmask_b32 v{CUP+j}, v3, v4, {sr(sMk+2*j,2)}'); a(f'v_mov_b32 v{ONE+j}, 0x3f803f80')
    L += stamp()
    units = [(0, 0), (0, 1), (1, 0), (1, 1)]
    def qk(n, rel):
        u, e = units[n]
        s = S + 4 * rel
        c = vr(CUP, 4) if rel == u else (vr(CLO, 4) if rel == u + 16 else '0')
        m = f'{MF16} {vr(s,4)}, {ar(BK+4*rel+2*e,2)}, {ar(BQ+4*u+2*e,2)}, {c}'
        bb = rel // 2
        if bb < 8:
            STUBS.extend([f'K3_BI{n}_{rel}:'] + [f'v_mov_b32 v{s+j}, s{sBig}' for j in range(4)] + [f's_branch K3_BR{n}_{rel}'])
            return [f's_cmp_lt_u32 s{sB0}, {8-bb}', f's_cbranch_scc1 K3_BI{n}_{rel}', m, f'K3_BR{n}_{rel}:']
        return [m]
    def mx(n, rel, first):
        s = S + 4 * rel; m = vmx[n % 2]
        if first: return [f'v_max3_f32 v{m}, v{s}, v{s+1}, v{s+2}', f'v_max_f32 v{m}, v{m}, v{s+3}']
        return [f'v_max3_f32 v{m}, v{m}, v{s}, v{s+1}', f'v_max3_f32 v{m}, v{m}, v{s+2}, v{s+3}']
    def mxfin(n):
        m = vmx[n % 2]
        return ['v_mov_b32 v3, v%d' % m, 's_nop 1', f'v_permlane32_swap_b32 v{m}, v3', f'v_max_f32 v{m}, v{m}, v3',
                'v_mov_b32 v3, v%d' % m, 's_nop 1', f'v_permlane16_swap_b32 v{m}, v3', f'v_max_f32 v{m}, v{m}, v3', f'v_mul_f32 v{m}, s{sC}, v{m}']
    tiles = lambda n: list(range(units[n][0], units[n][0] + 17))
    T = tiles(0)
    for k, rel in enumerate(T):
        L += qk(0, rel)
        if k >= 3: L += mx(0, T[k-3], k == 3)
    L += ['s_nop 0'] + mx(0, T[-3], False) + ['s_nop 0'] + mx(0, T[-2], False) + ['s_nop 3'] + mx(0, T[-1], False) + mxfin(0)
    L += stamp()
    for n, (u, e) in enumerate(units):
        m = vmx[n % 2]; T = tiles(n)
        nxt = tiles(n + 1) if n < 3 else []
        F = lambda bb: [f'v_fma_f32 v{S+4*r+j}, v{S+4*r+j}, s{sC}, -v{m}' for r in (2*bb, 2*bb+1) if r in T for j in range(4)]
        E = lambda bb: [f'v_exp_f32 v{S+4*r+j}, v{S+4*r+j}' for r in (2*bb, 2*bb+1) if r in T for j in range(4)]
        def C(bb):
            b = S + 8 * bb; X = []
            for h in range(2):
                if 2 * bb + h in T: X += [f'v_cvt_pk_bf16_f32 v{b+2*h}, v{b+4*h}, v{b+4*h+1}', f'v_cvt_pk_bf16_f32 v{b+2*h+1}, v{b+4*h+2}, v{b+4*h+3}']
                else: X += [f'v_mov_b32 v{b+2*h}, 0', f'v_mov_b32 v{b+2*h+1}, 0']
            return X
        def PV(bb):
            b = S + 8 * bb
            return [f'{MF} {vr(BO,4)}, {ar(BV+8*bb+4*e,4)}, {vr(b,4)}, ' + ('0' if bb == 0 else vr(BO, 4)),
                    f'{MF} {vr(BL,4)}, {vr(ONE,4)}, {vr(b,4)}, ' + ('0' if bb == 0 else vr(BL, 4))]
        firstmx = [True]
        def nqk(bb): return flat([qk(n + 1, r) for r in (2*bb, 2*bb+1) if r in nxt])
        def nmx(bb):
            X = []
            for r in (2*bb, 2*bb+1):
                if r in nxt:
                    X += mx(n + 1, r, firstmx[0]); firstmx[0] = False
            return X
        L += F(0) + E(0)
        for bb in range(9):
            if bb < 8:
                e_ = E(bb + 1); pv = PV(bb)
                L += F(bb + 1) + C(bb) + e_[:2] + [pv[0]] + e_[2:4] + [pv[1]] + e_[4:6] + nqk(bb) + e_[6:]
                if bb >= 1: L += nmx(bb - 1)
            else:
                L += ['s_nop 0'] + C(bb) + ['s_nop 1'] + PV(bb) + nqk(bb) + nmx(7)
        if nxt: L += ['s_nop 3'] + nmx(8) + mxfin(n + 1)
        else: L += ['s_nop 7']
        L += [f'v_rcp_f32 v3, v{BL}', 's_nop 0'] + [f'v_mul_f32 v{BO+j}, v{BO+j}, v3' for j in range(4)]
        L += [f'v_cvt_pk_bf16_f32 v{PKD+2*e}, v{BO}, v{BO+1}', f'v_cvt_pk_bf16_f32 v{PKD+2*e+1}, v{BO+2}, v{BO+3}']
        if e == 1:
            L += [f's_lshl_b32 s{t0}, s{sB0}, 1', f's_add_u32 s{t0}, s{t0}, {u}', f's_mul_i32 s{t0}, s{t0}, {OB_S}', f's_lshl_b32 s{t1}, s{sP}, 10', f's_add_u32 s{t0}, s{t0}, s{t1}', f's_add_u32 s{t0}, s{t0}, {OB}',
                  f'buffer_store_dwordx4 {vr(PKD,4)}, v{vL16}, {sr(sWS,4)}, s{t0} offen sc1', 's_nop 0']
    if raw: return L
    if extra:
        idx = [k for k, x in enumerate(L) if x.startswith(('v_exp', 'v_fma', 'v_mov_b32 v8'))]
        idx = idx[:int(len(idx) * 0.8)]
        n0 = 20
        pos = {}
        for k, g in enumerate(extra):
            p = idx[0] if k < n0 else idx[(k - n0 + 1) * (len(idx) - 1) // (len(extra) - n0)]
            pos.setdefault(p, []).extend(g)
        L2 = []
        for k, x in enumerate(L):
            L2.append(x); L2 += pos.get(k, [])
        L = L2
    L = auto_waits([], L)
    check_trace(L, 'k3 B')
    if fused: return L
    L += stamp()
    L += ['s_waitcnt vmcnt(0)', 's_barrier', f's_cmp_lg_u32 s{sW}, 0', 's_cbranch_scc1 K3_BEND',
          f's_lshl_b32 s{t0}, s2, 2', f's_add_u32 s{t0}, s{t0}, {FLG}', 'v_mov_b32 v2, 1', 'v_mov_b32 v3, 0', 's_mov_b64 exec, 1',
          f'buffer_store_dword v2, v3, {sr(sWS,4)}, s{t0} offen sc1', 's_mov_b64 exec, -1', 'K3_BEND:']
    if DIAG: L += stamp() + dstore(*vG, sW, sWS, 202)
    L += ['s_endpgm']
    return L

NF = 4
def role_g():
    vG = (101, 102, 103)
    stamp = lambda: dstamp(*vG) if DIAG else []
    TMP = 76
    sQ, sM = 17, 18
    sC0, sM0, sC1, sM1 = 44, 48, 52, 56
    def acc(part, mt, qt): return 64 * part + 4 * (4 * mt + qt)
    def slot_of(kb): return kb % 5 if kb < 33 else kb - 33
    def fr(kb, k):
        sl = slot_of(kb)
        if sl < 2: return vr(12 + 32 * sl + 4 * k, 4)
        if sl == 2: return ar(128 + 4 * k, 4) if k < 6 else vr(92 + 4 * (k - 6), 4)
        return ar(64 + 32 * (sl - 3) + 4 * k, 4)
    L = []; a = L.append
    t0, t1, t2 = sT, sT + 1, sT + 2
    LM = 2; LQ = 3
    a(f's_sub_u32 s{t2}, s2, 256'); a(f's_and_b32 s{t0}, s{t2}, 7'); a(f's_lshr_b32 s{t2}, s{t2}, 3')
    a(f's_lshr_b32 s{sQ}, s{t0}, 1'); a(f's_lshl_b32 s{sQ}, s{sQ}, 3'); a(f's_and_b32 s{t1}, s{t2}, 7'); a(f's_add_u32 s{sQ}, s{sQ}, s{t1}')
    a(f's_and_b32 s{sM}, s{t0}, 1'); a(f's_lshl_b32 s{sM}, s{sM}, 2'); a(f's_lshr_b32 s{t1}, s{t2}, 3'); a(f's_add_u32 s{sM}, s{sM}, s{t1}')
    for base, idx, st, org, wsh in ((sC0, sQ, CTX_S, CTX, 15), (sM0, sM, WOA_S, WOA, 15), (sC1, sQ, OB_S, OB, 12), (sM1, sM, WOB_S, WOB, 12)):
        a(f's_mul_i32 s{base}, s{idx}, {4*st}'); a(f's_lshl_b32 s{t0}, s{sW}, {wsh}'); a(f's_add_u32 s{base}, s{base}, s{t0}'); a(f's_add_u32 s{base}, s{base}, {org}')
        for j in range(1, 4): a(f's_add_u32 s{base+j}, s{base+j-1}, {st}')
    NK = 36
    def loads(kb):
        X = []
        c, m, kk, fl = (sC0, sM0, kb, '') if kb < 32 else (sC1, sM1, kb - 32, ' sc1')
        for j in range(4):
            X.append([f'buffer_load_dwordx4 {fr(kb,4+j)}, v{vL16}, {sr(sWS,4)}, s{m+j} offen offset:{(kk%4)*1024}'])
            X.append([f'buffer_load_dwordx4 {fr(kb,j)}, v{vL16}, {sr(sWS,4)}, s{c+j} offen offset:{(kk%4)*1024}{fl}'])
        if kk % 4 == 3 and kb < 31:
            X[-2] += [f's_add_u32 s{m+j}, s{m+j}, 4096' for j in range(4)]
            X[-1] += [f's_add_u32 s{c+j}, s{c+j}, 4096' for j in range(4)]
        return X
    after = {}
    for kb in range(NK):
        prev = [k for k in range(kb) if slot_of(k) == slot_of(kb)]
        after.setdefault(prev[-1] if prev else -1, []).append(kb)
    for kb in after[-1]: L += flat(loads(kb))
    L += ['v_and_b32 v2, 15, v0', 'v_lshlrev_b32 v2, 2, v2', f's_lshr_b32 s{t2}, s{sQ}, 1', f's_lshl_b32 s{t2}, s{t2}, 6', f's_add_u32 s{t2}, s{t2}, {FLG}']
    L += stamp()
    for kb in range(NK):
        part = 0 if kb < 32 else 1
        mf = []
        for mt in range(4):
            for qt in range(4):
                d = acc(part, mt, qt)
                mf.append(f'{MF} {ar(d,4)}, {fr(kb,4+mt)}, {fr(kb,qt)}, ' + ('0' if kb in (0, 32) else ar(d, 4)))
        L += mf
        if kb == 23: L.append(f'buffer_load_dword v3, v2, {sr(sWS,4)}, s{t2} offen sc1')
        for k2 in after.get(kb, []):
            if k2 == 32:
                L += ['v_cmp_eq_u32 vcc, 0, v3', 's_cbranch_vccnz K3_SLOWPOLL', 'K3_POLLED:']
                STUBS.extend(['K3_SLOWPOLL:'] + poll(2, t2, 16, 3) + ['s_branch K3_POLLED'])
            L += flat(loads(k2))
    L.append('s_nop 7')
    p1 = auto_waits([], L)
    G = [f's_lshl_b32 s{t0}, s{sW}, 14', f'v_add_u32 v{TMP}, s{t0}, v{vL16}', f's_lshl_b32 s{t0}, s{sW}, 10', f'v_add_u32 v{TMP+1}, s{t0}, v{vL16}']
    vo = 2
    G += [f'v_and_b32 v{vo}, 15, v0', f'v_lshlrev_b32 v{vo}, 11, v{vo}', f'v_bfe_u32 v3, v0, 4, 1', f'v_lshl_add_u32 v{vo}, v3, 5, v{vo}', f'v_lshrrev_b32 v3, 5, v0', f'v_lshl_add_u32 v{vo}, v3, 4, v{vo}',
          f's_lshl_b32 s{t0}, s{sQ}, 2', f's_add_u32 s{t0}, s{t0}, s{sW}', f's_lshl_b32 s{t0}, s{t0}, 15', f's_lshl_b32 s{t1}, s{sM}, 7', f's_add_u32 s{t0}, s{t0}, s{t1}']
    for part in range(2):
        G += [f'ds_write_b128 v{TMP}, {ar(64*part+4*k,4)} offset:{k*1024}' for k in range(16)]
        G += ['s_waitcnt lgkmcnt(0)', 's_barrier']
        for w in range(4):
            for mt in range(4): G.append(f'ds_read_b128 {vr(12+16*w+4*mt,4)}, v{TMP+1} offset:{w*16384+mt*4096}')
        if part == 0: G += [';LGKM0', 's_barrier']
        for j in range(16): G.append(f'v_add_f32 v{12+j}, v{12+j}, v{28+j}')
        for j in range(16): G.append(f'v_add_f32 v{44+j}, v{44+j}, v{60+j}')
        for j in range(16): G.append(f'v_add_f32 v{12+j}, v{12+j}, v{44+j}')
        P0 = TMP + 4 + 8 * part
        for mt in range(4):
            G += [f'v_cvt_pk_bf16_f32 v{P0+4*(mt>>1)+2*(mt&1)}, v{12+4*mt}, v{12+4*mt+1}', f'v_cvt_pk_bf16_f32 v{P0+4*(mt>>1)+2*(mt&1)+1}, v{12+4*mt+2}, v{12+4*mt+3}']
        G.append('s_nop 1')
        for pr in range(2):
            b = P0 + 4 * pr
            G += [f'v_permlane16_swap_b32 v{b}, v{b+2}', f'v_permlane16_swap_b32 v{b+1}, v{b+3}']
        for pr in range(2):
            G.append(f'buffer_store_dwordx4 {vr(P0+4*pr,4)}, v{vo}, {sr(sOUT,4)}, s{t0} offen offset:{part*1024+pr*64}{OSF}')
    G = auto_waits([], G)
    check_trace(p1 + G, 'k3 G')
    R = p1 + stamp() + G
    if DIAG: R += stamp() + ['s_waitcnt vmcnt(0)'] + stamp() + dstore(*vG, sW, sWS, 202)
    return R + ['s_endpgm']

def gen_k3(name='k3_kernel'):
    L = []; a = L.append
    a(f'.p2align 8\n.type {name},@function\n{name}:')
    a('s_cmp_ge_u32 s2, 512'); a('s_cbranch_scc1 K3_END')
    if os.environ.get('CPF', '1') == '1': L += code_prefetch('k3_kernel', 'CODE_END', 'K3', 10, 11, 90, 4)
    a('s_load_dwordx2 s[4:5], s[0:1], 88'); a('s_load_dwordx2 s[6:7], s[0:1], 72')
    a('v_lshrrev_b32 v1, 6, v0'); a('v_and_b32 v0, 63, v0'); a(f'v_readfirstlane_b32 s{sW}, v1')
    a(f'v_lshlrev_b32 v{vL16}, 4, v0')
    a('s_waitcnt lgkmcnt(0)')
    a(f's_mov_b32 s{sWS}, s4'); a(f's_mov_b32 s{sWS+1}, s5'); a(f's_mov_b32 s{sWS+2}, 0x10000000'); a(f's_mov_b32 s{sWS+3}, 0x20000')
    a(f's_mov_b32 s{sOUT}, s6'); a(f's_mov_b32 s{sOUT+1}, s7'); a(f's_mov_b32 s{sOUT+2}, 0x400000'); a(f's_mov_b32 s{sOUT+3}, 0x20000')
    if DIAG: a('s_mov_b32 s72, 0'); a('v_mov_b32 v101, 0'); a('v_mov_b32 v103, 0'); L += dstamp(101, 102, 103)
    a('s_cmp_ge_u32 s2, 256'); a('s_cbranch_scc1 K3_G')
    L += role_b()
    a('K3_G:'); L += role_g()
    a('K3_END:'); a('s_endpgm')
    L += STUBS
    return L, kdesc(name, 256, 104), f'; @launch kernel={name} grid=(512,1,1) block=(256,1,1) lds=65536'
```

```python
import re

def regs_of(tok):
    tok = tok.strip()
    neg = tok.lstrip('-')
    m = re.fullmatch(r'abs\((.*)\)', neg)
    if m: neg = m.group(1)
    m = re.fullmatch(r'\|(.*)\|', neg)
    if m: neg = m.group(1)
    m = re.fullmatch(r'([vas])(\d+)', neg)
    if m: return {(m.group(1), int(m.group(2)))}
    m = re.fullmatch(r'([vas])\[(\d+):(\d+)\]', neg)
    if m: return {(m.group(1), i) for i in range(int(m.group(2)), int(m.group(3)) + 1)}
    if neg == 'vcc': return {('s', 'vcc')}
    if neg == 'exec': return {('s', 'exec')}
    if neg == 'm0': return {('s', 'm0')}
    return set()

TRANS = ('v_exp_f32', 'v_log_f32', 'v_rcp_f32', 'v_rsq_f32', 'v_sqrt_f32', 'v_sin_f32', 'v_cos_f32')
NODST_S = ('s_bitcmp', 's_cmp', 's_waitcnt', 's_barrier', 's_branch', 's_cbranch', 's_nop', 's_setprio', 's_bitcmp', 's_endpgm', 's_setpc', 's_sleep')

class Ins:
    def __init__(self, text):
        self.text = text
        t = text.split(';')[0].strip()
        parts = t.split(None, 1)
        self.op = parts[0]
        rest = parts[1] if len(parts) > 1 else ''
        ops = [o.strip() for o in re.split(r',(?![^\[]*\])', rest)] if rest else []
        mods = ''
        if ops:
            lp = ops[-1].split(None, 1)
            if len(lp) > 1 and not ops[-1].startswith('abs'):
                ops[-1] = lp[0]; mods = lp[1]
        self.ops, self.mods = ops, mods
        op = self.op
        self.kind = 'other'; self.w = set(); self.r = set()
        R = [regs_of(o) for o in ops]
        U = lambda l: set().union(*l) if l else set()
        if op.startswith('v_mfma'):
            self.kind = 'mfma'; self.w = R[0]; self.A, self.B, self.C = R[1], R[2], R[3]; self.r = R[1] | R[2] | R[3]
            self.passes = 8 if '32x32' in op else 4
        elif op.startswith('v_cmp'):
            self.kind = 'valu'; self.w = R[0]; self.r = U(R[1:])
        elif op.startswith('v_readfirstlane') or op.startswith('v_readlane'):
            self.kind = 'valu'; self.w = R[0]; self.r = U(R[1:])
        elif op.startswith('v_permlane'):
            self.kind = 'valu'; self.w = R[0] | R[1]; self.r = R[0] | R[1]
        elif op.startswith('v_add_co') or op.startswith('v_sub_co') or op.startswith('v_addc_co'):
            self.kind = 'valu'; self.w = R[0] | R[1]; self.r = U(R[2:])
        elif op.startswith('v_'):
            self.kind = 'valu'; self.w = R[0]; self.r = U(R[1:])
            if op.startswith('v_fmac') or op.startswith('v_dot2c'): self.r |= R[0]
        elif op.startswith('ds_read'):
            self.kind = 'ds'; self.w = R[0]; self.r = R[1]
        elif op.startswith('ds_write'):
            self.kind = 'ds'; self.r = U(R)
        elif op.startswith('ds_bpermute') or op.startswith('ds_swizzle'):
            self.kind = 'ds'; self.w = R[0]; self.r = U(R[1:])
        elif op.startswith('buffer_load'):
            self.kind = 'vm'
            if 'lds' in mods.split():
                self.r = U(R) | {('s', 'm0')}; self.dma = True
            else:
                self.w = R[0]; self.r = U(R[1:])
        elif op.startswith('global_load_lds'):
            self.kind = 'vm'; self.r = U(R) | {('s', 'm0')}; self.dma = True
        elif op.startswith('global_load'):
            self.kind = 'vm'; self.w = R[0]; self.r = U(R[1:])
        elif op.startswith('buffer_store') or op.startswith('buffer_atomic'):
            self.kind = 'vm'; self.r = U(R); self.sdata = R[0]
        elif op.startswith('buffer_'):
            self.kind = 'vm'
        elif op.startswith('s_load') or op.startswith('s_memtime') or op.startswith('s_memrealtime'):
            self.kind = 'smem'; self.w = R[0]; self.r = U(R[1:])
        elif op.startswith('s_'):
            self.kind = 'salu'
            if op.startswith(NODST_S): self.r = U(R)
            else:
                self.w = R[0]; self.r = U(R[1:])
                if 'saveexec' in op: self.w |= {('s', 'exec')}
            if op.startswith('s_cbranch_vcc'): self.r |= {('s', 'vcc')}
        self.states = 1
        if op == 's_nop': self.states = int(ops[0], 0) + 1

def check_trace(lines, name='', verbose=True):
    ins = []
    for l in lines:
        t = l.split(';')[0].strip()
        if not t or t.endswith(':') or t.startswith('.'): continue
        ins.append(Ins(t)); mt = re.search(r'tag=(\w+)', l); ins[-1].tag = mt.group(1) if mt else None
        if 'nodep' in l: ins[-1].w = set()
    probs = []
    m0tag = None
    pos = []
    c = 0
    for i in ins:
        pos.append(c); c += i.states
    WIN = 40
    dsq = []; vmq = []
    for n, i in enumerate(ins):
        if ('s', 'm0') in i.w: m0tag = i.tag
        if getattr(i, 'dma', False) and i.tag != m0tag: probs.append(f'{name}: [{n}] {i.text} tag {i.tag} but m0 tag {m0tag}')
        if i.op == 's_waitcnt':
            m = re.search(r'lgkmcnt\((\d+)\)', i.text)
            if m:
                k = int(m.group(1))
                while len(dsq) > k: dsq.pop(0)
            m = re.search(r'vmcnt\((\d+)\)', i.text)
            if m:
                k = int(m.group(1))
                while len(vmq) > k: vmq.pop(0)
        if i.op.startswith('s_addc'):
            assert ins[n-1].op.startswith('s_add_u32'), (name, n, i.text, ins[n-1].text)
        if i.op.startswith('s_cselect') or i.op.startswith('s_cbranch_scc'):
            for m_ in range(n - 1, -1, -1):
                p = ins[m_]
                if p.kind == 'salu' and not p.op.startswith(('s_mov', 's_cselect', 's_waitcnt', 's_barrier', 's_nop', 's_mul_i32', 's_branch', 's_cbranch', 's_setprio', 's_getpc', 's_setpc', 's_swappc')):
                    if not p.op.startswith(('s_cmp', 's_bitcmp')): probs.append(f'{name}: [{n}] {i.text}: SCC last written by {p.text}')
                    break
        touched = i.r | i.w
        for q, nm in ((dsq, 'lgkm'), (vmq, 'vm')):
            for d, txt in q:
                if d & touched:
                    probs.append(f'{name}: [{n}] {i.text} touches pending {nm} dest of: {txt}')
        if i.kind == 'ds':
            dsq.append((set(i.w), i.text))
            if len(dsq) > 15: pass
        if i.kind == 'smem': dsq.append((set(i.w), i.text)); dsq.append((set(), i.text))
        if i.kind == 'vm':
            vmq.append((set(i.w), i.text))
            if len(vmq) > 63: probs.append(f'{name}: [{n}] more than 63 vm outstanding')
        for m_ in range(n - 1, max(-1, n - WIN), -1):
            p = ins[m_]
            dist = pos[n] - pos[m_] - p.states
            if dist >= 20: break
            need = 0; why = ''
            if p.kind == 'mfma':
                big = p.passes == 8
                if i.kind == 'mfma':
                    if (i.A | i.B) & p.w: need, why = (12 if big else 8), 'mfmaD->A/B'
                    elif i.C & p.w and not (i.C == p.w and i.passes == p.passes): need, why = (10 if big else 6), 'mfmaD->C overlap'
                    elif i.w & p.w and not (i.C == p.w) and not (i.A == p.A and i.B == p.B): need, why = (12 if big else 8), 'mfmaD WAW (conservative)'
                elif i.kind in ('valu', 'ds', 'vm'):
                    if (i.r | i.w) & p.w: need, why = (12 if big else 8), 'mfmaD->valu/mem'
                    elif i.kind == 'valu' and i.w & p.C: need, why = (7 if big else 3), 'mfmaC WAR'
            elif p.kind == 'valu':
                vw = {x for x in p.w if x[0] in 'va'}
                sw = {x for x in p.w if x[0] == 's'}
                if i.kind == 'mfma' and i.r & vw: need, why = 2, 'valu->mfma'
                if i.kind == 'mfma' and ('s', 'exec') in sw: need, why = 4, 'exec->mfma'
                if i.kind == 'valu':
                    if p.op.startswith(TRANS) and not i.op.startswith(TRANS) and i.r & vw: need, why = max(need, 1), 'trans->valu'
                    if i.op.startswith('v_permlane') and i.r & vw: need, why = 2, 'valu->permlane'
                    if ('dpp' in i.op or 'row_' in i.mods) and i.r & vw: need, why = 2, 'valu->dpp'
                    if (i.op.startswith('v_readfirstlane') or i.op.startswith('v_readlane')) and i.r & vw: need, why = max(need, 1), 'valu->readlane'
                    if i.r & sw: need, why = max(need, 2), 'valu sgpr->valu'
                if i.kind == 'vm' and i.r & sw: need, why = 5, 'valu sgpr->vmem'
                if i.kind == 'salu' and i.r & sw and not i.op.startswith('s_cbranch'): need, why = max(need, 1), 'valu sgpr->salu (pad)'
            elif p.kind == 'salu':
                if ('s', 'm0') in p.w and i.kind == 'vm' and getattr(i, 'dma', False): need, why = 1, 'm0->dma'
            elif p.kind == 'vm' and hasattr(p, 'sdata') and len(p.sdata) >= 3:
                if i.w & p.sdata: need, why = (2 if i.kind in ('valu', 'mfma') else 1), 'store data WAR'
            if dist < need:
                probs.append(f'{name}: [{n}] {i.text}  <- [{m_}] {p.text}: {why} need {need} have {dist}')
    if verbose:
        for p in probs[:40]: print('HAZARD', p)
        print(f'check {name}: {len(ins)} instrs, {len(probs)} problems')
    return probs

def vr(b, n=1, f='v'): return f'{f}{b}' if n == 1 else f'{f}[{b}:{b+n-1}]'
def ar(b, n=1): return vr(b, n, 'a')
def sr(b, n=1): return vr(b, n, 's')

def weave(mfmas, pre, valu):
    out = []
    for g, m in enumerate(mfmas):
        for x in pre.get((g, 'before'), []): out.append(x)
        out.append(m)
        out += pre.get(g, [])
        out += valu.get(g, [])
    return out

def kdesc(name, nv, accum, ns=102):
    return f""".amdhsa_kernel {name}
  .amdhsa_next_free_vgpr {nv}
  .amdhsa_next_free_sgpr {ns}
  .amdhsa_accum_offset {accum}
  .amdhsa_group_segment_fixed_size 0
  .amdhsa_kernarg_size 96
  .amdhsa_user_sgpr_count 2
  .amdhsa_user_sgpr_kernarg_segment_ptr 1
  .amdhsa_system_sgpr_workgroup_id_x 1
  .amdhsa_float_denorm_mode_32 3
.end_amdhsa_kernel
"""

def auto_waits(ctx, lines):
    dsq, vmq = [], []
    out = []
    def step(l, emit):
        t = l.strip()
        wl = wv = None
        if t.startswith(';NEED'):
            touched = set()
            for tok in t.split()[1:]: touched |= regs_of(tok)
            i = None
        elif t.startswith(';VMNEED'):
            tag = t.split()[1]
            idx = [n for n, (d, g) in enumerate(vmq) if g == tag]
            if idx: wv = len(vmq) - 1 - idx[-1]
            touched = set(); i = None
        elif t.startswith(';BLOADED'):
            return
        elif t.startswith(';LGKM0'):
            if dsq: wl = 0
            touched = set(); i = None
        else:
            code = t.split(';')[0].strip()
            if not code or code.endswith(':') or code.startswith('.'):
                if emit: out.append(l)
                return
            i = Ins(code)
            if 'nodep' in t: i.w = set()
            touched = i.r | i.w
            if i.op == 's_waitcnt':
                m = re.search(r'lgkmcnt\((\d+)\)', code)
                if m:
                    while len(dsq) > int(m.group(1)): dsq.pop(0)
                m = re.search(r'vmcnt\((\d+)\)', code)
                if m:
                    while len(vmq) > int(m.group(1)): vmq.pop(0)
        idx = [n for n, (d, g) in enumerate(dsq) if d & touched]
        if idx: wl = len(dsq) - 1 - idx[-1]
        idx = [n for n, (d, g) in enumerate(vmq) if d & touched]
        if idx:
            k = len(vmq) - 1 - idx[-1]
            wv = k if wv is None else min(wv, k)
        if wl is not None or wv is not None:
            s = 's_waitcnt'
            if wv is not None:
                wv = min(wv, 63); s += f' vmcnt({wv})'
                while len(vmq) > wv: vmq.pop(0)
            if wl is not None:
                wl = min(wl, 15); s += f' lgkmcnt({wl})'
                while len(dsq) > wl: dsq.pop(0)
            if emit: out.append(s)
        if i is not None:
            if emit: out.append(l)
            m = re.search(r'tag=(\w+)', t)
            tag = m.group(1) if m else None
            if i.kind == 'ds': dsq.append((set(i.w), tag))
            if i.kind == 'vm': vmq.append((set(i.w), tag))
    for l in ctx: step(l, False)
    for l in lines: step(l, True)
    return out

def dstamp(va, vt, vb):
    return ['s_memtime s[70:71]', 's_memrealtime s[74:75]', 's_waitcnt lgkmcnt(0)', 'v_cmp_eq_u32 vcc, s72, v0', f'v_mov_b32 v{vt}, s70', 's_add_u32 s72, s72, 1',
            f'v_cndmask_b32 v{va}, v{va}, v{vt}, vcc', f'v_mov_b32 v{vt}, s74', f'v_cndmask_b32 v{vb}, v{vb}, v{vt}, vcc']
def dstore(va, vt, vb, sw, sws, mb):
    return ['s_lshl_b32 s70, s2, 2', f's_add_u32 s70, s70, s{sw}', 's_lshl_b32 s70, s70, 9', f's_add_u32 s70, s70, {mb<<20}', f'v_lshlrev_b32 v{vt}, 2, v0',
            f'buffer_store_dword v{va}, v{vt}, s[{sws}:{sws+3}], s70 offen', f'buffer_store_dword v{vb}, v{vt}, s[{sws}:{sws+3}], s70 offen offset:256']

def merge_min(variants):
    base = variants[0]
    for c in variants[1:]:
        if c == base: continue
        mm = []; i = j = 0
        while i < len(base) or j < len(c):
            x = base[i] if i < len(base) else None; y = c[j] if j < len(c) else None
            xw = x is not None and x.startswith('s_waitcnt'); yw = y is not None and y.startswith('s_waitcnt')
            if xw and yw:
                gx = dict(re.findall(r'(\w+cnt)\((\d+)\)', x)); gy = dict(re.findall(r'(\w+cnt)\((\d+)\)', y))
                keys = [k for k in ('vmcnt', 'lgkmcnt') if k in gx or k in gy]
                mm.append('s_waitcnt ' + ' '.join(f'{k}({min(int(gx.get(k, 99)), int(gy.get(k, 99)))})' for k in keys)); i += 1; j += 1
            elif xw: mm.append(x); i += 1
            elif yw: mm.append(y); j += 1
            else:
                assert x == y, (x, y); mm.append(x); i += 1; j += 1
        base = mm
    return base

def code_prefetch(start, end, uid, vtmp, vdst, stmp, nsl):
    return [f's_getpc_b64 s[{stmp}:{stmp+1}]', f'{uid}_PC:', f's_sub_u32 s{stmp}, s{stmp}, {uid}_PC-{start}', f's_subb_u32 s{stmp+1}, s{stmp+1}, 0',
            f's_lshr_b32 s{stmp+2}, s2, 3', f's_and_b32 s{stmp+2}, s{stmp+2}, {nsl-1}', f's_lshl_b32 s{stmp+2}, s{stmp+2}, 13',
            f'v_and_b32 v{vtmp}, 63, v0', f'v_lshlrev_b32 v{vtmp}, 7, v{vtmp}', f'v_add_u32 v{vtmp}, s{stmp+2}, v{vtmp}', f'v_min_u32 v{vtmp}, {end}-{start}-4, v{vtmp}',
            f'global_load_dword v{vdst}, v{vtmp}, s[{stmp}:{stmp+1}]']

import os as _os
def gstamp(slot, srd, va, vb, neg=False):
    if not _os.environ.get('GDIAG'): return []
    return ['s_memrealtime s[74:75]', 's_waitcnt lgkmcnt(0)'] + (['s_not_b32 s74, s74'] if neg else []) + \
           [f'v_mov_b32 v{va}, s74', f'v_mov_b32 v{vb}, {slot*4}', 's_mov_b64 exec, 1', f'buffer_atomic_umax v{va}, v{vb}, s[{srd}:{srd+3}], 0 offen sc1', 's_mov_b64 exec, -1', 's_nop 1']
```

```python
from lib import *
from layout import *
import os, struct, math
import k3
from k3 import flat, f32, MF, STUBS
DIAG = os.environ.get('DIAG')
FW, FC, FB = FLG, FLG + 4096, FLG + 8192
sWS, sOUT, sW, sT, sDB = 8, 12, 16, 20, 80
vL16 = 1
vG = (244, 245, 246)
vA, vB = 240, 241
def stamp(): return dstamp(*vG) if DIAG else []
def spin(voff, srd, soff, cond, tmp, name, wide=False):
    ld = f'buffer_load_dword v{tmp}, v{voff}, {sr(srd,4)}, {soff} offen' + (' offset:128' if srd == sDB else '') + ' sc1'
    return [f's_mov_b32 s89, 0x80000', f'{name}_L:', ld, 's_waitcnt vmcnt(0)', cond,
            f's_cbranch_vccz {name}_D', 's_sleep 2', 's_sub_u32 s89, s89, 1', 's_cmp_lg_u32 s89, 0', f's_cbranch_scc1 {name}_L', f'{name}_D:']
sQ, sM = 48, 49
sC0, sM0, sC1, sM1 = 52, 56, 60, 64
sFc, sFb = 68, 69
def acc(part, mt, qt): return (152 if part == 0 else 0) + 4 * (4 * mt + qt)
NC = 4
def wfr(kb, j): return vr(104 + 16 * (kb % NC) + 4 * j, 4)
def cfr(kb, j): return vr(168 + 16 * (kb % NC) + 4 * j, 4)
def lw(kb):
    m, kk = (sM0, kb) if kb < 32 else (sM1, kb - 32)
    X = [[f'buffer_load_dwordx4 {wfr(kb,j)}, v{vL16}, {sr(sWS,4)}, s{m+j} offen offset:{(kk%4)*1024} sc1'] for j in range(4)]
    if kk % 4 == 3 and kb < 31:
        for j in range(4): X[j].append(f's_add_u32 s{m+j}, s{m+j}, 4096')
    return X
def lc(kb):
    c, kk = (sC0, kb) if kb < 32 else (sC1, kb - 32)
    X = [f'buffer_load_dwordx4 {cfr(kb,j)}, v{vL16}, {sr(sWS,4)}, s{c+j} offen offset:{(kk%4)*1024} sc1' for j in range(4)]
    if kk % 4 == 3 and kb < 31: X += [f's_add_u32 s{c+j}, s{c+j}, 4096' for j in range(4)]
    return X

def pre_polls():
    return [f'v_and_b32 v47, 31, v0', f'v_lshlrev_b32 v47, 2, v47', f's_mov_b32 s89, {FW}',
            f'buffer_load_dword a252, v47, {sr(sDB,4)}, 0 offen offset:128 sc1', f'buffer_load_dwordx4 a[248:251], v{vL16}, {sr(sWS,4)}, s89 offen sc1',
            ]

def gen_tail(ctx):
    L = []; a = L.append
    t0, t1, t2 = sT, sT + 1, sT + 2
    if DIAG: a('s_nop 1'); a('v_mov_b32 v244, v44'); a('v_mov_b32 v246, v46')
    a(f's_mov_b32 s{sW}, s20')
    a('s_lshl_b32 s24, s22, 7'); a('s_lshl_b32 s25, s21, 2'); a(f's_add_u32 s26, s25, {FC}'); a('s_add_u32 s27, s26, s24'); a('s_sub_u32 s26, s26, s24'); a(f's_add_u32 s26, s26, {15*128}')
    a('s_lshl_b32 s25, s2, 2'); a(f's_add_u32 s25, s25, {FW}')
    a('v_mov_b32 v243, s27'); a('v_writelane_b32 v243, s26, 1'); a('v_writelane_b32 v243, s25, 2'); a('v_mov_b32 v242, 1')
    a(f's_and_b32 s{t0}, s2, 7'); a(f's_lshr_b32 s{t2}, s2, 3')
    a(f's_lshr_b32 s{sQ}, s{t0}, 1'); a(f's_lshl_b32 s{sQ}, s{sQ}, 3'); a(f's_and_b32 s{t1}, s{t2}, 7'); a(f's_add_u32 s{sQ}, s{sQ}, s{t1}')
    a(f's_and_b32 s{sM}, s{t0}, 1'); a(f's_lshl_b32 s{sM}, s{sM}, 2'); a(f's_lshr_b32 s{t1}, s{t2}, 3'); a(f's_add_u32 s{sM}, s{sM}, s{t1}')
    for base, idx, st, org, wsh in ((sC0, sQ, CTX_S, CTX, 15), (sM0, sM, WOA_S, WOA, 15), (sC1, sQ, OB_S, OB, 12), (sM1, sM, WOB_S, WOB, 12)):
        a(f's_mul_i32 s{base}, s{idx}, {4*st}'); a(f's_lshl_b32 s{t0}, s{sW}, {wsh}'); a(f's_add_u32 s{base}, s{base}, s{t0}'); a(f's_add_u32 s{base}, s{base}, {org}')
        for j in range(1, 4): a(f's_add_u32 s{base+j}, s{base+j-1}, {st}')
    a(f's_lshr_b32 s{t2}, s{sQ}, 1'); a(f's_lshl_b32 s{sFc}, s{t2}, 7'); a(f's_add_u32 s{sFc}, s{sFc}, {FC}'); a(f's_lshl_b32 s{sFb}, s{t2}, 6'); a(f's_add_u32 s{sFb}, s{sFb}, {FB}')
    a(f's_mov_b32 s{sOUT}, s96'); a(f's_mov_b32 s{sOUT+1}, s97'); a(f's_mov_b32 s{sOUT+2}, 0x400000'); a(f's_mov_b32 s{sOUT+3}, 0x20000')
    for j in range(4): a(f'v_accvgpr_read_b32 v{8+j}, a{248+j}')
    a(f'v_accvgpr_read_b32 v{vB}, a252'); a(f'v_mov_b32 v{vA}, v47')
    a('v_min_u32 v8, v8, v9'); a('v_min3_u32 v8, v8, v10, v11'); a(f'v_cmp_gt_u32 vcc, 8, v{vB}'); a('s_cbranch_vccnz TL_SLOW0'); a('v_cmp_eq_u32 vcc, 0, v8'); a('s_cbranch_vccnz TL_SLOW0'); a('TL_OK0:')
    sl = ['TL_SLOW0:'] + spin(vA, sDB, '0', f'v_cmp_gt_u32 vcc, 8, v{vB}', vB, 'TL_SK') + [f's_mov_b32 s{t2}, {FW}']
    for q in range(4): sl += ['v_lshlrev_b32 v8, 2, v0', f'v_add_u32 v8, {q*256}, v8'] + spin(8, sWS, f's{t2}', 'v_cmp_eq_u32 vcc, 0, v9', 9, f'TL_SW{q}')
    STUBS.extend(sl + ['s_branch TL_OK0'])
    Braw = k3.role_b(unit=2, fused=True, raw=True)
    kL = Braw.index(';BLOADED')
    Bl, Bc = Braw[:kL], Braw[kL+1:]
    def signal(name, store): return ['s_barrier', f's_cmp_lg_u32 s{sW}, 0', f's_cbranch_scc1 {name}'] + store + [f'{name}:']
    lidx = [k for k, x in enumerate(Bl) if x.startswith('buffer_load')]
    nk, nv = lidx[19] + 1, lidx[29] + 1
    MODE = int(os.environ.get('TL_MODE', 1))
    sig1 = [f';NEED v{vB}'] + signal('TL_NF', ['s_mov_b64 exec, 7', 'SK1:', 's_mov_b64 exec, -1'])
    X = [f'buffer_load_dword v{vB}, v{vA}, {sr(sWS,4)}, s{sFc} offen sc1']
    if MODE == 2: X += flat([lw(kb) for kb in range(NC)]) + sig1
    else: X += Bl[:nk] + sig1 + Bl[nk:]
    NK = 36
    def step(kb):
        part = 0 if kb < 32 else 1
        M = []
        for mt in range(4):
            for qt in range(4):
                d = acc(part, mt, qt)
                M.append(f'{MF} {ar(d,4)}, {wfr(kb,mt)}, {cfr(kb,qt)}, ' + ('0' if kb in (0, 32) else ar(d, 4)))
        if kb == 22: M += [f'v_and_b32 v{vA}, 15, v0', f'v_lshlrev_b32 v{vA}, 2, v{vA}', f'buffer_load_dword v{vB}, v{vA}, {sr(sWS,4)}, s{sFb} offen sc1']
        if kb + NC == 32:
            M += [f'v_cmp_eq_u32 vcc, 0, v{vB}', 's_cbranch_vccnz TL_SLOWB', 'TL_BOK:']
            STUBS.extend(['TL_SLOWB:'] + spin(vA, sWS, f's{sFb}', f'v_cmp_eq_u32 vcc, 0, v{vB}', vB, 'TL_SB') + ['s_branch TL_BOK'])
        if kb + NC < NK: M += lc(kb + NC) + flat(lw(kb + NC))
        return M
    cuts = [k for k, x in enumerate(Bc) if x.startswith(('v_exp', 'v_fma'))]
    NS = int(os.environ.get('TL_NS', 9))
    STUBS.extend(['TL_SLOWC:'] + spin(vA, sWS, f's{sFc}', f'v_cmp_eq_u32 vcc, 0, v{vB}', vB, 'TL_SC') + ['s_branch TL_COK'])
    chk = [f'v_cmp_eq_u32 vcc, 0, v{vB}', 's_cbranch_vccnz TL_SLOWC', 'TL_COK:']
    ins = {}
    if MODE == 2:
        X += Bl[:nk] + chk + flat([lc(kb) for kb in range(NC)]) + step(0) + Bl[nk:nv] + step(1) + Bl[nv:] + step(2)
        S0 = 3
    elif MODE == 1:
        X += chk + flat(lw(0)) + lc(0) + flat(lw(1)) + lc(1)
        ins[cuts[0]] = flat(lw(2)) + lc(2) + flat(lw(3)) + lc(3)
        S0 = 0
    else:
        X += flat([lw(kb) for kb in range(NC)])
        ins[cuts[len(cuts) * 3 // 4]] = [f'buffer_load_dword v{vB}, v{vA}, {sr(sWS,4)}, s{sFc} offen sc1']
        ins[cuts[len(cuts) * 7 // 8]] = chk + flat([lc(kb) for kb in range(NC)])
        S0 = 0; NS = 0
    for n in range(NS): ins.setdefault(cuts[(n + 1) * (len(cuts) - 1) // (NS + 1)], []).extend(step(S0 + n))
    for k, x in enumerate(Bc):
        X.append(x); X += ins.get(k, [])
    X += stamp() + gstamp(11, sDB, 2, 3) + gstamp(12, sDB, 2, 3, neg=True)
    for kb in range(S0 + NS, NK):
        X += step(kb)
        if kb == S0 + NS + NC: X += signal('TL_NF2', [f's_lshl_b32 s{t0}, s2, 2', f's_add_u32 s{t0}, s{t0}, {FB}', 'v_mov_b32 v4, 0', 's_mov_b64 exec, 1', 'SK2:', 's_mov_b64 exec, -1'])
    X.append('s_nop 7')
    L = auto_waits(ctx, L + stamp() + X)
    TMP = 2
    G = [f's_lshl_b32 s{t0}, s{sW}, 14', f'v_add_u32 v{TMP}, s{t0}, v{vL16}', f's_lshl_b32 s{t0}, s{sW}, 10', f'v_add_u32 v{TMP+1}, s{t0}, v{vL16}',
         f'v_add_u32 v{TMP+2}, 65536, v{TMP}', f'v_add_u32 v{TMP+3}, 65536, v{TMP+1}']
    for part in range(2): G += [f'ds_write_b128 v{TMP+2*part}, {ar(acc(part,0,0)+4*k,4)} offset:{k*1024}' for k in range(16)]
    vo = 6
    G += [f'v_and_b32 v{vo}, 15, v0', f'v_lshlrev_b32 v{vo}, 11, v{vo}', f'v_bfe_u32 v7, v0, 4, 1', f'v_lshl_add_u32 v{vo}, v7, 5, v{vo}', f'v_lshrrev_b32 v7, 5, v0', f'v_lshl_add_u32 v{vo}, v7, 4, v{vo}',
          f's_lshl_b32 s{t0}, s{sQ}, 2', f's_add_u32 s{t0}, s{t0}, s{sW}', f's_lshl_b32 s{t0}, s{t0}, 15', f's_lshl_b32 s{t1}, s{sM}, 7', f's_add_u32 s{t0}, s{t0}, s{t1}']
    G += ['s_waitcnt lgkmcnt(0)', 's_barrier']
    for part in range(2):
        for w in range(4):
            for mt in range(4): G.append(f'ds_read_b128 {vr(48+64*part+16*w+4*mt,4)}, v{TMP+1+2*part} offset:{w*16384+mt*4096}')
    for part in range(2):
        b = 48 + 64 * part
        for j in range(16): G.append(f'v_add_f32 v{b+j}, v{b+j}, v{b+16+j}')
        for j in range(16): G.append(f'v_add_f32 v{b+32+j}, v{b+32+j}, v{b+48+j}')
        for j in range(16): G.append(f'v_add_f32 v{b+j}, v{b+j}, v{b+32+j}')
        P0 = 16 + 8 * part
        for mt in range(4):
            G += [f'v_cvt_pk_bf16_f32 v{P0+4*(mt>>1)+2*(mt&1)}, v{b+4*mt}, v{b+4*mt+1}', f'v_cvt_pk_bf16_f32 v{P0+4*(mt>>1)+2*(mt&1)+1}, v{b+4*mt+2}, v{b+4*mt+3}']
        G.append('s_nop 1')
        for pr in range(2):
            q = P0 + 4 * pr
            G += [f'v_permlane16_swap_b32 v{q}, v{q+2}', f'v_permlane16_swap_b32 v{q+1}, v{q+3}']
        for pr in range(2):
            G.append(f'buffer_store_dwordx4 {vr(P0+4*pr,4)}, v{vo}, {sr(sOUT,4)}, s{t0} offen offset:{part*1024+pr*64}')
    G = auto_waits([], G)
    check_trace(ctx + L + G, 'tail')
    rep = {'SK1:': f'buffer_store_dword v242, v243, {sr(sWS,4)}, 0 offen sc1', 'SK2:': f'buffer_store_dword v242, v4, {sr(sWS,4)}, s{t0} offen sc1'}
    L = [rep.get(x, x) for x in L] + stamp() + G
    if DIAG: L += stamp() + ['s_waitcnt vmcnt(0)'] + stamp() + dstore(*vG, sW, sWS, 201)
    L += ['s_waitcnt vmcnt(0)'] * bool(os.environ.get('GDIAG')) + gstamp(13, sDB, 2, 3) + gstamp(14, sDB, 2, 3, neg=True)
    L.append('s_endpgm')
    return L
```

```python
import re

def regs_of(tok):
    tok = tok.strip()
    neg = tok.lstrip('-')
    m = re.fullmatch(r'abs\((.*)\)', neg)
    if m: neg = m.group(1)
    m = re.fullmatch(r'\|(.*)\|', neg)
    if m: neg = m.group(1)
    m = re.fullmatch(r'([vas])(\d+)', neg)
    if m: return {(m.group(1), int(m.group(2)))}
    m = re.fullmatch(r'([vas])\[(\d+):(\d+)\]', neg)
    if m: return {(m.group(1), i) for i in range(int(m.group(2)), int(m.group(3)) + 1)}
    if neg == 'vcc': return {('s', 'vcc')}
    if neg == 'exec': return {('s', 'exec')}
    if neg == 'm0': return {('s', 'm0')}
    return set()

TRANS = ('v_exp_f32', 'v_log_f32', 'v_rcp_f32', 'v_rsq_f32', 'v_sqrt_f32', 'v_sin_f32', 'v_cos_f32')
NODST_S = ('s_bitcmp', 's_cmp', 's_waitcnt', 's_barrier', 's_branch', 's_cbranch', 's_nop', 's_setprio', 's_bitcmp', 's_endpgm', 's_setpc', 's_sleep')

class Ins:
    def __init__(self, text):
        self.text = text
        t = text.split(';')[0].strip()
        parts = t.split(None, 1)
        self.op = parts[0]
        rest = parts[1] if len(parts) > 1 else ''
        ops = [o.strip() for o in re.split(r',(?![^\[]*\])', rest)] if rest else []
        mods = ''
        if ops:
            lp = ops[-1].split(None, 1)
            if len(lp) > 1 and not ops[-1].startswith('abs'):
                ops[-1] = lp[0]; mods = lp[1]
        self.ops, self.mods = ops, mods
        op = self.op
        self.kind = 'other'; self.w = set(); self.r = set()
        R = [regs_of(o) for o in ops]
        U = lambda l: set().union(*l) if l else set()
        if op.startswith('v_mfma'):
            self.kind = 'mfma'; self.w = R[0]; self.A, self.B, self.C = R[1], R[2], R[3]; self.r = R[1] | R[2] | R[3]
            self.passes = 8 if '32x32' in op else 4
        elif op.startswith('v_cmp'):
            self.kind = 'valu'; self.w = R[0]; self.r = U(R[1:])
        elif op.startswith('v_readfirstlane') or op.startswith('v_readlane'):
            self.kind = 'valu'; self.w = R[0]; self.r = U(R[1:])
        elif op.startswith('v_permlane'):
            self.kind = 'valu'; self.w = R[0] | R[1]; self.r = R[0] | R[1]
        elif op.startswith('v_add_co') or op.startswith('v_sub_co') or op.startswith('v_addc_co'):
            self.kind = 'valu'; self.w = R[0] | R[1]; self.r = U(R[2:])
        elif op.startswith('v_'):
            self.kind = 'valu'; self.w = R[0]; self.r = U(R[1:])
            if op.startswith('v_fmac') or op.startswith('v_dot2c'): self.r |= R[0]
        elif op.startswith('ds_read'):
            self.kind = 'ds'; self.w = R[0]; self.r = R[1]
        elif op.startswith('ds_write'):
            self.kind = 'ds'; self.r = U(R)
        elif op.startswith('ds_bpermute') or op.startswith('ds_swizzle'):
            self.kind = 'ds'; self.w = R[0]; self.r = U(R[1:])
        elif op.startswith('buffer_load'):
            self.kind = 'vm'
            if 'lds' in mods.split():
                self.r = U(R) | {('s', 'm0')}; self.dma = True
            else:
                self.w = R[0]; self.r = U(R[1:])
        elif op.startswith('global_load_lds'):
            self.kind = 'vm'; self.r = U(R) | {('s', 'm0')}; self.dma = True
        elif op.startswith('global_load'):
            self.kind = 'vm'; self.w = R[0]; self.r = U(R[1:])
        elif op.startswith('buffer_store') or op.startswith('buffer_atomic'):
            self.kind = 'vm'; self.r = U(R); self.sdata = R[0]
        elif op.startswith('buffer_'):
            self.kind = 'vm'
        elif op.startswith('s_load') or op.startswith('s_memtime') or op.startswith('s_memrealtime'):
            self.kind = 'smem'; self.w = R[0]; self.r = U(R[1:])
        elif op.startswith('s_'):
            self.kind = 'salu'
            if op.startswith(NODST_S): self.r = U(R)
            else:
                self.w = R[0]; self.r = U(R[1:])
                if 'saveexec' in op: self.w |= {('s', 'exec')}
            if op.startswith('s_cbranch_vcc'): self.r |= {('s', 'vcc')}
        self.states = 1
        if op == 's_nop': self.states = int(ops[0], 0) + 1

def check_trace(lines, name='', verbose=True):
    ins = []
    for l in lines:
        t = l.split(';')[0].strip()
        if not t or t.endswith(':') or t.startswith('.'): continue
        ins.append(Ins(t)); mt = re.search(r'tag=(\w+)', l); ins[-1].tag = mt.group(1) if mt else None
        if 'nodep' in l: ins[-1].w = set()
    probs = []
    m0tag = None
    pos = []
    c = 0
    for i in ins:
        pos.append(c); c += i.states
    WIN = 40
    dsq = []; vmq = []
    for n, i in enumerate(ins):
        if ('s', 'm0') in i.w: m0tag = i.tag
        if getattr(i, 'dma', False) and i.tag != m0tag: probs.append(f'{name}: [{n}] {i.text} tag {i.tag} but m0 tag {m0tag}')
        if i.op == 's_waitcnt':
            m = re.search(r'lgkmcnt\((\d+)\)', i.text)
            if m:
                k = int(m.group(1))
                while len(dsq) > k: dsq.pop(0)
            m = re.search(r'vmcnt\((\d+)\)', i.text)
            if m:
                k = int(m.group(1))
                while len(vmq) > k: vmq.pop(0)
        if i.op.startswith('s_addc'):
            assert ins[n-1].op.startswith('s_add_u32'), (name, n, i.text, ins[n-1].text)
        if i.op.startswith('s_cselect') or i.op.startswith('s_cbranch_scc'):
            for m_ in range(n - 1, -1, -1):
                p = ins[m_]
                if p.kind == 'salu' and not p.op.startswith(('s_mov', 's_cselect', 's_waitcnt', 's_barrier', 's_nop', 's_mul_i32', 's_branch', 's_cbranch', 's_setprio', 's_getpc', 's_setpc', 's_swappc')):
                    if not p.op.startswith(('s_cmp', 's_bitcmp')): probs.append(f'{name}: [{n}] {i.text}: SCC last written by {p.text}')
                    break
        touched = i.r | i.w
        for q, nm in ((dsq, 'lgkm'), (vmq, 'vm')):
            for d, txt in q:
                if d & touched:
                    probs.append(f'{name}: [{n}] {i.text} touches pending {nm} dest of: {txt}')
        if i.kind == 'ds':
            dsq.append((set(i.w), i.text))
            if len(dsq) > 15: pass
        if i.kind == 'smem': dsq.append((set(i.w), i.text)); dsq.append((set(), i.text))
        if i.kind == 'vm':
            vmq.append((set(i.w), i.text))
            if len(vmq) > 63: probs.append(f'{name}: [{n}] more than 63 vm outstanding')
        for m_ in range(n - 1, max(-1, n - WIN), -1):
            p = ins[m_]
            dist = pos[n] - pos[m_] - p.states
            if dist >= 20: break
            need = 0; why = ''
            if p.kind == 'mfma':
                big = p.passes == 8
                if i.kind == 'mfma':
                    if (i.A | i.B) & p.w: need, why = (12 if big else 8), 'mfmaD->A/B'
                    elif i.C & p.w and not (i.C == p.w and i.passes == p.passes): need, why = (10 if big else 6), 'mfmaD->C overlap'
                    elif i.w & p.w and not (i.C == p.w) and not (i.A == p.A and i.B == p.B): need, why = (12 if big else 8), 'mfmaD WAW (conservative)'
                elif i.kind in ('valu', 'ds', 'vm'):
                    if (i.r | i.w) & p.w: need, why = (12 if big else 8), 'mfmaD->valu/mem'
                    elif i.kind == 'valu' and i.w & p.C: need, why = (7 if big else 3), 'mfmaC WAR'
            elif p.kind == 'valu':
                vw = {x for x in p.w if x[0] in 'va'}
                sw = {x for x in p.w if x[0] == 's'}
                if i.kind == 'mfma' and i.r & vw: need, why = 2, 'valu->mfma'
                if i.kind == 'mfma' and ('s', 'exec') in sw: need, why = 4, 'exec->mfma'
                if i.kind == 'valu':
                    if p.op.startswith(TRANS) and not i.op.startswith(TRANS) and i.r & vw: need, why = max(need, 1), 'trans->valu'
                    if i.op.startswith('v_permlane') and i.r & vw: need, why = 2, 'valu->permlane'
                    if ('dpp' in i.op or 'row_' in i.mods) and i.r & vw: need, why = 2, 'valu->dpp'
                    if (i.op.startswith('v_readfirstlane') or i.op.startswith('v_readlane')) and i.r & vw: need, why = max(need, 1), 'valu->readlane'
                    if i.r & sw: need, why = max(need, 2), 'valu sgpr->valu'
                if i.kind == 'vm' and i.r & sw: need, why = 5, 'valu sgpr->vmem'
                if i.kind == 'salu' and i.r & sw and not i.op.startswith('s_cbranch'): need, why = max(need, 1), 'valu sgpr->salu (pad)'
            elif p.kind == 'salu':
                if ('s', 'm0') in p.w and i.kind == 'vm' and getattr(i, 'dma', False): need, why = 1, 'm0->dma'
            elif p.kind == 'vm' and hasattr(p, 'sdata') and len(p.sdata) >= 3:
                if i.w & p.sdata: need, why = (2 if i.kind in ('valu', 'mfma') else 1), 'store data WAR'
            if dist < need:
                probs.append(f'{name}: [{n}] {i.text}  <- [{m_}] {p.text}: {why} need {need} have {dist}')
    if verbose:
        for p in probs[:40]: print('HAZARD', p)
        print(f'check {name}: {len(ins)} instrs, {len(probs)} problems')
    return probs

def vr(b, n=1, f='v'): return f'{f}{b}' if n == 1 else f'{f}[{b}:{b+n-1}]'
def ar(b, n=1): return vr(b, n, 'a')
def sr(b, n=1): return vr(b, n, 's')

def weave(mfmas, pre, valu):
    out = []
    for g, m in enumerate(mfmas):
        for x in pre.get((g, 'before'), []): out.append(x)
        out.append(m)
        out += pre.get(g, [])
        out += valu.get(g, [])
    return out

def kdesc(name, nv, accum, ns=102):
    return f""".amdhsa_kernel {name}
  .amdhsa_next_free_vgpr {nv}
  .amdhsa_next_free_sgpr {ns}
  .amdhsa_accum_offset {accum}
  .amdhsa_group_segment_fixed_size 0
  .amdhsa_kernarg_size 96
  .amdhsa_user_sgpr_count 2
  .amdhsa_user_sgpr_kernarg_segment_ptr 1
  .amdhsa_system_sgpr_workgroup_id_x 1
  .amdhsa_float_denorm_mode_32 3
.end_amdhsa_kernel
"""

def auto_waits(ctx, lines):
    dsq, vmq = [], []
    out = []
    def step(l, emit):
        t = l.strip()
        wl = wv = None
        if t.startswith(';NEED'):
            touched = set()
            for tok in t.split()[1:]: touched |= regs_of(tok)
            i = None
        elif t.startswith(';VMNEED'):
            tag = t.split()[1]
            idx = [n for n, (d, g) in enumerate(vmq) if g == tag]
            if idx: wv = len(vmq) - 1 - idx[-1]
            touched = set(); i = None
        elif t.startswith(';BLOADED'):
            return
        elif t.startswith(';LGKM0'):
            if dsq: wl = 0
            touched = set(); i = None
        else:
            code = t.split(';')[0].strip()
            if not code or code.endswith(':') or code.startswith('.'):
                if emit: out.append(l)
                return
            i = Ins(code)
            if 'nodep' in t: i.w = set()
            touched = i.r | i.w
            if i.op == 's_waitcnt':
                m = re.search(r'lgkmcnt\((\d+)\)', code)
                if m:
                    while len(dsq) > int(m.group(1)): dsq.pop(0)
                m = re.search(r'vmcnt\((\d+)\)', code)
                if m:
                    while len(vmq) > int(m.group(1)): vmq.pop(0)
        idx = [n for n, (d, g) in enumerate(dsq) if d & touched]
        if idx: wl = len(dsq) - 1 - idx[-1]
        idx = [n for n, (d, g) in enumerate(vmq) if d & touched]
        if idx:
            k = len(vmq) - 1 - idx[-1]
            wv = k if wv is None else min(wv, k)
        if wl is not None or wv is not None:
            s = 's_waitcnt'
            if wv is not None:
                wv = min(wv, 63); s += f' vmcnt({wv})'
                while len(vmq) > wv: vmq.pop(0)
            if wl is not None:
                wl = min(wl, 15); s += f' lgkmcnt({wl})'
                while len(dsq) > wl: dsq.pop(0)
            if emit: out.append(s)
        if i is not None:
            if emit: out.append(l)
            m = re.search(r'tag=(\w+)', t)
            tag = m.group(1) if m else None
            if i.kind == 'ds': dsq.append((set(i.w), tag))
            if i.kind == 'vm': vmq.append((set(i.w), tag))
    for l in ctx: step(l, False)
    for l in lines: step(l, True)
    return out

def dstamp(va, vt, vb):
    return ['s_memtime s[70:71]', 's_memrealtime s[74:75]', 's_waitcnt lgkmcnt(0)', 'v_cmp_eq_u32 vcc, s72, v0', f'v_mov_b32 v{vt}, s70', 's_add_u32 s72, s72, 1',
            f'v_cndmask_b32 v{va}, v{va}, v{vt}, vcc', f'v_mov_b32 v{vt}, s74', f'v_cndmask_b32 v{vb}, v{vb}, v{vt}, vcc']
def dstore(va, vt, vb, sw, sws, mb):
    return ['s_lshl_b32 s70, s2, 2', f's_add_u32 s70, s70, s{sw}', 's_lshl_b32 s70, s70, 9', f's_add_u32 s70, s70, {mb<<20}', f'v_lshlrev_b32 v{vt}, 2, v0',
            f'buffer_store_dword v{va}, v{vt}, s[{sws}:{sws+3}], s70 offen', f'buffer_store_dword v{vb}, v{vt}, s[{sws}:{sws+3}], s70 offen offset:256']

def merge_min(variants):
    base = variants[0]
    for c in variants[1:]:
        if c == base: continue
        mm = []; i = j = 0
        while i < len(base) or j < len(c):
            x = base[i] if i < len(base) else None; y = c[j] if j < len(c) else None
            xw = x is not None and x.startswith('s_waitcnt'); yw = y is not None and y.startswith('s_waitcnt')
            if xw and yw:
                gx = dict(re.findall(r'(\w+cnt)\((\d+)\)', x)); gy = dict(re.findall(r'(\w+cnt)\((\d+)\)', y))
                keys = [k for k in ('vmcnt', 'lgkmcnt') if k in gx or k in gy]
                mm.append('s_waitcnt ' + ' '.join(f'{k}({min(int(gx.get(k, 99)), int(gy.get(k, 99)))})' for k in keys)); i += 1; j += 1
            elif xw: mm.append(x); i += 1
            elif yw: mm.append(y); j += 1
            else:
                assert x == y, (x, y); mm.append(x); i += 1; j += 1
        base = mm
    return base

def code_prefetch(start, end, uid, vtmp, vdst, stmp, nsl):
    return [f's_getpc_b64 s[{stmp}:{stmp+1}]', f'{uid}_PC:', f's_sub_u32 s{stmp}, s{stmp}, {uid}_PC-{start}', f's_subb_u32 s{stmp+1}, s{stmp+1}, 0',
            f's_lshr_b32 s{stmp+2}, s2, 3', f's_and_b32 s{stmp+2}, s{stmp+2}, {nsl-1}', f's_lshl_b32 s{stmp+2}, s{stmp+2}, 13',
            f'v_and_b32 v{vtmp}, 63, v0', f'v_lshlrev_b32 v{vtmp}, 7, v{vtmp}', f'v_add_u32 v{vtmp}, s{stmp+2}, v{vtmp}', f'v_min_u32 v{vtmp}, {end}-{start}-4, v{vtmp}',
            f'global_load_dword v{vdst}, v{vtmp}, s[{stmp}:{stmp+1}]']

import os as _os
_gs = [0]
GMAP = {0: 0, 2: 1, 4: 2, 6: 3, 7: 4, 9: 5, 11: 6, 13: 7}
def gstamp(slot, srd, va, vb, neg=False):
    if not _os.environ.get('GDIAG') or slot not in GMAP: return []
    _gs[0] += 1
    return ['s_cmp_lt_i32 s100, 0', f's_cbranch_scc1 GS{_gs[0]}', 's_memrealtime s[74:75]', 's_waitcnt lgkmcnt(0)',
            f'v_mov_b32 v{va}, s74', f'v_mov_b32 v{vb}, {GMAP[slot]*4}', 's_mov_b64 exec, 1', f'buffer_store_dword v{va}, v{vb}, s[{srd}:{srd+3}], s100 offen sc1', 's_mov_b64 exec, -1', 's_nop 1', f'GS{_gs[0]}:']
```

```python
from lib import *
from layout import *
import struct, math, os
def f32(x): return '0x%08x' % struct.unpack('<I', struct.pack('<f', x))[0]

CA = math.log2(math.e) / math.sqrt(128.0)
vWd, vXd, vWl, vXr, vSt, vWr, vXr2, vSt2 = 2, 6, 10, 14, 16, 18, 26, 17
WF, PK, ACC = 32, 96, 128
sACT, sW, sWS = 28, 32, 36
sWave, sGc, sRem, sLdw, sWoff, sLdw128, sLdw64 = 40, 41, 43, 44, 45, 46, 42
sOut0, sOut1, sScl = 47, 48, 49
sNOut0, sNOut1, sQ0, sQ1 = 50, 51, 52, 58
sType, sBlk, sXoff, sM0W, sM0X, sT0, sT1, sT2, sGcL, sRemL, sWsz, sSR, sSW, sM0X2, sPf = 53, 54, 55, 56, 57, 59, 60, 61, 62, 63, 64, 65, 66, 67, 68
sPX, sPQ, sPo = 76, 80, 84
DK = 1
NSLOT = 6
XBASE = NSLOT * 16384
STORE_FLAGS = os.environ.get('K1_SF', ' sc1')
PF = int(os.environ.get('K1_PF', 1))
WST = int(os.environ.get('K1_WST', 6))
PFR = int(os.environ.get('K1_PFR', 3 if int(os.environ.get('K1_LPF', 0)) else 2))
PFM = int(os.environ.get('K1_PFM', 1))
XPF = int(os.environ.get('K1_XPF', 2))
sJ7 = 69
FUSE = int(os.environ.get('FUSE', 1))
LPF = int(os.environ.get('K1_LPF', 0))
Q0PF = int(os.environ.get('K1_Q0PF', 0))
sLx, sLw = 86, 87
sW5 = 96
LPG = int(os.environ.get('K1_LPG', 1)); LPS = int(os.environ.get('K1_LPS', 6))
PFG = int(os.environ.get('K1_PFG', 130))
DIAG = os.environ.get('DIAG')
def stamp(): return dstamp(31, 30, 29) if DIAG else []
MF = 'v_mfma_f32_16x16x32_bf16'
D = 28
sWoD = 70 if False else 95

def acc(par, ft, tt): return ACC + 64 * par + 4 * (4 * ft + tt)
def xfr(tt, kb): return (tt * 16 + kb) * 4
def wfr(fg, kl): return WF + 4 * (4 * (fg % 4) + kl)
def wfd(g, kbl): return WF + 4 * (2 * (g % 8) + kbl)

SLOTS = {3: [4, 5, 0, 1], 4: [6, 2, 8, 4], 5: [7, 3, 9, 5]}
def w_read(p, r):
    if r >= 128: p, r = p + 1, r - 128
    if p > 5: return None
    fg, kl, pp = r // 8, (r >> 1) & 3, r & 1
    u, ft = fg // 4, fg % 4
    sl = SLOTS[p][u]
    base = vWl + ft if sl < 4 else vWr + 4 * (sl // 4 - 1) + ft
    return f'ds_read_b64_tr_b16 {vr(wfr(fg,kl)+2*pp,2)}, v{base} offset:{(sl%4)*16384 + (32*kl + 4*pp)*128}'
def wd_read(r):
    g, kbl, p = r // 4, (r >> 1) & 1, r & 1
    c, ft = g // 8, g % 8
    return f'ds_read_b64_tr_b16 {vr(wfd(g,kbl)+2*p,2)}, v{vWl+(ft&3)} offset:{(c%4)*16384 + (ft>>2)*8192 + (32*kbl + 4*p)*128}'
def wd_dma(c, pad=False):
    L = [f's_add_u32 m0, s{sM0W}, {(c%4)*16384} ; tag=D{c}']
    if pad: L.append('s_nop 0')
    for q in range(4):
        L.append(f'buffer_load_dwordx4 v{vWd+q}, {sr(sW,4)}, s{sWoD} offen offset:{q*1024} lds ; tag=D{c}')
    L.append(f's_add_u32 s{sWoD}, s{sWoD}, s{sLdw64}')
    return L

def w_dma(p, u):
    srd = sW5 if p == 5 else sW
    L = [f's_add_u32 m0, s{sM0W}, {SLOTS[p][u]*16384} ; tag=W{p}{u}']
    for q in range(4):
        L.append(f'buffer_load_dwordx4 v{vWd+q}, {sr(srd,4)}, s{sWoff} offen offset:{q*1024} lds ; tag=W{p}{u}')
    if p != 4: L.append(f's_add_u32 s{sWoff}, s{sWoff}, s{sLdw128}')
    return L

def x_dma(c):
    slot = c % 3
    L = []
    for hh in range(2):
        L.append(f's_add_u32 m0, s{sM0X}, {slot*8192 + hh*4096} ; tag=X{c}' if slot < 2 else f's_add_u32 m0, s{sM0X2}, {hh*4096} ; tag=X{c}')
        L.append(f's_add_u32 s{sT0}, s{sXoff}, {c*128 + hh*32768}')
        for q in range(4):
            L.append(f'buffer_load_dwordx4 v{vXd+q}, {sr(sACT,4)}, s{sT0} offen offset:{q*1024} lds ; tag=X{c}')
    return L

def x_read(c, kbl, tt):
    if c % 3 == 2: return f'ds_read_b128 {ar(xfr(tt, 2*c+kbl),4)}, v{vXr2+kbl} offset:{tt*2048}'
    return f'ds_read_b128 {ar(xfr(tt, 2*c+kbl),4)}, v{vXr+kbl} offset:{(c%3)*8192 + tt*2048}'

def load_params(k):
    return [
        f's_add_u32 s{sT1}, s{sGcL}, {k}',
        f's_and_b32 s{sT1}, s{sT1}, 63',
        f's_lshl_b32 s{sT1}, s{sT1}, 7',
        f's_mul_i32 s{sWoff}, s{sWave}, s{sLdw}',
        f's_lshl_b32 s{sWoff}, s{sWoff}, 5',
        f's_add_u32 s{sWoff}, s{sWoff}, s{sT1}',
    ]

def comp_params():
    return [
        f's_lshr_b32 s{sT1}, s{sGc}, 1',
        f's_lshl_b32 s{sT1}, s{sT1}, 19',
        f's_and_b32 s{sT2}, s{sGc}, 1',
        f's_lshl_b32 s{sT2}, s{sT2}, 12',
        f's_add_u32 s{sT1}, s{sT1}, s{sT2}',
        f's_lshl_b32 s{sT2}, s{sBlk}, 13',
        f's_add_u32 s{sNOut0}, s{sT1}, s{sT2}',
        f's_add_u32 s{sNOut1}, s{sNOut0}, 8192',
        f's_sub_u32 s{sT1}, s{sGc}, 128',
        f's_lshl_b32 s{sT1}, s{sT1}, 18',
        f's_lshl_b32 s{sT2}, s{sBlk}, 12',
        f's_add_u32 s{sT1}, s{sT1}, s{sT2}',
        f's_add_u32 s{sT1}, s{sT1}, {BWS}',
        f's_add_u32 s{sT2}, s{sT1}, 4096',
        f's_cmp_ge_u32 s{sGc}, 128',
        f's_cselect_b32 s{sNOut0}, s{sT1}, s{sNOut0}',
        f's_cselect_b32 s{sNOut1}, s{sT2}, s{sNOut1}',
        f's_cmp_ge_u32 s{sGc}, 64',
        f's_cselect_b32 s{sType}, 1, 0',
        f's_sub_u32 s{sT1}, s{sGc}, 128',
        f's_cmp_lt_u32 s{sT1}, 16',
        f's_cselect_b32 s{sType}, 0, s{sType}',
    ]

def groups(L):
    out = []
    for x in L:
        if x.startswith('s_cselect'): out[-1].append(x)
        else: out.append([x])
    return out

def epi_part(par, ptype, n):
    V, S = [], []
    y = n >> 1
    for e in range(2):
        fi = 2 * (n & 1) + e
        pk = PK + 4 * ((2 * n + e) % 4)
        if ptype == 0: t0, t1 = acc(par, 2 * (fi >> 1), 2 * y + (fi & 1)), acc(par, 2 * (fi >> 1) + 1, 2 * y + (fi & 1))
        else: t0, t1 = acc(par, fi, 2 * y), acc(par, fi, 2 * y + 1)
        if ptype == 0:
            V += [f'v_mul_f32 v{t+j}, s{sScl}, v{t+j}' for t in (t0, t1) for j in range(4)]
        V += [f'v_cvt_pk_bf16_f32 v{pk}, v{t0}, v{t0+1}', f'v_cvt_pk_bf16_f32 v{pk+1}, v{t0+2}, v{t0+3}',
              f'v_cvt_pk_bf16_f32 v{pk+2}, v{t1}, v{t1+1}', f'v_cvt_pk_bf16_f32 v{pk+3}, v{t1+2}, v{t1+3}']
        S.append(f'buffer_store_dwordx4 {vr(pk,4)}, v{vSt}, {sr(sWS,4)}, s{sOut1 if y else sOut0} offen offset:{fi*1024}{STORE_FLAGS}')
    return V, S

class Blk:
    def __init__(self): self.mf = []; self.pre = {}; self.val = {}
    def P(self, g, x): self.pre.setdefault(g, []).extend(x if isinstance(x, list) else [x])
    def V(self, g, x): self.val.setdefault(g, []).extend(x if isinstance(x, list) else [x])
    def seq(self, g, items, st=2):
        for it in items:
            self.P(g, it); g += st
        return g
    def auto(self, g, items):
        for it in items:
            while g in self.pre or g % 2 == 0: g += 1
            self.P(g, it)
        return g
    def out(self): return weave(self.mf, self.pre, self.val)
def wgroups(dm): return [[x] for x in dm]
def xgroups(c):
    xd = x_dma(c)
    return [xd[0:2], [xd[2]], [xd[3]], [xd[4]], [xd[5]], xd[6:8], [xd[8]], [xd[9]], [xd[10]], [xd[11]]]
def rotate_params(): return [[f's_mov_b32 s{sOut0}, s{sNOut0}'], [f's_mov_b32 s{sOut1}, s{sNOut1}'], [f's_add_u32 s{sGc}, s{sGc}, 1'], [f's_sub_u32 s{sRem}, s{sRem}, 1']] + groups(comp_params())

def build_pass(ptype, p):
    par = (p + 1) & 1
    B = Blk()
    for G in range(256):
        u, ft, tt, kl = G // 64, (G >> 4) & 3, (G >> 2) & 3, G & 3
        fg = 4 * u + ft; kb = 4 * u + kl
        a = acc(par, ft, tt)
        w, x = vr(wfr(fg, kl), 4), ar(xfr(tt, kb), 4)
        c = '0' if kb == 0 else vr(a, 4)
        B.mf.append(f'{MF} {vr(a,4)}, ' + (f'{w}, {x}' if ptype == 0 else f'{x}, {w}') + f', {c}')
        if G % 16 == 0: B.P(G - 1 if G else (0, 'before'), f';NEED {vr(wfr(fg,0),16)}')
        if (G + D) % 64 == 0:
            nu = (G + D) // 64
            np_, nu = (p, nu) if nu < 4 else (p + 1, 0)
            if p == 3: B.P(G - 1, [f';VMNEED W{np_}{nu}' if np_ == 3 else ';VMNEED W40', 's_barrier'])
            elif p == 4 and nu in (1, 2, 3): B.P(G - 1, [f';VMNEED W4{nu}' if nu < 3 else ';VMNEED W53', 's_barrier'])
        if G % 2 == 0:
            x = w_read(p, (G + D) // 2)
            if x: B.P(G, x)
    for u in range(4):
        g0 = 64 * u
        if p == 3:
            if u < 3:
                B.seq(g0 + 1, wgroups(w_dma(4, u))[:1]);
                for k, it in enumerate(wgroups(w_dma(4, u))[1:]): B.P(g0 + 3 + 4 * k, it)
                wg = wgroups(w_dma(5, u)); B.P(g0 + 17, wg[0])
                for k in range(4): B.P(g0 + 19 + 4 * k, wg[1 + k])
                B.P(g0 + 33, wg[5])
            else:
                B.seq(g0 + 1, wgroups(w_dma(4, u))[:1])
                for k, it in enumerate(wgroups(w_dma(4, u))[1:]): B.P(g0 + 3 + 4 * k, it)
                wg = wgroups(w_dma(5, u)); B.P(g0 + 17, wg[0])
                for k in range(4): B.P(g0 + 19 + 4 * k, wg[1 + k])
        Vl, Sl = epi_part(par ^ 1, ptype, u)
        gs = [g for g in range(g0 + 9, g0 + 64) if g % 4 == 1][:len(Vl) // 2]
        for k, g in enumerate(gs): B.V(g, Vl[2*k:2*k+2])
        B.P(g0 + 39, Sl[0]); B.P(g0 + 59, Sl[1])
    if p == 4 and PFM == 1:
        B.auto(64 * 3 + 1, [[f's_mov_b32 s{sPX+2}, 0x200000', f's_mov_b32 s{sPQ+2}, 0x400000']] + [[x] for x in pf_loads()])
    rp = rotate_params()
    g = B.auto(41 if p != 3 else 125, [[f's_mov_b32 s{sQ0}, s{sNOut0}', f's_mov_b32 s{sQ1}, s{sNOut1}']] + rp[2:])
    assert g < 250, g
    if p == 5 and LPF:
        X = []
        for k in range(16): X.append([f'buffer_load_dwordx4 {vr(112+4*(k%4),4)}, v{vSt}, {sr(sPX,4)}, s{sLx} offen offset:{(k%4)*1024} ; nodep'] + ([f's_add_u32 s{sLx}, s{sLx}, 4096'] if k % 4 == 3 else []))
        for k in range(4): X.append([f'buffer_load_dwordx4 {vr(112+4*k,4)}, v28, {sr(sPQ,4)}, s{sLw} offen ; nodep', f's_add_u32 s{sLw}, s{sLw}, 32768'])
        g = LPG
        for x in X: g = B.auto(g, [x]) + LPS
    B.P(253, f's_mov_b32 s{sOut0}, s{sQ0}'); B.P(255, f's_mov_b32 s{sOut1}, s{sQ1}')
    return B.out()

def build_dp(t0, t1):
    B = Blk()
    for G in range(512):
        c, ft, tt, kbl = G // 64, (G >> 3) & 7, (G >> 1) & 3, G & 1
        g = 8 * c + ft; kb = 2 * c + kbl
        a = acc(ft >> 2, ft & 3, tt)
        w, x = vr(wfd(g, kbl), 4), ar(xfr(tt, kb), 4)
        cc = '0' if kb == 0 else vr(a, 4)
        B.mf.append(f'{MF} {vr(a,4)}, ' + (f'{w}, {x}' if (t1 if ft >> 2 else t0) == 0 else f'{x}, {w}') + f', {cc}')
        if G % 16 == 0:
            need = f';NEED {vr(wfd(g,0),16)}'
            if G % 64 == 0: need += ' ' + ' '.join(ar(xfr(t, 2 * c), 8) for t in range(4))
            B.P(G - 1 if G else (0, 'before'), need)
        if (G + D) % 64 == 0:
            nc = (G + D) // 64
            B.P(G - 1, [f';VMNEED D{nc}' if nc < 8 else ';VMNEED W30', 's_barrier'])
        if G % 2 == 0:
            r = (G + D) // 2
            B.P(G, wd_read(r) if r < 256 else w_read(3, r - 256))
    for c in range(8):
        g0 = 64 * c
        if c + 3 < 8: B.seq(g0 + 1, xgroups(c + 3)[:7]); B.seq(g0 + 17, xgroups(c + 3)[7:])
        if c == 0: B.seq(23, wgroups(wd_dma(2))[:4]); B.seq(33, [sum(wgroups(wd_dma(2))[4:], [])])
        if c + 3 < 8: B.seq(g0 + 37, wgroups(wd_dma(c + 3))[:5]); B.P(g0 + 49, wgroups(wd_dma(c + 3))[5])
        if c < 7:
            B.P(g0 + 45 if c + 3 >= 8 else g0 + 49, f';VMNEED X{c+1}')
            rs = [x_read(c + 1, kbl, tt) for kbl in range(2) for tt in range(4)]
            gs = [49, 51, 53, 55, 57, 59, 61, 61]
            for k, x in enumerate(rs): B.P(g0 + gs[k], x)
    for k, x in enumerate(groups(load_params(2))): B.P(64 * 4 + 23 + 2 * (k // 2), x)
    B.seq(64 * 5 + 37, wgroups(w_dma(3, 0))[:5]); B.P(64 * 5 + 45, wgroups(w_dma(3, 0))[5])
    B.seq(64 * 6 + 1, wgroups(w_dma(3, 1)))
    B.seq(64 * 6 + 19, wgroups(w_dma(3, 2)))
    B.seq(64 * 6 + 37, wgroups(w_dma(3, 3))[:5])
    for k, x in enumerate(groups(load_params(3))): B.P(64 * 7 + 1 + 2 * (k // 2), x)
    rp = rotate_params()
    g = 64 * 1 + 23
    for k, x in enumerate(rp): B.P(g + 2 * (k // 4), x)
    B.seq(64 * 7 + 11, [[f's_mov_b32 s{sQ0}, s{sNOut0}', f's_mov_b32 s{sQ1}, s{sNOut1}']])
    for k, x in enumerate(rp[2:]): B.P(64 * 7 + 17 + 2 * (k // 3), x)
    g = 64 * 7 + 37
    for n in range(4):
        Vl, Sl = epi_part(0, t0, n)
        h = len(Vl) // 2
        for e in range(2):
            B.V(g, Vl[e*h:e*h+h//2]); B.V(g + 1, Vl[e*h+h//2:(e+1)*h]); B.P(g + 2, Sl[e]); g += 3
    assert g <= 64 * 7 + 62, g
    B.P(511, [f's_mov_b32 s{sOut0}, s{sQ0}', f's_mov_b32 s{sOut1}, s{sQ1}'])
    if PF:
        for k in range(16):
            B.P(PFG + 2 * k, f'buffer_load_dwordx4 {vr(112+4*(k%4),4)}, v{vSt}, {sr(sW,4)}, s{sPf} offen offset:{(k%4)*1024} ; nodep')
            if k % 4 == 3: B.P(PFG + 2 * k, f's_add_u32 s{sPf}, s{sPf}, 4096')
    return B.out()

def pf_loads():
    L = [f'buffer_load_dwordx4 {vr(112+4*q,4)}, v{vSt}, {sr(sPX,4)}, s{sPo} offen offset:{q*1024} ; nodep' for q in range(2)]
    L += [f'buffer_load_dwordx4 {vr(112+4*q,4)}, v{vSt}, {sr(sPQ,4)}, s{sPo+1} offen offset:{q*1024} ; nodep' for q in range(4)]
    return L

def pf_local():
    L = [f's_mov_b32 s{sPX+2}, 0x200000', f's_mov_b32 s{sPQ+2}, 0x400000',
         f's_lshr_b32 s{sPo}, s2, 3', f's_lshl_b32 s{sPo}, s{sPo}, 16', f's_lshl_b32 s{sPo+1}, s{sWave}, 14', f's_add_u32 s{sPo}, s{sPo}, s{sPo+1}',
         'v_lshrrev_b32 v100, 4, v0', 'v_lshlrev_b32 v100, 13, v100', 'v_and_b32 v101, 15, v0', 'v_lshl_add_u32 v100, v101, 4, v100',
         f's_lshr_b32 s{sPo+1}, s2, 5', f's_lshl_b32 s{sPo+1}, s{sPo+1}, 2', f's_add_u32 s{sPo+1}, s{sPo+1}, s{sWave}', f's_lshl_b32 s{sPo+1}, s{sPo+1}, 17',
         f's_and_b32 s{sPo+2}, s2, 31', f's_lshl_b32 s{sPo+2}, s{sPo+2}, 8', f's_add_u32 s{sPo+1}, s{sPo+1}, s{sPo+2}']
    for q in range(4):
        L += [f'buffer_load_dwordx4 {vr(112+4*q,4)}, v100, {sr(sPQ,4)}, s{sPo+1} offen ; nodep', f's_add_u32 s{sPo+1}, s{sPo+1}, 32768']
    for k in range(16):
        L.append(f'buffer_load_dwordx4 {vr(112+4*(k%4),4)}, v{vSt}, {sr(sPX,4)}, s{sPo} offen offset:{(k%4)*1024} ; nodep')
        if k % 4 == 3: L.append(f's_add_u32 s{sPo}, s{sPo}, 4096')
    return L

def relayout_job():
    L = []; a = L.append
    vD, vR, vF = 32, 40, 56
    sU, sSrc, sDst, sA, sB, sS = 45, 46, 47, 48, 49, 88
    a('s_waitcnt lgkmcnt(0)')
    a(f's_mov_b32 s{sWS}, s26'); a(f's_mov_b32 s{sWS+1}, s27'); a(f's_mov_b32 s{sWS+2}, 0x10000000'); a(f's_mov_b32 s{sWS+3}, 0x20000')
    L += pf_setup() + [f's_mov_b32 s{sPX+2}, 0x200000', f's_mov_b32 s{sPQ+2}, 0x400000']
    a(f'v_lshlrev_b32 v{vSt}, 4, v0')
    for j in range(4): a(f'v_mov_b32 v{vF+j}, 0')
    a(f's_lshl_b32 s{sA}, s{sBlk}, 2'); a(f's_add_u32 s{sA}, s{sA}, s{sWave}'); a(f's_lshl_b32 s{sA}, s{sA}, 10'); a(f's_add_u32 s{sA}, s{sA}, {FLG}')
    if not int(os.environ.get('FUSE3', 0)): a(f'buffer_store_dwordx4 {vr(vF,4)}, v{vSt}, {sr(sWS,4)}, s{sA} offen{STORE_FLAGS}')
    L += pf_local() if PFM == 3 else pf_loads()
    if Q0PF and FUSE: a('s_call_b64 s[88:89], K1_Q0'); a('s_waitcnt vmcnt(0)')
    a('s_branch K1_END2' if FUSE else 's_branch K1_END')
    return L
def pf_setup():
    return [f's_mov_b64 {sr(sPX,2)}, s[4:5]', f's_mov_b32 s{sPX+3}, 0x20000', f's_mov_b64 {sr(sPQ,2)}, s[8:9]', f's_mov_b32 s{sPQ+3}, 0x20000',
            f's_mov_b32 s{sPX+2}, 0', f's_mov_b32 s{sPQ+2}, 0',
            f's_lshl_b32 s{sPo}, s2, 2', f's_add_u32 s{sPo}, s{sPo}, s{sWave}', f's_lshl_b32 s{sPo+1}, s{sPo}, 12', f's_lshl_b32 s{sPo}, s{sPo}, 11']

def lpf_setup():
    return [f's_lshr_b32 s{sLx}, s2, 3', f's_lshl_b32 s{sLx}, s{sLx}, 16', f's_lshl_b32 s{sT1}, s{sWave}, 14', f's_add_u32 s{sLx}, s{sLx}, s{sT1}',
            f's_lshr_b32 s{sLw}, s2, 5', f's_lshl_b32 s{sLw}, s{sLw}, 2', f's_add_u32 s{sLw}, s{sLw}, s{sWave}', f's_lshl_b32 s{sLw}, s{sLw}, 17',
            f's_and_b32 s{sT2}, s2, 31', f's_lshl_b32 s{sT2}, s{sT2}, 8', f's_add_u32 s{sLw}, s{sLw}, s{sT2}',
            'v_lshrrev_b32 v28, 4, v0', 'v_lshlrev_b32 v28, 13, v28', 'v_and_b32 v100, 15, v0', 'v_lshl_add_u32 v28, v100, 4, v28']

def final_epi(par, ptype):
    L = ['s_nop 7']
    if PFM == 2: L = [f's_mov_b32 s{sPX+2}, 0x200000', f's_mov_b32 s{sPQ+2}, 0x400000'] + pf_loads() + ['s_nop 1']
    for n in range(4):
        Vl, Sl = epi_part(par, ptype, n)
        h = len(Vl) // 2
        L += Vl[:h] + [Sl[0]] + Vl[h:] + [Sl[1]]
    return L

def gen_k1(T=int(os.environ.get('K1_T', 4))):
    name = 'k1_kernel'
    L = []
    a = L.append
    a(f'.p2align 8\n.type {name},@function\n{name}:')
    a('s_cmp_ge_u32 s2, 256'); a('s_cbranch_scc1 K1_END')
    if os.environ.get('GDIAG'): a('s_mov_b32 s100, -1')
    if os.environ.get('CPF', '1') == '1': L += code_prefetch('k1_kernel', 'CODE_END', 'K1', 98, 99, 90, 16)
    a('s_load_dwordx16 s[4:19], s[0:1], 0'); a('s_load_dwordx8 s[20:27], s[0:1], 64')
    a('v_lshrrev_b32 v1, 6, v0'); a('v_and_b32 v0, 63, v0')
    a(f'v_readfirstlane_b32 s{sWave}, v1')
    if DIAG: a('s_mov_b32 s72, 0'); a('v_mov_b32 v31, 0'); a('v_mov_b32 v29, 0'); L += stamp()
    nj = 32 // T
    lt = T.bit_length() - 1
    a(f's_and_b32 s{sT0}, s2, 7'); a(f's_lshr_b32 s{sT1}, s2, 3')
    ng = 8 // T
    a(f's_and_b32 s{sT2}, s{sT0}, {ng-1}'); a(f's_lshl_b32 s{sT2}, s{sT2}, {lt}')
    a(f's_and_b32 s{sBlk}, s{sT1}, {T-1}'); a(f's_add_u32 s{sBlk}, s{sBlk}, s{sT2}')
    a(f's_lshr_b32 s{sT0}, s{sT0}, {ng.bit_length()-1}'); a(f's_mul_i32 s{sT0}, s{sT0}, {nj}')
    a(f's_lshr_b32 s{sT1}, s{sT1}, {lt}'); a(f's_add_u32 s{sT0}, s{sT0}, s{sT1}')
    a(f's_lshl_b32 s94, s{sT0}, 2'); a('s_add_u32 s94, s94, 128')
    a(f's_cmp_eq_u32 s{sT0}, 31'); a('s_cbranch_scc1 K1_RELAY')
    a(f's_and_b32 s{sJ7}, s{sT0}, 7'); a(f's_lshl_b32 s{sJ7}, s{sJ7}, 7')
    a(f's_lshl_b32 s{sXoff}, s{sBlk}, 18'); a(f's_lshl_b32 s{sT1}, s{sWave}, 16'); a(f's_add_u32 s{sXoff}, s{sXoff}, s{sT1}')
    a(f's_lshl_b32 s{sBlk}, s{sBlk}, 3'); a(f's_lshl_b32 s{sT1}, s{sWave}, 1'); a(f's_add_u32 s{sBlk}, s{sBlk}, s{sT1}')
    a(f's_mul_i32 s{sT1}, s{sT0}, 79'); a(f's_lshr_b32 s{sT1}, s{sT1}, 10')
    a(f's_mul_i32 s{sT2}, s{sT1}, 13'); a(f's_sub_u32 s{sT2}, s{sT0}, s{sT2}')
    a(f's_lshl_b32 s{sPf}, s{sT2}, 19'); a(f's_lshr_b32 s{sGc}, s{sXoff}, 2'); a(f's_add_u32 s{sPf}, s{sPf}, s{sGc}')
    a(f's_mov_b32 s{sRem}, 5')
    a(f's_cmp_eq_u32 s{sT2}, 12'); a(f's_cselect_b32 s{sRem}, 4, s{sRem}')
    a(f's_cmp_eq_u32 s{sT0}, 30'); a(f's_cselect_b32 s{sRem}, 4, s{sRem}')
    a(f's_mul_i32 s{sT2}, s{sT2}, 5')
    a(f's_lshl_b32 s{sGc}, s{sT1}, 6'); a(f's_add_u32 s{sGc}, s{sGc}, s{sT2}')
    a(f's_lshl_b32 s{sM0W}, s{sWave}, 12')
    a(f's_lshl_b32 s{sM0X}, s{sWave}, 14'); a(f's_add_u32 s{sM0X}, s{sM0X}, {XBASE}')
    a(f's_lshl_b32 s{sM0X2}, s{sWave}, 13'); a(f's_add_u32 s{sM0X2}, s{sM0X2}, 65536')
    a(f'v_lshlrev_b32 v{vSt}, 4, v0')
    t = [100, 101, 102, 103, 104]
    a(f'v_lshrrev_b32 v{t[0]}, 3, v0'); a(f'v_lshlrev_b32 v{t[1]}, 10, v{t[0]}')
    a(f'v_lshrrev_b32 v{t[2]}, 4, v0'); a(f'v_and_b32 v{t[3]}, 7, v0'); a(f'v_xor_b32 v{t[2]}, v{t[2]}, v{t[3]}')
    for q in range(4):
        a(f'v_xor_b32 v{t[4]}, {4*(q&1)}, v{t[2]}'); a(f'v_lshl_add_u32 v{t[4]}, v{t[4]}, 4, v{t[1]}'); a(f'v_add_u32 v{vXd+q}, {q*7168}, v{t[4]}')
    a(f'v_and_b32 v{t[0]}, 15, v0'); a(f'v_lshrrev_b32 v{t[1]}, 4, v0'); a(f'v_bfe_u32 v{t[2]}, v0, 1, 3')
    a(f'v_lshlrev_b32 v{t[0]}, 7, v{t[0]}')
    for kbl in range(2):
        a(f'v_add_u32 v{t[4]}, {4*kbl}, v{t[1]}'); a(f'v_xor_b32 v{t[4]}, v{t[4]}, v{t[2]}'); a(f'v_lshl_add_u32 v{t[4]}, v{t[4]}, 4, v{t[0]}')
        a(f'v_add_u32 v{vXr+kbl}, s{sM0X}, v{t[4]}'); a(f'v_add_u32 v{vXr2+kbl}, s{sM0X2}, v{t[4]}')
    a(f'v_bfe_u32 v{t[0]}, v0, 2, 2'); a(f'v_lshrrev_b32 v{t[1]}, 4, v0'); a(f'v_lshl_add_u32 v{t[1]}, v{t[1]}, 3, v{t[0]}'); a(f'v_lshlrev_b32 v{t[1]}, 7, v{t[1]}')
    a(f'v_and_b32 v{t[2]}, 3, v0'); a(f'v_lshl_add_u32 v{t[1]}, v{t[2]}, 3, v{t[1]}')
    a(f'v_bfe_u32 v{t[2]}, v0, 3, 2')
    for ft in range(4):
        a(f'v_xor_b32 v{t[3]}, {ft}, v{t[2]}'); a(f'v_lshl_add_u32 v{vWl+ft}, v{t[3]}, 5, v{t[1]}'); a(f'v_add_u32 v{vWr+ft}, 65536, v{vWl+ft}'); a(f'v_add_u32 v{vWr+4+ft}, 131072, v{vWl+ft}')
    a('s_waitcnt lgkmcnt(0)')
    a(f's_mov_b32 s{sWS}, s26'); a(f's_mov_b32 s{sWS+1}, s27'); a(f's_mov_b32 s{sWS+2}, 0x10000000'); a(f's_mov_b32 s{sWS+3}, 0x20000')
    a(f's_mov_b32 s{sW+3}, 0x20000'); a(f's_mov_b32 s{sACT+2}, 0x200000'); a(f's_mov_b32 s{sACT+3}, 0x20000')
    L += pf_setup()
    if os.environ.get('GDIAG'):
        a('s_mov_b32 s96, s24'); a('s_mov_b32 s97, s25'); a('s_mov_b32 s98, 256'); a('s_mov_b32 s99, 0x20000')
        a('s_mov_b32 s100, -1'); a(f's_cmp_eq_u32 s2, {os.environ.get("GA", 66)}'); a('s_cselect_b32 s100, 0, s100'); a(f's_cmp_eq_u32 s2, {os.environ.get("GB", 103)}'); a('s_cselect_b32 s100, 32, s100'); a(f's_cmp_lg_u32 s{sWave}, 0'); a('s_cselect_b32 s100, -1, s100')
        L += gstamp(0, 96, 96, 97, neg=True) + gstamp(1, 96, 96, 97)
    a(f's_cmp_eq_u32 s{sT1}, 0'); a(f's_cselect_b64 {sr(sW,2)}, s[10:11], s[12:13]'); a(f's_cselect_b32 s{sScl}, {f32(CA)}, 1.0')
    a(f's_cmp_eq_u32 s{sT1}, 2'); a(f's_cselect_b64 {sr(sW,2)}, s[18:19], {sr(sW,2)}'); a(f's_cselect_b64 {sr(sACT,2)}, s[16:17], s[6:7]')
    a(f's_movk_i32 s{sLdw}, 8192'); a(f's_cselect_b32 s{sLdw}, 3072, s{sLdw}')
    a(f's_mov_b32 s{sWsz}, 0x400000'); a(f's_cselect_b32 s{sWsz}, 0x180000, s{sWsz}')
    a(f's_lshl_b32 s{sLdw128}, s{sLdw}, 7'); a(f's_lshl_b32 s{sLdw64}, s{sLdw}, 6')
    a(f'v_lshrrev_b32 v{t[0]}, 3, v0'); a(f'v_mul_lo_u32 v{t[0]}, v{t[0]}, s{sLdw}')
    a(f'v_bfe_u32 v{t[1]}, v0, 4, 1'); a(f'v_lshlrev_b32 v{t[1]}, 1, v{t[1]}'); a(f'v_and_b32 v{t[2]}, 7, v0'); a(f'v_xor_b32 v{t[1]}, v{t[1]}, v{t[2]}')
    a(f's_lshl_b32 s{sT1}, s{sLdw}, 3'); a(f's_sub_u32 s{sT1}, s{sT1}, 1024')
    for q in range(4):
        a(f'v_xor_b32 v{t[2]}, {4*(q&1)}, v{t[1]}'); a(f'v_lshl_add_u32 v{vWd+q}, v{t[2]}, 4, v{t[0]}')
        if q < 3: a(f'v_add_u32 v{t[0]}, s{sT1}, v{t[0]}')
    a(f's_mov_b32 s{sGcL}, s{sGc}'); a(f's_mov_b32 s{sW+2}, s{sWsz}')
    a(f's_add_u32 s{sW5}, s{sW}, 128'); a(f's_addc_u32 s{sW5+1}, s{sW+1}, 0'); a(f's_sub_u32 s{sW5+2}, s{sWsz}, 128'); a(f's_mov_b32 s{sW5+3}, 0x20000')
    a(f's_cmp_eq_u32 s{sRem}, 5'); a(f's_cselect_b32 s{sW5+2}, s{sW5+2}, 0')
    a(f's_and_b32 s{sT1}, s{sGc}, 63'); a(f's_lshr_b32 s{sT2}, s{sWave}, 1'); a(f's_add_u32 s{sT1}, s{sT1}, s{sT2}'); a(f's_lshl_b32 s{sT1}, s{sT1}, 7')
    a(f's_and_b32 s{sT2}, s{sWave}, 1'); a(f's_mul_i32 s{sWoD}, s{sT2}, s{sLdw}'); a(f's_lshl_b32 s{sWoD}, s{sWoD}, 5'); a(f's_add_u32 s{sWoD}, s{sWoD}, s{sT1}')
    xpf = [f'v_lshlrev_b32 v97, 10, v0', f's_add_u32 s{sT1}, s{sXoff}, s{sJ7}', f'buffer_load_dword v96, v97, {sr(sACT,4)}, s{sT1} offen ; nodep'] if XPF else []
    pro = wd_dma(0, True) + x_dma(0) + xpf + wd_dma(1, True) + x_dma(1) + comp_params()
    pro += [';VMNEED X0', 's_barrier']
    pro += [wd_read(i) for i in range(4)] + [x_read(0, kbl, tt) for tt in range(4) for kbl in range(2)] + [wd_read(i) for i in range(4, D // 2)]
    pro += x_dma(2) + (lpf_setup() if LPF else [])
    pro = auto_waits([], pro)
    L += pro
    L += stamp() + gstamp(2, 96, 100, 101) + gstamp(3, 96, 100, 101, neg=True)
    a(f's_cmp_eq_u32 s{sType}, 1'); a('s_cbranch_scc1 K1_D11'); a(f's_cmp_eq_u32 s{sGc}, 143'); a('s_cbranch_scc1 K1_D01')
    code = {}
    dps = [(0, 0), (0, 1), (1, 1)]
    for t0_, t1_ in dps:
        code['D', t0_, t1_] = auto_waits(pro, build_dp(t0_, t1_))
    if Q0PF and FUSE:
        import k2
        q0 = k2.q0_early(sWave, sPX, sPQ)
    for t_ in range(2):
        code[3, t_] = auto_waits(pro + code['D', 0, 0], build_pass(t_, 3))
        code[4, t_] = auto_waits(code['D', 0, 0] + code[3, t_], build_pass(t_, 4))
        code[5, t_] = auto_waits(code[3, t_] + code[4, t_], build_pass(t_, 5))
    for t0_, t1_ in dps:
        a(f'.p2align 6\nK1_D{t0_}{t1_}:'); L += code['D', t0_, t1_] + gstamp(4, 96, 100, 101) + stamp()
        if (t0_, t1_) != (1, 1): a(f's_branch K1_P{t1_}')
    q0call = ['s_barrier', 's_call_b64 s[88:89], K1_Q0'] if Q0PF and FUSE else []
    for t_ in (1, 0):
        a(f'K1_P{t_}:'); L += code[3, t_] + stamp() + code[4, t_] + stamp() + [f's_cmp_eq_u32 s{sRem}, 0', f's_cbranch_scc1 K1_FIN{t_}1'] + q0call + code[5, t_] + stamp()
        L += final_epi(0, t_); a('s_branch K1_END2')
        a(f'K1_FIN{t_}1:'); L += q0call + final_epi(1, t_); a('s_waitcnt vmcnt(8)' if not q0call else 's_waitcnt vmcnt(0)'); a('s_branch K1_END2')
    a('K1_RELAY:'); L += relayout_job()
    if PFM == 3:
        a('K1_PFL:'); L += pf_local() + ['s_setpc_b64 s[88:89]']
    if Q0PF and FUSE:
        a('K1_Q0:'); L += q0 + ['s_setpc_b64 s[88:89]']
    a('K1_END:'); a('s_endpgm')
    a('K1_END2:')
    if DIAG:
        L += stamp()
        if not FUSE: a('s_waitcnt vmcnt(0)')
        L += stamp()
        L += dstore(31, 30, 29, sWave, sWS, 200)
    if FUSE: a('s_waitcnt vmcnt(8) lgkmcnt(0)')
    else: a('s_endpgm')
    check_trace(pro + code['D', 0, 0] + code[3, 0] + code[4, 0] + code[5, 0] + final_epi(0, 0), 'k1a')
    check_trace(pro + code['D', 0, 1] + code[3, 1] + code[4, 1] + final_epi(1, 1), 'k1b')
    return L, kdesc(name, 512, 256), f'; @launch kernel={name} grid=(256,1,1) block=(256,1,1) lds=163840'
```

```python
from lib import *
from layout import *
import os, struct, math
def f32(x): return '0x%08x' % struct.unpack('<I', struct.pack('<f', x))[0]
DIAG = os.environ.get('DIAG')
FUSE = int(os.environ.get('FUSE', 1))
Q0PF = int(os.environ.get('K1_Q0PF', 0)) and FUSE
FUSE3 = int(os.environ.get('FUSE3', 0))
sSig = 88
sDB = 80
KVF = os.environ.get('K2_KVF', ' sc1')
SF = os.environ.get('K2_SF', ' sc1')
THR = 2.0 ** float(os.environ.get('THR', 40.0))
NEGBIG = -1.0e30
D = 24
MF = 'v_mfma_f32_16x16x32_bf16'
vL16, vRd, vq, vBig, vd, vl, vt, vT = 1, 2, 4, 5, 6, 8, 12, 16
NM = 20
vDl = 36
vDG = 44
S0, P0, TMPV, Q0, TMPB = 48, 112, 144, 176, 240
O0, FR = 0, 128
sWS, sX, sWQ, sWO, sWB = 8, 12, 16, 60, 64
sW, sH, sI, sK, sV, sSR, sSW, sCnt, sKc, sMq, sRet, sT, sMk, sW2, sW4 = 20, 21, 22, 23, 24, 25, 26, 27, 28, 29, 30, 32, 40, 48, 49
sW2K, sW4K = 58, 59
sFa, sFw = 92, 93
sK2, sV2 = 84, 86
sXa, sXb, sWo, sXs = 50, 51, 52, 53

def stamp(): return dstamp(vDG, vDG + 1, vDG + 2) if DIAG else []
def Sr(par, idx): return S0 + 32 * par + 4 * idx
def Pr(par, u): return P0 + 16 * par + 4 * u
def Or(qt, dt): return O0 + 32 * qt + 4 * dt
def Qr(qt, db): return Q0 + 16 * qt + 4 * db
def slot(g): return FR + 4 * ((g // 2) % 16)
def tq(t, idx): return (idx & 3) if t == 'c' else 2 + (idx & 1)
def tkt(t, idx): return (idx >> 2) if t == 'c' else (idx >> 1)
def tP(t, idx):
    if t == 'c': return idx & 3, idx >> 2
    kt = idx >> 1
    return 2 * (kt >> 1) + (idx & 1), kt & 1

def pv_frags(t):
    if t == 'c': return [(4 * dt, 4 * dt, dt * 1024) for dt in range(8)]
    return [(4 * dt + 2 * kb, 4 * dt + kb, kb * 8192 + dt * 1024) for dt in range(8) for kb in range(2)]
def koff(kt, db): return (kt >> 1) * 8192 + (2 * db + (kt & 1)) * 1024
def qk_frags(t):
    if t == 'c': return [(34 + 16 * kt + 4 * db, 32 + 16 * kt + db, 16384 + koff(kt, db)) for kt in range(2) for db in range(4)]
    return [(32 + 8 * kt + 2 * db, 32 + 8 * kt + db, 16384 + koff(kt, db)) for kt in range(4) for db in range(4)]
def rd(g, off, par): return f'ds_read_b128 {ar(slot(g),4)}, v{vRd+par} offset:{off}'

def pv_mfmas(t, par):
    out = []
    for dt in range(8):
        for x in range(4):
            if t == 'c': qt, u, g = x, x, 4 * dt
            else:
                q, kb = x >> 1, x & 1
                qt, u, g = 2 + q, 2 * kb + q, 4 * dt + 2 * kb
            o = Or(qt, dt)
            out.append(f'{MF} {ar(o,4)}, {ar(slot(g),4)}, {vr(Pr(par,u),4)}, {ar(o,4)}')
    return out
def qk_mfmas(t, par, czero=False, fr=None):
    out = []
    nkt, nq = (2, 4) if t == 'c' else (4, 2)
    for kt in range(nkt):
        for x in range(nq):
            for db in range(4):
                g = 32 + (16 * kt + 4 * db + 2 if t == 'c' else 8 * kt + 2 * db)
                f = ar(slot(g), 4) if fr is None else fr(kt, db)
                idx = nq * kt + x; qt = tq(t, idx); s = Sr(par, idx)
                c = vr(s, 4) if db else ('0' if czero else vr(NM + 4 * qt, 4))
                out.append(f'{MF} {vr(s,4)}, {f}, {vr(Qr(qt,db),4)}, {c}')
    return out

sRet2 = 78
MASKS = set()
def mask_call(par, t):
    MASKS.add((par, t))
    return [f's_call_b64 {sr(sRet2,2)}, K2_MASK_{par}{t}']
def mask_routine(par, t):
    n = f'K2_MASK_{par}{t}'
    L = [f'{n}:', f's_ashr_i32 s{sT+4}, s{sMq}, 5', f's_sub_i32 s{sT+4}, s{sT+4}, s{sW}']
    for b in range(1 if t == 'c' else 2):
        T = (lambda kt, q: Sr(par, 4 * kt + q)) if t == 'c' else (lambda kt, q, b=b: Sr(par, 2 * (2 * b + kt) + q))
        L += [f's_cmp_lt_i32 s{sT+4}, {-b}', f's_cbranch_scc1 {n}_e{b}', f's_cmp_eq_i32 s{sT+4}, {-b}', f's_cbranch_scc1 {n}_d{b}']
        for kt, q in ((0, 0), (0, 1), (1, 1)): L += [f'v_mov_b32 v{T(kt,q)+j}, v{vBig}' for j in range(4)]
        L += [f's_branch {n}_f{b}', f'{n}_d{b}:']
        for kt, q in ((0, 0), (1, 1)): L += [f'v_cndmask_b32 v{T(kt,q)+j}, v{T(kt,q)+j}, v{vBig}, {sr(sMk+2*j,2)}' for j in range(4)]
        L += [f'{n}_f{b}:'] + [f'v_mov_b32 v{T(1,0)+j}, v{vBig}' for j in range(4)] + [f'{n}_e{b}:']
    return L + [f's_setpc_b64 {sr(sRet2,2)}']

def exp_ops(par, t):
    L = []; seen = set()
    def tail(idx):
        s = Sr(par, idx); qt = tq(t, idx); u, h = tP(t, idx); a = vt + qt
        if qt not in seen:
            seen.add(qt); x = [f'v_add_f32 v{a}, v{s}, v{s+1}']
        else: x = [f'v_add_f32 v{a}, v{a}, v{s}', f'v_add_f32 v{a}, v{a}, v{s+1}']
        p = Pr(par, u) + 2 * h
        return x + [f'v_cvt_pk_bf16_f32 v{p}, v{s}, v{s+1}', f'v_add_f32 v{a}, v{a}, v{s+2}', f'v_add_f32 v{a}, v{a}, v{s+3}', f'v_cvt_pk_bf16_f32 v{p+1}, v{s+2}, v{s+3}']
    prev = None
    for idx in range(8):
        s = Sr(par, idx)
        e = [f'v_exp_f32 v{s+j}, v{s+j}' for j in range(4)]
        tl = tail(prev) if prev is not None else []
        L += [e[0]] + tl[:2] + [e[1]] + tl[2:4] + [e[2]] + tl[4:] + [e[3]]
        prev = idx
    L += ['s_nop 0'] + tail(prev)
    return L
def lupd(t): return [f'v_add_f32 v{vl+q}, v{vl+q}, v{vt+q}' for q in ((0, 1, 2, 3) if t == 'c' else (2, 3))]
def chk(t):
    if t == 'c': L = [f'v_max3_f32 v{vT}, v{vt}, v{vt+1}, v{vt+2}', f'v_max_f32 v{vT}, v{vT}, v{vt+3}']
    else: L = [f'v_max_f32 v{vT}, v{vt+2}, v{vt+3}']
    return L + [f'v_cmp_nge_f32 vcc, {f32(THR)}, v{vT}']

def adv64(p, x): return [f's_add_u32 s{p}, s{p}, {x}', f's_addc_u32 s{p+1}, s{p+1}, 0']
def dma_part(kind, t, tag):
    so = sV2 if kind == 'V' else sK2
    w = (sW4 if t == 's' else sW2) if kind == 'V' else (sW4K if t == 's' else sW2K)
    n = 4 if t == 's' else 2
    items = [[f's_add_u32 m0, s{sSW}, s{w} ; tag={tag}']]
    for q in range(n):
        items.append([f'global_load_lds_dwordx4 v{vL16}, {sr(so,2)} offset:{q*1024}{KVF} ; tag={tag}'])
    items.append(adv64(so, n * 4096))
    return items
def flat(L):
    o = []
    for x in L:
        if isinstance(x, list): o += flat(x)
        else: o.append(x)
    return o

STUBS = []
def body(par, pv, sm, qk, nxt_pv, vload, kload, mask, uid):
    psm = par ^ 1
    mf = []
    if pv: mf += pv_mfmas(pv, par)
    if qk: mf += qk_mfmas(qk, par)
    ng = len(mf)
    pre = {}
    def P(g, x): pre.setdefault(g, []).extend(x if isinstance(x, list) else [x])
    frs = (pv_frags(pv) if pv else []) + (qk_frags(qk) if qk else [])
    for g, fu, off in frs:
        if g - D >= 0: P(g - D, rd(g, off, par))
    for g0 in range(0, ng, 8):
        need = [ar(slot(g), 4) for g, fu, off in frs if g0 <= fu < g0 + 8]
        if not need: continue
        P(g0 - 1 if g0 else (0, 'before'), ';NEED ' + ' '.join(need))
    if nxt_pv:
        gb = ng - D
        P(gb - 3, [f';VMNEED U{par^1}', 's_barrier'])
        for g, fu, off in pv_frags(nxt_pv):
            if g < D: P(ng + g - D, rd(g, off, par ^ 1))
    items = []
    if vload: items += dma_part('V', vload, f'U{par}')
    if kload: items += dma_part('K', kload, f'U{par}')
    if nxt_pv: items += [[f's_add_u32 s{sSR}, s{sSR}, 32768'], [f's_and_b32 s{sSR}, s{sSR}, 0x1ffff']]
    if vload or kload: items += [[f's_add_u32 s{sSW}, s{sSW}, 32768'], [f's_and_b32 s{sSW}, s{sSW}, 0x1ffff']]
    if sm:
        items += [[f's_add_u32 s{sKc}, s{sKc}, {8192 if pv == "c" else 16384}']]
        if mask is None: items += [[f's_mov_b32 s{sMq}, -4096']]
        else: P(3, [f's_mov_b32 s{sMq}, {32*mask}'] + mask_call(psm, sm))
    free = [g for g in range(1, ng) if g not in pre and not (g == ng - 1)]
    lim = (ng - D - 2) if nxt_pv else ng - 2
    gi = 0; lastd = -9
    for it in items:
        isd = it[0].startswith(('buffer', 'global'))
        while gi < len(free) and (isd and free[gi] - lastd < DSP): gi += 1
        g = free[gi]; gi += 1
        if isd:
            lastd = g
        P(g, it)
    Pq = []; Eq = []
    if nxt_pv: Pq.append(f'v_add_u32 v{vRd+(par^1)}, s{sSR}, v{vL16}')
    if pv: Pq += lupd(pv)
    if sm:
        for x in exp_ops(psm, sm):
            if x.startswith('v_exp'): Eq.append(x)
            elif x.startswith('v_'): Pq.append(x)
        NL = int(os.environ.get('K2_NL', 6))
        cv = [k for k, x in enumerate(Pq) if x.startswith('v_cvt')][-NL:]
        late = [Pq[k] for k in cv]
        Pq = [x for k, x in enumerate(Pq) if k not in cv] + chk(sm) + late
    cap = {}
    for g in range(ng):
        n = sum(2 if x.startswith(('buffer', 'ds_', 'global')) else 1 for x in pre.get(g, []))
        cap[g] = max(0, 2 - max(0, n - 1))
    last = ng - 1 if qk else ng - 2
    total = 2 * len(Eq) + len(Pq)
    def sched(extra):
        cp = dict(cap)
        for k in range(extra): cp[(k * (last + 1) // max(extra, 1)) % (last + 1)] += 1
        val = {}; pi = ei = 0
        eiss = {}
        ereg = [Ins(x).w for x in Eq]; allE = set().union(*ereg) if ereg else set()
        pend_mask = {}
        for k, x in enumerate(Pq):
            if x.startswith('v_cndmask'):
                for r in Ins(x).w: pend_mask[r] = k
        for g in range(last + 1):
            sl = cp[g]
            while sl > 0:
                if ei < len(Eq) and sl >= 2 and (mask is None or g >= 3):
                    val.setdefault(g, []).append(Eq[ei])
                    for r in ereg[ei]: eiss[r] = g
                    ei += 1; sl -= 2; continue
                if pi < len(Pq):
                    x = Pq[pi]; ins = Ins(x)
                    ok = x.startswith('v_cndmask') or all(eiss.get(r, 999) < g for r in ins.r & allE)
                    if ok:
                        val.setdefault(g, []).append(x); pi += 1; sl -= 1; continue
                break
        return val, (len(Eq) - ei) + (len(Pq) - pi)
    extra = 0
    while True:
        val, left = sched(extra)
        if left == 0: break
        extra += 1
    if os.environ.get('VERB'): print(uid, 'valu', total, 'avail', sum(cap[g] for g in range(last + 1)), 'extra', extra)
    if sm:
        pre.setdefault(ng - 1, []).extend([f's_cbranch_vccnz K2_S_{uid}', f'K2_R_{uid}:'])
        STUBS.extend([f'K2_S_{uid}:', f's_call_b64 {sr(sRet,2)}, K2_RARE_{psm}{sm}{qk or "n"}', f's_branch K2_R_{uid}'])
        RARES.add((psm, sm, qk or 'n'))
    return weave(mf, pre, val)
RARES = set()
DSP = int(os.environ.get('K2_DSP', 3))

def xlane(op, r, tmp):
    return [f'v_mov_b32 v{tmp}, v{r}', 's_nop 1', f'v_permlane32_swap_b32 v{r}, v{tmp}', f'{op} v{r}, v{r}, v{tmp}',
            f'v_mov_b32 v{tmp}, v{r}', 's_nop 1', f'v_permlane16_swap_b32 v{r}, v{tmp}', f'{op} v{r}, v{r}, v{tmp}']
def deltas(par, t, clamp):
    qs = (0, 1, 2, 3) if t == 'c' else (2, 3)
    ch = []
    for q in qs:
        regs = [Sr(par, i) + j for i in range(8) if tq(t, i) == q for j in range(4)]
        c = [f'v_max_f32 v{vDl+q}, v{regs[0]}, v{regs[1]}']
        for k in range(2, len(regs), 2): c.append(f'v_max3_f32 v{vDl+q}, v{vDl+q}, v{regs[k]}, v{regs[k+1]}')
        tmp = vDl + 4 + q
        for sw in ('32', '16'):
            c += [f'v_mov_b32 v{tmp}, v{vDl+q}', f'v_permlane{sw}_swap_b32 v{vDl+q}, v{tmp}', f'v_max_f32 v{vDl+q}, v{vDl+q}, v{tmp}']
        c.append(f'v_ceil_f32 v{vDl+q}, v{vDl+q}')
        if clamp: c.append(f'v_max_f32 v{vDl+q}, 0, v{vDl+q}')
        ch.append(c)
    L = []
    for k in range(len(ch[0])):
        if len(qs) == 2 and 'permlane' in ch[0][k]: L.append('s_nop 0')
        for c in ch: L.append(c[k])
    return L
def sub_tiles(par, t): return [f'v_sub_f32 v{Sr(par,i)+j}, v{Sr(par,i)+j}, v{vDl+tq(t,i)}' for i in range(8) for j in range(4)]

def rare(par, t, tn):
    L = [f'K2_RARE_{par}{t}{tn}:', 's_nop 7', 's_nop 7']
    nkt = 2 if t == 'c' else 4
    R = []
    mf = qk_mfmas(t, par, fr=lambda kt, db: vr(TMPV + 16 * (kt & 1) + 4 * db, 4))
    per = len(mf) // nkt
    for k0 in range(0, nkt, 2):
        R.append(f's_add_u32 s{sT+4}, s{sKc}, {k0*4096}'); R.append(f's_add_u32 s{sT+5}, s{sT+4}, 4096')
        for kt in range(2):
            for db in range(4):
                o = (2 * db + kt) * 1024
                R.append(f'buffer_load_dwordx4 {vr(TMPV+16*kt+4*db,4)}, v{vL16}, {sr(sWS,4)}, s{sT+4+(o>>12)} offen offset:{o&4095}{KVF}')
        R.append('s_waitcnt vmcnt(0)')
        R += mf[per*k0:per*(k0+2)] + ['s_nop 7']
    R += mask_call(par, t) + deltas(par, t, True)
    if t == 's': R += [f'v_mov_b32 v{vDl}, 0', f'v_mov_b32 v{vDl+1}, 0']
    R += sub_tiles(par, t)
    if tn != 'n': R += sub_tiles(par ^ 1, tn)
    for q in range(4):
        for j in range(4): R.append(f'v_sub_f32 v{NM+4*q+j}, v{NM+4*q+j}, v{vDl+q}')
        R.append(f'v_exp_f32 v{vDl+4+q}, -v{vDl+q}')
    R += exp_ops(par, t)
    for q in range(4): R.append(f'v_mul_f32 v{vl+q}, v{vl+q}, v{vDl+4+q}')
    for q in ((0, 1, 2, 3) if t == 'c' else (2, 3)):
        for j0 in range(0, 32, 8):
            for j in range(8): R.append(f'v_accvgpr_read_b32 v{TMPV+j}, a{Or(q,0)+j0+j}')
            for j in range(8): R.append(f'v_mul_f32 v{TMPV+j}, v{TMPV+j}, v{vDl+4+q}')
            for j in range(8): R.append(f'v_accvgpr_write_b32 a{Or(q,0)+j0+j}, v{TMPV+j}')
    R += ['s_nop 1', f's_setpc_b64 {sr(sRet,2)}']
    check_trace(R, f'rare{par}{t}{tn}', bool(os.environ.get('VERB')))
    return L + R

K = 1024
XS = [[96*K, 104*K, 32*K, 40*K], [8*K, 24*K, 88*K, 120*K], [0, 16*K, 80*K, 112*K]]
WSL = [128*K, 64*K, 48*K]
vXd, vWd, vXr, vWr = 208, 212, 216, 222
QACC = 48
XF, WFq = 0, 64
def qacc(ft, tt): return QACC + 4 * (4 * ft + tt)
def xf(c, kbl, tt): return XF + 32 * (c & 1) + 16 * kbl + 4 * tt
def wf(c, kbl, ft): return WFq + 64 * (c & 1) + 32 * kbl + 4 * ft
def q_dma(c):
    sl = c % 3
    it = []
    for ab, so in enumerate((sXa, sXb)):
        it.append([f's_add_u32 m0, s{sXs+sl}, {ab*4096} ; tag=C{c}', f's_add_u32 s{sT}, s{so}, {c*128}'])
        for q in range(4): it.append([f'buffer_load_dwordx4 v{vXd+q}, {sr(sX,4)}, s{sT} offen offset:{q*1024} lds ; tag=C{c}'])
    it.append([f's_add_u32 m0, s{sW4}, {WSL[sl]} ; tag=C{c}', f's_add_u32 s{sT}, s{sWo}, {c*64*8192}'])
    for q in range(4): it.append([f'buffer_load_dwordx4 v{vWd+q}, {sr(sWQ,4)}, s{sT} offen offset:{q*1024} lds ; tag=C{c}'])
    return it
def q_reads(c):
    sl = c % 3
    L = [f'ds_read_b128 {ar(xf(c,kbl,tt),4)}, v{vXr+2*sl+kbl} offset:{tt*2048}' for tt in range(4) for kbl in range(2)]
    W = []
    for ft in range(8):
        for kbl in range(2):
            for p in range(2):
                vb, off = wsl_addr(sl)
                W.append(f'ds_read_b64_tr_b16 {ar(wf(c,kbl,ft)+2*p,2)}, v{vWr+ft+8*vb} offset:{off + (32 * kbl + 4 * p) * 256}')
    return W[:4] + L + W[4:]
def wsl_addr(sl):
    a = WSL[sl]
    return (0, a - WB0) if a < WB1 else (1, a - WB1)
WB0, WB1 = 48 * K, 128 * K
def q_cvt(db):
    cv = []
    for tt in range(4):
        t0, t1 = qacc(2 * db, tt), qacc(2 * db + 1, tt); dst = Qr(tt, db)
        cv += [f'v_cvt_pk_bf16_f32 v{dst}, v{t0}, v{t0+1}', f'v_cvt_pk_bf16_f32 v{dst+1}, v{t0+2}, v{t0+3}', f'v_cvt_pk_bf16_f32 v{dst+2}, v{t1}, v{t1+1}', f'v_cvt_pk_bf16_f32 v{dst+3}, v{t1+2}, v{t1+3}']
    return cv
def q_setup():
    t = [240, 241, 242, 243, 244]
    L = []
    a = L.append
    a(f's_lshl_b32 s{sXa}, s{sI}, 17'); a(f's_lshl_b32 s{sT}, s{sW}, 15'); a(f's_sub_u32 s{sXb}, {15*128*1024}, s{sXa}')
    a(f's_add_u32 s{sXa}, s{sXa}, s{sT}'); a(f's_add_u32 s{sXb}, s{sXb}, s{sT}')
    a(f's_lshl_b32 s{sWo}, s{sH}, 8'); a(f's_lshl_b32 s{sT}, s{sW}, 17'); a(f's_add_u32 s{sWo}, s{sWo}, s{sT}')
    for sl in range(3):
        a(f's_mov_b32 s{sXs+sl}, {XS[sl][0]}')
        for w in range(1, 4):
            a(f's_cmp_eq_u32 s{sW}, {w}'); a(f's_cselect_b32 s{sXs+sl}, {XS[sl][w]}, s{sXs+sl}')
    a(f'v_lshrrev_b32 v{t[0]}, 3, v0'); a(f'v_lshlrev_b32 v{t[1]}, 10, v{t[0]}')
    a(f'v_lshrrev_b32 v{t[2]}, 4, v0'); a(f'v_and_b32 v{t[3]}, 7, v0'); a(f'v_xor_b32 v{t[2]}, v{t[2]}, v{t[3]}')
    for q in range(4):
        a(f'v_xor_b32 v{t[4]}, {4*(q&1)}, v{t[2]}'); a(f'v_lshl_add_u32 v{t[4]}, v{t[4]}, 4, v{t[1]}'); a(f'v_add_u32 v{vXd+q}, {q*7168}, v{t[4]}')
    a(f'v_lshrrev_b32 v{t[0]}, 4, v0'); a(f'v_lshlrev_b32 v{t[1]}, 13, v{t[0]}'); a(f'v_lshlrev_b32 v{t[0]}, 1, v{t[0]}')
    a(f'v_and_b32 v{t[2]}, 15, v0'); a(f'v_xor_b32 v{t[2]}, v{t[2]}, v{t[0]}')
    for q in range(4):
        a(f'v_xor_b32 v{t[4]}, {8*(q>>1)}, v{t[2]}'); a(f'v_lshl_add_u32 v{t[4]}, v{t[4]}, 4, v{t[1]}'); a(f'v_add_u32 v{vWd+q}, {q*(4*8192-1024)}, v{t[4]}')
    return L
def q_setup2():
    t = [240, 241, 242, 243, 244]
    L = []; a = L.append
    a(f'v_and_b32 v{t[0]}, 15, v0'); a(f'v_lshrrev_b32 v{t[1]}, 4, v0'); a(f'v_bfe_u32 v{t[2]}, v0, 1, 3'); a(f'v_lshlrev_b32 v{t[0]}, 7, v{t[0]}')
    for kbl in range(2):
        a(f'v_add_u32 v{t[4]}, {4*kbl}, v{t[1]}'); a(f'v_xor_b32 v{t[4]}, v{t[4]}, v{t[2]}'); a(f'v_lshl_add_u32 v{t[4]}, v{t[4]}, 4, v{t[0]}')
        for sl in range(3): a(f'v_add_u32 v{vXr+2*sl+kbl}, s{sXs+sl}, v{t[4]}')
    a(f'v_bfe_u32 v{t[0]}, v0, 2, 2'); a(f'v_lshl_add_u32 v{t[1]}, v{t[1]}, 3, v{t[0]}'); a(f'v_lshlrev_b32 v{t[1]}, 8, v{t[1]}')
    a(f'v_and_b32 v{t[2]}, 3, v0'); a(f'v_lshl_add_u32 v{t[1]}, v{t[2]}, 3, v{t[1]}'); a(f'v_bfe_u32 v{t[2]}, v0, 2, 3')
    for ft in range(8):
        a(f'v_xor_b32 v{t[3]}, {ft}, v{t[2]}'); a(f'v_lshl_add_u32 v{t[3]}, v{t[3]}, 5, v{t[1]}')
        a(f'v_add_u32 v{vWr+ft}, {WB0}, v{t[3]}'); a(f'v_add_u32 v{vWr+8+ft}, {WB1}, v{t[3]}')
    return L

def remap_i(dst, t0, t1):
    L = [f's_lshr_b32 s{dst}, s2, 5']
    if FUSE and os.environ.get('K2_REMAP', '1') == '1':
        L += [f's_bfe_u32 s{t0}, s2, 0x20001', f's_mov_b32 s{t1}, 0x76543210', f's_cmp_eq_u32 s{t0}, 1', f's_cselect_b32 s{t1}, 0x76503214, s{t1}',
              f's_cmp_eq_u32 s{t0}, 3', f's_cselect_b32 s{t1}, 0x01765423, s{t1}', f's_lshl_b32 s{dst}, s{dst}, 2', f's_lshr_b32 s{dst}, s{t1}, s{dst}', f's_and_b32 s{dst}, s{dst}, 7']
    return L
def q0_early(sw, srdx, srdw):
    a_, b_, c_, d_ = 90, 91, 92, 93
    t = [100, 101, 102, 103, 104]
    L = [f's_mov_b32 s{srdx+2}, 0x200000', f's_mov_b32 s{srdw+2}, 0x400000'] + remap_i(a_, b_, c_)
    L += [f's_lshl_b32 s{a_}, s{a_}, 17', f's_lshl_b32 s{b_}, s{sw}, 15', f's_sub_u32 s{c_}, {15*128*1024}, s{a_}', f's_add_u32 s{a_}, s{a_}, s{b_}', f's_add_u32 s{c_}, s{c_}, s{b_}',
          f's_mov_b32 s{d_}, {XS[0][0]}']
    for w in range(1, 4): L += [f's_cmp_eq_u32 s{sw}, {w}', f's_cselect_b32 s{d_}, {XS[0][w]}, s{d_}']
    L += [f'v_lshrrev_b32 v{t[0]}, 3, v0', f'v_lshlrev_b32 v{t[1]}, 10, v{t[0]}', f'v_lshrrev_b32 v{t[2]}, 4, v0', f'v_and_b32 v{t[3]}, 7, v0', f'v_xor_b32 v{t[2]}, v{t[2]}, v{t[3]}']
    for q in range(4): L += [f'v_xor_b32 v{t[4]}, {4*(q&1)}, v{t[2]}', f'v_lshl_add_u32 v{t[4]}, v{t[4]}, 4, v{t[1]}', f'v_add_u32 v{105+q}, {q*7168}, v{t[4]}']
    for ab, so in enumerate((a_, c_)):
        L += [f's_add_u32 m0, s{d_}, {ab*4096}', 's_nop 0'] + [f'buffer_load_dwordx4 v{105+q}, {sr(srdx,4)}, s{so} offen offset:{q*1024} lds' for q in range(4)]
    L += [f's_and_b32 s{a_}, s2, 31', f's_lshl_b32 s{a_}, s{a_}, 8', f's_lshl_b32 s{b_}, s{sw}, 17', f's_add_u32 s{a_}, s{a_}, s{b_}', f's_lshl_b32 s{b_}, s{sw}, 12', f's_add_u32 m0, s{b_}, {WSL[0]}',
          f'v_lshrrev_b32 v{t[0]}, 4, v0', f'v_lshlrev_b32 v{t[1]}, 13, v{t[0]}', f'v_lshlrev_b32 v{t[0]}, 1, v{t[0]}', f'v_and_b32 v{t[2]}, 15, v0', f'v_xor_b32 v{t[2]}, v{t[2]}, v{t[0]}']
    for q in range(4):
        L += [f'v_xor_b32 v{t[4]}, {8*(q>>1)}, v{t[2]}', f'v_lshl_add_u32 v{t[4]}, v{t[4]}, 4, v{t[1]}', f'v_add_u32 v{t[4]}, {q*(4*8192-1024)}, v{t[4]}',
              f'buffer_load_dwordx4 v{t[4]}, {sr(srdw,4)}, s{a_} offen offset:{q*1024} lds']
    return L

def a_loads(which):
    if which == 0:
        return [[f's_mov_b32 s{sSW}, 65536']] + dma_part('K', 'c', 'K0') + [[f's_mov_b32 s{sSW}, 98304']] + dma_part('K', 'c', 'K0') + \
               [[f's_mov_b32 s{sSW}, 0']] + dma_part('V', 'c', 'U0') + dma_part('K', 'c', 'U0')
    return [[f's_mov_b32 s{sSW}, 32768']] + dma_part('V', 'c', 'U1') + dma_part('K', 'c', 'U1') + [[f's_mov_b32 s{sSW}, 65536'], [f's_mov_b32 s{sSR}, 32768']]

def wo_dma_a():
    t = [240, 241, 242, 243]
    it = [[f'v_lshrrev_b32 v{t[0]}, 5, v0', f'v_bfe_u32 v{t[1]}, v0, 1, 4', f'v_xor_b32 v{t[1]}, v{t[1]}, v{t[0]}', f'v_and_b32 v{t[2]}, 1, v0', f'v_lshlrev_b32 v{t[2]}, 4, v{t[2]}',
           f'v_lshl_add_u32 v{t[2]}, v{t[0]}, 10, v{t[2]}'],
          [f's_lshr_b32 s{sT+4}, s2, 1', f's_lshl_b32 s{sT+4}, s{sT+4}, 15', f's_and_b32 s{sT+5}, s2, 1', f's_lshl_b32 s{sT+5}, s{sT+5}, 9'],
          [f's_add_u32 s{sT+4}, s{sT+4}, s{sT+5}', f's_lshl_b32 s{sT+5}, s{sW}, 13', f's_add_u32 s{sT+4}, s{sT+4}, s{sT+5}']]
    for q in range(4):
        it.append([f'v_xor_b32 v{t[3]}, {2*q}, v{t[1]}', f'v_lshl_add_u32 v{t[3]}, v{t[3]}, 5, v{t[2]}', f's_add_u32 m0, s{sW4}, {128*K} ; tag=WO', f's_add_u32 s{sT+5}, s{sT+4}, {q*1024}',
                   f'buffer_load_dwordx4 v{t[3]}, {sr(sWO,4)}, s{sT+5} offen offset:{q*1024} lds ; tag=WO'])
    return it
def wo_dma_b():
    t = [240, 241]
    return [f'v_lshrrev_b32 v{t[0]}, 2, v0', f'v_lshlrev_b32 v{t[0]}, 10, v{t[0]}', f'v_and_b32 v{t[1]}, 3, v0', f'v_lshl_add_u32 v{t[0]}, v{t[1]}, 4, v{t[0]}',
            f's_lshr_b32 s{sT+4}, s2, 4', f's_lshl_b32 s{sT+4}, s{sT+4}, 15', f's_and_b32 s{sT+5}, s2, 15', f's_lshl_b32 s{sT+5}, s{sT+5}, 6', f's_add_u32 s{sT+4}, s{sT+4}, s{sT+5}',
            f's_and_b32 s{sT+5}, s{sW}, 1', f's_lshl_b32 s{sT+6}, s{sT+5}, 14', f's_add_u32 s{sT+4}, s{sT+4}, s{sT+6}', f's_lshl_b32 s{sT+5}, s{sT+5}, 10',
            f's_add_u32 m0, s{sT+5}, {144*K} ; tag=WO', 's_nop 0', f'buffer_load_dwordx4 v{t[0]}, {sr(sWB,4)}, s{sT+4} offen lds ; tag=WO']
def wo_fin():
    R = TMPV; a0, a1, a2 = TMPV + 20, TMPV + 21, TMPV + 22; t0, t1 = sT + 4, sT + 5
    L = [f'v_lshrrev_b32 v{a0}, 2, v0', f'v_and_b32 v{a1}, 3, v0', f'v_lshlrev_b32 v{a1}, 3, v{a1}', f'v_lshl_add_u32 v{a2}, v{a0}, 6, v{a1}', f'v_lshl_add_u32 v{a1}, v{a0}, 9, v{a1}',
         f'v_add_u32 v{a1}, {128*K}, v{a1}', f'v_and_b32 v{a0}, 7, v{a0}', f's_lshl_b32 s{t0}, s{sW}, 2', f'v_xor_b32 v{a0}, s{t0}, v{a0}',
         f's_and_b32 s{t0}, s{sW}, 1', f's_lshl_b32 s{t0}, s{t0}, 5', f's_add_u32 s{t0}, s{t0}, {144*K}', f'v_add_u32 v{a2}, s{t0}, v{a2}']
    for x in range(4):
        L += [f'v_xor_b32 v{a0+4+x}, {x}, v{a0}', f'v_lshl_add_u32 v{a0+4+x}, v{a0+4+x}, 5, v{a1}']
        for p in range(2): L.append(f'ds_read_b64_tr_b16 {vr(R+4*x+2*p,2)}, v{a0+4+x} offset:{p*8192}')
    for p in range(2): L.append(f'ds_read_b64_tr_b16 {vr(R+16+2*p,2)}, v{a2} offset:{p*1024}')
    L += [f's_and_b32 s{t0}, s2, 1', f's_lshl_b32 s{t0}, s{t0}, 2', f's_add_u32 s{t0}, s{t0}, s{sW}', f's_mul_i32 s{t0}, s{t0}, {4*WOA_S}', f's_lshr_b32 s{t1}, s2, 1', f's_lshl_b32 s{t1}, s{t1}, 10',
          f's_add_u32 s{t0}, s{t0}, s{t1}', f's_add_u32 s{t0}, s{t0}, {WOA}']
    for x in range(4): L += [f'buffer_store_dwordx4 {vr(R+4*x,4)}, v{vL16}, {sr(sWS,4)}, s{t0} offen{SF}', f's_add_u32 s{t0}, s{t0}, {WOA_S}']
    L += [f's_and_b32 s{t0}, s2, 15', f's_lshl_b32 s{t0}, s{t0}, 1', f's_and_b32 s{t1}, s{sW}, 1', f's_add_u32 s{t0}, s{t0}, s{t1}', f's_mul_i32 s{t0}, s{t0}, {WOB_S}',
          f's_lshr_b32 s{t1}, s2, 4', f's_lshl_b32 s{t1}, s{t1}, 10', f's_add_u32 s{t0}, s{t0}, s{t1}', f's_add_u32 s{t0}, s{t0}, {WOB}',
          f'buffer_store_dwordx4 {vr(R+16,4)}, v{vL16}, {sr(sWS,4)}, s{t0} offen{SF}', 's_nop 0']
    return L

def qproj():
    QPF = int(os.environ.get('K2_QPF', 0))
    pf = [[f'v_lshlrev_b32 v245, 10, v0', f's_lshr_b32 s{sT+4}, s2, 3', f's_lshl_b32 s{sT+4}, s{sT+4}, 16'], [f's_lshl_b32 s{sT+5}, s{sW}, 7', f's_add_u32 s{sT+4}, s{sT+4}, s{sT+5}'],
          [f'buffer_load_dword v246, v245, {sr(sX,4)}, s{sT+4} offen offset:512 ; nodep'],
          [f'v_lshrrev_b32 v245, 1, v0', f'v_lshlrev_b32 v245, 13, v245', f'v_and_b32 v244, 1, v0', f'v_lshl_add_u32 v245, v244, 7, v245'],
          [f's_lshl_b32 s{sT+4}, s{sI}, 18', f's_lshl_b32 s{sT+5}, s{sH}, 8', f's_add_u32 s{sT+4}, s{sT+4}, s{sT+5}'], [f's_add_u32 s{sT+4}, s{sT+4}, {256*8192}'],
          [f'buffer_load_dword v246, v245, {sr(sWQ,4)}, s{sT+4} offen ; nodep']] if QPF else []
    zf = []
    if FUSE3:
        FW_, FC_, FB_ = FLG, FLG + 4096, FLG + 8192
        zf = [f's_lshl_b32 s{sT+4}, s{sI}, 7', f's_lshl_b32 s{sT+5}, s{sH}, 2', f's_add_u32 s{sT+5}, s{sT+5}, {FC_}', f's_add_u32 s{sFa}, s{sT+5}, s{sT+4}', f's_sub_u32 s{sT+5}, s{sT+5}, s{sT+4}', f's_add_u32 s{sT+5}, s{sT+5}, {15*128}',
              f's_lshl_b32 s{sT+4}, s2, 2', f's_add_u32 s{sFw}, s{sT+4}, {FW_}', f's_add_u32 s{sT+4}, s{sT+4}, {FB_}',
              f'v_mov_b32 v245, s{sFa}', f'v_writelane_b32 v245, s{sT+5}, 1', f'v_writelane_b32 v245, s{sFw}, 2', f'v_writelane_b32 v245, s{sT+4}, 3', 'v_mov_b32 v246, 0', f's_mov_b32 s{sSig}, 0',
              's_mov_b64 exec, 15', f'buffer_store_dword v246, v245, {sr(sWS,4)}, 0 offen sc1', 's_mov_b64 exec, -1']
    L = q_setup() + zf + (['s_barrier'] if FUSE and not Q0PF else []) + (q_setup2() + ['s_barrier'] + q_reads(0) + flat(q_dma(1)) if Q0PF else flat(q_dma(0)) + flat(q_dma(1)) + q_setup2())
    L += [f's_lshl_b32 s{sT+4}, s{sH}, 19', f's_add_u32 s{sK}, s{sT+4}, {KWS}', f's_add_u32 s{sV}, s{sT+4}, {VWS}', f's_mov_b32 s{sKc}, s{sK}', f's_add_u32 s{sK}, s{sK}, s{sW2}', f's_add_u32 s{sV}, s{sV}, s{sW2}',
          f's_add_u32 s{sK2}, s{sWS}, s{sK}', f's_addc_u32 s{sK2+1}, s{sWS+1}, 0', f's_add_u32 s{sV2}, s{sWS}, s{sV}', f's_addc_u32 s{sV2+1}, s{sWS+1}, 0']
    if not Q0PF: L += [';VMNEED C0', 's_barrier'] + q_reads(0)
    sig = []
    if FUSE:
        sig = [f's_cmp_lg_u32 s{sW}, 0', 's_cbranch_scc1 K2_NOSIG', 'v_mov_b32 v245, 1', 'v_mov_b32 v246, s94', 's_mov_b64 exec, 1',
              f'SKIP buffer_atomic_add v245, v246, {sr(sDB,4)}, 0 offen sc1', 's_mov_b64 exec, -1', 'K2_NOSIG:',
              f's_lshl_b32 s{sT+4}, s{sH}, 1', 'v_and_b32 v246, 1, v0', f'v_add_u32 v246, s{sT+4}, v246', 'v_mul_u32_u24 v246, 205, v246', 'v_lshrrev_b32 v246, 10, v246',
              'v_bfe_u32 v245, v0, 1, 1', 'v_mul_u32_u24 v245, 13, v245', 'v_add_lshl_u32 v246, v246, v245, 2', 'v_add_u32 v246, 128, v246']
    if not Q0PF: L += sig
    L += stamp()
    for c in range(8):
        mf = []; pre = {}
        def P(g, x): pre.setdefault(g, []).extend(x if isinstance(x, list) else [x])
        val = {}
        for ft in range(8):
            for tt in range(4):
                for kbl in range(2):
                    a = qacc(ft, tt)
                    cc = '0' if (c == 0 and kbl == 0) else vr(a, 4)
                    mf.append(f'{MF} {vr(a,4)}, {ar(wf(c,kbl,ft),4)}, {ar(xf(c,kbl,tt),4)}, {cc}')
        for g0 in range(0, 64, 16):
            f0 = g0 // 8
            P(g0 - 1 if g0 else (0, 'before'), f';NEED {ar(wf(c,0,f0),8)} {ar(wf(c,1,f0),8)}' + (f' {ar(xf(c,0,0),32)}' if g0 == 0 else ''))
        if c == 0:
            g = 0
            for it in q_dma(2):
                if g % 16 == 15: g += 1
                P(g, it); g += 1
            gb = 26
        else:
            gb = 0
        if 1 <= c <= 5: ex = ([[f'buffer_load_dword v247, v246, {sr(sDB,4)}, 0 offen sc1']] if FUSE and c == 5 else []) + q_dma(c + 2)
        elif c == 6:
            ex = a_loads(0)
            if FUSE:
                P((0, 'before'), ['v_cmp_gt_u32 vcc, 8, v247', 's_cbranch_vccnz K2_SLOWP', 'K2_POLLED:'])
                STUBS.extend(['K2_SLOWP:', f's_mov_b32 s{sT+4}, 0x80000', 'K2_SP1:', f'buffer_load_dword v247, v246, {sr(sDB,4)}, 0 offen sc1', 's_waitcnt vmcnt(0)',
                              'v_cmp_gt_u32 vcc, 8, v247', 's_cbranch_vccz K2_POLLED', 's_sleep 2', f's_sub_u32 s{sT+4}, s{sT+4}, 1', f's_cmp_lg_u32 s{sT+4}, 0', 's_cbranch_scc1 K2_SP1', 's_branch K2_POLLED'])
        elif c == 7: ex = a_loads(1) + wo_dma_a() + [wo_dma_b()]
        else: ex = []
        if c < 7:
            P(gb, [f';VMNEED C{c+1}', 's_barrier'] + (sig if Q0PF and c == 0 else []))
            rds = q_reads(c + 1)
            seq = []; nr, ne = len(rds), len(ex)
            ri = ei = 0
            while ri < nr or ei < ne:
                if ei < ne and (ri >= nr or ei * nr <= ri * ne): seq.append(ex[ei]); ei += 1
                else: seq.append(rds[ri]); ri += 1
            g0 = gb + 1
            for k, x in enumerate(seq): P(g0 + k * (63 - g0) // len(seq), x)
        else:
            P(0, 's_barrier')
            for db in range(3):
                cv = q_cvt(db)
                for k in range(8): val[16 * db + 20 + k + (k > 3) * 0] = cv[2*k:2*k+2]
            P(60, [';VMNEED U0', 's_barrier', f'v_add_u32 v{vRd}, 65536, v{vL16}', f'v_add_u32 v{vRd+1}, 98304, v{vL16}'])
            for k, it in enumerate(ex): P(1 + k * 58 // len(ex), it)
        L += weave(mf, pre, val)
    return L

def a_prologue():
    L = []
    fr = qk_frags('c')
    L += [rd(g - 2, off, 0) for g, fu, off in fr] + [rd(g, off, 1) for g, fu, off in fr]
    L += [f'v_mov_b32 v{TMPB+j}, 0' for j in range(4)]
    L += [f'v_mov_b32 v{vd}, v{vq}'] + [f'v_cmp_gt_i32 {sr(sMk+2*j,2)}, {j}, v{vd}' for j in range(4)]
    L += q_cvt(3)
    zm = [f'v_mfma_f32_32x32x16_bf16 {ar(16*k,16)}, {vr(TMPB,4)}, {vr(TMPB,4)}, 0' for k in range(8)]
    L += ['s_nop 0'] + qk_mfmas('c', 0, czero=True, fr=lambda kt, db: ar(slot(32 + 16 * kt + 4 * db), 4)) + zm
    L += [f's_cmp_eq_u32 s{sI}, 0', f's_cselect_b32 s{sMq}, 0, -4096'] + mask_call(0, 'c') + deltas(0, 'c', False)
    for q in range(4):
        for j in range(4): L.append(f'v_sub_f32 v{NM+4*q+j}, 0, v{vDl+q}')
    V = [f'v_mov_b32 v{vl+q}, 0' for q in range(4)] + sub_tiles(0, 'c') + exp_ops(0, 'c')
    mf2 = qk_mfmas('c', 1)
    L += [f'v_mov_b32 v{vRd}, v{vL16}', ';LGKM0'] + ([';VMNEED WO'] if FUSE3 else []) + ['s_barrier'] + (wo_fin() if FUSE3 else [])
    rds = [rd(g, off, 0) for g, fu, off in pv_frags('c') if g < D]
    n = len(mf2)
    for k, m in enumerate(mf2):
        L.append(m)
        if k >= n - 2 * len(rds) and (n - k) % 2 == 0: L.append(rds[len(rds) - (n - k) // 2])
        L += V[len(V)*k//n:len(V)*(k+1)//n]
    return L

def fin_rows(which):
    t0, t1 = sT + 4, sT + 5
    q0 = 0 if which == 'a' else 2
    L = [f's_lshl_b32 s{t0}, s{sH}, 12', f's_add_u32 s{t0}, s{t0}, {CTX}', f's_mul_i32 s{t1}, s{sW}, {2*CTX_S}', f's_add_u32 s{t0}, s{t0}, s{t1}', f's_mul_i32 s{t1}, s{sI}, {8*CTX_S}']
    L += [f's_add_u32 s{t0}, s{t0}, s{t1}'] if which == 'a' else [f's_sub_u32 s{t0}, s{t0}, s{t1}', f's_add_u32 s{t0}, s{t0}, {120*CTX_S}']
    for q in (q0, q0 + 1):
        L += xlane('v_add_f32', vl + q, vT) + [f'v_rcp_f32 v{vl+q}, v{vl+q}']
    for q in (q0, q0 + 1):
        if q & 1: L.append(f's_add_u32 s{t0}, s{t0}, {CTX_S}')
        for h in range(2):
            r = TMPV + 16 * h; p = TMPB + 8 * h
            for j in range(16): L.append(f'v_accvgpr_read_b32 v{r+j}, a{Or(q,4*h)+j}')
            for j in range(16): L.append(f'v_mul_f32 v{r+j}, v{r+j}, v{vl+q}')
            for j in range(8): L.append(f'v_cvt_pk_bf16_f32 v{p+j}, v{r+2*j}, v{r+2*j+1}')
            for x in range(2): L.append(f'buffer_store_dwordx4 {vr(p+4*x,4)}, v{vL16}, {sr(sWS,4)}, s{t0} offen offset:{(2*h+x)*1024}{SF}')
    return L

def hook(bit, saddr, uid):
    if not FUSE3: return []
    STUBS.extend([f'K2_H{uid}:', f's_bitset1_b32 s{sSig}, {bit}', f's_cmp_lg_u32 s{sW}, 0', f's_cbranch_scc1 K2_HR{uid}', f'v_mov_b32 v{vT}, 1', f'v_mov_b32 v{vT+1}, 0', 's_mov_b64 exec, 1',
                  f'buffer_store_dword v{vT}, v{vT+1}, {sr(sWS,4)}, s{saddr} offen sc1', 's_mov_b64 exec, -1', 's_nop 3', f's_branch K2_HR{uid}'])
    return [f's_bitcmp0_b32 s{sSig}, {bit}', f's_cbranch_scc1 K2_H{uid}', f'K2_HR{uid}:']

def gen_k2():
    if FUSE3: import tail as TAILM
    name = 'k2_kernel'
    L = []; a = L.append
    if not FUSE:
        a(f'.p2align 8\n.type {name},@function\n{name}:')
        a('s_cmp_ge_u32 s2, 256'); a('s_cbranch_scc1 K2_END')
        if os.environ.get('CPF', '1') == '1': L += code_prefetch('k2_kernel', 'k3_kernel', 'K2', 246, 247, 90, 8)
        a('s_load_dwordx2 s[4:5], s[0:1], 88'); a('s_load_dwordx2 s[6:7], s[0:1], 0'); a('s_load_dwordx2 s[56:57], s[0:1], 16'); a('s_load_dwordx2 s[68:69], s[0:1], 40'); a('s_load_dwordx2 s[76:77], s[0:1], 64')
        a('v_lshrrev_b32 v1, 6, v0'); a('v_and_b32 v0, 63, v0'); a(f'v_readfirstlane_b32 s{sW}, v1')
    else:
        for srd, p, n in ((sWO, 14, 0x400000), (sWB, 20, 0x80000), (sDB, 24, 256), (sWQ, 8, 0x400000), (sX, 4, 0x200000), (sWS, 26, 0x10000000)):
            a(f's_mov_b32 s{srd}, s{p}'); a(f's_mov_b32 s{srd+1}, s{p+1}'); a(f's_mov_b32 s{srd+2}, {hex(n)}'); a(f's_mov_b32 s{srd+3}, 0x20000')
        a(f's_mov_b64 s[96:97], s[22:23]')
        a(f's_mov_b32 s{sW}, s40')
        L += gstamp(6, sDB, 2, 3)
    a(f'v_lshlrev_b32 v{vL16}, 4, v0')
    a(f's_and_b32 s{sH}, s2, 31'); L += remap_i(sI, sT, sT + 1)
    a(f's_lshl_b32 s{sW2}, s{sW}, 11'); a(f's_lshl_b32 s{sW4}, s{sW}, 12'); a(f's_add_u32 s{sW2K}, s{sW2}, 16384'); a(f's_add_u32 s{sW4K}, s{sW4}, 16384')
    a(f'v_mov_b32 v{vBig}, {f32(NEGBIG)}')
    a(f'v_and_b32 v{vq}, 15, v0'); a(f'v_lshrrev_b32 v{vT}, 4, v0'); a(f'v_lshlrev_b32 v{vT}, 2, v{vT}'); a(f'v_sub_u32 v{vq}, v{vq}, v{vT}')
    a('s_waitcnt lgkmcnt(0)')
    for srd, p, n in () if FUSE else ((sWS, 4, 0x10000000), (sX, 6, 0x200000), (sWQ, 56, 0x400000), (sWO, 68, 0x400000), (sWB, 76, 0x80000)):
        a(f's_mov_b32 s{srd}, s{p}'); a(f's_mov_b32 s{srd+1}, s{p+1}'); a(f's_mov_b32 s{srd+2}, {hex(n)}'); a(f's_mov_b32 s{srd+3}, 0x20000')
    if DIAG: a('s_mov_b32 s72, 0'); a(f'v_mov_b32 v{vDG}, 0'); a(f'v_mov_b32 v{vDG+2}, 0'); L += stamp()
    raw0 = qproj() + stamp() + gstamp(7, sDB, 16, 17) + gstamp(8, sDB, 16, 17, neg=True) + a_prologue() + stamp()
    skip = [x for x in raw0 if x.startswith('SKIP ')]
    pre = auto_waits([], [x if not x.startswith('SKIP ') else '.L_skip0:' for x in raw0])
    L += [x if x != '.L_skip0:' else skip[0][5:] for x in pre]
    def two(uid, b0, b1): return body(0, *b0, uid + 'a') + body(1, *b1, uid + 'b')
    raw = {
     'CC': two('CC', ('c','c','c','c','c','c',None), ('c','c','c','c','c','c',None)),
     'X1': two('X1', ('c','c','c','c','c','c',None), ('c','c','c','c','c','c',0)),
     'X2': two('X2', ('c','c','c','c','c','s',1), ('c','c','c','c','c','s',2)),
     'X3': two('X3', ('c','c','s','c','s','s',3), ('c','s','s','s','s','s',None)) + ([] if FUSE3 else wo_fin()) + fin_rows('a'),
     'X3b': two('X3b', ('c','c','s','c','s',None,3), ('c','s','s','s','s',None,0)) + ([] if FUSE3 else wo_fin()) + fin_rows('a'),
     'SS': two('SS', ('s','s','s','s','s','s',None), ('s','s','s','s','s','s',None)),
     'X4': two('X4', ('s','s','s','s','s',None,None), ('s','s','s','s','s',None,0)),
     'TL': (TAILM.pre_polls() if FUSE3 else []) + two('TL', ('s','s',None,'s',None,None,2), ('s',None,None,None,None,None,None)),
    }
    preds = {'CC': ['pre', 'CC'], 'X1': ['CC'], 'X2': ['X1', 'pre'], 'X3': ['X2'], 'X3b': ['X2'], 'SS': ['X3', 'SS'], 'X4': ['SS'], 'TL': ['X4', 'X3b']}
    fin = {'pre': pre}
    for it in range(3):
        for k in raw:
            fin[k] = merge_min([auto_waits(fin[p], raw[k]) for p in preds[k] if p in fin])
    a(f's_cmp_eq_u32 s{sI}, 0'); a('s_cbranch_scc1 K2_X2')
    a(f's_lshl_b32 s{sCnt}, s{sI}, 1'); a(f's_sub_u32 s{sCnt}, s{sCnt}, 1')
    a('.p2align 6\nK2_CC:'); L += fin['CC'] + hook(0, sFw, 'a') + [f's_sub_u32 s{sCnt}, s{sCnt}, 1', f's_cmp_lg_u32 s{sCnt}, 0', 's_cbranch_scc1 K2_CC']
    L += stamp()
    L += fin['X1']
    a('K2_X2:'); L += adv64(sK2, f's{sW2}'); L += fin['X2'] + hook(0, sFw, 'b')
    L += adv64(sV2, f's{sW2}')
    a(f's_cmp_eq_u32 s{sI}, 7'); a('s_cbranch_scc1 K2_X3b')
    L += fin['X3']
    L += stamp()
    a(f's_lshl_b32 s{sCnt}, s{sI}, 1'); a(f's_sub_u32 s{sCnt}, 13, s{sCnt}')
    a('.p2align 6\nK2_SS:'); L += fin['SS'] + hook(1, sFa, 'c') + [f's_sub_u32 s{sCnt}, s{sCnt}, 1', f's_cmp_lg_u32 s{sCnt}, 0', 's_cbranch_scc1 K2_SS']
    L += stamp()
    L += fin['X4']
    a('K2_TL:'); L += fin['TL']
    L += stamp()
    epi = ['s_nop 7'] + fin_rows('b')
    L += epi
    if FUSE3:
        import tail, k3
        L += stamp() + gstamp(9, sDB, 16, 17) + gstamp(10, sDB, 16, 17, neg=True) + tail.gen_tail(fin['TL'] + epi) + k3.STUBS
    else:
        if DIAG:
            L += stamp(); a('s_waitcnt vmcnt(0)'); L += stamp()
            L += dstore(vDG, vDG + 1, vDG + 2, sW, sWS, 201)
        L += gstamp(9, sDB, 16, 17) + gstamp(10, sDB, 16, 17, neg=True)
        a('K2_END:'); a('s_endpgm')
    a('K2_X3b:'); L += fin['X3b']; a('s_branch K2_TL')
    L += STUBS
    for r in sorted(RARES): L += rare(*r)
    for m in sorted(MASKS): L += mask_routine(*m)
    f = fin
    check_trace(pre + ['s_nop 0'] * 2 + f['X2'] + f['X3'] + f['SS'] + f['SS'] + f['X4'] + f['TL'] + epi, 'k2 i=0')
    check_trace(pre + ['s_nop 0'] * 4 + f['CC'] + f['CC'] + f['X1'] + f['X2'] + f['X3b'] + f['TL'] + epi, 'k2 i=7')
    if FUSE: return L, '', None
    return L, kdesc(name, 512, 256), f'; @launch kernel={name} grid=(256,1,1) block=(256,1,1) lds=163840'
```

```python
from lib import *
from layout import *
import os, struct, math
def f32(x): return '0x%08x' % struct.unpack('<I', struct.pack('<f', x))[0]
DIAG = os.environ.get('DIAG')
MF = 'v_mfma_f32_16x16x32_bf16'
MF16 = 'v_mfma_f32_16x16x16_bf16'
CB = math.log2(math.e) * 0.25
NEGBIG = -1.0e30
FLGA = FLG + 4096
OSF = os.environ.get('K3_SF', ' sc1')
BLDS = int(os.environ.get('K3_BLDS', 1))
GPRIO = int(os.environ.get('K3_GPRIO', 0))
sWS, sOUT, sW, sT, sMk = 8, 12, 16, 20, 40
vL16 = 1
STUBS = []
def flat(L):
    o = []
    for x in L:
        if isinstance(x, list): o += flat(x)
        else: o.append(x)
    return o
uidc = [0]
def poll(voff, soff, nlanes, tmp):
    uidc[0] += 1; u = uidc[0]
    return [f's_mov_b32 s{sT+8}, 0x40000', f's_mov_b64 exec, {hex((1 << nlanes) - 1)}', f'K3_PL{u}:',
            f'buffer_load_dword v{tmp}, v{voff}, {sr(sWS,4)}, s{soff} offen sc1', 's_waitcnt vmcnt(0)',
            f'v_cmp_eq_u32 vcc, 0, v{tmp}', f's_cbranch_vccz K3_PD{u}', 's_sleep 1', f's_sub_u32 s{sT+8}, s{sT+8}, 1', f's_cmp_lg_u32 s{sT+8}, 0', f's_cbranch_scc1 K3_PL{u}',
            f'K3_PD{u}:', 's_mov_b64 exec, -1']

def role_b(unit=2, fused=False, extra=(), raw=False):
    vG = (101, 102, 103)
    stamp = lambda: dstamp(*vG) if DIAG and not fused else []
    LF = ' sc1' if fused else ''
    S, CUP, CLO, ONE, BO, BL, PKD = 8, 80, 84, 88, 92, 96, 4
    vmx = [2, 100]
    vBig = 'v100' if False else None
    BK, BV, BQ = 0, 72, 144
    sP, sB0, sC, sBig = 17, 18, 19, 30
    L = []; a = L.append
    a(f's_and_b32 s{sP}, s{unit}, 15'); a(f's_lshr_b32 s{sB0}, s{unit}, 4'); a(f's_lshl_b32 s{sB0}, s{sB0}, 2'); a(f's_add_u32 s{sB0}, s{sB0}, s{sW}')
    t0, t1, t2 = sT, sT + 1, sT + 2
    a(f's_lshr_b32 s{t0}, s{sP}, 1'); a(f's_lshl_b32 s{t0}, s{t0}, 18'); a(f's_and_b32 s{t1}, s{sP}, 1'); a(f's_lshl_b32 s{t1}, s{t1}, 11')
    a(f's_add_u32 s{t0}, s{t0}, s{t1}'); a(f's_add_u32 s{t0}, s{t0}, {BWS}')
    if BLDS and not fused:
        a(f's_lshl_b32 s{t1}, s{sB0}, 12'); a(f's_add_u32 s{t1}, s{t1}, s{t0}')
        for u in range(2): a(f'buffer_load_dwordx4 {ar(BQ+4*u,4)}, v{vL16}, {sr(sWS,4)}, s{t1} offen offset:{u*1024}')
        a(f's_lshl_b32 s{t2}, s{sW}, 1'); a(f's_add_u32 s{t2}, s{t2}, s{sB0}')
        a(f's_mul_i32 s{t1}, s{sW}, {3*4096}')
        for kind in range(2):
            for b in range(3):
                r = sT + 10 + b
                if kind == 0: L += [f's_sub_i32 s{r}, s{t2}, {8-b}', f's_max_i32 s{r}, s{r}, 0', f's_lshl_b32 s{r}, s{r}, 12', f's_add_u32 s{r}, s{r}, s{t0}']
                L += [f's_add_u32 s{r}, s{r}, {8*256*1024}', f's_add_u32 m0, s{t1}, {b*4096 + kind*2048} ; tag=BL', 's_nop 0']
                for e in range(2): a(f'buffer_load_dwordx4 v{vL16}, {sr(sWS,4)}, s{r} offen offset:{e*1024} lds ; tag=BL')
        a(f's_lshl_b32 s{t1}, s{sW}, 12'); a(f'v_add_u32 v2, s{t1}, v{vL16}')
        L += [';VMNEED BL', 's_barrier']
        for bb in range(9):
            for kt in range(2): a(f'ds_read_b128 {ar(BK+8*bb+4*kt,4)}, v2 offset:{bb*4096+kt*1024}')
        for bb in range(9):
            for e in range(2): a(f'ds_read_b128 {ar(BV+8*bb+4*e,4)}, v2 offset:{bb*4096+2048+e*1024}')
    else:
        a(f's_lshl_b32 s{t1}, s{sB0}, 12'); a(f's_add_u32 s{t1}, s{t1}, s{t0}')
        for u in range(2): a(f'buffer_load_dwordx4 {ar(BQ+4*u,4)}, v{vL16}, {sr(sWS,4)}, s{t1} offen offset:{u*1024}{LF}')
        blk = []
        for bb in range(9):
            r = sT + 10 + bb
            L += [f's_sub_i32 s{r}, s{sB0}, {8-bb}', f's_max_i32 s{r}, s{r}, 0', f's_lshl_b32 s{r}, s{r}, 12', f's_add_u32 s{r}, s{r}, s{t0}', f's_add_u32 s{r}, s{r}, {8*256*1024}']
            for kt in range(2): a(f'buffer_load_dwordx4 {ar(BK+8*bb+4*kt,4)}, v{vL16}, {sr(sWS,4)}, s{r} offen offset:{kt*1024}{LF}')
        for bb in range(9):
            r = sT + 10 + bb
            a(f's_add_u32 s{r}, s{r}, {8*256*1024}')
            for e in range(2): a(f'buffer_load_dwordx4 {ar(BV+8*bb+4*e,4)}, v{vL16}, {sr(sWS,4)}, s{r} offen offset:{e*1024}{LF}')
    a(';BLOADED')
    a('v_and_b32 v2, 15, v0'); a('v_lshrrev_b32 v3, 4, v0'); a('v_lshlrev_b32 v3, 2, v3'); a('v_sub_u32 v2, v2, v3')
    a(f'v_mov_b32 v3, {f32(NEGBIG)}'); a('v_mov_b32 v4, 0'); a(f's_mov_b32 s{sBig}, {f32(NEGBIG)}'); a(f's_mov_b32 s{sC}, {f32(CB)}')
    for j in range(4): a(f'v_cmp_gt_i32 {sr(sMk+2*j,2)}, {j}, v2')
    for j in range(4):
        a(f'v_cndmask_b32 v{CLO+j}, v4, v3, {sr(sMk+2*j,2)}'); a(f'v_cndmask_b32 v{CUP+j}, v3, v4, {sr(sMk+2*j,2)}'); a(f'v_mov_b32 v{ONE+j}, 0x3f803f80')
    L += stamp()
    units = [(0, 0), (0, 1), (1, 0), (1, 1)]
    def qk(n, rel):
        u, e = units[n]
        s = S + 4 * rel
        c = vr(CUP, 4) if rel == u else (vr(CLO, 4) if rel == u + 16 else '0')
        m = f'{MF16} {vr(s,4)}, {ar(BK+4*rel+2*e,2)}, {ar(BQ+4*u+2*e,2)}, {c}'
        bb = rel // 2
        if bb < 8:
            STUBS.extend([f'K3_BI{n}_{rel}:'] + [f'v_mov_b32 v{s+j}, s{sBig}' for j in range(4)] + [f's_branch K3_BR{n}_{rel}'])
            return [f's_cmp_lt_u32 s{sB0}, {8-bb}', f's_cbranch_scc1 K3_BI{n}_{rel}', m, f'K3_BR{n}_{rel}:']
        return [m]
    def mx(n, rel, first):
        s = S + 4 * rel; m = vmx[n % 2]
        if first: return [f'v_max3_f32 v{m}, v{s}, v{s+1}, v{s+2}', f'v_max_f32 v{m}, v{m}, v{s+3}']
        return [f'v_max3_f32 v{m}, v{m}, v{s}, v{s+1}', f'v_max3_f32 v{m}, v{m}, v{s+2}, v{s+3}']
    def mxfin(n):
        m = vmx[n % 2]
        return ['v_mov_b32 v3, v%d' % m, 's_nop 1', f'v_permlane32_swap_b32 v{m}, v3', f'v_max_f32 v{m}, v{m}, v3',
                'v_mov_b32 v3, v%d' % m, 's_nop 1', f'v_permlane16_swap_b32 v{m}, v3', f'v_max_f32 v{m}, v{m}, v3', f'v_mul_f32 v{m}, s{sC}, v{m}']
    tiles = lambda n: list(range(units[n][0], units[n][0] + 17))
    T = tiles(0)
    for k, rel in enumerate(T):
        L += qk(0, rel)
        if k >= 3: L += mx(0, T[k-3], k == 3)
    L += ['s_nop 0'] + mx(0, T[-3], False) + ['s_nop 0'] + mx(0, T[-2], False) + ['s_nop 3'] + mx(0, T[-1], False) + mxfin(0)
    L += stamp()
    for n, (u, e) in enumerate(units):
        m = vmx[n % 2]; T = tiles(n)
        nxt = tiles(n + 1) if n < 3 else []
        F = lambda bb: [f'v_fma_f32 v{S+4*r+j}, v{S+4*r+j}, s{sC}, -v{m}' for r in (2*bb, 2*bb+1) if r in T for j in range(4)]
        E = lambda bb: [f'v_exp_f32 v{S+4*r+j}, v{S+4*r+j}' for r in (2*bb, 2*bb+1) if r in T for j in range(4)]
        def C(bb):
            b = S + 8 * bb; X = []
            for h in range(2):
                if 2 * bb + h in T: X += [f'v_cvt_pk_bf16_f32 v{b+2*h}, v{b+4*h}, v{b+4*h+1}', f'v_cvt_pk_bf16_f32 v{b+2*h+1}, v{b+4*h+2}, v{b+4*h+3}']
                else: X += [f'v_mov_b32 v{b+2*h}, 0', f'v_mov_b32 v{b+2*h+1}, 0']
            return X
        def PV(bb):
            b = S + 8 * bb
            return [f'{MF} {vr(BO,4)}, {ar(BV+8*bb+4*e,4)}, {vr(b,4)}, ' + ('0' if bb == 0 else vr(BO, 4)),
                    f'{MF} {vr(BL,4)}, {vr(ONE,4)}, {vr(b,4)}, ' + ('0' if bb == 0 else vr(BL, 4))]
        firstmx = [True]
        def nqk(bb): return flat([qk(n + 1, r) for r in (2*bb, 2*bb+1) if r in nxt])
        def nmx(bb):
            X = []
            for r in (2*bb, 2*bb+1):
                if r in nxt:
                    X += mx(n + 1, r, firstmx[0]); firstmx[0] = False
            return X
        L += F(0) + E(0)
        for bb in range(9):
            if bb < 8:
                e_ = E(bb + 1); pv = PV(bb)
                L += F(bb + 1) + C(bb) + e_[:2] + [pv[0]] + e_[2:4] + [pv[1]] + e_[4:6] + nqk(bb) + e_[6:]
                if bb >= 1: L += nmx(bb - 1)
            else:
                L += ['s_nop 0'] + C(bb) + ['s_nop 1'] + PV(bb) + nqk(bb) + nmx(7)
        if nxt: L += ['s_nop 3'] + nmx(8) + mxfin(n + 1)
        else: L += ['s_nop 7']
        L += [f'v_rcp_f32 v3, v{BL}', 's_nop 0'] + [f'v_mul_f32 v{BO+j}, v{BO+j}, v3' for j in range(4)]
        L += [f'v_cvt_pk_bf16_f32 v{PKD+2*e}, v{BO}, v{BO+1}', f'v_cvt_pk_bf16_f32 v{PKD+2*e+1}, v{BO+2}, v{BO+3}']
        if e == 1:
            L += [f's_lshl_b32 s{t0}, s{sB0}, 1', f's_add_u32 s{t0}, s{t0}, {u}', f's_mul_i32 s{t0}, s{t0}, {OB_S}', f's_lshl_b32 s{t1}, s{sP}, 10', f's_add_u32 s{t0}, s{t0}, s{t1}', f's_add_u32 s{t0}, s{t0}, {OB}',
                  f'buffer_store_dwordx4 {vr(PKD,4)}, v{vL16}, {sr(sWS,4)}, s{t0} offen sc1', 's_nop 0']
    if raw: return L
    if extra:
        idx = [k for k, x in enumerate(L) if x.startswith(('v_exp', 'v_fma', 'v_mov_b32 v8'))]
        idx = idx[:int(len(idx) * 0.8)]
        n0 = 20
        pos = {}
        for k, g in enumerate(extra):
            p = idx[0] if k < n0 else idx[(k - n0 + 1) * (len(idx) - 1) // (len(extra) - n0)]
            pos.setdefault(p, []).extend(g)
        L2 = []
        for k, x in enumerate(L):
            L2.append(x); L2 += pos.get(k, [])
        L = L2
    L = auto_waits([], L)
    check_trace(L, 'k3 B')
    if fused: return L
    L += stamp()
    L += ['s_waitcnt vmcnt(0)', 's_barrier', f's_cmp_lg_u32 s{sW}, 0', 's_cbranch_scc1 K3_BEND',
          f's_lshl_b32 s{t0}, s2, 2', f's_add_u32 s{t0}, s{t0}, {FLG}', 'v_mov_b32 v2, 1', 'v_mov_b32 v3, 0', 's_mov_b64 exec, 1',
          f'buffer_store_dword v2, v3, {sr(sWS,4)}, s{t0} offen sc1', 's_mov_b64 exec, -1', 'K3_BEND:']
    if DIAG: L += stamp() + dstore(*vG, sW, sWS, 202)
    L += ['s_endpgm']
    return L

NF = 4
def role_g():
    vG = (101, 102, 103)
    stamp = lambda: dstamp(*vG) if DIAG else []
    TMP = 76
    sQ, sM = 17, 18
    sC0, sM0, sC1, sM1 = 44, 48, 52, 56
    def acc(part, mt, qt): return 64 * part + 4 * (4 * mt + qt)
    def slot_of(kb): return kb % 5 if kb < 33 else kb - 33
    def fr(kb, k):
        sl = slot_of(kb)
        if sl < 2: return vr(12 + 32 * sl + 4 * k, 4)
        if sl == 2: return ar(128 + 4 * k, 4) if k < 6 else vr(92 + 4 * (k - 6), 4)
        return ar(64 + 32 * (sl - 3) + 4 * k, 4)
    L = []; a = L.append
    t0, t1, t2 = sT, sT + 1, sT + 2
    LM = 2; LQ = 3
    a(f's_sub_u32 s{t2}, s2, 256'); a(f's_and_b32 s{t0}, s{t2}, 7'); a(f's_lshr_b32 s{t2}, s{t2}, 3')
    a(f's_lshr_b32 s{sQ}, s{t0}, 1'); a(f's_lshl_b32 s{sQ}, s{sQ}, 3'); a(f's_and_b32 s{t1}, s{t2}, 7'); a(f's_add_u32 s{sQ}, s{sQ}, s{t1}')
    a(f's_and_b32 s{sM}, s{t0}, 1'); a(f's_lshl_b32 s{sM}, s{sM}, 2'); a(f's_lshr_b32 s{t1}, s{t2}, 3'); a(f's_add_u32 s{sM}, s{sM}, s{t1}')
    for base, idx, st, org, wsh in ((sC0, sQ, CTX_S, CTX, 15), (sM0, sM, WOA_S, WOA, 15), (sC1, sQ, OB_S, OB, 12), (sM1, sM, WOB_S, WOB, 12)):
        a(f's_mul_i32 s{base}, s{idx}, {4*st}'); a(f's_lshl_b32 s{t0}, s{sW}, {wsh}'); a(f's_add_u32 s{base}, s{base}, s{t0}'); a(f's_add_u32 s{base}, s{base}, {org}')
        for j in range(1, 4): a(f's_add_u32 s{base+j}, s{base+j-1}, {st}')
    NK = 36
    def loads(kb):
        X = []
        c, m, kk, fl = (sC0, sM0, kb, '') if kb < 32 else (sC1, sM1, kb - 32, ' sc1')
        for j in range(4):
            X.append([f'buffer_load_dwordx4 {fr(kb,4+j)}, v{vL16}, {sr(sWS,4)}, s{m+j} offen offset:{(kk%4)*1024}'])
            X.append([f'buffer_load_dwordx4 {fr(kb,j)}, v{vL16}, {sr(sWS,4)}, s{c+j} offen offset:{(kk%4)*1024}{fl}'])
        if kk % 4 == 3 and kb < 31:
            X[-2] += [f's_add_u32 s{m+j}, s{m+j}, 4096' for j in range(4)]
            X[-1] += [f's_add_u32 s{c+j}, s{c+j}, 4096' for j in range(4)]
        return X
    after = {}
    for kb in range(NK):
        prev = [k for k in range(kb) if slot_of(k) == slot_of(kb)]
        after.setdefault(prev[-1] if prev else -1, []).append(kb)
    for kb in after[-1]: L += flat(loads(kb))
    L += ['v_and_b32 v2, 15, v0', 'v_lshlrev_b32 v2, 2, v2', f's_lshr_b32 s{t2}, s{sQ}, 1', f's_lshl_b32 s{t2}, s{t2}, 6', f's_add_u32 s{t2}, s{t2}, {FLG}']
    L += stamp()
    for kb in range(NK):
        part = 0 if kb < 32 else 1
        mf = []
        for mt in range(4):
            for qt in range(4):
                d = acc(part, mt, qt)
                mf.append(f'{MF} {ar(d,4)}, {fr(kb,4+mt)}, {fr(kb,qt)}, ' + ('0' if kb in (0, 32) else ar(d, 4)))
        L += mf
        if kb == 23: L.append(f'buffer_load_dword v3, v2, {sr(sWS,4)}, s{t2} offen sc1')
        for k2 in after.get(kb, []):
            if k2 == 32:
                L += ['v_cmp_eq_u32 vcc, 0, v3', 's_cbranch_vccnz K3_SLOWPOLL', 'K3_POLLED:']
                STUBS.extend(['K3_SLOWPOLL:'] + poll(2, t2, 16, 3) + ['s_branch K3_POLLED'])
            L += flat(loads(k2))
    L.append('s_nop 7')
    p1 = auto_waits([], L)
    G = [f's_lshl_b32 s{t0}, s{sW}, 14', f'v_add_u32 v{TMP}, s{t0}, v{vL16}', f's_lshl_b32 s{t0}, s{sW}, 10', f'v_add_u32 v{TMP+1}, s{t0}, v{vL16}']
    vo = 2
    G += [f'v_and_b32 v{vo}, 15, v0', f'v_lshlrev_b32 v{vo}, 11, v{vo}', f'v_bfe_u32 v3, v0, 4, 1', f'v_lshl_add_u32 v{vo}, v3, 5, v{vo}', f'v_lshrrev_b32 v3, 5, v0', f'v_lshl_add_u32 v{vo}, v3, 4, v{vo}',
          f's_lshl_b32 s{t0}, s{sQ}, 2', f's_add_u32 s{t0}, s{t0}, s{sW}', f's_lshl_b32 s{t0}, s{t0}, 15', f's_lshl_b32 s{t1}, s{sM}, 7', f's_add_u32 s{t0}, s{t0}, s{t1}']
    for part in range(2):
        G += [f'ds_write_b128 v{TMP}, {ar(64*part+4*k,4)} offset:{k*1024}' for k in range(16)]
        G += ['s_waitcnt lgkmcnt(0)', 's_barrier']
        for w in range(4):
            for mt in range(4): G.append(f'ds_read_b128 {vr(12+16*w+4*mt,4)}, v{TMP+1} offset:{w*16384+mt*4096}')
        if part == 0: G += [';LGKM0', 's_barrier']
        for j in range(16): G.append(f'v_add_f32 v{12+j}, v{12+j}, v{28+j}')
        for j in range(16): G.append(f'v_add_f32 v{44+j}, v{44+j}, v{60+j}')
        for j in range(16): G.append(f'v_add_f32 v{12+j}, v{12+j}, v{44+j}')
        P0 = TMP + 4 + 8 * part
        for mt in range(4):
            G += [f'v_cvt_pk_bf16_f32 v{P0+4*(mt>>1)+2*(mt&1)}, v{12+4*mt}, v{12+4*mt+1}', f'v_cvt_pk_bf16_f32 v{P0+4*(mt>>1)+2*(mt&1)+1}, v{12+4*mt+2}, v{12+4*mt+3}']
        G.append('s_nop 1')
        for pr in range(2):
            b = P0 + 4 * pr
            G += [f'v_permlane16_swap_b32 v{b}, v{b+2}', f'v_permlane16_swap_b32 v{b+1}, v{b+3}']
        for pr in range(2):
            G.append(f'buffer_store_dwordx4 {vr(P0+4*pr,4)}, v{vo}, {sr(sOUT,4)}, s{t0} offen offset:{part*1024+pr*64}{OSF}')
    G = auto_waits([], G)
    check_trace(p1 + G, 'k3 G')
    R = p1 + stamp() + G
    if DIAG: R += stamp() + ['s_waitcnt vmcnt(0)'] + stamp() + dstore(*vG, sW, sWS, 202)
    return R + ['s_endpgm']

def gen_k3(name='k3_kernel'):
    L = []; a = L.append
    a(f'.p2align 8\n.type {name},@function\n{name}:')
    a('s_cmp_ge_u32 s2, 512'); a('s_cbranch_scc1 K3_END')
    if os.environ.get('CPF', '1') == '1': L += code_prefetch('k3_kernel', 'CODE_END', 'K3', 10, 11, 90, 4)
    a('s_load_dwordx2 s[4:5], s[0:1], 88'); a('s_load_dwordx2 s[6:7], s[0:1], 72')
    a('v_lshrrev_b32 v1, 6, v0'); a('v_and_b32 v0, 63, v0'); a(f'v_readfirstlane_b32 s{sW}, v1')
    a(f'v_lshlrev_b32 v{vL16}, 4, v0')
    a('s_waitcnt lgkmcnt(0)')
    a(f's_mov_b32 s{sWS}, s4'); a(f's_mov_b32 s{sWS+1}, s5'); a(f's_mov_b32 s{sWS+2}, 0x10000000'); a(f's_mov_b32 s{sWS+3}, 0x20000')
    a(f's_mov_b32 s{sOUT}, s6'); a(f's_mov_b32 s{sOUT+1}, s7'); a(f's_mov_b32 s{sOUT+2}, 0x400000'); a(f's_mov_b32 s{sOUT+3}, 0x20000')
    if DIAG: a('s_mov_b32 s72, 0'); a('v_mov_b32 v101, 0'); a('v_mov_b32 v103, 0'); L += dstamp(101, 102, 103)
    a('s_cmp_ge_u32 s2, 256'); a('s_cbranch_scc1 K3_G')
    L += role_b()
    a('K3_G:')
    if GPRIO: a('s_setprio 1')
    L += role_g()
    a('K3_END:'); a('s_endpgm')
    L += STUBS
    return L, kdesc(name, 256, 104), f'; @launch kernel={name} grid=(512,1,1) block=(256,1,1) lds=65536'
```

```python
import re

def regs_of(tok):
    tok = tok.strip()
    neg = tok.lstrip('-')
    m = re.fullmatch(r'abs\((.*)\)', neg)
    if m: neg = m.group(1)
    m = re.fullmatch(r'\|(.*)\|', neg)
    if m: neg = m.group(1)
    m = re.fullmatch(r'([vas])(\d+)', neg)
    if m: return {(m.group(1), int(m.group(2)))}
    m = re.fullmatch(r'([vas])\[(\d+):(\d+)\]', neg)
    if m: return {(m.group(1), i) for i in range(int(m.group(2)), int(m.group(3)) + 1)}
    if neg == 'vcc': return {('s', 'vcc')}
    if neg == 'exec': return {('s', 'exec')}
    if neg == 'm0': return {('s', 'm0')}
    return set()

TRANS = ('v_exp_f32', 'v_log_f32', 'v_rcp_f32', 'v_rsq_f32', 'v_sqrt_f32', 'v_sin_f32', 'v_cos_f32')
NODST_S = ('s_bitcmp', 's_cmp', 's_waitcnt', 's_barrier', 's_branch', 's_cbranch', 's_nop', 's_setprio', 's_bitcmp', 's_endpgm', 's_setpc', 's_sleep')

class Ins:
    def __init__(self, text):
        self.text = text
        t = text.split(';')[0].strip()
        parts = t.split(None, 1)
        self.op = parts[0]
        rest = parts[1] if len(parts) > 1 else ''
        ops = [o.strip() for o in re.split(r',(?![^\[]*\])', rest)] if rest else []
        mods = ''
        if ops:
            lp = ops[-1].split(None, 1)
            if len(lp) > 1 and not ops[-1].startswith('abs'):
                ops[-1] = lp[0]; mods = lp[1]
        self.ops, self.mods = ops, mods
        op = self.op
        self.kind = 'other'; self.w = set(); self.r = set()
        R = [regs_of(o) for o in ops]
        U = lambda l: set().union(*l) if l else set()
        if op.startswith('v_mfma'):
            self.kind = 'mfma'; self.w = R[0]; self.A, self.B, self.C = R[1], R[2], R[3]; self.r = R[1] | R[2] | R[3]
            self.passes = 8 if '32x32' in op else 4
        elif op.startswith('v_cmp'):
            self.kind = 'valu'; self.w = R[0]; self.r = U(R[1:])
        elif op.startswith('v_readfirstlane') or op.startswith('v_readlane'):
            self.kind = 'valu'; self.w = R[0]; self.r = U(R[1:])
        elif op.startswith('v_permlane'):
            self.kind = 'valu'; self.w = R[0] | R[1]; self.r = R[0] | R[1]
        elif op.startswith('v_add_co') or op.startswith('v_sub_co') or op.startswith('v_addc_co'):
            self.kind = 'valu'; self.w = R[0] | R[1]; self.r = U(R[2:])
        elif op.startswith('v_'):
            self.kind = 'valu'; self.w = R[0]; self.r = U(R[1:])
            if op.startswith('v_fmac') or op.startswith('v_dot2c'): self.r |= R[0]
        elif op.startswith('ds_read'):
            self.kind = 'ds'; self.w = R[0]; self.r = R[1]
        elif op.startswith('ds_write'):
            self.kind = 'ds'; self.r = U(R)
        elif op.startswith('ds_bpermute') or op.startswith('ds_swizzle'):
            self.kind = 'ds'; self.w = R[0]; self.r = U(R[1:])
        elif op.startswith('buffer_load'):
            self.kind = 'vm'
            if 'lds' in mods.split():
                self.r = U(R) | {('s', 'm0')}; self.dma = True
            else:
                self.w = R[0]; self.r = U(R[1:])
        elif op.startswith('global_load_lds'):
            self.kind = 'vm'; self.r = U(R) | {('s', 'm0')}; self.dma = True
        elif op.startswith('global_load'):
            self.kind = 'vm'; self.w = R[0]; self.r = U(R[1:])
        elif op.startswith('buffer_store') or op.startswith('buffer_atomic'):
            self.kind = 'vm'; self.r = U(R); self.sdata = R[0]
        elif op.startswith('buffer_'):
            self.kind = 'vm'
        elif op.startswith('s_load') or op.startswith('s_memtime') or op.startswith('s_memrealtime'):
            self.kind = 'smem'; self.w = R[0]; self.r = U(R[1:])
        elif op.startswith('s_'):
            self.kind = 'salu'
            if op.startswith(NODST_S): self.r = U(R)
            else:
                self.w = R[0]; self.r = U(R[1:])
                if 'saveexec' in op: self.w |= {('s', 'exec')}
            if op.startswith('s_cbranch_vcc'): self.r |= {('s', 'vcc')}
        self.states = 1
        if op == 's_nop': self.states = int(ops[0], 0) + 1

def check_trace(lines, name='', verbose=True):
    ins = []
    for l in lines:
        t = l.split(';')[0].strip()
        if not t or t.endswith(':') or t.startswith('.'): continue
        ins.append(Ins(t)); mt = re.search(r'tag=(\w+)', l); ins[-1].tag = mt.group(1) if mt else None
        if 'nodep' in l: ins[-1].w = set()
    probs = []
    m0tag = None
    pos = []
    c = 0
    for i in ins:
        pos.append(c); c += i.states
    WIN = 40
    dsq = []; vmq = []
    for n, i in enumerate(ins):
        if ('s', 'm0') in i.w: m0tag = i.tag
        if getattr(i, 'dma', False) and i.tag != m0tag: probs.append(f'{name}: [{n}] {i.text} tag {i.tag} but m0 tag {m0tag}')
        if i.op == 's_waitcnt':
            m = re.search(r'lgkmcnt\((\d+)\)', i.text)
            if m:
                k = int(m.group(1))
                while len(dsq) > k: dsq.pop(0)
            m = re.search(r'vmcnt\((\d+)\)', i.text)
            if m:
                k = int(m.group(1))
                while len(vmq) > k: vmq.pop(0)
        if i.op.startswith('s_addc'):
            assert ins[n-1].op.startswith('s_add_u32'), (name, n, i.text, ins[n-1].text)
        if i.op.startswith('s_cselect') or i.op.startswith('s_cbranch_scc'):
            for m_ in range(n - 1, -1, -1):
                p = ins[m_]
                if p.kind == 'salu' and not p.op.startswith(('s_mov', 's_cselect', 's_waitcnt', 's_barrier', 's_nop', 's_mul_i32', 's_branch', 's_cbranch', 's_setprio', 's_getpc', 's_setpc', 's_swappc')):
                    if not p.op.startswith(('s_cmp', 's_bitcmp')): probs.append(f'{name}: [{n}] {i.text}: SCC last written by {p.text}')
                    break
        touched = i.r | i.w
        for q, nm in ((dsq, 'lgkm'), (vmq, 'vm')):
            for d, txt in q:
                if d & touched:
                    probs.append(f'{name}: [{n}] {i.text} touches pending {nm} dest of: {txt}')
        if i.kind == 'ds':
            dsq.append((set(i.w), i.text))
            if len(dsq) > 15: pass
        if i.kind == 'smem': dsq.append((set(i.w), i.text)); dsq.append((set(), i.text))
        if i.kind == 'vm':
            vmq.append((set(i.w), i.text))
            if len(vmq) > 63: probs.append(f'{name}: [{n}] more than 63 vm outstanding')
        for m_ in range(n - 1, max(-1, n - WIN), -1):
            p = ins[m_]
            dist = pos[n] - pos[m_] - p.states
            if dist >= 20: break
            need = 0; why = ''
            if p.kind == 'mfma':
                big = p.passes == 8
                if i.kind == 'mfma':
                    if (i.A | i.B) & p.w: need, why = (12 if big else 8), 'mfmaD->A/B'
                    elif i.C & p.w and not (i.C == p.w and i.passes == p.passes): need, why = (10 if big else 6), 'mfmaD->C overlap'
                    elif i.w & p.w and not (i.C == p.w) and not (i.A == p.A and i.B == p.B): need, why = (12 if big else 8), 'mfmaD WAW (conservative)'
                elif i.kind in ('valu', 'ds', 'vm'):
                    if (i.r | i.w) & p.w: need, why = (12 if big else 8), 'mfmaD->valu/mem'
                    elif i.kind == 'valu' and i.w & p.C: need, why = (7 if big else 3), 'mfmaC WAR'
            elif p.kind == 'valu':
                vw = {x for x in p.w if x[0] in 'va'}
                sw = {x for x in p.w if x[0] == 's'}
                if i.kind == 'mfma' and i.r & vw: need, why = 2, 'valu->mfma'
                if i.kind == 'mfma' and ('s', 'exec') in sw: need, why = 4, 'exec->mfma'
                if i.kind == 'valu':
                    if p.op.startswith(TRANS) and not i.op.startswith(TRANS) and i.r & vw: need, why = max(need, 1), 'trans->valu'
                    if i.op.startswith('v_permlane') and i.r & vw: need, why = 2, 'valu->permlane'
                    if ('dpp' in i.op or 'row_' in i.mods) and i.r & vw: need, why = 2, 'valu->dpp'
                    if (i.op.startswith('v_readfirstlane') or i.op.startswith('v_readlane')) and i.r & vw: need, why = max(need, 1), 'valu->readlane'
                    if i.r & sw: need, why = max(need, 2), 'valu sgpr->valu'
                if i.kind == 'vm' and i.r & sw: need, why = 5, 'valu sgpr->vmem'
                if i.kind == 'salu' and i.r & sw and not i.op.startswith('s_cbranch'): need, why = max(need, 1), 'valu sgpr->salu (pad)'
            elif p.kind == 'salu':
                if ('s', 'm0') in p.w and i.kind == 'vm' and getattr(i, 'dma', False): need, why = 1, 'm0->dma'
            elif p.kind == 'vm' and hasattr(p, 'sdata') and len(p.sdata) >= 3:
                if i.w & p.sdata: need, why = (2 if i.kind in ('valu', 'mfma') else 1), 'store data WAR'
            if dist < need:
                probs.append(f'{name}: [{n}] {i.text}  <- [{m_}] {p.text}: {why} need {need} have {dist}')
    lastload = {}
    for n, i in enumerate(ins):
        for r in i.r: lastload.pop(r, None)
        if i.kind in ('ds', 'vm') and i.w:
            for r in i.w:
                if r in lastload: probs.append(f'{name}: [{n}] {i.text} overwrites unread load [{lastload[r]}]'); break
            for r in i.w: lastload[r] = n
    if verbose:
        for p in probs[:40]: print('HAZARD', p)
        print(f'check {name}: {len(ins)} instrs, {len(probs)} problems')
    return probs

def vr(b, n=1, f='v'): return f'{f}{b}' if n == 1 else f'{f}[{b}:{b+n-1}]'
def ar(b, n=1): return vr(b, n, 'a')
def sr(b, n=1): return vr(b, n, 's')

def weave(mfmas, pre, valu):
    out = []
    for g, m in enumerate(mfmas):
        for x in pre.get((g, 'before'), []): out.append(x)
        out.append(m)
        out += pre.get(g, [])
        out += valu.get(g, [])
    return out

def kdesc(name, nv, accum, ns=102):
    return f""".amdhsa_kernel {name}
  .amdhsa_next_free_vgpr {nv}
  .amdhsa_next_free_sgpr {ns}
  .amdhsa_accum_offset {accum}
  .amdhsa_group_segment_fixed_size 0
  .amdhsa_kernarg_size 96
  .amdhsa_user_sgpr_count 2
  .amdhsa_user_sgpr_kernarg_segment_ptr 1
  .amdhsa_system_sgpr_workgroup_id_x 1
  .amdhsa_float_denorm_mode_32 3
.end_amdhsa_kernel
"""

def auto_waits(ctx, lines):
    dsq, vmq = [], []
    out = []
    def step(l, emit):
        t = l.strip()
        wl = wv = None
        if t.startswith(';NEED'):
            touched = set()
            for tok in t.split()[1:]: touched |= regs_of(tok)
            i = None
        elif t.startswith(';VMNEED'):
            tag = t.split()[1]
            idx = [n for n, (d, g) in enumerate(vmq) if g == tag]
            if idx: wv = len(vmq) - 1 - idx[-1]
            touched = set(); i = None
        elif t.startswith(';BLOADED'):
            return
        elif t.startswith(';LGKM0'):
            if dsq: wl = 0
            touched = set(); i = None
        else:
            code = t.split(';')[0].strip()
            if not code or code.endswith(':') or code.startswith('.'):
                if emit: out.append(l)
                return
            i = Ins(code)
            if 'nodep' in t: i.w = set()
            touched = i.r | i.w
            if i.op == 's_waitcnt':
                m = re.search(r'lgkmcnt\((\d+)\)', code)
                if m:
                    while len(dsq) > int(m.group(1)): dsq.pop(0)
                m = re.search(r'vmcnt\((\d+)\)', code)
                if m:
                    while len(vmq) > int(m.group(1)): vmq.pop(0)
        idx = [n for n, (d, g) in enumerate(dsq) if d & touched]
        if idx: wl = len(dsq) - 1 - idx[-1]
        idx = [n for n, (d, g) in enumerate(vmq) if d & touched]
        if idx:
            k = len(vmq) - 1 - idx[-1]
            wv = k if wv is None else min(wv, k)
        if wl is not None or wv is not None:
            s = 's_waitcnt'
            if wv is not None:
                wv = min(wv, 63); s += f' vmcnt({wv})'
                while len(vmq) > wv: vmq.pop(0)
            if wl is not None:
                wl = min(wl, 15); s += f' lgkmcnt({wl})'
                while len(dsq) > wl: dsq.pop(0)
            if emit: out.append(s)
        if i is not None:
            if emit: out.append(l)
            m = re.search(r'tag=(\w+)', t)
            tag = m.group(1) if m else None
            if i.kind == 'ds': dsq.append((set(i.w), tag))
            if i.kind == 'vm': vmq.append((set(i.w), tag))
    for l in ctx: step(l, False)
    for l in lines: step(l, True)
    return out

def dstamp(va, vt, vb):
    return ['s_memtime s[70:71]', 's_memrealtime s[74:75]', 's_waitcnt lgkmcnt(0)', 'v_cmp_eq_u32 vcc, s72, v0', f'v_mov_b32 v{vt}, s70', 's_add_u32 s72, s72, 1',
            f'v_cndmask_b32 v{va}, v{va}, v{vt}, vcc', f'v_mov_b32 v{vt}, s74', f'v_cndmask_b32 v{vb}, v{vb}, v{vt}, vcc']
def dstore(va, vt, vb, sw, sws, mb):
    return ['s_lshl_b32 s70, s2, 2', f's_add_u32 s70, s70, s{sw}', 's_lshl_b32 s70, s70, 9', f's_add_u32 s70, s70, {mb<<20}', f'v_lshlrev_b32 v{vt}, 2, v0',
            f'buffer_store_dword v{va}, v{vt}, s[{sws}:{sws+3}], s70 offen', f'buffer_store_dword v{vb}, v{vt}, s[{sws}:{sws+3}], s70 offen offset:256']

def merge_min(variants):
    base = variants[0]
    for c in variants[1:]:
        if c == base: continue
        mm = []; i = j = 0
        while i < len(base) or j < len(c):
            x = base[i] if i < len(base) else None; y = c[j] if j < len(c) else None
            xw = x is not None and x.startswith('s_waitcnt'); yw = y is not None and y.startswith('s_waitcnt')
            if xw and yw:
                gx = dict(re.findall(r'(\w+cnt)\((\d+)\)', x)); gy = dict(re.findall(r'(\w+cnt)\((\d+)\)', y))
                keys = [k for k in ('vmcnt', 'lgkmcnt') if k in gx or k in gy]
                mm.append('s_waitcnt ' + ' '.join(f'{k}({min(int(gx.get(k, 99)), int(gy.get(k, 99)))})' for k in keys)); i += 1; j += 1
            elif xw: mm.append(x); i += 1
            elif yw: mm.append(y); j += 1
            else:
                assert x == y, (x, y); mm.append(x); i += 1; j += 1
        base = mm
    return base

def code_prefetch(start, end, uid, vtmp, vdst, stmp, nsl):
    return [f's_getpc_b64 s[{stmp}:{stmp+1}]', f'{uid}_PC:', f's_sub_u32 s{stmp}, s{stmp}, {uid}_PC-{start}', f's_subb_u32 s{stmp+1}, s{stmp+1}, 0',
            f's_lshr_b32 s{stmp+2}, s2, 3', f's_and_b32 s{stmp+2}, s{stmp+2}, {nsl-1}', f's_lshl_b32 s{stmp+2}, s{stmp+2}, 13',
            f'v_and_b32 v{vtmp}, 63, v0', f'v_lshlrev_b32 v{vtmp}, 7, v{vtmp}', f'v_add_u32 v{vtmp}, s{stmp+2}, v{vtmp}', f'v_min_u32 v{vtmp}, {end}-{start}-4, v{vtmp}',
            f'global_load_dword v{vdst}, v{vtmp}, s[{stmp}:{stmp+1}]']

import os as _os
_gs = [0]
GMAP = {0: 0, 2: 1, 4: 2, 6: 3, 7: 4, 9: 5, 11: 6, 13: 7}
def gstamp(slot, srd, va, vb, neg=False):
    if not _os.environ.get('GDIAG') or slot not in GMAP: return []
    _gs[0] += 1
    return ['s_cmp_lt_i32 s100, 0', f's_cbranch_scc1 GS{_gs[0]}', 's_memrealtime s[74:75]', 's_waitcnt lgkmcnt(0)',
            f'v_mov_b32 v{va}, s74', f'v_mov_b32 v{vb}, {GMAP[slot]*4}', 's_mov_b64 exec, 1', f'buffer_store_dword v{va}, v{vb}, s[{srd}:{srd+3}], s100 offen sc1', 's_mov_b64 exec, -1', 's_nop 1', f'GS{_gs[0]}:']
```

```python
from lib import *
from layout import *
import os, struct, math
def f32(x): return '0x%08x' % struct.unpack('<I', struct.pack('<f', x))[0]
DIAG = os.environ.get('DIAG')
FUSE = int(os.environ.get('FUSE', 1))
Q0PF = int(os.environ.get('K1_Q0PF', 0)) and FUSE
FUSE3 = int(os.environ.get('FUSE3', 0))
sSig = 88
sDB = 80
KVF = os.environ.get('K2_KVF', ' sc1')
SF = os.environ.get('K2_SF', ' sc1')
THR = 2.0 ** float(os.environ.get('THR', 40.0))
NEGBIG = -1.0e30
D = 24
MF = 'v_mfma_f32_16x16x32_bf16'
vL16, vRd, vq, vBig, vd, vl, vt, vT = 1, 2, 4, 5, 6, 8, 12, 16
NM = 20
vDl = 36
vDG = 44
S0, P0, TMPV, Q0, TMPB = 48, 112, 144, 176, 240
O0, FR = 0, 128
sWS, sX, sWQ, sWO, sWB = 8, 12, 16, 60, 64
sW, sH, sI, sK, sV, sSR, sSW, sCnt, sKc, sMq, sRet, sT, sMk, sW2, sW4 = 20, 21, 22, 23, 24, 25, 26, 27, 28, 29, 30, 32, 40, 48, 49
sW2K, sW4K = 58, 59
sFa, sFw = 92, 93
sK2, sV2 = 84, 86
sXa, sXb, sWo, sXs = 50, 51, 52, 53

def stamp(): return dstamp(vDG, vDG + 1, vDG + 2) if DIAG else []
def Sr(par, idx): return S0 + 32 * par + 4 * idx
def Pr(par, u): return P0 + 16 * par + 4 * u
def Or(qt, dt): return O0 + 32 * qt + 4 * dt
def Qr(qt, db): return Q0 + 16 * qt + 4 * db
def slot(g): return FR + 4 * ((g // 2) % 16)
def tq(t, idx): return (idx & 3) if t == 'c' else 2 + (idx & 1)
def tkt(t, idx): return (idx >> 2) if t == 'c' else (idx >> 1)
def tP(t, idx):
    if t == 'c': return idx & 3, idx >> 2
    kt = idx >> 1
    return 2 * (kt >> 1) + (idx & 1), kt & 1

def pv_frags(t):
    if t == 'c': return [(4 * dt, 4 * dt, dt * 1024) for dt in range(8)]
    return [(4 * dt + 2 * kb, 4 * dt + kb, kb * 8192 + dt * 1024) for dt in range(8) for kb in range(2)]
def koff(kt, db): return (kt >> 1) * 8192 + (2 * db + (kt & 1)) * 1024
def qk_frags(t):
    if t == 'c': return [(34 + 16 * kt + 4 * db, 32 + 16 * kt + db, 16384 + koff(kt, db)) for kt in range(2) for db in range(4)]
    return [(32 + 8 * kt + 2 * db, 32 + 8 * kt + db, 16384 + koff(kt, db)) for kt in range(4) for db in range(4)]
def rd(g, off, par): return f'ds_read_b128 {ar(slot(g),4)}, v{vRd+par} offset:{off}'

def pv_mfmas(t, par):
    out = []
    for dt in range(8):
        for x in range(4):
            if t == 'c': qt, u, g = x, x, 4 * dt
            else:
                q, kb = x >> 1, x & 1
                qt, u, g = 2 + q, 2 * kb + q, 4 * dt + 2 * kb
            o = Or(qt, dt)
            out.append(f'{MF} {ar(o,4)}, {ar(slot(g),4)}, {vr(Pr(par,u),4)}, {ar(o,4)}')
    return out
def qk_mfmas(t, par, czero=False, fr=None):
    out = []
    nkt, nq = (2, 4) if t == 'c' else (4, 2)
    for kt in range(nkt):
        for x in range(nq):
            for db in range(4):
                g = 32 + (16 * kt + 4 * db + 2 if t == 'c' else 8 * kt + 2 * db)
                f = ar(slot(g), 4) if fr is None else fr(kt, db)
                idx = nq * kt + x; qt = tq(t, idx); s = Sr(par, idx)
                c = vr(s, 4) if db else ('0' if czero else vr(NM + 4 * qt, 4))
                out.append(f'{MF} {vr(s,4)}, {f}, {vr(Qr(qt,db),4)}, {c}')
    return out

sRet2 = 78
MASKS = set()
def mask_call(par, t):
    MASKS.add((par, t))
    return [f's_call_b64 {sr(sRet2,2)}, K2_MASK_{par}{t}']
def mask_routine(par, t):
    n = f'K2_MASK_{par}{t}'
    L = [f'{n}:', f's_ashr_i32 s{sT+4}, s{sMq}, 5', f's_sub_i32 s{sT+4}, s{sT+4}, s{sW}']
    for b in range(1 if t == 'c' else 2):
        T = (lambda kt, q: Sr(par, 4 * kt + q)) if t == 'c' else (lambda kt, q, b=b: Sr(par, 2 * (2 * b + kt) + q))
        L += [f's_cmp_lt_i32 s{sT+4}, {-b}', f's_cbranch_scc1 {n}_e{b}', f's_cmp_eq_i32 s{sT+4}, {-b}', f's_cbranch_scc1 {n}_d{b}']
        for kt, q in ((0, 0), (0, 1), (1, 1)): L += [f'v_mov_b32 v{T(kt,q)+j}, v{vBig}' for j in range(4)]
        L += [f's_branch {n}_f{b}', f'{n}_d{b}:']
        for kt, q in ((0, 0), (1, 1)): L += [f'v_cndmask_b32 v{T(kt,q)+j}, v{T(kt,q)+j}, v{vBig}, {sr(sMk+2*j,2)}' for j in range(4)]
        L += [f'{n}_f{b}:'] + [f'v_mov_b32 v{T(1,0)+j}, v{vBig}' for j in range(4)] + [f'{n}_e{b}:']
    return L + [f's_setpc_b64 {sr(sRet2,2)}']

def exp_ops(par, t):
    L = []; seen = set()
    def tail(idx):
        s = Sr(par, idx); qt = tq(t, idx); u, h = tP(t, idx); a = vt + qt
        if qt not in seen:
            seen.add(qt); x = [f'v_add_f32 v{a}, v{s}, v{s+1}']
        else: x = [f'v_add_f32 v{a}, v{a}, v{s}', f'v_add_f32 v{a}, v{a}, v{s+1}']
        p = Pr(par, u) + 2 * h
        return x + [f'v_cvt_pk_bf16_f32 v{p}, v{s}, v{s+1}', f'v_add_f32 v{a}, v{a}, v{s+2}', f'v_add_f32 v{a}, v{a}, v{s+3}', f'v_cvt_pk_bf16_f32 v{p+1}, v{s+2}, v{s+3}']
    prev = None
    for idx in range(8):
        s = Sr(par, idx)
        e = [f'v_exp_f32 v{s+j}, v{s+j}' for j in range(4)]
        tl = tail(prev) if prev is not None else []
        L += [e[0]] + tl[:2] + [e[1]] + tl[2:4] + [e[2]] + tl[4:] + [e[3]]
        prev = idx
    L += ['s_nop 0'] + tail(prev)
    return L
def lupd(t): return [f'v_add_f32 v{vl+q}, v{vl+q}, v{vt+q}' for q in ((0, 1, 2, 3) if t == 'c' else (2, 3))]
def chk(t):
    if t == 'c': L = [f'v_max3_f32 v{vT}, v{vt}, v{vt+1}, v{vt+2}', f'v_max_f32 v{vT}, v{vT}, v{vt+3}']
    else: L = [f'v_max_f32 v{vT}, v{vt+2}, v{vt+3}']
    return L + [f'v_cmp_nge_f32 vcc, {f32(THR)}, v{vT}']

def adv64(p, x): return [f's_add_u32 s{p}, s{p}, {x}', f's_addc_u32 s{p+1}, s{p+1}, 0']
def dma_part(kind, t, tag):
    so = sV2 if kind == 'V' else sK2
    w = (sW4 if t == 's' else sW2) if kind == 'V' else (sW4K if t == 's' else sW2K)
    n = 4 if t == 's' else 2
    items = [[f's_add_u32 m0, s{sSW}, s{w} ; tag={tag}']]
    for q in range(n):
        items.append([f'global_load_lds_dwordx4 v{vL16}, {sr(so,2)} offset:{q*1024}{KVF} ; tag={tag}'])
    items.append(adv64(so, n * 4096))
    return items
def flat(L):
    o = []
    for x in L:
        if isinstance(x, list): o += flat(x)
        else: o.append(x)
    return o

STUBS = []
def body(par, pv, sm, qk, nxt_pv, vload, kload, mask, uid):
    psm = par ^ 1
    mf = []
    if pv: mf += pv_mfmas(pv, par)
    if qk: mf += qk_mfmas(qk, par)
    ng = len(mf)
    pre = {}
    def P(g, x): pre.setdefault(g, []).extend(x if isinstance(x, list) else [x])
    frs = (pv_frags(pv) if pv else []) + (qk_frags(qk) if qk else [])
    for g, fu, off in frs:
        if g - D >= 0: P(g - D, rd(g, off, par))
    for g0 in range(0, ng, 8):
        need = [ar(slot(g), 4) for g, fu, off in frs if g0 <= fu < g0 + 8]
        if not need: continue
        P(g0 - 1 if g0 else (0, 'before'), ';NEED ' + ' '.join(need))
    if nxt_pv:
        gb = ng - D
        P(gb - 3, [f';VMNEED U{par^1}', 's_barrier'])
        for g, fu, off in pv_frags(nxt_pv):
            if g < D: P(ng + g - D, rd(g, off, par ^ 1))
    items = []
    if vload: items += dma_part('V', vload, f'U{par}')
    if kload: items += dma_part('K', kload, f'U{par}')
    if nxt_pv: items += [[f's_add_u32 s{sSR}, s{sSR}, 32768'], [f's_and_b32 s{sSR}, s{sSR}, 0x1ffff']]
    if vload or kload: items += [[f's_add_u32 s{sSW}, s{sSW}, 32768'], [f's_and_b32 s{sSW}, s{sSW}, 0x1ffff']]
    if sm:
        items += [[f's_add_u32 s{sKc}, s{sKc}, {8192 if pv == "c" else 16384}']]
        if mask is None: items += [[f's_mov_b32 s{sMq}, -4096']]
        else: P(3, [f's_mov_b32 s{sMq}, {32*mask}'] + mask_call(psm, sm))
    free = [g for g in range(1, ng) if g not in pre and not (g == ng - 1)]
    lim = (ng - D - 2) if nxt_pv else ng - 2
    gi = 0; lastd = -9
    for it in items:
        isd = it[0].startswith(('buffer', 'global'))
        while gi < len(free) and (isd and free[gi] - lastd < DSP): gi += 1
        g = free[gi]; gi += 1
        if isd:
            lastd = g
        P(g, it)
    Pq = []; Eq = []
    if nxt_pv: Pq.append(f'v_add_u32 v{vRd+(par^1)}, s{sSR}, v{vL16}')
    if pv: Pq += lupd(pv)
    if sm:
        for x in exp_ops(psm, sm):
            if x.startswith('v_exp'): Eq.append(x)
            elif x.startswith('v_'): Pq.append(x)
        NL = int(os.environ.get('K2_NL', 6))
        cv = [k for k, x in enumerate(Pq) if x.startswith('v_cvt')][-NL:]
        late = [Pq[k] for k in cv]
        Pq = [x for k, x in enumerate(Pq) if k not in cv] + chk(sm) + late
    cap = {}
    for g in range(ng):
        n = sum(2 if x.startswith(('buffer', 'ds_', 'global')) else 1 for x in pre.get(g, []))
        cap[g] = max(0, 2 - max(0, n - 1))
    last = ng - 1 if qk else ng - 2
    total = 2 * len(Eq) + len(Pq)
    def sched(extra):
        cp = dict(cap)
        for k in range(extra): cp[(k * (last + 1) // max(extra, 1)) % (last + 1)] += 1
        val = {}; pi = ei = 0
        eiss = {}
        ereg = [Ins(x).w for x in Eq]; allE = set().union(*ereg) if ereg else set()
        pend_mask = {}
        for k, x in enumerate(Pq):
            if x.startswith('v_cndmask'):
                for r in Ins(x).w: pend_mask[r] = k
        for g in range(last + 1):
            sl = cp[g]
            while sl > 0:
                if ei < len(Eq) and sl >= 2 and (mask is None or g >= 3):
                    val.setdefault(g, []).append(Eq[ei])
                    for r in ereg[ei]: eiss[r] = g
                    ei += 1; sl -= 2; continue
                if pi < len(Pq):
                    x = Pq[pi]; ins = Ins(x)
                    ok = x.startswith('v_cndmask') or all(eiss.get(r, 999) < g for r in ins.r & allE)
                    if ok:
                        val.setdefault(g, []).append(x); pi += 1; sl -= 1; continue
                break
        return val, (len(Eq) - ei) + (len(Pq) - pi)
    extra = 0
    while True:
        val, left = sched(extra)
        if left == 0: break
        extra += 1
    if os.environ.get('VERB'): print(uid, 'valu', total, 'avail', sum(cap[g] for g in range(last + 1)), 'extra', extra)
    if sm:
        pre.setdefault(ng - 1, []).extend([f's_cbranch_vccnz K2_S_{uid}', f'K2_R_{uid}:'])
        STUBS.extend([f'K2_S_{uid}:', f's_call_b64 {sr(sRet,2)}, K2_RARE_{psm}{sm}{qk or "n"}', f's_branch K2_R_{uid}'])
        RARES.add((psm, sm, qk or 'n'))
    return weave(mf, pre, val)
RARES = set()
DSP = int(os.environ.get('K2_DSP', 3))

def xlane(op, r, tmp):
    return [f'v_mov_b32 v{tmp}, v{r}', 's_nop 1', f'v_permlane32_swap_b32 v{r}, v{tmp}', f'{op} v{r}, v{r}, v{tmp}',
            f'v_mov_b32 v{tmp}, v{r}', 's_nop 1', f'v_permlane16_swap_b32 v{r}, v{tmp}', f'{op} v{r}, v{r}, v{tmp}']
def deltas(par, t, clamp):
    qs = (0, 1, 2, 3) if t == 'c' else (2, 3)
    ch = []
    for q in qs:
        regs = [Sr(par, i) + j for i in range(8) if tq(t, i) == q for j in range(4)]
        c = [f'v_max_f32 v{vDl+q}, v{regs[0]}, v{regs[1]}']
        for k in range(2, len(regs), 2): c.append(f'v_max3_f32 v{vDl+q}, v{vDl+q}, v{regs[k]}, v{regs[k+1]}')
        tmp = vDl + 4 + q
        for sw in ('32', '16'):
            c += [f'v_mov_b32 v{tmp}, v{vDl+q}', f'v_permlane{sw}_swap_b32 v{vDl+q}, v{tmp}', f'v_max_f32 v{vDl+q}, v{vDl+q}, v{tmp}']
        c.append(f'v_ceil_f32 v{vDl+q}, v{vDl+q}')
        if clamp: c.append(f'v_max_f32 v{vDl+q}, 0, v{vDl+q}')
        ch.append(c)
    L = []
    for k in range(len(ch[0])):
        if len(qs) == 2 and 'permlane' in ch[0][k]: L.append('s_nop 0')
        for c in ch: L.append(c[k])
    return L
def sub_tiles(par, t): return [f'v_sub_f32 v{Sr(par,i)+j}, v{Sr(par,i)+j}, v{vDl+tq(t,i)}' for i in range(8) for j in range(4)]

def rare(par, t, tn):
    L = [f'K2_RARE_{par}{t}{tn}:', 's_nop 7', 's_nop 7']
    nkt = 2 if t == 'c' else 4
    R = []
    mf = qk_mfmas(t, par, fr=lambda kt, db: vr(TMPV + 16 * (kt & 1) + 4 * db, 4))
    per = len(mf) // nkt
    for k0 in range(0, nkt, 2):
        R.append(f's_add_u32 s{sT+4}, s{sKc}, {k0*4096}'); R.append(f's_add_u32 s{sT+5}, s{sT+4}, 4096')
        for kt in range(2):
            for db in range(4):
                o = (2 * db + kt) * 1024
                R.append(f'buffer_load_dwordx4 {vr(TMPV+16*kt+4*db,4)}, v{vL16}, {sr(sWS,4)}, s{sT+4+(o>>12)} offen offset:{o&4095}{KVF}')
        R.append('s_waitcnt vmcnt(0)')
        R += mf[per*k0:per*(k0+2)] + ['s_nop 7']
    R += mask_call(par, t) + deltas(par, t, True)
    if t == 's': R += [f'v_mov_b32 v{vDl}, 0', f'v_mov_b32 v{vDl+1}, 0']
    R += sub_tiles(par, t)
    if tn != 'n': R += sub_tiles(par ^ 1, tn)
    for q in range(4):
        for j in range(4): R.append(f'v_sub_f32 v{NM+4*q+j}, v{NM+4*q+j}, v{vDl+q}')
        R.append(f'v_exp_f32 v{vDl+4+q}, -v{vDl+q}')
    R += exp_ops(par, t)
    for q in range(4): R.append(f'v_mul_f32 v{vl+q}, v{vl+q}, v{vDl+4+q}')
    R += [f's_branch K2_RESC_{t}']
    check_trace(R, f'rare{par}{t}{tn}', bool(os.environ.get('VERB')))
    return L + R

def rescale_o():
    R = []
    for q in range(4):
        if q in (0, 2): R.append('K2_RESC_c:' if q == 0 else 'K2_RESC_s:')
        for j0 in range(0, 32, 8):
            for j in range(8): R.append(f'v_accvgpr_read_b32 v{TMPV+j}, a{Or(q,0)+j0+j}')
            for j in range(8): R.append(f'v_mul_f32 v{TMPV+j}, v{TMPV+j}, v{vDl+4+q}')
            for j in range(8): R.append(f'v_accvgpr_write_b32 a{Or(q,0)+j0+j}, v{TMPV+j}')
    return R + ['s_nop 1', f's_setpc_b64 {sr(sRet,2)}']

K = 1024
XS = [[96*K, 104*K, 32*K, 40*K], [8*K, 24*K, 88*K, 120*K], [0, 16*K, 80*K, 112*K]]
WSL = [128*K, 64*K, 48*K]
vXd, vWd, vXr, vWr = 208, 212, 216, 222
QACC = 48
XF, WFq = 0, 64
def qacc(ft, tt): return QACC + 4 * (4 * ft + tt)
def xf(c, kbl, tt): return XF + 32 * (c & 1) + 16 * kbl + 4 * tt
def wf(c, kbl, ft): return WFq + 64 * (c & 1) + 32 * kbl + 4 * ft
def q_dma(c):
    sl = c % 3
    it = []
    for ab, so in enumerate((sXa, sXb)):
        it.append([f's_add_u32 m0, s{sXs+sl}, {ab*4096} ; tag=C{c}', f's_add_u32 s{sT}, s{so}, {c*128}'])
        for q in range(4): it.append([f'buffer_load_dwordx4 v{vXd+q}, {sr(sX,4)}, s{sT} offen offset:{q*1024} lds ; tag=C{c}'])
    it.append([f's_add_u32 m0, s{sW4}, {WSL[sl]} ; tag=C{c}', f's_add_u32 s{sT}, s{sWo}, {c*64*8192}'])
    for q in range(4): it.append([f'buffer_load_dwordx4 v{vWd+q}, {sr(sWQ,4)}, s{sT} offen offset:{q*1024} lds ; tag=C{c}'])
    return it
def q_reads(c):
    sl = c % 3
    L = [f'ds_read_b128 {ar(xf(c,kbl,tt),4)}, v{vXr+2*sl+kbl} offset:{tt*2048}' for tt in range(4) for kbl in range(2)]
    W = []
    for ft in range(8):
        for kbl in range(2):
            for p in range(2):
                vb, off = wsl_addr(sl)
                W.append(f'ds_read_b64_tr_b16 {ar(wf(c,kbl,ft)+2*p,2)}, v{vWr+ft+8*vb} offset:{off + (32 * kbl + 4 * p) * 256}')
    return W[:4] + L + W[4:]
def wsl_addr(sl):
    a = WSL[sl]
    return (0, a - WB0) if a < WB1 else (1, a - WB1)
WB0, WB1 = 48 * K, 128 * K
def q_cvt(db):
    cv = []
    for tt in range(4):
        t0, t1 = qacc(2 * db, tt), qacc(2 * db + 1, tt); dst = Qr(tt, db)
        cv += [f'v_cvt_pk_bf16_f32 v{dst}, v{t0}, v{t0+1}', f'v_cvt_pk_bf16_f32 v{dst+1}, v{t0+2}, v{t0+3}', f'v_cvt_pk_bf16_f32 v{dst+2}, v{t1}, v{t1+1}', f'v_cvt_pk_bf16_f32 v{dst+3}, v{t1+2}, v{t1+3}']
    return cv
def q_setup():
    t = [240, 241, 242, 243, 244]
    L = []
    a = L.append
    a(f's_lshl_b32 s{sXa}, s{sI}, 17'); a(f's_lshl_b32 s{sT}, s{sW}, 15'); a(f's_sub_u32 s{sXb}, {15*128*1024}, s{sXa}')
    a(f's_add_u32 s{sXa}, s{sXa}, s{sT}'); a(f's_add_u32 s{sXb}, s{sXb}, s{sT}')
    a(f's_lshl_b32 s{sWo}, s{sH}, 8'); a(f's_lshl_b32 s{sT}, s{sW}, 17'); a(f's_add_u32 s{sWo}, s{sWo}, s{sT}')
    for sl in range(3):
        a(f's_mov_b32 s{sXs+sl}, {XS[sl][0]}')
        for w in range(1, 4):
            a(f's_cmp_eq_u32 s{sW}, {w}'); a(f's_cselect_b32 s{sXs+sl}, {XS[sl][w]}, s{sXs+sl}')
    a(f'v_lshrrev_b32 v{t[0]}, 3, v0'); a(f'v_lshlrev_b32 v{t[1]}, 10, v{t[0]}')
    a(f'v_lshrrev_b32 v{t[2]}, 4, v0'); a(f'v_and_b32 v{t[3]}, 7, v0'); a(f'v_xor_b32 v{t[2]}, v{t[2]}, v{t[3]}')
    for q in range(4):
        a(f'v_xor_b32 v{t[4]}, {4*(q&1)}, v{t[2]}'); a(f'v_lshl_add_u32 v{t[4]}, v{t[4]}, 4, v{t[1]}'); a(f'v_add_u32 v{vXd+q}, {q*7168}, v{t[4]}')
    a(f'v_lshrrev_b32 v{t[0]}, 4, v0'); a(f'v_lshlrev_b32 v{t[1]}, 13, v{t[0]}'); a(f'v_lshlrev_b32 v{t[0]}, 1, v{t[0]}')
    a(f'v_and_b32 v{t[2]}, 15, v0'); a(f'v_xor_b32 v{t[2]}, v{t[2]}, v{t[0]}')
    for q in range(4):
        a(f'v_xor_b32 v{t[4]}, {8*(q>>1)}, v{t[2]}'); a(f'v_lshl_add_u32 v{t[4]}, v{t[4]}, 4, v{t[1]}'); a(f'v_add_u32 v{vWd+q}, {q*(4*8192-1024)}, v{t[4]}')
    return L
def q_setup2():
    t = [240, 241, 242, 243, 244]
    L = []; a = L.append
    a(f'v_and_b32 v{t[0]}, 15, v0'); a(f'v_lshrrev_b32 v{t[1]}, 4, v0'); a(f'v_bfe_u32 v{t[2]}, v0, 1, 3'); a(f'v_lshlrev_b32 v{t[0]}, 7, v{t[0]}')
    for kbl in range(2):
        a(f'v_add_u32 v{t[4]}, {4*kbl}, v{t[1]}'); a(f'v_xor_b32 v{t[4]}, v{t[4]}, v{t[2]}'); a(f'v_lshl_add_u32 v{t[4]}, v{t[4]}, 4, v{t[0]}')
        for sl in range(3): a(f'v_add_u32 v{vXr+2*sl+kbl}, s{sXs+sl}, v{t[4]}')
    a(f'v_bfe_u32 v{t[0]}, v0, 2, 2'); a(f'v_lshl_add_u32 v{t[1]}, v{t[1]}, 3, v{t[0]}'); a(f'v_lshlrev_b32 v{t[1]}, 8, v{t[1]}')
    a(f'v_and_b32 v{t[2]}, 3, v0'); a(f'v_lshl_add_u32 v{t[1]}, v{t[2]}, 3, v{t[1]}'); a(f'v_bfe_u32 v{t[2]}, v0, 2, 3')
    for ft in range(8):
        a(f'v_xor_b32 v{t[3]}, {ft}, v{t[2]}'); a(f'v_lshl_add_u32 v{t[3]}, v{t[3]}, 5, v{t[1]}')
        a(f'v_add_u32 v{vWr+ft}, {WB0}, v{t[3]}'); a(f'v_add_u32 v{vWr+8+ft}, {WB1}, v{t[3]}')
    return L

def remap_i(dst, t0, t1):
    L = [f's_lshr_b32 s{dst}, s2, 5']
    if FUSE and os.environ.get('K2_REMAP', '0') == '1':
        L += [f's_bfe_u32 s{t0}, s2, 0x20001', f's_mov_b32 s{t1}, 0x76543210', f's_cmp_eq_u32 s{t0}, 1', f's_cselect_b32 s{t1}, 0x76503214, s{t1}',
              f's_cmp_eq_u32 s{t0}, 3', f's_cselect_b32 s{t1}, 0x01765423, s{t1}', f's_lshl_b32 s{dst}, s{dst}, 2', f's_lshr_b32 s{dst}, s{t1}, s{dst}', f's_and_b32 s{dst}, s{dst}, 7']
    return L
def q0_early(sw, srdx, srdw):
    a_, b_, c_, d_ = 90, 91, 92, 93
    t = [100, 101, 102, 103, 104]
    L = [f's_mov_b32 s{srdx+2}, 0x200000', f's_mov_b32 s{srdw+2}, 0x400000'] + remap_i(a_, b_, c_)
    L += [f's_lshl_b32 s{a_}, s{a_}, 17', f's_lshl_b32 s{b_}, s{sw}, 15', f's_sub_u32 s{c_}, {15*128*1024}, s{a_}', f's_add_u32 s{a_}, s{a_}, s{b_}', f's_add_u32 s{c_}, s{c_}, s{b_}',
          f's_mov_b32 s{d_}, {XS[0][0]}']
    for w in range(1, 4): L += [f's_cmp_eq_u32 s{sw}, {w}', f's_cselect_b32 s{d_}, {XS[0][w]}, s{d_}']
    L += [f'v_lshrrev_b32 v{t[0]}, 3, v0', f'v_lshlrev_b32 v{t[1]}, 10, v{t[0]}', f'v_lshrrev_b32 v{t[2]}, 4, v0', f'v_and_b32 v{t[3]}, 7, v0', f'v_xor_b32 v{t[2]}, v{t[2]}, v{t[3]}']
    for q in range(4): L += [f'v_xor_b32 v{t[4]}, {4*(q&1)}, v{t[2]}', f'v_lshl_add_u32 v{t[4]}, v{t[4]}, 4, v{t[1]}', f'v_add_u32 v{105+q}, {q*7168}, v{t[4]}']
    for ab, so in enumerate((a_, c_)):
        L += [f's_add_u32 m0, s{d_}, {ab*4096}', 's_nop 0'] + [f'buffer_load_dwordx4 v{105+q}, {sr(srdx,4)}, s{so} offen offset:{q*1024} lds' for q in range(4)]
    L += [f's_and_b32 s{a_}, s2, 31', f's_lshl_b32 s{a_}, s{a_}, 8', f's_lshl_b32 s{b_}, s{sw}, 17', f's_add_u32 s{a_}, s{a_}, s{b_}', f's_lshl_b32 s{b_}, s{sw}, 12', f's_add_u32 m0, s{b_}, {WSL[0]}',
          f'v_lshrrev_b32 v{t[0]}, 4, v0', f'v_lshlrev_b32 v{t[1]}, 13, v{t[0]}', f'v_lshlrev_b32 v{t[0]}, 1, v{t[0]}', f'v_and_b32 v{t[2]}, 15, v0', f'v_xor_b32 v{t[2]}, v{t[2]}, v{t[0]}']
    for q in range(4):
        L += [f'v_xor_b32 v{t[4]}, {8*(q>>1)}, v{t[2]}', f'v_lshl_add_u32 v{t[4]}, v{t[4]}, 4, v{t[1]}', f'v_add_u32 v{t[4]}, {q*(4*8192-1024)}, v{t[4]}',
              f'buffer_load_dwordx4 v{t[4]}, {sr(srdw,4)}, s{a_} offen offset:{q*1024} lds']
    return L

def a_loads(which):
    if which == 0:
        return [[f's_mov_b32 s{sSW}, 65536']] + dma_part('K', 'c', 'K0') + [[f's_mov_b32 s{sSW}, 98304']] + dma_part('K', 'c', 'K0') + \
               [[f's_mov_b32 s{sSW}, 0']] + dma_part('V', 'c', 'U0') + dma_part('K', 'c', 'U0')
    return [[f's_mov_b32 s{sSW}, 32768']] + dma_part('V', 'c', 'U1') + dma_part('K', 'c', 'U1') + [[f's_mov_b32 s{sSW}, 65536'], [f's_mov_b32 s{sSR}, 32768']]

def wo_dma_a():
    t = [240, 241, 242, 243]
    it = [[f'v_lshrrev_b32 v{t[0]}, 5, v0', f'v_bfe_u32 v{t[1]}, v0, 1, 4', f'v_xor_b32 v{t[1]}, v{t[1]}, v{t[0]}', f'v_and_b32 v{t[2]}, 1, v0', f'v_lshlrev_b32 v{t[2]}, 4, v{t[2]}',
           f'v_lshl_add_u32 v{t[2]}, v{t[0]}, 10, v{t[2]}'],
          [f's_lshr_b32 s{sT+4}, s2, 1', f's_lshl_b32 s{sT+4}, s{sT+4}, 15', f's_and_b32 s{sT+5}, s2, 1', f's_lshl_b32 s{sT+5}, s{sT+5}, 9'],
          [f's_add_u32 s{sT+4}, s{sT+4}, s{sT+5}', f's_lshl_b32 s{sT+5}, s{sW}, 13', f's_add_u32 s{sT+4}, s{sT+4}, s{sT+5}']]
    for q in range(4):
        it.append([f'v_xor_b32 v{t[3]}, {2*q}, v{t[1]}', f'v_lshl_add_u32 v{t[3]}, v{t[3]}, 5, v{t[2]}', f's_add_u32 m0, s{sW4}, {128*K} ; tag=WO', f's_add_u32 s{sT+5}, s{sT+4}, {q*1024}',
                   f'buffer_load_dwordx4 v{t[3]}, {sr(sWO,4)}, s{sT+5} offen offset:{q*1024} lds ; tag=WO'])
    return it
def wo_dma_b():
    t = [240, 241]
    return [f'v_lshrrev_b32 v{t[0]}, 2, v0', f'v_lshlrev_b32 v{t[0]}, 10, v{t[0]}', f'v_and_b32 v{t[1]}, 3, v0', f'v_lshl_add_u32 v{t[0]}, v{t[1]}, 4, v{t[0]}',
            f's_lshr_b32 s{sT+4}, s2, 4', f's_lshl_b32 s{sT+4}, s{sT+4}, 15', f's_and_b32 s{sT+5}, s2, 15', f's_lshl_b32 s{sT+5}, s{sT+5}, 6', f's_add_u32 s{sT+4}, s{sT+4}, s{sT+5}',
            f's_and_b32 s{sT+5}, s{sW}, 1', f's_lshl_b32 s{sT+6}, s{sT+5}, 14', f's_add_u32 s{sT+4}, s{sT+4}, s{sT+6}', f's_lshl_b32 s{sT+5}, s{sT+5}, 10',
            f's_add_u32 m0, s{sT+5}, {144*K} ; tag=WO', 's_nop 0', f'buffer_load_dwordx4 v{t[0]}, {sr(sWB,4)}, s{sT+4} offen lds ; tag=WO']
def wo_fin():
    R = TMPV; a0, a1, a2 = TMPV + 20, TMPV + 21, TMPV + 22; t0, t1 = sT + 4, sT + 5
    L = [f'v_lshrrev_b32 v{a0}, 2, v0', f'v_and_b32 v{a1}, 3, v0', f'v_lshlrev_b32 v{a1}, 3, v{a1}', f'v_lshl_add_u32 v{a2}, v{a0}, 6, v{a1}', f'v_lshl_add_u32 v{a1}, v{a0}, 9, v{a1}',
         f'v_add_u32 v{a1}, {128*K}, v{a1}', f'v_and_b32 v{a0}, 7, v{a0}', f's_lshl_b32 s{t0}, s{sW}, 2', f'v_xor_b32 v{a0}, s{t0}, v{a0}',
         f's_and_b32 s{t0}, s{sW}, 1', f's_lshl_b32 s{t0}, s{t0}, 5', f's_add_u32 s{t0}, s{t0}, {144*K}', f'v_add_u32 v{a2}, s{t0}, v{a2}']
    for x in range(4):
        L += [f'v_xor_b32 v{a0+4+x}, {x}, v{a0}', f'v_lshl_add_u32 v{a0+4+x}, v{a0+4+x}, 5, v{a1}']
        for p in range(2): L.append(f'ds_read_b64_tr_b16 {vr(R+4*x+2*p,2)}, v{a0+4+x} offset:{p*8192}')
    for p in range(2): L.append(f'ds_read_b64_tr_b16 {vr(R+16+2*p,2)}, v{a2} offset:{p*1024}')
    L += [f's_and_b32 s{t0}, s2, 1', f's_lshl_b32 s{t0}, s{t0}, 2', f's_add_u32 s{t0}, s{t0}, s{sW}', f's_mul_i32 s{t0}, s{t0}, {TS}', f's_lshr_b32 s{t1}, s2, 1', f's_lshl_b32 s{t1}, s{t1}, 12',
          f's_add_u32 s{t0}, s{t0}, s{t1}', f's_add_u32 s{t0}, s{t0}, {WOA}']
    for x in range(4): L += [f'buffer_store_dwordx4 {vr(R+4*x,4)}, v{vL16}, {sr(sWS,4)}, s{t0} offen offset:{x*1024}{SF}']
    L += [f's_bfe_u32 s{t0}, s2, 0x30001', f's_mul_i32 s{t0}, s{t0}, {TS}', f's_and_b32 s{t1}, s2, 1', f's_lshl_b32 s{t1}, s{t1}, 11', f's_add_u32 s{t0}, s{t0}, s{t1}',
          f's_and_b32 s{t1}, s{sW}, 1', f's_lshl_b32 s{t1}, s{t1}, 10', f's_add_u32 s{t0}, s{t0}, s{t1}',
          f's_lshr_b32 s{t1}, s2, 4', f's_lshl_b32 s{t1}, s{t1}, 12', f's_add_u32 s{t0}, s{t0}, s{t1}', f's_add_u32 s{t0}, s{t0}, {WOA + 128*4096}',
          f'buffer_store_dwordx4 {vr(R+16,4)}, v{vL16}, {sr(sWS,4)}, s{t0} offen{SF}', 's_nop 0']
    return L

def qproj():
    QPF = int(os.environ.get('K2_QPF', 0))
    pf = [[f'v_lshlrev_b32 v245, 10, v0', f's_lshr_b32 s{sT+4}, s2, 3', f's_lshl_b32 s{sT+4}, s{sT+4}, 16'], [f's_lshl_b32 s{sT+5}, s{sW}, 7', f's_add_u32 s{sT+4}, s{sT+4}, s{sT+5}'],
          [f'buffer_load_dword v246, v245, {sr(sX,4)}, s{sT+4} offen offset:512 ; nodep'],
          [f'v_lshrrev_b32 v245, 1, v0', f'v_lshlrev_b32 v245, 13, v245', f'v_and_b32 v244, 1, v0', f'v_lshl_add_u32 v245, v244, 7, v245'],
          [f's_lshl_b32 s{sT+4}, s{sI}, 18', f's_lshl_b32 s{sT+5}, s{sH}, 8', f's_add_u32 s{sT+4}, s{sT+4}, s{sT+5}'], [f's_add_u32 s{sT+4}, s{sT+4}, {256*8192}'],
          [f'buffer_load_dword v246, v245, {sr(sWQ,4)}, s{sT+4} offen ; nodep']] if QPF else []
    zf = []
    if FUSE3:
        FW_, FC_, FB_ = FLG, FLG + 4096, FLG + 8192
        zf = [f's_lshl_b32 s{sT+4}, s{sI}, 7', f's_lshl_b32 s{sT+5}, s{sH}, 2', f's_add_u32 s{sT+5}, s{sT+5}, {FC_}', f's_add_u32 s{sFa}, s{sT+5}, s{sT+4}', f's_sub_u32 s{sT+5}, s{sT+5}, s{sT+4}', f's_add_u32 s{sT+5}, s{sT+5}, {15*128}',
              f's_lshl_b32 s{sT+4}, s2, 2', f's_add_u32 s{sFw}, s{sT+4}, {FW_}', f's_add_u32 s{sT+4}, s{sT+4}, {FB_}',
              f'v_mov_b32 v245, s{sFa}', f'v_writelane_b32 v245, s{sT+5}, 1', f'v_writelane_b32 v245, s{sFw}, 2', f'v_writelane_b32 v245, s{sT+4}, 3', 'v_mov_b32 v246, 0', f's_mov_b32 s{sSig}, 0',
              's_mov_b64 exec, 15', f'buffer_store_dword v246, v245, {sr(sWS,4)}, 0 offen sc1', 's_mov_b64 exec, -1']
    L = q_setup() + zf + (['s_barrier'] if FUSE and not Q0PF else []) + (q_setup2() + ['s_barrier'] + q_reads(0) + flat(q_dma(1)) if Q0PF else flat(q_dma(0)) + flat(q_dma(1)) + q_setup2())
    L += [f's_lshl_b32 s{sT+4}, s{sH}, 19', f's_add_u32 s{sK}, s{sT+4}, {KWS}', f's_add_u32 s{sV}, s{sT+4}, {VWS}', f's_mov_b32 s{sKc}, s{sK}', f's_add_u32 s{sK}, s{sK}, s{sW2}', f's_add_u32 s{sV}, s{sV}, s{sW2}',
          f's_add_u32 s{sK2}, s{sWS}, s{sK}', f's_addc_u32 s{sK2+1}, s{sWS+1}, 0', f's_add_u32 s{sV2}, s{sWS}, s{sV}', f's_addc_u32 s{sV2+1}, s{sWS+1}, 0']
    if not Q0PF: L += [';VMNEED C0', 's_barrier'] + q_reads(0)
    sig = []
    if FUSE:
        sig = [f's_cmp_lg_u32 s{sW}, 0', 's_cbranch_scc1 K2_NOSIG', 'v_mov_b32 v245, 1', 'v_mov_b32 v246, s94', 's_mov_b64 exec, 1',
              f'SKIP buffer_atomic_add v245, v246, {sr(sDB,4)}, 0 offen sc1', 's_mov_b64 exec, -1', 'K2_NOSIG:',
              f's_lshl_b32 s{sT+4}, s{sH}, 1', 'v_and_b32 v246, 1, v0', f'v_add_u32 v246, s{sT+4}, v246', 'v_mul_u32_u24 v246, 205, v246', 'v_lshrrev_b32 v246, 10, v246',
              'v_bfe_u32 v245, v0, 1, 1', 'v_mul_u32_u24 v245, 13, v245', 'v_add_lshl_u32 v246, v246, v245, 2', 'v_add_u32 v246, 128, v246']
    if not Q0PF: L += sig
    L += stamp()
    for c in range(8):
        mf = []; pre = {}
        def P(g, x): pre.setdefault(g, []).extend(x if isinstance(x, list) else [x])
        val = {}
        for ft in range(8):
            for tt in range(4):
                for kbl in range(2):
                    a = qacc(ft, tt)
                    cc = '0' if (c == 0 and kbl == 0) else vr(a, 4)
                    mf.append(f'{MF} {vr(a,4)}, {ar(wf(c,kbl,ft),4)}, {ar(xf(c,kbl,tt),4)}, {cc}')
        for g0 in range(0, 64, 16):
            f0 = g0 // 8
            P(g0 - 1 if g0 else (0, 'before'), f';NEED {ar(wf(c,0,f0),8)} {ar(wf(c,1,f0),8)}' + (f' {ar(xf(c,0,0),32)}' if g0 == 0 else ''))
        if c == 0:
            g = 0
            for it in q_dma(2):
                if g % 16 == 15: g += 1
                P(g, it); g += 1
            gb = 26
        else:
            gb = 0
        if 1 <= c <= 5: ex = ([[f'buffer_load_dword v247, v246, {sr(sDB,4)}, 0 offen sc1']] if FUSE and c == 5 else []) + q_dma(c + 2)
        elif c == 6:
            ex = a_loads(0)
            if FUSE:
                P((0, 'before'), ['v_cmp_gt_u32 vcc, 8, v247', 's_cbranch_vccnz K2_SLOWP', 'K2_POLLED:'])
                STUBS.extend(['K2_SLOWP:', f's_mov_b32 s{sT+4}, 0x80000', 'K2_SP1:', f'buffer_load_dword v247, v246, {sr(sDB,4)}, 0 offen sc1', 's_waitcnt vmcnt(0)',
                              'v_cmp_gt_u32 vcc, 8, v247', 's_cbranch_vccz K2_POLLED', 's_sleep 2', f's_sub_u32 s{sT+4}, s{sT+4}, 1', f's_cmp_lg_u32 s{sT+4}, 0', 's_cbranch_scc1 K2_SP1', 's_branch K2_POLLED'])
        elif c == 7: ex = a_loads(1) + wo_dma_a() + [wo_dma_b()]
        else: ex = []
        if c < 7:
            P(gb, [f';VMNEED C{c+1}', 's_barrier'] + (sig if Q0PF and c == 0 else []))
            rds = q_reads(c + 1)
            seq = []; nr, ne = len(rds), len(ex)
            ri = ei = 0
            while ri < nr or ei < ne:
                if ei < ne and (ri >= nr or ei * nr <= ri * ne): seq.append(ex[ei]); ei += 1
                else: seq.append(rds[ri]); ri += 1
            g0 = gb + 1
            for k, x in enumerate(seq): P(g0 + k * (63 - g0) // len(seq), x)
        else:
            P(0, 's_barrier')
            for db in range(3):
                cv = q_cvt(db)
                for k in range(8): val[16 * db + 20 + k + (k > 3) * 0] = cv[2*k:2*k+2]
            P(60, [';VMNEED U0', 's_barrier', f'v_add_u32 v{vRd}, 65536, v{vL16}', f'v_add_u32 v{vRd+1}, 98304, v{vL16}'])
            for k, it in enumerate(ex): P(1 + k * 58 // len(ex), it)
        L += weave(mf, pre, val)
    return L

def a_prologue():
    L = []
    fr = qk_frags('c')
    L += [rd(g - 2, off, 0) for g, fu, off in fr] + [rd(g, off, 1) for g, fu, off in fr]
    L += [f'v_mov_b32 v{TMPB+j}, 0' for j in range(4)]
    L += [f'v_mov_b32 v{vd}, v{vq}'] + [f'v_cmp_gt_i32 {sr(sMk+2*j,2)}, {j}, v{vd}' for j in range(4)]
    L += q_cvt(3)
    zm = [f'v_mfma_f32_32x32x16_bf16 {ar(16*k,16)}, {vr(TMPB,4)}, {vr(TMPB,4)}, 0' for k in range(8)]
    L += ['s_nop 0'] + qk_mfmas('c', 0, czero=True, fr=lambda kt, db: ar(slot(32 + 16 * kt + 4 * db), 4)) + zm
    L += [f's_cmp_eq_u32 s{sI}, 0', f's_cselect_b32 s{sMq}, 0, -4096'] + mask_call(0, 'c') + deltas(0, 'c', False)
    for q in range(4):
        for j in range(4): L.append(f'v_sub_f32 v{NM+4*q+j}, 0, v{vDl+q}')
    V = [f'v_mov_b32 v{vl+q}, 0' for q in range(4)] + sub_tiles(0, 'c') + exp_ops(0, 'c')
    mf2 = qk_mfmas('c', 1)
    L += [f'v_mov_b32 v{vRd}, v{vL16}', ';LGKM0'] + ([';VMNEED WO'] if FUSE3 else []) + ['s_barrier'] + (wo_fin() if FUSE3 else [])
    rds = [rd(g, off, 0) for g, fu, off in pv_frags('c') if g < D]
    n = len(mf2)
    for k, m in enumerate(mf2):
        L.append(m)
        if k >= n - 2 * len(rds) and (n - k) % 2 == 0: L.append(rds[len(rds) - (n - k) // 2])
        L += V[len(V)*k//n:len(V)*(k+1)//n]
    return L

def fin_rows(which):
    t0, t1 = sT + 4, sT + 5
    q0 = 0 if which == 'a' else 2
    L = [f's_lshl_b32 s{t0}, s{sH}, 14', f's_add_u32 s{t0}, s{t0}, {CTX}', f's_and_b32 s{t1}, s{sW}, 1', f's_lshl_b32 s{t1}, s{t1}, 11', f's_add_u32 s{t0}, s{t0}, s{t1}', f's_lshr_b32 s{t1}, s{sW}, 1', f's_mul_i32 s{t1}, s{t1}, {TS}', f's_add_u32 s{t0}, s{t0}, s{t1}', f's_mul_i32 s{t1}, s{sI}, {2*TS}']
    L += [f's_add_u32 s{t0}, s{t0}, s{t1}'] if which == 'a' else [f's_sub_u32 s{t0}, s{t0}, s{t1}', f's_add_u32 s{t0}, s{t0}, {30*TS}']
    L += [f's_add_u32 s{t0+k}, s{t0}, {4096*k}' for k in range(1, 4)]
    for q in (q0, q0 + 1):
        L += xlane('v_add_f32', vl + q, vT) + [f'v_rcp_f32 v{vl+q}, v{vl+q}']
    for q in (q0, q0 + 1):
        for h in range(2):
            r = TMPV + 16 * h; p = TMPB + 8 * h
            for j in range(16): L.append(f'v_accvgpr_read_b32 v{r+j}, a{Or(q,4*h)+j}')
            for j in range(16): L.append(f'v_mul_f32 v{r+j}, v{r+j}, v{vl+q}')
            for j in range(8): L.append(f'v_cvt_pk_bf16_f32 v{p+j}, v{r+2*j}, v{r+2*j+1}')
            for x in range(2): L.append(f'buffer_store_dwordx4 {vr(p+4*x,4)}, v{vL16}, {sr(sWS,4)}, s{t0+2*h+x} offen offset:{(q&1)*1024}{SF}')
    return L

def last_pv():
    par = 1
    mf = pv_mfmas('s', par)
    frs = pv_frags('s')
    t0, t1 = sT + 4, sT + 5
    head = lupd('s') + [f's_lshl_b32 s{t0}, s{sH}, 14', f's_add_u32 s{t0}, s{t0}, {CTX}', f's_and_b32 s{t1}, s{sW}, 1', f's_lshl_b32 s{t1}, s{t1}, 11', f's_add_u32 s{t0}, s{t0}, s{t1}', f's_lshr_b32 s{t1}, s{sW}, 1', f's_mul_i32 s{t1}, s{t1}, {TS}', f's_add_u32 s{t0}, s{t0}, s{t1}', f's_mul_i32 s{t1}, s{sI}, {2*TS}'] + [f's_sub_u32 s{t0}, s{t0}, s{t1}', f's_add_u32 s{t0}, s{t0}, {30*TS}'] + [f's_add_u32 s{t0+k}, s{t0}, {4096*k}' for k in range(1, 4)]
    for sw in ('32', '16'):
        head += [f'v_mov_b32 v{vT}, v{vl+2}', f'v_mov_b32 v{vT+1}, v{vl+3}', 's_nop 0', f'v_permlane{sw}_swap_b32 v{vl+2}, v{vT}', f'v_permlane{sw}_swap_b32 v{vl+3}, v{vT+1}',
                 f'v_add_f32 v{vl+2}, v{vl+2}, v{vT}', f'v_add_f32 v{vl+3}, v{vl+3}, v{vT+1}']
    head += [f'v_rcp_f32 v{vl+2}, v{vl+2}', f'v_rcp_f32 v{vl+3}, v{vl+3}']
    def fin_db(db):
        X = []
        for q in (2, 3):
            r = TMPV + 8 * (q - 2) + 16 * (db & 1); p = TMPB + 4 * (q - 2) + 8 * (db & 1)
            X += [f'v_accvgpr_read_b32 v{r+j}, a{Or(q,2*db)+j}' for j in range(8)]
            X += [f'v_mul_f32 v{r+j}, v{r+j}, v{vl+q}' for j in range(8)]
            X += [f'v_cvt_pk_bf16_f32 v{p+j}, v{r+2*j}, v{r+2*j+1}' for j in range(4)]
            X += [f'buffer_store_dwordx4 {vr(p,4)}, v{vL16}, {sr(sWS,4)}, s{t0+db} offen offset:{(q&1)*1024}{SF}']
        return X
    L = []
    fill = head + ['#1'] + fin_db(0) + ['#2'] + fin_db(1) + ['#3'] + fin_db(2)
    fi = 0
    for g, m in enumerate(mf):
        if g % 8 == 0: L.append(';NEED ' + ' '.join(ar(slot(gg), 4) for gg, fu, off in frs if g <= fu < g + 8))
        L.append(m)
        for gg, fu, off in frs:
            if gg - D == g: L.append(rd(gg, off, par))
        n = 0
        while fi < len(fill) and n < 5:
            x = fill[fi]
            if x.startswith('#'):
                if g < 8 * int(x[1]) + 2: break
                fi += 1; continue
            L.append(x); fi += 1; n += 1
    L += [x for x in fill[fi:] if not x.startswith('#')] + ['s_nop 3'] + fin_db(3)
    return L

def hook(bit, saddr, uid):
    if not FUSE3: return []
    STUBS.extend([f'K2_H{uid}:', f's_bitset1_b32 s{sSig}, {bit}', f's_cmp_lg_u32 s{sW}, 0', f's_cbranch_scc1 K2_HR{uid}', f'v_mov_b32 v{vT}, 1', f'v_mov_b32 v{vT+1}, 0', 's_mov_b64 exec, 1',
                  f'buffer_store_dword v{vT}, v{vT+1}, {sr(sWS,4)}, s{saddr} offen sc1', 's_mov_b64 exec, -1', 's_nop 3', f's_branch K2_HR{uid}'])
    return [f's_bitcmp0_b32 s{sSig}, {bit}', f's_cbranch_scc1 K2_H{uid}', f'K2_HR{uid}:']

def gen_k2():
    if FUSE3: import tail as TAILM
    name = 'k2_kernel'
    L = []; a = L.append
    if not FUSE:
        a(f'.p2align 8\n.type {name},@function\n{name}:')
        a('s_cmp_ge_u32 s2, 256'); a('s_cbranch_scc1 K2_END')
        if os.environ.get('CPF', '1') == '1': L += code_prefetch('k2_kernel', 'k3_kernel', 'K2', 246, 247, 90, 8)
        a('s_load_dwordx2 s[4:5], s[0:1], 88'); a('s_load_dwordx2 s[6:7], s[0:1], 0'); a('s_load_dwordx2 s[56:57], s[0:1], 16'); a('s_load_dwordx2 s[68:69], s[0:1], 40'); a('s_load_dwordx2 s[76:77], s[0:1], 64')
        a('v_lshrrev_b32 v1, 6, v0'); a('v_and_b32 v0, 63, v0'); a(f'v_readfirstlane_b32 s{sW}, v1')
    else:
        for srd, p, n in ((sWO, 14, 0x400000), (sWB, 20, 0x80000), (sDB, 24, 256), (sWQ, 8, 0x400000), (sX, 4, 0x200000), (sWS, 26, 0x10000000)):
            a(f's_mov_b32 s{srd}, s{p}'); a(f's_mov_b32 s{srd+1}, s{p+1}'); a(f's_mov_b32 s{srd+2}, {hex(n)}'); a(f's_mov_b32 s{srd+3}, 0x20000')
        a(f's_mov_b64 s[96:97], s[22:23]')
        a(f's_mov_b32 s{sW}, s40')
        L += gstamp(6, sDB, 2, 3)
    a(f'v_lshlrev_b32 v{vL16}, 4, v0')
    if os.environ.get('K2_MAP') == '8x4':
        a(f's_bfe_u32 s{sH}, s2, 0x20001'); a(f's_lshl_b32 s{sH}, s{sH}, 3'); a(f's_bfe_u32 s{sT}, s2, 0x30003'); a(f's_add_u32 s{sH}, s{sH}, s{sT}')
        a(f's_lshr_b32 s{sI}, s2, 6'); a(f's_lshl_b32 s{sI}, s{sI}, 1'); a(f's_and_b32 s{sT}, s2, 1'); a(f's_add_u32 s{sI}, s{sI}, s{sT}')
    else:
        a(f's_and_b32 s{sH}, s2, 31'); L += remap_i(sI, sT, sT + 1)
    a(f's_lshl_b32 s{sW2}, s{sW}, 11'); a(f's_lshl_b32 s{sW4}, s{sW}, 12'); a(f's_add_u32 s{sW2K}, s{sW2}, 16384'); a(f's_add_u32 s{sW4K}, s{sW4}, 16384')
    a(f'v_mov_b32 v{vBig}, {f32(NEGBIG)}')
    a(f'v_and_b32 v{vq}, 15, v0'); a(f'v_lshrrev_b32 v{vT}, 4, v0'); a(f'v_lshlrev_b32 v{vT}, 2, v{vT}'); a(f'v_sub_u32 v{vq}, v{vq}, v{vT}')
    a('s_waitcnt lgkmcnt(0)')
    for srd, p, n in () if FUSE else ((sWS, 4, 0x10000000), (sX, 6, 0x200000), (sWQ, 56, 0x400000), (sWO, 68, 0x400000), (sWB, 76, 0x80000)):
        a(f's_mov_b32 s{srd}, s{p}'); a(f's_mov_b32 s{srd+1}, s{p+1}'); a(f's_mov_b32 s{srd+2}, {hex(n)}'); a(f's_mov_b32 s{srd+3}, 0x20000')
    if DIAG: a('s_mov_b32 s72, 0'); a(f'v_mov_b32 v{vDG}, 0'); a(f'v_mov_b32 v{vDG+2}, 0'); L += stamp()
    raw0 = qproj() + stamp() + gstamp(7, sDB, 16, 17) + gstamp(8, sDB, 16, 17, neg=True) + a_prologue() + stamp()
    skip = [x for x in raw0 if x.startswith('SKIP ')]
    pre = auto_waits([], [x if not x.startswith('SKIP ') else '.L_skip0:' for x in raw0])
    L += [x if x != '.L_skip0:' else skip[0][5:] for x in pre]
    def two(uid, b0, b1): return body(0, *b0, uid + 'a') + body(1, *b1, uid + 'b')
    raw = {
     'CC': two('CC', ('c','c','c','c','c','c',None), ('c','c','c','c','c','c',None)),
     'X1': two('X1', ('c','c','c','c','c','c',None), ('c','c','c','c','c','c',0)),
     'X2': two('X2', ('c','c','c','c','c','s',1), ('c','c','c','c','c','s',2)),
     'X3': two('X3', ('c','c','s','c','s','s',3), ('c','s','s','s','s','s',None)) + ([] if FUSE3 else wo_fin()) + fin_rows('a'),
     'X3b': two('X3b', ('c','c','s','c','s',None,3), ('c','s','s','s','s',None,0)) + ([] if FUSE3 else wo_fin()) + fin_rows('a'),
     'SS': two('SS', ('s','s','s','s','s','s',None), ('s','s','s','s','s','s',None)),
     'X4': two('X4', ('s','s','s','s','s',None,None), ('s','s','s','s','s',None,0)),
     'TL': (TAILM.pre_polls() if FUSE3 else []) + body(0, 's','s',None,'s',None,None,2, 'TLa') + last_pv(),
    }
    preds = {'CC': ['pre', 'CC'], 'X1': ['CC'], 'X2': ['X1', 'pre'], 'X3': ['X2'], 'X3b': ['X2'], 'SS': ['X3', 'SS'], 'X4': ['SS'], 'TL': ['X4', 'X3b']}
    fin = {'pre': pre}
    for it in range(3):
        for k in raw:
            fin[k] = merge_min([auto_waits(fin[p], raw[k]) for p in preds[k] if p in fin])
    a(f's_cmp_eq_u32 s{sI}, 0'); a('s_cbranch_scc1 K2_X2')
    a(f's_lshl_b32 s{sCnt}, s{sI}, 1'); a(f's_sub_u32 s{sCnt}, s{sCnt}, 1')
    a('.p2align 6\nK2_CC:'); L += fin['CC'] + hook(0, sFw, 'a') + [f's_sub_u32 s{sCnt}, s{sCnt}, 1', f's_cmp_lg_u32 s{sCnt}, 0', 's_cbranch_scc1 K2_CC']
    L += stamp()
    L += fin['X1']
    a('K2_X2:'); L += adv64(sK2, f's{sW2}'); L += fin['X2'] + hook(0, sFw, 'b')
    L += adv64(sV2, f's{sW2}')
    a(f's_cmp_eq_u32 s{sI}, 7'); a('s_cbranch_scc1 K2_X3b')
    L += fin['X3']
    L += stamp()
    a(f's_lshl_b32 s{sCnt}, s{sI}, 1'); a(f's_sub_u32 s{sCnt}, 13, s{sCnt}')
    a('.p2align 6\nK2_SS:'); L += fin['SS'] + hook(1, sFa, 'c') + [f's_sub_u32 s{sCnt}, s{sCnt}, 1', f's_cmp_lg_u32 s{sCnt}, 0', 's_cbranch_scc1 K2_SS']
    L += stamp()
    L += fin['X4']
    a('K2_TL:'); L += fin['TL']
    L += stamp()
    epi = []
    L += epi
    if FUSE3:
        import tail, k3
        L += stamp() + gstamp(9, sDB, 16, 17) + gstamp(10, sDB, 16, 17, neg=True) + tail.gen_tail(fin['TL'] + epi) + k3.STUBS
    else:
        if DIAG:
            L += stamp(); a('s_waitcnt vmcnt(0)'); L += stamp()
            L += dstore(vDG, vDG + 1, vDG + 2, sW, sWS, 201)
        L += gstamp(9, sDB, 16, 17) + gstamp(10, sDB, 16, 17, neg=True)
        a('K2_END:'); a('s_endpgm')
    a('K2_X3b:'); L += fin['X3b']; a('s_branch K2_TL')
    L += STUBS
    for r in sorted(RARES): L += rare(*r)
    L += rescale_o()
    for m in sorted(MASKS): L += mask_routine(*m)
    f = fin
    check_trace(pre + ['s_nop 0'] * 2 + f['X2'] + f['X3'] + f['SS'] + f['SS'] + f['X4'] + f['TL'] + epi, 'k2 i=0')
    check_trace(pre + ['s_nop 0'] * 4 + f['CC'] + f['CC'] + f['X1'] + f['X2'] + f['X3b'] + f['TL'] + epi, 'k2 i=7')
    if FUSE: return L, '', None
    return L, kdesc(name, 512, 256), f'; @launch kernel={name} grid=(256,1,1) block=(256,1,1) lds=163840'
```

```python
from lib import *
from layout import *
import os, struct, math
def f32(x): return '0x%08x' % struct.unpack('<I', struct.pack('<f', x))[0]
DIAG = os.environ.get('DIAG')
MF = 'v_mfma_f32_16x16x32_bf16'
MF16 = 'v_mfma_f32_16x16x16_bf16'
CB = math.log2(math.e) * 0.25
NEGBIG = -1.0e30
FLGA = FLG + 4096
OSF = os.environ.get('K3_SF', ' sc1')
G2 = int(os.environ.get('K3_G2', 0))
BLDS = int(os.environ.get('K3_BLDS', 1))
GPRIO = int(os.environ.get('K3_GPRIO', 0))
sWS, sOUT, sW, sT, sMk = 8, 12, 16, 20, 40
vL16 = 1
STUBS = []
def flat(L):
    o = []
    for x in L:
        if isinstance(x, list): o += flat(x)
        else: o.append(x)
    return o
uidc = [0]
def poll(voff, soff, nlanes, tmp):
    uidc[0] += 1; u = uidc[0]
    return [f's_mov_b32 s{sT+8}, 0x40000', f's_mov_b64 exec, {hex((1 << nlanes) - 1)}', f'K3_PL{u}:',
            f'buffer_load_dword v{tmp}, v{voff}, {sr(sWS,4)}, s{soff} offen sc1', 's_waitcnt vmcnt(0)',
            f'v_cmp_eq_u32 vcc, 0, v{tmp}', f's_cbranch_vccz K3_PD{u}', 's_sleep 1', f's_sub_u32 s{sT+8}, s{sT+8}, 1', f's_cmp_lg_u32 s{sT+8}, 0', f's_cbranch_scc1 K3_PL{u}',
            f'K3_PD{u}:', 's_mov_b64 exec, -1']

def role_b(unit=2, fused=False, extra=(), raw=False):
    vG = (101, 102, 103)
    stamp = lambda: dstamp(*vG) if DIAG and not fused else []
    LF = ' sc1' if fused else ''
    S, CUP, CLO, ONE, BO, BL, PKD = 8, 80, 84, 88, 92, 96, 4
    vmx = [2, 100]
    vBig = 'v100' if False else None
    BK, BV, BQ = 0, 72, 144
    sP, sB0, sC, sBig = 17, 18, 19, 30
    L = []; a = L.append
    a(f's_and_b32 s{sP}, s{unit}, 15'); a(f's_lshr_b32 s{sB0}, s{unit}, 4'); a(f's_lshl_b32 s{sB0}, s{sB0}, 2'); a(f's_add_u32 s{sB0}, s{sB0}, s{sW}')
    t0, t1, t2 = sT, sT + 1, sT + 2
    a(f's_lshr_b32 s{t0}, s{sP}, 1'); a(f's_lshl_b32 s{t0}, s{t0}, 18'); a(f's_and_b32 s{t1}, s{sP}, 1'); a(f's_lshl_b32 s{t1}, s{t1}, 11')
    a(f's_add_u32 s{t0}, s{t0}, s{t1}'); a(f's_add_u32 s{t0}, s{t0}, {BWS}')
    if BLDS and not fused:
        a(f's_lshl_b32 s{t1}, s{sB0}, 12'); a(f's_add_u32 s{t1}, s{t1}, s{t0}')
        for u in range(2): a(f'buffer_load_dwordx4 {ar(BQ+4*u,4)}, v{vL16}, {sr(sWS,4)}, s{t1} offen offset:{u*1024}')
        a(f's_lshl_b32 s{t2}, s{sW}, 1'); a(f's_add_u32 s{t2}, s{t2}, s{sB0}')
        a(f's_mul_i32 s{t1}, s{sW}, {3*4096}')
        for kind in range(2):
            for b in range(3):
                r = sT + 10 + b
                if kind == 0: L += [f's_sub_i32 s{r}, s{t2}, {8-b}', f's_max_i32 s{r}, s{r}, 0', f's_lshl_b32 s{r}, s{r}, 12', f's_add_u32 s{r}, s{r}, s{t0}']
                L += [f's_add_u32 s{r}, s{r}, {8*256*1024}', f's_add_u32 m0, s{t1}, {b*4096 + kind*2048} ; tag=BL', 's_nop 0']
                for e in range(2): a(f'buffer_load_dwordx4 v{vL16}, {sr(sWS,4)}, s{r} offen offset:{e*1024} lds ; tag=BL')
        a(f's_lshl_b32 s{t1}, s{sW}, 12'); a(f'v_add_u32 v2, s{t1}, v{vL16}')
        L += [';VMNEED BL', 's_barrier']
        for bb in range(9):
            for kt in range(2): a(f'ds_read_b128 {ar(BK+8*bb+4*kt,4)}, v2 offset:{bb*4096+kt*1024}')
        for bb in range(9):
            for e in range(2): a(f'ds_read_b128 {ar(BV+8*bb+4*e,4)}, v2 offset:{bb*4096+2048+e*1024}')
    else:
        a(f's_lshl_b32 s{t1}, s{sB0}, 12'); a(f's_add_u32 s{t1}, s{t1}, s{t0}')
        for u in range(2): a(f'buffer_load_dwordx4 {ar(BQ+4*u,4)}, v{vL16}, {sr(sWS,4)}, s{t1} offen offset:{u*1024}{LF}')
        blk = []
        for bb in range(9):
            r = sT + 10 + bb
            L += [f's_sub_i32 s{r}, s{sB0}, {8-bb}', f's_max_i32 s{r}, s{r}, 0', f's_lshl_b32 s{r}, s{r}, 12', f's_add_u32 s{r}, s{r}, s{t0}', f's_add_u32 s{r}, s{r}, {8*256*1024}']
            for kt in range(2): a(f'buffer_load_dwordx4 {ar(BK+8*bb+4*kt,4)}, v{vL16}, {sr(sWS,4)}, s{r} offen offset:{kt*1024}{LF}')
        for bb in range(9):
            r = sT + 10 + bb
            a(f's_add_u32 s{r}, s{r}, {8*256*1024}')
            for e in range(2): a(f'buffer_load_dwordx4 {ar(BV+8*bb+4*e,4)}, v{vL16}, {sr(sWS,4)}, s{r} offen offset:{e*1024}{LF}')
    a(';BLOADED')
    a('v_and_b32 v2, 15, v0'); a('v_lshrrev_b32 v3, 4, v0'); a('v_lshlrev_b32 v3, 2, v3'); a('v_sub_u32 v2, v2, v3')
    a(f'v_mov_b32 v3, {f32(NEGBIG)}'); a('v_mov_b32 v4, 0'); a(f's_mov_b32 s{sBig}, {f32(NEGBIG)}'); a(f's_mov_b32 s{sC}, {f32(CB)}')
    for j in range(4): a(f'v_cmp_gt_i32 {sr(sMk+2*j,2)}, {j}, v2')
    for j in range(4):
        a(f'v_cndmask_b32 v{CLO+j}, v4, v3, {sr(sMk+2*j,2)}'); a(f'v_cndmask_b32 v{CUP+j}, v3, v4, {sr(sMk+2*j,2)}'); a(f'v_mov_b32 v{ONE+j}, 0x3f803f80')
    L += stamp()
    units = [(0, 0), (0, 1), (1, 0), (1, 1)]
    def qk(n, rel):
        u, e = units[n]
        s = S + 4 * rel
        c = vr(CUP, 4) if rel == u else (vr(CLO, 4) if rel == u + 16 else '0')
        m = f'{MF16} {vr(s,4)}, {ar(BK+4*rel+2*e,2)}, {ar(BQ+4*u+2*e,2)}, {c}'
        bb = rel // 2
        if bb < 8:
            STUBS.extend([f'K3_BI{n}_{rel}:'] + [f'v_mov_b32 v{s+j}, s{sBig}' for j in range(4)] + [f's_branch K3_BR{n}_{rel}'])
            return [f's_cmp_lt_u32 s{sB0}, {8-bb}', f's_cbranch_scc1 K3_BI{n}_{rel}', m, f'K3_BR{n}_{rel}:']
        return [m]
    def mx(n, rel, first):
        s = S + 4 * rel; m = vmx[n % 2]
        if first: return [f'v_max3_f32 v{m}, v{s}, v{s+1}, v{s+2}', f'v_max_f32 v{m}, v{m}, v{s+3}']
        return [f'v_max3_f32 v{m}, v{m}, v{s}, v{s+1}', f'v_max3_f32 v{m}, v{m}, v{s+2}, v{s+3}']
    def mxfin(n):
        m = vmx[n % 2]
        return ['v_mov_b32 v3, v%d' % m, 's_nop 1', f'v_permlane32_swap_b32 v{m}, v3', f'v_max_f32 v{m}, v{m}, v3',
                'v_mov_b32 v3, v%d' % m, 's_nop 1', f'v_permlane16_swap_b32 v{m}, v3', f'v_max_f32 v{m}, v{m}, v3', f'v_mul_f32 v{m}, s{sC}, v{m}']
    tiles = lambda n: list(range(units[n][0], units[n][0] + 17))
    T = tiles(0)
    for k, rel in enumerate(T):
        L += qk(0, rel)
        if k >= 3: L += mx(0, T[k-3], k == 3)
    L += ['s_nop 0'] + mx(0, T[-3], False) + ['s_nop 0'] + mx(0, T[-2], False) + ['s_nop 3'] + mx(0, T[-1], False) + mxfin(0)
    L += stamp()
    for n, (u, e) in enumerate(units):
        m = vmx[n % 2]; T = tiles(n)
        nxt = tiles(n + 1) if n < 3 else []
        F = lambda bb: [f'v_fma_f32 v{S+4*r+j}, v{S+4*r+j}, s{sC}, -v{m}' for r in (2*bb, 2*bb+1) if r in T for j in range(4)]
        E = lambda bb: [f'v_exp_f32 v{S+4*r+j}, v{S+4*r+j}' for r in (2*bb, 2*bb+1) if r in T for j in range(4)]
        def C(bb):
            b = S + 8 * bb; X = []
            for h in range(2):
                if 2 * bb + h in T: X += [f'v_cvt_pk_bf16_f32 v{b+2*h}, v{b+4*h}, v{b+4*h+1}', f'v_cvt_pk_bf16_f32 v{b+2*h+1}, v{b+4*h+2}, v{b+4*h+3}']
                else: X += [f'v_mov_b32 v{b+2*h}, 0', f'v_mov_b32 v{b+2*h+1}, 0']
            return X
        def PV(bb):
            b = S + 8 * bb
            return [f'{MF} {vr(BO,4)}, {ar(BV+8*bb+4*e,4)}, {vr(b,4)}, ' + ('0' if bb == 0 else vr(BO, 4)),
                    f'{MF} {vr(BL,4)}, {vr(ONE,4)}, {vr(b,4)}, ' + ('0' if bb == 0 else vr(BL, 4))]
        firstmx = [True]
        def nqk(bb): return flat([qk(n + 1, r) for r in (2*bb, 2*bb+1) if r in nxt])
        def nmx(bb):
            X = []
            for r in (2*bb, 2*bb+1):
                if r in nxt:
                    X += mx(n + 1, r, firstmx[0]); firstmx[0] = False
            return X
        L += F(0) + E(0)
        for bb in range(9):
            if bb < 8:
                e_ = E(bb + 1); pv = PV(bb)
                L += F(bb + 1) + C(bb) + e_[:2] + [pv[0]] + e_[2:4] + [pv[1]] + e_[4:6] + nqk(bb) + e_[6:]
                if bb >= 1: L += nmx(bb - 1)
            else:
                L += ['s_nop 0'] + C(bb) + ['s_nop 1'] + PV(bb) + nqk(bb) + nmx(7)
        if nxt: L += ['s_nop 3'] + nmx(8) + mxfin(n + 1)
        else: L += ['s_nop 7']
        L += [f'v_rcp_f32 v3, v{BL}', 's_nop 0'] + [f'v_mul_f32 v{BO+j}, v{BO+j}, v3' for j in range(4)]
        L += [f'v_cvt_pk_bf16_f32 v{PKD+2*e}, v{BO}, v{BO+1}', f'v_cvt_pk_bf16_f32 v{PKD+2*e+1}, v{BO+2}, v{BO+3}']
        if e == 1:
            L += [f's_lshr_b32 s{t0}, s{sB0}, 1', f's_mul_i32 s{t0}, s{t0}, {TS}', f's_and_b32 s{t1}, s{sB0}, 1', f's_lshl_b32 s{t1}, s{t1}, 11', f's_add_u32 s{t0}, s{t0}, s{t1}', f's_lshl_b32 s{t1}, s{sP}, 12', f's_add_u32 s{t0}, s{t0}, s{t1}', f's_add_u32 s{t0}, s{t0}, {CTX + 128*4096 + u*1024}',
                  f'buffer_store_dwordx4 {vr(PKD,4)}, v{vL16}, {sr(sWS,4)}, s{t0} offen sc1', 's_nop 0']
    if raw: return L
    if extra:
        idx = [k for k, x in enumerate(L) if x.startswith(('v_exp', 'v_fma', 'v_mov_b32 v8'))]
        idx = idx[:int(len(idx) * 0.8)]
        n0 = 20
        pos = {}
        for k, g in enumerate(extra):
            p = idx[0] if k < n0 else idx[(k - n0 + 1) * (len(idx) - 1) // (len(extra) - n0)]
            pos.setdefault(p, []).extend(g)
        L2 = []
        for k, x in enumerate(L):
            L2.append(x); L2 += pos.get(k, [])
        L = L2
    L = auto_waits([], L)
    check_trace(L, 'k3 B')
    if fused: return L
    L += stamp()
    L += ['s_waitcnt vmcnt(0)', 's_barrier', f's_cmp_lg_u32 s{sW}, 0', 's_cbranch_scc1 K3_BEND',
          f's_lshl_b32 s{t0}, s2, 2', f's_add_u32 s{t0}, s{t0}, {FLG}', 'v_mov_b32 v2, 1', 'v_mov_b32 v3, 0', 's_mov_b64 exec, 1',
          f'buffer_store_dword v2, v3, {sr(sWS,4)}, s{t0} offen sc1', 's_mov_b64 exec, -1', 'K3_BEND:']
    if DIAG: L += stamp() + dstore(*vG, sW, sWS, 202)
    L += ['s_endpgm']
    return L

NF = 4
def role_g():
    vG = (101, 102, 103)
    stamp = lambda: dstamp(*vG) if DIAG else []
    TMP = 76
    sQ, sM = 17, 18
    sC0, sM0, sC1, sM1 = 44, 48, 52, 56
    def acc(part, mt, qt): return 64 * part + 4 * (4 * mt + qt)
    def slot_of(kb): return kb % 5 if kb < 33 else kb - 33
    def fr(kb, k):
        sl = slot_of(kb)
        if sl < 2: return vr(12 + 32 * sl + 4 * k, 4)
        if sl == 2: return ar(128 + 4 * k, 4) if k < 6 else vr(92 + 4 * (k - 6), 4)
        return ar(64 + 32 * (sl - 3) + 4 * k, 4)
    L = []; a = L.append
    t0, t1, t2 = sT, sT + 1, sT + 2
    LM = 2; LQ = 3
    a(f's_sub_u32 s{t2}, s2, 256'); a(f's_and_b32 s{t0}, s{t2}, 7'); a(f's_lshr_b32 s{t2}, s{t2}, 3')
    a(f's_lshr_b32 s{sQ}, s{t0}, 1'); a(f's_lshl_b32 s{sQ}, s{sQ}, 3'); a(f's_and_b32 s{t1}, s{t2}, 7'); a(f's_add_u32 s{sQ}, s{sQ}, s{t1}')
    a(f's_and_b32 s{sM}, s{t0}, 1'); a(f's_lshl_b32 s{sM}, s{sM}, 2'); a(f's_lshr_b32 s{t1}, s{t2}, 3'); a(f's_add_u32 s{sM}, s{sM}, s{t1}')
    sXc, sXm = 44, 45
    a(f's_mul_i32 s{sXc}, s{sQ}, {TS}'); a(f's_add_u32 s{sXc}, s{sXc}, {CTX}'); a(f's_mul_i32 s{sXm}, s{sM}, {TS}'); a(f's_add_u32 s{sXm}, s{sXm}, {WOA}')
    a(f's_lshl_b32 s{t0}, s{sW}, 14'); a(f's_add_u32 s{t0}, s{t0}, {128*4096}'); a(f's_add_u32 s46, s{sXc}, s{t0}'); a(f's_add_u32 s47, s{sXm}, s{t0}')
    IL = int(os.environ.get('K3_IL', 0))
    a(f's_lshl_b32 s{t0}, s{sW}, {12 if IL else 17}'); a(f's_add_u32 s{sXc}, s{sXc}, s{t0}'); a(f's_add_u32 s{sXm}, s{sXm}, s{t0}')
    LPF = 0
    NK = 36
    def loads(kb):
        LFc, LFw = os.environ.get('K3_LFC', ''), os.environ.get('K3_LFW', '')
        c, m, fl, st = (sXc, sXm, LFc, 16384 if IL else 4096) if kb < 32 else (46, 47, ' sc1', 4096)
        X = [[f'buffer_load_dwordx4 {fr(kb,4+j)}, v{vL16}, {sr(sWS,4)}, s{m} offen offset:{j*1024}{LFw}'] for j in range(4)]
        X += [[f'buffer_load_dwordx4 {fr(kb,j)}, v{vL16}, {sr(sWS,4)}, s{c} offen offset:{j*1024}{fl}'] for j in range(4)]
        X[-1] += [f's_add_u32 s{c}, s{c}, {st}', f's_add_u32 s{m}, s{m}, {st}']
        return X
    after = {}
    for kb in range(NK):
        prev = [k for k in range(kb) if slot_of(k) == slot_of(kb)]
        after.setdefault(prev[-1] if prev else -1, []).append(kb)
    for kb in after[-1]:
        L += flat(loads(kb))
        if LPF and kb == 1:
            for g in range(2, LPF + 1): L += touch(g) if False else []
    if LPF:
        for g in range(int(os.environ.get('K3_LP0', 1)), LPF + 1): L += touch(g)
    L += ['v_and_b32 v2, 15, v0', 'v_lshlrev_b32 v2, 2, v2', f's_lshr_b32 s{t2}, s{sQ}, 1', f's_lshl_b32 s{t2}, s{t2}, 6', f's_add_u32 s{t2}, s{t2}, {FLG}']
    L += stamp()
    for kb in range(NK):
        part = 0 if kb < 32 else 1
        mf = []
        for mt in range(4):
            for qt in range(4):
                d = acc(part, mt, qt)
                mf.append(f'{MF} {ar(d,4)}, {fr(kb,4+mt)}, {fr(kb,qt)}, ' + ('0' if kb in (0, 32) else ar(d, 4)))
        L += mf
        if LPF and kb % 4 == 0 and kb // 4 + LPF + 1 < 8: L += touch(kb // 4 + LPF + 1)
        if kb == 23: L.append(f'buffer_load_dword v3, v2, {sr(sWS,4)}, s{t2} offen sc1')
        for k2 in after.get(kb, []):
            if k2 == 32:
                L += ['v_cmp_eq_u32 vcc, 0, v3', 's_cbranch_vccnz K3_SLOWPOLL', 'K3_POLLED:']
                STUBS.extend(['K3_SLOWPOLL:'] + poll(2, t2, 16, 3) + ['s_branch K3_POLLED'])
            L += flat(loads(k2))
    L.append('s_nop 7')
    p1 = auto_waits([], L)
    G = [f's_lshl_b32 s{t0}, s{sW}, 14', f'v_add_u32 v{TMP}, s{t0}, v{vL16}', f's_lshl_b32 s{t0}, s{sW}, 10', f'v_add_u32 v{TMP+1}, s{t0}, v{vL16}']
    vo = 2
    G += [f'v_and_b32 v{vo}, 15, v0', f'v_lshlrev_b32 v{vo}, 11, v{vo}', f'v_bfe_u32 v3, v0, 4, 1', f'v_lshl_add_u32 v{vo}, v3, 5, v{vo}', f'v_lshrrev_b32 v3, 5, v0', f'v_lshl_add_u32 v{vo}, v3, 4, v{vo}',
          f's_lshl_b32 s{t0}, s{sQ}, 2', f's_add_u32 s{t0}, s{t0}, s{sW}', f's_lshl_b32 s{t0}, s{t0}, 15', f's_lshl_b32 s{t1}, s{sM}, 7', f's_add_u32 s{t0}, s{t0}, s{t1}']
    for part in range(2):
        G += [f'ds_write_b128 v{TMP}, {ar(64*part+4*k,4)} offset:{k*1024}' for k in range(16)]
        G += ['s_waitcnt lgkmcnt(0)', 's_barrier']
        for w in range(4):
            for mt in range(4): G.append(f'ds_read_b128 {vr(12+16*w+4*mt,4)}, v{TMP+1} offset:{w*16384+mt*4096}')
        if part == 0: G += [';LGKM0', 's_barrier']
        for j in range(16): G.append(f'v_add_f32 v{12+j}, v{12+j}, v{28+j}')
        for j in range(16): G.append(f'v_add_f32 v{44+j}, v{44+j}, v{60+j}')
        for j in range(16): G.append(f'v_add_f32 v{12+j}, v{12+j}, v{44+j}')
        P0 = TMP + 4 + 8 * part
        for mt in range(4):
            G += [f'v_cvt_pk_bf16_f32 v{P0+4*(mt>>1)+2*(mt&1)}, v{12+4*mt}, v{12+4*mt+1}', f'v_cvt_pk_bf16_f32 v{P0+4*(mt>>1)+2*(mt&1)+1}, v{12+4*mt+2}, v{12+4*mt+3}']
        G.append('s_nop 1')
        for pr in range(2):
            b = P0 + 4 * pr
            G += [f'v_permlane16_swap_b32 v{b}, v{b+2}', f'v_permlane16_swap_b32 v{b+1}, v{b+3}']
        for pr in range(2):
            G.append(f'buffer_store_dwordx4 {vr(P0+4*pr,4)}, v{vo}, {sr(sOUT,4)}, s{t0} offen offset:{part*1024+pr*64}{OSF}')
    G = auto_waits([], G)
    check_trace(p1 + G, 'k3 G')
    R = p1 + stamp() + G
    if DIAG: R += stamp() + ['s_waitcnt vmcnt(0)'] + stamp() + dstore(*vG, sW, sWS, 202)
    return R + ['s_endpgm']

NR = int(os.environ.get('K3_NR', 18))
def role_g2():
    vG = (101, 102, 103)
    stamp = lambda: dstamp(*vG) if DIAG else []
    vC, vD, vR, vPa, vPv, vE = 2, 10, 14, 15, 16, 8
    sQ, sM, sS, sC, sWo, sL, sPr, sC2 = 17, 18, 19, 44, 45, 46, 47, 56
    t0, t1, t2 = sT, sT + 1, sT + 2
    def acc(qt, mt): return 4 * (4 * qt + mt)
    def F(k): return vr(20 + 4 * k, 4) if k < 20 else ar(128 + 4 * (k - 20), 4)
    def cf(n, qt): return F(6 * (n % 3) + qt) if qt < 6 else F(18 + 2 * (n % 2) + qt - 6)
    def wr(mt): return F(22 + mt)
    H = []; a = H.append
    a(f's_sub_u32 s{t2}, s2, 256'); a(f's_and_b32 s{sS}, s{t2}, 1')
    a(f's_bfe_u32 s{sQ}, s{t2}, 0x10002'); a(f's_lshl_b32 s{sQ}, s{sQ}, 3'); a(f's_bfe_u32 s{t1}, s{t2}, 0x30003'); a(f's_add_u32 s{sQ}, s{sQ}, s{t1}')
    a(f's_bfe_u32 s{sM}, s{t2}, 0x10001'); a(f's_lshl_b32 s{sM}, s{sM}, 2'); a(f's_lshr_b32 s{t1}, s{t2}, 6'); a(f's_add_u32 s{sM}, s{sM}, s{t1}')
    a(f's_mul_i32 s{t0}, s{sW}, {NR}'); a(f's_mul_i32 s{t1}, s{sW}, {32-NR}'); a(f's_add_u32 s{t1}, s{t1}, {4*NR}')
    a(f's_cmp_eq_u32 s{sS}, 0'); a(f's_cselect_b32 s{t0}, s{t0}, s{t1}'); a(f's_lshl_b32 s{t0}, s{t0}, 10')
    a(f's_mul_i32 s{sC}, s{sQ}, {8*CTX_S}'); a(f's_add_u32 s{sC}, s{sC}, {CTX}'); a(f's_mul_i32 s{sWo}, s{sM}, {4*WOA_S}'); a(f's_add_u32 s{sWo}, s{sWo}, {WOA}')
    a(f's_lshl_b32 s{t1}, s{sW}, 12'); a(f's_add_u32 s{t1}, s{t1}, {128*1024}'); a(f's_add_u32 s48, s{sC}, s{t1}'); a(f's_add_u32 s49, s{sWo}, s{t1}')
    a(f's_add_u32 s{sC}, s{sC}, s{t0}'); a(f's_add_u32 s{sWo}, s{sWo}, s{t0}'); a(f's_mov_b32 s{sC2}, s{sC}')
    a(f's_mul_i32 s{sL}, s{sW}, 18432'); a(f'v_add_u32 v{vR}, s{sL}, v{vL16}')
    for j in range(8): a(f'v_add_u32 v{vC+j}, {j*CTX_S - (1024 if j == 7 else 0)}, v{vL16}')
    for j in range(4): a(f'v_add_u32 v{vD+j}, {j*(WOA_S-1024)}, v{vL16}')
    a(f's_lshl_b32 s{sPr}, s{sQ}, 3'); a(f's_add_u32 s{sPr}, s{sPr}, s{sM}')
    a(f's_cmp_eq_u32 s{sS}, 1'); a('s_cbranch_scc1 K3_PROD')
    def lc(n, qt):
        X = [f'buffer_load_dwordx4 {cf(n,qt)}, v{vC+qt}, {sr(sWS,4)}, s{sC} offen offset:{(n%4)*1024}']
        if n % 4 == 3 and qt == 5: X.append(f's_add_u32 s{sC}, s{sC}, 4096')
        return X
    def dw(n):
        tg = f' ; tag=O{n%3}'
        return [f's_add_u32 m0, s{sL}, {(n%3)*6144}' + tg, 's_nop 0'] + [f'buffer_load_dwordx4 v{vD+j}, {sr(sWS,4)}, s{sWo} offen offset:{j*1024} lds' + tg for j in range(4)] + \
               [f's_add_u32 m0, s{sL}, {(n%3)*6144+4096}' + tg, f's_add_u32 s{sWo}, s{sWo}, 1024'] + \
               [f'buffer_load_dwordx4 v{vE+j}, {sr(sWS,4)}, s{sC2} offen offset:{j*1024} lds' + tg for j in range(2)] + [f's_add_u32 s{sC2}, s{sC2}, 1024']
    def rw(n, mt): return f'ds_read_b128 {wr(mt)}, v{vR} offset:{(n%3)*6144+mt*1024}'
    def rc(n): return [f'ds_read_b128 {cf(n,6+j)}, v{vR} offset:{(n%3)*6144+4096+j*1024}' for j in range(2)]
    def stream(N, hooks):
        L = []
        for n in range(3): L += dw(n) + flat([lc(n, q) for q in range(6)])
        L += stamp() + [';VMNEED O0'] + [rw(0, mt) for mt in range(4)] + rc(0)
        for n in range(N):
            for mt in range(4):
                for qt in range(8):
                    d = acc(qt, mt)
                    L.append(f'{MF} {ar(d,4)}, {wr(mt)}, {cf(n,qt)}, ' + ('0' if n == 0 else ar(d, 4)))
                    if mt == 3 and qt == 0 and n + 3 < N: L += dw(n + 3)
                    if mt == 3 and qt < 6 and n + 3 < N: L += lc(n + 3, qt)
                if n + 1 < N:
                    if mt == 0: L += [f';VMNEED O{(n+1)%3}'] + rc(n + 1)
                    L.append(rw(n + 1, mt))
            L += hooks.get(n, [])
        return L
    vo, vW, vRd_ = 2, 3, 4
    def red_setup():
        return [f's_lshl_b32 s{t0}, s{sW}, 14', f'v_add_u32 v{vW}, s{t0}, v{vL16}', f's_lshl_b32 s{t0}, s{sW}, 12', f'v_add_u32 v{vRd_}, s{t0}, v{vL16}']
    RG = {}
    def reduce(r):
        SUM, TA, TB = RG['S'], RG['A'], RG['B']
        X = ['s_barrier']
        for q in range(4):
            for mt in range(4): X.append(f'ds_write_b128 v{vW}, {ar(acc(2*q+r,mt),4)} offset:{(4*q+mt)*1024}')
        X += [';LGKM0', 's_barrier']
        rd = lambda w, base: [f'ds_read_b128 {vr(base[mt],4)}, v{vRd_} offset:{w*16384+mt*1024}' for mt in range(4)]
        add = lambda T: [f'v_add_f32 v{SUM[mt]+j}, v{SUM[mt]+j}, v{T[mt]+j}' for mt in range(4) for j in range(4)]
        return X + rd(0, SUM) + rd(1, TA) + rd(2, TB) + add(TA) + rd(3, TA) + add(TB) + add(TA)
    def out_setup():
        return [f'v_and_b32 v{vo}, 15, v0', f'v_lshlrev_b32 v{vo}, 11, v{vo}', 'v_bfe_u32 v5, v0, 4, 1', f'v_lshl_add_u32 v{vo}, v5, 5, v{vo}', 'v_lshrrev_b32 v5, 5, v0', f'v_lshl_add_u32 v{vo}, v5, 4, v{vo}',
                f's_lshl_b32 s{t1}, s{sQ}, 2', f's_add_u32 s{t1}, s{t1}, s{sW}', f's_lshl_b32 s{t1}, s{t1}, 16', f's_lshl_b32 s{t2}, s{sM}, 7', f's_add_u32 s{t1}, s{t1}, s{t2}']
    def out_store(r, part):
        P0 = 8 + 0 * r
        X = []
        for mt in range(4):
            sm = RG['S'][mt]
            X += [f'v_cvt_pk_bf16_f32 v{P0+4*(mt>>1)+2*(mt&1)}, v{sm}, v{sm+1}', f'v_cvt_pk_bf16_f32 v{P0+4*(mt>>1)+2*(mt&1)+1}, v{sm+2}, v{sm+3}']
        X.append('s_nop 1')
        for pr in range(2): X += [f'v_permlane16_swap_b32 v{P0+4*pr}, v{P0+4*pr+2}', f'v_permlane16_swap_b32 v{P0+4*pr+1}, v{P0+4*pr+3}']
        for pr in range(2): X.append(f'buffer_store_dwordx4 {vr(P0+4*pr,4)}, v{vo}, {sr(sOUT,4)}, s{t1} offen offset:{part*1024+pr*64}{OSF}')
        if r == 0: X.append(f's_add_u32 s{t1}, s{t1}, 32768')
        return X
    part_addr = [f's_lshl_b32 s50, s{sPr}, 15', f's_lshl_b32 s{t0}, s{sW}, 13', f's_add_u32 s50, s50, s{t0}', f's_add_u32 s50, s50, {PART}', 's_add_u32 s51, s50, 4096',
                 f's_lshl_b32 s52, s{sPr}, 7', f's_add_u32 s52, s52, {FLGA}']
    fin = lambda: (stamp() + ['s_waitcnt vmcnt(0)'] + stamp() + dstore(*vG, sW, sWS, 202) if DIAG else []) + ['s_endpgm']
    STUBS.extend(['K3_SLOWA:'] + poll(vPa, 52, 1, vPv) + ['s_branch K3_AOK'])
    hk = {NR - 4: part_addr + [f'v_mov_b32 v{vPa}, 0', f'buffer_load_dword v{vPv}, v{vPa}, {sr(sWS,4)}, s52 offen sc1']}
    xt = [6 * ((NR - 3) % 3) + k for k in range(6)] + [6 * ((NR - 2) % 3) + k for k in range(2)]
    rest = [k for k in range(20) if k not in xt]
    reg = lambda ks: [20 + 4 * k for k in ks]
    XT = reg(xt)
    hk[NR - 2] = [f'v_cmp_eq_u32 vcc, 0, v{vPv}', 's_cbranch_vccnz K3_SLOWA', 'K3_AOK:'] + \
        [f'buffer_load_dwordx4 {vr(XT[4*r+mt],4)}, v{vL16}, {sr(sWS,4)}, s{50+r} offen offset:{mt*1024} sc1' for r in range(2) for mt in range(4)]
    RG.update(S=reg(rest[0:4]), A=reg(rest[4:8]), B=reg(rest[8:12]))
    R = stream(NR, hk) + stamp() + red_setup() + out_setup()
    for r in range(2):
        R += reduce(r) + [f'v_add_f32 v{RG["S"][mt]+j}, v{RG["S"][mt]+j}, v{XT[4*r+mt]+j}' for mt in range(4) for j in range(4)] + out_store(r, 0)
    R = auto_waits([], R); check_trace(R, 'k3 red')
    NP = 32 - NR
    RG.update(S=[84, 88, 92, 96], A=[20, 24, 28, 32], B=[36, 40, 44, 48]); SUM = 84
    hk = {NP - 3: part_addr + [f's_lshl_b32 s53, s{sQ}, 6', f's_add_u32 s53, s53, {FLG}', f'v_and_b32 v{vPa}, 15, v0', f'v_lshlrev_b32 v{vPa}, 2, v{vPa}',
                               f'buffer_load_dword v{vPv}, v{vPa}, {sr(sWS,4)}, s53 offen sc1']}
    def bf(n, k):
        if n % 2 == 0: return vr(52 + 4 * k, 4) if k < 8 else ar(128 + 4 * (k - 8), 4)
        return vr(20 + 4 * k, 4) if k < 8 else vr(84 + 4 * (k - 8), 4)
    def lb(n):
        return [f'buffer_load_dwordx4 {bf(n,8+j)}, v{6+j}, {sr(sWS,4)}, s49 offen offset:{n*1024}' for j in range(4)] + \
               [f'buffer_load_dwordx4 {bf(n,q)}, v{(2 if False else 0)+BV0+q}, {sr(sWS,4)}, s48 offen offset:{n*1024} sc1' for q in range(8)]
    BV0 = 10
    lbw = lambda n: lb(n)[:4]
    lbo = lambda n: lb(n)[4:]
    P = stream(NP, hk) + stamp()
    P += [f'v_mov_b32 v100, v{vPv}', f'v_mov_b32 v19, v{vPa}'] + [f'v_add_u32 v{BV0+7}, 1024, v{vC+7}'] + [f'v_mov_b32 v{BV0+7-j}, v{vC+7-j}' for j in range(1, 8)] + [f'v_mov_b32 v{6+j}, v{BV0+j}' for j in range(4)]
    P += lbw(0) + [f'v_cmp_eq_u32 vcc, 0, v100', 's_cbranch_vccnz K3_LATEB'] + ['EARLY0:'] + ['K3_LATEB:', 's_mov_b64 s[54:55], vcc'] + red_setup()
    for r in range(2):
        P += reduce(r) + [f'buffer_store_dwordx4 {vr(SUM+4*mt,4)}, v{vL16}, {sr(sWS,4)}, s{50+r} offen offset:{mt*1024} sc1 ; tag=PS' for mt in range(4)] + ['s_nop 0']
    P += [';VMNEED PS', 's_barrier', f's_cmp_lg_u32 s{sW}, 0', 's_cbranch_scc1 K3_NOFLAG', 'v_mov_b32 v18, 1', 'v_mov_b32 v5, 0', 's_mov_b64 exec, 1', 'SKF:', 's_mov_b64 exec, -1', 'K3_NOFLAG:']
    P += ['s_cmp_lg_u64 s[54:55], 0', 's_cbranch_scc1 K3_SLOWB', 'K3_BOK:'] + lb(1)
    STUBS.extend(['K3_SLOWB:'] + poll(19, 53, 16, 100) + lbo(0) + ['s_waitcnt vmcnt(0)', 's_branch K3_BOK'])
    for n in range(4):
        for qt in range(8):
            for mt in range(4):
                d = acc(qt, mt)
                P.append(f'{MF} {ar(d,4)}, {bf(n,8+mt)}, {bf(n,qt)}, ' + ('0' if n == 0 else ar(d, 4)))
        if n + 2 < 4: P += lb(n + 2)
    P += stamp() + out_setup()
    for r in range(2): P += reduce(r) + out_store(r, 1)
    P = auto_waits([], P); check_trace(P, 'k3 prod')
    P = flat([{'SKF:': f'buffer_store_dword v18, v5, {sr(sWS,4)}, s52 offen sc1', 'EARLY0:': lbo(0)}.get(x, x) for x in P])
    return H + R + fin() + ['K3_PROD:'] + P + fin()

def gen_k3(name='k3_kernel'):
    L = []; a = L.append
    a(f'.p2align 8\n.type {name},@function\n{name}:')
    a('s_cmp_ge_u32 s2, 512'); a('s_cbranch_scc1 K3_END')
    if os.environ.get('CPF', '1') == '1': L += code_prefetch('k3_kernel', 'CODE_END', 'K3', 100, 100, 90, 4)
    a('s_load_dwordx2 s[4:5], s[0:1], 88'); a('s_load_dwordx2 s[6:7], s[0:1], 72')
    a('v_lshrrev_b32 v1, 6, v0'); a('v_and_b32 v0, 63, v0'); a(f'v_readfirstlane_b32 s{sW}, v1')
    a(f'v_lshlrev_b32 v{vL16}, 4, v0')
    a('s_waitcnt lgkmcnt(0)')
    a(f's_mov_b32 s{sWS}, s4'); a(f's_mov_b32 s{sWS+1}, s5'); a(f's_mov_b32 s{sWS+2}, 0x10000000'); a(f's_mov_b32 s{sWS+3}, 0x20000')
    a(f's_mov_b32 s{sOUT}, s6'); a(f's_mov_b32 s{sOUT+1}, s7'); a(f's_mov_b32 s{sOUT+2}, 0x400000'); a(f's_mov_b32 s{sOUT+3}, 0x20000')
    if DIAG: a('s_mov_b32 s72, 0'); a('v_mov_b32 v101, 0'); a('v_mov_b32 v103, 0'); L += dstamp(101, 102, 103)
    a('s_cmp_ge_u32 s2, 256'); a('s_cbranch_scc1 K3_G')
    L += role_b()
    a('K3_G:')
    if GPRIO: a('s_setprio 1')
    L += role_g2() if G2 else role_g()
    a('K3_END:'); a('s_endpgm')
    L += STUBS
    return L, kdesc(name, 256, 104), f'; @launch kernel={name} grid=(512,1,1) block=(256,1,1) lds={81920 if G2 else 65536}'
```

```python
import os
M = 1 << 20
KWS, VWS, BWS, CTX, WOA, PART, FLG = 0, 16 * M, 32 * M, 56 * M, 80 * M, 88 * M, 110 * M
CTX_S = 144 * 1024 + int(os.environ.get("L_PAD", 0))
WOA_S = CTX_S
OB, OB_S = CTX + 128 * 1024, CTX_S
WOB, WOB_S = WOA + 128 * 1024, WOA_S
TS = 576 * 1024
```

```python
from lib import *
from layout import *
import os, struct, math
def f32(x): return '0x%08x' % struct.unpack('<I', struct.pack('<f', x))[0]
DIAG = os.environ.get('DIAG')
FUSE = int(os.environ.get('FUSE', 1))
Q0PF = int(os.environ.get('K1_Q0PF', 0)) and FUSE
FUSE3 = int(os.environ.get('FUSE3', 0))
sSig = 88
sDB = 80
KVF = os.environ.get('K2_KVF', ' sc1')
SF = os.environ.get('K2_SF', ' sc1')
THR = 2.0 ** float(os.environ.get('THR', 40.0))
NEGBIG = -1.0e30
D = int(os.environ.get('K2_D', 24))
MF = 'v_mfma_f32_16x16x32_bf16'
vL16, vRd, vq, vBig, vd, vl, vt, vT = 1, 2, 4, 5, 6, 8, 12, 16
NM = 20
vDl = 36
vDG = 44
S0, P0, TMPV, Q0, TMPB = 48, 112, 144, 176, 240
O0, FR = 0, 128
sWS, sX, sWQ, sWO, sWB = 8, 12, 16, 60, 64
sW, sH, sI, sK, sV, sSR, sSW, sCnt, sKc, sMq, sRet, sT, sMk, sW2, sW4 = 20, 21, 22, 23, 24, 25, 26, 27, 28, 29, 30, 32, 40, 48, 49
sW2K, sW4K = 58, 59
sFa, sFw = 92, 93
sK2, sV2 = 84, 86
sXa, sXb, sWo, sXs = 50, 51, 52, 53

def stamp(): return dstamp(vDG, vDG + 1, vDG + 2) if DIAG else []
def Sr(par, idx): return S0 + 32 * par + 4 * idx
def Pr(par, u): return P0 + 16 * par + 4 * u
def Or(qt, dt): return O0 + 32 * qt + 4 * dt
def Qr(qt, db): return Q0 + 16 * qt + 4 * db
def slot(g): return FR + 4 * ((g // 2) % 16)
def tq(t, idx): return (idx & 3) if t == 'c' else 2 + (idx & 1)
def tkt(t, idx): return (idx >> 2) if t == 'c' else (idx >> 1)
def tP(t, idx):
    if t == 'c': return idx & 3, idx >> 2
    kt = idx >> 1
    return 2 * (kt >> 1) + (idx & 1), kt & 1

def pv_frags(t):
    if t == 'c': return [(4 * dt, 4 * dt, dt * 1024) for dt in range(8)]
    return [(4 * dt + 2 * kb, 4 * dt + kb, kb * 8192 + dt * 1024) for dt in range(8) for kb in range(2)]
def koff(kt, db): return (kt >> 1) * 8192 + (2 * db + (kt & 1)) * 1024
def qk_frags(t):
    if t == 'c': return [(34 + 16 * kt + 4 * db, 32 + 16 * kt + db, 16384 + koff(kt, db)) for kt in range(2) for db in range(4)]
    return [(32 + 8 * kt + 2 * db, 32 + 8 * kt + db, 16384 + koff(kt, db)) for kt in range(4) for db in range(4)]
def rd(g, off, par): return f'ds_read_b128 {ar(slot(g),4)}, v{vRd+par} offset:{off}'

def pv_mfmas(t, par):
    out = []
    for dt in range(8):
        for x in range(4):
            if t == 'c': qt, u, g = x, x, 4 * dt
            else:
                q, kb = x >> 1, x & 1
                qt, u, g = 2 + q, 2 * kb + q, 4 * dt + 2 * kb
            o = Or(qt, dt)
            out.append(f'{MF} {ar(o,4)}, {ar(slot(g),4)}, {vr(Pr(par,u),4)}, {ar(o,4)}')
    return out
def qk_mfmas(t, par, czero=False, fr=None):
    out = []
    nkt, nq = (2, 4) if t == 'c' else (4, 2)
    for kt in range(nkt):
        for x in range(nq):
            for db in range(4):
                g = 32 + (16 * kt + 4 * db + 2 if t == 'c' else 8 * kt + 2 * db)
                f = ar(slot(g), 4) if fr is None else fr(kt, db)
                idx = nq * kt + x; qt = tq(t, idx); s = Sr(par, idx)
                c = vr(s, 4) if db else ('0' if czero else vr(NM + 4 * qt, 4))
                out.append(f'{MF} {vr(s,4)}, {f}, {vr(Qr(qt,db),4)}, {c}')
    return out

sRet2 = 78
MASKS = set()
def mask_call(par, t):
    MASKS.add((par, t))
    return [f's_call_b64 {sr(sRet2,2)}, K2_MASK_{par}{t}']
def mask_routine(par, t):
    n = f'K2_MASK_{par}{t}'
    L = [f'{n}:', f's_ashr_i32 s{sT+4}, s{sMq}, 5', f's_sub_i32 s{sT+4}, s{sT+4}, s{sW}']
    for b in range(1 if t == 'c' else 2):
        T = (lambda kt, q: Sr(par, 4 * kt + q)) if t == 'c' else (lambda kt, q, b=b: Sr(par, 2 * (2 * b + kt) + q))
        L += [f's_cmp_lt_i32 s{sT+4}, {-b}', f's_cbranch_scc1 {n}_e{b}', f's_cmp_eq_i32 s{sT+4}, {-b}', f's_cbranch_scc1 {n}_d{b}']
        for kt, q in ((0, 0), (0, 1), (1, 1)): L += [f'v_mov_b32 v{T(kt,q)+j}, v{vBig}' for j in range(4)]
        L += [f's_branch {n}_f{b}', f'{n}_d{b}:']
        for kt, q in ((0, 0), (1, 1)): L += [f'v_cndmask_b32 v{T(kt,q)+j}, v{T(kt,q)+j}, v{vBig}, {sr(sMk+2*j,2)}' for j in range(4)]
        L += [f'{n}_f{b}:'] + [f'v_mov_b32 v{T(1,0)+j}, v{vBig}' for j in range(4)] + [f'{n}_e{b}:']
    return L + [f's_setpc_b64 {sr(sRet2,2)}']

def exp_ops(par, t):
    L = []; seen = set()
    def tail(idx):
        s = Sr(par, idx); qt = tq(t, idx); u, h = tP(t, idx); a = vt + qt
        if qt not in seen:
            seen.add(qt); x = [f'v_add_f32 v{a}, v{s}, v{s+1}']
        else: x = [f'v_add_f32 v{a}, v{a}, v{s}', f'v_add_f32 v{a}, v{a}, v{s+1}']
        p = Pr(par, u) + 2 * h
        return x + [f'v_cvt_pk_bf16_f32 v{p}, v{s}, v{s+1}', f'v_add_f32 v{a}, v{a}, v{s+2}', f'v_add_f32 v{a}, v{a}, v{s+3}', f'v_cvt_pk_bf16_f32 v{p+1}, v{s+2}, v{s+3}']
    prev = None
    for idx in range(8):
        s = Sr(par, idx)
        e = [f'v_exp_f32 v{s+j}, v{s+j}' for j in range(4)]
        tl = tail(prev) if prev is not None else []
        L += [e[0]] + tl[:2] + [e[1]] + tl[2:4] + [e[2]] + tl[4:] + [e[3]]
        prev = idx
    L += ['s_nop 0'] + tail(prev)
    return L
def lupd(t): return [f'v_add_f32 v{vl+q}, v{vl+q}, v{vt+q}' for q in ((0, 1, 2, 3) if t == 'c' else (2, 3))]
def chk(t):
    if t == 'c': L = [f'v_max3_f32 v{vT}, v{vt}, v{vt+1}, v{vt+2}', f'v_max_f32 v{vT}, v{vT}, v{vt+3}']
    else: L = [f'v_max_f32 v{vT}, v{vt+2}, v{vt+3}']
    return L + [f'v_cmp_nge_f32 vcc, {f32(THR)}, v{vT}']

def adv64(p, x): return [f's_add_u32 s{p}, s{p}, {x}', f's_addc_u32 s{p+1}, s{p+1}, 0']
def dma_part(kind, t, tag):
    so = sV2 if kind == 'V' else sK2
    w = (sW4 if t == 's' else sW2) if kind == 'V' else (sW4K if t == 's' else sW2K)
    n = 4 if t == 's' else 2
    items = [[f's_add_u32 m0, s{sSW}, s{w} ; tag={tag}']]
    for q in range(n):
        items.append([f'global_load_lds_dwordx4 v{vL16}, {sr(so,2)} offset:{q*1024}{KVF} ; tag={tag}'])
    items.append(adv64(so, n * 4096))
    return items
def flat(L):
    o = []
    for x in L:
        if isinstance(x, list): o += flat(x)
        else: o.append(x)
    return o

STUBS = []
def body(par, pv, sm, qk, nxt_pv, vload, kload, mask, uid):
    psm = par ^ 1
    mf = []
    if pv: mf += pv_mfmas(pv, par)
    if qk: mf += qk_mfmas(qk, par)
    ng = len(mf)
    pre = {}
    def P(g, x): pre.setdefault(g, []).extend(x if isinstance(x, list) else [x])
    frs = (pv_frags(pv) if pv else []) + (qk_frags(qk) if qk else [])
    for g, fu, off in frs:
        if g - D >= 0: P(g - D, rd(g, off, par))
    for g0 in range(0, ng, 8):
        need = [ar(slot(g), 4) for g, fu, off in frs if g0 <= fu < g0 + 8]
        if not need: continue
        P(g0 - 1 if g0 else (0, 'before'), ';NEED ' + ' '.join(need))
    if nxt_pv:
        gb = ng - D
        P(gb - 3, [f';VMNEED U{par^1}', 's_barrier'])
        for g, fu, off in pv_frags(nxt_pv):
            if g < D: P(ng + g - D, rd(g, off, par ^ 1))
    items = []
    if vload: items += dma_part('V', vload, f'U{par}')
    if kload: items += dma_part('K', kload, f'U{par}')
    if nxt_pv: items += [[f's_add_u32 s{sSR}, s{sSR}, 32768'], [f's_and_b32 s{sSR}, s{sSR}, 0x1ffff']]
    if vload or kload: items += [[f's_add_u32 s{sSW}, s{sSW}, 32768'], [f's_and_b32 s{sSW}, s{sSW}, 0x1ffff']]
    if sm:
        items += [[f's_add_u32 s{sKc}, s{sKc}, {8192 if pv == "c" else 16384}']]
        if mask is None: items += [[f's_mov_b32 s{sMq}, -4096']]
        else: P(3, [f's_mov_b32 s{sMq}, {32*mask}'] + mask_call(psm, sm))
    free = [g for g in range(1, ng) if g not in pre and not (g == ng - 1)]
    lim = (ng - D - 2) if nxt_pv else ng - 2
    gi = 0; lastd = -9
    for it in items:
        isd = it[0].startswith(('buffer', 'global'))
        while gi < len(free) and (isd and free[gi] - lastd < DSP): gi += 1
        g = free[gi]; gi += 1
        if isd:
            lastd = g
        P(g, it)
    Pq = []; Eq = []
    if nxt_pv: Pq.append(f'v_add_u32 v{vRd+(par^1)}, s{sSR}, v{vL16}')
    if pv: Pq += lupd(pv)
    if sm:
        for x in exp_ops(psm, sm):
            if x.startswith('v_exp'): Eq.append(x)
            elif x.startswith('v_'): Pq.append(x)
        NL = int(os.environ.get('K2_NL', 6))
        cv = [k for k, x in enumerate(Pq) if x.startswith('v_cvt')][-NL:]
        late = [Pq[k] for k in cv]
        Pq = [x for k, x in enumerate(Pq) if k not in cv] + chk(sm) + late
    cap = {}
    for g in range(ng):
        n = sum(2 if x.startswith(('buffer', 'ds_', 'global')) else 1 for x in pre.get(g, []))
        cap[g] = max(0, 2 - max(0, n - 1))
    last = ng - 1 if qk else ng - 2
    total = 2 * len(Eq) + len(Pq)
    def sched(extra):
        cp = dict(cap)
        for k in range(extra): cp[(k * (last + 1) // max(extra, 1)) % (last + 1)] += 1
        val = {}; pi = ei = 0
        eiss = {}
        ereg = [Ins(x).w for x in Eq]; allE = set().union(*ereg) if ereg else set()
        pend_mask = {}
        for k, x in enumerate(Pq):
            if x.startswith('v_cndmask'):
                for r in Ins(x).w: pend_mask[r] = k
        for g in range(last + 1):
            sl = cp[g]
            while sl > 0:
                if ei < len(Eq) and sl >= 2 and (mask is None or g >= 3):
                    val.setdefault(g, []).append(Eq[ei])
                    for r in ereg[ei]: eiss[r] = g
                    ei += 1; sl -= 2; continue
                if pi < len(Pq):
                    x = Pq[pi]; ins = Ins(x)
                    ok = x.startswith('v_cndmask') or all(eiss.get(r, 999) < g for r in ins.r & allE)
                    if ok:
                        val.setdefault(g, []).append(x); pi += 1; sl -= 1; continue
                break
        return val, (len(Eq) - ei) + (len(Pq) - pi)
    extra = 0
    while True:
        val, left = sched(extra)
        if left == 0: break
        extra += 1
    if os.environ.get('VERB'): print(uid, 'valu', total, 'avail', sum(cap[g] for g in range(last + 1)), 'extra', extra)
    if sm:
        pre.setdefault(ng - 1, []).extend([f's_cbranch_vccnz K2_S_{uid}', f'K2_R_{uid}:'])
        STUBS.extend([f'K2_S_{uid}:', f's_call_b64 {sr(sRet,2)}, K2_RARE_{psm}{sm}{qk or "n"}', f's_branch K2_R_{uid}'])
        RARES.add((psm, sm, qk or 'n'))
    return weave(mf, pre, val)
RARES = set()
DSP = int(os.environ.get('K2_DSP', 3))

def xlane(op, r, tmp):
    return [f'v_mov_b32 v{tmp}, v{r}', 's_nop 1', f'v_permlane32_swap_b32 v{r}, v{tmp}', f'{op} v{r}, v{r}, v{tmp}',
            f'v_mov_b32 v{tmp}, v{r}', 's_nop 1', f'v_permlane16_swap_b32 v{r}, v{tmp}', f'{op} v{r}, v{r}, v{tmp}']
def deltas(par, t, clamp):
    qs = (0, 1, 2, 3) if t == 'c' else (2, 3)
    ch = []
    for q in qs:
        regs = [Sr(par, i) + j for i in range(8) if tq(t, i) == q for j in range(4)]
        c = [f'v_max_f32 v{vDl+q}, v{regs[0]}, v{regs[1]}']
        for k in range(2, len(regs), 2): c.append(f'v_max3_f32 v{vDl+q}, v{vDl+q}, v{regs[k]}, v{regs[k+1]}')
        tmp = vDl + 4 + q
        for sw in ('32', '16'):
            c += [f'v_mov_b32 v{tmp}, v{vDl+q}', f'v_permlane{sw}_swap_b32 v{vDl+q}, v{tmp}', f'v_max_f32 v{vDl+q}, v{vDl+q}, v{tmp}']
        c.append(f'v_ceil_f32 v{vDl+q}, v{vDl+q}')
        if clamp: c.append(f'v_max_f32 v{vDl+q}, 0, v{vDl+q}')
        ch.append(c)
    L = []
    for k in range(len(ch[0])):
        if len(qs) == 2 and 'permlane' in ch[0][k]: L.append('s_nop 0')
        for c in ch: L.append(c[k])
    return L
def sub_tiles(par, t): return [f'v_sub_f32 v{Sr(par,i)+j}, v{Sr(par,i)+j}, v{vDl+tq(t,i)}' for i in range(8) for j in range(4)]

def rare(par, t, tn):
    L = [f'K2_RARE_{par}{t}{tn}:', 's_nop 7', 's_nop 7']
    nkt = 2 if t == 'c' else 4
    R = []
    mf = qk_mfmas(t, par, fr=lambda kt, db: vr(TMPV + 16 * (kt & 1) + 4 * db, 4))
    per = len(mf) // nkt
    for k0 in range(0, nkt, 2):
        R.append(f's_add_u32 s{sT+4}, s{sKc}, {k0*4096}'); R.append(f's_add_u32 s{sT+5}, s{sT+4}, 4096')
        for kt in range(2):
            for db in range(4):
                o = (2 * db + kt) * 1024
                R.append(f'buffer_load_dwordx4 {vr(TMPV+16*kt+4*db,4)}, v{vL16}, {sr(sWS,4)}, s{sT+4+(o>>12)} offen offset:{o&4095}{KVF}')
        R.append('s_waitcnt vmcnt(0)')
        R += mf[per*k0:per*(k0+2)] + ['s_nop 7']
    R += mask_call(par, t) + deltas(par, t, True)
    if t == 's': R += [f'v_mov_b32 v{vDl}, 0', f'v_mov_b32 v{vDl+1}, 0']
    R += sub_tiles(par, t)
    if tn != 'n': R += sub_tiles(par ^ 1, tn)
    for q in range(4):
        for j in range(4): R.append(f'v_sub_f32 v{NM+4*q+j}, v{NM+4*q+j}, v{vDl+q}')
        R.append(f'v_exp_f32 v{vDl+4+q}, -v{vDl+q}')
    R += exp_ops(par, t)
    for q in range(4): R.append(f'v_mul_f32 v{vl+q}, v{vl+q}, v{vDl+4+q}')
    R += [f's_branch K2_RESC_{t}']
    check_trace(R, f'rare{par}{t}{tn}', bool(os.environ.get('VERB')))
    return L + R

def rescale_o():
    R = []
    for q in range(4):
        if q in (0, 2): R.append('K2_RESC_c:' if q == 0 else 'K2_RESC_s:')
        for j0 in range(0, 32, 8):
            for j in range(8): R.append(f'v_accvgpr_read_b32 v{TMPV+j}, a{Or(q,0)+j0+j}')
            for j in range(8): R.append(f'v_mul_f32 v{TMPV+j}, v{TMPV+j}, v{vDl+4+q}')
            for j in range(8): R.append(f'v_accvgpr_write_b32 a{Or(q,0)+j0+j}, v{TMPV+j}')
    return R + ['s_nop 1', f's_setpc_b64 {sr(sRet,2)}']

K = 1024
XS = [[96*K, 104*K, 32*K, 40*K], [8*K, 24*K, 88*K, 120*K], [0, 16*K, 80*K, 112*K]]
WSL = [128*K, 64*K, 48*K]
vXd, vWd, vXr, vWr = 208, 212, 216, 222
QACC = 48
XF, WFq = 0, 64
def qacc(ft, tt): return QACC + 4 * (4 * ft + tt)
def xf(c, kbl, tt): return XF + 32 * (c & 1) + 16 * kbl + 4 * tt
def wf(c, kbl, ft): return WFq + 64 * (c & 1) + 32 * kbl + 4 * ft
sCk = 56
QROT = int(os.environ.get('K2_QROT', 0))
def q_dma(c):
    sl = c % 3
    it = []
    for ab, so in enumerate((sXa, sXb)):
        it.append([f's_add_u32 m0, s{sXs+sl}, {ab*4096} ; tag=C{c}', f's_add_u32 s{sT}, s{so}, s{sCk}'])
        for q in range(4): it.append([f'buffer_load_dwordx4 v{vXd+q}, {sr(sX,4)}, s{sT} offen offset:{q*1024} lds ; tag=C{c}'])
    it.append([f's_lshl_b32 s{sT}, s{sCk}, 12', f's_add_u32 m0, s{sW4}, {WSL[sl]} ; tag=C{c}', f's_add_u32 s{sT}, s{sT}, s{sWo}'])
    for q in range(4): it.append([f'buffer_load_dwordx4 v{vWd+q}, {sr(sWQ,4)}, s{sT} offen offset:{q*1024} lds ; tag=C{c}'])
    it[-1] += [f's_add_u32 s{sCk}, s{sCk}, 128', f's_and_b32 s{sCk}, s{sCk}, 1023']
    return it
def q_reads(c):
    sl = c % 3
    L = [f'ds_read_b128 {ar(xf(c,kbl,tt),4)}, v{vXr+2*sl+kbl} offset:{tt*2048}' for tt in range(4) for kbl in range(2)]
    W = []
    for ft in range(8):
        for kbl in range(2):
            for p in range(2):
                vb, off = wsl_addr(sl)
                W.append(f'ds_read_b64_tr_b16 {ar(wf(c,kbl,ft)+2*p,2)}, v{vWr+ft+8*vb} offset:{off + (32 * kbl + 4 * p) * 256}')
    return W[:4] + L + W[4:]
def wsl_addr(sl):
    a = WSL[sl]
    return (0, a - WB0) if a < WB1 else (1, a - WB1)
WB0, WB1 = 48 * K, 128 * K
def q_cvt(db):
    cv = []
    for tt in range(4):
        t0, t1 = qacc(2 * db, tt), qacc(2 * db + 1, tt); dst = Qr(tt, db)
        cv += [f'v_cvt_pk_bf16_f32 v{dst}, v{t0}, v{t0+1}', f'v_cvt_pk_bf16_f32 v{dst+1}, v{t0+2}, v{t0+3}', f'v_cvt_pk_bf16_f32 v{dst+2}, v{t1}, v{t1+1}', f'v_cvt_pk_bf16_f32 v{dst+3}, v{t1+2}, v{t1+3}']
    return cv
def q_setup():
    t = [240, 241, 242, 243, 244]
    L = []
    a = L.append
    a(f's_lshl_b32 s{sXa}, s{sI}, 17'); a(f's_lshl_b32 s{sT}, s{sW}, 15'); a(f's_sub_u32 s{sXb}, {15*128*1024}, s{sXa}')
    a(f's_add_u32 s{sXa}, s{sXa}, s{sT}'); a(f's_add_u32 s{sXb}, s{sXb}, s{sT}')
    a(f's_lshl_b32 s{sWo}, s{sH}, 8'); a(f's_lshl_b32 s{sT}, s{sW}, 17'); a(f's_add_u32 s{sWo}, s{sWo}, s{sT}')
    a(f's_lshl_b32 s{sCk}, s{sI}, 7' if QROT else f's_mov_b32 s{sCk}, 0')
    for sl in range(3):
        a(f's_mov_b32 s{sXs+sl}, {XS[sl][0]}')
        for w in range(1, 4):
            a(f's_cmp_eq_u32 s{sW}, {w}'); a(f's_cselect_b32 s{sXs+sl}, {XS[sl][w]}, s{sXs+sl}')
    a(f'v_lshrrev_b32 v{t[0]}, 3, v0'); a(f'v_lshlrev_b32 v{t[1]}, 10, v{t[0]}')
    a(f'v_lshrrev_b32 v{t[2]}, 4, v0'); a(f'v_and_b32 v{t[3]}, 7, v0'); a(f'v_xor_b32 v{t[2]}, v{t[2]}, v{t[3]}')
    for q in range(4):
        a(f'v_xor_b32 v{t[4]}, {4*(q&1)}, v{t[2]}'); a(f'v_lshl_add_u32 v{t[4]}, v{t[4]}, 4, v{t[1]}'); a(f'v_add_u32 v{vXd+q}, {q*7168}, v{t[4]}')
    a(f'v_lshrrev_b32 v{t[0]}, 4, v0'); a(f'v_lshlrev_b32 v{t[1]}, 13, v{t[0]}'); a(f'v_lshlrev_b32 v{t[0]}, 1, v{t[0]}')
    a(f'v_and_b32 v{t[2]}, 15, v0'); a(f'v_xor_b32 v{t[2]}, v{t[2]}, v{t[0]}')
    for q in range(4):
        a(f'v_xor_b32 v{t[4]}, {8*(q>>1)}, v{t[2]}'); a(f'v_lshl_add_u32 v{t[4]}, v{t[4]}, 4, v{t[1]}'); a(f'v_add_u32 v{vWd+q}, {q*(4*8192-1024)}, v{t[4]}')
    return L
def q_setup2():
    t = [240, 241, 242, 243, 244]
    L = []; a = L.append
    a(f'v_and_b32 v{t[0]}, 15, v0'); a(f'v_lshrrev_b32 v{t[1]}, 4, v0'); a(f'v_bfe_u32 v{t[2]}, v0, 1, 3'); a(f'v_lshlrev_b32 v{t[0]}, 7, v{t[0]}')
    for kbl in range(2):
        a(f'v_add_u32 v{t[4]}, {4*kbl}, v{t[1]}'); a(f'v_xor_b32 v{t[4]}, v{t[4]}, v{t[2]}'); a(f'v_lshl_add_u32 v{t[4]}, v{t[4]}, 4, v{t[0]}')
        for sl in range(3): a(f'v_add_u32 v{vXr+2*sl+kbl}, s{sXs+sl}, v{t[4]}')
    a(f'v_bfe_u32 v{t[0]}, v0, 2, 2'); a(f'v_lshl_add_u32 v{t[1]}, v{t[1]}, 3, v{t[0]}'); a(f'v_lshlrev_b32 v{t[1]}, 8, v{t[1]}')
    a(f'v_and_b32 v{t[2]}, 3, v0'); a(f'v_lshl_add_u32 v{t[1]}, v{t[2]}, 3, v{t[1]}'); a(f'v_bfe_u32 v{t[2]}, v0, 2, 3')
    for ft in range(8):
        a(f'v_xor_b32 v{t[3]}, {ft}, v{t[2]}'); a(f'v_lshl_add_u32 v{t[3]}, v{t[3]}, 5, v{t[1]}')
        a(f'v_add_u32 v{vWr+ft}, {WB0}, v{t[3]}'); a(f'v_add_u32 v{vWr+8+ft}, {WB1}, v{t[3]}')
    return L

def remap_i(dst, t0, t1):
    L = [f's_lshr_b32 s{dst}, s2, 5']
    if FUSE and os.environ.get('K2_REMAP', '0') == '1':
        L += [f's_bfe_u32 s{t0}, s2, 0x20001', f's_mov_b32 s{t1}, 0x76543210', f's_cmp_eq_u32 s{t0}, 1', f's_cselect_b32 s{t1}, 0x76503214, s{t1}',
              f's_cmp_eq_u32 s{t0}, 3', f's_cselect_b32 s{t1}, 0x01765423, s{t1}', f's_lshl_b32 s{dst}, s{dst}, 2', f's_lshr_b32 s{dst}, s{t1}, s{dst}', f's_and_b32 s{dst}, s{dst}, 7']
    return L
def q0_early(sw, srdx, srdw):
    a_, b_, c_, d_ = 90, 91, 92, 93
    t = [100, 101, 102, 103, 104]
    L = [f's_mov_b32 s{srdx+2}, 0x200000', f's_mov_b32 s{srdw+2}, 0x400000'] + remap_i(a_, b_, c_)
    L += [f's_lshl_b32 s{a_}, s{a_}, 17', f's_lshl_b32 s{b_}, s{sw}, 15', f's_sub_u32 s{c_}, {15*128*1024}, s{a_}', f's_add_u32 s{a_}, s{a_}, s{b_}', f's_add_u32 s{c_}, s{c_}, s{b_}',
          f's_mov_b32 s{d_}, {XS[0][0]}']
    for w in range(1, 4): L += [f's_cmp_eq_u32 s{sw}, {w}', f's_cselect_b32 s{d_}, {XS[0][w]}, s{d_}']
    L += [f'v_lshrrev_b32 v{t[0]}, 3, v0', f'v_lshlrev_b32 v{t[1]}, 10, v{t[0]}', f'v_lshrrev_b32 v{t[2]}, 4, v0', f'v_and_b32 v{t[3]}, 7, v0', f'v_xor_b32 v{t[2]}, v{t[2]}, v{t[3]}']
    for q in range(4): L += [f'v_xor_b32 v{t[4]}, {4*(q&1)}, v{t[2]}', f'v_lshl_add_u32 v{t[4]}, v{t[4]}, 4, v{t[1]}', f'v_add_u32 v{105+q}, {q*7168}, v{t[4]}']
    for ab, so in enumerate((a_, c_)):
        L += [f's_add_u32 m0, s{d_}, {ab*4096}', 's_nop 0'] + [f'buffer_load_dwordx4 v{105+q}, {sr(srdx,4)}, s{so} offen offset:{q*1024} lds' for q in range(4)]
    L += [f's_and_b32 s{a_}, s2, 31', f's_lshl_b32 s{a_}, s{a_}, 8', f's_lshl_b32 s{b_}, s{sw}, 17', f's_add_u32 s{a_}, s{a_}, s{b_}', f's_lshl_b32 s{b_}, s{sw}, 12', f's_add_u32 m0, s{b_}, {WSL[0]}',
          f'v_lshrrev_b32 v{t[0]}, 4, v0', f'v_lshlrev_b32 v{t[1]}, 13, v{t[0]}', f'v_lshlrev_b32 v{t[0]}, 1, v{t[0]}', f'v_and_b32 v{t[2]}, 15, v0', f'v_xor_b32 v{t[2]}, v{t[2]}, v{t[0]}']
    for q in range(4):
        L += [f'v_xor_b32 v{t[4]}, {8*(q>>1)}, v{t[2]}', f'v_lshl_add_u32 v{t[4]}, v{t[4]}, 4, v{t[1]}', f'v_add_u32 v{t[4]}, {q*(4*8192-1024)}, v{t[4]}',
              f'buffer_load_dwordx4 v{t[4]}, {sr(srdw,4)}, s{a_} offen offset:{q*1024} lds']
    return L

def a_loads(which):
    if which == 0:
        return [[f's_mov_b32 s{sSW}, 65536']] + dma_part('K', 'c', 'K0') + [[f's_mov_b32 s{sSW}, 98304']] + dma_part('K', 'c', 'K0') + \
               [[f's_mov_b32 s{sSW}, 0']] + dma_part('V', 'c', 'U0') + dma_part('K', 'c', 'U0')
    return [[f's_mov_b32 s{sSW}, 32768']] + dma_part('V', 'c', 'U1') + dma_part('K', 'c', 'U1') + [[f's_mov_b32 s{sSW}, 65536'], [f's_mov_b32 s{sSR}, 32768']]

def wo_dma_a():
    t = [240, 241, 242, 243]
    it = [[f'v_lshrrev_b32 v{t[0]}, 5, v0', f'v_bfe_u32 v{t[1]}, v0, 1, 4', f'v_xor_b32 v{t[1]}, v{t[1]}, v{t[0]}', f'v_and_b32 v{t[2]}, 1, v0', f'v_lshlrev_b32 v{t[2]}, 4, v{t[2]}',
           f'v_lshl_add_u32 v{t[2]}, v{t[0]}, 10, v{t[2]}'],
          [f's_lshr_b32 s{sT+4}, s2, 1', f's_lshl_b32 s{sT+4}, s{sT+4}, 15', f's_and_b32 s{sT+5}, s2, 1', f's_lshl_b32 s{sT+5}, s{sT+5}, 9'],
          [f's_add_u32 s{sT+4}, s{sT+4}, s{sT+5}', f's_lshl_b32 s{sT+5}, s{sW}, 13', f's_add_u32 s{sT+4}, s{sT+4}, s{sT+5}']]
    for q in range(4):
        it.append([f'v_xor_b32 v{t[3]}, {2*q}, v{t[1]}', f'v_lshl_add_u32 v{t[3]}, v{t[3]}, 5, v{t[2]}', f's_add_u32 m0, s{sW4}, {128*K} ; tag=WO', f's_add_u32 s{sT+5}, s{sT+4}, {q*1024}',
                   f'buffer_load_dwordx4 v{t[3]}, {sr(sWO,4)}, s{sT+5} offen offset:{q*1024} lds ; tag=WO'])
    return it
def wo_dma_b():
    t = [240, 241]
    return [f'v_lshrrev_b32 v{t[0]}, 2, v0', f'v_lshlrev_b32 v{t[0]}, 10, v{t[0]}', f'v_and_b32 v{t[1]}, 3, v0', f'v_lshl_add_u32 v{t[0]}, v{t[1]}, 4, v{t[0]}',
            f's_lshr_b32 s{sT+4}, s2, 4', f's_lshl_b32 s{sT+4}, s{sT+4}, 15', f's_and_b32 s{sT+5}, s2, 15', f's_lshl_b32 s{sT+5}, s{sT+5}, 6', f's_add_u32 s{sT+4}, s{sT+4}, s{sT+5}',
            f's_and_b32 s{sT+5}, s{sW}, 1', f's_lshl_b32 s{sT+6}, s{sT+5}, 14', f's_add_u32 s{sT+4}, s{sT+4}, s{sT+6}', f's_lshl_b32 s{sT+5}, s{sT+5}, 10',
            f's_add_u32 m0, s{sT+5}, {144*K} ; tag=WO', 's_nop 0', f'buffer_load_dwordx4 v{t[0]}, {sr(sWB,4)}, s{sT+4} offen lds ; tag=WO']
def wo_fin():
    R = TMPV; a0, a1, a2 = TMPV + 20, TMPV + 21, TMPV + 22; t0, t1 = sT + 4, sT + 5
    L = [f'v_lshrrev_b32 v{a0}, 2, v0', f'v_and_b32 v{a1}, 3, v0', f'v_lshlrev_b32 v{a1}, 3, v{a1}', f'v_lshl_add_u32 v{a2}, v{a0}, 6, v{a1}', f'v_lshl_add_u32 v{a1}, v{a0}, 9, v{a1}',
         f'v_add_u32 v{a1}, {128*K}, v{a1}', f'v_and_b32 v{a0}, 7, v{a0}', f's_lshl_b32 s{t0}, s{sW}, 2', f'v_xor_b32 v{a0}, s{t0}, v{a0}',
         f's_and_b32 s{t0}, s{sW}, 1', f's_lshl_b32 s{t0}, s{t0}, 5', f's_add_u32 s{t0}, s{t0}, {144*K}', f'v_add_u32 v{a2}, s{t0}, v{a2}']
    for x in range(4):
        L += [f'v_xor_b32 v{a0+4+x}, {x}, v{a0}', f'v_lshl_add_u32 v{a0+4+x}, v{a0+4+x}, 5, v{a1}']
        for p in range(2): L.append(f'ds_read_b64_tr_b16 {vr(R+4*x+2*p,2)}, v{a0+4+x} offset:{p*8192}')
    for p in range(2): L.append(f'ds_read_b64_tr_b16 {vr(R+16+2*p,2)}, v{a2} offset:{p*1024}')
    L += [f's_and_b32 s{t0}, s2, 1', f's_lshl_b32 s{t0}, s{t0}, 2', f's_add_u32 s{t0}, s{t0}, s{sW}', f's_mul_i32 s{t0}, s{t0}, {TS}', f's_lshr_b32 s{t1}, s2, 1', f's_lshl_b32 s{t1}, s{t1}, 12',
          f's_add_u32 s{t0}, s{t0}, s{t1}', f's_add_u32 s{t0}, s{t0}, {WOA}']
    for x in range(4): L += [f'buffer_store_dwordx4 {vr(R+4*x,4)}, v{vL16}, {sr(sWS,4)}, s{t0} offen offset:{x*1024}{SF}']
    L += [f's_bfe_u32 s{t0}, s2, 0x30001', f's_mul_i32 s{t0}, s{t0}, {TS}', f's_and_b32 s{t1}, s2, 1', f's_lshl_b32 s{t1}, s{t1}, 11', f's_add_u32 s{t0}, s{t0}, s{t1}',
          f's_and_b32 s{t1}, s{sW}, 1', f's_lshl_b32 s{t1}, s{t1}, 10', f's_add_u32 s{t0}, s{t0}, s{t1}',
          f's_lshr_b32 s{t1}, s2, 4', f's_lshl_b32 s{t1}, s{t1}, 12', f's_add_u32 s{t0}, s{t0}, s{t1}', f's_add_u32 s{t0}, s{t0}, {WOA + 128*4096}',
          f'buffer_store_dwordx4 {vr(R+16,4)}, v{vL16}, {sr(sWS,4)}, s{t0} offen{SF}', 's_nop 0']
    return L

def qproj():
    QPF = int(os.environ.get('K2_QPF', 0))
    pf = [[f'v_lshlrev_b32 v245, 10, v0', f's_lshr_b32 s{sT+4}, s2, 3', f's_lshl_b32 s{sT+4}, s{sT+4}, 16'], [f's_lshl_b32 s{sT+5}, s{sW}, 7', f's_add_u32 s{sT+4}, s{sT+4}, s{sT+5}'],
          [f'buffer_load_dword v246, v245, {sr(sX,4)}, s{sT+4} offen offset:512 ; nodep'],
          [f'v_lshrrev_b32 v245, 1, v0', f'v_lshlrev_b32 v245, 13, v245', f'v_and_b32 v244, 1, v0', f'v_lshl_add_u32 v245, v244, 7, v245'],
          [f's_lshl_b32 s{sT+4}, s{sI}, 18', f's_lshl_b32 s{sT+5}, s{sH}, 8', f's_add_u32 s{sT+4}, s{sT+4}, s{sT+5}'], [f's_add_u32 s{sT+4}, s{sT+4}, {256*8192}'],
          [f'buffer_load_dword v246, v245, {sr(sWQ,4)}, s{sT+4} offen ; nodep']] if QPF else []
    zf = []
    if FUSE3:
        FW_, FC_, FB_ = FLG, FLG + 4096, FLG + 8192
        zf = [f's_lshl_b32 s{sT+4}, s{sI}, 7', f's_lshl_b32 s{sT+5}, s{sH}, 2', f's_add_u32 s{sT+5}, s{sT+5}, {FC_}', f's_add_u32 s{sFa}, s{sT+5}, s{sT+4}', f's_sub_u32 s{sT+5}, s{sT+5}, s{sT+4}', f's_add_u32 s{sT+5}, s{sT+5}, {15*128}',
              f's_lshl_b32 s{sT+4}, s2, 2', f's_add_u32 s{sFw}, s{sT+4}, {FW_}', f's_add_u32 s{sT+4}, s{sT+4}, {FB_}',
              f'v_mov_b32 v245, s{sFa}', f'v_writelane_b32 v245, s{sT+5}, 1', f'v_writelane_b32 v245, s{sFw}, 2', f'v_writelane_b32 v245, s{sT+4}, 3', 'v_mov_b32 v246, 0', f's_mov_b32 s{sSig}, 0',
              's_mov_b64 exec, 15', f'buffer_store_dword v246, v245, {sr(sWS,4)}, 0 offen sc1', 's_mov_b64 exec, -1']
    L = q_setup() + zf + (['s_barrier'] if FUSE and not Q0PF else []) + (q_setup2() + ['s_barrier'] + q_reads(0) + flat(q_dma(1)) if Q0PF else flat(q_dma(0)) + flat(q_dma(1)) + q_setup2())
    L += [f's_lshl_b32 s{sT+4}, s{sH}, 19', f's_add_u32 s{sK}, s{sT+4}, {KWS}', f's_add_u32 s{sV}, s{sT+4}, {VWS}', f's_mov_b32 s{sKc}, s{sK}', f's_add_u32 s{sK}, s{sK}, s{sW2}', f's_add_u32 s{sV}, s{sV}, s{sW2}',
          f's_add_u32 s{sK2}, s{sWS}, s{sK}', f's_addc_u32 s{sK2+1}, s{sWS+1}, 0', f's_add_u32 s{sV2}, s{sWS}, s{sV}', f's_addc_u32 s{sV2+1}, s{sWS+1}, 0']
    if not Q0PF: L += [';VMNEED C0', 's_barrier'] + q_reads(0)
    sig = []
    if FUSE:
        sig = [f's_cmp_lg_u32 s{sW}, 0', 's_cbranch_scc1 K2_NOSIG', 'v_mov_b32 v245, 1', 'v_mov_b32 v246, s94', 's_mov_b64 exec, 1',
              f'SKIP buffer_atomic_add v245, v246, {sr(sDB,4)}, 0 offen sc1', 's_mov_b64 exec, -1', 'K2_NOSIG:',
              f's_lshl_b32 s{sT+4}, s{sH}, 1', 'v_and_b32 v246, 1, v0', f'v_add_u32 v246, s{sT+4}, v246', 'v_mul_u32_u24 v246, 205, v246', 'v_lshrrev_b32 v246, 10, v246',
              'v_bfe_u32 v245, v0, 1, 1', 'v_mul_u32_u24 v245, 13, v245', 'v_add_lshl_u32 v246, v246, v245, 2', 'v_add_u32 v246, 128, v246']
    if not Q0PF: L += sig
    L += stamp()
    for c in range(8):
        mf = []; pre = {}
        def P(g, x): pre.setdefault(g, []).extend(x if isinstance(x, list) else [x])
        val = {}
        for ft in range(8):
            for tt in range(4):
                for kbl in range(2):
                    a = qacc(ft, tt)
                    cc = '0' if (c == 0 and kbl == 0) else vr(a, 4)
                    mf.append(f'{MF} {vr(a,4)}, {ar(wf(c,kbl,ft),4)}, {ar(xf(c,kbl,tt),4)}, {cc}')
        for g0 in range(0, 64, 16):
            f0 = g0 // 8
            P(g0 - 1 if g0 else (0, 'before'), f';NEED {ar(wf(c,0,f0),8)} {ar(wf(c,1,f0),8)}' + (f' {ar(xf(c,0,0),32)}' if g0 == 0 else ''))
        if c == 0:
            g = 0
            for it in q_dma(2):
                if g % 16 == 15: g += 1
                P(g, it); g += 1
            gb = 26
        else:
            gb = 0
        if 1 <= c <= 5: ex = ([[f'buffer_load_dword v247, v246, {sr(sDB,4)}, 0 offen sc1']] if FUSE and c == 5 else []) + q_dma(c + 2)
        elif c == 6:
            ex = a_loads(0)
            if FUSE:
                P((0, 'before'), ['v_cmp_gt_u32 vcc, 8, v247', 's_cbranch_vccnz K2_SLOWP', 'K2_POLLED:'])
                STUBS.extend(['K2_SLOWP:', f's_mov_b32 s{sT+4}, 0x80000', 'K2_SP1:', f'buffer_load_dword v247, v246, {sr(sDB,4)}, 0 offen sc1', 's_waitcnt vmcnt(0)',
                              'v_cmp_gt_u32 vcc, 8, v247', 's_cbranch_vccz K2_POLLED', 's_sleep 2', f's_sub_u32 s{sT+4}, s{sT+4}, 1', f's_cmp_lg_u32 s{sT+4}, 0', 's_cbranch_scc1 K2_SP1', 's_branch K2_POLLED'])
        elif c == 7: ex = a_loads(1) + wo_dma_a() + [wo_dma_b()]
        else: ex = []
        if c < 7:
            P(gb, [f';VMNEED C{c+1}', 's_barrier'] + (sig if Q0PF and c == 0 else []))
            rds = q_reads(c + 1)
            seq = []; nr, ne = len(rds), len(ex)
            ri = ei = 0
            while ri < nr or ei < ne:
                if ei < ne and (ri >= nr or ei * nr <= ri * ne): seq.append(ex[ei]); ei += 1
                else: seq.append(rds[ri]); ri += 1
            g0 = gb + 1
            for k, x in enumerate(seq): P(g0 + k * (63 - g0) // len(seq), x)
        else:
            P(0, 's_barrier')
            for db in range(3):
                cv = q_cvt(db)
                for k in range(8): val[16 * db + 20 + k + (k > 3) * 0] = cv[2*k:2*k+2]
            P(60, [';VMNEED U0', 's_barrier', f'v_add_u32 v{vRd}, 65536, v{vL16}', f'v_add_u32 v{vRd+1}, 98304, v{vL16}'])
            for k, it in enumerate(ex): P(1 + k * 58 // len(ex), it)
        L += weave(mf, pre, val)
    return L

def a_prologue():
    L = []
    fr = qk_frags('c')
    L += [rd(g - 2, off, 0) for g, fu, off in fr] + [rd(g, off, 1) for g, fu, off in fr]
    L += [f'v_mov_b32 v{TMPB+j}, 0' for j in range(4)]
    L += [f'v_mov_b32 v{vd}, v{vq}'] + [f'v_cmp_gt_i32 {sr(sMk+2*j,2)}, {j}, v{vd}' for j in range(4)]
    L += q_cvt(3)
    zm = [f'v_mfma_f32_32x32x16_bf16 {ar(16*k,16)}, {vr(TMPB,4)}, {vr(TMPB,4)}, 0' for k in range(8)]
    L += ['s_nop 0'] + qk_mfmas('c', 0, czero=True, fr=lambda kt, db: ar(slot(32 + 16 * kt + 4 * db), 4)) + zm
    L += [f's_cmp_eq_u32 s{sI}, 0', f's_cselect_b32 s{sMq}, 0, -4096'] + mask_call(0, 'c') + deltas(0, 'c', False)
    for q in range(4):
        for j in range(4): L.append(f'v_sub_f32 v{NM+4*q+j}, 0, v{vDl+q}')
    V = [f'v_mov_b32 v{vl+q}, 0' for q in range(4)] + sub_tiles(0, 'c') + exp_ops(0, 'c')
    mf2 = qk_mfmas('c', 1)
    L += [f'v_mov_b32 v{vRd}, v{vL16}', ';LGKM0'] + ([';VMNEED WO'] if FUSE3 else []) + ['s_barrier'] + (wo_fin() if FUSE3 else [])
    rds = [rd(g, off, 0) for g, fu, off in pv_frags('c') if g < D]
    n = len(mf2)
    for k, m in enumerate(mf2):
        L.append(m)
        if k >= n - 2 * len(rds) and (n - k) % 2 == 0: L.append(rds[len(rds) - (n - k) // 2])
        L += V[len(V)*k//n:len(V)*(k+1)//n]
    return L

def fin_rows(which):
    t0, t1 = sT + 4, sT + 5
    q0 = 0 if which == 'a' else 2
    L = [f's_lshl_b32 s{t0}, s{sH}, 14', f's_add_u32 s{t0}, s{t0}, {CTX}', f's_and_b32 s{t1}, s{sW}, 1', f's_lshl_b32 s{t1}, s{t1}, 11', f's_add_u32 s{t0}, s{t0}, s{t1}', f's_lshr_b32 s{t1}, s{sW}, 1', f's_mul_i32 s{t1}, s{t1}, {TS}', f's_add_u32 s{t0}, s{t0}, s{t1}', f's_mul_i32 s{t1}, s{sI}, {2*TS}']
    L += [f's_add_u32 s{t0}, s{t0}, s{t1}'] if which == 'a' else [f's_sub_u32 s{t0}, s{t0}, s{t1}', f's_add_u32 s{t0}, s{t0}, {30*TS}']
    L += [f's_add_u32 s{t0+k}, s{t0}, {4096*k}' for k in range(1, 4)]
    for q in (q0, q0 + 1):
        L += xlane('v_add_f32', vl + q, vT) + [f'v_rcp_f32 v{vl+q}, v{vl+q}']
    for q in (q0, q0 + 1):
        for h in range(2):
            r = TMPV + 16 * h; p = TMPB + 8 * h
            for j in range(16): L.append(f'v_accvgpr_read_b32 v{r+j}, a{Or(q,4*h)+j}')
            for j in range(16): L.append(f'v_mul_f32 v{r+j}, v{r+j}, v{vl+q}')
            for j in range(8): L.append(f'v_cvt_pk_bf16_f32 v{p+j}, v{r+2*j}, v{r+2*j+1}')
            for x in range(2): L.append(f'buffer_store_dwordx4 {vr(p+4*x,4)}, v{vL16}, {sr(sWS,4)}, s{t0+2*h+x} offen offset:{(q&1)*1024}{SF}')
    return L

def last_pv():
    par = 1
    mf = pv_mfmas('s', par)
    frs = pv_frags('s')
    t0, t1 = sT + 4, sT + 5
    head = lupd('s') + [f's_lshl_b32 s{t0}, s{sH}, 14', f's_add_u32 s{t0}, s{t0}, {CTX}', f's_and_b32 s{t1}, s{sW}, 1', f's_lshl_b32 s{t1}, s{t1}, 11', f's_add_u32 s{t0}, s{t0}, s{t1}', f's_lshr_b32 s{t1}, s{sW}, 1', f's_mul_i32 s{t1}, s{t1}, {TS}', f's_add_u32 s{t0}, s{t0}, s{t1}', f's_mul_i32 s{t1}, s{sI}, {2*TS}'] + [f's_sub_u32 s{t0}, s{t0}, s{t1}', f's_add_u32 s{t0}, s{t0}, {30*TS}'] + [f's_add_u32 s{t0+k}, s{t0}, {4096*k}' for k in range(1, 4)]
    for sw in ('32', '16'):
        head += [f'v_mov_b32 v{vT}, v{vl+2}', f'v_mov_b32 v{vT+1}, v{vl+3}', 's_nop 0', f'v_permlane{sw}_swap_b32 v{vl+2}, v{vT}', f'v_permlane{sw}_swap_b32 v{vl+3}, v{vT+1}',
                 f'v_add_f32 v{vl+2}, v{vl+2}, v{vT}', f'v_add_f32 v{vl+3}, v{vl+3}, v{vT+1}']
    head += [f'v_rcp_f32 v{vl+2}, v{vl+2}', f'v_rcp_f32 v{vl+3}, v{vl+3}']
    def fin_db(db):
        X = []
        for q in (2, 3):
            r = TMPV + 8 * (q - 2) + 16 * (db & 1); p = TMPB + 4 * (q - 2) + 8 * (db & 1)
            X += [f'v_accvgpr_read_b32 v{r+j}, a{Or(q,2*db)+j}' for j in range(8)]
            X += [f'v_mul_f32 v{r+j}, v{r+j}, v{vl+q}' for j in range(8)]
            X += [f'v_cvt_pk_bf16_f32 v{p+j}, v{r+2*j}, v{r+2*j+1}' for j in range(4)]
            X += [f'buffer_store_dwordx4 {vr(p,4)}, v{vL16}, {sr(sWS,4)}, s{t0+db} offen offset:{(q&1)*1024}{SF}']
        return X
    L = []
    fill = head + ['#1'] + fin_db(0) + ['#2'] + fin_db(1) + ['#3'] + fin_db(2)
    fi = 0
    for g, m in enumerate(mf):
        if g % 8 == 0: L.append(';NEED ' + ' '.join(ar(slot(gg), 4) for gg, fu, off in frs if g <= fu < g + 8))
        L.append(m)
        for gg, fu, off in frs:
            if gg - D == g: L.append(rd(gg, off, par))
        n = 0
        while fi < len(fill) and n < 5:
            x = fill[fi]
            if x.startswith('#'):
                if g < 8 * int(x[1]) + 2: break
                fi += 1; continue
            L.append(x); fi += 1; n += 1
    L += [x for x in fill[fi:] if not x.startswith('#')] + ['s_nop 3'] + fin_db(3)
    return L

def hook(bit, saddr, uid):
    if not FUSE3: return []
    STUBS.extend([f'K2_H{uid}:', f's_bitset1_b32 s{sSig}, {bit}', f's_cmp_lg_u32 s{sW}, 0', f's_cbranch_scc1 K2_HR{uid}', f'v_mov_b32 v{vT}, 1', f'v_mov_b32 v{vT+1}, 0', 's_mov_b64 exec, 1',
                  f'buffer_store_dword v{vT}, v{vT+1}, {sr(sWS,4)}, s{saddr} offen sc1', 's_mov_b64 exec, -1', 's_nop 3', f's_branch K2_HR{uid}'])
    return [f's_bitcmp0_b32 s{sSig}, {bit}', f's_cbranch_scc1 K2_H{uid}', f'K2_HR{uid}:']

def gen_k2():
    if FUSE3: import tail as TAILM
    name = 'k2_kernel'
    L = []; a = L.append
    if not FUSE:
        a(f'.p2align 8\n.type {name},@function\n{name}:')
        a('s_cmp_ge_u32 s2, 256'); a('s_cbranch_scc1 K2_END')
        if os.environ.get('CPF', '1') == '1': L += code_prefetch('k2_kernel', 'k3_kernel', 'K2', 246, 247, 90, 8)
        a('s_load_dwordx2 s[4:5], s[0:1], 88'); a('s_load_dwordx2 s[6:7], s[0:1], 0'); a('s_load_dwordx2 s[56:57], s[0:1], 16'); a('s_load_dwordx2 s[68:69], s[0:1], 40'); a('s_load_dwordx2 s[76:77], s[0:1], 64')
        a('v_lshrrev_b32 v1, 6, v0'); a('v_and_b32 v0, 63, v0'); a(f'v_readfirstlane_b32 s{sW}, v1')
    else:
        for srd, p, n in ((sWO, 14, 0x400000), (sWB, 20, 0x80000), (sDB, 24, 256), (sWQ, 8, 0x400000), (sX, 4, 0x200000), (sWS, 26, 0x10000000)):
            a(f's_mov_b32 s{srd}, s{p}'); a(f's_mov_b32 s{srd+1}, s{p+1}'); a(f's_mov_b32 s{srd+2}, {hex(n)}'); a(f's_mov_b32 s{srd+3}, 0x20000')
        a(f's_mov_b64 s[96:97], s[22:23]')
        a(f's_mov_b32 s{sW}, s40')
        L += gstamp(6, sDB, 2, 3)
    a(f'v_lshlrev_b32 v{vL16}, 4, v0')
    if os.environ.get('K2_MAP') == '8x4':
        a(f's_bfe_u32 s{sH}, s2, 0x20001'); a(f's_lshl_b32 s{sH}, s{sH}, 3'); a(f's_bfe_u32 s{sT}, s2, 0x30003'); a(f's_add_u32 s{sH}, s{sH}, s{sT}')
        a(f's_lshr_b32 s{sI}, s2, 6'); a(f's_lshl_b32 s{sI}, s{sI}, 1'); a(f's_and_b32 s{sT}, s2, 1'); a(f's_add_u32 s{sI}, s{sI}, s{sT}')
    else:
        a(f's_and_b32 s{sH}, s2, 31'); L += remap_i(sI, sT, sT + 1)
    a(f's_lshl_b32 s{sW2}, s{sW}, 11'); a(f's_lshl_b32 s{sW4}, s{sW}, 12'); a(f's_add_u32 s{sW2K}, s{sW2}, 16384'); a(f's_add_u32 s{sW4K}, s{sW4}, 16384')
    a(f'v_mov_b32 v{vBig}, {f32(NEGBIG)}')
    a(f'v_and_b32 v{vq}, 15, v0'); a(f'v_lshrrev_b32 v{vT}, 4, v0'); a(f'v_lshlrev_b32 v{vT}, 2, v{vT}'); a(f'v_sub_u32 v{vq}, v{vq}, v{vT}')
    a('s_waitcnt lgkmcnt(0)')
    for srd, p, n in () if FUSE else ((sWS, 4, 0x10000000), (sX, 6, 0x200000), (sWQ, 56, 0x400000), (sWO, 68, 0x400000), (sWB, 76, 0x80000)):
        a(f's_mov_b32 s{srd}, s{p}'); a(f's_mov_b32 s{srd+1}, s{p+1}'); a(f's_mov_b32 s{srd+2}, {hex(n)}'); a(f's_mov_b32 s{srd+3}, 0x20000')
    if DIAG: a('s_mov_b32 s72, 0'); a(f'v_mov_b32 v{vDG}, 0'); a(f'v_mov_b32 v{vDG+2}, 0'); L += stamp()
    raw0 = qproj() + stamp() + gstamp(7, sDB, 16, 17) + gstamp(8, sDB, 16, 17, neg=True) + a_prologue() + stamp()
    skip = [x for x in raw0 if x.startswith('SKIP ')]
    pre = auto_waits([], [x if not x.startswith('SKIP ') else '.L_skip0:' for x in raw0])
    L += [x if x != '.L_skip0:' else skip[0][5:] for x in pre]
    def two(uid, b0, b1): return body(0, *b0, uid + 'a') + body(1, *b1, uid + 'b')
    raw = {
     'CC': two('CC', ('c','c','c','c','c','c',None), ('c','c','c','c','c','c',None)),
     'X1': two('X1', ('c','c','c','c','c','c',None), ('c','c','c','c','c','c',0)),
     'X2': two('X2', ('c','c','c','c','c','s',1), ('c','c','c','c','c','s',2)),
     'X3': two('X3', ('c','c','s','c','s','s',3), ('c','s','s','s','s','s',None)) + ([] if FUSE3 else wo_fin()) + fin_rows('a'),
     'X3b': two('X3b', ('c','c','s','c','s',None,3), ('c','s','s','s','s',None,0)) + ([] if FUSE3 else wo_fin()) + fin_rows('a'),
     'SS': two('SS', ('s','s','s','s','s','s',None), ('s','s','s','s','s','s',None)),
     'X4': two('X4', ('s','s','s','s','s',None,None), ('s','s','s','s','s',None,0)),
     'TL': (TAILM.pre_polls() if FUSE3 else []) + body(0, 's','s',None,'s',None,None,2, 'TLa') + last_pv(),
    }
    preds = {'CC': ['pre', 'CC'], 'X1': ['CC'], 'X2': ['X1', 'pre'], 'X3': ['X2'], 'X3b': ['X2'], 'SS': ['X3', 'SS'], 'X4': ['SS'], 'TL': ['X4', 'X3b']}
    fin = {'pre': pre}
    for it in range(3):
        for k in raw:
            fin[k] = merge_min([auto_waits(fin[p], raw[k]) for p in preds[k] if p in fin])
    a(f's_cmp_eq_u32 s{sI}, 0'); a('s_cbranch_scc1 K2_X2')
    a(f's_lshl_b32 s{sCnt}, s{sI}, 1'); a(f's_sub_u32 s{sCnt}, s{sCnt}, 1')
    a('.p2align 6\nK2_CC:'); L += fin['CC'] + hook(0, sFw, 'a') + [f's_sub_u32 s{sCnt}, s{sCnt}, 1', f's_cmp_lg_u32 s{sCnt}, 0', 's_cbranch_scc1 K2_CC']
    L += stamp()
    L += fin['X1']
    a('K2_X2:'); L += adv64(sK2, f's{sW2}'); L += fin['X2'] + hook(0, sFw, 'b')
    L += adv64(sV2, f's{sW2}')
    a(f's_cmp_eq_u32 s{sI}, 7'); a('s_cbranch_scc1 K2_X3b')
    L += fin['X3']
    L += stamp()
    a(f's_lshl_b32 s{sCnt}, s{sI}, 1'); a(f's_sub_u32 s{sCnt}, 13, s{sCnt}')
    a('.p2align 6\nK2_SS:'); L += fin['SS'] + hook(1, sFa, 'c') + [f's_sub_u32 s{sCnt}, s{sCnt}, 1', f's_cmp_lg_u32 s{sCnt}, 0', 's_cbranch_scc1 K2_SS']
    L += stamp()
    L += fin['X4']
    a('K2_TL:'); L += fin['TL']
    L += stamp()
    epi = []
    L += epi
    if FUSE3:
        import tail, k3
        L += stamp() + gstamp(9, sDB, 16, 17) + gstamp(10, sDB, 16, 17, neg=True) + tail.gen_tail(fin['TL'] + epi) + k3.STUBS
    else:
        if DIAG:
            L += stamp(); a('s_waitcnt vmcnt(0)'); L += stamp()
            L += dstore(vDG, vDG + 1, vDG + 2, sW, sWS, 201)
        L += gstamp(9, sDB, 16, 17) + gstamp(10, sDB, 16, 17, neg=True)
        a('K2_END:'); a('s_endpgm')
    a('K2_X3b:'); L += fin['X3b']; a('s_branch K2_TL')
    L += STUBS
    for r in sorted(RARES): L += rare(*r)
    L += rescale_o()
    for m in sorted(MASKS): L += mask_routine(*m)
    f = fin
    check_trace(pre + ['s_nop 0'] * 2 + f['X2'] + f['X3'] + f['SS'] + f['SS'] + f['X4'] + f['TL'] + epi, 'k2 i=0')
    check_trace(pre + ['s_nop 0'] * 4 + f['CC'] + f['CC'] + f['X1'] + f['X2'] + f['X3b'] + f['TL'] + epi, 'k2 i=7')
    if FUSE: return L, '', None
    return L, kdesc(name, 512, 256), f'; @launch kernel={name} grid=(256,1,1) block=(256,1,1) lds=163840'
```

```python
from lib import *
from layout import *
import os, struct, math
import k3
from k3 import flat, f32, MF, STUBS
DIAG = os.environ.get('DIAG')
FW, FC, FB = FLG, FLG + 4096, FLG + 8192
sWS, sOUT, sW, sT, sDB = 8, 12, 16, 20, 80
vL16 = 1
vG = (244, 245, 246)
vA, vB = 240, 241
def stamp(): return dstamp(*vG) if DIAG else []
def spin(voff, srd, soff, cond, tmp, name, wide=False):
    ld = f'buffer_load_dword v{tmp}, v{voff}, {sr(srd,4)}, {soff} offen' + (' offset:128' if srd == sDB else '') + ' sc1'
    return [f's_mov_b32 s89, 0x80000', f'{name}_L:', ld, 's_waitcnt vmcnt(0)', cond,
            f's_cbranch_vccz {name}_D', 's_sleep 48', 's_sub_u32 s89, s89, 1', 's_cmp_lg_u32 s89, 0', f's_cbranch_scc1 {name}_L', f'{name}_D:']
sQ, sM = 48, 49
sC0, sM0, sC1, sM1 = 52, 56, 60, 64
sFc, sFb = 68, 69
def acc(part, mt, qt): return (152 if part == 0 else 0) + 4 * (4 * mt + qt)
NC = 4
def wfr(kb, j): return vr(104 + 16 * (kb % NC) + 4 * j, 4)
def cfr(kb, j): return vr(168 + 16 * (kb % NC) + 4 * j, 4)
def lw(kb):
    m = sM0 if kb < 32 else sM1
    X = [[f'buffer_load_dwordx4 {wfr(kb,j)}, v{vL16}, {sr(sWS,4)}, s{m} offen offset:{j*1024} sc1'] for j in range(4)]
    X[-1].append(f's_add_u32 s{m}, s{m}, 4096')
    return X
def lc(kb):
    c = sC0 if kb < 32 else sC1
    return [f'buffer_load_dwordx4 {cfr(kb,j)}, v{vL16}, {sr(sWS,4)}, s{c} offen offset:{j*1024} sc1' for j in range(4)] + [f's_add_u32 s{c}, s{c}, 4096']

def pre_polls():
    return [f'v_and_b32 v47, 31, v0', f'v_lshlrev_b32 v47, 2, v47', f's_mov_b32 s89, {FW}',
            f'buffer_load_dword a252, v47, {sr(sDB,4)}, 0 offen offset:128 sc1', f'buffer_load_dwordx4 a[248:251], v{vL16}, {sr(sWS,4)}, s89 offen sc1',
            ]

def gen_tail(ctx):
    L = []; a = L.append
    t0, t1, t2 = sT, sT + 1, sT + 2
    if DIAG: a('s_nop 1'); a('v_mov_b32 v244, v44'); a('v_mov_b32 v246, v46')
    a(f's_mov_b32 s{sW}, s20')
    a('s_lshl_b32 s24, s22, 7'); a('s_lshl_b32 s25, s21, 2'); a(f's_add_u32 s26, s25, {FC}'); a('s_add_u32 s27, s26, s24'); a('s_sub_u32 s26, s26, s24'); a(f's_add_u32 s26, s26, {15*128}')
    a('s_lshl_b32 s25, s2, 2'); a(f's_add_u32 s25, s25, {FW}')
    a('v_mov_b32 v243, s27'); a('v_writelane_b32 v243, s26, 1'); a('v_writelane_b32 v243, s25, 2'); a('v_mov_b32 v242, 1')
    a(f's_and_b32 s{t0}, s2, 7'); a(f's_lshr_b32 s{t2}, s2, 3')
    a(f's_lshr_b32 s{sQ}, s{t0}, 1'); a(f's_lshl_b32 s{sQ}, s{sQ}, 3'); a(f's_and_b32 s{t1}, s{t2}, 7'); a(f's_add_u32 s{sQ}, s{sQ}, s{t1}')
    a(f's_and_b32 s{sM}, s{t0}, 1'); a(f's_lshl_b32 s{sM}, s{sM}, 2'); a(f's_lshr_b32 s{t1}, s{t2}, 3'); a(f's_add_u32 s{sM}, s{sM}, s{t1}')
    for base, idx, org, wsh in ((sC0, sQ, CTX, 17), (sM0, sM, WOA, 17), (sC1, sQ, CTX + 128*4096, 14), (sM1, sM, WOA + 128*4096, 14)):
        a(f's_mul_i32 s{base}, s{idx}, {TS}'); a(f's_lshl_b32 s{t0}, s{sW}, {wsh}'); a(f's_add_u32 s{base}, s{base}, s{t0}'); a(f's_add_u32 s{base}, s{base}, {org}')
    a(f's_lshr_b32 s{t2}, s{sQ}, 1'); a(f's_lshl_b32 s{sFc}, s{t2}, 7'); a(f's_add_u32 s{sFc}, s{sFc}, {FC}'); a(f's_lshl_b32 s{sFb}, s{t2}, 6'); a(f's_add_u32 s{sFb}, s{sFb}, {FB}')
    a(f's_mov_b32 s{sOUT}, s96'); a(f's_mov_b32 s{sOUT+1}, s97'); a(f's_mov_b32 s{sOUT+2}, 0x400000'); a(f's_mov_b32 s{sOUT+3}, 0x20000')
    for j in range(4): a(f'v_accvgpr_read_b32 v{8+j}, a{248+j}')
    a(f'v_accvgpr_read_b32 v{vB}, a252'); a(f'v_mov_b32 v{vA}, v47')
    a('v_min_u32 v8, v8, v9'); a('v_min3_u32 v8, v8, v10, v11'); a(f'v_cmp_gt_u32 vcc, 8, v{vB}'); a('s_cbranch_vccnz TL_SLOW0'); a('v_cmp_eq_u32 vcc, 0, v8'); a('s_cbranch_vccnz TL_SLOW0'); a('TL_OK0:')
    sl = ['TL_SLOW0:'] + spin(vA, sDB, '0', f'v_cmp_gt_u32 vcc, 8, v{vB}', vB, 'TL_SK') + [f's_mov_b32 s{t2}, {FW}']
    for q in range(4): sl += ['v_lshlrev_b32 v8, 2, v0', f'v_add_u32 v8, {q*256}, v8'] + spin(8, sWS, f's{t2}', 'v_cmp_eq_u32 vcc, 0, v9', 9, f'TL_SW{q}')
    STUBS.extend(sl + ['s_branch TL_OK0'])
    Braw = k3.role_b(unit=2, fused=True, raw=True)
    kL = Braw.index(';BLOADED')
    Bl, Bc = Braw[:kL], Braw[kL+1:]
    def signal(name, store): return ['s_barrier', f's_cmp_lg_u32 s{sW}, 0', f's_cbranch_scc1 {name}'] + store + [f'{name}:']
    lidx = [k for k, x in enumerate(Bl) if x.startswith('buffer_load')]
    nk, nv = lidx[19] + 1, lidx[29] + 1
    MODE = int(os.environ.get('TL_MODE', 1))
    sig1 = [f';NEED v{vB}'] + signal('TL_NF', ['s_mov_b64 exec, 7', 'SK1:', 's_mov_b64 exec, -1'])
    X = [f'buffer_load_dword v{vB}, v{vA}, {sr(sWS,4)}, s{sFc} offen sc1']
    if MODE == 2: X += flat([lw(kb) for kb in range(NC)]) + sig1
    else: X += Bl[:nk] + sig1 + Bl[nk:]
    NK = 36
    def step(kb):
        part = 0 if kb < 32 else 1
        M = []
        for mt in range(4):
            for qt in range(4):
                d = acc(part, mt, qt)
                M.append(f'{MF} {ar(d,4)}, {wfr(kb,mt)}, {cfr(kb,qt)}, ' + ('0' if kb in (0, 32) else ar(d, 4)))
        if kb == 22: M += [f'v_and_b32 v{vA}, 15, v0', f'v_lshlrev_b32 v{vA}, 2, v{vA}', f'buffer_load_dword v{vB}, v{vA}, {sr(sWS,4)}, s{sFb} offen sc1']
        if kb + NC == 32:
            M += [f';NEED v{vB}', f's_cmp_lg_u32 s{sW}, 0', 's_cbranch_scc1 TL_BOK', f'v_cmp_eq_u32 vcc, 0, v{vB}', 's_cbranch_vccnz TL_SLOWB', 'TL_BOK:', 's_barrier']
            STUBS.extend(['TL_SLOWB:'] + spin(vA, sWS, f's{sFb}', f'v_cmp_eq_u32 vcc, 0, v{vB}', vB, 'TL_SB') + ['s_branch TL_BOK'])
        if kb + NC < NK: M += lc(kb + NC) + flat(lw(kb + NC))
        return M
    cuts = [k for k, x in enumerate(Bc) if x.startswith(('v_exp', 'v_fma'))]
    NS = int(os.environ.get('TL_NS', 9))
    STUBS.extend(['TL_SLOWC:'] + spin(vA, sWS, f's{sFc}', f'v_cmp_eq_u32 vcc, 0, v{vB}', vB, 'TL_SC') + ['s_branch TL_COK'])
    chk = [f';NEED v{vB}', f's_cmp_lg_u32 s{sW}, 0', 's_cbranch_scc1 TL_COK', f'v_cmp_eq_u32 vcc, 0, v{vB}', 's_cbranch_vccnz TL_SLOWC', 'TL_COK:', 's_barrier']
    ins = {}
    if MODE == 2:
        X += Bl[:nk] + chk + flat([lc(kb) for kb in range(NC)]) + step(0) + Bl[nk:nv] + step(1) + Bl[nv:] + step(2)
        S0 = 3
    elif MODE == 1:
        X += chk + flat(lw(0)) + lc(0) + flat(lw(1)) + lc(1)
        ins[cuts[0]] = flat(lw(2)) + lc(2) + flat(lw(3)) + lc(3)
        S0 = 0
    else:
        X += flat([lw(kb) for kb in range(NC)])
        ins[cuts[len(cuts) * 3 // 4]] = [f'buffer_load_dword v{vB}, v{vA}, {sr(sWS,4)}, s{sFc} offen sc1']
        ins[cuts[len(cuts) * 7 // 8]] = chk + flat([lc(kb) for kb in range(NC)])
        S0 = 0; NS = 0
    for n in range(NS): ins.setdefault(cuts[(n + 1) * (len(cuts) - 1) // (NS + 1)], []).extend(step(S0 + n))
    for k, x in enumerate(Bc):
        X.append(x); X += ins.get(k, [])
    X += stamp() + gstamp(11, sDB, 2, 3) + gstamp(12, sDB, 2, 3, neg=True)
    for kb in range(S0 + NS, NK):
        X += step(kb)
        if kb == S0 + NS + NC: X += signal('TL_NF2', [f's_lshl_b32 s{t0}, s2, 2', f's_add_u32 s{t0}, s{t0}, {FB}', 'v_mov_b32 v4, 0', 's_mov_b64 exec, 1', 'SK2:', 's_mov_b64 exec, -1'])
    X.append('s_nop 7')
    L = auto_waits(ctx, L + stamp() + X)
    TMP = 2
    G = [f's_lshl_b32 s{t0}, s{sW}, 14', f'v_add_u32 v{TMP}, s{t0}, v{vL16}', f's_lshl_b32 s{t0}, s{sW}, 10', f'v_add_u32 v{TMP+1}, s{t0}, v{vL16}',
         f'v_add_u32 v{TMP+2}, 65536, v{TMP}', f'v_add_u32 v{TMP+3}, 65536, v{TMP+1}']
    for part in range(2): G += [f'ds_write_b128 v{TMP+2*part}, {ar(acc(part,0,0)+4*k,4)} offset:{k*1024}' for k in range(16)]
    vo = 6
    G += [f'v_and_b32 v{vo}, 15, v0', f'v_lshlrev_b32 v{vo}, 11, v{vo}', f'v_bfe_u32 v7, v0, 4, 1', f'v_lshl_add_u32 v{vo}, v7, 5, v{vo}', f'v_lshrrev_b32 v7, 5, v0', f'v_lshl_add_u32 v{vo}, v7, 4, v{vo}',
          f's_lshl_b32 s{t0}, s{sQ}, 2', f's_add_u32 s{t0}, s{t0}, s{sW}', f's_lshl_b32 s{t0}, s{t0}, 15', f's_lshl_b32 s{t1}, s{sM}, 7', f's_add_u32 s{t0}, s{t0}, s{t1}']
    G += ['s_waitcnt lgkmcnt(0)', 's_barrier']
    for part in range(2):
        for w in range(4):
            for mt in range(4): G.append(f'ds_read_b128 {vr(48+64*part+16*w+4*mt,4)}, v{TMP+1+2*part} offset:{w*16384+mt*4096}')
    for part in range(2):
        b = 48 + 64 * part
        for j in range(16): G.append(f'v_add_f32 v{b+j}, v{b+j}, v{b+16+j}')
        for j in range(16): G.append(f'v_add_f32 v{b+32+j}, v{b+32+j}, v{b+48+j}')
        for j in range(16): G.append(f'v_add_f32 v{b+j}, v{b+j}, v{b+32+j}')
        P0 = 16 + 8 * part
        for mt in range(4):
            G += [f'v_cvt_pk_bf16_f32 v{P0+4*(mt>>1)+2*(mt&1)}, v{b+4*mt}, v{b+4*mt+1}', f'v_cvt_pk_bf16_f32 v{P0+4*(mt>>1)+2*(mt&1)+1}, v{b+4*mt+2}, v{b+4*mt+3}']
        G.append('s_nop 1')
        for pr in range(2):
            q = P0 + 4 * pr
            G += [f'v_permlane16_swap_b32 v{q}, v{q+2}', f'v_permlane16_swap_b32 v{q+1}, v{q+3}']
        for pr in range(2):
            G.append(f'buffer_store_dwordx4 {vr(P0+4*pr,4)}, v{vo}, {sr(sOUT,4)}, s{t0} offen offset:{part*1024+pr*64} sc1')
    G = auto_waits([], G)
    check_trace(ctx + L + G, 'tail')
    rep = {'SK1:': f'buffer_store_dword v242, v243, {sr(sWS,4)}, 0 offen sc1', 'SK2:': f'buffer_store_dword v242, v4, {sr(sWS,4)}, s{t0} offen sc1'}
    L = [rep.get(x, x) for x in L] + stamp() + G
    if DIAG: L += stamp() + ['s_waitcnt vmcnt(0)'] + stamp() + dstore(*vG, sW, sWS, 201)
    L += ['s_waitcnt vmcnt(0)'] * bool(os.environ.get('GDIAG')) + gstamp(13, sDB, 2, 3) + gstamp(14, sDB, 2, 3, neg=True)
    L.append('s_endpgm')
    return L
```

```python
from lib import *
from layout import *
import struct, math, os
def f32(x): return '0x%08x' % struct.unpack('<I', struct.pack('<f', x))[0]

CA = math.log2(math.e) / math.sqrt(128.0)
vWd, vXd, vWl, vXr, vSt, vWr, vXr2, vSt2 = 2, 6, 10, 14, 16, 18, 26, 17
WF, PK, ACC = 32, 96, 128
sACT, sW, sWS = 28, 32, 36
sWave, sGc, sRem, sLdw, sWoff, sLdw128, sLdw64 = 40, 41, 43, 44, 45, 46, 42
sOut0, sOut1, sScl = 47, 48, 49
sNOut0, sNOut1, sQ0, sQ1 = 50, 51, 52, 58
sType, sBlk, sXoff, sM0W, sM0X, sT0, sT1, sT2, sGcL, sRemL, sWsz, sSR, sSW, sM0X2, sPf = 53, 54, 55, 56, 57, 59, 60, 61, 62, 63, 64, 65, 66, 67, 68
sPX, sPQ, sPo = 76, 80, 84
DK = 1
NSLOT = 6
XBASE = NSLOT * 16384
STORE_FLAGS = os.environ.get('K1_SF', ' sc1')
PF = int(os.environ.get('K1_PF', 1))
WST = int(os.environ.get('K1_WST', 6))
PFR = int(os.environ.get('K1_PFR', 3 if int(os.environ.get('K1_LPF', 0)) else 2))
PFM = int(os.environ.get('K1_PFM', 1))
XPF = int(os.environ.get('K1_XPF', 2))
sJ7 = 69
FUSE = int(os.environ.get('FUSE', 1))
LPF = int(os.environ.get('K1_LPF', 0))
Q0PF = int(os.environ.get('K1_Q0PF', 1))
sLx, sLw = 86, 87
sW5 = 96
Q0G = int(os.environ.get('K1_Q0G', 3))
LPG = int(os.environ.get('K1_LPG', 1)); LPS = int(os.environ.get('K1_LPS', 6))
PFG = int(os.environ.get('K1_PFG', 130))
DIAG = os.environ.get('DIAG')
def stamp(): return dstamp(31, 30, 29) if DIAG else []
MF = 'v_mfma_f32_16x16x32_bf16'
D = 28
sWoD = 70 if False else 95

def acc(par, ft, tt): return ACC + 64 * par + 4 * (4 * ft + tt)
def xfr(tt, kb): return (tt * 16 + kb) * 4
def wfr(fg, kl): return WF + 4 * (4 * (fg % 4) + kl)
def wfd(g, kbl): return WF + 4 * (2 * (g % 8) + kbl)

SLOTS = {3: [4, 5, 0, 1], 4: [6, 2, 8, 4], 5: [7, 3, 9, 5]}
def w_read(p, r):
    if r >= 128: p, r = p + 1, r - 128
    if p > 5: return None
    fg, kl, pp = r // 8, (r >> 1) & 3, r & 1
    u, ft = fg // 4, fg % 4
    sl = SLOTS[p][u]
    base = vWl + ft if sl < 4 else vWr + 4 * (sl // 4 - 1) + ft
    return f'ds_read_b64_tr_b16 {vr(wfr(fg,kl)+2*pp,2)}, v{base} offset:{(sl%4)*16384 + (32*kl + 4*pp)*128}'
def wd_read(r):
    g, kbl, p = r // 4, (r >> 1) & 1, r & 1
    c, ft = g // 8, g % 8
    return f'ds_read_b64_tr_b16 {vr(wfd(g,kbl)+2*p,2)}, v{vWl+(ft&3)} offset:{(c%4)*16384 + (ft>>2)*8192 + (32*kbl + 4*p)*128}'
def wd_dma(c, pad=False):
    L = [f's_add_u32 m0, s{sM0W}, {(c%4)*16384} ; tag=D{c}']
    if pad: L.append('s_nop 0')
    for q in range(4):
        L.append(f'buffer_load_dwordx4 v{vWd+q}, {sr(sW,4)}, s{sWoD} offen offset:{q*1024} lds ; tag=D{c}')
    L.append(f's_add_u32 s{sWoD}, s{sWoD}, s{sLdw64}')
    return L

def w_dma(p, u):
    srd = sW5 if p == 5 else sW
    L = [f's_add_u32 m0, s{sM0W}, {SLOTS[p][u]*16384} ; tag=W{p}{u}']
    for q in range(4):
        L.append(f'buffer_load_dwordx4 v{vWd+q}, {sr(srd,4)}, s{sWoff} offen offset:{q*1024} lds ; tag=W{p}{u}')
    if p != 4: L.append(f's_add_u32 s{sWoff}, s{sWoff}, s{sLdw128}')
    return L

def x_dma(c):
    slot = c % 3
    L = []
    for hh in range(2):
        L.append(f's_add_u32 m0, s{sM0X}, {slot*8192 + hh*4096} ; tag=X{c}' if slot < 2 else f's_add_u32 m0, s{sM0X2}, {hh*4096} ; tag=X{c}')
        L.append(f's_add_u32 s{sT0}, s{sXoff}, {c*128 + hh*32768}')
        for q in range(4):
            L.append(f'buffer_load_dwordx4 v{vXd+q}, {sr(sACT,4)}, s{sT0} offen offset:{q*1024} lds ; tag=X{c}')
    return L

def x_read(c, kbl, tt):
    if c % 3 == 2: return f'ds_read_b128 {ar(xfr(tt, 2*c+kbl),4)}, v{vXr2+kbl} offset:{tt*2048}'
    return f'ds_read_b128 {ar(xfr(tt, 2*c+kbl),4)}, v{vXr+kbl} offset:{(c%3)*8192 + tt*2048}'

def load_params(k):
    return [
        f's_add_u32 s{sT1}, s{sGcL}, {k}',
        f's_and_b32 s{sT1}, s{sT1}, 63',
        f's_lshl_b32 s{sT1}, s{sT1}, 7',
        f's_mul_i32 s{sWoff}, s{sWave}, s{sLdw}',
        f's_lshl_b32 s{sWoff}, s{sWoff}, 5',
        f's_add_u32 s{sWoff}, s{sWoff}, s{sT1}',
    ]

def comp_params():
    return [
        f's_lshr_b32 s{sT1}, s{sGc}, 1',
        f's_lshl_b32 s{sT1}, s{sT1}, 19',
        f's_and_b32 s{sT2}, s{sGc}, 1',
        f's_lshl_b32 s{sT2}, s{sT2}, 12',
        f's_add_u32 s{sT1}, s{sT1}, s{sT2}',
        f's_lshl_b32 s{sT2}, s{sBlk}, 13',
        f's_add_u32 s{sNOut0}, s{sT1}, s{sT2}',
        f's_add_u32 s{sNOut1}, s{sNOut0}, 8192',
        f's_sub_u32 s{sT1}, s{sGc}, 128',
        f's_lshl_b32 s{sT1}, s{sT1}, 18',
        f's_lshl_b32 s{sT2}, s{sBlk}, 12',
        f's_add_u32 s{sT1}, s{sT1}, s{sT2}',
        f's_add_u32 s{sT1}, s{sT1}, {BWS}',
        f's_add_u32 s{sT2}, s{sT1}, 4096',
        f's_cmp_ge_u32 s{sGc}, 128',
        f's_cselect_b32 s{sNOut0}, s{sT1}, s{sNOut0}',
        f's_cselect_b32 s{sNOut1}, s{sT2}, s{sNOut1}',
        f's_cmp_ge_u32 s{sGc}, 64',
        f's_cselect_b32 s{sType}, 1, 0',
        f's_sub_u32 s{sT1}, s{sGc}, 128',
        f's_cmp_lt_u32 s{sT1}, 16',
        f's_cselect_b32 s{sType}, 0, s{sType}',
    ]

def groups(L):
    out = []
    for x in L:
        if x.startswith('s_cselect'): out[-1].append(x)
        else: out.append([x])
    return out

def epi_part(par, ptype, n):
    V, S = [], []
    y = n >> 1
    for e in range(2):
        fi = 2 * (n & 1) + e
        pk = PK + 4 * ((2 * n + e) % 4)
        if ptype == 0: t0, t1 = acc(par, 2 * (fi >> 1), 2 * y + (fi & 1)), acc(par, 2 * (fi >> 1) + 1, 2 * y + (fi & 1))
        else: t0, t1 = acc(par, fi, 2 * y), acc(par, fi, 2 * y + 1)
        if ptype == 0:
            V += [f'v_mul_f32 v{t+j}, s{sScl}, v{t+j}' for t in (t0, t1) for j in range(4)]
        V += [f'v_cvt_pk_bf16_f32 v{pk}, v{t0}, v{t0+1}', f'v_cvt_pk_bf16_f32 v{pk+1}, v{t0+2}, v{t0+3}',
              f'v_cvt_pk_bf16_f32 v{pk+2}, v{t1}, v{t1+1}', f'v_cvt_pk_bf16_f32 v{pk+3}, v{t1+2}, v{t1+3}']
        S.append(f'buffer_store_dwordx4 {vr(pk,4)}, v{vSt}, {sr(sWS,4)}, s{sOut1 if y else sOut0} offen offset:{fi*1024}{STORE_FLAGS}')
    return V, S

class Blk:
    def __init__(self): self.mf = []; self.pre = {}; self.val = {}
    def P(self, g, x): self.pre.setdefault(g, []).extend(x if isinstance(x, list) else [x])
    def V(self, g, x): self.val.setdefault(g, []).extend(x if isinstance(x, list) else [x])
    def seq(self, g, items, st=2):
        for it in items:
            self.P(g, it); g += st
        return g
    def auto(self, g, items):
        for it in items:
            while g in self.pre or g % 2 == 0: g += 1
            self.P(g, it)
        return g
    def out(self): return weave(self.mf, self.pre, self.val)
def wgroups(dm): return [[x] for x in dm]
def xgroups(c):
    xd = x_dma(c)
    return [xd[0:2], [xd[2]], [xd[3]], [xd[4]], [xd[5]], xd[6:8], [xd[8]], [xd[9]], [xd[10]], [xd[11]]]
def rotate_params(): return [[f's_mov_b32 s{sOut0}, s{sNOut0}'], [f's_mov_b32 s{sOut1}, s{sNOut1}'], [f's_add_u32 s{sGc}, s{sGc}, 1'], [f's_sub_u32 s{sRem}, s{sRem}, 1']] + groups(comp_params())

def build_pass(ptype, p):
    par = (p + 1) & 1
    B = Blk()
    for G in range(256):
        u, ft, tt, kl = G // 64, (G >> 4) & 3, (G >> 2) & 3, G & 3
        fg = 4 * u + ft; kb = 4 * u + kl
        a = acc(par, ft, tt)
        w, x = vr(wfr(fg, kl), 4), ar(xfr(tt, kb), 4)
        c = '0' if kb == 0 else vr(a, 4)
        B.mf.append(f'{MF} {vr(a,4)}, ' + (f'{w}, {x}' if ptype == 0 else f'{x}, {w}') + f', {c}')
        if G % 16 == 0: B.P(G - 1 if G else (0, 'before'), f';NEED {vr(wfr(fg,0),16)}')
        if (G + D) % 64 == 0:
            nu = (G + D) // 64
            np_, nu = (p, nu) if nu < 4 else (p + 1, 0)
            if p == 3: B.P(G - 1, [f';VMNEED W{np_}{nu}' if np_ == 3 else ';VMNEED W40', 's_barrier'])
            elif p == 4 and nu in (1, 2, 3): B.P(G - 1, [f';VMNEED W4{nu}' if nu < 3 else ';VMNEED W53', 's_barrier'])
        if G % 2 == 0:
            x = w_read(p, (G + D) // 2)
            if x: B.P(G, x)
    for u in range(4):
        g0 = 64 * u
        if p == 3:
            if u < 3:
                B.seq(g0 + 1, wgroups(w_dma(4, u))[:1]);
                for k, it in enumerate(wgroups(w_dma(4, u))[1:]): B.P(g0 + 3 + 4 * k, it)
                wg = wgroups(w_dma(5, u)); B.P(g0 + 17, wg[0])
                for k in range(4): B.P(g0 + 19 + 4 * k, wg[1 + k])
                B.P(g0 + 33, wg[5])
            else:
                B.seq(g0 + 1, wgroups(w_dma(4, u))[:1])
                for k, it in enumerate(wgroups(w_dma(4, u))[1:]): B.P(g0 + 3 + 4 * k, it)
                wg = wgroups(w_dma(5, u)); B.P(g0 + 17, wg[0])
                for k in range(4): B.P(g0 + 19 + 4 * k, wg[1 + k])
        Vl, Sl = epi_part(par ^ 1, ptype, u)
        gs = [g for g in range(g0 + 9, g0 + 64) if g % 4 == 1][:len(Vl) // 2]
        for k, g in enumerate(gs): B.V(g, Vl[2*k:2*k+2])
        B.P(g0 + 39, Sl[0]); B.P(g0 + 59, Sl[1])
    if p == 4 and PFM == 1:
        B.auto(64 * 3 + 1, [[f's_mov_b32 s{sPX+2}, 0x200000', f's_mov_b32 s{sPQ+2}, 0x400000']] + [[x] for x in pf_loads()])
    rp = rotate_params()
    g = B.auto(41 if p != 3 else 125, [[f's_mov_b32 s{sQ0}, s{sNOut0}', f's_mov_b32 s{sQ1}, s{sNOut1}']] + rp[2:])
    assert g < 250, g
    if p == 5 and LPF:
        X = []
        for k in range(16): X.append([f'buffer_load_dwordx4 {vr(112+4*(k%4),4)}, v{vSt}, {sr(sPX,4)}, s{sLx} offen offset:{(k%4)*1024} ; nodep'] + ([f's_add_u32 s{sLx}, s{sLx}, 4096'] if k % 4 == 3 else []))
        for k in range(4): X.append([f'buffer_load_dwordx4 {vr(112+4*k,4)}, v28, {sr(sPQ,4)}, s{sLw} offen ; nodep', f's_add_u32 s{sLw}, s{sLw}, 32768'])
        g = LPG
        for x in X: g = B.auto(g, [x]) + LPS
    if p == 5 and Q0PF and FUSE:
        import k2
        B.P(1, 's_barrier')
        g = Q0G
        for grp in k2.q0_early(sWave, sPX, sPQ):
            while g in B.pre or g in B.val or g % 2 == 0: g += 1
            B.P(g, grp); g += (3 if grp[0].startswith('buffer') else 1)
        assert g < 250, g
    B.P(253, f's_mov_b32 s{sOut0}, s{sQ0}'); B.P(255, f's_mov_b32 s{sOut1}, s{sQ1}')
    return B.out()

def build_dp(t0, t1):
    B = Blk()
    for G in range(512):
        c, ft, tt, kbl = G // 64, (G >> 3) & 7, (G >> 1) & 3, G & 1
        g = 8 * c + ft; kb = 2 * c + kbl
        a = acc(ft >> 2, ft & 3, tt)
        w, x = vr(wfd(g, kbl), 4), ar(xfr(tt, kb), 4)
        cc = '0' if kb == 0 else vr(a, 4)
        B.mf.append(f'{MF} {vr(a,4)}, ' + (f'{w}, {x}' if (t1 if ft >> 2 else t0) == 0 else f'{x}, {w}') + f', {cc}')
        if G % 16 == 0:
            need = f';NEED {vr(wfd(g,0),16)}'
            if G % 64 == 0: need += ' ' + ' '.join(ar(xfr(t, 2 * c), 8) for t in range(4))
            B.P(G - 1 if G else (0, 'before'), need)
        if (G + D) % 64 == 0:
            nc = (G + D) // 64
            B.P(G - 1, [f';VMNEED D{nc}' if nc < 8 else ';VMNEED W30', 's_barrier'])
        if G % 2 == 0:
            r = (G + D) // 2
            B.P(G, wd_read(r) if r < 256 else w_read(3, r - 256))
    for c in range(8):
        g0 = 64 * c
        if c + 3 < 8: B.seq(g0 + 1, xgroups(c + 3)[:7]); B.seq(g0 + 17, xgroups(c + 3)[7:])
        if c == 0: B.seq(23, wgroups(wd_dma(2))[:4]); B.seq(33, [sum(wgroups(wd_dma(2))[4:], [])])
        if c + 3 < 8: B.seq(g0 + 37, wgroups(wd_dma(c + 3))[:5]); B.P(g0 + 49, wgroups(wd_dma(c + 3))[5])
        if c < 7:
            B.P(g0 + 45 if c + 3 >= 8 else g0 + 49, f';VMNEED X{c+1}')
            rs = [x_read(c + 1, kbl, tt) for kbl in range(2) for tt in range(4)]
            gs = [49, 51, 53, 55, 57, 59, 61, 61]
            for k, x in enumerate(rs): B.P(g0 + gs[k], x)
    for k, x in enumerate(groups(load_params(2))): B.P(64 * 4 + 23 + 2 * (k // 2), x)
    B.seq(64 * 5 + 37, wgroups(w_dma(3, 0))[:5]); B.P(64 * 5 + 45, wgroups(w_dma(3, 0))[5])
    B.seq(64 * 6 + 1, wgroups(w_dma(3, 1)))
    B.seq(64 * 6 + 19, wgroups(w_dma(3, 2)))
    B.seq(64 * 6 + 37, wgroups(w_dma(3, 3))[:5])
    for k, x in enumerate(groups(load_params(3))): B.P(64 * 7 + 1 + 2 * (k // 2), x)
    rp = rotate_params()
    g = 64 * 1 + 23
    for k, x in enumerate(rp): B.P(g + 2 * (k // 4), x)
    B.seq(64 * 7 + 11, [[f's_mov_b32 s{sQ0}, s{sNOut0}', f's_mov_b32 s{sQ1}, s{sNOut1}']])
    for k, x in enumerate(rp[2:]): B.P(64 * 7 + 17 + 2 * (k // 3), x)
    g = 64 * 7 + 37
    for n in range(4):
        Vl, Sl = epi_part(0, t0, n)
        h = len(Vl) // 2
        for e in range(2):
            B.V(g, Vl[e*h:e*h+h//2]); B.V(g + 1, Vl[e*h+h//2:(e+1)*h]); B.P(g + 2, Sl[e]); g += 3
    assert g <= 64 * 7 + 62, g
    B.P(511, [f's_mov_b32 s{sOut0}, s{sQ0}', f's_mov_b32 s{sOut1}, s{sQ1}'])
    if PF:
        for k in range(16):
            B.P(PFG + 2 * k, f'buffer_load_dwordx4 {vr(112+4*(k%4),4)}, v{vSt}, {sr(sW,4)}, s{sPf} offen offset:{(k%4)*1024} ; nodep')
            if k % 4 == 3: B.P(PFG + 2 * k, f's_add_u32 s{sPf}, s{sPf}, 4096')
    return B.out()

def pf_loads():
    L = [f'buffer_load_dwordx4 {vr(112+4*q,4)}, v{vSt}, {sr(sPX,4)}, s{sPo} offen offset:{q*1024} ; nodep' for q in range(2)]
    L += [f'buffer_load_dwordx4 {vr(112+4*q,4)}, v{vSt}, {sr(sPQ,4)}, s{sPo+1} offen offset:{q*1024} ; nodep' for q in range(4)]
    return L

def pf_local():
    L = [f's_mov_b32 s{sPX+2}, 0x200000', f's_mov_b32 s{sPQ+2}, 0x400000',
         f's_lshr_b32 s{sPo}, s2, 3', f's_lshl_b32 s{sPo}, s{sPo}, 16', f's_lshl_b32 s{sPo+1}, s{sWave}, 14', f's_add_u32 s{sPo}, s{sPo}, s{sPo+1}',
         'v_lshrrev_b32 v100, 4, v0', 'v_lshlrev_b32 v100, 13, v100', 'v_and_b32 v101, 15, v0', 'v_lshl_add_u32 v100, v101, 4, v100',
         f's_lshr_b32 s{sPo+1}, s2, 5', f's_lshl_b32 s{sPo+1}, s{sPo+1}, 2', f's_add_u32 s{sPo+1}, s{sPo+1}, s{sWave}', f's_lshl_b32 s{sPo+1}, s{sPo+1}, 17',
         f's_and_b32 s{sPo+2}, s2, 31', f's_lshl_b32 s{sPo+2}, s{sPo+2}, 8', f's_add_u32 s{sPo+1}, s{sPo+1}, s{sPo+2}']
    for q in range(4):
        L += [f'buffer_load_dwordx4 {vr(112+4*q,4)}, v100, {sr(sPQ,4)}, s{sPo+1} offen ; nodep', f's_add_u32 s{sPo+1}, s{sPo+1}, 32768']
    for k in range(16):
        L.append(f'buffer_load_dwordx4 {vr(112+4*(k%4),4)}, v{vSt}, {sr(sPX,4)}, s{sPo} offen offset:{(k%4)*1024} ; nodep')
        if k % 4 == 3: L.append(f's_add_u32 s{sPo}, s{sPo}, 4096')
    return L

def relayout_job():
    L = []; a = L.append
    vD, vR, vF = 32, 40, 56
    sU, sSrc, sDst, sA, sB, sS = 45, 46, 47, 48, 49, 88
    a('s_waitcnt lgkmcnt(0)')
    a(f's_mov_b32 s{sWS}, s26'); a(f's_mov_b32 s{sWS+1}, s27'); a(f's_mov_b32 s{sWS+2}, 0x10000000'); a(f's_mov_b32 s{sWS+3}, 0x20000')
    L += pf_setup() + [f's_mov_b32 s{sPX+2}, 0x200000', f's_mov_b32 s{sPQ+2}, 0x400000']
    a(f'v_lshlrev_b32 v{vSt}, 4, v0')
    for j in range(4): a(f'v_mov_b32 v{vF+j}, 0')
    a(f's_lshl_b32 s{sA}, s{sBlk}, 2'); a(f's_add_u32 s{sA}, s{sA}, s{sWave}'); a(f's_lshl_b32 s{sA}, s{sA}, 10'); a(f's_add_u32 s{sA}, s{sA}, {FLG}')
    if not int(os.environ.get('FUSE3', 0)): a(f'buffer_store_dwordx4 {vr(vF,4)}, v{vSt}, {sr(sWS,4)}, s{sA} offen{STORE_FLAGS}')
    L += pf_local() if PFM == 3 else pf_loads()
    if Q0PF and FUSE:
        L += ['v_lshrrev_b32 v100, 3, v0', 'v_lshlrev_b32 v101, 10, v100', 'v_lshrrev_b32 v102, 4, v0', 'v_and_b32 v103, 7, v0', 'v_xor_b32 v102, v102, v103']
        for q in range(4): L += [f'v_xor_b32 v104, {4*(q&1)}, v102', 'v_lshl_add_u32 v104, v104, 4, v101', f'v_add_u32 v{vXd+q}, {q*7168}, v104']
        a('s_call_b64 s[88:89], K1_Q0'); a('s_waitcnt vmcnt(0)')
    a('s_branch K1_END2' if FUSE else 's_branch K1_END')
    return L
def pf_setup():
    return [f's_mov_b64 {sr(sPX,2)}, s[4:5]', f's_mov_b32 s{sPX+3}, 0x20000', f's_mov_b64 {sr(sPQ,2)}, s[8:9]', f's_mov_b32 s{sPQ+3}, 0x20000',
            f's_mov_b32 s{sPX+2}, 0', f's_mov_b32 s{sPQ+2}, 0',
            f's_lshl_b32 s{sPo}, s2, 2', f's_add_u32 s{sPo}, s{sPo}, s{sWave}', f's_lshl_b32 s{sPo+1}, s{sPo}, 12', f's_lshl_b32 s{sPo}, s{sPo}, 11']

def lpf_setup():
    return [f's_lshr_b32 s{sLx}, s2, 3', f's_lshl_b32 s{sLx}, s{sLx}, 16', f's_lshl_b32 s{sT1}, s{sWave}, 14', f's_add_u32 s{sLx}, s{sLx}, s{sT1}',
            f's_lshr_b32 s{sLw}, s2, 5', f's_lshl_b32 s{sLw}, s{sLw}, 2', f's_add_u32 s{sLw}, s{sLw}, s{sWave}', f's_lshl_b32 s{sLw}, s{sLw}, 17',
            f's_and_b32 s{sT2}, s2, 31', f's_lshl_b32 s{sT2}, s{sT2}, 8', f's_add_u32 s{sLw}, s{sLw}, s{sT2}',
            'v_lshrrev_b32 v28, 4, v0', 'v_lshlrev_b32 v28, 13, v28', 'v_and_b32 v100, 15, v0', 'v_lshl_add_u32 v28, v100, 4, v28']

def final_epi(par, ptype):
    L = ['s_nop 7']
    if PFM == 2: L = [f's_mov_b32 s{sPX+2}, 0x200000', f's_mov_b32 s{sPQ+2}, 0x400000'] + pf_loads() + ['s_nop 1']
    for n in range(4):
        Vl, Sl = epi_part(par, ptype, n)
        h = len(Vl) // 2
        L += Vl[:h] + [Sl[0]] + Vl[h:] + [Sl[1]]
    return L

def gen_k1(T=int(os.environ.get('K1_T', 4))):
    name = 'k1_kernel'
    L = []
    a = L.append
    a(f'.p2align 8\n.type {name},@function\n{name}:')
    a('s_cmp_ge_u32 s2, 256'); a('s_cbranch_scc1 K1_END')
    if os.environ.get('GDIAG'): a('s_mov_b32 s100, -1')
    if os.environ.get('CPF', '1') == '1': L += code_prefetch('k1_kernel', 'CODE_END', 'K1', 98, 99, 90, 16)
    a('s_load_dwordx16 s[4:19], s[0:1], 0'); a('s_load_dwordx8 s[20:27], s[0:1], 64')
    a('v_lshrrev_b32 v1, 6, v0'); a('v_and_b32 v0, 63, v0')
    a(f'v_readfirstlane_b32 s{sWave}, v1')
    if DIAG: a('s_mov_b32 s72, 0'); a('v_mov_b32 v31, 0'); a('v_mov_b32 v29, 0'); L += stamp()
    nj = 32 // T
    lt = T.bit_length() - 1
    a(f's_and_b32 s{sT0}, s2, 7'); a(f's_lshr_b32 s{sT1}, s2, 3')
    ng = 8 // T
    a(f's_and_b32 s{sT2}, s{sT0}, {ng-1}'); a(f's_lshl_b32 s{sT2}, s{sT2}, {lt}')
    a(f's_and_b32 s{sBlk}, s{sT1}, {T-1}'); a(f's_add_u32 s{sBlk}, s{sBlk}, s{sT2}')
    a(f's_lshr_b32 s{sT0}, s{sT0}, {ng.bit_length()-1}'); a(f's_mul_i32 s{sT0}, s{sT0}, {nj}')
    a(f's_lshr_b32 s{sT1}, s{sT1}, {lt}'); a(f's_add_u32 s{sT0}, s{sT0}, s{sT1}')
    a(f's_lshl_b32 s94, s{sT0}, 2'); a('s_add_u32 s94, s94, 128')
    a(f's_cmp_eq_u32 s{sT0}, 31'); a('s_cbranch_scc1 K1_RELAY')
    a(f's_and_b32 s{sJ7}, s{sT0}, 7'); a(f's_lshl_b32 s{sJ7}, s{sJ7}, 7')
    a(f's_lshl_b32 s{sXoff}, s{sBlk}, 18'); a(f's_lshl_b32 s{sT1}, s{sWave}, 16'); a(f's_add_u32 s{sXoff}, s{sXoff}, s{sT1}')
    a(f's_lshl_b32 s{sBlk}, s{sBlk}, 3'); a(f's_lshl_b32 s{sT1}, s{sWave}, 1'); a(f's_add_u32 s{sBlk}, s{sBlk}, s{sT1}')
    a(f's_mul_i32 s{sT1}, s{sT0}, 79'); a(f's_lshr_b32 s{sT1}, s{sT1}, 10')
    a(f's_mul_i32 s{sT2}, s{sT1}, 13'); a(f's_sub_u32 s{sT2}, s{sT0}, s{sT2}')
    a(f's_lshl_b32 s{sPf}, s{sT2}, 19'); a(f's_lshr_b32 s{sGc}, s{sXoff}, 2'); a(f's_add_u32 s{sPf}, s{sPf}, s{sGc}')
    a(f's_mov_b32 s{sRem}, 5')
    a(f's_cmp_eq_u32 s{sT2}, 12'); a(f's_cselect_b32 s{sRem}, 4, s{sRem}')
    a(f's_cmp_eq_u32 s{sT0}, 30'); a(f's_cselect_b32 s{sRem}, 4, s{sRem}')
    a(f's_mul_i32 s{sT2}, s{sT2}, 5')
    a(f's_lshl_b32 s{sGc}, s{sT1}, 6'); a(f's_add_u32 s{sGc}, s{sGc}, s{sT2}')
    a(f's_lshl_b32 s{sM0W}, s{sWave}, 12')
    a(f's_lshl_b32 s{sM0X}, s{sWave}, 14'); a(f's_add_u32 s{sM0X}, s{sM0X}, {XBASE}')
    a(f's_lshl_b32 s{sM0X2}, s{sWave}, 13'); a(f's_add_u32 s{sM0X2}, s{sM0X2}, 65536')
    a(f'v_lshlrev_b32 v{vSt}, 4, v0')
    t = [100, 101, 102, 103, 104]
    a(f'v_lshrrev_b32 v{t[0]}, 3, v0'); a(f'v_lshlrev_b32 v{t[1]}, 10, v{t[0]}')
    a(f'v_lshrrev_b32 v{t[2]}, 4, v0'); a(f'v_and_b32 v{t[3]}, 7, v0'); a(f'v_xor_b32 v{t[2]}, v{t[2]}, v{t[3]}')
    for q in range(4):
        a(f'v_xor_b32 v{t[4]}, {4*(q&1)}, v{t[2]}'); a(f'v_lshl_add_u32 v{t[4]}, v{t[4]}, 4, v{t[1]}'); a(f'v_add_u32 v{vXd+q}, {q*7168}, v{t[4]}')
    a(f'v_and_b32 v{t[0]}, 15, v0'); a(f'v_lshrrev_b32 v{t[1]}, 4, v0'); a(f'v_bfe_u32 v{t[2]}, v0, 1, 3')
    a(f'v_lshlrev_b32 v{t[0]}, 7, v{t[0]}')
    for kbl in range(2):
        a(f'v_add_u32 v{t[4]}, {4*kbl}, v{t[1]}'); a(f'v_xor_b32 v{t[4]}, v{t[4]}, v{t[2]}'); a(f'v_lshl_add_u32 v{t[4]}, v{t[4]}, 4, v{t[0]}')
        a(f'v_add_u32 v{vXr+kbl}, s{sM0X}, v{t[4]}'); a(f'v_add_u32 v{vXr2+kbl}, s{sM0X2}, v{t[4]}')
    a(f'v_bfe_u32 v{t[0]}, v0, 2, 2'); a(f'v_lshrrev_b32 v{t[1]}, 4, v0'); a(f'v_lshl_add_u32 v{t[1]}, v{t[1]}, 3, v{t[0]}'); a(f'v_lshlrev_b32 v{t[1]}, 7, v{t[1]}')
    a(f'v_and_b32 v{t[2]}, 3, v0'); a(f'v_lshl_add_u32 v{t[1]}, v{t[2]}, 3, v{t[1]}')
    a(f'v_bfe_u32 v{t[2]}, v0, 3, 2')
    for ft in range(4):
        a(f'v_xor_b32 v{t[3]}, {ft}, v{t[2]}'); a(f'v_lshl_add_u32 v{vWl+ft}, v{t[3]}, 5, v{t[1]}'); a(f'v_add_u32 v{vWr+ft}, 65536, v{vWl+ft}'); a(f'v_add_u32 v{vWr+4+ft}, 131072, v{vWl+ft}')
    a('s_waitcnt lgkmcnt(0)')
    a(f's_mov_b32 s{sWS}, s26'); a(f's_mov_b32 s{sWS+1}, s27'); a(f's_mov_b32 s{sWS+2}, 0x10000000'); a(f's_mov_b32 s{sWS+3}, 0x20000')
    a(f's_mov_b32 s{sW+3}, 0x20000'); a(f's_mov_b32 s{sACT+2}, 0x200000'); a(f's_mov_b32 s{sACT+3}, 0x20000')
    L += pf_setup()
    if os.environ.get('GDIAG'):
        a('s_mov_b32 s96, s24'); a('s_mov_b32 s97, s25'); a('s_mov_b32 s98, 256'); a('s_mov_b32 s99, 0x20000')
        a('s_mov_b32 s100, -1'); a(f's_cmp_eq_u32 s2, {os.environ.get("GA", 66)}'); a('s_cselect_b32 s100, 0, s100'); a(f's_cmp_eq_u32 s2, {os.environ.get("GB", 103)}'); a('s_cselect_b32 s100, 32, s100'); a(f's_cmp_lg_u32 s{sWave}, 0'); a('s_cselect_b32 s100, -1, s100')
        L += gstamp(0, 96, 96, 97, neg=True) + gstamp(1, 96, 96, 97)
    a(f's_cmp_eq_u32 s{sT1}, 0'); a(f's_cselect_b64 {sr(sW,2)}, s[10:11], s[12:13]'); a(f's_cselect_b32 s{sScl}, {f32(CA)}, 1.0')
    a(f's_cmp_eq_u32 s{sT1}, 2'); a(f's_cselect_b64 {sr(sW,2)}, s[18:19], {sr(sW,2)}'); a(f's_cselect_b64 {sr(sACT,2)}, s[16:17], s[6:7]')
    a(f's_movk_i32 s{sLdw}, 8192'); a(f's_cselect_b32 s{sLdw}, 3072, s{sLdw}')
    a(f's_mov_b32 s{sWsz}, 0x400000'); a(f's_cselect_b32 s{sWsz}, 0x180000, s{sWsz}')
    a(f's_lshl_b32 s{sLdw128}, s{sLdw}, 7'); a(f's_lshl_b32 s{sLdw64}, s{sLdw}, 6')
    a(f'v_lshrrev_b32 v{t[0]}, 3, v0'); a(f'v_mul_lo_u32 v{t[0]}, v{t[0]}, s{sLdw}')
    a(f'v_bfe_u32 v{t[1]}, v0, 4, 1'); a(f'v_lshlrev_b32 v{t[1]}, 1, v{t[1]}'); a(f'v_and_b32 v{t[2]}, 7, v0'); a(f'v_xor_b32 v{t[1]}, v{t[1]}, v{t[2]}')
    a(f's_lshl_b32 s{sT1}, s{sLdw}, 3'); a(f's_sub_u32 s{sT1}, s{sT1}, 1024')
    for q in range(4):
        a(f'v_xor_b32 v{t[2]}, {4*(q&1)}, v{t[1]}'); a(f'v_lshl_add_u32 v{vWd+q}, v{t[2]}, 4, v{t[0]}')
        if q < 3: a(f'v_add_u32 v{t[0]}, s{sT1}, v{t[0]}')
    a(f's_mov_b32 s{sGcL}, s{sGc}'); a(f's_mov_b32 s{sW+2}, s{sWsz}')
    a(f's_add_u32 s{sW5}, s{sW}, 128'); a(f's_addc_u32 s{sW5+1}, s{sW+1}, 0'); a(f's_sub_u32 s{sW5+2}, s{sWsz}, 128'); a(f's_mov_b32 s{sW5+3}, 0x20000')
    a(f's_cmp_eq_u32 s{sRem}, 5'); a(f's_cselect_b32 s{sW5+2}, s{sW5+2}, 0')
    a(f's_and_b32 s{sT1}, s{sGc}, 63'); a(f's_lshr_b32 s{sT2}, s{sWave}, 1'); a(f's_add_u32 s{sT1}, s{sT1}, s{sT2}'); a(f's_lshl_b32 s{sT1}, s{sT1}, 7')
    a(f's_and_b32 s{sT2}, s{sWave}, 1'); a(f's_mul_i32 s{sWoD}, s{sT2}, s{sLdw}'); a(f's_lshl_b32 s{sWoD}, s{sWoD}, 5'); a(f's_add_u32 s{sWoD}, s{sWoD}, s{sT1}')
    xpf = [f'v_lshlrev_b32 v97, 10, v0', f's_add_u32 s{sT1}, s{sXoff}, s{sJ7}', f'buffer_load_dword v96, v97, {sr(sACT,4)}, s{sT1} offen ; nodep'] if XPF else []
    pro = wd_dma(0, True) + x_dma(0) + xpf + wd_dma(1, True) + x_dma(1) + comp_params()
    pro += [';VMNEED X0', 's_barrier']
    pro += [wd_read(i) for i in range(4)] + [x_read(0, kbl, tt) for tt in range(4) for kbl in range(2)] + [wd_read(i) for i in range(4, D // 2)]
    pro += x_dma(2) + (lpf_setup() if LPF else [])
    pro = auto_waits([], pro)
    L += pro
    L += stamp() + gstamp(2, 96, 100, 101) + gstamp(3, 96, 100, 101, neg=True)
    a(f's_cmp_eq_u32 s{sType}, 1'); a('s_cbranch_scc1 K1_D11'); a(f's_cmp_eq_u32 s{sGc}, 143'); a('s_cbranch_scc1 K1_D01')
    code = {}
    dps = [(0, 0), (0, 1), (1, 1)]
    for t0_, t1_ in dps:
        code['D', t0_, t1_] = auto_waits(pro, build_dp(t0_, t1_))
    if Q0PF and FUSE:
        import k2
        q0 = [x for g in k2.q0_early(sWave, sPX, sPQ) for x in g]
    for t_ in range(2):
        code[3, t_] = auto_waits(pro + code['D', 0, 0], build_pass(t_, 3))
        code[4, t_] = auto_waits(code['D', 0, 0] + code[3, t_], build_pass(t_, 4))
        code[5, t_] = auto_waits(code[3, t_] + code[4, t_], build_pass(t_, 5))
    for t0_, t1_ in dps:
        a(f'.p2align 6\nK1_D{t0_}{t1_}:'); L += code['D', t0_, t1_] + gstamp(4, 96, 100, 101) + stamp()
        if (t0_, t1_) != (1, 1): a(f's_branch K1_P{t1_}')
    q0call = ['s_barrier', 's_call_b64 s[88:89], K1_Q0'] if Q0PF and FUSE else []
    for t_ in (1, 0):
        a(f'K1_P{t_}:'); L += code[3, t_] + stamp() + code[4, t_] + stamp() + [f's_cmp_eq_u32 s{sRem}, 0', f's_cbranch_scc1 K1_FIN{t_}1'] + code[5, t_] + stamp()
        L += final_epi(0, t_); a('s_branch K1_END2')
        a(f'K1_FIN{t_}1:'); L += q0call + final_epi(1, t_); a('s_waitcnt vmcnt(8)' if not q0call else 's_waitcnt vmcnt(0)'); a('s_branch K1_END2')
    a('K1_RELAY:'); L += relayout_job()
    if PFM == 3:
        a('K1_PFL:'); L += pf_local() + ['s_setpc_b64 s[88:89]']
    if Q0PF and FUSE:
        a('K1_Q0:'); L += q0 + ['s_setpc_b64 s[88:89]']
    a('K1_END:'); a('s_endpgm')
    a('K1_END2:')
    if DIAG:
        L += stamp()
        if not FUSE: a('s_waitcnt vmcnt(0)')
        L += stamp()
        L += dstore(31, 30, 29, sWave, sWS, 200)
    if FUSE: a('s_waitcnt vmcnt(8) lgkmcnt(0)')
    else: a('s_endpgm')
    check_trace(pro + code['D', 0, 0] + code[3, 0] + code[4, 0] + code[5, 0] + final_epi(0, 0), 'k1a')
    check_trace(pro + code['D', 0, 1] + code[3, 1] + code[4, 1] + final_epi(1, 1), 'k1b')
    return L, kdesc(name, 512, 256), f'; @launch kernel={name} grid=(256,1,1) block=(256,1,1) lds=163840'
```

```python
from lib import *
from layout import *
import os, struct, math
def f32(x): return '0x%08x' % struct.unpack('<I', struct.pack('<f', x))[0]
DIAG = os.environ.get('DIAG')
FUSE = int(os.environ.get('FUSE', 1))
Q0PF = int(os.environ.get('K1_Q0PF', 1)) and FUSE
FUSE3 = int(os.environ.get('FUSE3', 0))
sSig = 88
sDB = 80
KVF = os.environ.get('K2_KVF', ' sc1')
SF = os.environ.get('K2_SF', ' sc1')
THR = 2.0 ** float(os.environ.get('THR', 40.0))
NEGBIG = -1.0e30
D = int(os.environ.get('K2_D', 24))
MF = 'v_mfma_f32_16x16x32_bf16'
vL16, vRd, vq, vBig, vd, vl, vt, vT = 1, 2, 4, 5, 6, 8, 12, 16
NM = 20
vDl = 36
vDG = 44
S0, P0, TMPV, Q0, TMPB = 48, 112, 144, 176, 240
O0, FR = 0, 128
sWS, sX, sWQ, sWO, sWB = 8, 12, 16, 60, 64
sW, sH, sI, sK, sV, sSR, sSW, sCnt, sKc, sMq, sRet, sT, sMk, sW2, sW4 = 20, 21, 22, 23, 24, 25, 26, 27, 28, 29, 30, 32, 40, 48, 49
sW2K, sW4K = 58, 59
sFa, sFw = 92, 93
sK2, sV2 = 84, 86
sXa, sXb, sWo, sXs = 50, 51, 52, 53

def stamp(): return dstamp(vDG, vDG + 1, vDG + 2) if DIAG else []
def Sr(par, idx): return S0 + 32 * par + 4 * idx
def Pr(par, u): return P0 + 16 * par + 4 * u
def Or(qt, dt): return O0 + 32 * qt + 4 * dt
def Qr(qt, db): return Q0 + 16 * qt + 4 * db
def slot(g): return FR + 4 * ((g // 2) % 16)
def tq(t, idx): return (idx & 3) if t == 'c' else 2 + (idx & 1)
def tkt(t, idx): return (idx >> 2) if t == 'c' else (idx >> 1)
def tP(t, idx):
    if t == 'c': return idx & 3, idx >> 2
    kt = idx >> 1
    return 2 * (kt >> 1) + (idx & 1), kt & 1

def pv_frags(t):
    if t == 'c': return [(4 * dt, 4 * dt, dt * 1024) for dt in range(8)]
    return [(4 * dt + 2 * kb, 4 * dt + kb, kb * 8192 + dt * 1024) for dt in range(8) for kb in range(2)]
def koff(kt, db): return (kt >> 1) * 8192 + (2 * db + (kt & 1)) * 1024
def qk_frags(t):
    if t == 'c': return [(34 + 16 * kt + 4 * db, 32 + 16 * kt + db, 16384 + koff(kt, db)) for kt in range(2) for db in range(4)]
    return [(32 + 8 * kt + 2 * db, 32 + 8 * kt + db, 16384 + koff(kt, db)) for kt in range(4) for db in range(4)]
def rd(g, off, par): return f'ds_read_b128 {ar(slot(g),4)}, v{vRd+par} offset:{off}'

def pv_mfmas(t, par):
    out = []
    for dt in range(8):
        for x in range(4):
            if t == 'c': qt, u, g = x, x, 4 * dt
            else:
                q, kb = x >> 1, x & 1
                qt, u, g = 2 + q, 2 * kb + q, 4 * dt + 2 * kb
            o = Or(qt, dt)
            out.append(f'{MF} {ar(o,4)}, {ar(slot(g),4)}, {vr(Pr(par,u),4)}, {ar(o,4)}')
    return out
def qk_mfmas(t, par, czero=False, fr=None):
    out = []
    nkt, nq = (2, 4) if t == 'c' else (4, 2)
    for kt in range(nkt):
        for x in range(nq):
            for db in range(4):
                g = 32 + (16 * kt + 4 * db + 2 if t == 'c' else 8 * kt + 2 * db)
                f = ar(slot(g), 4) if fr is None else fr(kt, db)
                idx = nq * kt + x; qt = tq(t, idx); s = Sr(par, idx)
                c = vr(s, 4) if db else ('0' if czero else vr(NM + 4 * qt, 4))
                out.append(f'{MF} {vr(s,4)}, {f}, {vr(Qr(qt,db),4)}, {c}')
    return out

sRet2 = 78
MASKS = set()
def mask_call(par, t):
    MASKS.add((par, t))
    return [f's_call_b64 {sr(sRet2,2)}, K2_MASK_{par}{t}']
def mask_routine(par, t):
    n = f'K2_MASK_{par}{t}'
    L = [f'{n}:', f's_ashr_i32 s{sT+4}, s{sMq}, 5', f's_sub_i32 s{sT+4}, s{sT+4}, s{sW}']
    for b in range(1 if t == 'c' else 2):
        T = (lambda kt, q: Sr(par, 4 * kt + q)) if t == 'c' else (lambda kt, q, b=b: Sr(par, 2 * (2 * b + kt) + q))
        L += [f's_cmp_lt_i32 s{sT+4}, {-b}', f's_cbranch_scc1 {n}_e{b}', f's_cmp_eq_i32 s{sT+4}, {-b}', f's_cbranch_scc1 {n}_d{b}']
        for kt, q in ((0, 0), (0, 1), (1, 1)): L += [f'v_mov_b32 v{T(kt,q)+j}, v{vBig}' for j in range(4)]
        L += [f's_branch {n}_f{b}', f'{n}_d{b}:']
        for kt, q in ((0, 0), (1, 1)): L += [f'v_cndmask_b32 v{T(kt,q)+j}, v{T(kt,q)+j}, v{vBig}, {sr(sMk+2*j,2)}' for j in range(4)]
        L += [f'{n}_f{b}:'] + [f'v_mov_b32 v{T(1,0)+j}, v{vBig}' for j in range(4)] + [f'{n}_e{b}:']
    return L + [f's_setpc_b64 {sr(sRet2,2)}']

def exp_ops(par, t):
    L = []; seen = set()
    def tail(idx):
        s = Sr(par, idx); qt = tq(t, idx); u, h = tP(t, idx); a = vt + qt
        if qt not in seen:
            seen.add(qt); x = [f'v_add_f32 v{a}, v{s}, v{s+1}']
        else: x = [f'v_add_f32 v{a}, v{a}, v{s}', f'v_add_f32 v{a}, v{a}, v{s+1}']
        p = Pr(par, u) + 2 * h
        return x + [f'v_cvt_pk_bf16_f32 v{p}, v{s}, v{s+1}', f'v_add_f32 v{a}, v{a}, v{s+2}', f'v_add_f32 v{a}, v{a}, v{s+3}', f'v_cvt_pk_bf16_f32 v{p+1}, v{s+2}, v{s+3}']
    prev = None
    for idx in range(8):
        s = Sr(par, idx)
        e = [f'v_exp_f32 v{s+j}, v{s+j}' for j in range(4)]
        tl = tail(prev) if prev is not None else []
        L += [e[0]] + tl[:2] + [e[1]] + tl[2:4] + [e[2]] + tl[4:] + [e[3]]
        prev = idx
    L += ['s_nop 0'] + tail(prev)
    return L
def lupd(t): return [f'v_add_f32 v{vl+q}, v{vl+q}, v{vt+q}' for q in ((0, 1, 2, 3) if t == 'c' else (2, 3))]
def chk(t):
    if t == 'c': L = [f'v_max3_f32 v{vT}, v{vt}, v{vt+1}, v{vt+2}', f'v_max_f32 v{vT}, v{vT}, v{vt+3}']
    else: L = [f'v_max_f32 v{vT}, v{vt+2}, v{vt+3}']
    return L + [f'v_cmp_nge_f32 vcc, {f32(THR)}, v{vT}']

def adv64(p, x): return [f's_add_u32 s{p}, s{p}, {x}', f's_addc_u32 s{p+1}, s{p+1}, 0']
def dma_part(kind, t, tag):
    so = sV2 if kind == 'V' else sK2
    w = (sW4 if t == 's' else sW2) if kind == 'V' else (sW4K if t == 's' else sW2K)
    n = 4 if t == 's' else 2
    items = [[f's_add_u32 m0, s{sSW}, s{w} ; tag={tag}']]
    for q in range(n):
        items.append([f'global_load_lds_dwordx4 v{vL16}, {sr(so,2)} offset:{q*1024}{KVF} ; tag={tag}'])
    items.append(adv64(so, n * 4096))
    return items
def flat(L):
    o = []
    for x in L:
        if isinstance(x, list): o += flat(x)
        else: o.append(x)
    return o

STUBS = []
def body(par, pv, sm, qk, nxt_pv, vload, kload, mask, uid):
    psm = par ^ 1
    mf = []
    if pv: mf += pv_mfmas(pv, par)
    if qk: mf += qk_mfmas(qk, par)
    ng = len(mf)
    pre = {}
    def P(g, x): pre.setdefault(g, []).extend(x if isinstance(x, list) else [x])
    frs = (pv_frags(pv) if pv else []) + (qk_frags(qk) if qk else [])
    for g, fu, off in frs:
        if g - D >= 0: P(g - D, rd(g, off, par))
    for g0 in range(0, ng, 8):
        need = [ar(slot(g), 4) for g, fu, off in frs if g0 <= fu < g0 + 8]
        if not need: continue
        P(g0 - 1 if g0 else (0, 'before'), ';NEED ' + ' '.join(need))
    if nxt_pv:
        gb = ng - D
        P(gb - 3, [f';VMNEED U{par^1}', 's_barrier'])
        for g, fu, off in pv_frags(nxt_pv):
            if g < D: P(ng + g - D, rd(g, off, par ^ 1))
    items = []
    if vload: items += dma_part('V', vload, f'U{par}')
    if kload: items += dma_part('K', kload, f'U{par}')
    if nxt_pv: items += [[f's_add_u32 s{sSR}, s{sSR}, 32768'], [f's_and_b32 s{sSR}, s{sSR}, 0x1ffff']]
    if vload or kload: items += [[f's_add_u32 s{sSW}, s{sSW}, 32768'], [f's_and_b32 s{sSW}, s{sSW}, 0x1ffff']]
    if sm:
        items += [[f's_add_u32 s{sKc}, s{sKc}, {8192 if pv == "c" else 16384}']]
        if mask is None: items += [[f's_mov_b32 s{sMq}, -4096']]
        else: P(3, [f's_mov_b32 s{sMq}, {32*mask}'] + mask_call(psm, sm))
    free = [g for g in range(1, ng) if g not in pre and not (g == ng - 1)]
    lim = (ng - D - 2) if nxt_pv else ng - 2
    gi = 0; lastd = -9
    for it in items:
        isd = it[0].startswith(('buffer', 'global'))
        while gi < len(free) and (isd and free[gi] - lastd < DSP): gi += 1
        g = free[gi]; gi += 1
        if isd:
            lastd = g
        P(g, it)
    Pq = []; Eq = []
    if nxt_pv: Pq.append(f'v_add_u32 v{vRd+(par^1)}, s{sSR}, v{vL16}')
    if pv: Pq += lupd(pv)
    if sm:
        for x in exp_ops(psm, sm):
            if x.startswith('v_exp'): Eq.append(x)
            elif x.startswith('v_'): Pq.append(x)
        NL = int(os.environ.get('K2_NL', 6))
        cv = [k for k, x in enumerate(Pq) if x.startswith('v_cvt')][-NL:]
        late = [Pq[k] for k in cv]
        Pq = [x for k, x in enumerate(Pq) if k not in cv] + chk(sm) + late
    cap = {}
    for g in range(ng):
        n = sum(2 if x.startswith(('buffer', 'ds_', 'global')) else 1 for x in pre.get(g, []))
        cap[g] = max(0, 2 - max(0, n - 1))
    last = ng - 1 if qk else ng - 2
    total = 2 * len(Eq) + len(Pq)
    def sched(extra):
        cp = dict(cap)
        for k in range(extra): cp[(k * (last + 1) // max(extra, 1)) % (last + 1)] += 1
        val = {}; pi = ei = 0
        eiss = {}
        ereg = [Ins(x).w for x in Eq]; allE = set().union(*ereg) if ereg else set()
        pend_mask = {}
        for k, x in enumerate(Pq):
            if x.startswith('v_cndmask'):
                for r in Ins(x).w: pend_mask[r] = k
        for g in range(last + 1):
            sl = cp[g]
            while sl > 0:
                if ei < len(Eq) and sl >= 2 and (mask is None or g >= 3):
                    val.setdefault(g, []).append(Eq[ei])
                    for r in ereg[ei]: eiss[r] = g
                    ei += 1; sl -= 2; continue
                if pi < len(Pq):
                    x = Pq[pi]; ins = Ins(x)
                    ok = x.startswith('v_cndmask') or all(eiss.get(r, 999) < g for r in ins.r & allE)
                    if ok:
                        val.setdefault(g, []).append(x); pi += 1; sl -= 1; continue
                break
        return val, (len(Eq) - ei) + (len(Pq) - pi)
    extra = 0
    while True:
        val, left = sched(extra)
        if left == 0: break
        extra += 1
    if os.environ.get('VERB'): print(uid, 'valu', total, 'avail', sum(cap[g] for g in range(last + 1)), 'extra', extra)
    if sm:
        pre.setdefault(ng - 1, []).extend([f's_cbranch_vccnz K2_S_{uid}', f'K2_R_{uid}:'])
        STUBS.extend([f'K2_S_{uid}:', f's_call_b64 {sr(sRet,2)}, K2_RARE_{psm}{sm}{qk or "n"}', f's_branch K2_R_{uid}'])
        RARES.add((psm, sm, qk or 'n'))
    return weave(mf, pre, val)
RARES = set()
DSP = int(os.environ.get('K2_DSP', 3))

def xlane(op, r, tmp):
    return [f'v_mov_b32 v{tmp}, v{r}', 's_nop 1', f'v_permlane32_swap_b32 v{r}, v{tmp}', f'{op} v{r}, v{r}, v{tmp}',
            f'v_mov_b32 v{tmp}, v{r}', 's_nop 1', f'v_permlane16_swap_b32 v{r}, v{tmp}', f'{op} v{r}, v{r}, v{tmp}']
def deltas(par, t, clamp):
    qs = (0, 1, 2, 3) if t == 'c' else (2, 3)
    ch = []
    for q in qs:
        regs = [Sr(par, i) + j for i in range(8) if tq(t, i) == q for j in range(4)]
        c = [f'v_max_f32 v{vDl+q}, v{regs[0]}, v{regs[1]}']
        for k in range(2, len(regs), 2): c.append(f'v_max3_f32 v{vDl+q}, v{vDl+q}, v{regs[k]}, v{regs[k+1]}')
        tmp = vDl + 4 + q
        for sw in ('32', '16'):
            c += [f'v_mov_b32 v{tmp}, v{vDl+q}', f'v_permlane{sw}_swap_b32 v{vDl+q}, v{tmp}', f'v_max_f32 v{vDl+q}, v{vDl+q}, v{tmp}']
        c.append(f'v_ceil_f32 v{vDl+q}, v{vDl+q}')
        if clamp: c.append(f'v_max_f32 v{vDl+q}, 0, v{vDl+q}')
        ch.append(c)
    L = []
    for k in range(len(ch[0])):
        if len(qs) == 2 and 'permlane' in ch[0][k]: L.append('s_nop 0')
        for c in ch: L.append(c[k])
    return L
def sub_tiles(par, t): return [f'v_sub_f32 v{Sr(par,i)+j}, v{Sr(par,i)+j}, v{vDl+tq(t,i)}' for i in range(8) for j in range(4)]

def rare(par, t, tn):
    L = [f'K2_RARE_{par}{t}{tn}:', 's_nop 7', 's_nop 7']
    nkt = 2 if t == 'c' else 4
    R = []
    mf = qk_mfmas(t, par, fr=lambda kt, db: vr(TMPV + 16 * (kt & 1) + 4 * db, 4))
    per = len(mf) // nkt
    for k0 in range(0, nkt, 2):
        R.append(f's_add_u32 s{sT+4}, s{sKc}, {k0*4096}'); R.append(f's_add_u32 s{sT+5}, s{sT+4}, 4096')
        for kt in range(2):
            for db in range(4):
                o = (2 * db + kt) * 1024
                R.append(f'buffer_load_dwordx4 {vr(TMPV+16*kt+4*db,4)}, v{vL16}, {sr(sWS,4)}, s{sT+4+(o>>12)} offen offset:{o&4095}{KVF}')
        R.append('s_waitcnt vmcnt(0)')
        R += mf[per*k0:per*(k0+2)] + ['s_nop 7']
    R += mask_call(par, t) + deltas(par, t, True)
    if t == 's': R += [f'v_mov_b32 v{vDl}, 0', f'v_mov_b32 v{vDl+1}, 0']
    R += sub_tiles(par, t)
    if tn != 'n': R += sub_tiles(par ^ 1, tn)
    for q in range(4):
        for j in range(4): R.append(f'v_sub_f32 v{NM+4*q+j}, v{NM+4*q+j}, v{vDl+q}')
        R.append(f'v_exp_f32 v{vDl+4+q}, -v{vDl+q}')
    R += exp_ops(par, t)
    for q in range(4): R.append(f'v_mul_f32 v{vl+q}, v{vl+q}, v{vDl+4+q}')
    R += [f's_branch K2_RESC_{t}']
    check_trace(R, f'rare{par}{t}{tn}', bool(os.environ.get('VERB')))
    return L + R

def rescale_o():
    R = []
    for q in range(4):
        if q in (0, 2): R.append('K2_RESC_c:' if q == 0 else 'K2_RESC_s:')
        for j0 in range(0, 32, 8):
            for j in range(8): R.append(f'v_accvgpr_read_b32 v{TMPV+j}, a{Or(q,0)+j0+j}')
            for j in range(8): R.append(f'v_mul_f32 v{TMPV+j}, v{TMPV+j}, v{vDl+4+q}')
            for j in range(8): R.append(f'v_accvgpr_write_b32 a{Or(q,0)+j0+j}, v{TMPV+j}')
    return R + ['s_nop 1', f's_setpc_b64 {sr(sRet,2)}']

K = 1024
XS = [[96*K, 104*K, 32*K, 40*K], [8*K, 24*K, 88*K, 120*K], [0, 16*K, 80*K, 112*K]]
WSL = [128*K, 64*K, 48*K]
vXd, vWd, vXr, vWr = 208, 212, 216, 222
QACC = 48
XF, WFq = 0, 64
def qacc(ft, tt): return QACC + 4 * (4 * ft + tt)
def xf(c, kbl, tt): return XF + 32 * (c & 1) + 16 * kbl + 4 * tt
def wf(c, kbl, ft): return WFq + 64 * (c & 1) + 32 * kbl + 4 * ft
sCk = 56
QROT = int(os.environ.get('K2_QROT', 0))
def q_dma(c):
    sl = c % 3
    it = []
    for ab, so in enumerate((sXa, sXb)):
        it.append([f's_add_u32 m0, s{sXs+sl}, {ab*4096} ; tag=C{c}', f's_add_u32 s{sT}, s{so}, s{sCk}'])
        for q in range(4): it.append([f'buffer_load_dwordx4 v{vXd+q}, {sr(sX,4)}, s{sT} offen offset:{q*1024} lds ; tag=C{c}'])
    it.append([f's_lshl_b32 s{sT}, s{sCk}, 12', f's_add_u32 m0, s{sW4}, {WSL[sl]} ; tag=C{c}', f's_add_u32 s{sT}, s{sT}, s{sWo}'])
    for q in range(4): it.append([f'buffer_load_dwordx4 v{vWd+q}, {sr(sWQ,4)}, s{sT} offen offset:{q*1024} lds ; tag=C{c}'])
    it[-1] += [f's_add_u32 s{sCk}, s{sCk}, 128', f's_and_b32 s{sCk}, s{sCk}, 1023']
    return it
def q_reads(c):
    sl = c % 3
    L = [f'ds_read_b128 {ar(xf(c,kbl,tt),4)}, v{vXr+2*sl+kbl} offset:{tt*2048}' for tt in range(4) for kbl in range(2)]
    W = []
    for ft in range(8):
        for kbl in range(2):
            for p in range(2):
                vb, off = wsl_addr(sl)
                W.append(f'ds_read_b64_tr_b16 {ar(wf(c,kbl,ft)+2*p,2)}, v{vWr+ft+8*vb} offset:{off + (32 * kbl + 4 * p) * 256}')
    return W[:4] + L + W[4:]
def wsl_addr(sl):
    a = WSL[sl]
    return (0, a - WB0) if a < WB1 else (1, a - WB1)
WB0, WB1 = 48 * K, 128 * K
def q_cvt(db):
    cv = []
    for tt in range(4):
        t0, t1 = qacc(2 * db, tt), qacc(2 * db + 1, tt); dst = Qr(tt, db)
        cv += [f'v_cvt_pk_bf16_f32 v{dst}, v{t0}, v{t0+1}', f'v_cvt_pk_bf16_f32 v{dst+1}, v{t0+2}, v{t0+3}', f'v_cvt_pk_bf16_f32 v{dst+2}, v{t1}, v{t1+1}', f'v_cvt_pk_bf16_f32 v{dst+3}, v{t1+2}, v{t1+3}']
    return cv
def q_setup():
    t = [240, 241, 242, 243, 244]
    L = []
    a = L.append
    a(f's_lshl_b32 s{sXa}, s{sI}, 17'); a(f's_lshl_b32 s{sT}, s{sW}, 15'); a(f's_sub_u32 s{sXb}, {15*128*1024}, s{sXa}')
    a(f's_add_u32 s{sXa}, s{sXa}, s{sT}'); a(f's_add_u32 s{sXb}, s{sXb}, s{sT}')
    a(f's_lshl_b32 s{sWo}, s{sH}, 8'); a(f's_lshl_b32 s{sT}, s{sW}, 17'); a(f's_add_u32 s{sWo}, s{sWo}, s{sT}')
    a(f's_mov_b32 s{sCk}, {128 if Q0PF else 0}')
    for sl in range(3):
        a(f's_mov_b32 s{sXs+sl}, {XS[sl][0]}')
        for w in range(1, 4):
            a(f's_cmp_eq_u32 s{sW}, {w}'); a(f's_cselect_b32 s{sXs+sl}, {XS[sl][w]}, s{sXs+sl}')
    a(f'v_lshrrev_b32 v{t[0]}, 3, v0'); a(f'v_lshlrev_b32 v{t[1]}, 10, v{t[0]}')
    a(f'v_lshrrev_b32 v{t[2]}, 4, v0'); a(f'v_and_b32 v{t[3]}, 7, v0'); a(f'v_xor_b32 v{t[2]}, v{t[2]}, v{t[3]}')
    for q in range(4):
        a(f'v_xor_b32 v{t[4]}, {4*(q&1)}, v{t[2]}'); a(f'v_lshl_add_u32 v{t[4]}, v{t[4]}, 4, v{t[1]}'); a(f'v_add_u32 v{vXd+q}, {q*7168}, v{t[4]}')
    a(f'v_lshrrev_b32 v{t[0]}, 4, v0'); a(f'v_lshlrev_b32 v{t[1]}, 13, v{t[0]}'); a(f'v_lshlrev_b32 v{t[0]}, 1, v{t[0]}')
    a(f'v_and_b32 v{t[2]}, 15, v0'); a(f'v_xor_b32 v{t[2]}, v{t[2]}, v{t[0]}')
    for q in range(4):
        a(f'v_xor_b32 v{t[4]}, {8*(q>>1)}, v{t[2]}'); a(f'v_lshl_add_u32 v{t[4]}, v{t[4]}, 4, v{t[1]}'); a(f'v_add_u32 v{vWd+q}, {q*(4*8192-1024)}, v{t[4]}')
    return L
def q_setup2():
    t = [240, 241, 242, 243, 244]
    L = []; a = L.append
    a(f'v_and_b32 v{t[0]}, 15, v0'); a(f'v_lshrrev_b32 v{t[1]}, 4, v0'); a(f'v_bfe_u32 v{t[2]}, v0, 1, 3'); a(f'v_lshlrev_b32 v{t[0]}, 7, v{t[0]}')
    for kbl in range(2):
        a(f'v_add_u32 v{t[4]}, {4*kbl}, v{t[1]}'); a(f'v_xor_b32 v{t[4]}, v{t[4]}, v{t[2]}'); a(f'v_lshl_add_u32 v{t[4]}, v{t[4]}, 4, v{t[0]}')
        for sl in range(3): a(f'v_add_u32 v{vXr+2*sl+kbl}, s{sXs+sl}, v{t[4]}')
    a(f'v_bfe_u32 v{t[0]}, v0, 2, 2'); a(f'v_lshl_add_u32 v{t[1]}, v{t[1]}, 3, v{t[0]}'); a(f'v_lshlrev_b32 v{t[1]}, 8, v{t[1]}')
    a(f'v_and_b32 v{t[2]}, 3, v0'); a(f'v_lshl_add_u32 v{t[1]}, v{t[2]}, 3, v{t[1]}'); a(f'v_bfe_u32 v{t[2]}, v0, 2, 3')
    for ft in range(8):
        a(f'v_xor_b32 v{t[3]}, {ft}, v{t[2]}'); a(f'v_lshl_add_u32 v{t[3]}, v{t[3]}, 5, v{t[1]}')
        a(f'v_add_u32 v{vWr+ft}, {WB0}, v{t[3]}'); a(f'v_add_u32 v{vWr+8+ft}, {WB1}, v{t[3]}')
    return L

def remap_i(dst, t0, t1):
    L = [f's_lshr_b32 s{dst}, s2, 5']
    if FUSE and os.environ.get('K2_REMAP', '0') == '1':
        L += [f's_bfe_u32 s{t0}, s2, 0x20001', f's_mov_b32 s{t1}, 0x76543210', f's_cmp_eq_u32 s{t0}, 1', f's_cselect_b32 s{t1}, 0x76503214, s{t1}',
              f's_cmp_eq_u32 s{t0}, 3', f's_cselect_b32 s{t1}, 0x01765423, s{t1}', f's_lshl_b32 s{dst}, s{dst}, 2', f's_lshr_b32 s{dst}, s{t1}, s{dst}', f's_and_b32 s{dst}, s{dst}, 7']
    return L
def q0_early(sw, srdx, srdw):
    a_, b_, c_, d_ = 90, 91, 92, 93
    t0, t1, t2 = 14, 15, 26
    G = [[f's_mov_b32 s{srdx+2}, 0x200000', f's_mov_b32 s{srdw+2}, 0x400000'], [f's_lshr_b32 s{a_}, s2, 5', f's_lshl_b32 s{a_}, s{a_}, 17'],
         [f's_lshl_b32 s{b_}, s{sw}, 15', f's_sub_u32 s{c_}, {15*128*1024}, s{a_}'], [f's_add_u32 s{a_}, s{a_}, s{b_}', f's_add_u32 s{c_}, s{c_}, s{b_}'], [f's_mov_b32 s{d_}, {XS[0][0]}']]
    for w in range(1, 4): G.append([f's_cmp_eq_u32 s{sw}, {w}', f's_cselect_b32 s{d_}, {XS[0][w]}, s{d_}'])
    for ab, so in enumerate((a_, c_)):
        G.append([f's_add_u32 m0, s{d_}, {ab*4096} ; tag=Q0', 's_nop 0'])
        G += [[f'buffer_load_dwordx4 v{6+q}, {sr(srdx,4)}, s{so} offen offset:{q*1024} lds ; tag=Q0'] for q in range(4)]
    G += [[f's_and_b32 s{a_}, s2, 31', f's_lshl_b32 s{a_}, s{a_}, 8'], [f's_lshl_b32 s{b_}, s{sw}, 17', f's_add_u32 s{a_}, s{a_}, s{b_}'], [f's_lshl_b32 s{b_}, s{sw}, 12', f's_add_u32 m0, s{b_}, {WSL[0]} ; tag=Q0'],
          [f'v_lshrrev_b32 v{t0}, 4, v0', f'v_lshlrev_b32 v{t1}, 13, v{t0}'], [f'v_lshlrev_b32 v{t0}, 1, v{t0}', f'v_and_b32 v{t2}, 15, v0'], [f'v_xor_b32 v{t2}, v{t2}, v{t0}']]
    for q in range(4):
        G += [[f'v_xor_b32 v{2+q}, {8*(q>>1)}, v{t2}', f'v_lshl_add_u32 v{2+q}, v{2+q}, 4, v{t1}'], [f'v_add_u32 v{2+q}, {q*(4*8192-1024)}, v{2+q}'],
              [f'buffer_load_dwordx4 v{2+q}, {sr(srdw,4)}, s{a_} offen offset:{q*1024} lds ; tag=Q0']]
    return G

def a_loads(which):
    if which == 0:
        return [[f's_mov_b32 s{sSW}, 65536']] + dma_part('K', 'c', 'K0') + [[f's_mov_b32 s{sSW}, 98304']] + dma_part('K', 'c', 'K0') + \
               [[f's_mov_b32 s{sSW}, 0']] + dma_part('V', 'c', 'U0') + dma_part('K', 'c', 'U0')
    return [[f's_mov_b32 s{sSW}, 32768']] + dma_part('V', 'c', 'U1') + dma_part('K', 'c', 'U1') + [[f's_mov_b32 s{sSW}, 65536'], [f's_mov_b32 s{sSR}, 32768']]

def wo_dma_a():
    t = [240, 241, 242, 243]
    it = [[f'v_lshrrev_b32 v{t[0]}, 5, v0', f'v_bfe_u32 v{t[1]}, v0, 1, 4', f'v_xor_b32 v{t[1]}, v{t[1]}, v{t[0]}', f'v_and_b32 v{t[2]}, 1, v0', f'v_lshlrev_b32 v{t[2]}, 4, v{t[2]}',
           f'v_lshl_add_u32 v{t[2]}, v{t[0]}, 10, v{t[2]}'],
          [f's_lshr_b32 s{sT+4}, s2, 1', f's_lshl_b32 s{sT+4}, s{sT+4}, 15', f's_and_b32 s{sT+5}, s2, 1', f's_lshl_b32 s{sT+5}, s{sT+5}, 9'],
          [f's_add_u32 s{sT+4}, s{sT+4}, s{sT+5}', f's_lshl_b32 s{sT+5}, s{sW}, 13', f's_add_u32 s{sT+4}, s{sT+4}, s{sT+5}']]
    for q in range(4):
        it.append([f'v_xor_b32 v{t[3]}, {2*q}, v{t[1]}', f'v_lshl_add_u32 v{t[3]}, v{t[3]}, 5, v{t[2]}', f's_add_u32 m0, s{sW4}, {128*K} ; tag=WO', f's_add_u32 s{sT+5}, s{sT+4}, {q*1024}',
                   f'buffer_load_dwordx4 v{t[3]}, {sr(sWO,4)}, s{sT+5} offen offset:{q*1024} lds ; tag=WO'])
    return it
def wo_dma_b():
    t = [240, 241]
    return [f'v_lshrrev_b32 v{t[0]}, 2, v0', f'v_lshlrev_b32 v{t[0]}, 10, v{t[0]}', f'v_and_b32 v{t[1]}, 3, v0', f'v_lshl_add_u32 v{t[0]}, v{t[1]}, 4, v{t[0]}',
            f's_lshr_b32 s{sT+4}, s2, 4', f's_lshl_b32 s{sT+4}, s{sT+4}, 15', f's_and_b32 s{sT+5}, s2, 15', f's_lshl_b32 s{sT+5}, s{sT+5}, 6', f's_add_u32 s{sT+4}, s{sT+4}, s{sT+5}',
            f's_and_b32 s{sT+5}, s{sW}, 1', f's_lshl_b32 s{sT+6}, s{sT+5}, 14', f's_add_u32 s{sT+4}, s{sT+4}, s{sT+6}', f's_lshl_b32 s{sT+5}, s{sT+5}, 10',
            f's_add_u32 m0, s{sT+5}, {144*K} ; tag=WO', 's_nop 0', f'buffer_load_dwordx4 v{t[0]}, {sr(sWB,4)}, s{sT+4} offen lds ; tag=WO']
def wo_fin():
    R = TMPV; a0, a1, a2 = TMPV + 20, TMPV + 21, TMPV + 22; t0, t1 = sT + 4, sT + 5
    L = [f'v_lshrrev_b32 v{a0}, 2, v0', f'v_and_b32 v{a1}, 3, v0', f'v_lshlrev_b32 v{a1}, 3, v{a1}', f'v_lshl_add_u32 v{a2}, v{a0}, 6, v{a1}', f'v_lshl_add_u32 v{a1}, v{a0}, 9, v{a1}',
         f'v_add_u32 v{a1}, {128*K}, v{a1}', f'v_and_b32 v{a0}, 7, v{a0}', f's_lshl_b32 s{t0}, s{sW}, 2', f'v_xor_b32 v{a0}, s{t0}, v{a0}',
         f's_and_b32 s{t0}, s{sW}, 1', f's_lshl_b32 s{t0}, s{t0}, 5', f's_add_u32 s{t0}, s{t0}, {144*K}', f'v_add_u32 v{a2}, s{t0}, v{a2}']
    for x in range(4):
        L += [f'v_xor_b32 v{a0+4+x}, {x}, v{a0}', f'v_lshl_add_u32 v{a0+4+x}, v{a0+4+x}, 5, v{a1}']
        for p in range(2): L.append(f'ds_read_b64_tr_b16 {vr(R+4*x+2*p,2)}, v{a0+4+x} offset:{p*8192}')
    for p in range(2): L.append(f'ds_read_b64_tr_b16 {vr(R+16+2*p,2)}, v{a2} offset:{p*1024}')
    L += [f's_and_b32 s{t0}, s2, 1', f's_lshl_b32 s{t0}, s{t0}, 2', f's_add_u32 s{t0}, s{t0}, s{sW}', f's_mul_i32 s{t0}, s{t0}, {TS}', f's_lshr_b32 s{t1}, s2, 1', f's_lshl_b32 s{t1}, s{t1}, 12',
          f's_add_u32 s{t0}, s{t0}, s{t1}', f's_add_u32 s{t0}, s{t0}, {WOA}']
    for x in range(4): L += [f'buffer_store_dwordx4 {vr(R+4*x,4)}, v{vL16}, {sr(sWS,4)}, s{t0} offen offset:{x*1024}{SF}']
    L += [f's_bfe_u32 s{t0}, s2, 0x30001', f's_mul_i32 s{t0}, s{t0}, {TS}', f's_and_b32 s{t1}, s2, 1', f's_lshl_b32 s{t1}, s{t1}, 11', f's_add_u32 s{t0}, s{t0}, s{t1}',
          f's_and_b32 s{t1}, s{sW}, 1', f's_lshl_b32 s{t1}, s{t1}, 10', f's_add_u32 s{t0}, s{t0}, s{t1}',
          f's_lshr_b32 s{t1}, s2, 4', f's_lshl_b32 s{t1}, s{t1}, 12', f's_add_u32 s{t0}, s{t0}, s{t1}', f's_add_u32 s{t0}, s{t0}, {WOA + 128*4096}',
          f'buffer_store_dwordx4 {vr(R+16,4)}, v{vL16}, {sr(sWS,4)}, s{t0} offen{SF}', 's_nop 0']
    return L

def qproj():
    QPF = int(os.environ.get('K2_QPF', 0))
    pf = [[f'v_lshlrev_b32 v245, 10, v0', f's_lshr_b32 s{sT+4}, s2, 3', f's_lshl_b32 s{sT+4}, s{sT+4}, 16'], [f's_lshl_b32 s{sT+5}, s{sW}, 7', f's_add_u32 s{sT+4}, s{sT+4}, s{sT+5}'],
          [f'buffer_load_dword v246, v245, {sr(sX,4)}, s{sT+4} offen offset:512 ; nodep'],
          [f'v_lshrrev_b32 v245, 1, v0', f'v_lshlrev_b32 v245, 13, v245', f'v_and_b32 v244, 1, v0', f'v_lshl_add_u32 v245, v244, 7, v245'],
          [f's_lshl_b32 s{sT+4}, s{sI}, 18', f's_lshl_b32 s{sT+5}, s{sH}, 8', f's_add_u32 s{sT+4}, s{sT+4}, s{sT+5}'], [f's_add_u32 s{sT+4}, s{sT+4}, {256*8192}'],
          [f'buffer_load_dword v246, v245, {sr(sWQ,4)}, s{sT+4} offen ; nodep']] if QPF else []
    zf = []
    if FUSE3:
        FW_, FC_, FB_ = FLG, FLG + 4096, FLG + 8192
        zf = [f's_lshl_b32 s{sT+4}, s{sI}, 7', f's_lshl_b32 s{sT+5}, s{sH}, 2', f's_add_u32 s{sT+5}, s{sT+5}, {FC_}', f's_add_u32 s{sFa}, s{sT+5}, s{sT+4}', f's_sub_u32 s{sT+5}, s{sT+5}, s{sT+4}', f's_add_u32 s{sT+5}, s{sT+5}, {15*128}',
              f's_lshl_b32 s{sT+4}, s2, 2', f's_add_u32 s{sFw}, s{sT+4}, {FW_}', f's_add_u32 s{sT+4}, s{sT+4}, {FB_}',
              f'v_mov_b32 v245, s{sFa}', f'v_writelane_b32 v245, s{sT+5}, 1', f'v_writelane_b32 v245, s{sFw}, 2', f'v_writelane_b32 v245, s{sT+4}, 3', 'v_mov_b32 v246, 0', f's_mov_b32 s{sSig}, 0',
              's_mov_b64 exec, 15', f'buffer_store_dword v246, v245, {sr(sWS,4)}, 0 offen sc1', 's_mov_b64 exec, -1']
    L = q_setup() + zf + (['s_barrier'] if FUSE and not Q0PF else []) + (q_setup2() + ['s_barrier'] + q_reads(0) + flat(q_dma(1)) if Q0PF else flat(q_dma(0)) + flat(q_dma(1)) + q_setup2())
    L += [f's_lshl_b32 s{sT+4}, s{sH}, 19', f's_add_u32 s{sK}, s{sT+4}, {KWS}', f's_add_u32 s{sV}, s{sT+4}, {VWS}', f's_mov_b32 s{sKc}, s{sK}', f's_add_u32 s{sK}, s{sK}, s{sW2}', f's_add_u32 s{sV}, s{sV}, s{sW2}',
          f's_add_u32 s{sK2}, s{sWS}, s{sK}', f's_addc_u32 s{sK2+1}, s{sWS+1}, 0', f's_add_u32 s{sV2}, s{sWS}, s{sV}', f's_addc_u32 s{sV2+1}, s{sWS+1}, 0']
    if not Q0PF: L += [';VMNEED C0', 's_barrier'] + q_reads(0)
    sig = []
    if FUSE:
        sig = [f's_cmp_lg_u32 s{sW}, 0', 's_cbranch_scc1 K2_NOSIG', 'v_mov_b32 v245, 1', 'v_mov_b32 v246, s94', 's_mov_b64 exec, 1',
              f'SKIP buffer_atomic_add v245, v246, {sr(sDB,4)}, 0 offen sc1', 's_mov_b64 exec, -1', 'K2_NOSIG:',
              f's_lshl_b32 s{sT+4}, s{sH}, 1', 'v_and_b32 v246, 1, v0', f'v_add_u32 v246, s{sT+4}, v246', 'v_mul_u32_u24 v246, 205, v246', 'v_lshrrev_b32 v246, 10, v246',
              'v_bfe_u32 v245, v0, 1, 1', 'v_mul_u32_u24 v245, 13, v245', 'v_add_lshl_u32 v246, v246, v245, 2', 'v_add_u32 v246, 128, v246']
    if not Q0PF: L += sig
    L += stamp()
    for c in range(8):
        mf = []; pre = {}
        def P(g, x): pre.setdefault(g, []).extend(x if isinstance(x, list) else [x])
        val = {}
        for ft in range(8):
            for tt in range(4):
                for kbl in range(2):
                    a = qacc(ft, tt)
                    cc = '0' if (c == 0 and kbl == 0) else vr(a, 4)
                    mf.append(f'{MF} {vr(a,4)}, {ar(wf(c,kbl,ft),4)}, {ar(xf(c,kbl,tt),4)}, {cc}')
        for g0 in range(0, 64, 16):
            f0 = g0 // 8
            P(g0 - 1 if g0 else (0, 'before'), f';NEED {ar(wf(c,0,f0),8)} {ar(wf(c,1,f0),8)}' + (f' {ar(xf(c,0,0),32)}' if g0 == 0 else ''))
        if c == 0:
            g = 0
            for it in q_dma(2):
                if g % 16 == 15: g += 1
                P(g, it); g += 1
            gb = 26
        else:
            gb = 0
        if 1 <= c <= 5: ex = ([[f'buffer_load_dword v247, v246, {sr(sDB,4)}, 0 offen sc1']] if FUSE and c == 5 else []) + q_dma(c + 2)
        elif c == 6:
            ex = a_loads(0)
            if FUSE:
                P((0, 'before'), ['v_cmp_gt_u32 vcc, 8, v247', 's_cbranch_vccnz K2_SLOWP', 'K2_POLLED:'])
                STUBS.extend(['K2_SLOWP:', f's_mov_b32 s{sT+4}, 0x80000', 'K2_SP1:', f'buffer_load_dword v247, v246, {sr(sDB,4)}, 0 offen sc1', 's_waitcnt vmcnt(0)',
                              'v_cmp_gt_u32 vcc, 8, v247', 's_cbranch_vccz K2_POLLED', 's_sleep 2', f's_sub_u32 s{sT+4}, s{sT+4}, 1', f's_cmp_lg_u32 s{sT+4}, 0', 's_cbranch_scc1 K2_SP1', 's_branch K2_POLLED'])
        elif c == 7: ex = a_loads(1) + wo_dma_a() + [wo_dma_b()]
        else: ex = []
        if c < 7:
            P(gb, [f';VMNEED C{c+1}', 's_barrier'] + (sig if Q0PF and c == 0 else []))
            rds = q_reads(c + 1)
            seq = []; nr, ne = len(rds), len(ex)
            ri = ei = 0
            while ri < nr or ei < ne:
                if ei < ne and (ri >= nr or ei * nr <= ri * ne): seq.append(ex[ei]); ei += 1
                else: seq.append(rds[ri]); ri += 1
            g0 = gb + 1
            for k, x in enumerate(seq): P(g0 + k * (63 - g0) // len(seq), x)
        else:
            P(0, 's_barrier')
            for db in range(3):
                cv = q_cvt(db)
                for k in range(8): val[16 * db + 20 + k + (k > 3) * 0] = cv[2*k:2*k+2]
            P(60, [';VMNEED U0', 's_barrier', f'v_add_u32 v{vRd}, 65536, v{vL16}', f'v_add_u32 v{vRd+1}, 98304, v{vL16}'])
            for k, it in enumerate(ex): P(1 + k * 58 // len(ex), it)
        L += weave(mf, pre, val)
    return L

def a_prologue():
    L = []
    fr = qk_frags('c')
    L += [rd(g - 2, off, 0) for g, fu, off in fr] + [rd(g, off, 1) for g, fu, off in fr]
    L += [f'v_mov_b32 v{TMPB+j}, 0' for j in range(4)]
    L += [f'v_mov_b32 v{vd}, v{vq}'] + [f'v_cmp_gt_i32 {sr(sMk+2*j,2)}, {j}, v{vd}' for j in range(4)]
    L += q_cvt(3)
    zm = [f'v_mfma_f32_32x32x16_bf16 {ar(16*k,16)}, {vr(TMPB,4)}, {vr(TMPB,4)}, 0' for k in range(8)]
    L += ['s_nop 0'] + qk_mfmas('c', 0, czero=True, fr=lambda kt, db: ar(slot(32 + 16 * kt + 4 * db), 4)) + zm
    L += [f's_cmp_eq_u32 s{sI}, 0', f's_cselect_b32 s{sMq}, 0, -4096'] + mask_call(0, 'c') + deltas(0, 'c', False)
    for q in range(4):
        for j in range(4): L.append(f'v_sub_f32 v{NM+4*q+j}, 0, v{vDl+q}')
    V = [f'v_mov_b32 v{vl+q}, 0' for q in range(4)] + sub_tiles(0, 'c') + exp_ops(0, 'c')
    mf2 = qk_mfmas('c', 1)
    L += [f'v_mov_b32 v{vRd}, v{vL16}', ';LGKM0'] + ([';VMNEED WO'] if FUSE3 else []) + ['s_barrier'] + (wo_fin() if FUSE3 else [])
    rds = [rd(g, off, 0) for g, fu, off in pv_frags('c') if g < D]
    n = len(mf2)
    for k, m in enumerate(mf2):
        L.append(m)
        if k >= n - 2 * len(rds) and (n - k) % 2 == 0: L.append(rds[len(rds) - (n - k) // 2])
        L += V[len(V)*k//n:len(V)*(k+1)//n]
    return L

def fin_rows(which):
    t0, t1 = sT + 4, sT + 5
    q0 = 0 if which == 'a' else 2
    L = [f's_lshl_b32 s{t0}, s{sH}, 14', f's_add_u32 s{t0}, s{t0}, {CTX}', f's_and_b32 s{t1}, s{sW}, 1', f's_lshl_b32 s{t1}, s{t1}, 11', f's_add_u32 s{t0}, s{t0}, s{t1}', f's_lshr_b32 s{t1}, s{sW}, 1', f's_mul_i32 s{t1}, s{t1}, {TS}', f's_add_u32 s{t0}, s{t0}, s{t1}', f's_mul_i32 s{t1}, s{sI}, {2*TS}']
    L += [f's_add_u32 s{t0}, s{t0}, s{t1}'] if which == 'a' else [f's_sub_u32 s{t0}, s{t0}, s{t1}', f's_add_u32 s{t0}, s{t0}, {30*TS}']
    L += [f's_add_u32 s{t0+k}, s{t0}, {4096*k}' for k in range(1, 4)]
    for q in (q0, q0 + 1):
        L += xlane('v_add_f32', vl + q, vT) + [f'v_rcp_f32 v{vl+q}, v{vl+q}']
    for q in (q0, q0 + 1):
        for h in range(2):
            r = TMPV + 16 * h; p = TMPB + 8 * h
            for j in range(16): L.append(f'v_accvgpr_read_b32 v{r+j}, a{Or(q,4*h)+j}')
            for j in range(16): L.append(f'v_mul_f32 v{r+j}, v{r+j}, v{vl+q}')
            for j in range(8): L.append(f'v_cvt_pk_bf16_f32 v{p+j}, v{r+2*j}, v{r+2*j+1}')
            for x in range(2): L.append(f'buffer_store_dwordx4 {vr(p+4*x,4)}, v{vL16}, {sr(sWS,4)}, s{t0+2*h+x} offen offset:{(q&1)*1024}{SF}')
    return L

def last_pv():
    par = 1
    mf = pv_mfmas('s', par)
    frs = pv_frags('s')
    t0, t1 = sT + 4, sT + 5
    head = lupd('s') + [f's_lshl_b32 s{t0}, s{sH}, 14', f's_add_u32 s{t0}, s{t0}, {CTX}', f's_and_b32 s{t1}, s{sW}, 1', f's_lshl_b32 s{t1}, s{t1}, 11', f's_add_u32 s{t0}, s{t0}, s{t1}', f's_lshr_b32 s{t1}, s{sW}, 1', f's_mul_i32 s{t1}, s{t1}, {TS}', f's_add_u32 s{t0}, s{t0}, s{t1}', f's_mul_i32 s{t1}, s{sI}, {2*TS}'] + [f's_sub_u32 s{t0}, s{t0}, s{t1}', f's_add_u32 s{t0}, s{t0}, {30*TS}'] + [f's_add_u32 s{t0+k}, s{t0}, {4096*k}' for k in range(1, 4)]
    for sw in ('32', '16'):
        head += [f'v_mov_b32 v{vT}, v{vl+2}', f'v_mov_b32 v{vT+1}, v{vl+3}', 's_nop 0', f'v_permlane{sw}_swap_b32 v{vl+2}, v{vT}', f'v_permlane{sw}_swap_b32 v{vl+3}, v{vT+1}',
                 f'v_add_f32 v{vl+2}, v{vl+2}, v{vT}', f'v_add_f32 v{vl+3}, v{vl+3}, v{vT+1}']
    head += [f'v_rcp_f32 v{vl+2}, v{vl+2}', f'v_rcp_f32 v{vl+3}, v{vl+3}']
    def fin_db(db):
        X = []
        for q in (2, 3):
            r = TMPV + 8 * (q - 2) + 16 * (db & 1); p = TMPB + 4 * (q - 2) + 8 * (db & 1)
            X += [f'v_accvgpr_read_b32 v{r+j}, a{Or(q,2*db)+j}' for j in range(8)]
            X += [f'v_mul_f32 v{r+j}, v{r+j}, v{vl+q}' for j in range(8)]
            X += [f'v_cvt_pk_bf16_f32 v{p+j}, v{r+2*j}, v{r+2*j+1}' for j in range(4)]
            X += [f'buffer_store_dwordx4 {vr(p,4)}, v{vL16}, {sr(sWS,4)}, s{t0+db} offen offset:{(q&1)*1024}{SF}']
        return X
    L = []
    fill = head + ['#1'] + fin_db(0) + ['#2'] + fin_db(1) + ['#3'] + fin_db(2)
    fi = 0
    for g, m in enumerate(mf):
        if g % 8 == 0: L.append(';NEED ' + ' '.join(ar(slot(gg), 4) for gg, fu, off in frs if g <= fu < g + 8))
        L.append(m)
        for gg, fu, off in frs:
            if gg - D == g: L.append(rd(gg, off, par))
        n = 0
        while fi < len(fill) and n < 5:
            x = fill[fi]
            if x.startswith('#'):
                if g < 8 * int(x[1]) + 2: break
                fi += 1; continue
            L.append(x); fi += 1; n += 1
    L += [x for x in fill[fi:] if not x.startswith('#')] + ['s_nop 3'] + fin_db(3)
    return L

def hook(bit, saddr, uid):
    if not FUSE3: return []
    STUBS.extend([f'K2_H{uid}:', f's_bitset1_b32 s{sSig}, {bit}', f's_cmp_lg_u32 s{sW}, 0', f's_cbranch_scc1 K2_HR{uid}', f'v_mov_b32 v{vT}, 1', f'v_mov_b32 v{vT+1}, 0', 's_mov_b64 exec, 1',
                  f'buffer_store_dword v{vT}, v{vT+1}, {sr(sWS,4)}, s{saddr} offen sc1', 's_mov_b64 exec, -1', 's_nop 3', f's_branch K2_HR{uid}'])
    return [f's_bitcmp0_b32 s{sSig}, {bit}', f's_cbranch_scc1 K2_H{uid}', f'K2_HR{uid}:']

def gen_k2():
    if FUSE3: import tail as TAILM
    name = 'k2_kernel'
    L = []; a = L.append
    if not FUSE:
        a(f'.p2align 8\n.type {name},@function\n{name}:')
        a('s_cmp_ge_u32 s2, 256'); a('s_cbranch_scc1 K2_END')
        if os.environ.get('CPF', '1') == '1': L += code_prefetch('k2_kernel', 'k3_kernel', 'K2', 246, 247, 90, 8)
        a('s_load_dwordx2 s[4:5], s[0:1], 88'); a('s_load_dwordx2 s[6:7], s[0:1], 0'); a('s_load_dwordx2 s[56:57], s[0:1], 16'); a('s_load_dwordx2 s[68:69], s[0:1], 40'); a('s_load_dwordx2 s[76:77], s[0:1], 64')
        a('v_lshrrev_b32 v1, 6, v0'); a('v_and_b32 v0, 63, v0'); a(f'v_readfirstlane_b32 s{sW}, v1')
    else:
        for srd, p, n in ((sWO, 14, 0x400000), (sWB, 20, 0x80000), (sDB, 24, 256), (sWQ, 8, 0x400000), (sX, 4, 0x200000), (sWS, 26, 0x10000000)):
            a(f's_mov_b32 s{srd}, s{p}'); a(f's_mov_b32 s{srd+1}, s{p+1}'); a(f's_mov_b32 s{srd+2}, {hex(n)}'); a(f's_mov_b32 s{srd+3}, 0x20000')
        a(f's_mov_b64 s[96:97], s[22:23]')
        a(f's_mov_b32 s{sW}, s40')
        L += gstamp(6, sDB, 2, 3)
    a(f'v_lshlrev_b32 v{vL16}, 4, v0')
    if os.environ.get('K2_MAP') == '8x4':
        a(f's_bfe_u32 s{sH}, s2, 0x20001'); a(f's_lshl_b32 s{sH}, s{sH}, 3'); a(f's_bfe_u32 s{sT}, s2, 0x30003'); a(f's_add_u32 s{sH}, s{sH}, s{sT}')
        a(f's_lshr_b32 s{sI}, s2, 6'); a(f's_lshl_b32 s{sI}, s{sI}, 1'); a(f's_and_b32 s{sT}, s2, 1'); a(f's_add_u32 s{sI}, s{sI}, s{sT}')
    else:
        a(f's_and_b32 s{sH}, s2, 31'); L += remap_i(sI, sT, sT + 1)
    a(f's_lshl_b32 s{sW2}, s{sW}, 11'); a(f's_lshl_b32 s{sW4}, s{sW}, 12'); a(f's_add_u32 s{sW2K}, s{sW2}, 16384'); a(f's_add_u32 s{sW4K}, s{sW4}, 16384')
    a(f'v_mov_b32 v{vBig}, {f32(NEGBIG)}')
    a(f'v_and_b32 v{vq}, 15, v0'); a(f'v_lshrrev_b32 v{vT}, 4, v0'); a(f'v_lshlrev_b32 v{vT}, 2, v{vT}'); a(f'v_sub_u32 v{vq}, v{vq}, v{vT}')
    a('s_waitcnt lgkmcnt(0)')
    for srd, p, n in () if FUSE else ((sWS, 4, 0x10000000), (sX, 6, 0x200000), (sWQ, 56, 0x400000), (sWO, 68, 0x400000), (sWB, 76, 0x80000)):
        a(f's_mov_b32 s{srd}, s{p}'); a(f's_mov_b32 s{srd+1}, s{p+1}'); a(f's_mov_b32 s{srd+2}, {hex(n)}'); a(f's_mov_b32 s{srd+3}, 0x20000')
    if DIAG: a('s_mov_b32 s72, 0'); a(f'v_mov_b32 v{vDG}, 0'); a(f'v_mov_b32 v{vDG+2}, 0'); L += stamp()
    raw0 = qproj() + stamp() + gstamp(7, sDB, 16, 17) + gstamp(8, sDB, 16, 17, neg=True) + a_prologue() + stamp()
    skip = [x for x in raw0 if x.startswith('SKIP ')]
    pre = auto_waits([], [x if not x.startswith('SKIP ') else '.L_skip0:' for x in raw0])
    L += [x if x != '.L_skip0:' else skip[0][5:] for x in pre]
    def two(uid, b0, b1): return body(0, *b0, uid + 'a') + body(1, *b1, uid + 'b')
    raw = {
     'CC': two('CC', ('c','c','c','c','c','c',None), ('c','c','c','c','c','c',None)),
     'X1': two('X1', ('c','c','c','c','c','c',None), ('c','c','c','c','c','c',0)),
     'X2': two('X2', ('c','c','c','c','c','s',1), ('c','c','c','c','c','s',2)),
     'X3': two('X3', ('c','c','s','c','s','s',3), ('c','s','s','s','s','s',None)) + ([] if FUSE3 else wo_fin()) + fin_rows('a'),
     'X3b': two('X3b', ('c','c','s','c','s',None,3), ('c','s','s','s','s',None,0)) + ([] if FUSE3 else wo_fin()) + fin_rows('a'),
     'SS': two('SS', ('s','s','s','s','s','s',None), ('s','s','s','s','s','s',None)),
     'X4': two('X4', ('s','s','s','s','s',None,None), ('s','s','s','s','s',None,0)),
     'TL': (TAILM.pre_polls() if FUSE3 else []) + body(0, 's','s',None,'s',None,None,2, 'TLa') + last_pv(),
    }
    preds = {'CC': ['pre', 'CC'], 'X1': ['CC'], 'X2': ['X1', 'pre'], 'X3': ['X2'], 'X3b': ['X2'], 'SS': ['X3', 'SS'], 'X4': ['SS'], 'TL': ['X4', 'X3b']}
    fin = {'pre': pre}
    for it in range(3):
        for k in raw:
            fin[k] = merge_min([auto_waits(fin[p], raw[k]) for p in preds[k] if p in fin])
    a(f's_cmp_eq_u32 s{sI}, 0'); a('s_cbranch_scc1 K2_X2')
    a(f's_lshl_b32 s{sCnt}, s{sI}, 1'); a(f's_sub_u32 s{sCnt}, s{sCnt}, 1')
    a('.p2align 6\nK2_CC:'); L += fin['CC'] + hook(0, sFw, 'a') + [f's_sub_u32 s{sCnt}, s{sCnt}, 1', f's_cmp_lg_u32 s{sCnt}, 0', 's_cbranch_scc1 K2_CC']
    L += stamp()
    L += fin['X1']
    a('K2_X2:'); L += adv64(sK2, f's{sW2}'); L += fin['X2'] + hook(0, sFw, 'b')
    L += adv64(sV2, f's{sW2}')
    a(f's_cmp_eq_u32 s{sI}, 7'); a('s_cbranch_scc1 K2_X3b')
    L += fin['X3']
    L += stamp()
    a(f's_lshl_b32 s{sCnt}, s{sI}, 1'); a(f's_sub_u32 s{sCnt}, 13, s{sCnt}')
    a('.p2align 6\nK2_SS:'); L += fin['SS'] + hook(1, sFa, 'c') + [f's_sub_u32 s{sCnt}, s{sCnt}, 1', f's_cmp_lg_u32 s{sCnt}, 0', 's_cbranch_scc1 K2_SS']
    L += stamp()
    L += fin['X4']
    a('K2_TL:'); L += fin['TL']
    L += stamp()
    epi = []
    L += epi
    if FUSE3:
        import tail, k3
        L += stamp() + gstamp(9, sDB, 16, 17) + gstamp(10, sDB, 16, 17, neg=True) + tail.gen_tail(fin['TL'] + epi) + k3.STUBS
    else:
        if DIAG:
            L += stamp(); a('s_waitcnt vmcnt(0)'); L += stamp()
            L += dstore(vDG, vDG + 1, vDG + 2, sW, sWS, 201)
        L += gstamp(9, sDB, 16, 17) + gstamp(10, sDB, 16, 17, neg=True)
        a('K2_END:'); a('s_endpgm')
    a('K2_X3b:'); L += fin['X3b']; a('s_branch K2_TL')
    L += STUBS
    for r in sorted(RARES): L += rare(*r)
    L += rescale_o()
    for m in sorted(MASKS): L += mask_routine(*m)
    f = fin
    check_trace(pre + ['s_nop 0'] * 2 + f['X2'] + f['X3'] + f['SS'] + f['SS'] + f['X4'] + f['TL'] + epi, 'k2 i=0')
    check_trace(pre + ['s_nop 0'] * 4 + f['CC'] + f['CC'] + f['X1'] + f['X2'] + f['X3b'] + f['TL'] + epi, 'k2 i=7')
    if FUSE: return L, '', None
    return L, kdesc(name, 512, 256), f'; @launch kernel={name} grid=(256,1,1) block=(256,1,1) lds=163840'
```

```python
from lib import *
from layout import *
import struct, math, os
def f32(x): return '0x%08x' % struct.unpack('<I', struct.pack('<f', x))[0]

CA = math.log2(math.e) / math.sqrt(128.0)
vWd, vXd, vWl, vXr, vSt, vWr, vXr2, vSt2 = 2, 6, 10, 14, 16, 18, 26, 17
WF, PK, ACC = 32, 96, 128
sACT, sW, sWS = 28, 32, 36
sWave, sGc, sRem, sLdw, sWoff, sLdw128, sLdw64 = 40, 41, 43, 44, 45, 46, 42
sOut0, sOut1, sScl = 47, 48, 49
sNOut0, sNOut1, sQ0, sQ1 = 50, 51, 52, 58
sType, sBlk, sXoff, sM0W, sM0X, sT0, sT1, sT2, sGcL, sRemL, sWsz, sSR, sSW, sM0X2, sPf = 53, 54, 55, 56, 57, 59, 60, 61, 62, 63, 64, 65, 66, 67, 68
sPX, sPQ, sPo = 76, 80, 84
DK = 1
NSLOT = 6
XBASE = NSLOT * 16384
STORE_FLAGS = os.environ.get('K1_SF', ' sc1')
PF = int(os.environ.get('K1_PF', 1))
WST = int(os.environ.get('K1_WST', 6))
PFR = int(os.environ.get('K1_PFR', 3 if int(os.environ.get('K1_LPF', 0)) else 2))
PFM = int(os.environ.get('K1_PFM', 1))
XPF = int(os.environ.get('K1_XPF', 2))
sJ7 = 69
FUSE = int(os.environ.get('FUSE', 1))
LPF = int(os.environ.get('K1_LPF', 0))
Q0PF = int(os.environ.get('K1_Q0PF', 1))
sLx, sLw = 86, 87
sW5 = 96
Q0G = int(os.environ.get('K1_Q0G', 3))
JPERM = int(os.environ.get('K1_JPERM', 1))
NPF = int(os.environ.get('K1_NPF', 10))
LPG = int(os.environ.get('K1_LPG', 1)); LPS = int(os.environ.get('K1_LPS', 6))
PFG = int(os.environ.get('K1_PFG', 130))
DIAG = os.environ.get('DIAG')
def stamp(): return dstamp(31, 30, 29) if DIAG else []
MF = 'v_mfma_f32_16x16x32_bf16'
D = 28
sWoD = 70 if False else 95

def acc(par, ft, tt): return ACC + 64 * par + 4 * (4 * ft + tt)
def xfr(tt, kb): return (tt * 16 + kb) * 4
def wfr(fg, kl): return WF + 4 * (4 * (fg % 4) + kl)
def wfd(g, kbl): return WF + 4 * (2 * (g % 8) + kbl)

SLOTS = {3: [4, 5, 0, 1], 4: [6, 2, 8, 4], 5: [7, 3, 9, 5]}
def w_read(p, r):
    if r >= 128: p, r = p + 1, r - 128
    if p > 5: return None
    fg, kl, pp = r // 8, (r >> 1) & 3, r & 1
    u, ft = fg // 4, fg % 4
    sl = SLOTS[p][u]
    base = vWl + ft if sl < 4 else vWr + 4 * (sl // 4 - 1) + ft
    return f'ds_read_b64_tr_b16 {vr(wfr(fg,kl)+2*pp,2)}, v{base} offset:{(sl%4)*16384 + (32*kl + 4*pp)*128}'
def wd_read(r):
    g, kbl, p = r // 4, (r >> 1) & 1, r & 1
    c, ft = g // 8, g % 8
    return f'ds_read_b64_tr_b16 {vr(wfd(g,kbl)+2*p,2)}, v{vWl+(ft&3)} offset:{(c%4)*16384 + (ft>>2)*8192 + (32*kbl + 4*p)*128}'
def wd_dma(c, pad=False):
    L = [f's_add_u32 m0, s{sM0W}, {(c%4)*16384} ; tag=D{c}']
    if pad: L.append('s_nop 0')
    for q in range(4):
        L.append(f'buffer_load_dwordx4 v{vWd+q}, {sr(sW,4)}, s{sWoD} offen offset:{q*1024} lds ; tag=D{c}')
    L.append(f's_add_u32 s{sWoD}, s{sWoD}, s{sLdw64}')
    return L

def w_dma(p, u):
    srd = sW5 if p == 5 else sW
    L = [f's_add_u32 m0, s{sM0W}, {SLOTS[p][u]*16384} ; tag=W{p}{u}']
    for q in range(4):
        L.append(f'buffer_load_dwordx4 v{vWd+q}, {sr(srd,4)}, s{sWoff} offen offset:{q*1024} lds ; tag=W{p}{u}')
    if p != 4: L.append(f's_add_u32 s{sWoff}, s{sWoff}, s{sLdw128}')
    return L

def x_dma(c):
    slot = c % 3
    L = []
    for hh in range(2):
        L.append(f's_add_u32 m0, s{sM0X}, {slot*8192 + hh*4096} ; tag=X{c}' if slot < 2 else f's_add_u32 m0, s{sM0X2}, {hh*4096} ; tag=X{c}')
        L.append(f's_add_u32 s{sT0}, s{sXoff}, {c*128 + hh*32768}')
        for q in range(4):
            L.append(f'buffer_load_dwordx4 v{vXd+q}, {sr(sACT,4)}, s{sT0} offen offset:{q*1024} lds ; tag=X{c}')
    return L

def x_read(c, kbl, tt):
    if c % 3 == 2: return f'ds_read_b128 {ar(xfr(tt, 2*c+kbl),4)}, v{vXr2+kbl} offset:{tt*2048}'
    return f'ds_read_b128 {ar(xfr(tt, 2*c+kbl),4)}, v{vXr+kbl} offset:{(c%3)*8192 + tt*2048}'

def load_params(k):
    return [
        f's_add_u32 s{sT1}, s{sGcL}, {k}',
        f's_and_b32 s{sT1}, s{sT1}, 63',
        f's_lshl_b32 s{sT1}, s{sT1}, 7',
        f's_mul_i32 s{sWoff}, s{sWave}, s{sLdw}',
        f's_lshl_b32 s{sWoff}, s{sWoff}, 5',
        f's_add_u32 s{sWoff}, s{sWoff}, s{sT1}',
    ]

def comp_params():
    return [
        f's_lshr_b32 s{sT1}, s{sGc}, 1',
        f's_lshl_b32 s{sT1}, s{sT1}, 19',
        f's_and_b32 s{sT2}, s{sGc}, 1',
        f's_lshl_b32 s{sT2}, s{sT2}, 12',
        f's_add_u32 s{sT1}, s{sT1}, s{sT2}',
        f's_lshl_b32 s{sT2}, s{sBlk}, 13',
        f's_add_u32 s{sNOut0}, s{sT1}, s{sT2}',
        f's_add_u32 s{sNOut1}, s{sNOut0}, 8192',
        f's_cmp_ge_u32 s{sGc}, 64',
        f's_cselect_b32 s{sType}, 1, 0',
        f's_sub_u32 s{sT1}, s{sGc}, 128',
        f's_cmp_lt_u32 s{sT1}, 16',
        f's_cselect_b32 s{sType}, 0, s{sType}',
    ]

def groups(L):
    out = []
    for x in L:
        if x.startswith('s_cselect'): out[-1].append(x)
        else: out.append([x])
    return out

def epi_part(par, ptype, n):
    V, S = [], []
    y = n >> 1
    for e in range(2):
        fi = 2 * (n & 1) + e
        pk = PK + 4 * ((2 * n + e) % 4)
        if ptype == 0: t0, t1 = acc(par, 2 * (fi >> 1), 2 * y + (fi & 1)), acc(par, 2 * (fi >> 1) + 1, 2 * y + (fi & 1))
        else: t0, t1 = acc(par, fi, 2 * y), acc(par, fi, 2 * y + 1)
        if ptype == 0:
            V += [f'v_mul_f32 v{t+j}, s{sScl}, v{t+j}' for t in (t0, t1) for j in range(4)]
        V += [f'v_cvt_pk_bf16_f32 v{pk}, v{t0}, v{t0+1}', f'v_cvt_pk_bf16_f32 v{pk+1}, v{t0+2}, v{t0+3}',
              f'v_cvt_pk_bf16_f32 v{pk+2}, v{t1}, v{t1+1}', f'v_cvt_pk_bf16_f32 v{pk+3}, v{t1+2}, v{t1+3}']
        S.append(f'buffer_store_dwordx4 {vr(pk,4)}, v{vSt}, {sr(sWS,4)}, s{sOut1 if y else sOut0} offen offset:{fi*1024}{STORE_FLAGS}')
    return V, S

class Blk:
    def __init__(self): self.mf = []; self.pre = {}; self.val = {}
    def P(self, g, x): self.pre.setdefault(g, []).extend(x if isinstance(x, list) else [x])
    def V(self, g, x): self.val.setdefault(g, []).extend(x if isinstance(x, list) else [x])
    def seq(self, g, items, st=2):
        for it in items:
            self.P(g, it); g += st
        return g
    def auto(self, g, items):
        for it in items:
            while g in self.pre or g % 2 == 0: g += 1
            self.P(g, it)
        return g
    def out(self): return weave(self.mf, self.pre, self.val)
def wgroups(dm): return [[x] for x in dm]
def xgroups(c):
    xd = x_dma(c)
    return [xd[0:2], [xd[2]], [xd[3]], [xd[4]], [xd[5]], xd[6:8], [xd[8]], [xd[9]], [xd[10]], [xd[11]]]
def rotate_params(): return [[f's_mov_b32 s{sOut0}, s{sNOut0}'], [f's_mov_b32 s{sOut1}, s{sNOut1}'], [f's_add_u32 s{sGc}, s{sGc}, 1'], [f's_sub_u32 s{sRem}, s{sRem}, 1']] + groups(comp_params())

def build_pass(ptype, p):
    par = (p + 1) & 1
    B = Blk()
    for G in range(256):
        u, ft, tt, kl = G // 64, (G >> 4) & 3, (G >> 2) & 3, G & 3
        fg = 4 * u + ft; kb = 4 * u + kl
        a = acc(par, ft, tt)
        w, x = vr(wfr(fg, kl), 4), ar(xfr(tt, kb), 4)
        c = '0' if kb == 0 else vr(a, 4)
        B.mf.append(f'{MF} {vr(a,4)}, ' + (f'{w}, {x}' if ptype == 0 else f'{x}, {w}') + f', {c}')
        if G % 16 == 0: B.P(G - 1 if G else (0, 'before'), f';NEED {vr(wfr(fg,0),16)}')
        if (G + D) % 64 == 0:
            nu = (G + D) // 64
            np_, nu = (p, nu) if nu < 4 else (p + 1, 0)
            if p == 3: B.P(G - 1, [f';VMNEED W{np_}{nu}' if np_ == 3 else ';VMNEED W40', 's_barrier'])
            elif p == 4 and nu in (1, 2, 3): B.P(G - 1, [f';VMNEED W4{nu}' if nu < 3 else ';VMNEED W53', 's_barrier'])
        if G % 2 == 0:
            x = w_read(p, (G + D) // 2)
            if x: B.P(G, x)
    for u in range(4):
        g0 = 64 * u
        if p == 3:
            if u < 3:
                B.seq(g0 + 1, wgroups(w_dma(4, u))[:1]);
                for k, it in enumerate(wgroups(w_dma(4, u))[1:]): B.P(g0 + 3 + 4 * k, it)
                wg = wgroups(w_dma(5, u)); B.P(g0 + 17, wg[0])
                for k in range(4): B.P(g0 + 19 + 4 * k, wg[1 + k])
                B.P(g0 + 33, wg[5])
            else:
                B.seq(g0 + 1, wgroups(w_dma(4, u))[:1])
                for k, it in enumerate(wgroups(w_dma(4, u))[1:]): B.P(g0 + 3 + 4 * k, it)
                wg = wgroups(w_dma(5, u)); B.P(g0 + 17, wg[0])
                for k in range(4): B.P(g0 + 19 + 4 * k, wg[1 + k])
        Vl, Sl = epi_part(par ^ 1, ptype, u)
        gs = [g for g in range(g0 + 9, g0 + 64) if g % 4 == 1][:len(Vl) // 2]
        for k, g in enumerate(gs): B.V(g, Vl[2*k:2*k+2])
        B.P(g0 + 39, Sl[0]); B.P(g0 + 59, Sl[1])
    if p == 4 and PFM == 1:
        B.auto(64 * 3 + 1, [[f's_mov_b32 s{sPX+2}, 0x200000', f's_mov_b32 s{sPQ+2}, 0x400000']] + [[x] for x in pf_loads()])
    rp = rotate_params()
    g = B.auto(41 if p != 3 else 125, [[f's_mov_b32 s{sQ0}, s{sNOut0}', f's_mov_b32 s{sQ1}, s{sNOut1}']] + rp[2:])
    assert g < 250, g
    if p == 5 and LPF:
        X = []
        for k in range(16): X.append([f'buffer_load_dwordx4 {vr(112+4*(k%4),4)}, v{vSt}, {sr(sPX,4)}, s{sLx} offen offset:{(k%4)*1024} ; nodep'] + ([f's_add_u32 s{sLx}, s{sLx}, 4096'] if k % 4 == 3 else []))
        for k in range(4): X.append([f'buffer_load_dwordx4 {vr(112+4*k,4)}, v28, {sr(sPQ,4)}, s{sLw} offen ; nodep', f's_add_u32 s{sLw}, s{sLw}, 32768'])
        g = LPG
        for x in X: g = B.auto(g, [x]) + LPS
    if p == 5 and Q0PF and FUSE:
        import k2
        B.P(1, 's_barrier')
        g = Q0G
        for grp in k2.q0_early(sWave, sPX, sPQ):
            while g in B.pre or g in B.val or g % 2 == 0: g += 1
            B.P(g, grp); g += (3 if grp[0].startswith('buffer') else 1)
        assert g < 250, g
    B.P(253, f's_mov_b32 s{sOut0}, s{sQ0}'); B.P(255, f's_mov_b32 s{sOut1}, s{sQ1}')
    return B.out()

def build_dp(t0, t1):
    B = Blk()
    for G in range(512):
        c, ft, tt, kbl = G // 64, (G >> 3) & 7, (G >> 1) & 3, G & 1
        g = 8 * c + ft; kb = 2 * c + kbl
        a = acc(ft >> 2, ft & 3, tt)
        w, x = vr(wfd(g, kbl), 4), ar(xfr(tt, kb), 4)
        cc = '0' if kb == 0 else vr(a, 4)
        B.mf.append(f'{MF} {vr(a,4)}, ' + (f'{w}, {x}' if (t1 if ft >> 2 else t0) == 0 else f'{x}, {w}') + f', {cc}')
        if G % 16 == 0:
            need = f';NEED {vr(wfd(g,0),16)}'
            if G % 64 == 0: need += ' ' + ' '.join(ar(xfr(t, 2 * c), 8) for t in range(4))
            B.P(G - 1 if G else (0, 'before'), need)
        if (G + D) % 64 == 0:
            nc = (G + D) // 64
            B.P(G - 1, [f';VMNEED D{nc}' if nc < 8 else ';VMNEED W30', 's_barrier'])
        if G % 2 == 0:
            r = (G + D) // 2
            B.P(G, wd_read(r) if r < 256 else w_read(3, r - 256))
    for c in range(8):
        g0 = 64 * c
        if c + 3 < 8: B.seq(g0 + 1, xgroups(c + 3)[:7]); B.seq(g0 + 17, xgroups(c + 3)[7:])
        if c == 0: B.seq(23, wgroups(wd_dma(2))[:4]); B.seq(33, [sum(wgroups(wd_dma(2))[4:], [])])
        if c + 3 < 8: B.seq(g0 + 37, wgroups(wd_dma(c + 3))[:5]); B.P(g0 + 49, wgroups(wd_dma(c + 3))[5])
        if c < 7:
            B.P(g0 + 45 if c + 3 >= 8 else g0 + 49, f';VMNEED X{c+1}')
            rs = [x_read(c + 1, kbl, tt) for kbl in range(2) for tt in range(4)]
            gs = [49, 51, 53, 55, 57, 59, 61, 61]
            for k, x in enumerate(rs): B.P(g0 + gs[k], x)
    for k, x in enumerate(groups(load_params(2))): B.P(64 * 4 + 23 + 2 * (k // 2), x)
    B.seq(64 * 5 + 37, wgroups(w_dma(3, 0))[:5]); B.P(64 * 5 + 45, wgroups(w_dma(3, 0))[5])
    B.seq(64 * 6 + 1, wgroups(w_dma(3, 1)))
    B.seq(64 * 6 + 19, wgroups(w_dma(3, 2)))
    B.seq(64 * 6 + 37, wgroups(w_dma(3, 3))[:5])
    for k, x in enumerate(groups(load_params(3))): B.P(64 * 7 + 1 + 2 * (k // 2), x)
    rp = rotate_params()
    g = 64 * 1 + 23
    for k, x in enumerate(rp): B.P(g + 2 * (k // 4), x)
    B.seq(64 * 7 + 11, [[f's_mov_b32 s{sQ0}, s{sNOut0}', f's_mov_b32 s{sQ1}, s{sNOut1}']])
    for k, x in enumerate(rp[2:]): B.P(64 * 7 + 17 + 2 * (k // 3), x)
    g = 64 * 7 + 37
    for n in range(4):
        Vl, Sl = epi_part(0, t0, n)
        h = len(Vl) // 2
        for e in range(2):
            B.V(g, Vl[e*h:e*h+h//2]); B.V(g + 1, Vl[e*h+h//2:(e+1)*h]); B.P(g + 2, Sl[e]); g += 3
    assert g <= 64 * 7 + 62, g
    B.P(511, [f's_mov_b32 s{sOut0}, s{sQ0}', f's_mov_b32 s{sOut1}, s{sQ1}'])
    if PF:
        for k in range(NPF):
            B.P(PFG + 2 * k, f'buffer_load_dwordx4 {vr(112+4*(k%4),4)}, v{vSt}, {sr(sW,4)}, s{sPf} offen offset:{(k%4)*1024} ; nodep')
            if k % 4 == 3: B.P(PFG + 2 * k, f's_add_u32 s{sPf}, s{sPf}, 4096')
    return B.out()

def pf_loads():
    L = [f'buffer_load_dwordx4 {vr(112+4*q,4)}, v{vSt}, {sr(sPX,4)}, s{sPo} offen offset:{q*1024} ; nodep' for q in range(2)]
    L += [f'buffer_load_dwordx4 {vr(112+4*q,4)}, v{vSt}, {sr(sPQ,4)}, s{sPo+1} offen offset:{q*1024} ; nodep' for q in range(4)]
    return L

def pf_local():
    L = [f's_mov_b32 s{sPX+2}, 0x200000', f's_mov_b32 s{sPQ+2}, 0x400000',
         f's_lshr_b32 s{sPo}, s2, 3', f's_lshl_b32 s{sPo}, s{sPo}, 16', f's_lshl_b32 s{sPo+1}, s{sWave}, 14', f's_add_u32 s{sPo}, s{sPo}, s{sPo+1}',
         'v_lshrrev_b32 v100, 4, v0', 'v_lshlrev_b32 v100, 13, v100', 'v_and_b32 v101, 15, v0', 'v_lshl_add_u32 v100, v101, 4, v100',
         f's_lshr_b32 s{sPo+1}, s2, 5', f's_lshl_b32 s{sPo+1}, s{sPo+1}, 2', f's_add_u32 s{sPo+1}, s{sPo+1}, s{sWave}', f's_lshl_b32 s{sPo+1}, s{sPo+1}, 17',
         f's_and_b32 s{sPo+2}, s2, 31', f's_lshl_b32 s{sPo+2}, s{sPo+2}, 8', f's_add_u32 s{sPo+1}, s{sPo+1}, s{sPo+2}']
    for q in range(4):
        L += [f'buffer_load_dwordx4 {vr(112+4*q,4)}, v100, {sr(sPQ,4)}, s{sPo+1} offen ; nodep', f's_add_u32 s{sPo+1}, s{sPo+1}, 32768']
    for k in range(16):
        L.append(f'buffer_load_dwordx4 {vr(112+4*(k%4),4)}, v{vSt}, {sr(sPX,4)}, s{sPo} offen offset:{(k%4)*1024} ; nodep')
        if k % 4 == 3: L.append(f's_add_u32 s{sPo}, s{sPo}, 4096')
    return L

def relayout_job():
    L = []; a = L.append
    vD, vR, vF = 32, 40, 56
    sU, sSrc, sDst, sA, sB, sS = 45, 46, 47, 48, 49, 88
    a('s_waitcnt lgkmcnt(0)')
    a(f's_mov_b32 s{sWS}, s26'); a(f's_mov_b32 s{sWS+1}, s27'); a(f's_mov_b32 s{sWS+2}, 0x10000000'); a(f's_mov_b32 s{sWS+3}, 0x20000')
    L += pf_setup() + [f's_mov_b32 s{sPX+2}, 0x200000', f's_mov_b32 s{sPQ+2}, 0x400000']
    a(f'v_lshlrev_b32 v{vSt}, 4, v0')
    for j in range(4): a(f'v_mov_b32 v{vF+j}, 0')
    a(f's_lshl_b32 s{sA}, s{sBlk}, 2'); a(f's_add_u32 s{sA}, s{sA}, s{sWave}'); a(f's_lshl_b32 s{sA}, s{sA}, 10'); a(f's_add_u32 s{sA}, s{sA}, {FLG}')
    if not int(os.environ.get('FUSE3', 0)): a(f'buffer_store_dwordx4 {vr(vF,4)}, v{vSt}, {sr(sWS,4)}, s{sA} offen{STORE_FLAGS}')
    L += pf_local() if PFM == 3 else pf_loads()
    if Q0PF and FUSE:
        L += ['v_lshrrev_b32 v100, 3, v0', 'v_lshlrev_b32 v101, 10, v100', 'v_lshrrev_b32 v102, 4, v0', 'v_and_b32 v103, 7, v0', 'v_xor_b32 v102, v102, v103']
        for q in range(4): L += [f'v_xor_b32 v104, {4*(q&1)}, v102', 'v_lshl_add_u32 v104, v104, 4, v101', f'v_add_u32 v{vXd+q}, {q*7168}, v104']
        a('s_call_b64 s[88:89], K1_Q0'); a('s_waitcnt vmcnt(0)')
    a('s_branch K1_END2' if FUSE else 's_branch K1_END')
    return L
def pf_setup():
    return [f's_mov_b64 {sr(sPX,2)}, s[4:5]', f's_mov_b32 s{sPX+3}, 0x20000', f's_mov_b64 {sr(sPQ,2)}, s[8:9]', f's_mov_b32 s{sPQ+3}, 0x20000',
            f's_mov_b32 s{sPX+2}, 0', f's_mov_b32 s{sPQ+2}, 0',
            f's_lshl_b32 s{sPo}, s2, 2', f's_add_u32 s{sPo}, s{sPo}, s{sWave}', f's_lshl_b32 s{sPo+1}, s{sPo}, 12', f's_lshl_b32 s{sPo}, s{sPo}, 11']

def lpf_setup():
    return [f's_lshr_b32 s{sLx}, s2, 3', f's_lshl_b32 s{sLx}, s{sLx}, 16', f's_lshl_b32 s{sT1}, s{sWave}, 14', f's_add_u32 s{sLx}, s{sLx}, s{sT1}',
            f's_lshr_b32 s{sLw}, s2, 5', f's_lshl_b32 s{sLw}, s{sLw}, 2', f's_add_u32 s{sLw}, s{sLw}, s{sWave}', f's_lshl_b32 s{sLw}, s{sLw}, 17',
            f's_and_b32 s{sT2}, s2, 31', f's_lshl_b32 s{sT2}, s{sT2}, 8', f's_add_u32 s{sLw}, s{sLw}, s{sT2}',
            'v_lshrrev_b32 v28, 4, v0', 'v_lshlrev_b32 v28, 13, v28', 'v_and_b32 v100, 15, v0', 'v_lshl_add_u32 v28, v100, 4, v28']

def final_epi(par, ptype):
    L = ['s_nop 7']
    if PFM == 2: L = [f's_mov_b32 s{sPX+2}, 0x200000', f's_mov_b32 s{sPQ+2}, 0x400000'] + pf_loads() + ['s_nop 1']
    for n in range(4):
        Vl, Sl = epi_part(par, ptype, n)
        h = len(Vl) // 2
        L += Vl[:h] + [Sl[0]] + Vl[h:] + [Sl[1]]
    return L

def gen_k1(T=int(os.environ.get('K1_T', 4))):
    name = 'k1_kernel'
    L = []
    a = L.append
    a(f'.p2align 8\n.type {name},@function\n{name}:')
    a('s_cmp_ge_u32 s2, 256'); a('s_cbranch_scc1 K1_END')
    if os.environ.get('GDIAG'): a('s_mov_b32 s100, -1')
    if os.environ.get('CPF', '1') == '1': L += code_prefetch('k1_kernel', 'CODE_END', 'K1', 98, 99, 90, 16)
    a('s_load_dwordx16 s[4:19], s[0:1], 0'); a('s_load_dwordx8 s[20:27], s[0:1], 64')
    a('v_lshrrev_b32 v1, 6, v0'); a('v_and_b32 v0, 63, v0')
    a(f'v_readfirstlane_b32 s{sWave}, v1')
    if DIAG: a('s_mov_b32 s72, 0'); a('v_mov_b32 v31, 0'); a('v_mov_b32 v29, 0'); L += stamp()
    nj = 32 // T
    lt = T.bit_length() - 1
    a(f's_and_b32 s{sT0}, s2, 7'); a(f's_lshr_b32 s{sT1}, s2, 3')
    ng = 8 // T
    a(f's_and_b32 s{sT2}, s{sT0}, {ng-1}'); a(f's_lshl_b32 s{sT2}, s{sT2}, {lt}')
    a(f's_and_b32 s{sBlk}, s{sT1}, {T-1}'); a(f's_add_u32 s{sBlk}, s{sBlk}, s{sT2}')
    a(f's_lshr_b32 s{sT0}, s{sT0}, {ng.bit_length()-1}'); a(f's_mul_i32 s{sT0}, s{sT0}, {nj}')
    a(f's_lshr_b32 s{sT1}, s{sT1}, {lt}'); a(f's_add_u32 s{sT0}, s{sT0}, s{sT1}')
    a(f's_and_b32 s{sJ7}, s{sT0}, 7'); a(f's_lshl_b32 s{sJ7}, s{sJ7}, 7')
    if JPERM:
        a(f's_sub_u32 s{sT1}, s{sT0}, 1'); a(f's_cmp_lt_u32 s{sT0}, 7'); a(f's_cselect_b32 s{sT1}, s{sT0}, s{sT1}')
        a(f's_sub_u32 s{sT2}, s{sT0}, 24'); a(f's_cmp_lt_u32 s{sT2}, 3'); a(f's_cselect_b32 s{sT2}, 1, 0'); a(f's_sub_u32 s{sT1}, s{sT1}, s{sT2}')
        a(f's_cmp_eq_u32 s{sT0}, 7'); a(f's_cselect_b32 s{sT1}, 31, s{sT1}'); a(f's_cmp_eq_u32 s{sT0}, 23'); a(f's_cselect_b32 s{sT0}, 25, s{sT1}')
    a(f's_lshl_b32 s94, s{sT0}, 2'); a('s_add_u32 s94, s94, 128')
    a(f's_cmp_eq_u32 s{sT0}, 31'); a('s_cbranch_scc1 K1_RELAY')
    a(f's_lshl_b32 s{sXoff}, s{sBlk}, 18'); a(f's_lshl_b32 s{sT1}, s{sWave}, 16'); a(f's_add_u32 s{sXoff}, s{sXoff}, s{sT1}')
    a(f's_lshl_b32 s{sBlk}, s{sBlk}, 3'); a(f's_lshl_b32 s{sT1}, s{sWave}, 1'); a(f's_add_u32 s{sBlk}, s{sBlk}, s{sT1}')
    a(f's_mul_i32 s{sT1}, s{sT0}, 79'); a(f's_lshr_b32 s{sT1}, s{sT1}, 10')
    a(f's_mul_i32 s{sT2}, s{sT1}, 13'); a(f's_sub_u32 s{sT2}, s{sT0}, s{sT2}')
    a(f's_lshl_b32 s{sPf}, s{sT2}, 5'); a(f's_lshr_b32 s{sGc}, s{sXoff}, 16'); a(f's_add_u32 s{sPf}, s{sPf}, s{sGc}'); a(f's_mul_i32 s{sPf}, s{sPf}, {NPF*1024}')
    a(f's_mov_b32 s{sRem}, 5')
    a(f's_cmp_eq_u32 s{sT2}, 12'); a(f's_cselect_b32 s{sRem}, 4, s{sRem}')
    a(f's_cmp_eq_u32 s{sT0}, 30'); a(f's_cselect_b32 s{sRem}, 4, s{sRem}')
    a(f's_mul_i32 s{sT2}, s{sT2}, 5')
    a(f's_lshl_b32 s{sGc}, s{sT1}, 6'); a(f's_add_u32 s{sGc}, s{sGc}, s{sT2}')
    a(f's_lshl_b32 s{sM0W}, s{sWave}, 12')
    a(f's_lshl_b32 s{sM0X}, s{sWave}, 14'); a(f's_add_u32 s{sM0X}, s{sM0X}, {XBASE}')
    a(f's_lshl_b32 s{sM0X2}, s{sWave}, 13'); a(f's_add_u32 s{sM0X2}, s{sM0X2}, 65536')
    a(f'v_lshlrev_b32 v{vSt}, 4, v0')
    t = [100, 101, 102, 103, 104]
    a(f'v_lshrrev_b32 v{t[0]}, 3, v0'); a(f'v_lshlrev_b32 v{t[1]}, 10, v{t[0]}')
    a(f'v_lshrrev_b32 v{t[2]}, 4, v0'); a(f'v_and_b32 v{t[3]}, 7, v0'); a(f'v_xor_b32 v{t[2]}, v{t[2]}, v{t[3]}')
    for q in range(4):
        a(f'v_xor_b32 v{t[4]}, {4*(q&1)}, v{t[2]}'); a(f'v_lshl_add_u32 v{t[4]}, v{t[4]}, 4, v{t[1]}'); a(f'v_add_u32 v{vXd+q}, {q*7168}, v{t[4]}')
    a(f'v_and_b32 v{t[0]}, 15, v0'); a(f'v_lshrrev_b32 v{t[1]}, 4, v0'); a(f'v_bfe_u32 v{t[2]}, v0, 1, 3')
    a(f'v_lshlrev_b32 v{t[0]}, 7, v{t[0]}')
    for kbl in range(2):
        a(f'v_add_u32 v{t[4]}, {4*kbl}, v{t[1]}'); a(f'v_xor_b32 v{t[4]}, v{t[4]}, v{t[2]}'); a(f'v_lshl_add_u32 v{t[4]}, v{t[4]}, 4, v{t[0]}')
        a(f'v_add_u32 v{vXr+kbl}, s{sM0X}, v{t[4]}'); a(f'v_add_u32 v{vXr2+kbl}, s{sM0X2}, v{t[4]}')
    a(f'v_bfe_u32 v{t[0]}, v0, 2, 2'); a(f'v_lshrrev_b32 v{t[1]}, 4, v0'); a(f'v_lshl_add_u32 v{t[1]}, v{t[1]}, 3, v{t[0]}'); a(f'v_lshlrev_b32 v{t[1]}, 7, v{t[1]}')
    a(f'v_and_b32 v{t[2]}, 3, v0'); a(f'v_lshl_add_u32 v{t[1]}, v{t[2]}, 3, v{t[1]}')
    a(f'v_bfe_u32 v{t[2]}, v0, 3, 2')
    for ft in range(4):
        a(f'v_xor_b32 v{t[3]}, {ft}, v{t[2]}'); a(f'v_lshl_add_u32 v{vWl+ft}, v{t[3]}, 5, v{t[1]}'); a(f'v_add_u32 v{vWr+ft}, 65536, v{vWl+ft}'); a(f'v_add_u32 v{vWr+4+ft}, 131072, v{vWl+ft}')
    a('s_waitcnt lgkmcnt(0)')
    a(f's_mov_b32 s{sWS}, s26'); a(f's_mov_b32 s{sWS+1}, s27'); a(f's_mov_b32 s{sWS+2}, 0x10000000'); a(f's_mov_b32 s{sWS+3}, 0x20000')
    a(f's_mov_b32 s{sW+3}, 0x20000'); a(f's_mov_b32 s{sACT+2}, 0x200000'); a(f's_mov_b32 s{sACT+3}, 0x20000')
    L += pf_setup()
    if os.environ.get('GDIAG'):
        a('s_mov_b32 s96, s24'); a('s_mov_b32 s97, s25'); a('s_mov_b32 s98, 256'); a('s_mov_b32 s99, 0x20000')
        a('s_mov_b32 s100, -1'); a(f's_cmp_eq_u32 s2, {os.environ.get("GA", 66)}'); a('s_cselect_b32 s100, 0, s100'); a(f's_cmp_eq_u32 s2, {os.environ.get("GB", 103)}'); a('s_cselect_b32 s100, 32, s100'); a(f's_cmp_lg_u32 s{sWave}, 0'); a('s_cselect_b32 s100, -1, s100')
        L += gstamp(0, 96, 96, 97, neg=True) + gstamp(1, 96, 96, 97)
    a(f's_cmp_eq_u32 s{sT1}, 0'); a(f's_cselect_b64 {sr(sW,2)}, s[10:11], s[12:13]'); a(f's_cselect_b32 s{sScl}, {f32(CA)}, 1.0')
    a(f's_cmp_eq_u32 s{sT1}, 2'); a(f's_cselect_b64 {sr(sW,2)}, s[18:19], {sr(sW,2)}'); a(f's_cselect_b64 {sr(sACT,2)}, s[16:17], s[6:7]')
    a(f's_movk_i32 s{sLdw}, 8192'); a(f's_cselect_b32 s{sLdw}, 3072, s{sLdw}')
    a(f's_mov_b32 s{sWsz}, 0x400000'); a(f's_cselect_b32 s{sWsz}, 0x180000, s{sWsz}')
    a(f's_lshl_b32 s{sLdw128}, s{sLdw}, 7'); a(f's_lshl_b32 s{sLdw64}, s{sLdw}, 6')
    a(f'v_lshrrev_b32 v{t[0]}, 3, v0'); a(f'v_mul_lo_u32 v{t[0]}, v{t[0]}, s{sLdw}')
    a(f'v_bfe_u32 v{t[1]}, v0, 4, 1'); a(f'v_lshlrev_b32 v{t[1]}, 1, v{t[1]}'); a(f'v_and_b32 v{t[2]}, 7, v0'); a(f'v_xor_b32 v{t[1]}, v{t[1]}, v{t[2]}')
    a(f's_lshl_b32 s{sT1}, s{sLdw}, 3'); a(f's_sub_u32 s{sT1}, s{sT1}, 1024')
    for q in range(4):
        a(f'v_xor_b32 v{t[2]}, {4*(q&1)}, v{t[1]}'); a(f'v_lshl_add_u32 v{vWd+q}, v{t[2]}, 4, v{t[0]}')
        if q < 3: a(f'v_add_u32 v{t[0]}, s{sT1}, v{t[0]}')
    a(f's_mov_b32 s{sGcL}, s{sGc}'); a(f's_mov_b32 s{sW+2}, s{sWsz}')
    a(f's_add_u32 s{sW5}, s{sW}, 128'); a(f's_addc_u32 s{sW5+1}, s{sW+1}, 0'); a(f's_sub_u32 s{sW5+2}, s{sWsz}, 128'); a(f's_mov_b32 s{sW5+3}, 0x20000')
    a(f's_cmp_eq_u32 s{sRem}, 5'); a(f's_cselect_b32 s{sW5+2}, s{sW5+2}, 0')
    a(f's_and_b32 s{sT1}, s{sGc}, 63'); a(f's_lshr_b32 s{sT2}, s{sWave}, 1'); a(f's_add_u32 s{sT1}, s{sT1}, s{sT2}'); a(f's_lshl_b32 s{sT1}, s{sT1}, 7')
    a(f's_and_b32 s{sT2}, s{sWave}, 1'); a(f's_mul_i32 s{sWoD}, s{sT2}, s{sLdw}'); a(f's_lshl_b32 s{sWoD}, s{sWoD}, 5'); a(f's_add_u32 s{sWoD}, s{sWoD}, s{sT1}')
    xpf = [f'v_lshlrev_b32 v97, 10, v0', f's_add_u32 s{sT1}, s{sXoff}, s{sJ7}', f'buffer_load_dword v96, v97, {sr(sACT,4)}, s{sT1} offen ; nodep'] if XPF else []
    pro = wd_dma(0, True) + x_dma(0) + (xpf if XPF == 2 else []) + wd_dma(1, True) + (xpf if XPF == 4 else []) + x_dma(1) + (xpf if XPF == 5 else []) + comp_params()
    pro += [';VMNEED X0', 's_barrier']
    pro += [wd_read(i) for i in range(4)] + [x_read(0, kbl, tt) for tt in range(4) for kbl in range(2)] + [wd_read(i) for i in range(4, D // 2)]
    pro += (xpf if XPF == 3 else []) + x_dma(2) + (xpf if XPF == 6 else []) + (lpf_setup() if LPF else [])
    pro = auto_waits([], pro)
    L += pro
    L += stamp() + gstamp(2, 96, 100, 101) + gstamp(3, 96, 100, 101, neg=True)
    a(f's_cmp_eq_u32 s{sType}, 1'); a('s_cbranch_scc1 K1_D11'); a(f's_cmp_eq_u32 s{sGc}, 143'); a('s_cbranch_scc1 K1_D01')
    code = {}
    dps = [(0, 0), (0, 1), (1, 1)]
    for t0_, t1_ in dps:
        code['D', t0_, t1_] = auto_waits(pro, build_dp(t0_, t1_))
    if Q0PF and FUSE:
        import k2
        q0 = [x for g in k2.q0_early(sWave, sPX, sPQ) for x in g]
    for t_ in range(2):
        code[3, t_] = auto_waits(pro + code['D', 0, 0], build_pass(t_, 3))
        code[4, t_] = auto_waits(code['D', 0, 0] + code[3, t_], build_pass(t_, 4))
        code[5, t_] = auto_waits(code[3, t_] + code[4, t_], build_pass(t_, 5))
    for t0_, t1_ in dps:
        a(f'.p2align 6\nK1_D{t0_}{t1_}:'); L += code['D', t0_, t1_] + gstamp(4, 96, 100, 101) + stamp()
        if (t0_, t1_) != (1, 1): a(f's_branch K1_P{t1_}')
    q0call = ['s_barrier', 's_call_b64 s[88:89], K1_Q0'] if Q0PF and FUSE else []
    for t_ in (1, 0):
        a(f'K1_P{t_}:'); L += code[3, t_] + stamp() + code[4, t_] + stamp() + [f's_cmp_eq_u32 s{sRem}, 0', f's_cbranch_scc1 K1_FIN{t_}1'] + code[5, t_] + stamp()
        L += final_epi(0, t_); a('s_branch K1_END2')
        a(f'K1_FIN{t_}1:'); L += q0call + final_epi(1, t_); a('s_waitcnt vmcnt(8)' if not q0call else 's_waitcnt vmcnt(0)'); a('s_branch K1_END2')
    a('K1_RELAY:'); L += relayout_job()
    if PFM == 3:
        a('K1_PFL:'); L += pf_local() + ['s_setpc_b64 s[88:89]']
    if Q0PF and FUSE:
        a('K1_Q0:'); L += q0 + ['s_setpc_b64 s[88:89]']
    a('K1_END:'); a('s_endpgm')
    a('K1_END2:')
    if DIAG:
        L += stamp()
        if not FUSE: a('s_waitcnt vmcnt(0)')
        L += stamp()
        L += dstore(31, 30, 29, sWave, sWS, 200)
    if FUSE: a('s_waitcnt vmcnt(8) lgkmcnt(0)')
    else: a('s_endpgm')
    check_trace(pro + code['D', 0, 0] + code[3, 0] + code[4, 0] + code[5, 0] + final_epi(0, 0), 'k1a')
    check_trace(pro + code['D', 0, 1] + code[3, 1] + code[4, 1] + final_epi(1, 1), 'k1b')
    return L, kdesc(name, 512, 256), f'; @launch kernel={name} grid=(256,1,1) block=(256,1,1) lds=163840'
```

```python
from lib import *
from layout import *
import os, struct, math
def f32(x): return '0x%08x' % struct.unpack('<I', struct.pack('<f', x))[0]
DIAG = os.environ.get('DIAG')
FUSE = int(os.environ.get('FUSE', 1))
Q0PF = int(os.environ.get('K1_Q0PF', 0)) and FUSE
FUSE3 = int(os.environ.get('FUSE3', 0))
sSig = 88
sDB = 80
KVF = os.environ.get('K2_KVF', ' sc1')
SF = os.environ.get('K2_SF', ' sc1')
THR = 2.0 ** float(os.environ.get('THR', 40.0))
NEGBIG = -1.0e30
D = int(os.environ.get('K2_D', 24))
MF = 'v_mfma_f32_16x16x32_bf16'
vL16, vRd, vq, vBig, vd, vl, vt, vT = 1, 2, 4, 5, 6, 8, 12, 16
NM = 20
vDl = 36
vDG = 44
S0, P0, TMPV, Q0, TMPB = 48, 112, 144, 176, 240
O0, FR = 0, 128
sWS, sX, sWQ, sWO, sWB = 8, 12, 16, 60, 64
sW, sH, sI, sK, sV, sSR, sSW, sCnt, sKc, sMq, sRet, sT, sMk, sW2, sW4 = 20, 21, 22, 23, 24, 25, 26, 27, 28, 29, 30, 32, 40, 48, 49
sW2K, sW4K = 58, 59
sFa, sFw = 92, 93
sK2, sV2 = 84, 86
sXa, sXb, sWo, sXs = 50, 51, 52, 53

def stamp(): return dstamp(vDG, vDG + 1, vDG + 2) if DIAG else []
def Sr(par, idx): return S0 + 32 * par + 4 * idx
def Pr(par, u): return P0 + 16 * par + 4 * u
def Or(qt, dt): return O0 + 32 * qt + 4 * dt
def Qr(qt, db): return Q0 + 16 * qt + 4 * db
def slot(g): return FR + 4 * ((g // 2) % 16)
def tq(t, idx): return (idx & 3) if t == 'c' else 2 + (idx & 1)
def tkt(t, idx): return (idx >> 2) if t == 'c' else (idx >> 1)
def tP(t, idx):
    if t == 'c': return idx & 3, idx >> 2
    kt = idx >> 1
    return 2 * (kt >> 1) + (idx & 1), kt & 1

def pv_frags(t):
    if t == 'c': return [(4 * dt, 4 * dt, dt * 1024) for dt in range(8)]
    return [(4 * dt + 2 * kb, 4 * dt + kb, kb * 8192 + dt * 1024) for dt in range(8) for kb in range(2)]
def koff(kt, db): return (kt >> 1) * 8192 + (2 * db + (kt & 1)) * 1024
def qk_frags(t):
    if t == 'c': return [(34 + 16 * kt + 4 * db, 32 + 16 * kt + db, 16384 + koff(kt, db)) for kt in range(2) for db in range(4)]
    return [(32 + 8 * kt + 2 * db, 32 + 8 * kt + db, 16384 + koff(kt, db)) for kt in range(4) for db in range(4)]
def rd(g, off, par): return f'ds_read_b128 {ar(slot(g),4)}, v{vRd+par} offset:{off}'

def pv_mfmas(t, par):
    out = []
    for dt in range(8):
        for x in range(4):
            if t == 'c': qt, u, g = x, x, 4 * dt
            else:
                q, kb = x >> 1, x & 1
                qt, u, g = 2 + q, 2 * kb + q, 4 * dt + 2 * kb
            o = Or(qt, dt)
            out.append(f'{MF} {ar(o,4)}, {ar(slot(g),4)}, {vr(Pr(par,u),4)}, {ar(o,4)}')
    return out
def qk_mfmas(t, par, czero=False, fr=None):
    out = []
    nkt, nq = (2, 4) if t == 'c' else (4, 2)
    for kt in range(nkt):
        for x in range(nq):
            for db in range(4):
                g = 32 + (16 * kt + 4 * db + 2 if t == 'c' else 8 * kt + 2 * db)
                f = ar(slot(g), 4) if fr is None else fr(kt, db)
                idx = nq * kt + x; qt = tq(t, idx); s = Sr(par, idx)
                c = vr(s, 4) if db else ('0' if czero else vr(NM + 4 * qt, 4))
                out.append(f'{MF} {vr(s,4)}, {f}, {vr(Qr(qt,db),4)}, {c}')
    return out

sRet2 = 78
MASKS = set()
def mask_call(par, t):
    MASKS.add((par, t))
    return [f's_call_b64 {sr(sRet2,2)}, K2_MASK_{par}{t}']
def mask_routine(par, t):
    n = f'K2_MASK_{par}{t}'
    L = [f'{n}:', f's_ashr_i32 s{sT+4}, s{sMq}, 5', f's_sub_i32 s{sT+4}, s{sT+4}, s{sW}']
    for b in range(1 if t == 'c' else 2):
        T = (lambda kt, q: Sr(par, 4 * kt + q)) if t == 'c' else (lambda kt, q, b=b: Sr(par, 2 * (2 * b + kt) + q))
        L += [f's_cmp_lt_i32 s{sT+4}, {-b}', f's_cbranch_scc1 {n}_e{b}', f's_cmp_eq_i32 s{sT+4}, {-b}', f's_cbranch_scc1 {n}_d{b}']
        for kt, q in ((0, 0), (0, 1), (1, 1)): L += [f'v_mov_b32 v{T(kt,q)+j}, v{vBig}' for j in range(4)]
        L += [f's_branch {n}_f{b}', f'{n}_d{b}:']
        for kt, q in ((0, 0), (1, 1)): L += [f'v_cndmask_b32 v{T(kt,q)+j}, v{T(kt,q)+j}, v{vBig}, {sr(sMk+2*j,2)}' for j in range(4)]
        L += [f'{n}_f{b}:'] + [f'v_mov_b32 v{T(1,0)+j}, v{vBig}' for j in range(4)] + [f'{n}_e{b}:']
    return L + [f's_setpc_b64 {sr(sRet2,2)}']

def exp_ops(par, t):
    L = []; seen = set()
    def tail(idx):
        s = Sr(par, idx); qt = tq(t, idx); u, h = tP(t, idx); a = vt + qt
        if qt not in seen:
            seen.add(qt); x = [f'v_add_f32 v{a}, v{s}, v{s+1}']
        else: x = [f'v_add_f32 v{a}, v{a}, v{s}', f'v_add_f32 v{a}, v{a}, v{s+1}']
        p = Pr(par, u) + 2 * h
        return x + [f'v_cvt_pk_bf16_f32 v{p}, v{s}, v{s+1}', f'v_add_f32 v{a}, v{a}, v{s+2}', f'v_add_f32 v{a}, v{a}, v{s+3}', f'v_cvt_pk_bf16_f32 v{p+1}, v{s+2}, v{s+3}']
    prev = None
    for idx in range(8):
        s = Sr(par, idx)
        e = [f'v_exp_f32 v{s+j}, v{s+j}' for j in range(4)]
        tl = tail(prev) if prev is not None else []
        L += [e[0]] + tl[:2] + [e[1]] + tl[2:4] + [e[2]] + tl[4:] + [e[3]]
        prev = idx
    L += ['s_nop 0'] + tail(prev)
    return L
def lupd(t): return [f'v_add_f32 v{vl+q}, v{vl+q}, v{vt+q}' for q in ((0, 1, 2, 3) if t == 'c' else (2, 3))]
def chk(t):
    if t == 'c': L = [f'v_max3_f32 v{vT}, v{vt}, v{vt+1}, v{vt+2}', f'v_max_f32 v{vT}, v{vT}, v{vt+3}']
    else: L = [f'v_max_f32 v{vT}, v{vt+2}, v{vt+3}']
    return L + [f'v_cmp_nge_f32 vcc, {f32(THR)}, v{vT}']

def adv64(p, x): return [f's_add_u32 s{p}, s{p}, {x}', f's_addc_u32 s{p+1}, s{p+1}, 0']
def dma_part(kind, t, tag):
    so = sV2 if kind == 'V' else sK2
    w = (sW4 if t == 's' else sW2) if kind == 'V' else (sW4K if t == 's' else sW2K)
    n = 4 if t == 's' else 2
    items = [[f's_add_u32 m0, s{sSW}, s{w} ; tag={tag}']]
    for q in range(n):
        items.append([f'global_load_lds_dwordx4 v{vL16}, {sr(so,2)} offset:{q*1024}{KVF} ; tag={tag}'])
    items.append(adv64(so, n * 4096))
    return items
def flat(L):
    o = []
    for x in L:
        if isinstance(x, list): o += flat(x)
        else: o.append(x)
    return o

STUBS = []
def body(par, pv, sm, qk, nxt_pv, vload, kload, mask, uid):
    psm = par ^ 1
    mf = []
    if pv: mf += pv_mfmas(pv, par)
    if qk: mf += qk_mfmas(qk, par)
    ng = len(mf)
    pre = {}
    def P(g, x): pre.setdefault(g, []).extend(x if isinstance(x, list) else [x])
    frs = (pv_frags(pv) if pv else []) + (qk_frags(qk) if qk else [])
    for g, fu, off in frs:
        if g - D >= 0: P(g - D, rd(g, off, par))
    for g0 in range(0, ng, 8):
        need = [ar(slot(g), 4) for g, fu, off in frs if g0 <= fu < g0 + 8]
        if not need: continue
        P(g0 - 1 if g0 else (0, 'before'), ';NEED ' + ' '.join(need))
    if nxt_pv:
        gb = ng - D
        P(gb - 3, [f';VMNEED U{par^1}', 's_barrier'])
        for g, fu, off in pv_frags(nxt_pv):
            if g < D: P(ng + g - D, rd(g, off, par ^ 1))
    items = []
    if vload: items += dma_part('V', vload, f'U{par}')
    if kload: items += dma_part('K', kload, f'U{par}')
    if nxt_pv: items += [[f's_add_u32 s{sSR}, s{sSR}, 32768'], [f's_and_b32 s{sSR}, s{sSR}, 0x1ffff']]
    if vload or kload: items += [[f's_add_u32 s{sSW}, s{sSW}, 32768'], [f's_and_b32 s{sSW}, s{sSW}, 0x1ffff']]
    if sm:
        items += [[f's_add_u32 s{sKc}, s{sKc}, {8192 if pv == "c" else 16384}']]
        if mask is None: items += [[f's_mov_b32 s{sMq}, -4096']]
        else: P(3, [f's_mov_b32 s{sMq}, {32*mask}'] + mask_call(psm, sm))
    free = [g for g in range(1, ng) if g not in pre and not (g == ng - 1)]
    lim = (ng - D - 2) if nxt_pv else ng - 2
    gi = 0; lastd = -9
    for it in items:
        isd = it[0].startswith(('buffer', 'global'))
        while gi < len(free) and (isd and free[gi] - lastd < DSP): gi += 1
        g = free[gi]; gi += 1
        if isd:
            lastd = g
        P(g, it)
    Pq = []; Eq = []
    if nxt_pv: Pq.append(f'v_add_u32 v{vRd+(par^1)}, s{sSR}, v{vL16}')
    if pv: Pq += lupd(pv)
    if sm:
        for x in exp_ops(psm, sm):
            if x.startswith('v_exp'): Eq.append(x)
            elif x.startswith('v_'): Pq.append(x)
        NL = int(os.environ.get('K2_NL', 6))
        cv = [k for k, x in enumerate(Pq) if x.startswith('v_cvt')][-NL:]
        late = [Pq[k] for k in cv]
        Pq = [x for k, x in enumerate(Pq) if k not in cv] + chk(sm) + late
    cap = {}
    for g in range(ng):
        n = sum(2 if x.startswith(('buffer', 'ds_', 'global')) else 1 for x in pre.get(g, []))
        cap[g] = max(0, 2 - max(0, n - 1))
    last = ng - 1 if qk else ng - 2
    total = 2 * len(Eq) + len(Pq)
    def sched(extra):
        cp = dict(cap)
        for k in range(extra): cp[(k * (last + 1) // max(extra, 1)) % (last + 1)] += 1
        val = {}; pi = ei = 0
        eiss = {}
        ereg = [Ins(x).w for x in Eq]; allE = set().union(*ereg) if ereg else set()
        pend_mask = {}
        for k, x in enumerate(Pq):
            if x.startswith('v_cndmask'):
                for r in Ins(x).w: pend_mask[r] = k
        for g in range(last + 1):
            sl = cp[g]
            while sl > 0:
                if ei < len(Eq) and sl >= 2 and (mask is None or g >= 3):
                    val.setdefault(g, []).append(Eq[ei])
                    for r in ereg[ei]: eiss[r] = g
                    ei += 1; sl -= 2; continue
                if pi < len(Pq):
                    x = Pq[pi]; ins = Ins(x)
                    ok = x.startswith('v_cndmask') or all(eiss.get(r, 999) < g for r in ins.r & allE)
                    if ok:
                        val.setdefault(g, []).append(x); pi += 1; sl -= 1; continue
                break
        return val, (len(Eq) - ei) + (len(Pq) - pi)
    extra = 0
    while True:
        val, left = sched(extra)
        if left == 0: break
        extra += 1
    if os.environ.get('VERB'): print(uid, 'valu', total, 'avail', sum(cap[g] for g in range(last + 1)), 'extra', extra)
    if sm:
        pre.setdefault(ng - 1, []).extend([f's_cbranch_vccnz K2_S_{uid}', f'K2_R_{uid}:'])
        STUBS.extend([f'K2_S_{uid}:', f's_call_b64 {sr(sRet,2)}, K2_RARE_{psm}{sm}{qk or "n"}', f's_branch K2_R_{uid}'])
        RARES.add((psm, sm, qk or 'n'))
    return weave(mf, pre, val)
RARES = set()
DSP = int(os.environ.get('K2_DSP', 3))

def xlane(op, r, tmp):
    return [f'v_mov_b32 v{tmp}, v{r}', 's_nop 1', f'v_permlane32_swap_b32 v{r}, v{tmp}', f'{op} v{r}, v{r}, v{tmp}',
            f'v_mov_b32 v{tmp}, v{r}', 's_nop 1', f'v_permlane16_swap_b32 v{r}, v{tmp}', f'{op} v{r}, v{r}, v{tmp}']
def deltas(par, t, clamp):
    qs = (0, 1, 2, 3) if t == 'c' else (2, 3)
    ch = []
    for q in qs:
        regs = [Sr(par, i) + j for i in range(8) if tq(t, i) == q for j in range(4)]
        c = [f'v_max_f32 v{vDl+q}, v{regs[0]}, v{regs[1]}']
        for k in range(2, len(regs), 2): c.append(f'v_max3_f32 v{vDl+q}, v{vDl+q}, v{regs[k]}, v{regs[k+1]}')
        tmp = vDl + 4 + q
        for sw in ('32', '16'):
            c += [f'v_mov_b32 v{tmp}, v{vDl+q}', f'v_permlane{sw}_swap_b32 v{vDl+q}, v{tmp}', f'v_max_f32 v{vDl+q}, v{vDl+q}, v{tmp}']
        c.append(f'v_ceil_f32 v{vDl+q}, v{vDl+q}')
        if clamp: c.append(f'v_max_f32 v{vDl+q}, 0, v{vDl+q}')
        ch.append(c)
    L = []
    for k in range(len(ch[0])):
        if len(qs) == 2 and 'permlane' in ch[0][k]: L.append('s_nop 0')
        for c in ch: L.append(c[k])
    return L
def sub_tiles(par, t): return [f'v_sub_f32 v{Sr(par,i)+j}, v{Sr(par,i)+j}, v{vDl+tq(t,i)}' for i in range(8) for j in range(4)]

def rare(par, t, tn):
    L = [f'K2_RARE_{par}{t}{tn}:', 's_nop 7', 's_nop 7']
    nkt = 2 if t == 'c' else 4
    R = []
    mf = qk_mfmas(t, par, fr=lambda kt, db: vr(TMPV + 16 * (kt & 1) + 4 * db, 4))
    per = len(mf) // nkt
    for k0 in range(0, nkt, 2):
        R.append(f's_add_u32 s{sT+4}, s{sKc}, {k0*4096}'); R.append(f's_add_u32 s{sT+5}, s{sT+4}, 4096')
        for kt in range(2):
            for db in range(4):
                o = (2 * db + kt) * 1024
                R.append(f'buffer_load_dwordx4 {vr(TMPV+16*kt+4*db,4)}, v{vL16}, {sr(sWS,4)}, s{sT+4+(o>>12)} offen offset:{o&4095}{KVF}')
        R.append('s_waitcnt vmcnt(0)')
        R += mf[per*k0:per*(k0+2)] + ['s_nop 7']
    R += mask_call(par, t) + deltas(par, t, True)
    if t == 's': R += [f'v_mov_b32 v{vDl}, 0', f'v_mov_b32 v{vDl+1}, 0']
    R += sub_tiles(par, t)
    if tn != 'n': R += sub_tiles(par ^ 1, tn)
    for q in range(4):
        for j in range(4): R.append(f'v_sub_f32 v{NM+4*q+j}, v{NM+4*q+j}, v{vDl+q}')
        R.append(f'v_exp_f32 v{vDl+4+q}, -v{vDl+q}')
    R += exp_ops(par, t)
    for q in range(4): R.append(f'v_mul_f32 v{vl+q}, v{vl+q}, v{vDl+4+q}')
    R += [f's_branch K2_RESC_{t}']
    check_trace(R, f'rare{par}{t}{tn}', bool(os.environ.get('VERB')))
    return L + R

def rescale_o():
    R = []
    for q in range(4):
        if q in (0, 2): R.append('K2_RESC_c:' if q == 0 else 'K2_RESC_s:')
        for j0 in range(0, 32, 8):
            for j in range(8): R.append(f'v_accvgpr_read_b32 v{TMPV+j}, a{Or(q,0)+j0+j}')
            for j in range(8): R.append(f'v_mul_f32 v{TMPV+j}, v{TMPV+j}, v{vDl+4+q}')
            for j in range(8): R.append(f'v_accvgpr_write_b32 a{Or(q,0)+j0+j}, v{TMPV+j}')
    return R + ['s_nop 1', f's_setpc_b64 {sr(sRet,2)}']

K = 1024
XS = [[96*K, 104*K, 32*K, 40*K], [8*K, 24*K, 88*K, 120*K], [0, 16*K, 80*K, 112*K]]
WSL = [128*K, 64*K, 48*K]
vXd, vWd, vXr, vWr = 208, 212, 216, 222
QACC = 48
XF, WFq = 0, 64
def qacc(ft, tt): return QACC + 4 * (4 * ft + tt)
def xf(c, kbl, tt): return XF + 32 * (c & 1) + 16 * kbl + 4 * tt
def wf(c, kbl, ft): return WFq + 64 * (c & 1) + 32 * kbl + 4 * ft
sCk = 56
QROT = int(os.environ.get('K2_QROT', 0))
def q_dma(c):
    sl = c % 3
    it = []
    for ab, so in enumerate((sXa, sXb)):
        it.append([f's_add_u32 m0, s{sXs+sl}, {ab*4096} ; tag=C{c}', f's_add_u32 s{sT}, s{so}, s{sCk}'])
        for q in range(4): it.append([f'buffer_load_dwordx4 v{vXd+q}, {sr(sX,4)}, s{sT} offen offset:{q*1024} lds ; tag=C{c}'])
    it.append([f's_lshl_b32 s{sT}, s{sCk}, 12', f's_add_u32 m0, s{sW4}, {WSL[sl]} ; tag=C{c}', f's_add_u32 s{sT}, s{sT}, s{sWo}'])
    for q in range(4): it.append([f'buffer_load_dwordx4 v{vWd+q}, {sr(sWQ,4)}, s{sT} offen offset:{q*1024} lds ; tag=C{c}'])
    it[-1] += [f's_add_u32 s{sCk}, s{sCk}, 128', f's_and_b32 s{sCk}, s{sCk}, 1023']
    return it
def q_reads(c):
    sl = c % 3
    L = [f'ds_read_b128 {ar(xf(c,kbl,tt),4)}, v{vXr+2*sl+kbl} offset:{tt*2048}' for tt in range(4) for kbl in range(2)]
    W = []
    for ft in range(8):
        for kbl in range(2):
            for p in range(2):
                vb, off = wsl_addr(sl)
                W.append(f'ds_read_b64_tr_b16 {ar(wf(c,kbl,ft)+2*p,2)}, v{vWr+ft+8*vb} offset:{off + (32 * kbl + 4 * p) * 256}')
    return W[:4] + L + W[4:]
def wsl_addr(sl):
    a = WSL[sl]
    return (0, a - WB0) if a < WB1 else (1, a - WB1)
WB0, WB1 = 48 * K, 128 * K
def q_cvt(db):
    cv = []
    for tt in range(4):
        t0, t1 = qacc(2 * db, tt), qacc(2 * db + 1, tt); dst = Qr(tt, db)
        cv += [f'v_cvt_pk_bf16_f32 v{dst}, v{t0}, v{t0+1}', f'v_cvt_pk_bf16_f32 v{dst+1}, v{t0+2}, v{t0+3}', f'v_cvt_pk_bf16_f32 v{dst+2}, v{t1}, v{t1+1}', f'v_cvt_pk_bf16_f32 v{dst+3}, v{t1+2}, v{t1+3}']
    return cv
def q_setup():
    t = [240, 241, 242, 243, 244]
    L = []
    a = L.append
    a(f's_lshl_b32 s{sXa}, s{sI}, 17'); a(f's_lshl_b32 s{sT}, s{sW}, 15'); a(f's_sub_u32 s{sXb}, {15*128*1024}, s{sXa}')
    a(f's_add_u32 s{sXa}, s{sXa}, s{sT}'); a(f's_add_u32 s{sXb}, s{sXb}, s{sT}')
    a(f's_lshl_b32 s{sWo}, s{sH}, 8'); a(f's_lshl_b32 s{sT}, s{sW}, 17'); a(f's_add_u32 s{sWo}, s{sWo}, s{sT}')
    a(f's_mov_b32 s{sCk}, {128 if Q0PF else 0}')
    for sl in range(3):
        a(f's_mov_b32 s{sXs+sl}, {XS[sl][0]}')
        for w in range(1, 4):
            a(f's_cmp_eq_u32 s{sW}, {w}'); a(f's_cselect_b32 s{sXs+sl}, {XS[sl][w]}, s{sXs+sl}')
    a(f'v_lshrrev_b32 v{t[0]}, 3, v0'); a(f'v_lshlrev_b32 v{t[1]}, 10, v{t[0]}')
    a(f'v_lshrrev_b32 v{t[2]}, 4, v0'); a(f'v_and_b32 v{t[3]}, 7, v0'); a(f'v_xor_b32 v{t[2]}, v{t[2]}, v{t[3]}')
    for q in range(4):
        a(f'v_xor_b32 v{t[4]}, {4*(q&1)}, v{t[2]}'); a(f'v_lshl_add_u32 v{t[4]}, v{t[4]}, 4, v{t[1]}'); a(f'v_add_u32 v{vXd+q}, {q*7168}, v{t[4]}')
    a(f'v_lshrrev_b32 v{t[0]}, 4, v0'); a(f'v_lshlrev_b32 v{t[1]}, 13, v{t[0]}'); a(f'v_lshlrev_b32 v{t[0]}, 1, v{t[0]}')
    a(f'v_and_b32 v{t[2]}, 15, v0'); a(f'v_xor_b32 v{t[2]}, v{t[2]}, v{t[0]}')
    for q in range(4):
        a(f'v_xor_b32 v{t[4]}, {8*(q>>1)}, v{t[2]}'); a(f'v_lshl_add_u32 v{t[4]}, v{t[4]}, 4, v{t[1]}'); a(f'v_add_u32 v{vWd+q}, {q*(4*8192-1024)}, v{t[4]}')
    return L
def q_setup2():
    t = [240, 241, 242, 243, 244]
    L = []; a = L.append
    a(f'v_and_b32 v{t[0]}, 15, v0'); a(f'v_lshrrev_b32 v{t[1]}, 4, v0'); a(f'v_bfe_u32 v{t[2]}, v0, 1, 3'); a(f'v_lshlrev_b32 v{t[0]}, 7, v{t[0]}')
    for kbl in range(2):
        a(f'v_add_u32 v{t[4]}, {4*kbl}, v{t[1]}'); a(f'v_xor_b32 v{t[4]}, v{t[4]}, v{t[2]}'); a(f'v_lshl_add_u32 v{t[4]}, v{t[4]}, 4, v{t[0]}')
        for sl in range(3): a(f'v_add_u32 v{vXr+2*sl+kbl}, s{sXs+sl}, v{t[4]}')
    a(f'v_bfe_u32 v{t[0]}, v0, 2, 2'); a(f'v_lshl_add_u32 v{t[1]}, v{t[1]}, 3, v{t[0]}'); a(f'v_lshlrev_b32 v{t[1]}, 8, v{t[1]}')
    a(f'v_and_b32 v{t[2]}, 3, v0'); a(f'v_lshl_add_u32 v{t[1]}, v{t[2]}, 3, v{t[1]}'); a(f'v_bfe_u32 v{t[2]}, v0, 2, 3')
    for ft in range(8):
        a(f'v_xor_b32 v{t[3]}, {ft}, v{t[2]}'); a(f'v_lshl_add_u32 v{t[3]}, v{t[3]}, 5, v{t[1]}')
        a(f'v_add_u32 v{vWr+ft}, {WB0}, v{t[3]}'); a(f'v_add_u32 v{vWr+8+ft}, {WB1}, v{t[3]}')
    return L

def remap_i(dst, t0, t1):
    L = [f's_lshr_b32 s{dst}, s2, 5']
    if FUSE and os.environ.get('K2_REMAP', '0') == '1':
        L += [f's_bfe_u32 s{t0}, s2, 0x20001', f's_mov_b32 s{t1}, 0x76543210', f's_cmp_eq_u32 s{t0}, 1', f's_cselect_b32 s{t1}, 0x76503214, s{t1}',
              f's_cmp_eq_u32 s{t0}, 3', f's_cselect_b32 s{t1}, 0x01765423, s{t1}', f's_lshl_b32 s{dst}, s{dst}, 2', f's_lshr_b32 s{dst}, s{t1}, s{dst}', f's_and_b32 s{dst}, s{dst}, 7']
    return L
def q0_early(sw, srdx, srdw):
    a_, b_, c_, d_ = 90, 91, 92, 93
    t0, t1, t2 = 14, 15, 26
    G = [[f's_mov_b32 s{srdx+2}, 0x200000', f's_mov_b32 s{srdw+2}, 0x400000'], [f's_lshr_b32 s{a_}, s2, 5', f's_lshl_b32 s{a_}, s{a_}, 17'],
         [f's_lshl_b32 s{b_}, s{sw}, 15', f's_sub_u32 s{c_}, {15*128*1024}, s{a_}'], [f's_add_u32 s{a_}, s{a_}, s{b_}', f's_add_u32 s{c_}, s{c_}, s{b_}'], [f's_mov_b32 s{d_}, {XS[0][0]}']]
    for w in range(1, 4): G.append([f's_cmp_eq_u32 s{sw}, {w}', f's_cselect_b32 s{d_}, {XS[0][w]}, s{d_}'])
    for ab, so in enumerate((a_, c_)):
        G.append([f's_add_u32 m0, s{d_}, {ab*4096} ; tag=Q0', 's_nop 0'])
        G += [[f'buffer_load_dwordx4 v{6+q}, {sr(srdx,4)}, s{so} offen offset:{q*1024} lds ; tag=Q0'] for q in range(4)]
    G += [[f's_and_b32 s{a_}, s2, 31', f's_lshl_b32 s{a_}, s{a_}, 8'], [f's_lshl_b32 s{b_}, s{sw}, 17', f's_add_u32 s{a_}, s{a_}, s{b_}'], [f's_lshl_b32 s{b_}, s{sw}, 12', f's_add_u32 m0, s{b_}, {WSL[0]} ; tag=Q0'],
          [f'v_lshrrev_b32 v{t0}, 4, v0', f'v_lshlrev_b32 v{t1}, 13, v{t0}'], [f'v_lshlrev_b32 v{t0}, 1, v{t0}', f'v_and_b32 v{t2}, 15, v0'], [f'v_xor_b32 v{t2}, v{t2}, v{t0}']]
    for q in range(4):
        G += [[f'v_xor_b32 v{2+q}, {8*(q>>1)}, v{t2}', f'v_lshl_add_u32 v{2+q}, v{2+q}, 4, v{t1}'], [f'v_add_u32 v{2+q}, {q*(4*8192-1024)}, v{2+q}'],
              [f'buffer_load_dwordx4 v{2+q}, {sr(srdw,4)}, s{a_} offen offset:{q*1024} lds ; tag=Q0']]
    return G

def a_loads(which):
    if which == 0:
        return [[f's_mov_b32 s{sSW}, 65536']] + dma_part('K', 'c', 'K0') + [[f's_mov_b32 s{sSW}, 98304']] + dma_part('K', 'c', 'K0') + \
               [[f's_mov_b32 s{sSW}, 0']] + dma_part('V', 'c', 'U0') + dma_part('K', 'c', 'U0')
    return [[f's_mov_b32 s{sSW}, 32768']] + dma_part('V', 'c', 'U1') + dma_part('K', 'c', 'U1') + [[f's_mov_b32 s{sSW}, 65536'], [f's_mov_b32 s{sSR}, 32768']]

def wo_dma_a():
    t = [240, 241, 242, 243]
    it = [[f'v_lshrrev_b32 v{t[0]}, 5, v0', f'v_bfe_u32 v{t[1]}, v0, 1, 4', f'v_xor_b32 v{t[1]}, v{t[1]}, v{t[0]}', f'v_and_b32 v{t[2]}, 1, v0', f'v_lshlrev_b32 v{t[2]}, 4, v{t[2]}',
           f'v_lshl_add_u32 v{t[2]}, v{t[0]}, 10, v{t[2]}'],
          [f's_lshr_b32 s{sT+4}, s2, 1', f's_lshl_b32 s{sT+4}, s{sT+4}, 15', f's_and_b32 s{sT+5}, s2, 1', f's_lshl_b32 s{sT+5}, s{sT+5}, 9'],
          [f's_add_u32 s{sT+4}, s{sT+4}, s{sT+5}', f's_lshl_b32 s{sT+5}, s{sW}, 13', f's_add_u32 s{sT+4}, s{sT+4}, s{sT+5}']]
    for q in range(4):
        it.append([f'v_xor_b32 v{t[3]}, {2*q}, v{t[1]}', f'v_lshl_add_u32 v{t[3]}, v{t[3]}, 5, v{t[2]}', f's_add_u32 m0, s{sW4}, {128*K} ; tag=WO', f's_add_u32 s{sT+5}, s{sT+4}, {q*1024}',
                   f'buffer_load_dwordx4 v{t[3]}, {sr(sWO,4)}, s{sT+5} offen offset:{q*1024} lds ; tag=WO'])
    return it
def wo_dma_b():
    t = [240, 241]
    return [f'v_lshrrev_b32 v{t[0]}, 2, v0', f'v_lshlrev_b32 v{t[0]}, 10, v{t[0]}', f'v_and_b32 v{t[1]}, 3, v0', f'v_lshl_add_u32 v{t[0]}, v{t[1]}, 4, v{t[0]}',
            f's_lshr_b32 s{sT+4}, s2, 4', f's_lshl_b32 s{sT+4}, s{sT+4}, 15', f's_and_b32 s{sT+5}, s2, 15', f's_lshl_b32 s{sT+5}, s{sT+5}, 6', f's_add_u32 s{sT+4}, s{sT+4}, s{sT+5}',
            f's_and_b32 s{sT+5}, s{sW}, 1', f's_lshl_b32 s{sT+6}, s{sT+5}, 14', f's_add_u32 s{sT+4}, s{sT+4}, s{sT+6}', f's_lshl_b32 s{sT+5}, s{sT+5}, 10',
            f's_add_u32 m0, s{sT+5}, {144*K} ; tag=WO', 's_nop 0', f'buffer_load_dwordx4 v{t[0]}, {sr(sWB,4)}, s{sT+4} offen lds ; tag=WO']
def wo_fin():
    R = TMPV; a0, a1, a2 = TMPV + 20, TMPV + 21, TMPV + 22; t0, t1 = sT + 4, sT + 5
    L = [f'v_lshrrev_b32 v{a0}, 2, v0', f'v_and_b32 v{a1}, 3, v0', f'v_lshlrev_b32 v{a1}, 3, v{a1}', f'v_lshl_add_u32 v{a2}, v{a0}, 6, v{a1}', f'v_lshl_add_u32 v{a1}, v{a0}, 9, v{a1}',
         f'v_add_u32 v{a1}, {128*K}, v{a1}', f'v_and_b32 v{a0}, 7, v{a0}', f's_lshl_b32 s{t0}, s{sW}, 2', f'v_xor_b32 v{a0}, s{t0}, v{a0}',
         f's_and_b32 s{t0}, s{sW}, 1', f's_lshl_b32 s{t0}, s{t0}, 5', f's_add_u32 s{t0}, s{t0}, {144*K}', f'v_add_u32 v{a2}, s{t0}, v{a2}']
    for x in range(4):
        L += [f'v_xor_b32 v{a0+4+x}, {x}, v{a0}', f'v_lshl_add_u32 v{a0+4+x}, v{a0+4+x}, 5, v{a1}']
        for p in range(2): L.append(f'ds_read_b64_tr_b16 {vr(R+4*x+2*p,2)}, v{a0+4+x} offset:{p*8192}')
    for p in range(2): L.append(f'ds_read_b64_tr_b16 {vr(R+16+2*p,2)}, v{a2} offset:{p*1024}')
    L += [f's_and_b32 s{t0}, s2, 1', f's_lshl_b32 s{t0}, s{t0}, 2', f's_add_u32 s{t0}, s{t0}, s{sW}', f's_mul_i32 s{t0}, s{t0}, {TS}', f's_lshr_b32 s{t1}, s2, 1', f's_lshl_b32 s{t1}, s{t1}, 12',
          f's_add_u32 s{t0}, s{t0}, s{t1}', f's_add_u32 s{t0}, s{t0}, {WOA}']
    for x in range(4): L += [f'buffer_store_dwordx4 {vr(R+4*x,4)}, v{vL16}, {sr(sWS,4)}, s{t0} offen offset:{x*1024}{SF}']
    L += [f's_bfe_u32 s{t0}, s2, 0x30001', f's_mul_i32 s{t0}, s{t0}, {TS}', f's_and_b32 s{t1}, s2, 1', f's_lshl_b32 s{t1}, s{t1}, 11', f's_add_u32 s{t0}, s{t0}, s{t1}',
          f's_and_b32 s{t1}, s{sW}, 1', f's_lshl_b32 s{t1}, s{t1}, 10', f's_add_u32 s{t0}, s{t0}, s{t1}',
          f's_lshr_b32 s{t1}, s2, 4', f's_lshl_b32 s{t1}, s{t1}, 12', f's_add_u32 s{t0}, s{t0}, s{t1}', f's_add_u32 s{t0}, s{t0}, {WOA + 128*4096}',
          f'buffer_store_dwordx4 {vr(R+16,4)}, v{vL16}, {sr(sWS,4)}, s{t0} offen{SF}', 's_nop 0']
    return L

def qproj():
    QPF = int(os.environ.get('K2_QPF', 0))
    pf = [[f'v_lshlrev_b32 v245, 10, v0', f's_lshr_b32 s{sT+4}, s2, 3', f's_lshl_b32 s{sT+4}, s{sT+4}, 16'], [f's_lshl_b32 s{sT+5}, s{sW}, 7', f's_add_u32 s{sT+4}, s{sT+4}, s{sT+5}'],
          [f'buffer_load_dword v246, v245, {sr(sX,4)}, s{sT+4} offen offset:512 ; nodep'],
          [f'v_lshrrev_b32 v245, 1, v0', f'v_lshlrev_b32 v245, 13, v245', f'v_and_b32 v244, 1, v0', f'v_lshl_add_u32 v245, v244, 7, v245'],
          [f's_lshl_b32 s{sT+4}, s{sI}, 18', f's_lshl_b32 s{sT+5}, s{sH}, 8', f's_add_u32 s{sT+4}, s{sT+4}, s{sT+5}'], [f's_add_u32 s{sT+4}, s{sT+4}, {256*8192}'],
          [f'buffer_load_dword v246, v245, {sr(sWQ,4)}, s{sT+4} offen ; nodep']] if QPF else []
    zf = []
    if FUSE3:
        FW_, FC_, FB_ = FLG, FLG + 4096, FLG + 8192
        zf = [f's_lshl_b32 s{sT+4}, s{sI}, 7', f's_lshl_b32 s{sT+5}, s{sH}, 2', f's_add_u32 s{sT+5}, s{sT+5}, {FC_}', f's_add_u32 s{sFa}, s{sT+5}, s{sT+4}', f's_sub_u32 s{sT+5}, s{sT+5}, s{sT+4}', f's_add_u32 s{sT+5}, s{sT+5}, {15*128}',
              f's_lshl_b32 s{sT+4}, s2, 2', f's_add_u32 s{sFw}, s{sT+4}, {FW_}', f's_add_u32 s{sT+4}, s{sT+4}, {FB_}',
              f'v_mov_b32 v245, s{sFa}', f'v_writelane_b32 v245, s{sT+5}, 1', f'v_writelane_b32 v245, s{sFw}, 2', f'v_writelane_b32 v245, s{sT+4}, 3', 'v_mov_b32 v246, 0', f's_mov_b32 s{sSig}, 0',
              's_mov_b64 exec, 15', f'buffer_store_dword v246, v245, {sr(sWS,4)}, 0 offen sc1', 's_mov_b64 exec, -1']
    L = q_setup() + zf + (['s_barrier'] if FUSE and not Q0PF else []) + (q_setup2() + ['s_barrier'] + q_reads(0) + flat(q_dma(1)) if Q0PF else flat(q_dma(0)) + flat(q_dma(1)) + q_setup2())
    L += [f's_lshl_b32 s{sT+4}, s{sH}, 19', f's_add_u32 s{sK}, s{sT+4}, {KWS}', f's_add_u32 s{sV}, s{sT+4}, {VWS}', f's_mov_b32 s{sKc}, s{sK}', f's_add_u32 s{sK}, s{sK}, s{sW2}', f's_add_u32 s{sV}, s{sV}, s{sW2}',
          f's_add_u32 s{sK2}, s{sWS}, s{sK}', f's_addc_u32 s{sK2+1}, s{sWS+1}, 0', f's_add_u32 s{sV2}, s{sWS}, s{sV}', f's_addc_u32 s{sV2+1}, s{sWS+1}, 0']
    if not Q0PF: L += [';VMNEED C0', 's_barrier'] + q_reads(0)
    sig = []
    if FUSE:
        sig = [f's_cmp_lg_u32 s{sW}, 0', 's_cbranch_scc1 K2_NOSIG', 'v_mov_b32 v245, 1', 'v_mov_b32 v246, s94', 's_mov_b64 exec, 1',
              f'SKIP buffer_atomic_add v245, v246, {sr(sDB,4)}, 0 offen sc1', 's_mov_b64 exec, -1', 'K2_NOSIG:',
              f's_lshl_b32 s{sT+4}, s{sH}, 1', 'v_and_b32 v246, 1, v0', f'v_add_u32 v246, s{sT+4}, v246', 'v_mul_u32_u24 v246, 205, v246', 'v_lshrrev_b32 v246, 10, v246',
              'v_bfe_u32 v245, v0, 1, 1', 'v_mul_u32_u24 v245, 13, v245', 'v_add_lshl_u32 v246, v246, v245, 2', 'v_add_u32 v246, 128, v246']
    if not Q0PF: L += sig
    L += stamp()
    for c in range(8):
        mf = []; pre = {}
        def P(g, x): pre.setdefault(g, []).extend(x if isinstance(x, list) else [x])
        val = {}
        for ft in range(8):
            for tt in range(4):
                for kbl in range(2):
                    a = qacc(ft, tt)
                    cc = '0' if (c == 0 and kbl == 0) else vr(a, 4)
                    mf.append(f'{MF} {vr(a,4)}, {ar(wf(c,kbl,ft),4)}, {ar(xf(c,kbl,tt),4)}, {cc}')
        for g0 in range(0, 64, 16):
            f0 = g0 // 8
            P(g0 - 1 if g0 else (0, 'before'), f';NEED {ar(wf(c,0,f0),8)} {ar(wf(c,1,f0),8)}' + (f' {ar(xf(c,0,0),32)}' if g0 == 0 else ''))
        if c == 0:
            g = 0
            for it in q_dma(2):
                if g % 16 == 15: g += 1
                P(g, it); g += 1
            gb = 26
        else:
            gb = 0
        if 1 <= c <= 5: ex = ([[f's_cmp_lg_u32 s{sW}, 0', 's_cbranch_scc1 K2_NOPOLL', 'POLLL:', 'K2_NOPOLL:']] if FUSE and c == 5 else []) + q_dma(c + 2)
        elif c == 6:
            ex = a_loads(0)
            if FUSE:
                P((0, 'before'), [f's_cmp_lg_u32 s{sW}, 0', 's_cbranch_scc1 K2_POLLED', 'POLLW:', 'v_cmp_gt_u32 vcc, 8, v247', 's_cbranch_vccnz K2_SLOWP', 'K2_POLLED:'])
                STUBS.extend(['K2_SLOWP:', f's_mov_b32 s{sT+4}, 0x80000', 'K2_SP1:', f'buffer_load_dword v247, v246, {sr(sDB,4)}, 0 offen sc1', 's_waitcnt vmcnt(0)',
                              'v_cmp_gt_u32 vcc, 8, v247', 's_cbranch_vccz K2_POLLED', 's_sleep 16', f's_sub_u32 s{sT+4}, s{sT+4}, 1', f's_cmp_lg_u32 s{sT+4}, 0', 's_cbranch_scc1 K2_SP1', 's_branch K2_POLLED'])
        elif c == 7: ex = a_loads(1) + wo_dma_a() + [wo_dma_b()]
        else: ex = []
        if c < 7:
            P(gb, [f';VMNEED C{c+1}', 's_barrier'] + (sig if Q0PF and c == 0 else []))
            rds = q_reads(c + 1)
            seq = []; nr, ne = len(rds), len(ex)
            ri = ei = 0
            QB = int(os.environ.get('K2_QB', 1))
            while ri < nr or ei < ne:
                if ei < ne and (ri >= nr or QB == 1 or (QB == 2 and ri >= ei) or ei * nr <= ri * ne): seq.append(ex[ei]); ei += 1
                else: seq.append(rds[ri]); ri += 1
            g0 = gb + 1
            for k, x in enumerate(seq): P(g0 + k * (63 - g0) // len(seq), x)
        else:
            P(0, 's_barrier')
            for db in range(3):
                cv = q_cvt(db)
                for k in range(8): val[16 * db + 20 + k + (k > 3) * 0] = cv[2*k:2*k+2]
            P(60, [';VMNEED U0', 's_barrier', f'v_add_u32 v{vRd}, 65536, v{vL16}', f'v_add_u32 v{vRd+1}, 98304, v{vL16}'])
            for k, it in enumerate(ex): P(1 + k * 58 // len(ex), it)
        L += weave(mf, pre, val)
    return L

def a_prologue():
    L = []
    fr = qk_frags('c')
    L += [rd(g - 2, off, 0) for g, fu, off in fr] + [rd(g, off, 1) for g, fu, off in fr]
    L += [f'v_mov_b32 v{TMPB+j}, 0' for j in range(4)]
    L += [f'v_mov_b32 v{vd}, v{vq}'] + [f'v_cmp_gt_i32 {sr(sMk+2*j,2)}, {j}, v{vd}' for j in range(4)]
    L += q_cvt(3)
    zm = [f'v_mfma_f32_32x32x16_bf16 {ar(16*k,16)}, {vr(TMPB,4)}, {vr(TMPB,4)}, 0' for k in range(8)]
    L += ['s_nop 0'] + qk_mfmas('c', 0, czero=True, fr=lambda kt, db: ar(slot(32 + 16 * kt + 4 * db), 4)) + zm
    L += [f's_cmp_eq_u32 s{sI}, 0', f's_cselect_b32 s{sMq}, 0, -4096'] + mask_call(0, 'c') + deltas(0, 'c', False)
    for q in range(4):
        for j in range(4): L.append(f'v_sub_f32 v{NM+4*q+j}, 0, v{vDl+q}')
    V = [f'v_mov_b32 v{vl+q}, 0' for q in range(4)] + sub_tiles(0, 'c') + exp_ops(0, 'c')
    mf2 = qk_mfmas('c', 1)
    L += [f'v_mov_b32 v{vRd}, v{vL16}', ';LGKM0'] + ([';VMNEED WO'] if FUSE3 else []) + ['s_barrier'] + (wo_fin() if FUSE3 else [])
    rds = [rd(g, off, 0) for g, fu, off in pv_frags('c') if g < D]
    n = len(mf2)
    for k, m in enumerate(mf2):
        L.append(m)
        if k >= n - 2 * len(rds) and (n - k) % 2 == 0: L.append(rds[len(rds) - (n - k) // 2])
        L += V[len(V)*k//n:len(V)*(k+1)//n]
    return L

def fin_rows(which):
    t0, t1 = sT + 4, sT + 5
    q0 = 0 if which == 'a' else 2
    L = [f's_lshl_b32 s{t0}, s{sH}, 14', f's_add_u32 s{t0}, s{t0}, {CTX}', f's_and_b32 s{t1}, s{sW}, 1', f's_lshl_b32 s{t1}, s{t1}, 11', f's_add_u32 s{t0}, s{t0}, s{t1}', f's_lshr_b32 s{t1}, s{sW}, 1', f's_mul_i32 s{t1}, s{t1}, {TS}', f's_add_u32 s{t0}, s{t0}, s{t1}', f's_mul_i32 s{t1}, s{sI}, {2*TS}']
    L += [f's_add_u32 s{t0}, s{t0}, s{t1}'] if which == 'a' else [f's_sub_u32 s{t0}, s{t0}, s{t1}', f's_add_u32 s{t0}, s{t0}, {30*TS}']
    L += [f's_add_u32 s{t0+k}, s{t0}, {4096*k}' for k in range(1, 4)]
    for q in (q0, q0 + 1):
        L += xlane('v_add_f32', vl + q, vT) + [f'v_rcp_f32 v{vl+q}, v{vl+q}']
    for q in (q0, q0 + 1):
        for h in range(2):
            r = TMPV + 16 * h; p = TMPB + 8 * h
            for j in range(16): L.append(f'v_accvgpr_read_b32 v{r+j}, a{Or(q,4*h)+j}')
            for j in range(16): L.append(f'v_mul_f32 v{r+j}, v{r+j}, v{vl+q}')
            for j in range(8): L.append(f'v_cvt_pk_bf16_f32 v{p+j}, v{r+2*j}, v{r+2*j+1}')
            for x in range(2): L.append(f'buffer_store_dwordx4 {vr(p+4*x,4)}, v{vL16}, {sr(sWS,4)}, s{t0+2*h+x} offen offset:{(q&1)*1024}{SF}')
    return L

def last_pv():
    par = 1
    mf = pv_mfmas('s', par)
    frs = pv_frags('s')
    t0, t1 = sT + 4, sT + 5
    head = lupd('s') + [f's_lshl_b32 s{t0}, s{sH}, 14', f's_add_u32 s{t0}, s{t0}, {CTX}', f's_and_b32 s{t1}, s{sW}, 1', f's_lshl_b32 s{t1}, s{t1}, 11', f's_add_u32 s{t0}, s{t0}, s{t1}', f's_lshr_b32 s{t1}, s{sW}, 1', f's_mul_i32 s{t1}, s{t1}, {TS}', f's_add_u32 s{t0}, s{t0}, s{t1}', f's_mul_i32 s{t1}, s{sI}, {2*TS}'] + [f's_sub_u32 s{t0}, s{t0}, s{t1}', f's_add_u32 s{t0}, s{t0}, {30*TS}'] + [f's_add_u32 s{t0+k}, s{t0}, {4096*k}' for k in range(1, 4)]
    for sw in ('32', '16'):
        head += [f'v_mov_b32 v{vT}, v{vl+2}', f'v_mov_b32 v{vT+1}, v{vl+3}', 's_nop 0', f'v_permlane{sw}_swap_b32 v{vl+2}, v{vT}', f'v_permlane{sw}_swap_b32 v{vl+3}, v{vT+1}',
                 f'v_add_f32 v{vl+2}, v{vl+2}, v{vT}', f'v_add_f32 v{vl+3}, v{vl+3}, v{vT+1}']
    head += [f'v_rcp_f32 v{vl+2}, v{vl+2}', f'v_rcp_f32 v{vl+3}, v{vl+3}']
    def fin_db(db):
        X = []
        for q in (2, 3):
            r = TMPV + 8 * (q - 2) + 16 * (db & 1); p = TMPB + 4 * (q - 2) + 8 * (db & 1)
            X += [f'v_accvgpr_read_b32 v{r+j}, a{Or(q,2*db)+j}' for j in range(8)]
            X += [f'v_mul_f32 v{r+j}, v{r+j}, v{vl+q}' for j in range(8)]
            X += [f'v_cvt_pk_bf16_f32 v{p+j}, v{r+2*j}, v{r+2*j+1}' for j in range(4)]
            X += [f'buffer_store_dwordx4 {vr(p,4)}, v{vL16}, {sr(sWS,4)}, s{t0+db} offen offset:{(q&1)*1024}{SF}']
        return X
    L = []
    fill = head + ['#1'] + fin_db(0) + ['#2'] + fin_db(1) + ['#3'] + fin_db(2)
    fi = 0
    for g, m in enumerate(mf):
        if g % 8 == 0: L.append(';NEED ' + ' '.join(ar(slot(gg), 4) for gg, fu, off in frs if g <= fu < g + 8))
        L.append(m)
        for gg, fu, off in frs:
            if gg - D == g: L.append(rd(gg, off, par))
        n = 0
        while fi < len(fill) and n < 5:
            x = fill[fi]
            if x.startswith('#'):
                if g < 8 * int(x[1]) + 2: break
                fi += 1; continue
            L.append(x); fi += 1; n += 1
    L += [x for x in fill[fi:] if not x.startswith('#')] + ['s_nop 3'] + fin_db(3)
    return L

def hook(bit, saddr, uid):
    if not FUSE3: return []
    STUBS.extend([f'K2_H{uid}:', f's_bitset1_b32 s{sSig}, {bit}', f's_cmp_lg_u32 s{sW}, 0', f's_cbranch_scc1 K2_HR{uid}', f'v_mov_b32 v{vT}, 1', f'v_mov_b32 v{vT+1}, 0', 's_mov_b64 exec, 1',
                  f'buffer_store_dword v{vT}, v{vT+1}, {sr(sWS,4)}, s{saddr} offen sc1', 's_mov_b64 exec, -1', 's_nop 3', f's_branch K2_HR{uid}'])
    return [f's_bitcmp0_b32 s{sSig}, {bit}', f's_cbranch_scc1 K2_H{uid}', f'K2_HR{uid}:']

def gen_k2():
    if FUSE3: import tail as TAILM
    name = 'k2_kernel'
    L = []; a = L.append
    if not FUSE:
        a(f'.p2align 8\n.type {name},@function\n{name}:')
        a('s_cmp_ge_u32 s2, 256'); a('s_cbranch_scc1 K2_END')
        if os.environ.get('CPF', '1') == '1': L += code_prefetch('k2_kernel', 'k3_kernel', 'K2', 246, 247, 90, 8)
        a('s_load_dwordx2 s[4:5], s[0:1], 88'); a('s_load_dwordx2 s[6:7], s[0:1], 0'); a('s_load_dwordx2 s[56:57], s[0:1], 16'); a('s_load_dwordx2 s[68:69], s[0:1], 40'); a('s_load_dwordx2 s[76:77], s[0:1], 64')
        a('v_lshrrev_b32 v1, 6, v0'); a('v_and_b32 v0, 63, v0'); a(f'v_readfirstlane_b32 s{sW}, v1')
    else:
        for srd, p, n in ((sWO, 14, 0x400000), (sWB, 20, 0x80000), (sDB, 24, 256), (sWQ, 8, 0x400000), (sX, 4, 0x200000), (sWS, 26, 0x10000000)):
            a(f's_mov_b32 s{srd}, s{p}'); a(f's_mov_b32 s{srd+1}, s{p+1}'); a(f's_mov_b32 s{srd+2}, {hex(n)}'); a(f's_mov_b32 s{srd+3}, 0x20000')
        a(f's_mov_b64 s[96:97], s[22:23]')
        a(f's_mov_b32 s{sW}, s40')
        L += gstamp(6, sDB, 2, 3)
    a(f'v_lshlrev_b32 v{vL16}, 4, v0')
    if os.environ.get('K2_MAP') == '8x4':
        a(f's_bfe_u32 s{sH}, s2, 0x20001'); a(f's_lshl_b32 s{sH}, s{sH}, 3'); a(f's_bfe_u32 s{sT}, s2, 0x30003'); a(f's_add_u32 s{sH}, s{sH}, s{sT}')
        a(f's_lshr_b32 s{sI}, s2, 6'); a(f's_lshl_b32 s{sI}, s{sI}, 1'); a(f's_and_b32 s{sT}, s2, 1'); a(f's_add_u32 s{sI}, s{sI}, s{sT}')
    else:
        a(f's_and_b32 s{sH}, s2, 31'); L += remap_i(sI, sT, sT + 1)
    a(f's_lshl_b32 s{sW2}, s{sW}, 11'); a(f's_lshl_b32 s{sW4}, s{sW}, 12'); a(f's_add_u32 s{sW2K}, s{sW2}, 16384'); a(f's_add_u32 s{sW4K}, s{sW4}, 16384')
    a(f'v_mov_b32 v{vBig}, {f32(NEGBIG)}')
    a(f'v_and_b32 v{vq}, 15, v0'); a(f'v_lshrrev_b32 v{vT}, 4, v0'); a(f'v_lshlrev_b32 v{vT}, 2, v{vT}'); a(f'v_sub_u32 v{vq}, v{vq}, v{vT}')
    a('s_waitcnt lgkmcnt(0)')
    for srd, p, n in () if FUSE else ((sWS, 4, 0x10000000), (sX, 6, 0x200000), (sWQ, 56, 0x400000), (sWO, 68, 0x400000), (sWB, 76, 0x80000)):
        a(f's_mov_b32 s{srd}, s{p}'); a(f's_mov_b32 s{srd+1}, s{p+1}'); a(f's_mov_b32 s{srd+2}, {hex(n)}'); a(f's_mov_b32 s{srd+3}, 0x20000')
    if DIAG: a('s_mov_b32 s72, 0'); a(f'v_mov_b32 v{vDG}, 0'); a(f'v_mov_b32 v{vDG+2}, 0'); L += stamp()
    raw0 = qproj() + stamp() + gstamp(7, sDB, 16, 17) + gstamp(8, sDB, 16, 17, neg=True) + a_prologue() + stamp()
    skip = [x for x in raw0 if x.startswith('SKIP ')]
    pre = auto_waits([], [x if not x.startswith('SKIP ') else '.L_skip0:' for x in raw0])
    sub = {'.L_skip0:': skip[0][5:] if skip else None, 'POLLL:': f'buffer_load_dword v247, v246, {sr(sDB,4)}, 0 offen sc1', 'POLLW:': 's_waitcnt vmcnt(12)'}
    L += [sub.get(x, x) for x in pre]
    def two(uid, b0, b1): return body(0, *b0, uid + 'a') + body(1, *b1, uid + 'b')
    raw = {
     'CC': two('CC', ('c','c','c','c','c','c',None), ('c','c','c','c','c','c',None)),
     'X1': two('X1', ('c','c','c','c','c','c',None), ('c','c','c','c','c','c',0)),
     'X2': two('X2', ('c','c','c','c','c','s',1), ('c','c','c','c','c','s',2)),
     'X3': two('X3', ('c','c','s','c','s','s',3), ('c','s','s','s','s','s',None)) + ([] if FUSE3 else wo_fin()) + fin_rows('a'),
     'X3b': two('X3b', ('c','c','s','c','s',None,3), ('c','s','s','s','s',None,0)) + ([] if FUSE3 else wo_fin()) + fin_rows('a'),
     'SS': two('SS', ('s','s','s','s','s','s',None), ('s','s','s','s','s','s',None)),
     'X4': two('X4', ('s','s','s','s','s',None,None), ('s','s','s','s','s',None,0)),
     'TL': (TAILM.pre_polls() if FUSE3 else []) + body(0, 's','s',None,'s',None,None,2, 'TLa') + last_pv(),
    }
    preds = {'CC': ['pre', 'CC'], 'X1': ['CC'], 'X2': ['X1', 'pre'], 'X3': ['X2'], 'X3b': ['X2'], 'SS': ['X3', 'SS'], 'X4': ['SS'], 'TL': ['X4', 'X3b']}
    fin = {'pre': pre}
    for it in range(3):
        for k in raw:
            fin[k] = merge_min([auto_waits(fin[p], raw[k]) for p in preds[k] if p in fin])
    a(f's_cmp_eq_u32 s{sI}, 0'); a('s_cbranch_scc1 K2_X2')
    a(f's_lshl_b32 s{sCnt}, s{sI}, 1'); a(f's_sub_u32 s{sCnt}, s{sCnt}, 1')
    a('.p2align 6\nK2_CC:'); L += fin['CC'] + hook(0, sFw, 'a') + [f's_sub_u32 s{sCnt}, s{sCnt}, 1', f's_cmp_lg_u32 s{sCnt}, 0', 's_cbranch_scc1 K2_CC']
    L += stamp()
    L += fin['X1']
    a('K2_X2:'); L += adv64(sK2, f's{sW2}'); L += fin['X2'] + hook(0, sFw, 'b')
    L += adv64(sV2, f's{sW2}')
    a(f's_cmp_eq_u32 s{sI}, 7'); a('s_cbranch_scc1 K2_X3b')
    L += fin['X3']
    L += stamp()
    a(f's_lshl_b32 s{sCnt}, s{sI}, 1'); a(f's_sub_u32 s{sCnt}, 13, s{sCnt}')
    a('.p2align 6\nK2_SS:'); L += fin['SS'] + hook(1, sFa, 'c') + [f's_sub_u32 s{sCnt}, s{sCnt}, 1', f's_cmp_lg_u32 s{sCnt}, 0', 's_cbranch_scc1 K2_SS']
    L += stamp()
    L += fin['X4']
    a('K2_TL:'); L += fin['TL']
    L += stamp()
    epi = []
    L += epi
    if FUSE3:
        import tail, k3
        L += stamp() + gstamp(9, sDB, 16, 17) + gstamp(10, sDB, 16, 17, neg=True) + tail.gen_tail(fin['TL'] + epi) + k3.STUBS
    else:
        if DIAG:
            L += stamp(); a('s_waitcnt vmcnt(0)'); L += stamp()
            L += dstore(vDG, vDG + 1, vDG + 2, sW, sWS, 201)
        L += gstamp(9, sDB, 16, 17) + gstamp(10, sDB, 16, 17, neg=True)
        a('K2_END:'); a('s_endpgm')
    a('K2_X3b:'); L += fin['X3b']; a('s_branch K2_TL')
    L += STUBS
    for r in sorted(RARES): L += rare(*r)
    L += rescale_o()
    for m in sorted(MASKS): L += mask_routine(*m)
    f = fin
    check_trace(pre + ['s_nop 0'] * 2 + f['X2'] + f['X3'] + f['SS'] + f['SS'] + f['X4'] + f['TL'] + epi, 'k2 i=0')
    check_trace(pre + ['s_nop 0'] * 4 + f['CC'] + f['CC'] + f['X1'] + f['X2'] + f['X3b'] + f['TL'] + epi, 'k2 i=7')
    if FUSE: return L, '', None
    return L, kdesc(name, 512, 256), f'; @launch kernel={name} grid=(256,1,1) block=(256,1,1) lds=163840'
```

```python
from lib import *
from layout import *
import os, struct, math
def f32(x): return '0x%08x' % struct.unpack('<I', struct.pack('<f', x))[0]
DIAG = os.environ.get('DIAG')
MF = 'v_mfma_f32_16x16x32_bf16'
MF16 = 'v_mfma_f32_16x16x16_bf16'
CB = math.log2(math.e) * 0.25
NEGBIG = -1.0e30
FLGA = FLG + 4096
OSF = os.environ.get('K3_SF', ' sc1')
G2 = int(os.environ.get('K3_G2', 0))
BLDS = int(os.environ.get('K3_BLDS', 1))
GPRIO = int(os.environ.get('K3_GPRIO', 0))
sWS, sOUT, sW, sT, sMk = 8, 12, 16, 20, 40
vL16 = 1
STUBS = []
def flat(L):
    o = []
    for x in L:
        if isinstance(x, list): o += flat(x)
        else: o.append(x)
    return o
uidc = [0]
def poll(voff, soff, nlanes, tmp):
    uidc[0] += 1; u = uidc[0]
    return [f's_mov_b32 s{sT+8}, 0x40000', f's_mov_b64 exec, {hex((1 << nlanes) - 1)}', f'K3_PL{u}:',
            f'buffer_load_dword v{tmp}, v{voff}, {sr(sWS,4)}, s{soff} offen sc1', 's_waitcnt vmcnt(0)',
            f'v_cmp_eq_u32 vcc, 0, v{tmp}', f's_cbranch_vccz K3_PD{u}', 's_sleep 1', f's_sub_u32 s{sT+8}, s{sT+8}, 1', f's_cmp_lg_u32 s{sT+8}, 0', f's_cbranch_scc1 K3_PL{u}',
            f'K3_PD{u}:', 's_mov_b64 exec, -1']

def role_b(unit=2, fused=False, extra=(), raw=False):
    vG = (101, 102, 103)
    stamp = lambda: dstamp(*vG) if DIAG and not fused else []
    LF = ' sc1' if fused else ''
    S, CUP, CLO, ONE, BO, BL, PKD = 8, 80, 84, 88, 92, 96, 4
    vmx = [2, 100]
    vBig = 'v100' if False else None
    BK, BV, BQ = 0, 72, 144
    sP, sB0, sC, sBig = 17, 18, 19, 30
    L = []; a = L.append
    a(f's_and_b32 s{sP}, s{unit}, 15'); a(f's_lshr_b32 s{sB0}, s{unit}, 4'); a(f's_lshl_b32 s{sB0}, s{sB0}, 2'); a(f's_add_u32 s{sB0}, s{sB0}, s{sW}')
    t0, t1, t2 = sT, sT + 1, sT + 2
    a(f's_lshr_b32 s{t0}, s{sP}, 2'); a(f's_lshl_b32 s{t0}, s{t0}, 19'); a(f's_and_b32 s{t1}, s{sP}, 3'); a(f's_lshl_b32 s{t1}, s{t1}, 11')
    a(f's_add_u32 s{t0}, s{t0}, s{t1}'); a(f's_add_u32 s{t0}, s{t0}, {BWS}')
    if BLDS and not fused:
        a(f's_lshl_b32 s{t1}, s{sB0}, 13'); a(f's_add_u32 s{t1}, s{t1}, s{t0}')
        for u in range(2): a(f'buffer_load_dwordx4 {ar(BQ+4*u,4)}, v{vL16}, {sr(sWS,4)}, s{t1} offen offset:{u*1024}')
        a(f's_lshl_b32 s{t2}, s{sW}, 1'); a(f's_add_u32 s{t2}, s{t2}, s{sB0}')
        a(f's_mul_i32 s{t1}, s{sW}, {3*4096}')
        for kind in range(2):
            for b in range(3):
                r = sT + 10 + b
                if kind == 0: L += [f's_sub_i32 s{r}, s{t2}, {8-b}', f's_max_i32 s{r}, s{r}, 0', f's_lshl_b32 s{r}, s{r}, 13', f's_add_u32 s{r}, s{r}, s{t0}']
                L += [f's_add_u32 s{r}, s{r}, {8*256*1024}', f's_add_u32 m0, s{t1}, {b*4096 + kind*2048} ; tag=BL', 's_nop 0']
                for e in range(2): a(f'buffer_load_dwordx4 v{vL16}, {sr(sWS,4)}, s{r} offen offset:{e*1024} lds ; tag=BL')
        a(f's_lshl_b32 s{t1}, s{sW}, 12'); a(f'v_add_u32 v2, s{t1}, v{vL16}')
        L += [';VMNEED BL', 's_barrier']
        for bb in range(9):
            for kt in range(2): a(f'ds_read_b128 {ar(BK+8*bb+4*kt,4)}, v2 offset:{bb*4096+kt*1024}')
        for bb in range(9):
            for e in range(2): a(f'ds_read_b128 {ar(BV+8*bb+4*e,4)}, v2 offset:{bb*4096+2048+e*1024}')
    else:
        a(f's_lshl_b32 s{t1}, s{sB0}, 13'); a(f's_add_u32 s{t1}, s{t1}, s{t0}')
        for u in range(2): a(f'buffer_load_dwordx4 {ar(BQ+4*u,4)}, v{vL16}, {sr(sWS,4)}, s{t1} offen offset:{u*1024}{LF}')
        blk = []
        for bb in range(9):
            r = sT + 10 + bb
            L += [f's_sub_i32 s{r}, s{sB0}, {8-bb}', f's_max_i32 s{r}, s{r}, 0', f's_lshl_b32 s{r}, s{r}, 13', f's_add_u32 s{r}, s{r}, s{t0}', f's_add_u32 s{r}, s{r}, {8*256*1024}']
            for kt in range(2): a(f'buffer_load_dwordx4 {ar(BK+8*bb+4*kt,4)}, v{vL16}, {sr(sWS,4)}, s{r} offen offset:{kt*1024}{LF}')
        for bb in range(9):
            r = sT + 10 + bb
            a(f's_add_u32 s{r}, s{r}, {8*256*1024}')
            for e in range(2): a(f'buffer_load_dwordx4 {ar(BV+8*bb+4*e,4)}, v{vL16}, {sr(sWS,4)}, s{r} offen offset:{e*1024}{LF}')
    a(';BLOADED')
    a('v_and_b32 v2, 15, v0'); a('v_lshrrev_b32 v3, 4, v0'); a('v_lshlrev_b32 v3, 2, v3'); a('v_sub_u32 v2, v2, v3')
    a(f'v_mov_b32 v3, {f32(NEGBIG)}'); a('v_mov_b32 v4, 0'); a(f's_mov_b32 s{sBig}, {f32(NEGBIG)}'); a(f's_mov_b32 s{sC}, {f32(CB)}')
    for j in range(4): a(f'v_cmp_gt_i32 {sr(sMk+2*j,2)}, {j}, v2')
    for j in range(4):
        a(f'v_cndmask_b32 v{CLO+j}, v4, v3, {sr(sMk+2*j,2)}'); a(f'v_cndmask_b32 v{CUP+j}, v3, v4, {sr(sMk+2*j,2)}'); a(f'v_mov_b32 v{ONE+j}, 0x3f803f80')
    L += stamp()
    units = [(0, 0), (0, 1), (1, 0), (1, 1)]
    def qk(n, rel):
        u, e = units[n]
        s = S + 4 * rel
        c = vr(CUP, 4) if rel == u else (vr(CLO, 4) if rel == u + 16 else '0')
        m = f'{MF16} {vr(s,4)}, {ar(BK+4*rel+2*e,2)}, {ar(BQ+4*u+2*e,2)}, {c}'
        bb = rel // 2
        if bb < 8:
            STUBS.extend([f'K3_BI{n}_{rel}:'] + [f'v_mov_b32 v{s+j}, s{sBig}' for j in range(4)] + [f's_branch K3_BR{n}_{rel}'])
            return [f's_cmp_lt_u32 s{sB0}, {8-bb}', f's_cbranch_scc1 K3_BI{n}_{rel}', m, f'K3_BR{n}_{rel}:']
        return [m]
    def mx(n, rel, first):
        s = S + 4 * rel; m = vmx[n % 2]
        if first: return [f'v_max3_f32 v{m}, v{s}, v{s+1}, v{s+2}', f'v_max_f32 v{m}, v{m}, v{s+3}']
        return [f'v_max3_f32 v{m}, v{m}, v{s}, v{s+1}', f'v_max3_f32 v{m}, v{m}, v{s+2}, v{s+3}']
    def mxfin(n):
        m = vmx[n % 2]
        return ['v_mov_b32 v3, v%d' % m, 's_nop 1', f'v_permlane32_swap_b32 v{m}, v3', f'v_max_f32 v{m}, v{m}, v3',
                'v_mov_b32 v3, v%d' % m, 's_nop 1', f'v_permlane16_swap_b32 v{m}, v3', f'v_max_f32 v{m}, v{m}, v3', f'v_mul_f32 v{m}, s{sC}, v{m}']
    tiles = lambda n: list(range(units[n][0], units[n][0] + 17))
    T = tiles(0)
    for k, rel in enumerate(T):
        L += qk(0, rel)
        if k >= 3: L += mx(0, T[k-3], k == 3)
    L += ['s_nop 0'] + mx(0, T[-3], False) + ['s_nop 0'] + mx(0, T[-2], False) + ['s_nop 3'] + mx(0, T[-1], False) + mxfin(0)
    L += stamp()
    for n, (u, e) in enumerate(units):
        m = vmx[n % 2]; T = tiles(n)
        nxt = tiles(n + 1) if n < 3 else []
        F = lambda bb: [f'v_fma_f32 v{S+4*r+j}, v{S+4*r+j}, s{sC}, -v{m}' for r in (2*bb, 2*bb+1) if r in T for j in range(4)]
        E = lambda bb: [f'v_exp_f32 v{S+4*r+j}, v{S+4*r+j}' for r in (2*bb, 2*bb+1) if r in T for j in range(4)]
        def C(bb):
            b = S + 8 * bb; X = []
            for h in range(2):
                if 2 * bb + h in T: X += [f'v_cvt_pk_bf16_f32 v{b+2*h}, v{b+4*h}, v{b+4*h+1}', f'v_cvt_pk_bf16_f32 v{b+2*h+1}, v{b+4*h+2}, v{b+4*h+3}']
                else: X += [f'v_mov_b32 v{b+2*h}, 0', f'v_mov_b32 v{b+2*h+1}, 0']
            return X
        def PV(bb):
            b = S + 8 * bb
            return [f'{MF} {vr(BO,4)}, {ar(BV+8*bb+4*e,4)}, {vr(b,4)}, ' + ('0' if bb == 0 else vr(BO, 4)),
                    f'{MF} {vr(BL,4)}, {vr(ONE,4)}, {vr(b,4)}, ' + ('0' if bb == 0 else vr(BL, 4))]
        firstmx = [True]
        def nqk(bb): return flat([qk(n + 1, r) for r in (2*bb, 2*bb+1) if r in nxt])
        def nmx(bb):
            X = []
            for r in (2*bb, 2*bb+1):
                if r in nxt:
                    X += mx(n + 1, r, firstmx[0]); firstmx[0] = False
            return X
        L += F(0) + E(0)
        for bb in range(9):
            if bb < 8:
                e_ = E(bb + 1); pv = PV(bb)
                L += F(bb + 1) + C(bb) + e_[:2] + [pv[0]] + e_[2:4] + [pv[1]] + e_[4:6] + nqk(bb) + e_[6:]
                if bb >= 1: L += nmx(bb - 1)
            else:
                L += ['s_nop 0'] + C(bb) + ['s_nop 1'] + PV(bb) + nqk(bb) + nmx(7)
        if nxt: L += ['s_nop 3'] + nmx(8) + mxfin(n + 1)
        else: L += ['s_nop 7']
        L += [f'v_rcp_f32 v3, v{BL}', 's_nop 0'] + [f'v_mul_f32 v{BO+j}, v{BO+j}, v3' for j in range(4)]
        L += [f'v_cvt_pk_bf16_f32 v{PKD+2*e}, v{BO}, v{BO+1}', f'v_cvt_pk_bf16_f32 v{PKD+2*e+1}, v{BO+2}, v{BO+3}']
        if e == 1:
            L += [f's_lshr_b32 s{t0}, s{sB0}, 1', f's_mul_i32 s{t0}, s{t0}, {TS}', f's_and_b32 s{t1}, s{sB0}, 1', f's_lshl_b32 s{t1}, s{t1}, 11', f's_add_u32 s{t0}, s{t0}, s{t1}', f's_lshl_b32 s{t1}, s{sP}, 12', f's_add_u32 s{t0}, s{t0}, s{t1}', f's_add_u32 s{t0}, s{t0}, {CTX + 128*4096 + u*1024}',
                  f'buffer_store_dwordx4 {vr(PKD,4)}, v{vL16}, {sr(sWS,4)}, s{t0} offen sc1', 's_nop 0']
    if raw: return L
    if extra:
        idx = [k for k, x in enumerate(L) if x.startswith(('v_exp', 'v_fma', 'v_mov_b32 v8'))]
        idx = idx[:int(len(idx) * 0.8)]
        n0 = 20
        pos = {}
        for k, g in enumerate(extra):
            p = idx[0] if k < n0 else idx[(k - n0 + 1) * (len(idx) - 1) // (len(extra) - n0)]
            pos.setdefault(p, []).extend(g)
        L2 = []
        for k, x in enumerate(L):
            L2.append(x); L2 += pos.get(k, [])
        L = L2
    L = auto_waits([], L)
    check_trace(L, 'k3 B')
    if fused: return L
    L += stamp()
    L += ['s_waitcnt vmcnt(0)', 's_barrier', f's_cmp_lg_u32 s{sW}, 0', 's_cbranch_scc1 K3_BEND',
          f's_lshl_b32 s{t0}, s2, 2', f's_add_u32 s{t0}, s{t0}, {FLG}', 'v_mov_b32 v2, 1', 'v_mov_b32 v3, 0', 's_mov_b64 exec, 1',
          f'buffer_store_dword v2, v3, {sr(sWS,4)}, s{t0} offen sc1', 's_mov_b64 exec, -1', 'K3_BEND:']
    if DIAG: L += stamp() + dstore(*vG, sW, sWS, 202)
    L += ['s_endpgm']
    return L

NF = 4
def role_g():
    vG = (101, 102, 103)
    stamp = lambda: dstamp(*vG) if DIAG else []
    TMP = 76
    sQ, sM = 17, 18
    sC0, sM0, sC1, sM1 = 44, 48, 52, 56
    def acc(part, mt, qt): return 64 * part + 4 * (4 * mt + qt)
    def slot_of(kb): return kb % 5 if kb < 33 else kb - 33
    def fr(kb, k):
        sl = slot_of(kb)
        if sl < 2: return vr(12 + 32 * sl + 4 * k, 4)
        if sl == 2: return ar(128 + 4 * k, 4) if k < 6 else vr(92 + 4 * (k - 6), 4)
        return ar(64 + 32 * (sl - 3) + 4 * k, 4)
    L = []; a = L.append
    t0, t1, t2 = sT, sT + 1, sT + 2
    LM = 2; LQ = 3
    a(f's_sub_u32 s{t2}, s2, 256'); a(f's_and_b32 s{t0}, s{t2}, 7'); a(f's_lshr_b32 s{t2}, s{t2}, 3')
    a(f's_lshr_b32 s{sQ}, s{t0}, 1'); a(f's_lshl_b32 s{sQ}, s{sQ}, 3'); a(f's_and_b32 s{t1}, s{t2}, 7'); a(f's_add_u32 s{sQ}, s{sQ}, s{t1}')
    a(f's_and_b32 s{sM}, s{t0}, 1'); a(f's_lshl_b32 s{sM}, s{sM}, 2'); a(f's_lshr_b32 s{t1}, s{t2}, 3'); a(f's_add_u32 s{sM}, s{sM}, s{t1}')
    sXc, sXm = 44, 45
    a(f's_mul_i32 s{sXc}, s{sQ}, {TS}'); a(f's_add_u32 s{sXc}, s{sXc}, {CTX}'); a(f's_mul_i32 s{sXm}, s{sM}, {TS}'); a(f's_add_u32 s{sXm}, s{sXm}, {WOA}')
    a(f's_lshl_b32 s{t0}, s{sW}, 14'); a(f's_add_u32 s{t0}, s{t0}, {128*4096}'); a(f's_add_u32 s46, s{sXc}, s{t0}'); a(f's_add_u32 s47, s{sXm}, s{t0}')
    IL = int(os.environ.get('K3_IL', 0))
    a(f's_lshl_b32 s{t0}, s{sW}, {12 if IL else 17}'); a(f's_add_u32 s{sXc}, s{sXc}, s{t0}'); a(f's_add_u32 s{sXm}, s{sXm}, s{t0}')
    LPF = 0
    NK = 36
    def loads(kb):
        LFc, LFw = os.environ.get('K3_LFC', ''), os.environ.get('K3_LFW', '')
        c, m, fl, st = (sXc, sXm, LFc, 16384 if IL else 4096) if kb < 32 else (46, 47, ' sc1', 4096)
        X = [[f'buffer_load_dwordx4 {fr(kb,4+j)}, v{vL16}, {sr(sWS,4)}, s{m} offen offset:{j*1024}{LFw}'] for j in range(4)]
        X += [[f'buffer_load_dwordx4 {fr(kb,j)}, v{vL16}, {sr(sWS,4)}, s{c} offen offset:{j*1024}{fl}'] for j in range(4)]
        X[-1] += [f's_add_u32 s{c}, s{c}, {st}', f's_add_u32 s{m}, s{m}, {st}']
        return X
    after = {}
    for kb in range(NK):
        prev = [k for k in range(kb) if slot_of(k) == slot_of(kb)]
        after.setdefault(prev[-1] if prev else -1, []).append(kb)
    for kb in after[-1]:
        L += flat(loads(kb))
        if LPF and kb == 1:
            for g in range(2, LPF + 1): L += touch(g) if False else []
    if LPF:
        for g in range(int(os.environ.get('K3_LP0', 1)), LPF + 1): L += touch(g)
    L += ['v_and_b32 v2, 15, v0', 'v_lshlrev_b32 v2, 2, v2', f's_lshr_b32 s{t2}, s{sQ}, 1', f's_lshl_b32 s{t2}, s{t2}, 6', f's_add_u32 s{t2}, s{t2}, {FLG}']
    L += stamp()
    for kb in range(NK):
        part = 0 if kb < 32 else 1
        mf = []
        for mt in range(4):
            for qt in range(4):
                d = acc(part, mt, qt)
                mf.append(f'{MF} {ar(d,4)}, {fr(kb,4+mt)}, {fr(kb,qt)}, ' + ('0' if kb in (0, 32) else ar(d, 4)))
        L += mf
        if LPF and kb % 4 == 0 and kb // 4 + LPF + 1 < 8: L += touch(kb // 4 + LPF + 1)
        if kb == 23: L.append(f'buffer_load_dword v3, v2, {sr(sWS,4)}, s{t2} offen sc1')
        for k2 in after.get(kb, []):
            if k2 == 32:
                L += ['v_cmp_eq_u32 vcc, 0, v3', 's_cbranch_vccnz K3_SLOWPOLL', 'K3_POLLED:']
                STUBS.extend(['K3_SLOWPOLL:'] + poll(2, t2, 16, 3) + ['s_branch K3_POLLED'])
            L += flat(loads(k2))
    L.append('s_nop 7')
    p1 = auto_waits([], L)
    G = [f's_lshl_b32 s{t0}, s{sW}, 14', f'v_add_u32 v{TMP}, s{t0}, v{vL16}', f's_lshl_b32 s{t0}, s{sW}, 10', f'v_add_u32 v{TMP+1}, s{t0}, v{vL16}']
    vo = 2
    G += [f'v_and_b32 v{vo}, 15, v0', f'v_lshlrev_b32 v{vo}, 11, v{vo}', f'v_bfe_u32 v3, v0, 4, 1', f'v_lshl_add_u32 v{vo}, v3, 5, v{vo}', f'v_lshrrev_b32 v3, 5, v0', f'v_lshl_add_u32 v{vo}, v3, 4, v{vo}',
          f's_lshl_b32 s{t0}, s{sQ}, 2', f's_add_u32 s{t0}, s{t0}, s{sW}', f's_lshl_b32 s{t0}, s{t0}, 15', f's_lshl_b32 s{t1}, s{sM}, 7', f's_add_u32 s{t0}, s{t0}, s{t1}']
    for part in range(2):
        G += [f'ds_write_b128 v{TMP}, {ar(64*part+4*k,4)} offset:{k*1024}' for k in range(16)]
        G += ['s_waitcnt lgkmcnt(0)', 's_barrier']
        for w in range(4):
            for mt in range(4): G.append(f'ds_read_b128 {vr(12+16*w+4*mt,4)}, v{TMP+1} offset:{w*16384+mt*4096}')
        if part == 0: G += [';LGKM0', 's_barrier']
        for j in range(16): G.append(f'v_add_f32 v{12+j}, v{12+j}, v{28+j}')
        for j in range(16): G.append(f'v_add_f32 v{44+j}, v{44+j}, v{60+j}')
        for j in range(16): G.append(f'v_add_f32 v{12+j}, v{12+j}, v{44+j}')
        P0 = TMP + 4 + 8 * part
        for mt in range(4):
            G += [f'v_cvt_pk_bf16_f32 v{P0+4*(mt>>1)+2*(mt&1)}, v{12+4*mt}, v{12+4*mt+1}', f'v_cvt_pk_bf16_f32 v{P0+4*(mt>>1)+2*(mt&1)+1}, v{12+4*mt+2}, v{12+4*mt+3}']
        G.append('s_nop 1')
        for pr in range(2):
            b = P0 + 4 * pr
            G += [f'v_permlane16_swap_b32 v{b}, v{b+2}', f'v_permlane16_swap_b32 v{b+1}, v{b+3}']
        for pr in range(2):
            G.append(f'buffer_store_dwordx4 {vr(P0+4*pr,4)}, v{vo}, {sr(sOUT,4)}, s{t0} offen offset:{part*1024+pr*64}{OSF}')
    G = auto_waits([], G)
    check_trace(p1 + G, 'k3 G')
    R = p1 + stamp() + G
    if DIAG: R += stamp() + ['s_waitcnt vmcnt(0)'] + stamp() + dstore(*vG, sW, sWS, 202)
    return R + ['s_endpgm']

NR = int(os.environ.get('K3_NR', 18))
def role_g2():
    vG = (101, 102, 103)
    stamp = lambda: dstamp(*vG) if DIAG else []
    vC, vD, vR, vPa, vPv, vE = 2, 10, 14, 15, 16, 8
    sQ, sM, sS, sC, sWo, sL, sPr, sC2 = 17, 18, 19, 44, 45, 46, 47, 56
    t0, t1, t2 = sT, sT + 1, sT + 2
    def acc(qt, mt): return 4 * (4 * qt + mt)
    def F(k): return vr(20 + 4 * k, 4) if k < 20 else ar(128 + 4 * (k - 20), 4)
    def cf(n, qt): return F(6 * (n % 3) + qt) if qt < 6 else F(18 + 2 * (n % 2) + qt - 6)
    def wr(mt): return F(22 + mt)
    H = []; a = H.append
    a(f's_sub_u32 s{t2}, s2, 256'); a(f's_and_b32 s{sS}, s{t2}, 1')
    a(f's_bfe_u32 s{sQ}, s{t2}, 0x10002'); a(f's_lshl_b32 s{sQ}, s{sQ}, 3'); a(f's_bfe_u32 s{t1}, s{t2}, 0x30003'); a(f's_add_u32 s{sQ}, s{sQ}, s{t1}')
    a(f's_bfe_u32 s{sM}, s{t2}, 0x10001'); a(f's_lshl_b32 s{sM}, s{sM}, 2'); a(f's_lshr_b32 s{t1}, s{t2}, 6'); a(f's_add_u32 s{sM}, s{sM}, s{t1}')
    a(f's_mul_i32 s{t0}, s{sW}, {NR}'); a(f's_mul_i32 s{t1}, s{sW}, {32-NR}'); a(f's_add_u32 s{t1}, s{t1}, {4*NR}')
    a(f's_cmp_eq_u32 s{sS}, 0'); a(f's_cselect_b32 s{t0}, s{t0}, s{t1}'); a(f's_lshl_b32 s{t0}, s{t0}, 10')
    a(f's_mul_i32 s{sC}, s{sQ}, {8*CTX_S}'); a(f's_add_u32 s{sC}, s{sC}, {CTX}'); a(f's_mul_i32 s{sWo}, s{sM}, {4*WOA_S}'); a(f's_add_u32 s{sWo}, s{sWo}, {WOA}')
    a(f's_lshl_b32 s{t1}, s{sW}, 12'); a(f's_add_u32 s{t1}, s{t1}, {128*1024}'); a(f's_add_u32 s48, s{sC}, s{t1}'); a(f's_add_u32 s49, s{sWo}, s{t1}')
    a(f's_add_u32 s{sC}, s{sC}, s{t0}'); a(f's_add_u32 s{sWo}, s{sWo}, s{t0}'); a(f's_mov_b32 s{sC2}, s{sC}')
    a(f's_mul_i32 s{sL}, s{sW}, 18432'); a(f'v_add_u32 v{vR}, s{sL}, v{vL16}')
    for j in range(8): a(f'v_add_u32 v{vC+j}, {j*CTX_S - (1024 if j == 7 else 0)}, v{vL16}')
    for j in range(4): a(f'v_add_u32 v{vD+j}, {j*(WOA_S-1024)}, v{vL16}')
    a(f's_lshl_b32 s{sPr}, s{sQ}, 3'); a(f's_add_u32 s{sPr}, s{sPr}, s{sM}')
    a(f's_cmp_eq_u32 s{sS}, 1'); a('s_cbranch_scc1 K3_PROD')
    def lc(n, qt):
        X = [f'buffer_load_dwordx4 {cf(n,qt)}, v{vC+qt}, {sr(sWS,4)}, s{sC} offen offset:{(n%4)*1024}']
        if n % 4 == 3 and qt == 5: X.append(f's_add_u32 s{sC}, s{sC}, 4096')
        return X
    def dw(n):
        tg = f' ; tag=O{n%3}'
        return [f's_add_u32 m0, s{sL}, {(n%3)*6144}' + tg, 's_nop 0'] + [f'buffer_load_dwordx4 v{vD+j}, {sr(sWS,4)}, s{sWo} offen offset:{j*1024} lds' + tg for j in range(4)] + \
               [f's_add_u32 m0, s{sL}, {(n%3)*6144+4096}' + tg, f's_add_u32 s{sWo}, s{sWo}, 1024'] + \
               [f'buffer_load_dwordx4 v{vE+j}, {sr(sWS,4)}, s{sC2} offen offset:{j*1024} lds' + tg for j in range(2)] + [f's_add_u32 s{sC2}, s{sC2}, 1024']
    def rw(n, mt): return f'ds_read_b128 {wr(mt)}, v{vR} offset:{(n%3)*6144+mt*1024}'
    def rc(n): return [f'ds_read_b128 {cf(n,6+j)}, v{vR} offset:{(n%3)*6144+4096+j*1024}' for j in range(2)]
    def stream(N, hooks):
        L = []
        for n in range(3): L += dw(n) + flat([lc(n, q) for q in range(6)])
        L += stamp() + [';VMNEED O0'] + [rw(0, mt) for mt in range(4)] + rc(0)
        for n in range(N):
            for mt in range(4):
                for qt in range(8):
                    d = acc(qt, mt)
                    L.append(f'{MF} {ar(d,4)}, {wr(mt)}, {cf(n,qt)}, ' + ('0' if n == 0 else ar(d, 4)))
                    if mt == 3 and qt == 0 and n + 3 < N: L += dw(n + 3)
                    if mt == 3 and qt < 6 and n + 3 < N: L += lc(n + 3, qt)
                if n + 1 < N:
                    if mt == 0: L += [f';VMNEED O{(n+1)%3}'] + rc(n + 1)
                    L.append(rw(n + 1, mt))
            L += hooks.get(n, [])
        return L
    vo, vW, vRd_ = 2, 3, 4
    def red_setup():
        return [f's_lshl_b32 s{t0}, s{sW}, 14', f'v_add_u32 v{vW}, s{t0}, v{vL16}', f's_lshl_b32 s{t0}, s{sW}, 12', f'v_add_u32 v{vRd_}, s{t0}, v{vL16}']
    RG = {}
    def reduce(r):
        SUM, TA, TB = RG['S'], RG['A'], RG['B']
        X = ['s_barrier']
        for q in range(4):
            for mt in range(4): X.append(f'ds_write_b128 v{vW}, {ar(acc(2*q+r,mt),4)} offset:{(4*q+mt)*1024}')
        X += [';LGKM0', 's_barrier']
        rd = lambda w, base: [f'ds_read_b128 {vr(base[mt],4)}, v{vRd_} offset:{w*16384+mt*1024}' for mt in range(4)]
        add = lambda T: [f'v_add_f32 v{SUM[mt]+j}, v{SUM[mt]+j}, v{T[mt]+j}' for mt in range(4) for j in range(4)]
        return X + rd(0, SUM) + rd(1, TA) + rd(2, TB) + add(TA) + rd(3, TA) + add(TB) + add(TA)
    def out_setup():
        return [f'v_and_b32 v{vo}, 15, v0', f'v_lshlrev_b32 v{vo}, 11, v{vo}', 'v_bfe_u32 v5, v0, 4, 1', f'v_lshl_add_u32 v{vo}, v5, 5, v{vo}', 'v_lshrrev_b32 v5, 5, v0', f'v_lshl_add_u32 v{vo}, v5, 4, v{vo}',
                f's_lshl_b32 s{t1}, s{sQ}, 2', f's_add_u32 s{t1}, s{t1}, s{sW}', f's_lshl_b32 s{t1}, s{t1}, 16', f's_lshl_b32 s{t2}, s{sM}, 7', f's_add_u32 s{t1}, s{t1}, s{t2}']
    def out_store(r, part):
        P0 = 8 + 0 * r
        X = []
        for mt in range(4):
            sm = RG['S'][mt]
            X += [f'v_cvt_pk_bf16_f32 v{P0+4*(mt>>1)+2*(mt&1)}, v{sm}, v{sm+1}', f'v_cvt_pk_bf16_f32 v{P0+4*(mt>>1)+2*(mt&1)+1}, v{sm+2}, v{sm+3}']
        X.append('s_nop 1')
        for pr in range(2): X += [f'v_permlane16_swap_b32 v{P0+4*pr}, v{P0+4*pr+2}', f'v_permlane16_swap_b32 v{P0+4*pr+1}, v{P0+4*pr+3}']
        for pr in range(2): X.append(f'buffer_store_dwordx4 {vr(P0+4*pr,4)}, v{vo}, {sr(sOUT,4)}, s{t1} offen offset:{part*1024+pr*64}{OSF}')
        if r == 0: X.append(f's_add_u32 s{t1}, s{t1}, 32768')
        return X
    part_addr = [f's_lshl_b32 s50, s{sPr}, 15', f's_lshl_b32 s{t0}, s{sW}, 13', f's_add_u32 s50, s50, s{t0}', f's_add_u32 s50, s50, {PART}', 's_add_u32 s51, s50, 4096',
                 f's_lshl_b32 s52, s{sPr}, 7', f's_add_u32 s52, s52, {FLGA}']
    fin = lambda: (stamp() + ['s_waitcnt vmcnt(0)'] + stamp() + dstore(*vG, sW, sWS, 202) if DIAG else []) + ['s_endpgm']
    STUBS.extend(['K3_SLOWA:'] + poll(vPa, 52, 1, vPv) + ['s_branch K3_AOK'])
    hk = {NR - 4: part_addr + [f'v_mov_b32 v{vPa}, 0', f'buffer_load_dword v{vPv}, v{vPa}, {sr(sWS,4)}, s52 offen sc1']}
    xt = [6 * ((NR - 3) % 3) + k for k in range(6)] + [6 * ((NR - 2) % 3) + k for k in range(2)]
    rest = [k for k in range(20) if k not in xt]
    reg = lambda ks: [20 + 4 * k for k in ks]
    XT = reg(xt)
    hk[NR - 2] = [f'v_cmp_eq_u32 vcc, 0, v{vPv}', 's_cbranch_vccnz K3_SLOWA', 'K3_AOK:'] + \
        [f'buffer_load_dwordx4 {vr(XT[4*r+mt],4)}, v{vL16}, {sr(sWS,4)}, s{50+r} offen offset:{mt*1024} sc1' for r in range(2) for mt in range(4)]
    RG.update(S=reg(rest[0:4]), A=reg(rest[4:8]), B=reg(rest[8:12]))
    R = stream(NR, hk) + stamp() + red_setup() + out_setup()
    for r in range(2):
        R += reduce(r) + [f'v_add_f32 v{RG["S"][mt]+j}, v{RG["S"][mt]+j}, v{XT[4*r+mt]+j}' for mt in range(4) for j in range(4)] + out_store(r, 0)
    R = auto_waits([], R); check_trace(R, 'k3 red')
    NP = 32 - NR
    RG.update(S=[84, 88, 92, 96], A=[20, 24, 28, 32], B=[36, 40, 44, 48]); SUM = 84
    hk = {NP - 3: part_addr + [f's_lshl_b32 s53, s{sQ}, 6', f's_add_u32 s53, s53, {FLG}', f'v_and_b32 v{vPa}, 15, v0', f'v_lshlrev_b32 v{vPa}, 2, v{vPa}',
                               f'buffer_load_dword v{vPv}, v{vPa}, {sr(sWS,4)}, s53 offen sc1']}
    def bf(n, k):
        if n % 2 == 0: return vr(52 + 4 * k, 4) if k < 8 else ar(128 + 4 * (k - 8), 4)
        return vr(20 + 4 * k, 4) if k < 8 else vr(84 + 4 * (k - 8), 4)
    def lb(n):
        return [f'buffer_load_dwordx4 {bf(n,8+j)}, v{6+j}, {sr(sWS,4)}, s49 offen offset:{n*1024}' for j in range(4)] + \
               [f'buffer_load_dwordx4 {bf(n,q)}, v{(2 if False else 0)+BV0+q}, {sr(sWS,4)}, s48 offen offset:{n*1024} sc1' for q in range(8)]
    BV0 = 10
    lbw = lambda n: lb(n)[:4]
    lbo = lambda n: lb(n)[4:]
    P = stream(NP, hk) + stamp()
    P += [f'v_mov_b32 v100, v{vPv}', f'v_mov_b32 v19, v{vPa}'] + [f'v_add_u32 v{BV0+7}, 1024, v{vC+7}'] + [f'v_mov_b32 v{BV0+7-j}, v{vC+7-j}' for j in range(1, 8)] + [f'v_mov_b32 v{6+j}, v{BV0+j}' for j in range(4)]
    P += lbw(0) + [f'v_cmp_eq_u32 vcc, 0, v100', 's_cbranch_vccnz K3_LATEB'] + ['EARLY0:'] + ['K3_LATEB:', 's_mov_b64 s[54:55], vcc'] + red_setup()
    for r in range(2):
        P += reduce(r) + [f'buffer_store_dwordx4 {vr(SUM+4*mt,4)}, v{vL16}, {sr(sWS,4)}, s{50+r} offen offset:{mt*1024} sc1 ; tag=PS' for mt in range(4)] + ['s_nop 0']
    P += [';VMNEED PS', 's_barrier', f's_cmp_lg_u32 s{sW}, 0', 's_cbranch_scc1 K3_NOFLAG', 'v_mov_b32 v18, 1', 'v_mov_b32 v5, 0', 's_mov_b64 exec, 1', 'SKF:', 's_mov_b64 exec, -1', 'K3_NOFLAG:']
    P += ['s_cmp_lg_u64 s[54:55], 0', 's_cbranch_scc1 K3_SLOWB', 'K3_BOK:'] + lb(1)
    STUBS.extend(['K3_SLOWB:'] + poll(19, 53, 16, 100) + lbo(0) + ['s_waitcnt vmcnt(0)', 's_branch K3_BOK'])
    for n in range(4):
        for qt in range(8):
            for mt in range(4):
                d = acc(qt, mt)
                P.append(f'{MF} {ar(d,4)}, {bf(n,8+mt)}, {bf(n,qt)}, ' + ('0' if n == 0 else ar(d, 4)))
        if n + 2 < 4: P += lb(n + 2)
    P += stamp() + out_setup()
    for r in range(2): P += reduce(r) + out_store(r, 1)
    P = auto_waits([], P); check_trace(P, 'k3 prod')
    P = flat([{'SKF:': f'buffer_store_dword v18, v5, {sr(sWS,4)}, s52 offen sc1', 'EARLY0:': lbo(0)}.get(x, x) for x in P])
    return H + R + fin() + ['K3_PROD:'] + P + fin()

def gen_k3(name='k3_kernel'):
    L = []; a = L.append
    a(f'.p2align 8\n.type {name},@function\n{name}:')
    a('s_cmp_ge_u32 s2, 512'); a('s_cbranch_scc1 K3_END')
    if os.environ.get('CPF', '1') == '1': L += code_prefetch('k3_kernel', 'CODE_END', 'K3', 100, 100, 90, 4)
    a('s_load_dwordx2 s[4:5], s[0:1], 88'); a('s_load_dwordx2 s[6:7], s[0:1], 72')
    a('v_lshrrev_b32 v1, 6, v0'); a('v_and_b32 v0, 63, v0'); a(f'v_readfirstlane_b32 s{sW}, v1')
    a(f'v_lshlrev_b32 v{vL16}, 4, v0')
    a('s_waitcnt lgkmcnt(0)')
    a(f's_mov_b32 s{sWS}, s4'); a(f's_mov_b32 s{sWS+1}, s5'); a(f's_mov_b32 s{sWS+2}, 0x10000000'); a(f's_mov_b32 s{sWS+3}, 0x20000')
    a(f's_mov_b32 s{sOUT}, s6'); a(f's_mov_b32 s{sOUT+1}, s7'); a(f's_mov_b32 s{sOUT+2}, 0x400000'); a(f's_mov_b32 s{sOUT+3}, 0x20000')
    if DIAG: a('s_mov_b32 s72, 0'); a('v_mov_b32 v101, 0'); a('v_mov_b32 v103, 0'); L += dstamp(101, 102, 103)
    a('s_cmp_ge_u32 s2, 256'); a('s_cbranch_scc1 K3_G')
    L += role_b()
    a('K3_G:')
    if GPRIO: a('s_setprio 1')
    L += role_g2() if G2 else role_g()
    a('K3_END:'); a('s_endpgm')
    L += STUBS
    return L, kdesc(name, 256, 104), f'; @launch kernel={name} grid=(512,1,1) block=(256,1,1) lds={81920 if G2 else 65536}'
```

```python
from lib import *
from layout import *
import os, struct, math
def f32(x): return '0x%08x' % struct.unpack('<I', struct.pack('<f', x))[0]
DIAG = os.environ.get('DIAG')
FUSE = int(os.environ.get('FUSE', 1))
Q0PF = int(os.environ.get('K1_Q0PF', 1)) and FUSE
FUSE3 = int(os.environ.get('FUSE3', 0))
sSig = 88
sDB = 80
KVF = os.environ.get('K2_KVF', ' sc1')
SF = os.environ.get('K2_SF', ' sc1')
THR = 2.0 ** float(os.environ.get('THR', 40.0))
NEGBIG = -1.0e30
D = int(os.environ.get('K2_D', 24))
MF = 'v_mfma_f32_16x16x32_bf16'
vL16, vRd, vq, vBig, vd, vl, vt, vT = 1, 2, 4, 5, 6, 8, 12, 16
NM = 20
vDl = 36
vDG = 44
S0, P0, TMPV, Q0, TMPB = 48, 112, 144, 176, 240
O0, FR = 0, 128
sWS, sX, sWQ, sWO, sWB = 8, 12, 16, 60, 64
sW, sH, sI, sK, sV, sSR, sSW, sCnt, sKc, sMq, sRet, sT, sMk, sW2, sW4 = 20, 21, 22, 23, 24, 25, 26, 27, 28, 29, 30, 32, 40, 48, 49
sW2K, sW4K = 58, 59
sFa, sFw = 92, 93
sK2, sV2 = 84, 86
sXa, sXb, sWo, sXs = 50, 51, 52, 53

def stamp(): return dstamp(vDG, vDG + 1, vDG + 2) if DIAG else []
def Sr(par, idx): return S0 + 32 * par + 4 * idx
def Pr(par, u): return P0 + 16 * par + 4 * u
def Or(qt, dt): return O0 + 32 * qt + 4 * dt
def Qr(qt, db): return Q0 + 16 * qt + 4 * db
def slot(g): return FR + 4 * ((g // 2) % 16)
def tq(t, idx): return (idx & 3) if t == 'c' else 2 + (idx & 1)
def tkt(t, idx): return (idx >> 2) if t == 'c' else (idx >> 1)
def tP(t, idx):
    if t == 'c': return idx & 3, idx >> 2
    kt = idx >> 1
    return 2 * (kt >> 1) + (idx & 1), kt & 1

def pv_frags(t):
    if t == 'c': return [(4 * dt, 4 * dt, dt * 1024) for dt in range(8)]
    return [(4 * dt + 2 * kb, 4 * dt + kb, kb * 8192 + dt * 1024) for dt in range(8) for kb in range(2)]
def koff(kt, db): return (kt >> 1) * 8192 + (2 * db + (kt & 1)) * 1024
def qk_frags(t):
    if t == 'c': return [(34 + 16 * kt + 4 * db, 32 + 16 * kt + db, 16384 + koff(kt, db)) for kt in range(2) for db in range(4)]
    return [(32 + 8 * kt + 2 * db, 32 + 8 * kt + db, 16384 + koff(kt, db)) for kt in range(4) for db in range(4)]
def rd(g, off, par): return f'ds_read_b128 {ar(slot(g),4)}, v{vRd+par} offset:{off}'

def pv_mfmas(t, par):
    out = []
    for dt in range(8):
        for x in range(4):
            if t == 'c': qt, u, g = x, x, 4 * dt
            else:
                q, kb = x >> 1, x & 1
                qt, u, g = 2 + q, 2 * kb + q, 4 * dt + 2 * kb
            o = Or(qt, dt)
            out.append(f'{MF} {ar(o,4)}, {ar(slot(g),4)}, {vr(Pr(par,u),4)}, {ar(o,4)}')
    return out
def qk_mfmas(t, par, czero=False, fr=None):
    out = []
    nkt, nq = (2, 4) if t == 'c' else (4, 2)
    for kt in range(nkt):
        for x in range(nq):
            for db in range(4):
                g = 32 + (16 * kt + 4 * db + 2 if t == 'c' else 8 * kt + 2 * db)
                f = ar(slot(g), 4) if fr is None else fr(kt, db)
                idx = nq * kt + x; qt = tq(t, idx); s = Sr(par, idx)
                c = vr(s, 4) if db else ('0' if czero else vr(NM + 4 * qt, 4))
                out.append(f'{MF} {vr(s,4)}, {f}, {vr(Qr(qt,db),4)}, {c}')
    return out

sRet2 = 78
MASKS = set()
def mask_call(par, t):
    MASKS.add((par, t))
    return [f's_call_b64 {sr(sRet2,2)}, K2_MASK_{par}{t}']
def mask_routine(par, t):
    n = f'K2_MASK_{par}{t}'
    L = [f'{n}:', f's_ashr_i32 s{sT+4}, s{sMq}, 5', f's_sub_i32 s{sT+4}, s{sT+4}, s{sW}']
    for b in range(1 if t == 'c' else 2):
        T = (lambda kt, q: Sr(par, 4 * kt + q)) if t == 'c' else (lambda kt, q, b=b: Sr(par, 2 * (2 * b + kt) + q))
        L += [f's_cmp_lt_i32 s{sT+4}, {-b}', f's_cbranch_scc1 {n}_e{b}', f's_cmp_eq_i32 s{sT+4}, {-b}', f's_cbranch_scc1 {n}_d{b}']
        for kt, q in ((0, 0), (0, 1), (1, 1)): L += [f'v_mov_b32 v{T(kt,q)+j}, v{vBig}' for j in range(4)]
        L += [f's_branch {n}_f{b}', f'{n}_d{b}:']
        for kt, q in ((0, 0), (1, 1)): L += [f'v_cndmask_b32 v{T(kt,q)+j}, v{T(kt,q)+j}, v{vBig}, {sr(sMk+2*j,2)}' for j in range(4)]
        L += [f'{n}_f{b}:'] + [f'v_mov_b32 v{T(1,0)+j}, v{vBig}' for j in range(4)] + [f'{n}_e{b}:']
    return L + [f's_setpc_b64 {sr(sRet2,2)}']

def exp_ops(par, t):
    L = []; seen = set()
    def tail(idx):
        s = Sr(par, idx); qt = tq(t, idx); u, h = tP(t, idx); a = vt + qt
        if qt not in seen:
            seen.add(qt); x = [f'v_add_f32 v{a}, v{s}, v{s+1}']
        else: x = [f'v_add_f32 v{a}, v{a}, v{s}', f'v_add_f32 v{a}, v{a}, v{s+1}']
        p = Pr(par, u) + 2 * h
        return x + [f'v_cvt_pk_bf16_f32 v{p}, v{s}, v{s+1}', f'v_add_f32 v{a}, v{a}, v{s+2}', f'v_add_f32 v{a}, v{a}, v{s+3}', f'v_cvt_pk_bf16_f32 v{p+1}, v{s+2}, v{s+3}']
    prev = None
    for idx in range(8):
        s = Sr(par, idx)
        e = [f'v_exp_f32 v{s+j}, v{s+j}' for j in range(4)]
        tl = tail(prev) if prev is not None else []
        L += [e[0]] + tl[:2] + [e[1]] + tl[2:4] + [e[2]] + tl[4:] + [e[3]]
        prev = idx
    L += ['s_nop 0'] + tail(prev)
    return L
def lupd(t): return [f'v_add_f32 v{vl+q}, v{vl+q}, v{vt+q}' for q in ((0, 1, 2, 3) if t == 'c' else (2, 3))]
def chk(t):
    if t == 'c': L = [f'v_max3_f32 v{vT}, v{vt}, v{vt+1}, v{vt+2}', f'v_max_f32 v{vT}, v{vT}, v{vt+3}']
    else: L = [f'v_max_f32 v{vT}, v{vt+2}, v{vt+3}']
    return L + [f'v_cmp_nge_f32 vcc, {f32(THR)}, v{vT}']

def adv64(p, x): return [f's_add_u32 s{p}, s{p}, {x}', f's_addc_u32 s{p+1}, s{p+1}, 0']
def dma_part(kind, t, tag):
    so = sV2 if kind == 'V' else sK2
    w = (sW4 if t == 's' else sW2) if kind == 'V' else (sW4K if t == 's' else sW2K)
    n = 4 if t == 's' else 2
    items = [[f's_add_u32 m0, s{sSW}, s{w} ; tag={tag}']]
    for q in range(n):
        items.append([f'global_load_lds_dwordx4 v{vL16}, {sr(so,2)} offset:{q*1024}{KVF} ; tag={tag}'])
    items.append(adv64(so, n * 4096))
    return items
def flat(L):
    o = []
    for x in L:
        if isinstance(x, list): o += flat(x)
        else: o.append(x)
    return o

STUBS = []
def body(par, pv, sm, qk, nxt_pv, vload, kload, mask, uid):
    psm = par ^ 1
    mf = []
    if pv: mf += pv_mfmas(pv, par)
    if qk: mf += qk_mfmas(qk, par)
    ng = len(mf)
    pre = {}
    def P(g, x): pre.setdefault(g, []).extend(x if isinstance(x, list) else [x])
    frs = (pv_frags(pv) if pv else []) + (qk_frags(qk) if qk else [])
    for g, fu, off in frs:
        if g - D >= 0: P(g - D, rd(g, off, par))
    for g0 in range(0, ng, 8):
        need = [ar(slot(g), 4) for g, fu, off in frs if g0 <= fu < g0 + 8]
        if not need: continue
        P(g0 - 1 if g0 else (0, 'before'), ';NEED ' + ' '.join(need))
    if nxt_pv:
        gb = ng - D
        P(gb - 3, [f';VMNEED U{par^1}', 's_barrier'])
        for g, fu, off in pv_frags(nxt_pv):
            if g < D: P(ng + g - D, rd(g, off, par ^ 1))
    items = []
    if vload: items += dma_part('V', vload, f'U{par}')
    if kload: items += dma_part('K', kload, f'U{par}')
    if nxt_pv: items += [[f's_add_u32 s{sSR}, s{sSR}, 32768'], [f's_and_b32 s{sSR}, s{sSR}, 0x1ffff']]
    if vload or kload: items += [[f's_add_u32 s{sSW}, s{sSW}, 32768'], [f's_and_b32 s{sSW}, s{sSW}, 0x1ffff']]
    if sm:
        items += [[f's_add_u32 s{sKc}, s{sKc}, {8192 if pv == "c" else 16384}']]
        if mask is None: items += [[f's_mov_b32 s{sMq}, -4096']]
        else: P(3, [f's_mov_b32 s{sMq}, {32*mask}'] + mask_call(psm, sm))
    free = [g for g in range(1, ng) if g not in pre and not (g == ng - 1)]
    lim = (ng - D - 2) if nxt_pv else ng - 2
    gi = 0; lastd = -9
    for it in items:
        isd = it[0].startswith(('buffer', 'global'))
        while gi < len(free) and (isd and free[gi] - lastd < DSP): gi += 1
        g = free[gi]; gi += 1
        if isd:
            lastd = g
        P(g, it)
    Pq = []; Eq = []
    if nxt_pv: Pq.append(f'v_add_u32 v{vRd+(par^1)}, s{sSR}, v{vL16}')
    if pv: Pq += lupd(pv)
    if sm:
        for x in exp_ops(psm, sm):
            if x.startswith('v_exp'): Eq.append(x)
            elif x.startswith('v_'): Pq.append(x)
        NL = int(os.environ.get('K2_NL', 6))
        cv = [k for k, x in enumerate(Pq) if x.startswith('v_cvt')][-NL:]
        late = [Pq[k] for k in cv]
        Pq = [x for k, x in enumerate(Pq) if k not in cv] + chk(sm) + late
    cap = {}
    for g in range(ng):
        n = sum(2 if x.startswith(('buffer', 'ds_', 'global')) else 1 for x in pre.get(g, []))
        cap[g] = max(0, 2 - max(0, n - 1))
    last = ng - 1 if qk else ng - 2
    total = 2 * len(Eq) + len(Pq)
    def sched(extra):
        cp = dict(cap)
        for k in range(extra): cp[(k * (last + 1) // max(extra, 1)) % (last + 1)] += 1
        val = {}; pi = ei = 0
        eiss = {}
        ereg = [Ins(x).w for x in Eq]; allE = set().union(*ereg) if ereg else set()
        pend_mask = {}
        for k, x in enumerate(Pq):
            if x.startswith('v_cndmask'):
                for r in Ins(x).w: pend_mask[r] = k
        for g in range(last + 1):
            sl = cp[g]
            while sl > 0:
                if ei < len(Eq) and sl >= 2 and (mask is None or g >= 3):
                    val.setdefault(g, []).append(Eq[ei])
                    for r in ereg[ei]: eiss[r] = g
                    ei += 1; sl -= 2; continue
                if pi < len(Pq):
                    x = Pq[pi]; ins = Ins(x)
                    ok = x.startswith('v_cndmask') or all(eiss.get(r, 999) < g for r in ins.r & allE)
                    if ok:
                        val.setdefault(g, []).append(x); pi += 1; sl -= 1; continue
                break
        return val, (len(Eq) - ei) + (len(Pq) - pi)
    extra = 0
    while True:
        val, left = sched(extra)
        if left == 0: break
        extra += 1
    if os.environ.get('VERB'): print(uid, 'valu', total, 'avail', sum(cap[g] for g in range(last + 1)), 'extra', extra)
    if sm:
        pre.setdefault(ng - 1, []).extend([f's_cbranch_vccnz K2_S_{uid}', f'K2_R_{uid}:'])
        STUBS.extend([f'K2_S_{uid}:', f's_call_b64 {sr(sRet,2)}, K2_RARE_{psm}{sm}{qk or "n"}', f's_branch K2_R_{uid}'])
        RARES.add((psm, sm, qk or 'n'))
    return weave(mf, pre, val)
RARES = set()
DSP = int(os.environ.get('K2_DSP', 3))

def xlane(op, r, tmp):
    return [f'v_mov_b32 v{tmp}, v{r}', 's_nop 1', f'v_permlane32_swap_b32 v{r}, v{tmp}', f'{op} v{r}, v{r}, v{tmp}',
            f'v_mov_b32 v{tmp}, v{r}', 's_nop 1', f'v_permlane16_swap_b32 v{r}, v{tmp}', f'{op} v{r}, v{r}, v{tmp}']
def deltas(par, t, clamp):
    qs = (0, 1, 2, 3) if t == 'c' else (2, 3)
    ch = []
    for q in qs:
        regs = [Sr(par, i) + j for i in range(8) if tq(t, i) == q for j in range(4)]
        c = [f'v_max_f32 v{vDl+q}, v{regs[0]}, v{regs[1]}']
        for k in range(2, len(regs), 2): c.append(f'v_max3_f32 v{vDl+q}, v{vDl+q}, v{regs[k]}, v{regs[k+1]}')
        tmp = vDl + 4 + q
        for sw in ('32', '16'):
            c += [f'v_mov_b32 v{tmp}, v{vDl+q}', f'v_permlane{sw}_swap_b32 v{vDl+q}, v{tmp}', f'v_max_f32 v{vDl+q}, v{vDl+q}, v{tmp}']
        c.append(f'v_ceil_f32 v{vDl+q}, v{vDl+q}')
        if clamp: c.append(f'v_max_f32 v{vDl+q}, 0, v{vDl+q}')
        ch.append(c)
    L = []
    for k in range(len(ch[0])):
        if len(qs) == 2 and 'permlane' in ch[0][k]: L.append('s_nop 0')
        for c in ch: L.append(c[k])
    return L
def sub_tiles(par, t): return [f'v_sub_f32 v{Sr(par,i)+j}, v{Sr(par,i)+j}, v{vDl+tq(t,i)}' for i in range(8) for j in range(4)]

def rare(par, t, tn):
    L = [f'K2_RARE_{par}{t}{tn}:', 's_nop 7', 's_nop 7']
    nkt = 2 if t == 'c' else 4
    R = []
    mf = qk_mfmas(t, par, fr=lambda kt, db: vr(TMPV + 16 * (kt & 1) + 4 * db, 4))
    per = len(mf) // nkt
    for k0 in range(0, nkt, 2):
        R.append(f's_add_u32 s{sT+4}, s{sKc}, {k0*4096}'); R.append(f's_add_u32 s{sT+5}, s{sT+4}, 4096')
        for kt in range(2):
            for db in range(4):
                o = (2 * db + kt) * 1024
                R.append(f'buffer_load_dwordx4 {vr(TMPV+16*kt+4*db,4)}, v{vL16}, {sr(sWS,4)}, s{sT+4+(o>>12)} offen offset:{o&4095}{KVF}')
        R.append('s_waitcnt vmcnt(0)')
        R += mf[per*k0:per*(k0+2)] + ['s_nop 7']
    R += mask_call(par, t) + deltas(par, t, True)
    if t == 's': R += [f'v_mov_b32 v{vDl}, 0', f'v_mov_b32 v{vDl+1}, 0']
    R += sub_tiles(par, t)
    if tn != 'n': R += sub_tiles(par ^ 1, tn)
    for q in range(4):
        for j in range(4): R.append(f'v_sub_f32 v{NM+4*q+j}, v{NM+4*q+j}, v{vDl+q}')
        R.append(f'v_exp_f32 v{vDl+4+q}, -v{vDl+q}')
    R += exp_ops(par, t)
    for q in range(4): R.append(f'v_mul_f32 v{vl+q}, v{vl+q}, v{vDl+4+q}')
    R += [f's_branch K2_RESC_{t}']
    check_trace(R, f'rare{par}{t}{tn}', bool(os.environ.get('VERB')))
    return L + R

def rescale_o():
    R = []
    for q in range(4):
        if q in (0, 2): R.append('K2_RESC_c:' if q == 0 else 'K2_RESC_s:')
        for j0 in range(0, 32, 8):
            for j in range(8): R.append(f'v_accvgpr_read_b32 v{TMPV+j}, a{Or(q,0)+j0+j}')
            for j in range(8): R.append(f'v_mul_f32 v{TMPV+j}, v{TMPV+j}, v{vDl+4+q}')
            for j in range(8): R.append(f'v_accvgpr_write_b32 a{Or(q,0)+j0+j}, v{TMPV+j}')
    return R + ['s_nop 1', f's_setpc_b64 {sr(sRet,2)}']

K = 1024
XS = [[96*K, 104*K, 32*K, 40*K], [8*K, 24*K, 88*K, 120*K], [0, 16*K, 80*K, 112*K]]
WSL = [128*K, 64*K, 48*K]
vXd, vWd, vXr, vWr = 208, 212, 216, 222
QACC = 48
XF, WFq = 0, 64
def qacc(ft, tt): return QACC + 4 * (4 * ft + tt)
def xf(c, kbl, tt): return XF + 32 * (c & 1) + 16 * kbl + 4 * tt
def wf(c, kbl, ft): return WFq + 64 * (c & 1) + 32 * kbl + 4 * ft
sCk = 56
QROT = int(os.environ.get('K2_QROT', 0))
def q_dma(c):
    sl = c % 3
    it = []
    for ab, so in enumerate((sXa, sXb)):
        it.append([f's_add_u32 m0, s{sXs+sl}, {ab*4096} ; tag=C{c}', f's_add_u32 s{sT}, s{so}, s{sCk}'])
        for q in range(4): it.append([f'buffer_load_dwordx4 v{vXd+q}, {sr(sX,4)}, s{sT} offen offset:{q*1024} lds ; tag=C{c}'])
    it.append([f's_lshl_b32 s{sT}, s{sCk}, 12', f's_add_u32 m0, s{sW4}, {WSL[sl]} ; tag=C{c}', f's_add_u32 s{sT}, s{sT}, s{sWo}'])
    for q in range(4): it.append([f'buffer_load_dwordx4 v{vWd+q}, {sr(sWQ,4)}, s{sT} offen offset:{q*1024} lds ; tag=C{c}'])
    it[-1] += [f's_add_u32 s{sCk}, s{sCk}, 128', f's_and_b32 s{sCk}, s{sCk}, 1023']
    return it
def q_reads(c):
    sl = c % 3
    L = [f'ds_read_b128 {ar(xf(c,kbl,tt),4)}, v{vXr+2*sl+kbl} offset:{tt*2048}' for tt in range(4) for kbl in range(2)]
    W = []
    for ft in range(8):
        for kbl in range(2):
            for p in range(2):
                vb, off = wsl_addr(sl)
                W.append(f'ds_read_b64_tr_b16 {ar(wf(c,kbl,ft)+2*p,2)}, v{vWr+ft+8*vb} offset:{off + (32 * kbl + 4 * p) * 256}')
    return W[:4] + L + W[4:]
def wsl_addr(sl):
    a = WSL[sl]
    return (0, a - WB0) if a < WB1 else (1, a - WB1)
WB0, WB1 = 48 * K, 128 * K
def q_cvt(db):
    cv = []
    for tt in range(4):
        t0, t1 = qacc(2 * db, tt), qacc(2 * db + 1, tt); dst = Qr(tt, db)
        cv += [f'v_cvt_pk_bf16_f32 v{dst}, v{t0}, v{t0+1}', f'v_cvt_pk_bf16_f32 v{dst+1}, v{t0+2}, v{t0+3}', f'v_cvt_pk_bf16_f32 v{dst+2}, v{t1}, v{t1+1}', f'v_cvt_pk_bf16_f32 v{dst+3}, v{t1+2}, v{t1+3}']
    return cv
def q_setup():
    t = [240, 241, 242, 243, 244]
    L = []
    a = L.append
    a(f's_lshl_b32 s{sXa}, s{sI}, 17'); a(f's_lshl_b32 s{sT}, s{sW}, 15'); a(f's_sub_u32 s{sXb}, {15*128*1024}, s{sXa}')
    a(f's_add_u32 s{sXa}, s{sXa}, s{sT}'); a(f's_add_u32 s{sXb}, s{sXb}, s{sT}')
    a(f's_lshl_b32 s{sWo}, s{sH}, 8'); a(f's_lshl_b32 s{sT}, s{sW}, 17'); a(f's_add_u32 s{sWo}, s{sWo}, s{sT}')
    a(f's_mov_b32 s{sCk}, {128 if Q0PF else 0}')
    for sl in range(3):
        a(f's_mov_b32 s{sXs+sl}, {XS[sl][0]}')
        for w in range(1, 4):
            a(f's_cmp_eq_u32 s{sW}, {w}'); a(f's_cselect_b32 s{sXs+sl}, {XS[sl][w]}, s{sXs+sl}')
    a(f'v_lshrrev_b32 v{t[0]}, 3, v0'); a(f'v_lshlrev_b32 v{t[1]}, 10, v{t[0]}')
    a(f'v_lshrrev_b32 v{t[2]}, 4, v0'); a(f'v_and_b32 v{t[3]}, 7, v0'); a(f'v_xor_b32 v{t[2]}, v{t[2]}, v{t[3]}')
    for q in range(4):
        a(f'v_xor_b32 v{t[4]}, {4*(q&1)}, v{t[2]}'); a(f'v_lshl_add_u32 v{t[4]}, v{t[4]}, 4, v{t[1]}'); a(f'v_add_u32 v{vXd+q}, {q*7168}, v{t[4]}')
    a(f'v_lshrrev_b32 v{t[0]}, 4, v0'); a(f'v_lshlrev_b32 v{t[1]}, 13, v{t[0]}'); a(f'v_lshlrev_b32 v{t[0]}, 1, v{t[0]}')
    a(f'v_and_b32 v{t[2]}, 15, v0'); a(f'v_xor_b32 v{t[2]}, v{t[2]}, v{t[0]}')
    for q in range(4):
        a(f'v_xor_b32 v{t[4]}, {8*(q>>1)}, v{t[2]}'); a(f'v_lshl_add_u32 v{t[4]}, v{t[4]}, 4, v{t[1]}'); a(f'v_add_u32 v{vWd+q}, {q*(4*8192-1024)}, v{t[4]}')
    return L
def q_setup2():
    t = [240, 241, 242, 243, 244]
    L = []; a = L.append
    a(f'v_and_b32 v{t[0]}, 15, v0'); a(f'v_lshrrev_b32 v{t[1]}, 4, v0'); a(f'v_bfe_u32 v{t[2]}, v0, 1, 3'); a(f'v_lshlrev_b32 v{t[0]}, 7, v{t[0]}')
    for kbl in range(2):
        a(f'v_add_u32 v{t[4]}, {4*kbl}, v{t[1]}'); a(f'v_xor_b32 v{t[4]}, v{t[4]}, v{t[2]}'); a(f'v_lshl_add_u32 v{t[4]}, v{t[4]}, 4, v{t[0]}')
        for sl in range(3): a(f'v_add_u32 v{vXr+2*sl+kbl}, s{sXs+sl}, v{t[4]}')
    a(f'v_bfe_u32 v{t[0]}, v0, 2, 2'); a(f'v_lshl_add_u32 v{t[1]}, v{t[1]}, 3, v{t[0]}'); a(f'v_lshlrev_b32 v{t[1]}, 8, v{t[1]}')
    a(f'v_and_b32 v{t[2]}, 3, v0'); a(f'v_lshl_add_u32 v{t[1]}, v{t[2]}, 3, v{t[1]}'); a(f'v_bfe_u32 v{t[2]}, v0, 2, 3')
    for ft in range(8):
        a(f'v_xor_b32 v{t[3]}, {ft}, v{t[2]}'); a(f'v_lshl_add_u32 v{t[3]}, v{t[3]}, 5, v{t[1]}')
        a(f'v_add_u32 v{vWr+ft}, {WB0}, v{t[3]}'); a(f'v_add_u32 v{vWr+8+ft}, {WB1}, v{t[3]}')
    return L

def remap_i(dst, t0, t1):
    L = [f's_lshr_b32 s{dst}, s2, 5']
    if FUSE and os.environ.get('K2_REMAP', '1') == '1':
        L += [f's_bfe_u32 s{t0}, s2, 0x20001', f's_mov_b32 s{t1}, 0x06543217', f's_cmp_eq_u32 s{t0}, 1', f's_cselect_b32 s{t1}, 0x76043215, s{t1}',
              f's_lshl_b32 s{dst}, s{dst}, 2', f's_lshr_b32 s{dst}, s{t1}, s{dst}', f's_and_b32 s{dst}, s{dst}, 7']
    return L
def q0_early(sw, srdx, srdw):
    a_, b_, c_, d_ = 90, 91, 92, 93
    t0, t1, t2 = 14, 15, 26
    G = [[f's_mov_b32 s{srdx+2}, 0x200000', f's_mov_b32 s{srdw+2}, 0x400000'], remap_i(a_, b_, c_) + [f's_lshl_b32 s{a_}, s{a_}, 17'],
         [f's_lshl_b32 s{b_}, s{sw}, 15', f's_sub_u32 s{c_}, {15*128*1024}, s{a_}'], [f's_add_u32 s{a_}, s{a_}, s{b_}', f's_add_u32 s{c_}, s{c_}, s{b_}'], [f's_mov_b32 s{d_}, {XS[0][0]}']]
    for w in range(1, 4): G.append([f's_cmp_eq_u32 s{sw}, {w}', f's_cselect_b32 s{d_}, {XS[0][w]}, s{d_}'])
    for ab, so in enumerate((a_, c_)):
        G.append([f's_add_u32 m0, s{d_}, {ab*4096} ; tag=Q0', 's_nop 0'])
        G += [[f'buffer_load_dwordx4 v{6+q}, {sr(srdx,4)}, s{so} offen offset:{q*1024} lds ; tag=Q0'] for q in range(4)]
    G += [[f's_and_b32 s{a_}, s2, 31', f's_lshl_b32 s{a_}, s{a_}, 8'], [f's_lshl_b32 s{b_}, s{sw}, 17', f's_add_u32 s{a_}, s{a_}, s{b_}'], [f's_lshl_b32 s{b_}, s{sw}, 12', f's_add_u32 m0, s{b_}, {WSL[0]} ; tag=Q0'],
          [f'v_lshrrev_b32 v{t0}, 4, v0', f'v_lshlrev_b32 v{t1}, 13, v{t0}'], [f'v_lshlrev_b32 v{t0}, 1, v{t0}', f'v_and_b32 v{t2}, 15, v0'], [f'v_xor_b32 v{t2}, v{t2}, v{t0}']]
    for q in range(4):
        G += [[f'v_xor_b32 v{2+q}, {8*(q>>1)}, v{t2}', f'v_lshl_add_u32 v{2+q}, v{2+q}, 4, v{t1}'], [f'v_add_u32 v{2+q}, {q*(4*8192-1024)}, v{2+q}'],
              [f'buffer_load_dwordx4 v{2+q}, {sr(srdw,4)}, s{a_} offen offset:{q*1024} lds ; tag=Q0']]
    return G

def a_loads(which):
    if which == 0:
        return [[f's_mov_b32 s{sSW}, 65536']] + dma_part('K', 'c', 'K0') + [[f's_mov_b32 s{sSW}, 98304']] + dma_part('K', 'c', 'K0') + \
               [[f's_mov_b32 s{sSW}, 0']] + dma_part('V', 'c', 'U0') + dma_part('K', 'c', 'U0')
    return [[f's_mov_b32 s{sSW}, 32768']] + dma_part('V', 'c', 'U1') + dma_part('K', 'c', 'U1') + [[f's_mov_b32 s{sSW}, 65536'], [f's_mov_b32 s{sSR}, 32768']]

def wo_dma_a():
    t = [240, 241, 242, 243]
    it = [[f'v_lshrrev_b32 v{t[0]}, 5, v0', f'v_bfe_u32 v{t[1]}, v0, 1, 4', f'v_xor_b32 v{t[1]}, v{t[1]}, v{t[0]}', f'v_and_b32 v{t[2]}, 1, v0', f'v_lshlrev_b32 v{t[2]}, 4, v{t[2]}',
           f'v_lshl_add_u32 v{t[2]}, v{t[0]}, 10, v{t[2]}'],
          [f's_lshr_b32 s{sT+4}, s2, 1', f's_lshl_b32 s{sT+4}, s{sT+4}, 15', f's_and_b32 s{sT+5}, s2, 1', f's_lshl_b32 s{sT+5}, s{sT+5}, 9'],
          [f's_add_u32 s{sT+4}, s{sT+4}, s{sT+5}', f's_lshl_b32 s{sT+5}, s{sW}, 13', f's_add_u32 s{sT+4}, s{sT+4}, s{sT+5}']]
    for q in range(4):
        it.append([f'v_xor_b32 v{t[3]}, {2*q}, v{t[1]}', f'v_lshl_add_u32 v{t[3]}, v{t[3]}, 5, v{t[2]}', f's_add_u32 m0, s{sW4}, {128*K} ; tag=WO', f's_add_u32 s{sT+5}, s{sT+4}, {q*1024}',
                   f'buffer_load_dwordx4 v{t[3]}, {sr(sWO,4)}, s{sT+5} offen offset:{q*1024} lds ; tag=WO'])
    return it
def wo_dma_b():
    t = [240, 241]
    return [f'v_lshrrev_b32 v{t[0]}, 2, v0', f'v_lshlrev_b32 v{t[0]}, 10, v{t[0]}', f'v_and_b32 v{t[1]}, 3, v0', f'v_lshl_add_u32 v{t[0]}, v{t[1]}, 4, v{t[0]}',
            f's_lshr_b32 s{sT+4}, s2, 4', f's_lshl_b32 s{sT+4}, s{sT+4}, 15', f's_and_b32 s{sT+5}, s2, 15', f's_lshl_b32 s{sT+5}, s{sT+5}, 6', f's_add_u32 s{sT+4}, s{sT+4}, s{sT+5}',
            f's_and_b32 s{sT+5}, s{sW}, 1', f's_lshl_b32 s{sT+6}, s{sT+5}, 14', f's_add_u32 s{sT+4}, s{sT+4}, s{sT+6}', f's_lshl_b32 s{sT+5}, s{sT+5}, 10',
            f's_add_u32 m0, s{sT+5}, {144*K} ; tag=WO', 's_nop 0', f'buffer_load_dwordx4 v{t[0]}, {sr(sWB,4)}, s{sT+4} offen lds ; tag=WO']
def wo_fin():
    R = TMPV; a0, a1, a2 = TMPV + 20, TMPV + 21, TMPV + 22; t0, t1 = sT + 4, sT + 5
    L = [f'v_lshrrev_b32 v{a0}, 2, v0', f'v_and_b32 v{a1}, 3, v0', f'v_lshlrev_b32 v{a1}, 3, v{a1}', f'v_lshl_add_u32 v{a2}, v{a0}, 6, v{a1}', f'v_lshl_add_u32 v{a1}, v{a0}, 9, v{a1}',
         f'v_add_u32 v{a1}, {128*K}, v{a1}', f'v_and_b32 v{a0}, 7, v{a0}', f's_lshl_b32 s{t0}, s{sW}, 2', f'v_xor_b32 v{a0}, s{t0}, v{a0}',
         f's_and_b32 s{t0}, s{sW}, 1', f's_lshl_b32 s{t0}, s{t0}, 5', f's_add_u32 s{t0}, s{t0}, {144*K}', f'v_add_u32 v{a2}, s{t0}, v{a2}']
    for x in range(4):
        L += [f'v_xor_b32 v{a0+4+x}, {x}, v{a0}', f'v_lshl_add_u32 v{a0+4+x}, v{a0+4+x}, 5, v{a1}']
        for p in range(2): L.append(f'ds_read_b64_tr_b16 {vr(R+4*x+2*p,2)}, v{a0+4+x} offset:{p*8192}')
    for p in range(2): L.append(f'ds_read_b64_tr_b16 {vr(R+16+2*p,2)}, v{a2} offset:{p*1024}')
    L += [f's_and_b32 s{t0}, s2, 1', f's_lshl_b32 s{t0}, s{t0}, 2', f's_add_u32 s{t0}, s{t0}, s{sW}', f's_mul_i32 s{t0}, s{t0}, {TS}', f's_lshr_b32 s{t1}, s2, 1', f's_lshl_b32 s{t1}, s{t1}, 12',
          f's_add_u32 s{t0}, s{t0}, s{t1}', f's_add_u32 s{t0}, s{t0}, {WOA}']
    for x in range(4): L += [f'buffer_store_dwordx4 {vr(R+4*x,4)}, v{vL16}, {sr(sWS,4)}, s{t0} offen offset:{x*1024}{SF}']
    L += [f's_bfe_u32 s{t0}, s2, 0x30001', f's_mul_i32 s{t0}, s{t0}, {TS}', f's_and_b32 s{t1}, s2, 1', f's_lshl_b32 s{t1}, s{t1}, 11', f's_add_u32 s{t0}, s{t0}, s{t1}',
          f's_and_b32 s{t1}, s{sW}, 1', f's_lshl_b32 s{t1}, s{t1}, 10', f's_add_u32 s{t0}, s{t0}, s{t1}',
          f's_lshr_b32 s{t1}, s2, 4', f's_lshl_b32 s{t1}, s{t1}, 12', f's_add_u32 s{t0}, s{t0}, s{t1}', f's_add_u32 s{t0}, s{t0}, {WOA + 128*4096}',
          f'buffer_store_dwordx4 {vr(R+16,4)}, v{vL16}, {sr(sWS,4)}, s{t0} offen{SF}', 's_nop 0']
    return L

def qproj():
    QPF = int(os.environ.get('K2_QPF', 0))
    pf = [[f'v_lshlrev_b32 v245, 10, v0', f's_lshr_b32 s{sT+4}, s2, 3', f's_lshl_b32 s{sT+4}, s{sT+4}, 16'], [f's_lshl_b32 s{sT+5}, s{sW}, 7', f's_add_u32 s{sT+4}, s{sT+4}, s{sT+5}'],
          [f'buffer_load_dword v246, v245, {sr(sX,4)}, s{sT+4} offen offset:512 ; nodep'],
          [f'v_lshrrev_b32 v245, 1, v0', f'v_lshlrev_b32 v245, 13, v245', f'v_and_b32 v244, 1, v0', f'v_lshl_add_u32 v245, v244, 7, v245'],
          [f's_lshl_b32 s{sT+4}, s{sI}, 18', f's_lshl_b32 s{sT+5}, s{sH}, 8', f's_add_u32 s{sT+4}, s{sT+4}, s{sT+5}'], [f's_add_u32 s{sT+4}, s{sT+4}, {256*8192}'],
          [f'buffer_load_dword v246, v245, {sr(sWQ,4)}, s{sT+4} offen ; nodep']] if QPF else []
    zf = []
    if FUSE3:
        FW_, FC_, FB_ = FLG, FLG + 4096, FLG + 8192
        zf = [f's_lshl_b32 s{sT+4}, s{sI}, 7', f's_lshl_b32 s{sT+5}, s{sH}, 2', f's_add_u32 s{sT+5}, s{sT+5}, {FC_}', f's_add_u32 s{sFa}, s{sT+5}, s{sT+4}', f's_sub_u32 s{sT+5}, s{sT+5}, s{sT+4}', f's_add_u32 s{sT+5}, s{sT+5}, {15*128}',
              f's_lshl_b32 s{sT+4}, s2, 2', f's_add_u32 s{sFw}, s{sT+4}, {FW_}', f's_add_u32 s{sT+4}, s{sT+4}, {FB_}',
              f'v_mov_b32 v245, s{sFa}', f'v_writelane_b32 v245, s{sT+5}, 1', f'v_writelane_b32 v245, s{sFw}, 2', f'v_writelane_b32 v245, s{sT+4}, 3', 'v_mov_b32 v246, 0', f's_mov_b32 s{sSig}, 0',
              's_mov_b64 exec, 15', f'buffer_store_dword v246, v245, {sr(sWS,4)}, 0 offen sc1', 's_mov_b64 exec, -1']
    L = q_setup() + zf + (['s_barrier'] if FUSE and not Q0PF else []) + (q_setup2() + ['s_barrier'] + q_reads(0) + flat(q_dma(1)) if Q0PF else flat(q_dma(0)) + flat(q_dma(1)) + q_setup2())
    L += [f's_lshl_b32 s{sT+4}, s{sH}, 19', f's_add_u32 s{sK}, s{sT+4}, {KWS}', f's_add_u32 s{sV}, s{sT+4}, {VWS}', f's_mov_b32 s{sKc}, s{sK}', f's_add_u32 s{sK}, s{sK}, s{sW2}', f's_add_u32 s{sV}, s{sV}, s{sW2}',
          f's_add_u32 s{sK2}, s{sWS}, s{sK}', f's_addc_u32 s{sK2+1}, s{sWS+1}, 0', f's_add_u32 s{sV2}, s{sWS}, s{sV}', f's_addc_u32 s{sV2+1}, s{sWS+1}, 0']
    if not Q0PF: L += [';VMNEED C0', 's_barrier'] + q_reads(0)
    sig = []
    if FUSE:
        sig = [f's_cmp_lg_u32 s{sW}, 0', 's_cbranch_scc1 K2_NOSIG', 'v_mov_b32 v245, 1', 'v_mov_b32 v246, s94', 's_mov_b64 exec, 1',
              f'SKIP buffer_atomic_add v245, v246, {sr(sDB,4)}, 0 offen sc1', 's_mov_b64 exec, -1', 'K2_NOSIG:',
              f's_lshl_b32 s{sT+4}, s{sH}, 1', 'v_and_b32 v246, 1, v0', f'v_add_u32 v246, s{sT+4}, v246', 'v_mul_u32_u24 v246, 205, v246', 'v_lshrrev_b32 v246, 10, v246',
              'v_bfe_u32 v245, v0, 1, 1', 'v_mul_u32_u24 v245, 13, v245', 'v_add_lshl_u32 v246, v246, v245, 2', 'v_add_u32 v246, 128, v246']
    if not Q0PF: L += sig
    L += stamp()
    for c in range(8):
        mf = []; pre = {}
        def P(g, x): pre.setdefault(g, []).extend(x if isinstance(x, list) else [x])
        val = {}
        for ft in range(8):
            for tt in range(4):
                for kbl in range(2):
                    a = qacc(ft, tt)
                    cc = '0' if (c == 0 and kbl == 0) else vr(a, 4)
                    mf.append(f'{MF} {vr(a,4)}, {ar(wf(c,kbl,ft),4)}, {ar(xf(c,kbl,tt),4)}, {cc}')
        for g0 in range(0, 64, 16):
            f0 = g0 // 8
            P(g0 - 1 if g0 else (0, 'before'), f';NEED {ar(wf(c,0,f0),8)} {ar(wf(c,1,f0),8)}' + (f' {ar(xf(c,0,0),32)}' if g0 == 0 else ''))
        if c == 0:
            g = 0
            for it in q_dma(2):
                if g % 16 == 15: g += 1
                P(g, it); g += 1
            gb = 26
        else:
            gb = 0
        if 1 <= c <= 5: ex = ([[f's_cmp_lg_u32 s{sW}, 0', 's_cbranch_scc1 K2_NOPOLL', 'POLLL:', 'K2_NOPOLL:']] if FUSE and c == 5 else []) + q_dma(c + 2)
        elif c == 6:
            ex = a_loads(0)
            if FUSE:
                P((0, 'before'), [f's_cmp_lg_u32 s{sW}, 0', 's_cbranch_scc1 K2_POLLED', 'POLLW:', 'v_cmp_gt_u32 vcc, 8, v247', 's_cbranch_vccnz K2_SLOWP', 'K2_POLLED:'])
                STUBS.extend(['K2_SLOWP:', f's_mov_b32 s{sT+4}, 0x80000', 'K2_SP1:', f'buffer_load_dword v247, v246, {sr(sDB,4)}, 0 offen sc1', 's_waitcnt vmcnt(0)',
                              'v_cmp_gt_u32 vcc, 8, v247', 's_cbranch_vccz K2_POLLED', 's_sleep 16', f's_sub_u32 s{sT+4}, s{sT+4}, 1', f's_cmp_lg_u32 s{sT+4}, 0', 's_cbranch_scc1 K2_SP1', 's_branch K2_POLLED'])
        elif c == 7: ex = a_loads(1) + wo_dma_a() + [wo_dma_b()]
        else: ex = []
        if c < 7:
            P(gb, [f';VMNEED C{c+1}', 's_barrier'] + (sig if Q0PF and c == 0 else []))
            rds = q_reads(c + 1)
            seq = []; nr, ne = len(rds), len(ex)
            ri = ei = 0
            QB = int(os.environ.get('K2_QB', 1))
            while ri < nr or ei < ne:
                if ei < ne and (ri >= nr or QB == 1 or (QB == 2 and ri >= ei) or ei * nr <= ri * ne): seq.append(ex[ei]); ei += 1
                else: seq.append(rds[ri]); ri += 1
            g0 = gb + 1
            for k, x in enumerate(seq): P(g0 + k * (63 - g0) // len(seq), x)
        else:
            P(0, 's_barrier')
            for db in range(3):
                cv = q_cvt(db)
                for k in range(8): val[16 * db + 20 + k + (k > 3) * 0] = cv[2*k:2*k+2]
            P(60, [';VMNEED U0', 's_barrier', f'v_add_u32 v{vRd}, 65536, v{vL16}', f'v_add_u32 v{vRd+1}, 98304, v{vL16}'])
            for k, it in enumerate(ex): P(1 + k * 58 // len(ex), it)
        L += weave(mf, pre, val)
    return L

def a_prologue():
    L = []
    fr = qk_frags('c')
    L += [rd(g - 2, off, 0) for g, fu, off in fr] + [rd(g, off, 1) for g, fu, off in fr]
    L += [f'v_mov_b32 v{TMPB+j}, 0' for j in range(4)]
    L += [f'v_mov_b32 v{vd}, v{vq}'] + [f'v_cmp_gt_i32 {sr(sMk+2*j,2)}, {j}, v{vd}' for j in range(4)]
    L += q_cvt(3)
    zm = [f'v_mfma_f32_32x32x16_bf16 {ar(16*k,16)}, {vr(TMPB,4)}, {vr(TMPB,4)}, 0' for k in range(8)]
    L += ['s_nop 0'] + qk_mfmas('c', 0, czero=True, fr=lambda kt, db: ar(slot(32 + 16 * kt + 4 * db), 4)) + zm
    L += [f's_cmp_eq_u32 s{sI}, 0', f's_cselect_b32 s{sMq}, 0, -4096'] + mask_call(0, 'c') + deltas(0, 'c', False)
    for q in range(4):
        for j in range(4): L.append(f'v_sub_f32 v{NM+4*q+j}, 0, v{vDl+q}')
    V = [f'v_mov_b32 v{vl+q}, 0' for q in range(4)] + sub_tiles(0, 'c') + exp_ops(0, 'c')
    mf2 = qk_mfmas('c', 1)
    L += [f'v_mov_b32 v{vRd}, v{vL16}', ';LGKM0'] + ([';VMNEED WO'] if FUSE3 else []) + ['s_barrier'] + (wo_fin() if FUSE3 else [])
    rds = [rd(g, off, 0) for g, fu, off in pv_frags('c') if g < D]
    n = len(mf2)
    for k, m in enumerate(mf2):
        L.append(m)
        if k >= n - 2 * len(rds) and (n - k) % 2 == 0: L.append(rds[len(rds) - (n - k) // 2])
        L += V[len(V)*k//n:len(V)*(k+1)//n]
    return L

def fin_rows(which):
    t0, t1 = sT + 4, sT + 5
    q0 = 0 if which == 'a' else 2
    L = [f's_lshl_b32 s{t0}, s{sH}, 14', f's_add_u32 s{t0}, s{t0}, {CTX}', f's_and_b32 s{t1}, s{sW}, 1', f's_lshl_b32 s{t1}, s{t1}, 11', f's_add_u32 s{t0}, s{t0}, s{t1}', f's_lshr_b32 s{t1}, s{sW}, 1', f's_mul_i32 s{t1}, s{t1}, {TS}', f's_add_u32 s{t0}, s{t0}, s{t1}', f's_mul_i32 s{t1}, s{sI}, {2*TS}']
    L += [f's_add_u32 s{t0}, s{t0}, s{t1}'] if which == 'a' else [f's_sub_u32 s{t0}, s{t0}, s{t1}', f's_add_u32 s{t0}, s{t0}, {30*TS}']
    L += [f's_add_u32 s{t0+k}, s{t0}, {4096*k}' for k in range(1, 4)]
    for q in (q0, q0 + 1):
        L += xlane('v_add_f32', vl + q, vT) + [f'v_rcp_f32 v{vl+q}, v{vl+q}']
    for q in (q0, q0 + 1):
        for h in range(2):
            r = TMPV + 16 * h; p = TMPB + 8 * h
            for j in range(16): L.append(f'v_accvgpr_read_b32 v{r+j}, a{Or(q,4*h)+j}')
            for j in range(16): L.append(f'v_mul_f32 v{r+j}, v{r+j}, v{vl+q}')
            for j in range(8): L.append(f'v_cvt_pk_bf16_f32 v{p+j}, v{r+2*j}, v{r+2*j+1}')
            for x in range(2): L.append(f'buffer_store_dwordx4 {vr(p+4*x,4)}, v{vL16}, {sr(sWS,4)}, s{t0+2*h+x} offen offset:{(q&1)*1024}{SF}')
    return L

def last_pv():
    par = 1
    mf = pv_mfmas('s', par)
    frs = pv_frags('s')
    t0, t1 = sT + 4, sT + 5
    head = lupd('s') + [f's_lshl_b32 s{t0}, s{sH}, 14', f's_add_u32 s{t0}, s{t0}, {CTX}', f's_and_b32 s{t1}, s{sW}, 1', f's_lshl_b32 s{t1}, s{t1}, 11', f's_add_u32 s{t0}, s{t0}, s{t1}', f's_lshr_b32 s{t1}, s{sW}, 1', f's_mul_i32 s{t1}, s{t1}, {TS}', f's_add_u32 s{t0}, s{t0}, s{t1}', f's_mul_i32 s{t1}, s{sI}, {2*TS}'] + [f's_sub_u32 s{t0}, s{t0}, s{t1}', f's_add_u32 s{t0}, s{t0}, {30*TS}'] + [f's_add_u32 s{t0+k}, s{t0}, {4096*k}' for k in range(1, 4)]
    for sw in ('32', '16'):
        head += [f'v_mov_b32 v{vT}, v{vl+2}', f'v_mov_b32 v{vT+1}, v{vl+3}', 's_nop 0', f'v_permlane{sw}_swap_b32 v{vl+2}, v{vT}', f'v_permlane{sw}_swap_b32 v{vl+3}, v{vT+1}',
                 f'v_add_f32 v{vl+2}, v{vl+2}, v{vT}', f'v_add_f32 v{vl+3}, v{vl+3}, v{vT+1}']
    head += [f'v_rcp_f32 v{vl+2}, v{vl+2}', f'v_rcp_f32 v{vl+3}, v{vl+3}']
    def fin_db(db):
        X = []
        for q in (2, 3):
            r = TMPV + 8 * (q - 2) + 16 * (db & 1); p = TMPB + 4 * (q - 2) + 8 * (db & 1)
            X += [f'v_accvgpr_read_b32 v{r+j}, a{Or(q,2*db)+j}' for j in range(8)]
            X += [f'v_mul_f32 v{r+j}, v{r+j}, v{vl+q}' for j in range(8)]
            X += [f'v_cvt_pk_bf16_f32 v{p+j}, v{r+2*j}, v{r+2*j+1}' for j in range(4)]
            X += [f'buffer_store_dwordx4 {vr(p,4)}, v{vL16}, {sr(sWS,4)}, s{t0+db} offen offset:{(q&1)*1024}{SF}']
        return X
    L = []
    fill = head + ['#1'] + fin_db(0) + ['#2'] + fin_db(1) + ['#3'] + fin_db(2)
    fi = 0
    for g, m in enumerate(mf):
        if g % 8 == 0: L.append(';NEED ' + ' '.join(ar(slot(gg), 4) for gg, fu, off in frs if g <= fu < g + 8))
        L.append(m)
        for gg, fu, off in frs:
            if gg - D == g: L.append(rd(gg, off, par))
        n = 0
        while fi < len(fill) and n < 5:
            x = fill[fi]
            if x.startswith('#'):
                if g < 8 * int(x[1]) + 2: break
                fi += 1; continue
            L.append(x); fi += 1; n += 1
    L += [x for x in fill[fi:] if not x.startswith('#')] + ['s_nop 3'] + fin_db(3)
    return L

def hook(bit, saddr, uid):
    if not FUSE3: return []
    STUBS.extend([f'K2_H{uid}:', f's_bitset1_b32 s{sSig}, {bit}', f's_cmp_lg_u32 s{sW}, 0', f's_cbranch_scc1 K2_HR{uid}', f'v_mov_b32 v{vT}, 1', f'v_mov_b32 v{vT+1}, 0', 's_mov_b64 exec, 1',
                  f'buffer_store_dword v{vT}, v{vT+1}, {sr(sWS,4)}, s{saddr} offen sc1', 's_mov_b64 exec, -1', 's_nop 3', f's_branch K2_HR{uid}'])
    return [f's_bitcmp0_b32 s{sSig}, {bit}', f's_cbranch_scc1 K2_H{uid}', f'K2_HR{uid}:']

def gen_k2():
    if FUSE3: import tail as TAILM
    name = 'k2_kernel'
    L = []; a = L.append
    if not FUSE:
        a(f'.p2align 8\n.type {name},@function\n{name}:')
        a('s_cmp_ge_u32 s2, 256'); a('s_cbranch_scc1 K2_END')
        if os.environ.get('CPF', '1') == '1': L += code_prefetch('k2_kernel', 'k3_kernel', 'K2', 246, 247, 90, 8)
        a('s_load_dwordx2 s[4:5], s[0:1], 88'); a('s_load_dwordx2 s[6:7], s[0:1], 0'); a('s_load_dwordx2 s[56:57], s[0:1], 16'); a('s_load_dwordx2 s[68:69], s[0:1], 40'); a('s_load_dwordx2 s[76:77], s[0:1], 64')
        a('v_lshrrev_b32 v1, 6, v0'); a('v_and_b32 v0, 63, v0'); a(f'v_readfirstlane_b32 s{sW}, v1')
    else:
        for srd, p, n in ((sWO, 14, 0x400000), (sWB, 20, 0x80000), (sDB, 24, 256), (sWQ, 8, 0x400000), (sX, 4, 0x200000), (sWS, 26, 0x10000000)):
            a(f's_mov_b32 s{srd}, s{p}'); a(f's_mov_b32 s{srd+1}, s{p+1}'); a(f's_mov_b32 s{srd+2}, {hex(n)}'); a(f's_mov_b32 s{srd+3}, 0x20000')
        a(f's_mov_b64 s[96:97], s[22:23]')
        a(f's_mov_b32 s{sW}, s40')
        L += gstamp(6, sDB, 2, 3)
    a(f'v_lshlrev_b32 v{vL16}, 4, v0')
    if os.environ.get('K2_MAP') == '8x4':
        a(f's_bfe_u32 s{sH}, s2, 0x20001'); a(f's_lshl_b32 s{sH}, s{sH}, 3'); a(f's_bfe_u32 s{sT}, s2, 0x30003'); a(f's_add_u32 s{sH}, s{sH}, s{sT}')
        a(f's_lshr_b32 s{sI}, s2, 6'); a(f's_lshl_b32 s{sI}, s{sI}, 1'); a(f's_and_b32 s{sT}, s2, 1'); a(f's_add_u32 s{sI}, s{sI}, s{sT}')
    else:
        a(f's_and_b32 s{sH}, s2, 31'); L += remap_i(sI, sT, sT + 1)
    a(f's_lshl_b32 s{sW2}, s{sW}, 11'); a(f's_lshl_b32 s{sW4}, s{sW}, 12'); a(f's_add_u32 s{sW2K}, s{sW2}, 16384'); a(f's_add_u32 s{sW4K}, s{sW4}, 16384')
    a(f'v_mov_b32 v{vBig}, {f32(NEGBIG)}')
    a(f'v_and_b32 v{vq}, 15, v0'); a(f'v_lshrrev_b32 v{vT}, 4, v0'); a(f'v_lshlrev_b32 v{vT}, 2, v{vT}'); a(f'v_sub_u32 v{vq}, v{vq}, v{vT}')
    a('s_waitcnt lgkmcnt(0)')
    for srd, p, n in () if FUSE else ((sWS, 4, 0x10000000), (sX, 6, 0x200000), (sWQ, 56, 0x400000), (sWO, 68, 0x400000), (sWB, 76, 0x80000)):
        a(f's_mov_b32 s{srd}, s{p}'); a(f's_mov_b32 s{srd+1}, s{p+1}'); a(f's_mov_b32 s{srd+2}, {hex(n)}'); a(f's_mov_b32 s{srd+3}, 0x20000')
    if DIAG: a('s_mov_b32 s72, 0'); a(f'v_mov_b32 v{vDG}, 0'); a(f'v_mov_b32 v{vDG+2}, 0'); L += stamp()
    raw0 = qproj() + stamp() + gstamp(7, sDB, 16, 17) + gstamp(8, sDB, 16, 17, neg=True) + a_prologue() + stamp()
    skip = [x for x in raw0 if x.startswith('SKIP ')]
    pre = auto_waits([], [x if not x.startswith('SKIP ') else '.L_skip0:' for x in raw0])
    sub = {'.L_skip0:': skip[0][5:] if skip else None, 'POLLL:': f'buffer_load_dword v247, v246, {sr(sDB,4)}, 0 offen sc1', 'POLLW:': 's_waitcnt vmcnt(12)'}
    L += [sub.get(x, x) for x in pre]
    def two(uid, b0, b1): return body(0, *b0, uid + 'a') + body(1, *b1, uid + 'b')
    raw = {
     'CC': two('CC', ('c','c','c','c','c','c',None), ('c','c','c','c','c','c',None)),
     'X1': two('X1', ('c','c','c','c','c','c',None), ('c','c','c','c','c','c',0)),
     'X2': two('X2', ('c','c','c','c','c','s',1), ('c','c','c','c','c','s',2)),
     'X3': two('X3', ('c','c','s','c','s','s',3), ('c','s','s','s','s','s',None)) + ([] if FUSE3 else wo_fin()) + fin_rows('a'),
     'X3b': two('X3b', ('c','c','s','c','s',None,3), ('c','s','s','s','s',None,0)) + ([] if FUSE3 else wo_fin()) + fin_rows('a'),
     'SS': two('SS', ('s','s','s','s','s','s',None), ('s','s','s','s','s','s',None)),
     'X4': two('X4', ('s','s','s','s','s',None,None), ('s','s','s','s','s',None,0)),
     'TL': (TAILM.pre_polls() if FUSE3 else []) + body(0, 's','s',None,'s',None,None,2, 'TLa') + last_pv(),
    }
    preds = {'CC': ['pre', 'CC'], 'X1': ['CC'], 'X2': ['X1', 'pre'], 'X3': ['X2'], 'X3b': ['X2'], 'SS': ['X3', 'SS'], 'X4': ['SS'], 'TL': ['X4', 'X3b']}
    fin = {'pre': pre}
    for it in range(3):
        for k in raw:
            fin[k] = merge_min([auto_waits(fin[p], raw[k]) for p in preds[k] if p in fin])
    a(f's_cmp_eq_u32 s{sI}, 0'); a('s_cbranch_scc1 K2_X2')
    a(f's_lshl_b32 s{sCnt}, s{sI}, 1'); a(f's_sub_u32 s{sCnt}, s{sCnt}, 1')
    a('.p2align 6\nK2_CC:'); L += fin['CC'] + hook(0, sFw, 'a') + [f's_sub_u32 s{sCnt}, s{sCnt}, 1', f's_cmp_lg_u32 s{sCnt}, 0', 's_cbranch_scc1 K2_CC']
    L += stamp()
    L += fin['X1']
    a('K2_X2:'); L += adv64(sK2, f's{sW2}'); L += fin['X2'] + hook(0, sFw, 'b')
    L += adv64(sV2, f's{sW2}')
    a(f's_cmp_eq_u32 s{sI}, 7'); a('s_cbranch_scc1 K2_X3b')
    L += fin['X3']
    L += stamp()
    a(f's_lshl_b32 s{sCnt}, s{sI}, 1'); a(f's_sub_u32 s{sCnt}, 13, s{sCnt}')
    a('.p2align 6\nK2_SS:'); L += fin['SS'] + hook(1, sFa, 'c') + [f's_sub_u32 s{sCnt}, s{sCnt}, 1', f's_cmp_lg_u32 s{sCnt}, 0', 's_cbranch_scc1 K2_SS']
    L += stamp()
    L += fin['X4']
    a('K2_TL:'); L += fin['TL']
    L += stamp()
    epi = []
    L += epi
    if FUSE3:
        import tail, k3
        L += stamp() + gstamp(9, sDB, 16, 17) + gstamp(10, sDB, 16, 17, neg=True) + tail.gen_tail(fin['TL'] + epi) + k3.STUBS
    else:
        if DIAG:
            L += stamp(); a('s_waitcnt vmcnt(0)'); L += stamp()
            L += dstore(vDG, vDG + 1, vDG + 2, sW, sWS, 201)
        L += gstamp(9, sDB, 16, 17) + gstamp(10, sDB, 16, 17, neg=True)
        a('K2_END:'); a('s_endpgm')
    a('K2_X3b:'); L += fin['X3b']; a('s_branch K2_TL')
    L += STUBS
    for r in sorted(RARES): L += rare(*r)
    L += rescale_o()
    for m in sorted(MASKS): L += mask_routine(*m)
    f = fin
    check_trace(pre + ['s_nop 0'] * 2 + f['X2'] + f['X3'] + f['SS'] + f['SS'] + f['X4'] + f['TL'] + epi, 'k2 i=0')
    check_trace(pre + ['s_nop 0'] * 4 + f['CC'] + f['CC'] + f['X1'] + f['X2'] + f['X3b'] + f['TL'] + epi, 'k2 i=7')
    if FUSE: return L, '', None
    return L, kdesc(name, 512, 256), f'; @launch kernel={name} grid=(256,1,1) block=(256,1,1) lds=163840'
```

```python
from lib import *
from layout import *
import os, struct, math
def f32(x): return '0x%08x' % struct.unpack('<I', struct.pack('<f', x))[0]
DIAG = os.environ.get('DIAG')
MF = 'v_mfma_f32_16x16x32_bf16'
MF16 = 'v_mfma_f32_16x16x16_bf16'
CB = math.log2(math.e) * 0.25
NEGBIG = -1.0e30
FLGA = FLG + 4096
OSF = os.environ.get('K3_SF', ' sc1')
G2 = int(os.environ.get('K3_G2', 0))
BLDS = int(os.environ.get('K3_BLDS', 1))
GPRIO = int(os.environ.get('K3_GPRIO', 0))
sWS, sOUT, sW, sT, sMk = 8, 12, 16, 20, 40
vL16 = 1
STUBS = []
def flat(L):
    o = []
    for x in L:
        if isinstance(x, list): o += flat(x)
        else: o.append(x)
    return o
uidc = [0]
def poll(voff, soff, nlanes, tmp):
    uidc[0] += 1; u = uidc[0]
    return [f's_mov_b32 s{sT+8}, 0x40000', f's_mov_b64 exec, {hex((1 << nlanes) - 1)}', f'K3_PL{u}:',
            f'buffer_load_dword v{tmp}, v{voff}, {sr(sWS,4)}, s{soff} offen sc1', 's_waitcnt vmcnt(0)',
            f'v_cmp_eq_u32 vcc, 0, v{tmp}', f's_cbranch_vccz K3_PD{u}', 's_sleep 8', f's_sub_u32 s{sT+8}, s{sT+8}, 1', f's_cmp_lg_u32 s{sT+8}, 0', f's_cbranch_scc1 K3_PL{u}',
            f'K3_PD{u}:', 's_mov_b64 exec, -1']

def role_b(unit=2, fused=False, extra=(), raw=False):
    vG = (101, 102, 103)
    stamp = lambda: dstamp(*vG) if DIAG and not fused else []
    LF = ' sc1' if fused else ''
    S, CUP, CLO, ONE, BO, BL, PKD = 8, 80, 84, 88, 92, 96, 4
    vmx = [2, 100]
    vBig = 'v100' if False else None
    BK, BV, BQ = 0, 72, 144
    sP, sB0, sC, sBig = 17, 18, 19, 30
    L = []; a = L.append
    a(f's_and_b32 s{sP}, s{unit}, 15'); a(f's_lshr_b32 s{sB0}, s{unit}, 4'); a(f's_lshl_b32 s{sB0}, s{sB0}, 2'); a(f's_add_u32 s{sB0}, s{sB0}, s{sW}')
    t0, t1, t2 = sT, sT + 1, sT + 2
    a(f's_lshr_b32 s{t0}, s{sP}, 2'); a(f's_lshl_b32 s{t0}, s{t0}, 19'); a(f's_and_b32 s{t1}, s{sP}, 3'); a(f's_lshl_b32 s{t1}, s{t1}, 11')
    a(f's_add_u32 s{t0}, s{t0}, s{t1}'); a(f's_add_u32 s{t0}, s{t0}, {BWS}')
    if BLDS and not fused:
        a(f's_lshl_b32 s{t1}, s{sB0}, 13'); a(f's_add_u32 s{t1}, s{t1}, s{t0}')
        for u in range(2): a(f'buffer_load_dwordx4 {ar(BQ+4*u,4)}, v{vL16}, {sr(sWS,4)}, s{t1} offen offset:{u*1024}')
        a(f's_lshl_b32 s{t2}, s{sW}, 1'); a(f's_add_u32 s{t2}, s{t2}, s{sB0}')
        a(f's_mul_i32 s{t1}, s{sW}, {3*4096}')
        for kind in range(2):
            for b in range(3):
                r = sT + 10 + b
                if kind == 0: L += [f's_sub_i32 s{r}, s{t2}, {8-b}', f's_max_i32 s{r}, s{r}, 0', f's_lshl_b32 s{r}, s{r}, 13', f's_add_u32 s{r}, s{r}, s{t0}']
                L += [f's_add_u32 s{r}, s{r}, {8*256*1024}', f's_add_u32 m0, s{t1}, {b*4096 + kind*2048} ; tag=BL', 's_nop 0']
                for e in range(2): a(f'buffer_load_dwordx4 v{vL16}, {sr(sWS,4)}, s{r} offen offset:{e*1024} lds ; tag=BL')
        a(f's_lshl_b32 s{t1}, s{sW}, 12'); a(f'v_add_u32 v2, s{t1}, v{vL16}')
        L += [';VMNEED BL', 's_barrier']
        for bb in range(9):
            for kt in range(2): a(f'ds_read_b128 {ar(BK+8*bb+4*kt,4)}, v2 offset:{bb*4096+kt*1024}')
        for bb in range(9):
            for e in range(2): a(f'ds_read_b128 {ar(BV+8*bb+4*e,4)}, v2 offset:{bb*4096+2048+e*1024}')
    else:
        a(f's_lshl_b32 s{t1}, s{sB0}, 13'); a(f's_add_u32 s{t1}, s{t1}, s{t0}')
        for u in range(2): a(f'buffer_load_dwordx4 {ar(BQ+4*u,4)}, v{vL16}, {sr(sWS,4)}, s{t1} offen offset:{u*1024}{LF}')
        blk = []
        for bb in range(9):
            r = sT + 10 + bb
            L += [f's_sub_i32 s{r}, s{sB0}, {8-bb}', f's_max_i32 s{r}, s{r}, 0', f's_lshl_b32 s{r}, s{r}, 13', f's_add_u32 s{r}, s{r}, s{t0}', f's_add_u32 s{r}, s{r}, {8*256*1024}']
            for kt in range(2): a(f'buffer_load_dwordx4 {ar(BK+8*bb+4*kt,4)}, v{vL16}, {sr(sWS,4)}, s{r} offen offset:{kt*1024}{LF}')
        for bb in range(9):
            r = sT + 10 + bb
            a(f's_add_u32 s{r}, s{r}, {8*256*1024}')
            for e in range(2): a(f'buffer_load_dwordx4 {ar(BV+8*bb+4*e,4)}, v{vL16}, {sr(sWS,4)}, s{r} offen offset:{e*1024}{LF}')
    a(';BLOADED')
    a('v_and_b32 v2, 15, v0'); a('v_lshrrev_b32 v3, 4, v0'); a('v_lshlrev_b32 v3, 2, v3'); a('v_sub_u32 v2, v2, v3')
    a(f'v_mov_b32 v3, {f32(NEGBIG)}'); a('v_mov_b32 v4, 0'); a(f's_mov_b32 s{sBig}, {f32(NEGBIG)}'); a(f's_mov_b32 s{sC}, {f32(CB)}')
    for j in range(4): a(f'v_cmp_gt_i32 {sr(sMk+2*j,2)}, {j}, v2')
    for j in range(4):
        a(f'v_cndmask_b32 v{CLO+j}, v4, v3, {sr(sMk+2*j,2)}'); a(f'v_cndmask_b32 v{CUP+j}, v3, v4, {sr(sMk+2*j,2)}'); a(f'v_mov_b32 v{ONE+j}, 0x3f803f80')
    L += stamp()
    units = [(0, 0), (0, 1), (1, 0), (1, 1)]
    def qk(n, rel):
        u, e = units[n]
        s = S + 4 * rel
        c = vr(CUP, 4) if rel == u else (vr(CLO, 4) if rel == u + 16 else '0')
        m = f'{MF16} {vr(s,4)}, {ar(BK+4*rel+2*e,2)}, {ar(BQ+4*u+2*e,2)}, {c}'
        bb = rel // 2
        if bb < 8:
            STUBS.extend([f'K3_BI{n}_{rel}:'] + [f'v_mov_b32 v{s+j}, s{sBig}' for j in range(4)] + [f's_branch K3_BR{n}_{rel}'])
            return [f's_cmp_lt_u32 s{sB0}, {8-bb}', f's_cbranch_scc1 K3_BI{n}_{rel}', m, f'K3_BR{n}_{rel}:']
        return [m]
    def mx(n, rel, first):
        s = S + 4 * rel; m = vmx[n % 2]
        if first: return [f'v_max3_f32 v{m}, v{s}, v{s+1}, v{s+2}', f'v_max_f32 v{m}, v{m}, v{s+3}']
        return [f'v_max3_f32 v{m}, v{m}, v{s}, v{s+1}', f'v_max3_f32 v{m}, v{m}, v{s+2}, v{s+3}']
    def mxfin(n):
        m = vmx[n % 2]
        return ['v_mov_b32 v3, v%d' % m, 's_nop 1', f'v_permlane32_swap_b32 v{m}, v3', f'v_max_f32 v{m}, v{m}, v3',
                'v_mov_b32 v3, v%d' % m, 's_nop 1', f'v_permlane16_swap_b32 v{m}, v3', f'v_max_f32 v{m}, v{m}, v3', f'v_mul_f32 v{m}, s{sC}, v{m}']
    tiles = lambda n: list(range(units[n][0], units[n][0] + 17))
    T = tiles(0)
    for k, rel in enumerate(T):
        L += qk(0, rel)
        if k >= 3: L += mx(0, T[k-3], k == 3)
    L += ['s_nop 0'] + mx(0, T[-3], False) + ['s_nop 0'] + mx(0, T[-2], False) + ['s_nop 3'] + mx(0, T[-1], False) + mxfin(0)
    L += stamp()
    for n, (u, e) in enumerate(units):
        m = vmx[n % 2]; T = tiles(n)
        nxt = tiles(n + 1) if n < 3 else []
        F = lambda bb: [f'v_fma_f32 v{S+4*r+j}, v{S+4*r+j}, s{sC}, -v{m}' for r in (2*bb, 2*bb+1) if r in T for j in range(4)]
        E = lambda bb: [f'v_exp_f32 v{S+4*r+j}, v{S+4*r+j}' for r in (2*bb, 2*bb+1) if r in T for j in range(4)]
        def C(bb):
            b = S + 8 * bb; X = []
            for h in range(2):
                if 2 * bb + h in T: X += [f'v_cvt_pk_bf16_f32 v{b+2*h}, v{b+4*h}, v{b+4*h+1}', f'v_cvt_pk_bf16_f32 v{b+2*h+1}, v{b+4*h+2}, v{b+4*h+3}']
                else: X += [f'v_mov_b32 v{b+2*h}, 0', f'v_mov_b32 v{b+2*h+1}, 0']
            return X
        def PV(bb):
            b = S + 8 * bb
            return [f'{MF} {vr(BO,4)}, {ar(BV+8*bb+4*e,4)}, {vr(b,4)}, ' + ('0' if bb == 0 else vr(BO, 4)),
                    f'{MF} {vr(BL,4)}, {vr(ONE,4)}, {vr(b,4)}, ' + ('0' if bb == 0 else vr(BL, 4))]
        firstmx = [True]
        def nqk(bb): return flat([qk(n + 1, r) for r in (2*bb, 2*bb+1) if r in nxt])
        def nmx(bb):
            X = []
            for r in (2*bb, 2*bb+1):
                if r in nxt:
                    X += mx(n + 1, r, firstmx[0]); firstmx[0] = False
            return X
        L += F(0) + E(0)
        for bb in range(9):
            if bb < 8:
                e_ = E(bb + 1); pv = PV(bb)
                L += F(bb + 1) + C(bb) + e_[:2] + [pv[0]] + e_[2:4] + [pv[1]] + e_[4:6] + nqk(bb) + e_[6:]
                if bb >= 1: L += nmx(bb - 1)
            else:
                L += ['s_nop 0'] + C(bb) + ['s_nop 1'] + PV(bb) + nqk(bb) + nmx(7)
        if nxt: L += ['s_nop 3'] + nmx(8) + mxfin(n + 1)
        else: L += ['s_nop 7']
        L += [f'v_rcp_f32 v3, v{BL}', 's_nop 0'] + [f'v_mul_f32 v{BO+j}, v{BO+j}, v3' for j in range(4)]
        L += [f'v_cvt_pk_bf16_f32 v{PKD+2*e}, v{BO}, v{BO+1}', f'v_cvt_pk_bf16_f32 v{PKD+2*e+1}, v{BO+2}, v{BO+3}']
        if e == 1:
            L += [f's_lshr_b32 s{t0}, s{sB0}, 1', f's_mul_i32 s{t0}, s{t0}, {TS}', f's_and_b32 s{t1}, s{sB0}, 1', f's_lshl_b32 s{t1}, s{t1}, 11', f's_add_u32 s{t0}, s{t0}, s{t1}', f's_lshl_b32 s{t1}, s{sP}, 12', f's_add_u32 s{t0}, s{t0}, s{t1}', f's_add_u32 s{t0}, s{t0}, {CTX + 128*4096 + u*1024}',
                  f'buffer_store_dwordx4 {vr(PKD,4)}, v{vL16}, {sr(sWS,4)}, s{t0} offen sc1', 's_nop 0']
    if raw: return L
    if extra:
        idx = [k for k, x in enumerate(L) if x.startswith(('v_exp', 'v_fma', 'v_mov_b32 v8'))]
        idx = idx[:int(len(idx) * 0.8)]
        n0 = 20
        pos = {}
        for k, g in enumerate(extra):
            p = idx[0] if k < n0 else idx[(k - n0 + 1) * (len(idx) - 1) // (len(extra) - n0)]
            pos.setdefault(p, []).extend(g)
        L2 = []
        for k, x in enumerate(L):
            L2.append(x); L2 += pos.get(k, [])
        L = L2
    L = auto_waits([], L)
    check_trace(L, 'k3 B')
    if fused: return L
    L += stamp()
    L += ['s_waitcnt vmcnt(0)', 's_barrier', f's_cmp_lg_u32 s{sW}, 0', 's_cbranch_scc1 K3_BEND',
          f's_lshl_b32 s{t0}, s2, 2', f's_add_u32 s{t0}, s{t0}, {FLG}', 'v_mov_b32 v2, 1', 'v_mov_b32 v3, 0', 's_mov_b64 exec, 1',
          f'buffer_store_dword v2, v3, {sr(sWS,4)}, s{t0} offen sc1', 's_mov_b64 exec, -1', 'K3_BEND:']
    if DIAG: L += stamp() + dstore(*vG, sW, sWS, 202)
    L += ['s_endpgm']
    return L

NF = 4
def role_g():
    vG = (101, 102, 103)
    stamp = lambda: dstamp(*vG) if DIAG else []
    TMP = 76
    sQ, sM = 17, 18
    sC0, sM0, sC1, sM1 = 44, 48, 52, 56
    def acc(part, mt, qt): return 64 * part + 4 * (4 * mt + qt)
    def slot_of(kb): return kb % 5 if kb < 33 else kb - 33
    def fr(kb, k):
        sl = slot_of(kb)
        if sl < 2: return vr(12 + 32 * sl + 4 * k, 4)
        if sl == 2: return ar(128 + 4 * k, 4) if k < 6 else vr(92 + 4 * (k - 6), 4)
        return ar(64 + 32 * (sl - 3) + 4 * k, 4)
    L = []; a = L.append
    t0, t1, t2 = sT, sT + 1, sT + 2
    LM = 2; LQ = 3
    a(f's_sub_u32 s{t2}, s2, 256'); a(f's_and_b32 s{t0}, s{t2}, 7'); a(f's_lshr_b32 s{t2}, s{t2}, 3')
    a(f's_lshr_b32 s{sQ}, s{t0}, 1'); a(f's_lshl_b32 s{sQ}, s{sQ}, 3'); a(f's_and_b32 s{t1}, s{t2}, 7'); a(f's_add_u32 s{sQ}, s{sQ}, s{t1}')
    a(f's_and_b32 s{sM}, s{t0}, 1'); a(f's_lshl_b32 s{sM}, s{sM}, 2'); a(f's_lshr_b32 s{t1}, s{t2}, 3'); a(f's_add_u32 s{sM}, s{sM}, s{t1}')
    sXc, sXm = 44, 45
    a(f's_mul_i32 s{sXc}, s{sQ}, {TS}'); a(f's_add_u32 s{sXc}, s{sXc}, {CTX}'); a(f's_mul_i32 s{sXm}, s{sM}, {TS}'); a(f's_add_u32 s{sXm}, s{sXm}, {WOA}')
    a(f's_lshl_b32 s{t0}, s{sW}, 14'); a(f's_add_u32 s{t0}, s{t0}, {128*4096}'); a(f's_add_u32 s46, s{sXc}, s{t0}'); a(f's_add_u32 s47, s{sXm}, s{t0}')
    IL = int(os.environ.get('K3_IL', 0))
    a(f's_lshl_b32 s{t0}, s{sW}, {12 if IL else 17}'); a(f's_add_u32 s{sXc}, s{sXc}, s{t0}'); a(f's_add_u32 s{sXm}, s{sXm}, s{t0}')
    LPF = 0
    NK = 36
    def loads(kb):
        LFc, LFw = os.environ.get('K3_LFC', ''), os.environ.get('K3_LFW', '')
        c, m, fl, st = (sXc, sXm, LFc, 16384 if IL else 4096) if kb < 32 else (46, 47, ' sc1', 4096)
        X = [[f'buffer_load_dwordx4 {fr(kb,4+j)}, v{vL16}, {sr(sWS,4)}, s{m} offen offset:{j*1024}{LFw}'] for j in range(4)]
        X += [[f'buffer_load_dwordx4 {fr(kb,j)}, v{vL16}, {sr(sWS,4)}, s{c} offen offset:{j*1024}{fl}'] for j in range(4)]
        X[-1] += [f's_add_u32 s{c}, s{c}, {st}', f's_add_u32 s{m}, s{m}, {st}']
        return X
    after = {}
    for kb in range(NK):
        prev = [k for k in range(kb) if slot_of(k) == slot_of(kb)]
        after.setdefault(prev[-1] if prev else -1, []).append(kb)
    for kb in after[-1]:
        L += flat(loads(kb))
        if LPF and kb == 1:
            for g in range(2, LPF + 1): L += touch(g) if False else []
    if LPF:
        for g in range(int(os.environ.get('K3_LP0', 1)), LPF + 1): L += touch(g)
    L += ['v_and_b32 v2, 15, v0', 'v_lshlrev_b32 v2, 2, v2', f's_lshr_b32 s{t2}, s{sQ}, 1', f's_lshl_b32 s{t2}, s{t2}, 6', f's_add_u32 s{t2}, s{t2}, {FLG}']
    L += stamp()
    for kb in range(NK):
        part = 0 if kb < 32 else 1
        mf = []
        for mt in range(4):
            for qt in range(4):
                d = acc(part, mt, qt)
                mf.append(f'{MF} {ar(d,4)}, {fr(kb,4+mt)}, {fr(kb,qt)}, ' + ('0' if kb in (0, 32) else ar(d, 4)))
        L += mf
        if LPF and kb % 4 == 0 and kb // 4 + LPF + 1 < 8: L += touch(kb // 4 + LPF + 1)
        PM = int(os.environ.get('K3_PM', 1)); PK = int(os.environ.get('K3_PK', 23))
        if kb == PK and PM == 0: L.append(f'buffer_load_dword v3, v2, {sr(sWS,4)}, s{t2} offen sc1')
        if kb == PK and PM == 2: L.append(f'buffer_load_dword v3, v2, {sr(sWS,4)}, s{t2} offen')
        if kb == PK and PM == 1: L += [f's_cmp_lg_u32 s{sW}, 0', 's_cbranch_scc1 K3_NP', 'POLL0:', 'K3_NP:']
        for k2 in after.get(kb, []):
            if k2 == 32:
                if PM == 1: L += [f's_cmp_lg_u32 s{sW}, 0', 's_cbranch_scc1 K3_POLLED', f's_waitcnt vmcnt({8*(27-PK)})', 'v_cmp_eq_u32 vcc, 0, v3', 's_cbranch_vccnz K3_SLOWPOLL', 'K3_POLLED:', 's_barrier']
                else: L += ['v_cmp_eq_u32 vcc, 0, v3', 's_cbranch_vccnz K3_SLOWPOLL', 'K3_POLLED:']
                STUBS.extend(['K3_SLOWPOLL:'] + poll(2, t2, 16, 3) + ['s_branch K3_POLLED'])
            L += flat(loads(k2))
    L.append('s_nop 7')
    p1 = auto_waits([], [x for x in L if not x.startswith('s_waitcnt vmcnt(' + str(8*(27-int(os.environ.get('K3_PK', 23))))) ] ) if False else auto_waits([], L)
    p1 = [x if x != 'POLL0:' else f'buffer_load_dword v3, v2, {sr(sWS,4)}, s{t2} offen sc1' for x in p1]
    G = [f's_lshl_b32 s{t0}, s{sW}, 14', f'v_add_u32 v{TMP}, s{t0}, v{vL16}', f's_lshl_b32 s{t0}, s{sW}, 10', f'v_add_u32 v{TMP+1}, s{t0}, v{vL16}']
    vo = 2
    G += [f'v_and_b32 v{vo}, 15, v0', f'v_lshlrev_b32 v{vo}, 11, v{vo}', f'v_bfe_u32 v3, v0, 4, 1', f'v_lshl_add_u32 v{vo}, v3, 5, v{vo}', f'v_lshrrev_b32 v3, 5, v0', f'v_lshl_add_u32 v{vo}, v3, 4, v{vo}',
          f's_lshl_b32 s{t0}, s{sQ}, 2', f's_add_u32 s{t0}, s{t0}, s{sW}', f's_lshl_b32 s{t0}, s{t0}, 15', f's_lshl_b32 s{t1}, s{sM}, 7', f's_add_u32 s{t0}, s{t0}, s{t1}']
    for part in range(2):
        G += [f'ds_write_b128 v{TMP}, {ar(64*part+4*k,4)} offset:{k*1024}' for k in range(16)]
        G += ['s_waitcnt lgkmcnt(0)', 's_barrier']
        for w in range(4):
            for mt in range(4): G.append(f'ds_read_b128 {vr(12+16*w+4*mt,4)}, v{TMP+1} offset:{w*16384+mt*4096}')
        if part == 0: G += [';LGKM0', 's_barrier']
        for j in range(16): G.append(f'v_add_f32 v{12+j}, v{12+j}, v{28+j}')
        for j in range(16): G.append(f'v_add_f32 v{44+j}, v{44+j}, v{60+j}')
        for j in range(16): G.append(f'v_add_f32 v{12+j}, v{12+j}, v{44+j}')
        P0 = TMP + 4 + 8 * part
        for mt in range(4):
            G += [f'v_cvt_pk_bf16_f32 v{P0+4*(mt>>1)+2*(mt&1)}, v{12+4*mt}, v{12+4*mt+1}', f'v_cvt_pk_bf16_f32 v{P0+4*(mt>>1)+2*(mt&1)+1}, v{12+4*mt+2}, v{12+4*mt+3}']
        G.append('s_nop 1')
        for pr in range(2):
            b = P0 + 4 * pr
            G += [f'v_permlane16_swap_b32 v{b}, v{b+2}', f'v_permlane16_swap_b32 v{b+1}, v{b+3}']
        for pr in range(2):
            G.append(f'buffer_store_dwordx4 {vr(P0+4*pr,4)}, v{vo}, {sr(sOUT,4)}, s{t0} offen offset:{part*1024+pr*64}{OSF}')
    G = auto_waits([], G)
    check_trace(p1 + G, 'k3 G')
    R = p1 + stamp() + G
    if DIAG: R += stamp() + ['s_waitcnt vmcnt(0)'] + stamp() + dstore(*vG, sW, sWS, 202)
    return R + ['s_endpgm']

NR = int(os.environ.get('K3_NR', 18))
def role_g2():
    vG = (101, 102, 103)
    stamp = lambda: dstamp(*vG) if DIAG else []
    vC, vD, vR, vPa, vPv, vE = 2, 10, 14, 15, 16, 8
    sQ, sM, sS, sC, sWo, sL, sPr, sC2 = 17, 18, 19, 44, 45, 46, 47, 56
    t0, t1, t2 = sT, sT + 1, sT + 2
    def acc(qt, mt): return 4 * (4 * qt + mt)
    def F(k): return vr(20 + 4 * k, 4) if k < 20 else ar(128 + 4 * (k - 20), 4)
    def cf(n, qt): return F(6 * (n % 3) + qt) if qt < 6 else F(18 + 2 * (n % 2) + qt - 6)
    def wr(mt): return F(22 + mt)
    H = []; a = H.append
    a(f's_sub_u32 s{t2}, s2, 256'); a(f's_and_b32 s{sS}, s{t2}, 1')
    a(f's_bfe_u32 s{sQ}, s{t2}, 0x10002'); a(f's_lshl_b32 s{sQ}, s{sQ}, 3'); a(f's_bfe_u32 s{t1}, s{t2}, 0x30003'); a(f's_add_u32 s{sQ}, s{sQ}, s{t1}')
    a(f's_bfe_u32 s{sM}, s{t2}, 0x10001'); a(f's_lshl_b32 s{sM}, s{sM}, 2'); a(f's_lshr_b32 s{t1}, s{t2}, 6'); a(f's_add_u32 s{sM}, s{sM}, s{t1}')
    a(f's_mul_i32 s{t0}, s{sW}, {NR}'); a(f's_mul_i32 s{t1}, s{sW}, {32-NR}'); a(f's_add_u32 s{t1}, s{t1}, {4*NR}')
    a(f's_cmp_eq_u32 s{sS}, 0'); a(f's_cselect_b32 s{t0}, s{t0}, s{t1}'); a(f's_lshl_b32 s{t0}, s{t0}, 10')
    a(f's_mul_i32 s{sC}, s{sQ}, {8*CTX_S}'); a(f's_add_u32 s{sC}, s{sC}, {CTX}'); a(f's_mul_i32 s{sWo}, s{sM}, {4*WOA_S}'); a(f's_add_u32 s{sWo}, s{sWo}, {WOA}')
    a(f's_lshl_b32 s{t1}, s{sW}, 12'); a(f's_add_u32 s{t1}, s{t1}, {128*1024}'); a(f's_add_u32 s48, s{sC}, s{t1}'); a(f's_add_u32 s49, s{sWo}, s{t1}')
    a(f's_add_u32 s{sC}, s{sC}, s{t0}'); a(f's_add_u32 s{sWo}, s{sWo}, s{t0}'); a(f's_mov_b32 s{sC2}, s{sC}')
    a(f's_mul_i32 s{sL}, s{sW}, 18432'); a(f'v_add_u32 v{vR}, s{sL}, v{vL16}')
    for j in range(8): a(f'v_add_u32 v{vC+j}, {j*CTX_S - (1024 if j == 7 else 0)}, v{vL16}')
    for j in range(4): a(f'v_add_u32 v{vD+j}, {j*(WOA_S-1024)}, v{vL16}')
    a(f's_lshl_b32 s{sPr}, s{sQ}, 3'); a(f's_add_u32 s{sPr}, s{sPr}, s{sM}')
    a(f's_cmp_eq_u32 s{sS}, 1'); a('s_cbranch_scc1 K3_PROD')
    def lc(n, qt):
        X = [f'buffer_load_dwordx4 {cf(n,qt)}, v{vC+qt}, {sr(sWS,4)}, s{sC} offen offset:{(n%4)*1024}']
        if n % 4 == 3 and qt == 5: X.append(f's_add_u32 s{sC}, s{sC}, 4096')
        return X
    def dw(n):
        tg = f' ; tag=O{n%3}'
        return [f's_add_u32 m0, s{sL}, {(n%3)*6144}' + tg, 's_nop 0'] + [f'buffer_load_dwordx4 v{vD+j}, {sr(sWS,4)}, s{sWo} offen offset:{j*1024} lds' + tg for j in range(4)] + \
               [f's_add_u32 m0, s{sL}, {(n%3)*6144+4096}' + tg, f's_add_u32 s{sWo}, s{sWo}, 1024'] + \
               [f'buffer_load_dwordx4 v{vE+j}, {sr(sWS,4)}, s{sC2} offen offset:{j*1024} lds' + tg for j in range(2)] + [f's_add_u32 s{sC2}, s{sC2}, 1024']
    def rw(n, mt): return f'ds_read_b128 {wr(mt)}, v{vR} offset:{(n%3)*6144+mt*1024}'
    def rc(n): return [f'ds_read_b128 {cf(n,6+j)}, v{vR} offset:{(n%3)*6144+4096+j*1024}' for j in range(2)]
    def stream(N, hooks):
        L = []
        for n in range(3): L += dw(n) + flat([lc(n, q) for q in range(6)])
        L += stamp() + [';VMNEED O0'] + [rw(0, mt) for mt in range(4)] + rc(0)
        for n in range(N):
            for mt in range(4):
                for qt in range(8):
                    d = acc(qt, mt)
                    L.append(f'{MF} {ar(d,4)}, {wr(mt)}, {cf(n,qt)}, ' + ('0' if n == 0 else ar(d, 4)))
                    if mt == 3 and qt == 0 and n + 3 < N: L += dw(n + 3)
                    if mt == 3 and qt < 6 and n + 3 < N: L += lc(n + 3, qt)
                if n + 1 < N:
                    if mt == 0: L += [f';VMNEED O{(n+1)%3}'] + rc(n + 1)
                    L.append(rw(n + 1, mt))
            L += hooks.get(n, [])
        return L
    vo, vW, vRd_ = 2, 3, 4
    def red_setup():
        return [f's_lshl_b32 s{t0}, s{sW}, 14', f'v_add_u32 v{vW}, s{t0}, v{vL16}', f's_lshl_b32 s{t0}, s{sW}, 12', f'v_add_u32 v{vRd_}, s{t0}, v{vL16}']
    RG = {}
    def reduce(r):
        SUM, TA, TB = RG['S'], RG['A'], RG['B']
        X = ['s_barrier']
        for q in range(4):
            for mt in range(4): X.append(f'ds_write_b128 v{vW}, {ar(acc(2*q+r,mt),4)} offset:{(4*q+mt)*1024}')
        X += [';LGKM0', 's_barrier']
        rd = lambda w, base: [f'ds_read_b128 {vr(base[mt],4)}, v{vRd_} offset:{w*16384+mt*1024}' for mt in range(4)]
        add = lambda T: [f'v_add_f32 v{SUM[mt]+j}, v{SUM[mt]+j}, v{T[mt]+j}' for mt in range(4) for j in range(4)]
        return X + rd(0, SUM) + rd(1, TA) + rd(2, TB) + add(TA) + rd(3, TA) + add(TB) + add(TA)
    def out_setup():
        return [f'v_and_b32 v{vo}, 15, v0', f'v_lshlrev_b32 v{vo}, 11, v{vo}', 'v_bfe_u32 v5, v0, 4, 1', f'v_lshl_add_u32 v{vo}, v5, 5, v{vo}', 'v_lshrrev_b32 v5, 5, v0', f'v_lshl_add_u32 v{vo}, v5, 4, v{vo}',
                f's_lshl_b32 s{t1}, s{sQ}, 2', f's_add_u32 s{t1}, s{t1}, s{sW}', f's_lshl_b32 s{t1}, s{t1}, 16', f's_lshl_b32 s{t2}, s{sM}, 7', f's_add_u32 s{t1}, s{t1}, s{t2}']
    def out_store(r, part):
        P0 = 8 + 0 * r
        X = []
        for mt in range(4):
            sm = RG['S'][mt]
            X += [f'v_cvt_pk_bf16_f32 v{P0+4*(mt>>1)+2*(mt&1)}, v{sm}, v{sm+1}', f'v_cvt_pk_bf16_f32 v{P0+4*(mt>>1)+2*(mt&1)+1}, v{sm+2}, v{sm+3}']
        X.append('s_nop 1')
        for pr in range(2): X += [f'v_permlane16_swap_b32 v{P0+4*pr}, v{P0+4*pr+2}', f'v_permlane16_swap_b32 v{P0+4*pr+1}, v{P0+4*pr+3}']
        for pr in range(2): X.append(f'buffer_store_dwordx4 {vr(P0+4*pr,4)}, v{vo}, {sr(sOUT,4)}, s{t1} offen offset:{part*1024+pr*64}{OSF}')
        if r == 0: X.append(f's_add_u32 s{t1}, s{t1}, 32768')
        return X
    part_addr = [f's_lshl_b32 s50, s{sPr}, 15', f's_lshl_b32 s{t0}, s{sW}, 13', f's_add_u32 s50, s50, s{t0}', f's_add_u32 s50, s50, {PART}', 's_add_u32 s51, s50, 4096',
                 f's_lshl_b32 s52, s{sPr}, 7', f's_add_u32 s52, s52, {FLGA}']
    fin = lambda: (stamp() + ['s_waitcnt vmcnt(0)'] + stamp() + dstore(*vG, sW, sWS, 202) if DIAG else []) + ['s_endpgm']
    STUBS.extend(['K3_SLOWA:'] + poll(vPa, 52, 1, vPv) + ['s_branch K3_AOK'])
    hk = {NR - 4: part_addr + [f'v_mov_b32 v{vPa}, 0', f'buffer_load_dword v{vPv}, v{vPa}, {sr(sWS,4)}, s52 offen sc1']}
    xt = [6 * ((NR - 3) % 3) + k for k in range(6)] + [6 * ((NR - 2) % 3) + k for k in range(2)]
    rest = [k for k in range(20) if k not in xt]
    reg = lambda ks: [20 + 4 * k for k in ks]
    XT = reg(xt)
    hk[NR - 2] = [f'v_cmp_eq_u32 vcc, 0, v{vPv}', 's_cbranch_vccnz K3_SLOWA', 'K3_AOK:'] + \
        [f'buffer_load_dwordx4 {vr(XT[4*r+mt],4)}, v{vL16}, {sr(sWS,4)}, s{50+r} offen offset:{mt*1024} sc1' for r in range(2) for mt in range(4)]
    RG.update(S=reg(rest[0:4]), A=reg(rest[4:8]), B=reg(rest[8:12]))
    R = stream(NR, hk) + stamp() + red_setup() + out_setup()
    for r in range(2):
        R += reduce(r) + [f'v_add_f32 v{RG["S"][mt]+j}, v{RG["S"][mt]+j}, v{XT[4*r+mt]+j}' for mt in range(4) for j in range(4)] + out_store(r, 0)
    R = auto_waits([], R); check_trace(R, 'k3 red')
    NP = 32 - NR
    RG.update(S=[84, 88, 92, 96], A=[20, 24, 28, 32], B=[36, 40, 44, 48]); SUM = 84
    hk = {NP - 3: part_addr + [f's_lshl_b32 s53, s{sQ}, 6', f's_add_u32 s53, s53, {FLG}', f'v_and_b32 v{vPa}, 15, v0', f'v_lshlrev_b32 v{vPa}, 2, v{vPa}',
                               f'buffer_load_dword v{vPv}, v{vPa}, {sr(sWS,4)}, s53 offen sc1']}
    def bf(n, k):
        if n % 2 == 0: return vr(52 + 4 * k, 4) if k < 8 else ar(128 + 4 * (k - 8), 4)
        return vr(20 + 4 * k, 4) if k < 8 else vr(84 + 4 * (k - 8), 4)
    def lb(n):
        return [f'buffer_load_dwordx4 {bf(n,8+j)}, v{6+j}, {sr(sWS,4)}, s49 offen offset:{n*1024}' for j in range(4)] + \
               [f'buffer_load_dwordx4 {bf(n,q)}, v{(2 if False else 0)+BV0+q}, {sr(sWS,4)}, s48 offen offset:{n*1024} sc1' for q in range(8)]
    BV0 = 10
    lbw = lambda n: lb(n)[:4]
    lbo = lambda n: lb(n)[4:]
    P = stream(NP, hk) + stamp()
    P += [f'v_mov_b32 v100, v{vPv}', f'v_mov_b32 v19, v{vPa}'] + [f'v_add_u32 v{BV0+7}, 1024, v{vC+7}'] + [f'v_mov_b32 v{BV0+7-j}, v{vC+7-j}' for j in range(1, 8)] + [f'v_mov_b32 v{6+j}, v{BV0+j}' for j in range(4)]
    P += lbw(0) + [f'v_cmp_eq_u32 vcc, 0, v100', 's_cbranch_vccnz K3_LATEB'] + ['EARLY0:'] + ['K3_LATEB:', 's_mov_b64 s[54:55], vcc'] + red_setup()
    for r in range(2):
        P += reduce(r) + [f'buffer_store_dwordx4 {vr(SUM+4*mt,4)}, v{vL16}, {sr(sWS,4)}, s{50+r} offen offset:{mt*1024} sc1 ; tag=PS' for mt in range(4)] + ['s_nop 0']
    P += [';VMNEED PS', 's_barrier', f's_cmp_lg_u32 s{sW}, 0', 's_cbranch_scc1 K3_NOFLAG', 'v_mov_b32 v18, 1', 'v_mov_b32 v5, 0', 's_mov_b64 exec, 1', 'SKF:', 's_mov_b64 exec, -1', 'K3_NOFLAG:']
    P += ['s_cmp_lg_u64 s[54:55], 0', 's_cbranch_scc1 K3_SLOWB', 'K3_BOK:'] + lb(1)
    STUBS.extend(['K3_SLOWB:'] + poll(19, 53, 16, 100) + lbo(0) + ['s_waitcnt vmcnt(0)', 's_branch K3_BOK'])
    for n in range(4):
        for qt in range(8):
            for mt in range(4):
                d = acc(qt, mt)
                P.append(f'{MF} {ar(d,4)}, {bf(n,8+mt)}, {bf(n,qt)}, ' + ('0' if n == 0 else ar(d, 4)))
        if n + 2 < 4: P += lb(n + 2)
    P += stamp() + out_setup()
    for r in range(2): P += reduce(r) + out_store(r, 1)
    P = auto_waits([], P); check_trace(P, 'k3 prod')
    P = flat([{'SKF:': f'buffer_store_dword v18, v5, {sr(sWS,4)}, s52 offen sc1', 'EARLY0:': lbo(0)}.get(x, x) for x in P])
    return H + R + fin() + ['K3_PROD:'] + P + fin()

def gen_k3(name='k3_kernel'):
    L = []; a = L.append
    a(f'.p2align 8\n.type {name},@function\n{name}:')
    a('s_cmp_ge_u32 s2, 512'); a('s_cbranch_scc1 K3_END')
    if os.environ.get('CPF', '1') == '1': L += code_prefetch('k3_kernel', 'CODE_END', 'K3', 100, 100, 90, 4)
    a('s_load_dwordx2 s[4:5], s[0:1], 88'); a('s_load_dwordx2 s[6:7], s[0:1], 72')
    a('v_lshrrev_b32 v1, 6, v0'); a('v_and_b32 v0, 63, v0'); a(f'v_readfirstlane_b32 s{sW}, v1')
    a(f'v_lshlrev_b32 v{vL16}, 4, v0')
    a('s_waitcnt lgkmcnt(0)')
    a(f's_mov_b32 s{sWS}, s4'); a(f's_mov_b32 s{sWS+1}, s5'); a(f's_mov_b32 s{sWS+2}, 0x10000000'); a(f's_mov_b32 s{sWS+3}, 0x20000')
    a(f's_mov_b32 s{sOUT}, s6'); a(f's_mov_b32 s{sOUT+1}, s7'); a(f's_mov_b32 s{sOUT+2}, 0x400000'); a(f's_mov_b32 s{sOUT+3}, 0x20000')
    if DIAG: a('s_mov_b32 s72, 0'); a('v_mov_b32 v101, 0'); a('v_mov_b32 v103, 0'); L += dstamp(101, 102, 103)
    if int(os.environ.get('K3_SWAP', 0)): a('s_xor_b32 s2, s2, 256')
    a('s_cmp_ge_u32 s2, 256'); a('s_cbranch_scc1 K3_G')
    L += role_b()
    a('K3_G:')
    if GPRIO: a('s_setprio 1')
    L += role_g2() if G2 else role_g()
    a('K3_END:'); a('s_endpgm')
    L += STUBS
    return L, kdesc(name, 256, 104), f'; @launch kernel={name} grid=(512,1,1) block=(256,1,1) lds={81920 if G2 else 65536}'
```

```python
from lib import *
from layout import *
import os, struct, math
def f32(x): return '0x%08x' % struct.unpack('<I', struct.pack('<f', x))[0]
DIAG = os.environ.get('DIAG')
FUSE = int(os.environ.get('FUSE', 1))
Q0PF = int(os.environ.get('K1_Q0PF', 1)) and FUSE
REPL = int(os.environ.get('K2_REPL', 0))
SLP = int(os.environ.get('K2_SLP', 64))
FUSE3 = int(os.environ.get('FUSE3', 0))
sSig = 88
sDB = 80
KVF = os.environ.get('K2_KVF', ' sc1')
SF = os.environ.get('K2_SF', ' sc1')
THR = 2.0 ** float(os.environ.get('THR', 40.0))
NEGBIG = -1.0e30
D = int(os.environ.get('K2_D', 24))
MF = 'v_mfma_f32_16x16x32_bf16'
vL16, vRd, vq, vBig, vd, vl, vt, vT = 1, 2, 4, 5, 6, 8, 12, 16
NM = 20
vDl = 36
vDG = 44
S0, P0, TMPV, Q0, TMPB = 48, 112, 144, 176, 240
O0, FR = 0, 128
sWS, sX, sWQ, sWO, sWB = 8, 12, 16, 60, 64
sW, sH, sI, sK, sV, sSR, sSW, sCnt, sKc, sMq, sRet, sT, sMk, sW2, sW4 = 20, 21, 22, 23, 24, 25, 26, 27, 28, 29, 30, 32, 40, 48, 49
sW2K, sW4K = 58, 59
sFa, sFw = 92, 93
sK2, sV2 = 84, 86
sXa, sXb, sWo, sXs = 50, 51, 52, 53

def stamp(): return dstamp(vDG, vDG + 1, vDG + 2) if DIAG else []
def Sr(par, idx): return S0 + 32 * par + 4 * idx
def Pr(par, u): return P0 + 16 * par + 4 * u
def Or(qt, dt): return O0 + 32 * qt + 4 * dt
def Qr(qt, db): return Q0 + 16 * qt + 4 * db
def slot(g): return FR + 4 * ((g // 2) % 16)
def tq(t, idx): return (idx & 3) if t == 'c' else 2 + (idx & 1)
def tkt(t, idx): return (idx >> 2) if t == 'c' else (idx >> 1)
def tP(t, idx):
    if t == 'c': return idx & 3, idx >> 2
    kt = idx >> 1
    return 2 * (kt >> 1) + (idx & 1), kt & 1

def pv_frags(t):
    if t == 'c': return [(4 * dt, 4 * dt, dt * 1024) for dt in range(8)]
    return [(4 * dt + 2 * kb, 4 * dt + kb, kb * 8192 + dt * 1024) for dt in range(8) for kb in range(2)]
def koff(kt, db): return (kt >> 1) * 8192 + (2 * db + (kt & 1)) * 1024
def qk_frags(t):
    if t == 'c': return [(34 + 16 * kt + 4 * db, 32 + 16 * kt + db, 16384 + koff(kt, db)) for kt in range(2) for db in range(4)]
    return [(32 + 8 * kt + 2 * db, 32 + 8 * kt + db, 16384 + koff(kt, db)) for kt in range(4) for db in range(4)]
def rd(g, off, par): return f'ds_read_b128 {ar(slot(g),4)}, v{vRd+par} offset:{off}'

def pv_mfmas(t, par):
    out = []
    for dt in range(8):
        for x in range(4):
            if t == 'c': qt, u, g = x, x, 4 * dt
            else:
                q, kb = x >> 1, x & 1
                qt, u, g = 2 + q, 2 * kb + q, 4 * dt + 2 * kb
            o = Or(qt, dt)
            out.append(f'{MF} {ar(o,4)}, {ar(slot(g),4)}, {vr(Pr(par,u),4)}, {ar(o,4)}')
    return out
def qk_mfmas(t, par, czero=False, fr=None):
    out = []
    nkt, nq = (2, 4) if t == 'c' else (4, 2)
    for kt in range(nkt):
        for x in range(nq):
            for db in range(4):
                g = 32 + (16 * kt + 4 * db + 2 if t == 'c' else 8 * kt + 2 * db)
                f = ar(slot(g), 4) if fr is None else fr(kt, db)
                idx = nq * kt + x; qt = tq(t, idx); s = Sr(par, idx)
                c = vr(s, 4) if db else ('0' if czero else vr(NM + 4 * qt, 4))
                out.append(f'{MF} {vr(s,4)}, {f}, {vr(Qr(qt,db),4)}, {c}')
    return out

sRet2 = 78
MASKS = set()
def mask_call(par, t):
    MASKS.add((par, t))
    return [f's_call_b64 {sr(sRet2,2)}, K2_MASK_{par}{t}']
def mask_routine(par, t):
    n = f'K2_MASK_{par}{t}'
    L = [f'{n}:', f's_ashr_i32 s{sT+4}, s{sMq}, 5', f's_sub_i32 s{sT+4}, s{sT+4}, s{sW}']
    for b in range(1 if t == 'c' else 2):
        T = (lambda kt, q: Sr(par, 4 * kt + q)) if t == 'c' else (lambda kt, q, b=b: Sr(par, 2 * (2 * b + kt) + q))
        L += [f's_cmp_lt_i32 s{sT+4}, {-b}', f's_cbranch_scc1 {n}_e{b}', f's_cmp_eq_i32 s{sT+4}, {-b}', f's_cbranch_scc1 {n}_d{b}']
        for kt, q in ((0, 0), (0, 1), (1, 1)): L += [f'v_mov_b32 v{T(kt,q)+j}, v{vBig}' for j in range(4)]
        L += [f's_branch {n}_f{b}', f'{n}_d{b}:']
        for kt, q in ((0, 0), (1, 1)): L += [f'v_cndmask_b32 v{T(kt,q)+j}, v{T(kt,q)+j}, v{vBig}, {sr(sMk+2*j,2)}' for j in range(4)]
        L += [f'{n}_f{b}:'] + [f'v_mov_b32 v{T(1,0)+j}, v{vBig}' for j in range(4)] + [f'{n}_e{b}:']
    return L + [f's_setpc_b64 {sr(sRet2,2)}']

def exp_ops(par, t):
    L = []; seen = set()
    def tail(idx):
        s = Sr(par, idx); qt = tq(t, idx); u, h = tP(t, idx); a = vt + qt
        if qt not in seen:
            seen.add(qt); x = [f'v_add_f32 v{a}, v{s}, v{s+1}']
        else: x = [f'v_add_f32 v{a}, v{a}, v{s}', f'v_add_f32 v{a}, v{a}, v{s+1}']
        p = Pr(par, u) + 2 * h
        return x + [f'v_cvt_pk_bf16_f32 v{p}, v{s}, v{s+1}', f'v_add_f32 v{a}, v{a}, v{s+2}', f'v_add_f32 v{a}, v{a}, v{s+3}', f'v_cvt_pk_bf16_f32 v{p+1}, v{s+2}, v{s+3}']
    prev = None
    for idx in range(8):
        s = Sr(par, idx)
        e = [f'v_exp_f32 v{s+j}, v{s+j}' for j in range(4)]
        tl = tail(prev) if prev is not None else []
        L += [e[0]] + tl[:2] + [e[1]] + tl[2:4] + [e[2]] + tl[4:] + [e[3]]
        prev = idx
    L += ['s_nop 0'] + tail(prev)
    return L
def lupd(t): return [f'v_add_f32 v{vl+q}, v{vl+q}, v{vt+q}' for q in ((0, 1, 2, 3) if t == 'c' else (2, 3))]
def chk(t):
    if t == 'c': L = [f'v_max3_f32 v{vT}, v{vt}, v{vt+1}, v{vt+2}', f'v_max_f32 v{vT}, v{vT}, v{vt+3}']
    else: L = [f'v_max_f32 v{vT}, v{vt+2}, v{vt+3}']
    return L + [f'v_cmp_nge_f32 vcc, {f32(THR)}, v{vT}']

def adv64(p, x): return [f's_add_u32 s{p}, s{p}, {x}', f's_addc_u32 s{p+1}, s{p+1}, 0']
def dma_part(kind, t, tag):
    so = sV2 if kind == 'V' else sK2
    w = (sW4 if t == 's' else sW2) if kind == 'V' else (sW4K if t == 's' else sW2K)
    n = 4 if t == 's' else 2
    items = [[f's_add_u32 m0, s{sSW}, s{w} ; tag={tag}']]
    for q in range(n):
        items.append([f'global_load_lds_dwordx4 v{vL16}, {sr(so,2)} offset:{q*1024}{KVF} ; tag={tag}'])
    items.append(adv64(so, n * 4096))
    return items
def flat(L):
    o = []
    for x in L:
        if isinstance(x, list): o += flat(x)
        else: o.append(x)
    return o

STUBS = []
def body(par, pv, sm, qk, nxt_pv, vload, kload, mask, uid):
    psm = par ^ 1
    mf = []
    if pv: mf += pv_mfmas(pv, par)
    if qk: mf += qk_mfmas(qk, par)
    ng = len(mf)
    pre = {}
    def P(g, x): pre.setdefault(g, []).extend(x if isinstance(x, list) else [x])
    frs = (pv_frags(pv) if pv else []) + (qk_frags(qk) if qk else [])
    for g, fu, off in frs:
        if g - D >= 0: P(g - D, rd(g, off, par))
    for g0 in range(0, ng, 8):
        need = [ar(slot(g), 4) for g, fu, off in frs if g0 <= fu < g0 + 8]
        if not need: continue
        P(g0 - 1 if g0 else (0, 'before'), ';NEED ' + ' '.join(need))
    if nxt_pv:
        gb = ng - D
        P(gb - 3, [f';VMNEED U{par^1}', 's_barrier'])
        for g, fu, off in pv_frags(nxt_pv):
            if g < D: P(ng + g - D, rd(g, off, par ^ 1))
    items = []
    if vload: items += dma_part('V', vload, f'U{par}')
    if kload: items += dma_part('K', kload, f'U{par}')
    if nxt_pv: items += [[f's_add_u32 s{sSR}, s{sSR}, 32768'], [f's_and_b32 s{sSR}, s{sSR}, 0x1ffff']]
    if vload or kload: items += [[f's_add_u32 s{sSW}, s{sSW}, 32768'], [f's_and_b32 s{sSW}, s{sSW}, 0x1ffff']]
    if sm:
        items += [[f's_add_u32 s{sKc}, s{sKc}, {8192 if pv == "c" else 16384}']]
        if mask is None: items += [[f's_mov_b32 s{sMq}, -4096']]
        else: P(3, [f's_mov_b32 s{sMq}, {32*mask}'] + mask_call(psm, sm))
    free = [g for g in range(1, ng) if g not in pre and not (g == ng - 1)]
    lim = (ng - D - 2) if nxt_pv else ng - 2
    gi = 0; lastd = -9
    for it in items:
        isd = it[0].startswith(('buffer', 'global'))
        while gi < len(free) and (isd and free[gi] - lastd < DSP): gi += 1
        g = free[gi]; gi += 1
        if isd:
            lastd = g
        P(g, it)
    Pq = []; Eq = []
    if nxt_pv: Pq.append(f'v_add_u32 v{vRd+(par^1)}, s{sSR}, v{vL16}')
    if pv: Pq += lupd(pv)
    if sm:
        for x in exp_ops(psm, sm):
            if x.startswith('v_exp'): Eq.append(x)
            elif x.startswith('v_'): Pq.append(x)
        NL = int(os.environ.get('K2_NL', 6))
        cv = [k for k, x in enumerate(Pq) if x.startswith('v_cvt')][-NL:]
        late = [Pq[k] for k in cv]
        Pq = [x for k, x in enumerate(Pq) if k not in cv] + chk(sm) + late
    cap = {}
    for g in range(ng):
        n = sum(2 if x.startswith(('buffer', 'ds_', 'global')) else 1 for x in pre.get(g, []))
        cap[g] = max(0, 2 - max(0, n - 1))
    last = ng - 1 if qk else ng - 2
    total = 2 * len(Eq) + len(Pq)
    def sched(extra):
        cp = dict(cap)
        for k in range(extra): cp[(k * (last + 1) // max(extra, 1)) % (last + 1)] += 1
        val = {}; pi = ei = 0
        eiss = {}
        ereg = [Ins(x).w for x in Eq]; allE = set().union(*ereg) if ereg else set()
        pend_mask = {}
        for k, x in enumerate(Pq):
            if x.startswith('v_cndmask'):
                for r in Ins(x).w: pend_mask[r] = k
        for g in range(last + 1):
            sl = cp[g]
            while sl > 0:
                if ei < len(Eq) and sl >= 2 and (mask is None or g >= 3):
                    val.setdefault(g, []).append(Eq[ei])
                    for r in ereg[ei]: eiss[r] = g
                    ei += 1; sl -= 2; continue
                if pi < len(Pq):
                    x = Pq[pi]; ins = Ins(x)
                    ok = x.startswith('v_cndmask') or all(eiss.get(r, 999) < g for r in ins.r & allE)
                    if ok:
                        val.setdefault(g, []).append(x); pi += 1; sl -= 1; continue
                break
        return val, (len(Eq) - ei) + (len(Pq) - pi)
    extra = 0
    while True:
        val, left = sched(extra)
        if left == 0: break
        extra += 1
    if os.environ.get('VERB'): print(uid, 'valu', total, 'avail', sum(cap[g] for g in range(last + 1)), 'extra', extra)
    if sm:
        pre.setdefault(ng - 1, []).extend([f's_cbranch_vccnz K2_S_{uid}', f'K2_R_{uid}:'])
        STUBS.extend([f'K2_S_{uid}:', f's_call_b64 {sr(sRet,2)}, K2_RARE_{psm}{sm}{qk or "n"}', f's_branch K2_R_{uid}'])
        RARES.add((psm, sm, qk or 'n'))
    return weave(mf, pre, val)
RARES = set()
DSP = int(os.environ.get('K2_DSP', 3))

def xlane(op, r, tmp):
    return [f'v_mov_b32 v{tmp}, v{r}', 's_nop 1', f'v_permlane32_swap_b32 v{r}, v{tmp}', f'{op} v{r}, v{r}, v{tmp}',
            f'v_mov_b32 v{tmp}, v{r}', 's_nop 1', f'v_permlane16_swap_b32 v{r}, v{tmp}', f'{op} v{r}, v{r}, v{tmp}']
def deltas(par, t, clamp):
    qs = (0, 1, 2, 3) if t == 'c' else (2, 3)
    ch = []
    for q in qs:
        regs = [Sr(par, i) + j for i in range(8) if tq(t, i) == q for j in range(4)]
        c = [f'v_max_f32 v{vDl+q}, v{regs[0]}, v{regs[1]}']
        for k in range(2, len(regs), 2): c.append(f'v_max3_f32 v{vDl+q}, v{vDl+q}, v{regs[k]}, v{regs[k+1]}')
        tmp = vDl + 4 + q
        for sw in ('32', '16'):
            c += [f'v_mov_b32 v{tmp}, v{vDl+q}', f'v_permlane{sw}_swap_b32 v{vDl+q}, v{tmp}', f'v_max_f32 v{vDl+q}, v{vDl+q}, v{tmp}']
        c.append(f'v_ceil_f32 v{vDl+q}, v{vDl+q}')
        if clamp: c.append(f'v_max_f32 v{vDl+q}, 0, v{vDl+q}')
        ch.append(c)
    L = []
    for k in range(len(ch[0])):
        if len(qs) == 2 and 'permlane' in ch[0][k]: L.append('s_nop 0')
        for c in ch: L.append(c[k])
    return L
def sub_tiles(par, t): return [f'v_sub_f32 v{Sr(par,i)+j}, v{Sr(par,i)+j}, v{vDl+tq(t,i)}' for i in range(8) for j in range(4)]

def rare(par, t, tn):
    L = [f'K2_RARE_{par}{t}{tn}:', 's_nop 7', 's_nop 7']
    nkt = 2 if t == 'c' else 4
    R = []
    mf = qk_mfmas(t, par, fr=lambda kt, db: vr(TMPV + 16 * (kt & 1) + 4 * db, 4))
    per = len(mf) // nkt
    for k0 in range(0, nkt, 2):
        R.append(f's_add_u32 s{sT+4}, s{sKc}, {k0*4096}'); R.append(f's_add_u32 s{sT+5}, s{sT+4}, 4096')
        for kt in range(2):
            for db in range(4):
                o = (2 * db + kt) * 1024
                R.append(f'buffer_load_dwordx4 {vr(TMPV+16*kt+4*db,4)}, v{vL16}, {sr(sWS,4)}, s{sT+4+(o>>12)} offen offset:{o&4095}{KVF}')
        R.append('s_waitcnt vmcnt(0)')
        R += mf[per*k0:per*(k0+2)] + ['s_nop 7']
    R += mask_call(par, t) + deltas(par, t, True)
    if t == 's': R += [f'v_mov_b32 v{vDl}, 0', f'v_mov_b32 v{vDl+1}, 0']
    R += sub_tiles(par, t)
    if tn != 'n': R += sub_tiles(par ^ 1, tn)
    for q in range(4):
        for j in range(4): R.append(f'v_sub_f32 v{NM+4*q+j}, v{NM+4*q+j}, v{vDl+q}')
        R.append(f'v_exp_f32 v{vDl+4+q}, -v{vDl+q}')
    R += exp_ops(par, t)
    for q in range(4): R.append(f'v_mul_f32 v{vl+q}, v{vl+q}, v{vDl+4+q}')
    R += [f's_branch K2_RESC_{t}']
    check_trace(R, f'rare{par}{t}{tn}', bool(os.environ.get('VERB')))
    return L + R

def rescale_o():
    R = []
    for q in range(4):
        if q in (0, 2): R.append('K2_RESC_c:' if q == 0 else 'K2_RESC_s:')
        for j0 in range(0, 32, 8):
            for j in range(8): R.append(f'v_accvgpr_read_b32 v{TMPV+j}, a{Or(q,0)+j0+j}')
            for j in range(8): R.append(f'v_mul_f32 v{TMPV+j}, v{TMPV+j}, v{vDl+4+q}')
            for j in range(8): R.append(f'v_accvgpr_write_b32 a{Or(q,0)+j0+j}, v{TMPV+j}')
    return R + ['s_nop 1', f's_setpc_b64 {sr(sRet,2)}']

K = 1024
XS = [[96*K, 104*K, 32*K, 40*K], [8*K, 24*K, 88*K, 120*K], [0, 16*K, 80*K, 112*K]]
WSL = [128*K, 64*K, 48*K]
vXd, vWd, vXr, vWr = 208, 212, 216, 222
QACC = 48
XF, WFq = 0, 64
def qacc(ft, tt): return QACC + 4 * (4 * ft + tt)
def xf(c, kbl, tt): return XF + 32 * (c & 1) + 16 * kbl + 4 * tt
def wf(c, kbl, ft): return WFq + 64 * (c & 1) + 32 * kbl + 4 * ft
sCk = 56
QROT = int(os.environ.get('K2_QROT', 0))
def q_dma(c):
    sl = c % 3
    it = []
    for ab, so in enumerate((sXa, sXb)):
        it.append([f's_add_u32 m0, s{sXs+sl}, {ab*4096} ; tag=C{c}', f's_add_u32 s{sT}, s{so}, s{sCk}'])
        for q in range(4): it.append([f'buffer_load_dwordx4 v{vXd+q}, {sr(sX,4)}, s{sT} offen offset:{q*1024} lds ; tag=C{c}'])
    it.append([f's_lshl_b32 s{sT}, s{sCk}, 12', f's_add_u32 m0, s{sW4}, {WSL[sl]} ; tag=C{c}', f's_add_u32 s{sT}, s{sT}, s{sWo}'])
    for q in range(4): it.append([f'buffer_load_dwordx4 v{vWd+q}, {sr(sWQ,4)}, s{sT} offen offset:{q*1024} lds ; tag=C{c}'])
    it[-1] += [f's_add_u32 s{sCk}, s{sCk}, 128', f's_and_b32 s{sCk}, s{sCk}, 1023']
    return it
def q_reads(c):
    sl = c % 3
    L = [f'ds_read_b128 {ar(xf(c,kbl,tt),4)}, v{vXr+2*sl+kbl} offset:{tt*2048}' for tt in range(4) for kbl in range(2)]
    W = []
    for ft in range(8):
        for kbl in range(2):
            for p in range(2):
                vb, off = wsl_addr(sl)
                W.append(f'ds_read_b64_tr_b16 {ar(wf(c,kbl,ft)+2*p,2)}, v{vWr+ft+8*vb} offset:{off + (32 * kbl + 4 * p) * 256}')
    return W[:4] + L + W[4:]
def wsl_addr(sl):
    a = WSL[sl]
    return (0, a - WB0) if a < WB1 else (1, a - WB1)
WB0, WB1 = 48 * K, 128 * K
def q_cvt(db):
    cv = []
    for tt in range(4):
        t0, t1 = qacc(2 * db, tt), qacc(2 * db + 1, tt); dst = Qr(tt, db)
        cv += [f'v_cvt_pk_bf16_f32 v{dst}, v{t0}, v{t0+1}', f'v_cvt_pk_bf16_f32 v{dst+1}, v{t0+2}, v{t0+3}', f'v_cvt_pk_bf16_f32 v{dst+2}, v{t1}, v{t1+1}', f'v_cvt_pk_bf16_f32 v{dst+3}, v{t1+2}, v{t1+3}']
    return cv
def q_setup():
    t = [240, 241, 242, 243, 244]
    L = []
    a = L.append
    a(f's_lshl_b32 s{sXa}, s{sI}, 17'); a(f's_lshl_b32 s{sT}, s{sW}, 15'); a(f's_sub_u32 s{sXb}, {15*128*1024}, s{sXa}')
    a(f's_add_u32 s{sXa}, s{sXa}, s{sT}'); a(f's_add_u32 s{sXb}, s{sXb}, s{sT}')
    a(f's_lshl_b32 s{sWo}, s{sH}, 8'); a(f's_lshl_b32 s{sT}, s{sW}, 17'); a(f's_add_u32 s{sWo}, s{sWo}, s{sT}')
    a(f's_mov_b32 s{sCk}, {128 if Q0PF else 0}')
    for sl in range(3):
        a(f's_mov_b32 s{sXs+sl}, {XS[sl][0]}')
        for w in range(1, 4):
            a(f's_cmp_eq_u32 s{sW}, {w}'); a(f's_cselect_b32 s{sXs+sl}, {XS[sl][w]}, s{sXs+sl}')
    a(f'v_lshrrev_b32 v{t[0]}, 3, v0'); a(f'v_lshlrev_b32 v{t[1]}, 10, v{t[0]}')
    a(f'v_lshrrev_b32 v{t[2]}, 4, v0'); a(f'v_and_b32 v{t[3]}, 7, v0'); a(f'v_xor_b32 v{t[2]}, v{t[2]}, v{t[3]}')
    for q in range(4):
        a(f'v_xor_b32 v{t[4]}, {4*(q&1)}, v{t[2]}'); a(f'v_lshl_add_u32 v{t[4]}, v{t[4]}, 4, v{t[1]}'); a(f'v_add_u32 v{vXd+q}, {q*7168}, v{t[4]}')
    a(f'v_lshrrev_b32 v{t[0]}, 4, v0'); a(f'v_lshlrev_b32 v{t[1]}, 13, v{t[0]}'); a(f'v_lshlrev_b32 v{t[0]}, 1, v{t[0]}')
    a(f'v_and_b32 v{t[2]}, 15, v0'); a(f'v_xor_b32 v{t[2]}, v{t[2]}, v{t[0]}')
    for q in range(4):
        a(f'v_xor_b32 v{t[4]}, {8*(q>>1)}, v{t[2]}'); a(f'v_lshl_add_u32 v{t[4]}, v{t[4]}, 4, v{t[1]}'); a(f'v_add_u32 v{vWd+q}, {q*(4*8192-1024)}, v{t[4]}')
    return L
def q_setup2():
    t = [240, 241, 242, 243, 244]
    L = []; a = L.append
    a(f'v_and_b32 v{t[0]}, 15, v0'); a(f'v_lshrrev_b32 v{t[1]}, 4, v0'); a(f'v_bfe_u32 v{t[2]}, v0, 1, 3'); a(f'v_lshlrev_b32 v{t[0]}, 7, v{t[0]}')
    for kbl in range(2):
        a(f'v_add_u32 v{t[4]}, {4*kbl}, v{t[1]}'); a(f'v_xor_b32 v{t[4]}, v{t[4]}, v{t[2]}'); a(f'v_lshl_add_u32 v{t[4]}, v{t[4]}, 4, v{t[0]}')
        for sl in range(3): a(f'v_add_u32 v{vXr+2*sl+kbl}, s{sXs+sl}, v{t[4]}')
    a(f'v_bfe_u32 v{t[0]}, v0, 2, 2'); a(f'v_lshl_add_u32 v{t[1]}, v{t[1]}, 3, v{t[0]}'); a(f'v_lshlrev_b32 v{t[1]}, 8, v{t[1]}')
    a(f'v_and_b32 v{t[2]}, 3, v0'); a(f'v_lshl_add_u32 v{t[1]}, v{t[2]}, 3, v{t[1]}'); a(f'v_bfe_u32 v{t[2]}, v0, 2, 3')
    for ft in range(8):
        a(f'v_xor_b32 v{t[3]}, {ft}, v{t[2]}'); a(f'v_lshl_add_u32 v{t[3]}, v{t[3]}, 5, v{t[1]}')
        a(f'v_add_u32 v{vWr+ft}, {WB0}, v{t[3]}'); a(f'v_add_u32 v{vWr+8+ft}, {WB1}, v{t[3]}')
    return L

G3MAP = os.environ.get('K2_G3MAP', '0x04567321')
def remap_i(dst, t0, t1):
    L = [f's_lshr_b32 s{dst}, s2, 5']
    if FUSE and os.environ.get('K2_REMAP', '1') == '1':
        L += [f's_bfe_u32 s{t0}, s2, 0x20001', f's_mov_b32 s{t1}, 0x06543217', f's_cmp_eq_u32 s{t0}, 1', f's_cselect_b32 s{t1}, 0x76043215, s{t1}',
              f's_cmp_eq_u32 s{t0}, 3', f's_cselect_b32 s{t1}, {G3MAP}, s{t1}',
              f's_lshl_b32 s{dst}, s{dst}, 2', f's_lshr_b32 s{dst}, s{t1}, s{dst}', f's_and_b32 s{dst}, s{dst}, 7']
    return L
def q0_early(sw, srdx, srdw, t2=26):
    a_, b_, c_, d_ = 90, 91, 92, 93
    t0, t1 = 14, 15
    G = [[f's_mov_b32 s{srdx+2}, 0x200000', f's_mov_b32 s{srdw+2}, 0x400000'], remap_i(a_, b_, c_) + [f's_lshl_b32 s{a_}, s{a_}, 17'],
         [f's_lshl_b32 s{b_}, s{sw}, 15', f's_sub_u32 s{c_}, {15*128*1024}, s{a_}'], [f's_add_u32 s{a_}, s{a_}, s{b_}', f's_add_u32 s{c_}, s{c_}, s{b_}'], [f's_mov_b32 s{d_}, {XS[0][0]}']]
    for w in range(1, 4): G.append([f's_cmp_eq_u32 s{sw}, {w}', f's_cselect_b32 s{d_}, {XS[0][w]}, s{d_}'])
    for ab, so in enumerate((a_, c_)):
        G.append([f's_add_u32 m0, s{d_}, {ab*4096} ; tag=Q0', 's_nop 0'])
        G += [[f'buffer_load_dwordx4 v{6+q}, {sr(srdx,4)}, s{so} offen offset:{q*1024} lds ; tag=Q0'] for q in range(4)]
    G += [[f's_and_b32 s{a_}, s2, 31', f's_lshl_b32 s{a_}, s{a_}, 8'], [f's_lshl_b32 s{b_}, s{sw}, 17', f's_add_u32 s{a_}, s{a_}, s{b_}'], [f's_lshl_b32 s{b_}, s{sw}, 12', f's_add_u32 m0, s{b_}, {WSL[0]} ; tag=Q0'],
          [f'v_lshrrev_b32 v{t0}, 4, v0', f'v_lshlrev_b32 v{t1}, 13, v{t0}'], [f'v_lshlrev_b32 v{t0}, 1, v{t0}', f'v_and_b32 v{t2}, 15, v0'], [f'v_xor_b32 v{t2}, v{t2}, v{t0}']]
    for q in range(4):
        G += [[f'v_xor_b32 v{2+q}, {8*(q>>1)}, v{t2}', f'v_lshl_add_u32 v{2+q}, v{2+q}, 4, v{t1}'], [f'v_add_u32 v{2+q}, {q*(4*8192-1024)}, v{2+q}'],
              [f'buffer_load_dwordx4 v{2+q}, {sr(srdw,4)}, s{a_} offen offset:{q*1024} lds ; tag=Q0']]
    return G

def a_loads(which):
    if which == 0:
        return [[f's_mov_b32 s{sSW}, 65536']] + dma_part('K', 'c', 'K0') + [[f's_mov_b32 s{sSW}, 98304']] + dma_part('K', 'c', 'K0') + \
               [[f's_mov_b32 s{sSW}, 0']] + dma_part('V', 'c', 'U0') + dma_part('K', 'c', 'U0')
    return [[f's_mov_b32 s{sSW}, 32768']] + dma_part('V', 'c', 'U1') + dma_part('K', 'c', 'U1') + [[f's_mov_b32 s{sSW}, 65536'], [f's_mov_b32 s{sSR}, 32768']]

def wo_dma_a():
    t = [240, 241, 242, 243]
    it = [[f'v_lshrrev_b32 v{t[0]}, 5, v0', f'v_bfe_u32 v{t[1]}, v0, 1, 4', f'v_xor_b32 v{t[1]}, v{t[1]}, v{t[0]}', f'v_and_b32 v{t[2]}, 1, v0', f'v_lshlrev_b32 v{t[2]}, 4, v{t[2]}',
           f'v_lshl_add_u32 v{t[2]}, v{t[0]}, 10, v{t[2]}'],
          [f's_lshr_b32 s{sT+4}, s2, 1', f's_lshl_b32 s{sT+4}, s{sT+4}, 15', f's_and_b32 s{sT+5}, s2, 1', f's_lshl_b32 s{sT+5}, s{sT+5}, 9'],
          [f's_add_u32 s{sT+4}, s{sT+4}, s{sT+5}', f's_lshl_b32 s{sT+5}, s{sW}, 13', f's_add_u32 s{sT+4}, s{sT+4}, s{sT+5}']]
    for q in range(4):
        it.append([f'v_xor_b32 v{t[3]}, {2*q}, v{t[1]}', f'v_lshl_add_u32 v{t[3]}, v{t[3]}, 5, v{t[2]}', f's_add_u32 m0, s{sW4}, {128*K} ; tag=WO', f's_add_u32 s{sT+5}, s{sT+4}, {q*1024}',
                   f'buffer_load_dwordx4 v{t[3]}, {sr(sWO,4)}, s{sT+5} offen offset:{q*1024} lds ; tag=WO'])
    return it
def wo_dma_b():
    t = [240, 241]
    return [f'v_lshrrev_b32 v{t[0]}, 2, v0', f'v_lshlrev_b32 v{t[0]}, 10, v{t[0]}', f'v_and_b32 v{t[1]}, 3, v0', f'v_lshl_add_u32 v{t[0]}, v{t[1]}, 4, v{t[0]}',
            f's_lshr_b32 s{sT+4}, s2, 4', f's_lshl_b32 s{sT+4}, s{sT+4}, 15', f's_and_b32 s{sT+5}, s2, 15', f's_lshl_b32 s{sT+5}, s{sT+5}, 6', f's_add_u32 s{sT+4}, s{sT+4}, s{sT+5}',
            f's_and_b32 s{sT+5}, s{sW}, 1', f's_lshl_b32 s{sT+6}, s{sT+5}, 14', f's_add_u32 s{sT+4}, s{sT+4}, s{sT+6}', f's_lshl_b32 s{sT+5}, s{sT+5}, 10',
            f's_add_u32 m0, s{sT+5}, {144*K} ; tag=WO', 's_nop 0', f'buffer_load_dwordx4 v{t[0]}, {sr(sWB,4)}, s{sT+4} offen lds ; tag=WO']
def wo_fin():
    R = TMPV; a0, a1, a2 = TMPV + 20, TMPV + 21, TMPV + 22; t0, t1 = sT + 4, sT + 5
    L = [f'v_lshrrev_b32 v{a0}, 2, v0', f'v_and_b32 v{a1}, 3, v0', f'v_lshlrev_b32 v{a1}, 3, v{a1}', f'v_lshl_add_u32 v{a2}, v{a0}, 6, v{a1}', f'v_lshl_add_u32 v{a1}, v{a0}, 9, v{a1}',
         f'v_add_u32 v{a1}, {128*K}, v{a1}', f'v_and_b32 v{a0}, 7, v{a0}', f's_lshl_b32 s{t0}, s{sW}, 2', f'v_xor_b32 v{a0}, s{t0}, v{a0}',
         f's_and_b32 s{t0}, s{sW}, 1', f's_lshl_b32 s{t0}, s{t0}, 5', f's_add_u32 s{t0}, s{t0}, {144*K}', f'v_add_u32 v{a2}, s{t0}, v{a2}']
    for x in range(4):
        L += [f'v_xor_b32 v{a0+4+x}, {x}, v{a0}', f'v_lshl_add_u32 v{a0+4+x}, v{a0+4+x}, 5, v{a1}']
        for p in range(2): L.append(f'ds_read_b64_tr_b16 {vr(R+4*x+2*p,2)}, v{a0+4+x} offset:{p*8192}')
    for p in range(2): L.append(f'ds_read_b64_tr_b16 {vr(R+16+2*p,2)}, v{a2} offset:{p*1024}')
    L += [f's_and_b32 s{t0}, s2, 1', f's_lshl_b32 s{t0}, s{t0}, 2', f's_add_u32 s{t0}, s{t0}, s{sW}', f's_mul_i32 s{t0}, s{t0}, {TS}', f's_lshr_b32 s{t1}, s2, 1', f's_lshl_b32 s{t1}, s{t1}, 12',
          f's_add_u32 s{t0}, s{t0}, s{t1}', f's_add_u32 s{t0}, s{t0}, {WOA}']
    for x in range(4): L += [f'buffer_store_dwordx4 {vr(R+4*x,4)}, v{vL16}, {sr(sWS,4)}, s{t0} offen offset:{x*1024}{SF}']
    L += [f's_bfe_u32 s{t0}, s2, 0x30001', f's_mul_i32 s{t0}, s{t0}, {TS}', f's_and_b32 s{t1}, s2, 1', f's_lshl_b32 s{t1}, s{t1}, 11', f's_add_u32 s{t0}, s{t0}, s{t1}',
          f's_and_b32 s{t1}, s{sW}, 1', f's_lshl_b32 s{t1}, s{t1}, 10', f's_add_u32 s{t0}, s{t0}, s{t1}',
          f's_lshr_b32 s{t1}, s2, 4', f's_lshl_b32 s{t1}, s{t1}, 12', f's_add_u32 s{t0}, s{t0}, s{t1}', f's_add_u32 s{t0}, s{t0}, {WOA + 128*4096}',
          f'buffer_store_dwordx4 {vr(R+16,4)}, v{vL16}, {sr(sWS,4)}, s{t0} offen{SF}', 's_nop 0']
    return L

def qproj():
    QPF = int(os.environ.get('K2_QPF', 0))
    pf = [[f'v_lshlrev_b32 v245, 10, v0', f's_lshr_b32 s{sT+4}, s2, 3', f's_lshl_b32 s{sT+4}, s{sT+4}, 16'], [f's_lshl_b32 s{sT+5}, s{sW}, 7', f's_add_u32 s{sT+4}, s{sT+4}, s{sT+5}'],
          [f'buffer_load_dword v246, v245, {sr(sX,4)}, s{sT+4} offen offset:512 ; nodep'],
          [f'v_lshrrev_b32 v245, 1, v0', f'v_lshlrev_b32 v245, 13, v245', f'v_and_b32 v244, 1, v0', f'v_lshl_add_u32 v245, v244, 7, v245'],
          [f's_lshl_b32 s{sT+4}, s{sI}, 18', f's_lshl_b32 s{sT+5}, s{sH}, 8', f's_add_u32 s{sT+4}, s{sT+4}, s{sT+5}'], [f's_add_u32 s{sT+4}, s{sT+4}, {256*8192}'],
          [f'buffer_load_dword v246, v245, {sr(sWQ,4)}, s{sT+4} offen ; nodep']] if QPF else []
    zf = []
    if FUSE3:
        FW_, FC_, FB_ = FLG, FLG + 4096, FLG + 8192
        zf = [f's_lshl_b32 s{sT+4}, s{sI}, 7', f's_lshl_b32 s{sT+5}, s{sH}, 2', f's_add_u32 s{sT+5}, s{sT+5}, {FC_}', f's_add_u32 s{sFa}, s{sT+5}, s{sT+4}', f's_sub_u32 s{sT+5}, s{sT+5}, s{sT+4}', f's_add_u32 s{sT+5}, s{sT+5}, {15*128}',
              f's_lshl_b32 s{sT+4}, s2, 2', f's_add_u32 s{sFw}, s{sT+4}, {FW_}', f's_add_u32 s{sT+4}, s{sT+4}, {FB_}',
              f'v_mov_b32 v245, s{sFa}', f'v_writelane_b32 v245, s{sT+5}, 1', f'v_writelane_b32 v245, s{sFw}, 2', f'v_writelane_b32 v245, s{sT+4}, 3', 'v_mov_b32 v246, 0', f's_mov_b32 s{sSig}, 0',
              's_mov_b64 exec, 15', f'buffer_store_dword v246, v245, {sr(sWS,4)}, 0 offen sc1', 's_mov_b64 exec, -1']
    L = q_setup() + zf + (['s_barrier'] if FUSE and not Q0PF else []) + (q_setup2() + ['s_barrier'] + q_reads(0) + flat(q_dma(1)) if Q0PF else flat(q_dma(0)) + flat(q_dma(1)) + q_setup2())
    L += [f's_lshl_b32 s{sT+4}, s{sH}, 19', f's_add_u32 s{sK}, s{sT+4}, {KWS}', f's_add_u32 s{sV}, s{sT+4}, {VWS}', f's_mov_b32 s{sKc}, s{sK}', f's_add_u32 s{sK}, s{sK}, s{sW2}', f's_add_u32 s{sV}, s{sV}, s{sW2}',
          f's_add_u32 s{sK2}, s{sWS}, s{sK}', f's_addc_u32 s{sK2+1}, s{sWS+1}, 0', f's_add_u32 s{sV2}, s{sWS}, s{sV}', f's_addc_u32 s{sV2+1}, s{sWS+1}, 0']
    if not Q0PF: L += [';VMNEED C0', 's_barrier'] + q_reads(0)
    sig = []
    if FUSE:
        sig = [f's_cmp_lg_u32 s{sW}, 0', 's_cbranch_scc1 K2_NOSIG', 'v_mov_b32 v245, 1', 'v_lshlrev_b32 v246, 7, v0', 'v_sub_u32 v246, s94, v246', 's_mov_b64 exec, 3' if REPL else 's_mov_b64 exec, 1',
              f'SKIP buffer_atomic_add v245, v246, {sr(sDB,4)}, 0 offen sc1', 's_mov_b64 exec, -1', 'K2_NOSIG:',
              f's_lshl_b32 s{sT+4}, s{sH}, 1', 'v_and_b32 v246, 1, v0', f'v_add_u32 v246, s{sT+4}, v246', 'v_mul_u32_u24 v246, 205, v246', 'v_lshrrev_b32 v246, 10, v246',
              'v_bfe_u32 v245, v0, 1, 1', 'v_mul_u32_u24 v245, 13, v245', 'v_add_lshl_u32 v246, v246, v245, 2', 'v_add_u32 v246, 128, v246']
    if not Q0PF: L += sig
    L += stamp()
    for c in range(8):
        mf = []; pre = {}
        def P(g, x): pre.setdefault(g, []).extend(x if isinstance(x, list) else [x])
        val = {}
        for ft in range(8):
            for tt in range(4):
                for kbl in range(2):
                    a = qacc(ft, tt)
                    cc = '0' if (c == 0 and kbl == 0) else vr(a, 4)
                    mf.append(f'{MF} {vr(a,4)}, {ar(wf(c,kbl,ft),4)}, {ar(xf(c,kbl,tt),4)}, {cc}')
        for g0 in range(0, 64, 16):
            f0 = g0 // 8
            P(g0 - 1 if g0 else (0, 'before'), f';NEED {ar(wf(c,0,f0),8)} {ar(wf(c,1,f0),8)}' + (f' {ar(xf(c,0,0),32)}' if g0 == 0 else ''))
        if c == 0:
            g = 0
            for it in q_dma(2):
                if g % 16 == 15: g += 1
                P(g, it); g += 1
            gb = 26
        else:
            gb = 0
        if 1 <= c <= 5: ex = ([[f's_cmp_lg_u32 s{sW}, 0', 's_cbranch_scc1 K2_NOPOLL', 'POLLL:', 'K2_NOPOLL:']] if FUSE and c == 5 else []) + q_dma(c + 2)
        elif c == 6:
            ex = a_loads(0)
            if FUSE:
                P((0, 'before'), [f's_cmp_lg_u32 s{sW}, 0', 's_cbranch_scc1 K2_POLLED', 'POLLW:', 'v_cmp_gt_u32 vcc, 8, v247', 's_cbranch_vccnz K2_SLOWP', 'K2_POLLED:'])
                STUBS.extend(['K2_SLOWP:', f's_mov_b32 s{sT+4}, 0x80000', 'v_subrev_u32 v246, 128, v246' if REPL else 's_nop 0', 'K2_SP1:', f'buffer_load_dword v247, v246, {sr(sDB,4)}, 0 offen sc1', 's_waitcnt vmcnt(0)',
                              'v_cmp_gt_u32 vcc, 8, v247', 's_cbranch_vccz K2_POLLED', f's_sleep {SLP}', f's_sub_u32 s{sT+4}, s{sT+4}, 1', f's_cmp_lg_u32 s{sT+4}, 0', 's_cbranch_scc1 K2_SP1', 's_branch K2_POLLED'])
        elif c == 7: ex = a_loads(1) + wo_dma_a() + [wo_dma_b()]
        else: ex = []
        if c < 7:
            P(gb, [f';VMNEED C{c+1}', 's_barrier'] + (sig if Q0PF and c == 0 else []))
            rds = q_reads(c + 1)
            seq = []; nr, ne = len(rds), len(ex)
            ri = ei = 0
            QB = int(os.environ.get('K2_QB', 1))
            while ri < nr or ei < ne:
                if ei < ne and (ri >= nr or QB == 1 or (QB == 2 and ri >= ei) or ei * nr <= ri * ne): seq.append(ex[ei]); ei += 1
                else: seq.append(rds[ri]); ri += 1
            g0 = gb + 1
            for k, x in enumerate(seq): P(g0 + k * (63 - g0) // len(seq), x)
        else:
            P(0, 's_barrier')
            for db in range(3):
                cv = q_cvt(db)
                for k in range(8): val[16 * db + 20 + k + (k > 3) * 0] = cv[2*k:2*k+2]
            P(60, [';VMNEED U0', 's_barrier', f'v_add_u32 v{vRd}, 65536, v{vL16}', f'v_add_u32 v{vRd+1}, 98304, v{vL16}'])
            for k, it in enumerate(ex): P(1 + k * 58 // len(ex), it)
        L += weave(mf, pre, val)
    return L

def a_prologue():
    L = []
    fr = qk_frags('c')
    L += [rd(g - 2, off, 0) for g, fu, off in fr] + [rd(g, off, 1) for g, fu, off in fr]
    L += [f'v_mov_b32 v{TMPB+j}, 0' for j in range(4)]
    L += [f'v_mov_b32 v{vd}, v{vq}'] + [f'v_cmp_gt_i32 {sr(sMk+2*j,2)}, {j}, v{vd}' for j in range(4)]
    L += q_cvt(3)
    zm = [f'v_mfma_f32_32x32x16_bf16 {ar(16*k,16)}, {vr(TMPB,4)}, {vr(TMPB,4)}, 0' for k in range(8)]
    L += ['s_nop 0'] + qk_mfmas('c', 0, czero=True, fr=lambda kt, db: ar(slot(32 + 16 * kt + 4 * db), 4)) + zm
    L += [f's_cmp_eq_u32 s{sI}, 0', f's_cselect_b32 s{sMq}, 0, -4096'] + mask_call(0, 'c') + deltas(0, 'c', False)
    for q in range(4):
        for j in range(4): L.append(f'v_sub_f32 v{NM+4*q+j}, 0, v{vDl+q}')
    V = [f'v_mov_b32 v{vl+q}, 0' for q in range(4)] + sub_tiles(0, 'c') + exp_ops(0, 'c')
    mf2 = qk_mfmas('c', 1)
    L += [f'v_mov_b32 v{vRd}, v{vL16}', ';LGKM0'] + ([';VMNEED WO'] if FUSE3 else []) + ['s_barrier'] + (wo_fin() if FUSE3 else [])
    rds = [rd(g, off, 0) for g, fu, off in pv_frags('c') if g < D]
    n = len(mf2)
    for k, m in enumerate(mf2):
        L.append(m)
        if k >= n - 2 * len(rds) and (n - k) % 2 == 0: L.append(rds[len(rds) - (n - k) // 2])
        L += V[len(V)*k//n:len(V)*(k+1)//n]
    return L

def fin_rows(which):
    t0, t1 = sT + 4, sT + 5
    q0 = 0 if which == 'a' else 2
    L = [f's_lshl_b32 s{t0}, s{sH}, 14', f's_add_u32 s{t0}, s{t0}, {CTX}', f's_and_b32 s{t1}, s{sW}, 1', f's_lshl_b32 s{t1}, s{t1}, 11', f's_add_u32 s{t0}, s{t0}, s{t1}', f's_lshr_b32 s{t1}, s{sW}, 1', f's_mul_i32 s{t1}, s{t1}, {TS}', f's_add_u32 s{t0}, s{t0}, s{t1}', f's_mul_i32 s{t1}, s{sI}, {2*TS}']
    L += [f's_add_u32 s{t0}, s{t0}, s{t1}'] if which == 'a' else [f's_sub_u32 s{t0}, s{t0}, s{t1}', f's_add_u32 s{t0}, s{t0}, {30*TS}']
    L += [f's_add_u32 s{t0+k}, s{t0}, {4096*k}' for k in range(1, 4)]
    for q in (q0, q0 + 1):
        L += xlane('v_add_f32', vl + q, vT) + [f'v_rcp_f32 v{vl+q}, v{vl+q}']
    for q in (q0, q0 + 1):
        for h in range(2):
            r = TMPV + 16 * h; p = TMPB + 8 * h
            for j in range(16): L.append(f'v_accvgpr_read_b32 v{r+j}, a{Or(q,4*h)+j}')
            for j in range(16): L.append(f'v_mul_f32 v{r+j}, v{r+j}, v{vl+q}')
            for j in range(8): L.append(f'v_cvt_pk_bf16_f32 v{p+j}, v{r+2*j}, v{r+2*j+1}')
            for x in range(2): L.append(f'buffer_store_dwordx4 {vr(p+4*x,4)}, v{vL16}, {sr(sWS,4)}, s{t0+2*h+x} offen offset:{(q&1)*1024}{SF}')
    return L

def last_pv():
    par = 1
    mf = pv_mfmas('s', par)
    frs = pv_frags('s')
    t0, t1 = sT + 4, sT + 5
    head = lupd('s') + [f's_lshl_b32 s{t0}, s{sH}, 14', f's_add_u32 s{t0}, s{t0}, {CTX}', f's_and_b32 s{t1}, s{sW}, 1', f's_lshl_b32 s{t1}, s{t1}, 11', f's_add_u32 s{t0}, s{t0}, s{t1}', f's_lshr_b32 s{t1}, s{sW}, 1', f's_mul_i32 s{t1}, s{t1}, {TS}', f's_add_u32 s{t0}, s{t0}, s{t1}', f's_mul_i32 s{t1}, s{sI}, {2*TS}'] + [f's_sub_u32 s{t0}, s{t0}, s{t1}', f's_add_u32 s{t0}, s{t0}, {30*TS}'] + [f's_add_u32 s{t0+k}, s{t0}, {4096*k}' for k in range(1, 4)]
    for sw in ('32', '16'):
        head += [f'v_mov_b32 v{vT}, v{vl+2}', f'v_mov_b32 v{vT+1}, v{vl+3}', 's_nop 0', f'v_permlane{sw}_swap_b32 v{vl+2}, v{vT}', f'v_permlane{sw}_swap_b32 v{vl+3}, v{vT+1}',
                 f'v_add_f32 v{vl+2}, v{vl+2}, v{vT}', f'v_add_f32 v{vl+3}, v{vl+3}, v{vT+1}']
    head += [f'v_rcp_f32 v{vl+2}, v{vl+2}', f'v_rcp_f32 v{vl+3}, v{vl+3}']
    def fin_db(db):
        X = []
        for q in (2, 3):
            r = TMPV + 8 * (q - 2) + 16 * (db & 1); p = TMPB + 4 * (q - 2) + 8 * (db & 1)
            X += [f'v_accvgpr_read_b32 v{r+j}, a{Or(q,2*db)+j}' for j in range(8)]
            X += [f'v_mul_f32 v{r+j}, v{r+j}, v{vl+q}' for j in range(8)]
            X += [f'v_cvt_pk_bf16_f32 v{p+j}, v{r+2*j}, v{r+2*j+1}' for j in range(4)]
            X += [f'buffer_store_dwordx4 {vr(p,4)}, v{vL16}, {sr(sWS,4)}, s{t0+db} offen offset:{(q&1)*1024}{SF}']
        return X
    L = []
    fill = head + ['#1'] + fin_db(0) + ['#2'] + fin_db(1) + ['#3'] + fin_db(2)
    fi = 0
    for g, m in enumerate(mf):
        if g % 8 == 0: L.append(';NEED ' + ' '.join(ar(slot(gg), 4) for gg, fu, off in frs if g <= fu < g + 8))
        L.append(m)
        for gg, fu, off in frs:
            if gg - D == g: L.append(rd(gg, off, par))
        n = 0
        while fi < len(fill) and n < 5:
            x = fill[fi]
            if x.startswith('#'):
                if g < 8 * int(x[1]) + 2: break
                fi += 1; continue
            L.append(x); fi += 1; n += 1
    L += [x for x in fill[fi:] if not x.startswith('#')] + ['s_nop 3'] + fin_db(3)
    return L

def hook(bit, saddr, uid):
    if not FUSE3: return []
    STUBS.extend([f'K2_H{uid}:', f's_bitset1_b32 s{sSig}, {bit}', f's_cmp_lg_u32 s{sW}, 0', f's_cbranch_scc1 K2_HR{uid}', f'v_mov_b32 v{vT}, 1', f'v_mov_b32 v{vT+1}, 0', 's_mov_b64 exec, 1',
                  f'buffer_store_dword v{vT}, v{vT+1}, {sr(sWS,4)}, s{saddr} offen sc1', 's_mov_b64 exec, -1', 's_nop 3', f's_branch K2_HR{uid}'])
    return [f's_bitcmp0_b32 s{sSig}, {bit}', f's_cbranch_scc1 K2_H{uid}', f'K2_HR{uid}:']

def gen_k2():
    if FUSE3: import tail as TAILM
    name = 'k2_kernel'
    L = []; a = L.append
    if not FUSE:
        a(f'.p2align 8\n.type {name},@function\n{name}:')
        a('s_cmp_ge_u32 s2, 256'); a('s_cbranch_scc1 K2_END')
        if os.environ.get('CPF', '1') == '1': L += code_prefetch('k2_kernel', 'k3_kernel', 'K2', 246, 247, 90, 8)
        a('s_load_dwordx2 s[4:5], s[0:1], 88'); a('s_load_dwordx2 s[6:7], s[0:1], 0'); a('s_load_dwordx2 s[56:57], s[0:1], 16'); a('s_load_dwordx2 s[68:69], s[0:1], 40'); a('s_load_dwordx2 s[76:77], s[0:1], 64')
        a('v_lshrrev_b32 v1, 6, v0'); a('v_and_b32 v0, 63, v0'); a(f'v_readfirstlane_b32 s{sW}, v1')
    else:
        for srd, p, n in ((sWO, 14, 0x400000), (sWB, 20, 0x80000), (sDB, 24, 256), (sWQ, 8, 0x400000), (sX, 4, 0x200000), (sWS, 26, 0x10000000)):
            a(f's_mov_b32 s{srd}, s{p}'); a(f's_mov_b32 s{srd+1}, s{p+1}'); a(f's_mov_b32 s{srd+2}, {hex(n)}'); a(f's_mov_b32 s{srd+3}, 0x20000')
        a(f's_mov_b64 s[96:97], s[22:23]')
        a(f's_mov_b32 s{sW}, s40')
        L += gstamp(6, sDB, 2, 3)
    a(f'v_lshlrev_b32 v{vL16}, 4, v0')
    if os.environ.get('K2_MAP') == '8x4':
        a(f's_bfe_u32 s{sH}, s2, 0x20001'); a(f's_lshl_b32 s{sH}, s{sH}, 3'); a(f's_bfe_u32 s{sT}, s2, 0x30003'); a(f's_add_u32 s{sH}, s{sH}, s{sT}')
        a(f's_lshr_b32 s{sI}, s2, 6'); a(f's_lshl_b32 s{sI}, s{sI}, 1'); a(f's_and_b32 s{sT}, s2, 1'); a(f's_add_u32 s{sI}, s{sI}, s{sT}')
    else:
        a(f's_and_b32 s{sH}, s2, 31'); L += remap_i(sI, sT, sT + 1)
    a(f's_lshl_b32 s{sW2}, s{sW}, 11'); a(f's_lshl_b32 s{sW4}, s{sW}, 12'); a(f's_add_u32 s{sW2K}, s{sW2}, 16384'); a(f's_add_u32 s{sW4K}, s{sW4}, 16384')
    a(f'v_mov_b32 v{vBig}, {f32(NEGBIG)}')
    a(f'v_and_b32 v{vq}, 15, v0'); a(f'v_lshrrev_b32 v{vT}, 4, v0'); a(f'v_lshlrev_b32 v{vT}, 2, v{vT}'); a(f'v_sub_u32 v{vq}, v{vq}, v{vT}')
    a('s_waitcnt lgkmcnt(0)')
    for srd, p, n in () if FUSE else ((sWS, 4, 0x10000000), (sX, 6, 0x200000), (sWQ, 56, 0x400000), (sWO, 68, 0x400000), (sWB, 76, 0x80000)):
        a(f's_mov_b32 s{srd}, s{p}'); a(f's_mov_b32 s{srd+1}, s{p+1}'); a(f's_mov_b32 s{srd+2}, {hex(n)}'); a(f's_mov_b32 s{srd+3}, 0x20000')
    if DIAG: a('s_mov_b32 s72, 0'); a(f'v_mov_b32 v{vDG}, 0'); a(f'v_mov_b32 v{vDG+2}, 0'); L += stamp()
    raw0 = qproj() + stamp() + gstamp(7, sDB, 16, 17) + gstamp(8, sDB, 16, 17, neg=True) + a_prologue() + stamp()
    skip = [x for x in raw0 if x.startswith('SKIP ')]
    pre = auto_waits([], [x if not x.startswith('SKIP ') else '.L_skip0:' for x in raw0])
    sub = {'.L_skip0:': skip[0][5:] if skip else None, 'POLLL:': f'buffer_load_dword v247, v246, {sr(sDB,4)}, 0 offen sc1', 'POLLW:': 's_waitcnt vmcnt(12)'}
    L += [sub.get(x, x) for x in pre]
    def two(uid, b0, b1): return body(0, *b0, uid + 'a') + body(1, *b1, uid + 'b')
    raw = {
     'CC': two('CC', ('c','c','c','c','c','c',None), ('c','c','c','c','c','c',None)),
     'X1': two('X1', ('c','c','c','c','c','c',None), ('c','c','c','c','c','c',0)),
     'X2': two('X2', ('c','c','c','c','c','s',1), ('c','c','c','c','c','s',2)),
     'X3': two('X3', ('c','c','s','c','s','s',3), ('c','s','s','s','s','s',None)) + ([] if FUSE3 else wo_fin()) + fin_rows('a'),
     'X3b': two('X3b', ('c','c','s','c','s',None,3), ('c','s','s','s','s',None,0)) + ([] if FUSE3 else wo_fin()) + fin_rows('a'),
     'SS': two('SS', ('s','s','s','s','s','s',None), ('s','s','s','s','s','s',None)),
     'X4': two('X4', ('s','s','s','s','s',None,None), ('s','s','s','s','s',None,0)),
     'TL': (TAILM.pre_polls() if FUSE3 else []) + body(0, 's','s',None,'s',None,None,2, 'TLa') + last_pv(),
    }
    preds = {'CC': ['pre', 'CC'], 'X1': ['CC'], 'X2': ['X1', 'pre'], 'X3': ['X2'], 'X3b': ['X2'], 'SS': ['X3', 'SS'], 'X4': ['SS'], 'TL': ['X4', 'X3b']}
    fin = {'pre': pre}
    for it in range(3):
        for k in raw:
            fin[k] = merge_min([auto_waits(fin[p], raw[k]) for p in preds[k] if p in fin])
    a(f's_cmp_eq_u32 s{sI}, 0'); a('s_cbranch_scc1 K2_X2')
    a(f's_lshl_b32 s{sCnt}, s{sI}, 1'); a(f's_sub_u32 s{sCnt}, s{sCnt}, 1')
    a('.p2align 6\nK2_CC:'); L += fin['CC'] + hook(0, sFw, 'a') + [f's_sub_u32 s{sCnt}, s{sCnt}, 1', f's_cmp_lg_u32 s{sCnt}, 0', 's_cbranch_scc1 K2_CC']
    L += stamp()
    L += fin['X1']
    a('K2_X2:'); L += adv64(sK2, f's{sW2}'); L += fin['X2'] + hook(0, sFw, 'b')
    L += adv64(sV2, f's{sW2}')
    a(f's_cmp_eq_u32 s{sI}, 7'); a('s_cbranch_scc1 K2_X3b')
    L += fin['X3']
    L += stamp()
    a(f's_lshl_b32 s{sCnt}, s{sI}, 1'); a(f's_sub_u32 s{sCnt}, 13, s{sCnt}')
    a('.p2align 6\nK2_SS:'); L += fin['SS'] + hook(1, sFa, 'c') + [f's_sub_u32 s{sCnt}, s{sCnt}, 1', f's_cmp_lg_u32 s{sCnt}, 0', 's_cbranch_scc1 K2_SS']
    L += stamp()
    L += fin['X4']
    a('K2_TL:'); L += fin['TL']
    L += stamp()
    epi = []
    L += epi
    if FUSE3:
        import tail, k3
        L += stamp() + gstamp(9, sDB, 16, 17) + gstamp(10, sDB, 16, 17, neg=True) + tail.gen_tail(fin['TL'] + epi) + k3.STUBS
    else:
        if DIAG:
            L += stamp(); a('s_waitcnt vmcnt(0)'); L += stamp()
            L += dstore(vDG, vDG + 1, vDG + 2, sW, sWS, 201)
        L += gstamp(9, sDB, 16, 17) + gstamp(10, sDB, 16, 17, neg=True)
        a('K2_END:'); a('s_endpgm')
    a('K2_X3b:'); L += fin['X3b']; a('s_branch K2_TL')
    L += STUBS
    for r in sorted(RARES): L += rare(*r)
    L += rescale_o()
    for m in sorted(MASKS): L += mask_routine(*m)
    f = fin
    check_trace(pre + ['s_nop 0'] * 2 + f['X2'] + f['X3'] + f['SS'] + f['SS'] + f['X4'] + f['TL'] + epi, 'k2 i=0')
    check_trace(pre + ['s_nop 0'] * 4 + f['CC'] + f['CC'] + f['X1'] + f['X2'] + f['X3b'] + f['TL'] + epi, 'k2 i=7')
    if FUSE: return L, '', None
    return L, kdesc(name, 512, 256), f'; @launch kernel={name} grid=(256,1,1) block=(256,1,1) lds=163840'
```
